```python
import torch

def _softmax(x, axis=-1):
    return torch.softmax(x, dim=axis)
def _gelu(x):
    return torch.nn.functional.gelu(x, approximate="tanh")
def _silu(x):
    return torch.nn.functional.silu(x)
def _sigmoid(x):
    return torch.sigmoid(x)
def _layernorm(x, axis=-1, eps=1e-5):
    m = x.mean(dim=axis, keepdim=True)
    v = x.var(dim=axis, keepdim=True, unbiased=False)
    return (x - m) / torch.sqrt(v + eps)
def _scatter_add(tgt, idx, src, axis=0):
    return tgt.clone().index_add_(axis, idx, src)
def _segment_sum(src, seg, n):
    out = torch.zeros((n,) + src.shape[1:], dtype=src.dtype)
    return out.index_add_(0, seg, src)
def _pad(x, pw):
    flat = tuple(v for pair in reversed(pw) for v in pair)
    return torch.nn.functional.pad(x, flat)

kernel_name = 'interleave_layers__ssm_conv_s4d__linear_attn_block__prompt'

def setup_inputs():

    _w = (lambda a: (lambda t: t.to(torch.bfloat16) if t.is_floating_point() else t)(torch.as_tensor(a)))
    def _A_setup():
        Bsz, L, D, N = 1, 2048, 512, 128
        return {
            "u": _w((lambda *s: torch.randn(*s, dtype=torch.bfloat16) * 0.05)(Bsz, L, D)),
            "log_A_real": _w((lambda *s: torch.randn(*s, dtype=torch.bfloat16) * 1.6)(D, N) * 0.5),
            "A_imag": _w((lambda *s: torch.randn(*s, dtype=torch.bfloat16) * 0.05)(D, N) * 3.14),
            "C_real": _w((lambda *s: torch.randn(*s, dtype=torch.bfloat16) * 0.05)(D, N) / N ** 0.5),
            "C_imag": _w((lambda *s: torch.randn(*s, dtype=torch.bfloat16) * 0.05)(D, N) / N ** 0.5),
            "log_dt": _w((lambda *s: torch.randn(*s, dtype=torch.bfloat16) * 0.05)(D) * 0.5 - 4.0),
            "D_skip": _w((lambda *s: torch.randn(*s, dtype=torch.bfloat16) * 0.05)(D)),
        }
    _A_in = _A_setup()

    def _B_setup():
        B, S, D = 1, 2048, 512
        return {
            "x": _w((lambda *s: torch.randn(*s, dtype=torch.bfloat16) * 0.05)(B, S, D)),
            "wqkv": _w((lambda *s: torch.randn(*s, dtype=torch.bfloat16) * 0.05)(D, 3 * D)),
            "wo": _w((lambda *s: torch.randn(*s, dtype=torch.bfloat16) * 0.05)(D, D)),
        }
    _B_in = _B_setup()

    return {
        "A_u": _A_in["u"],
        "A_log_A_real": _A_in["log_A_real"],
        "A_A_imag": _A_in["A_imag"],
        "A_C_real": _A_in["C_real"],
        "A_C_imag": _A_in["C_imag"],
        "A_log_dt": _A_in["log_dt"],
        "A_D_skip": _A_in["D_skip"],
        "B_x": _B_in["x"],
        "B_wqkv": _B_in["wqkv"],
        "B_wo": _B_in["wo"],
    }

def reference(A_u, A_log_A_real, A_A_imag, A_C_real, A_C_imag, A_log_dt, A_D_skip, B_x, B_wqkv, B_wo):
    def _A_ref(u, log_A_real, A_imag, C_real, C_imag, log_dt, D_skip):
        L = u.shape[1]
        dt = torch.exp(log_dt)
        A = -torch.exp(log_A_real) + 1j * A_imag
        C = (C_real + 1j * C_imag) * dt[:, None]
        pos = (lambda x, dt: x.to(dt))(torch.arange(L), log_dt.dtype)
        P = torch.exp((A * dt[:, None])[:, :, None] * pos[None, None, :])
        K = 2.0 * torch.einsum("dn,dnl->dl", C, P).real
        L2 = 2 * L
        u_t = (lambda x, *d: x.permute(*d))(u, 0, 2, 1)
        Kf = (lambda x, *a, **k: torch.fft.rfft(x.float(), *a, **k))(K, L2)
        Uf = (lambda x, *a, **k: torch.fft.rfft(x.float(), *a, **k))(u_t, L2)
        y = (lambda x, *a, **k: torch.fft.irfft(x, *a, **k).to(torch.bfloat16))(Uf * Kf[None, :, :], L2)[:, :, :L]
        y = (lambda x, *d: x.permute(*d))(y, 0, 2, 1)
        return y + u * D_skip[None, None, :]

    def _B_ref(x, wqkv, wo):
        B, S, D = x.shape
        H = 32; Dh = D // H
        qkv = (lambda x, *d: x.permute(*d))((x @ wqkv).reshape(B, S, 3, H, Dh), 2, 0, 3, 1, 4)
        q, k, v = qkv[0], qkv[1], qkv[2]
        phi = lambda t: torch.where(t > 0, t + 1, torch.exp(t)) + 1e-6
        pq, pk = phi(q), phi(k)
        kv = torch.einsum("bhsd,bhse->bhde", pk, v)
        z = torch.einsum("bhsd->bhd", pk)
        num = torch.einsum("bhqd,bhde->bhqe", pq, kv)
        den = torch.einsum("bhqd,bhd->bhq", pq, z)[..., None] + 1e-6
        o = num / den
        return (lambda x, *d: x.permute(*d))(o, 0, 2, 1, 3).reshape(B, S, D) @ wo

    x = A_u
    x = x + _A_ref(_layernorm(x, axis=-1), A_log_A_real, A_A_imag, A_C_real, A_C_imag, A_log_dt, A_D_skip)
    x = x + _B_ref(_layernorm(x, axis=-1), B_wqkv, B_wo)
    x = x + _A_ref(_layernorm(x, axis=-1), A_log_A_real, A_A_imag, A_C_real, A_C_imag, A_log_dt, A_D_skip)
    x = x + _B_ref(_layernorm(x, axis=-1), B_wqkv, B_wo)
    return x
```

```python
import re

TRANS = ('v_exp_f32','v_log_f32','v_rcp_f32','v_rsq_f32','v_sqrt_f32','v_sin_f32','v_cos_f32')

def regs_of(op):
    op = op.strip()
    neg = op.lstrip('-')
    m = re.fullmatch(r'abs\((.*)\)', neg)
    if m: neg = m.group(1)
    m = re.fullmatch(r'\|(.*)\|', neg)
    if m: neg = m.group(1)
    m = re.fullmatch(r'([vas])(\d+)', neg)
    if m: return {(m.group(1), int(m.group(2)))}
    m = re.fullmatch(r'([vas])\[(\d+):(\d+)\]', neg)
    if m: return {(m.group(1), i) for i in range(int(m.group(2)), int(m.group(3))+1)}
    if neg == 'vcc': return {('s','vcc')}
    if neg in ('vcc_lo','vcc_hi'): return {('s','vcc')}
    if neg == 'exec': return {('s','exec')}
    if neg == 'm0': return {('s','m0')}
    return set()

class Ins:
    __slots__ = ('text','op','ops','cls','wr','rd','passes','srcC','srcAB','isnop','comment')
    def __init__(self, text):
        self.text = text
        t = text.split(';')[0].strip()
        self.op = t.split()[0] if t else ''
        rest = t[len(self.op):].strip()
        ops = []; depth = 0; cur = ''
        for ch in rest:
            if ch in '[(': depth += 1
            if ch in '])': depth -= 1
            if ch == ',' and depth == 0: ops.append(cur.strip()); cur = ''
            else: cur += ch
        if cur.strip(): ops.append(cur.strip())
        mods = []
        clean = []
        for o in ops:
            parts = o.split()
            clean.append(parts[0] if parts else '')
            mods += parts[1:]
        self.ops = clean
        op = self.op
        self.wr = set(); self.rd = set(); self.passes = 0; self.srcC = set(); self.srcAB = set()
        R = regs_of
        def rdall(lst):
            s = set()
            for o in lst: s |= R(o)
            return s
        base = op.replace('_e32','').replace('_e64','').replace('_dpp','').replace('_sdwa','')
        self.isnop = 0
        if op == 's_nop':
            self.cls = 'nop'; self.isnop = int(clean[0], 0) + 1
        elif op.startswith('v_mfma'):
            self.cls = 'mfma'
            self.wr = R(clean[0]); self.srcAB = R(clean[1]) | R(clean[2]); self.srcC = R(clean[3])
            self.rd = self.srcAB | self.srcC
            if '32x32x16' in op or '32x32x8' in op: self.passes = 8
            elif '16x16x32' in op or '16x16x16' in op: self.passes = 4
            else: raise ValueError('unknown mfma '+op)
        elif op.startswith('v_cmpx'):
            self.cls = 'valu'; self.wr = R(clean[0]) | {('s','exec')}; self.rd = rdall(clean[1:])
        elif op.startswith('v_cmp'):
            self.cls = 'valu'; self.wr = R(clean[0]); self.rd = rdall(clean[1:])
        elif base in ('v_readfirstlane_b32','v_readlane_b32'):
            self.cls = 'valu'; self.wr = R(clean[0]); self.rd = rdall(clean[1:])
        elif base.startswith('v_permlane') and 'swap' in base:
            self.cls = 'valu'; self.wr = R(clean[0]) | R(clean[1]); self.rd = set(self.wr)
        elif base.startswith('v_add_co') or base.startswith('v_sub_co') or base.startswith('v_addc_co') or base.startswith('v_subb_co'):
            self.cls = 'valu'; self.wr = R(clean[0]) | R(clean[1]); self.rd = rdall(clean[2:])
        elif op.startswith('v_'):
            self.cls = 'trans' if base in TRANS else 'valu'
            self.wr = R(clean[0]); self.rd = rdall(clean[1:])
            if base in ('v_fmac_f32','v_dot2c_f32_bf16','v_pk_fmac_f16','v_fmac_f16') or 'dpp' in op or any(m.startswith(('row_','quad_perm','wave_')) for m in mods):
                self.rd |= self.wr
            if base == 'v_cndmask_b32' and len(clean) == 3: self.rd |= {('s','vcc')}
            if base == 'v_writelane_b32': self.rd |= self.wr
        elif op.startswith('ds_'):
            self.cls = 'ds'
            if op.startswith('ds_read') or op.startswith('ds_bpermute') or op.startswith('ds_permute') or op.startswith('ds_swizzle'):
                self.wr = R(clean[0]); self.rd = rdall(clean[1:])
                if 'd16' in op: self.rd |= self.wr
            else:
                self.rd = rdall(clean)
        elif op.startswith(('global_','buffer_','flat_')):
            self.cls = 'vmem'
            if op in ('buffer_inv','buffer_wbl2'):
                pass
            elif 'lds' in mods or op.startswith('global_load_lds'):
                self.rd = rdall(clean) | {('s','m0')}
            elif '_load' in op:
                self.wr = R(clean[0]); self.rd = rdall(clean[1:])
                if 'd16' in op: self.rd |= self.wr
            elif 'atomic' in op and ('sc0' in mods):
                self.wr = R(clean[0]); self.rd = rdall(clean)
            else:
                self.rd = rdall(clean)
        elif op.startswith('s_'):
            self.cls = 'salu'
            if op.startswith(('s_cmp','s_cbranch','s_branch','s_waitcnt','s_barrier','s_endpgm','s_sleep','s_setprio','s_bitcmp')):
                self.rd = rdall(clean)
            else:
                self.wr = R(clean[0]) if clean else set(); self.rd = rdall(clean[1:])
                if 'saveexec' in op: self.wr |= {('s','exec')}
        else:
            self.cls = 'other'
        self.comment = mods
    def is_dpp(self):
        return '_dpp' in self.op or any(m.startswith(('row_','quad_perm','wave_')) for m in self.comment)
    def is_wide_store(self):
        return self.cls == 'vmem' and ('store_dwordx4' in self.op or 'store_dwordx3' in self.op)
    def store_data(self):
        if self.op.startswith('buffer_store'): return regs_of(self.ops[0])
        if self.op.startswith('global_store'): return regs_of(self.ops[1])
        return set()

def vonly(s): return {r for r in s if r[0] in 'va'}
def sonly(s): return {r for r in s if r[0] == 's'}

def need(p, c):
    n = 0
    pv = p.cls in ('valu','trans')
    cv = c.cls in ('valu','trans')
    if pv:
        w = vonly(p.wr); ws = sonly(p.wr)
        if c.cls == 'mfma' and (w & c.rd): n = max(n, 2)
        if cv and c.is_dpp() and (w & c.rd): n = max(n, 2)
        if cv and c.op.startswith('v_permlane') and (w & c.rd): n = max(n, 2)
        if cv and c.op.startswith(('v_readfirstlane','v_readlane')) and (w & c.rd): n = max(n, 1)
        if p.cls == 'trans' and cv and c.cls != 'trans' and (w & c.rd): n = max(n, 1)
        if p.cls == 'trans' and c.cls == 'trans' and (w & c.rd): n = max(n, 1)
        if ws:
            if c.cls == 'vmem' and (ws & c.rd): n = max(n, 5)
            if cv and (ws & c.rd): n = max(n, 2)
            if cv and c.op.startswith(('v_readlane','v_writelane')) and (ws & c.rd): n = max(n, 4)
            if ('s','exec') in ws:
                if c.cls == 'mfma': n = max(n, 4)
                if cv and c.is_dpp(): n = max(n, 5)
                if cv and c.op.startswith(('v_readlane','v_readfirstlane','v_permlane')): n = max(n, 4)
            if c.cls == 'salu' and (ws & c.rd): n = max(n, 4)
            if c.op.startswith('s_cbranch_vcc') and ('s','vcc') in ws: n = max(n, 5)
            if c.op.startswith('s_cbranch_exec') and ('s','exec') in ws: n = max(n, 5)
    if p.op.startswith('v_dot'):
        w = vonly(p.wr)
        if w & (c.rd | c.wr):
            same = (c.op == p.op)
            if same and len(c.ops) == 4 and not (w & (regs_of(c.ops[1]) | regs_of(c.ops[2]))): pass
            elif same and len(c.ops) == 3 and not (w & (regs_of(c.ops[1]) | regs_of(c.ops[2]))): pass
            else: n = max(n, 3)
    if p.cls == 'mfma':
        d = p.wr
        P = p.passes
        if c.cls == 'mfma':
            if d & c.srcC:
                if c.srcC == d and c.passes == P and c.wr == d: n = max(n, 0)
                else: n = max(n, {4:6, 8:10}[P])
            if d & c.srcAB: n = max(n, {4:8, 8:12}[P])
            if (d & c.wr) and not (d & c.srcC): n = max(n, {4:8, 8:12}[P])
        elif cv or c.cls in ('ds','vmem'):
            if d & (c.rd | c.wr): n = max(n, {4:8, 8:12}[P])
        if cv and (p.srcC & vonly(c.wr)): n = max(n, {4:3, 8:7}[P])
        if c.cls in ('ds','vmem') and (p.srcC & vonly(c.wr)): n = max(n, {4:3, 8:7}[P])
    if p.cls == 'salu':
        if ('s','m0') in p.wr and ((c.cls == 'vmem' and ('s','m0') in c.rd)): n = max(n, 1)
        if ('s','exec') in p.wr and cv and c.is_dpp(): n = max(n, 1)
    if p.is_wide_store() or (p.cls == 'ds' and False):
        if (cv or c.cls == 'mfma') and (p.store_data() & vonly(c.wr)): n = max(n, 2)
        elif c.cls in ('ds','vmem') and (p.store_data() & vonly(c.wr)): n = max(n, 1)
    return n

class Asm:
    def __init__(self):
        self.lines = []
        self.uid = 0
    def __call__(self, text):
        for ln in text.split('\n'):
            t = ln.strip()
            if not t: continue
            if t.startswith(';') or t.startswith('.') or t.endswith(':'):
                self.lines.append(t)
            else:
                self.lines.append(Ins(t))
    def label(self, base='L'):
        self.uid += 1
        return f'{base}_{self.uid}'
    def comment(self, s): self.lines.append('; ' + s)
    def finalize(self, lookback=24):
        out = []
        hist = []
        nnop = 0
        for x in self.lines:
            if isinstance(x, str):
                if x.endswith(':'):
                    pass
                out.append(x); continue
            dist = 0; req = 0
            for p in reversed(hist):
                if dist >= lookback: break
                n = need(p, x)
                if n > dist: req = max(req, n - dist)
                dist += p.isnop if p.cls == 'nop' else 1
            while req > 0:
                k = min(req, 16)
                nop = Ins(f's_nop {k-1}')
                out.append(nop); hist.append(nop); req -= k; nnop += 1
            out.append(x); hist.append(x)
            if len(hist) > 64: hist = hist[-64:]
        self.nnop = nnop
        return '\n'.join(('  ' + o.text) if isinstance(o, Ins) else o for o in out) + '\n'
    def count(self):
        return sum(1 for x in self.lines if isinstance(x, Ins))
```

```python
import sys, os, math
sys.path.insert(0, os.path.dirname(os.path.abspath(__file__)))
from asmgen import Asm

NAME = 'interleave_layers__ssm_conv_s4d__linear_attn_block__prompt'

CNT  = 0x0
ZR   = 0x4000
KVM  = [ZR, ZR + 32768]
ZZ   = [ZR + 65536, ZR + 67584]
ST3  = ZR + 69632
ST1  = 0x1C000
TS   = 0x20000
XT   = [0x100000, 0x300000, 0x500000, 0x700000]
PQ   = [0x900000, 0xB00000]
WS_SIZE = 0xD00000

L_WO = 0
L_KC = 65536
L_XL = 82432
L_MISC = L_XL + 65536
LDS_SIZE = 163840
L_U  = L_XL
L_Y  = L_XL + 18560
L_SR = L_Y
L_TA = L_XL
L_TB = L_XL + 9216
L_CT = L_XL + 18432
L_KD = L_XL + 28672
L_KVF = L_XL
L_RED = L_XL + 17408
L_OT  = L_XL + 33792
L_S2R = L_MISC
L_S2M = L_MISC + 256
L_STG = L_MISC + 512

LOG2E = 1.4426950408889634
def f2u(x):
    import struct
    return struct.unpack('<I', struct.pack('<f', x))[0]
def fx(x): return '0x%08x' % f2u(x)

def v(i, n=1): return f'v{i}' if n == 1 else f'v[{i}:{i+n-1}]'
def ar(i, n=1): return f'a{i}' if n == 1 else f'a[{i}:{i+n-1}]'

S_ID='s2'; S_W='s3'; S_RT='s4'; S_CG='s5'; S_LAYER='s6'; S_TGT='s7'
SRD_WS='s[44:47]'; SRD_WQ='s[48:51]'; SRD_WO='s[52:55]'; SRD_OUT='s[56:59]'; SRD_X0='s[60:63]'
S_ONES='s64'
S_EXS='s[70:71]'
S_XIN='s72'; S_XOUT='s73'; S_ST='s74'; S_PQ='s75'; S_KV='s76'; S_Z='s77'
S_SPIN='s78'
S_T0='s8'; S_T1='s9'; S_T2='s10'; S_T3='s11'; S_T4='s12'; S_T5='s13'

V_TID=0
V_LANE=255; V_WSK=254; V_WSV=253; V_WSQ=248
V_DSK=252; V_CNT=247; V_POLL=246; V_ONE=245
V_L16=244; V_H=243

class Gen:
    def __init__(self, stop=None, ts=False):
        self.a = Asm()
        self.stop = stop
        self.ts = ts
        self.tsn = 0

    def stamp(self):
        if not self.ts: return
        a = self.a
        n = self.tsn; self.tsn += 1
        l = a.label('TSK')
        a(f"""
        s_cmp_eq_u32 {S_W}, 0
        s_cbranch_scc0 {l}
        s_memrealtime s[80:81]
        s_waitcnt lgkmcnt(0)
        s_lshl_b32 s82, {S_ID}, 8
        s_add_u32 s82, s82, {TS + n*8}
        s_lshl_b32 s83, {S_LAYER}, 7
        s_add_u32 s82, s82, s83
        v_mov_b32 v240, s82
        v_mov_b32 v238, s80
        v_mov_b32 v239, s81
        s_mov_b64 {S_EXS}, exec
        s_mov_b64 exec, 1
        buffer_store_dwordx2 v[238:239], v240, {SRD_WS}, 0 offen
        s_mov_b64 exec, {S_EXS}
        {l}:
        """)

    def arrive(self, first=False):
        a = self.a
        l = a.label('ARR')
        a(f"""
        s_waitcnt vmcnt(0) lgkmcnt(0)
        s_barrier
        s_add_u32 {S_TGT}, {S_TGT}, 16
        s_cmp_eq_u32 {S_W}, 0
        s_cbranch_scc0 {l}
        s_mov_b64 {S_EXS}, exec
        """)
        if first:
            lp = a.label('INITP'); ld = a.label('INITD')
            a(f"""
            s_mov_b64 exec, 1
            s_mov_b32 {S_SPIN}, 0
            v_mov_b32 v236, 0
            {lp}:
            global_load_dword v237, v236, s[38:39] sc1
            s_waitcnt vmcnt(0)
            v_cmp_eq_u32 vcc, 16, v237
            s_cbranch_vccnz {ld}
            s_add_u32 {S_SPIN}, {S_SPIN}, 1
            s_cmp_lt_u32 {S_SPIN}, 0x200000
            s_cbranch_scc1 {lp}
            {ld}:
            """)
        a(f"""
        s_mov_b64 exec, 1
        buffer_atomic_add v{V_ONE}, v{V_CNT}, {SRD_WS}, 0 offen sc1
        s_mov_b64 exec, {S_EXS}
        {l}:
        """)

    def wait(self):
        a = self.a
        l = a.label('WT'); lp = a.label('POLL'); ld = a.label('PD')
        a(f"""
        s_cmp_eq_u32 {S_W}, 0
        s_cbranch_scc0 {l}
        s_mov_b64 {S_EXS}, exec
        s_mov_b64 exec, 0xffff
        s_mov_b32 {S_SPIN}, 0
        {lp}:
        buffer_load_dword v237, v{V_POLL}, {SRD_WS}, 0 offen sc1
        s_waitcnt vmcnt(0)
        v_cmp_gt_u32 vcc, {S_TGT}, v237
        s_cbranch_vccz {ld}
        s_add_u32 {S_SPIN}, {S_SPIN}, 1
        s_cmp_lt_u32 {S_SPIN}, 0x200000
        s_cbranch_scc1 {lp}
        {ld}:
        s_mov_b64 exec, {S_EXS}
        {l}:
        s_barrier
        """)

    def reduce_h(self, r, t):
        a = self.a
        a(f"""
        v_mov_b32 v{t}, v{r}
        v_permlane16_swap_b32 v{r}, v{t}
        v_add_f32 v{r}, v{r}, v{t}
        v_mov_b32 v{t}, v{r}
        v_permlane32_swap_b32 v{r}, v{t}
        v_add_f32 v{r}, v{r}, v{t}
        """)

    def reduce16(self, r):
        a = self.a
        a(f"""
        v_add_f32_dpp v{r}, v{r}, v{r} quad_perm:[1,0,3,2] row_mask:0xf bank_mask:0xf
        v_add_f32_dpp v{r}, v{r}, v{r} quad_perm:[2,3,0,1] row_mask:0xf bank_mask:0xf
        v_add_f32_dpp v{r}, v{r}, v{r} row_half_mirror row_mask:0xf bank_mask:0xf
        v_add_f32_dpp v{r}, v{r}, v{r} row_mirror row_mask:0xf bank_mask:0xf
        """)

    def ln_final(self, sm, sq, r_out, mr_out, t):
        a = self.a
        a(f"""
        v_mul_f32 v{t}, {fx(1/512)}, v{sm}
        v_mul_f32 v{t+1}, {fx(1/512)}, v{sq}
        v_fma_f32 v{t+1}, -v{t}, v{t}, v{t+1}
        v_cvt_pk_bf16_f32 v{t+2}, v{t}, v{t+1}
        v_lshlrev_b32 v{t}, 16, v{t+2}
        v_and_b32 v{t+1}, 0xffff0000, v{t+2}
        v_add_f32 v{t+1}, {fx(1e-5)}, v{t+1}
        v_cvt_pk_bf16_f32 v{t+1}, v{t+1}, v{t+1}
        v_and_b32 v{t+1}, 0xffff0000, v{t+1}
        v_sqrt_f32 v{t+1}, v{t+1}
        v_cvt_pk_bf16_f32 v{t+1}, v{t+1}, v{t+1}
        v_and_b32 v{t+1}, 0xffff0000, v{t+1}
        v_rcp_f32 v{r_out}, v{t+1}
        v_mul_f32 v{mr_out}, v{t}, v{r_out}
        """)

    def prologue(self):
        a = self.a
        a(f"""
        s_cmp_ge_u32 {S_ID}, 256
        s_cbranch_scc1 L_END
        s_load_dwordx16 s[16:31], s[0:1], 0
        s_load_dwordx8 s[32:39], s[0:1], 64
        s_load_dwordx2 s[40:41], s[0:1], 96
        v_and_b32 v{V_LANE}, 63, v0
        v_lshrrev_b32 v1, 6, v0
        v_and_b32 v{V_L16}, 15, v0
        v_bfe_u32 v{V_H}, v0, 4, 2
        v_readfirstlane_b32 {S_W}, v1
        s_and_b32 {S_T0}, {S_ID}, 7
        s_lshl_b32 {S_T0}, {S_T0}, 2
        s_lshr_b32 {S_T1}, {S_ID}, 6
        s_add_u32 {S_RT}, {S_T0}, {S_T1}
        s_lshr_b32 {S_CG}, {S_ID}, 3
        s_and_b32 {S_CG}, {S_CG}, 7
        s_mov_b32 {S_LAYER}, 0
        s_mov_b32 {S_TGT}, 0
        s_mov_b32 {S_ONES}, 0x3f803f80
        v_mov_b32 v{V_ONE}, 1
        s_and_b32 {S_T0}, {S_ID}, 15
        s_lshl_b32 {S_T0}, {S_T0}, 10
        v_mov_b32 v{V_CNT}, {S_T0}
        v_lshlrev_b32 v{V_POLL}, 10, v{V_LANE}
        s_waitcnt lgkmcnt(0)
        s_mov_b32 s44, s40
        s_and_b32 s45, s41, 0xffff
        s_mov_b32 s46, {WS_SIZE}
        s_mov_b32 s47, 0x20000
        s_mov_b32 s48, s32
        s_and_b32 s49, s33, 0xffff
        s_mov_b32 s50, {512*1536*2}
        s_mov_b32 s51, 0x20000
        s_mov_b32 s52, s34
        s_and_b32 s53, s35, 0xffff
        s_mov_b32 s54, {512*512*2}
        s_mov_b32 s55, 0x20000
        s_mov_b32 s56, s36
        s_and_b32 s57, s37, 0xffff
        s_mov_b32 s58, {2048*512*2}
        s_mov_b32 s59, 0x20000
        s_mov_b32 s60, s16
        s_and_b32 s61, s17, 0xffff
        s_mov_b32 s62, {2048*512*2}
        s_mov_b32 s63, 0x20000
        """)

    def dma_weight(self, srd, rowpitch, colbyte_sreg, lds_base, swz, vtmp):
        a = self.a
        t = vtmp
        a(f"""
        v_lshrrev_b32 v{t}, 3, v{V_LANE}
        v_mul_u32_u24 v{t}, {rowpitch}, v{t}
        v_bfe_u32 v{t+1}, v{V_LANE}, 1, 2
        v_bfe_u32 v{t+2}, v{V_LANE}, 4, 1
        """)
        if swz == 'x':
            a(f"""
            s_and_b32 {S_T0}, {S_W}, 1
            s_lshl_b32 {S_T0}, {S_T0}, 1
            v_or_b32 v{t+2}, {S_T0}, v{t+2}
            """)
        else:
            a(f"v_lshlrev_b32 v{t+2}, 1, v{t+2}")
        a(f"""
        v_xor_b32 v{t+1}, v{t+1}, v{t+2}
        v_lshl_add_u32 v{t}, v{t+1}, 5, v{t}
        v_and_b32 v{t+1}, 1, v{V_LANE}
        v_lshl_add_u32 v{t}, v{t+1}, 4, v{t}
        v_add_u32 v{t}, {colbyte_sreg}, v{t}
        s_mul_i32 {S_T1}, {S_W}, {8*rowpitch}
        s_lshl_b32 {S_T2}, {S_W}, 10
        s_add_u32 {S_T2}, {S_T2}, {lds_base}
        """)
        for i in range(16):
            a(f"""
            s_mov_b32 m0, {S_T2}
            s_add_u32 {S_T2}, {S_T2}, 4096
            buffer_load_dwordx4 v{t}, {srd}, {S_T1} offen lds
            s_add_u32 {S_T1}, {S_T1}, {32*rowpitch}
            """)

    def tr_addr_x(self, dst4, base, vtmp, xorw):
        a = self.a
        t = vtmp
        a(f"""
        v_lshrrev_b32 v{t}, 2, v{V_L16}
        v_lshl_add_u32 v{t+1}, v{V_H}, 3, v{t}
        v_lshlrev_b32 v{t+1}, 7, v{t+1}
        v_and_b32 v{t+2}, 3, v{V_L16}
        v_lshl_add_u32 v{t+1}, v{t+2}, 3, v{t+1}
        v_add_u32 v{t+1}, {base}, v{t+1}
        v_lshrrev_b32 v{t}, 1, v{t}
        v_and_b32 v{t+2}, 1, v{V_H}
        v_lshl_or_b32 v{t}, v{t+2}, 1, v{t}
        """)
        if xorw:
            a(f"v_xor_b32 v{t}, {S_W}, v{t}")
        for j in range(4):
            a(f"""
            v_xor_b32 v{t+2}, {j}, v{t}
            v_lshl_add_u32 v{dst4+j}, v{t+2}, 5, v{t+1}
            """)

    def p0(self):
        a = self.a
        a(f"""
        v_lshrrev_b32 v1, 3, v0
        s_lshl_b32 {S_T0}, {S_RT}, 16
        s_lshl_b32 {S_T1}, {S_CG}, 7
        s_add_u32 {S_T0}, {S_T0}, {S_T1}
        v_lshlrev_b32 v2, 10, v1
        v_and_b32 v3, 7, v0
        v_lshl_add_u32 v2, v3, 4, v2
        v_add_u32 v2, {S_T0}, v2
        buffer_load_dwordx4 v[10:13], v2, {SRD_X0}, 0 offen
        v_add_u32 v4, 0x8000, v2
        buffer_load_dwordx4 v[14:17], v4, {SRD_X0}, 0 offen
        s_lshl_b32 {S_T0}, {S_ID}, 13
        s_lshl_b32 {S_T1}, {S_W}, 11
        s_add_u32 {S_T0}, {S_T0}, {S_T1}
        v_lshlrev_b32 v5, 4, v{V_LANE}
        v_add_u32 v5, {S_T0}, v5
        buffer_load_dwordx4 v[18:21], v5, {SRD_X0}, 0 offen
        buffer_load_dwordx4 v[22:25], v5, {SRD_X0}, 0 offen offset:1024
        s_lshl_b32 {S_T0}, {S_ID}, 9
        v_lshlrev_b32 v6, 1, v0
        v_add_u32 v6, {S_T0}, v6
        global_load_ushort v26, v6, s[18:19]
        global_load_ushort v27, v6, s[20:21]
        global_load_ushort v28, v6, s[22:23]
        global_load_ushort v29, v6, s[24:25]
        v_lshrrev_b32 v7, 7, v0
        s_lshl_b32 {S_T0}, {S_ID}, 1
        v_add_lshl_u32 v7, v7, {S_T0}, 1
        global_load_ushort v30, v7, s[26:27]
        global_load_ushort v{V_DSK}, v7, s[28:29]
        """)
        l = a.label('CI')
        a(f"""
        s_cmp_lt_u32 {S_ID}, 16
        s_cbranch_scc0 {l}
        s_cmp_eq_u32 {S_W}, 0
        s_cbranch_scc0 {l}
        s_mov_b64 {S_EXS}, exec
        s_mov_b64 exec, 1
        v_mov_b32 v8, 0
        buffer_store_dword v8, v{V_CNT}, {SRD_WS}, 0 offen sc1
        s_waitcnt vmcnt(0)
        global_atomic_add v8, v{V_ONE}, s[38:39] sc1
        s_mov_b64 exec, {S_EXS}
        {l}:
        """)
        a(f"""
        v_mul_u32_u24 v8, 144, v1
        v_lshl_add_u32 v8, v3, 4, v8
        v_add_u32 v8, {L_TA}, v8
        s_waitcnt vmcnt(8)
        ds_write_b128 v8, v[10:13]
        ds_write_b128 v8, v[14:17] offset:{32*144}
        """)
        a("s_waitcnt vmcnt(6)")
        for row in range(2):
            b = 18 + 4*row; sm = 32 + 2*row; sq = sm + 1
            a(f"v_mov_b32 v{sm}, 0\nv_mov_b32 v{sq}, 0")
            for j in range(4):
                a(f"v_dot2_f32_bf16 v{sm}, v{b+j}, {S_ONES}, v{sm}\nv_dot2_f32_bf16 v{sq}, v{b+j}, v{b+j}, v{sq}")
        for r in range(32, 36): self.reduce16(r)
        for r in range(32, 36): self.reduce_h(r, 36)
        a(f"""
        s_lshl_b32 {S_T0}, {S_W}, 4
        s_add_u32 {S_T0}, {S_T0}, {L_STG}
        v_mov_b32 v36, {S_T0}
        ds_write_b128 v36, v[32:35]
        s_waitcnt lgkmcnt(0)
        s_barrier
        """)
        a(f"""
        v_lshrrev_b32 v1, 2, v{V_L16}
        v_lshl_add_u32 v1, v{V_H}, 3, v1
        v_mul_u32_u24 v1, 144, v1
        v_and_b32 v2, 3, v{V_L16}
        v_lshl_add_u32 v1, v2, 3, v1
        s_lshl_b32 {S_T0}, {S_W}, 5
        s_add_u32 {S_T0}, {S_T0}, {L_TA}
        v_add_u32 v1, {S_T0}, v1
        ds_read_b64_tr_b16 v[10:11], v1
        ds_read_b64_tr_b16 v[12:13], v1 offset:{4*144}
        ds_read_b64_tr_b16 v[14:15], v1 offset:{32*144}
        ds_read_b64_tr_b16 v[16:17], v1 offset:{36*144}
        s_lshl_b32 {S_T0}, {S_W}, 4
        v_add_u32 v2, {S_T0}, v{V_L16}
        v_mul_u32_u24 v2, 144, v2
        v_lshl_add_u32 v2, v{V_H}, 4, v2
        v_add_u32 v2, {L_TB}, v2
        s_waitcnt lgkmcnt(0)
        ds_write_b128 v2, v[10:13]
        ds_write_b128 v2, v[14:17] offset:64
        s_waitcnt lgkmcnt(0)
        s_barrier
        """)
        a(f"""
        v_lshrrev_b32 v1, 3, v0
        v_and_b32 v3, 7, v0
        v_mul_u32_u24 v2, 144, v1
        v_lshl_add_u32 v2, v3, 4, v2
        v_add_u32 v2, {L_TB}, v2
        ds_read_b128 v[10:13], v2
        ds_read_b128 v[14:17], v2 offset:{32*144}
        s_lshl_b32 {S_T0}, {S_CG}, 18
        s_lshl_b32 {S_T1}, {S_RT}, 7
        s_add_u32 {S_T0}, {S_T0}, {S_T1}
        s_add_u32 {S_T0}, {S_T0}, {XT[0]}
        v_lshlrev_b32 v4, 12, v1
        v_lshl_add_u32 v4, v3, 4, v4
        v_add_u32 v4, {S_T0}, v4
        v_add_u32 v5, 0x20000, v4
        s_waitcnt lgkmcnt(0)
        buffer_store_dwordx4 v[10:13], v4, {SRD_WS}, 0 offen sc1
        buffer_store_dwordx4 v[14:17], v5, {SRD_WS}, 0 offen sc1
        """)
        l1 = a.label('Z1'); l2 = a.label('Z2')
        a(f"""
        s_cmp_eq_u32 {S_W}, 1
        s_cbranch_scc0 {l1}
        s_mov_b64 {S_EXS}, exec
        s_mov_b64 exec, 0xffffff
        v_mov_b32 v10, 0
        v_mov_b32 v11, 0
        v_mov_b32 v12, 0
        v_mov_b32 v13, 0
        s_mul_i32 {S_T0}, {S_ID}, 384
        s_add_u32 {S_T0}, {S_T0}, {ZR}
        v_lshlrev_b32 v4, 4, v{V_LANE}
        v_add_u32 v4, {S_T0}, v4
        buffer_store_dwordx4 v[10:13], v4, {SRD_WS}, 0 offen sc1
        s_mov_b64 exec, {S_EXS}
        {l1}:
        s_cmp_eq_u32 {S_W}, 2
        s_cbranch_scc0 {l2}
        s_mov_b64 {S_EXS}, exec
        s_mov_b64 exec, 0xf
        v_lshlrev_b32 v4, 4, v{V_LANE}
        v_add_u32 v5, {L_STG}, v4
        ds_read_b128 v[10:13], v5
        s_lshl_b32 {S_T0}, {S_ID}, 6
        s_add_u32 {S_T0}, {S_T0}, {ST1}
        v_add_u32 v4, {S_T0}, v4
        s_waitcnt lgkmcnt(0)
        buffer_store_dwordx4 v[10:13], v4, {SRD_WS}, 0 offen sc1
        s_mov_b64 exec, {S_EXS}
        {l2}:
        """)
        self.stamp()
        self.arrive(first=True)
        self.stamp()
        a(f"s_lshl_b32 {S_T3}, {S_CG}, 7")
        self.dma_weight(SRD_WQ, 3072, S_T3, L_WO, 'x', 40)
        self.kgen()
        self.stamp()
        self.wstage()
        self.stamp()

    def cexp(self, p, dr, di, t):
        a = self.a
        a(f"""
        v_mul_f32 v{t}, {fx(p)}, v40
        v_mul_f32 v{t+1}, {fx(p)}, v41
        v_exp_f32 v{t}, v{t}
        v_fract_f32 v{t+1}, v{t+1}
        v_cos_f32 v{t+2}, v{t+1}
        v_sin_f32 v{t+1}, v{t+1}
        v_mul_f32 v{dr}, v{t}, v{t+2}
        v_mul_f32 v{di}, v{t}, v{t+1}
        """)

    def kgen(self):
        a = self.a
        a(f"""
        v_lshlrev_b32 v{V_DSK}, 16, v{V_DSK}
        v_lshlrev_b32 v26, 16, v26
        v_lshlrev_b32 v27, 16, v27
        v_lshlrev_b32 v28, 16, v28
        v_lshlrev_b32 v29, 16, v29
        v_lshlrev_b32 v30, 16, v30
        v_mul_f32 v30, {fx(LOG2E)}, v30
        v_mul_f32 v26, {fx(LOG2E)}, v26
        v_exp_f32 v30, v30
        v_exp_f32 v26, v26
        v_cvt_pk_bf16_f32 v31, v30, v26
        v_lshlrev_b32 v30, 16, v31
        v_and_b32 v26, 0xffff0000, v31
        v_mul_f32 v40, v26, v30
        v_mul_f32 v40, {fx(-LOG2E)}, v40
        v_mul_f32 v41, v27, v30
        v_mul_f32 v41, {fx(1/(2*math.pi))}, v41
        v_mul_f32 v42, v28, v30
        v_mul_f32 v43, v29, v30
        v_add_f32 v42, v42, v42
        v_add_f32 v43, v43, v43
        """)
        for i, p in enumerate((256.0, 512.0, 1536.0)):
            self.cexp(p, 50, 51, 52)
            d = 44 + 2*i
            a(f"""
            v_mul_f32 v{d}, v42, v50
            v_fma_f32 v{d}, -v43, v51, v{d}
            v_mul_f32 v{d+1}, v42, v51
            v_fma_f32 v{d+1}, v43, v50, v{d+1}
            """)
        a(f"""
        v_lshrrev_b32 v1, 7, v0
        v_mul_u32_u24 v1, 5120, v1
        v_and_b32 v2, 127, v0
        v_lshl_add_u32 v1, v2, 2, v1
        v_add_u32 v1, {L_CT}, v1
        """)
        for q in range(10):
            a(f"ds_write_b32 v1, v{40+q} offset:{q*512}")
        a(f"""
        s_lshr_b32 {S_T0}, {S_W}, 1
        s_mul_i32 {S_T0}, {S_T0}, 5120
        s_and_b32 {S_T1}, {S_W}, 1
        s_lshl_b32 {S_T1}, {S_T1}, 8
        s_add_u32 {S_T0}, {S_T0}, {S_T1}
        s_add_u32 {S_T0}, {S_T0}, {L_CT}
        v_lshlrev_b32 v1, 4, v{V_H}
        v_add_u32 v1, {S_T0}, v1
        v_cvt_f32_u32 v2, v{V_L16}
        v_mov_b32 v3, v2
        """)
        ACC = 60
        for i in range(16): a(f"v_mov_b32 v{ACC+i}, 0")
        a("s_waitcnt lgkmcnt(0)\ns_barrier")
        Q = lambda q: 80 + 4*q
        FR, FI = 120, 124
        T0, T1 = 128, 132
        A0, A1 = 136, 140
        F0F, F2F = 144, 148
        loop = a.label('KG')
        a(f"s_mov_b32 {S_T4}, 0\n{loop}:")
        for q in range(10):
            a(f"ds_read_b128 v[{Q(q)}:{Q(q)+3}], v1 offset:{q*512}")
        a("s_waitcnt lgkmcnt(8)")
        pk = lambda r: f"v[{r}:{r+1}]"
        for h in (0, 2):
            a(f"v_pk_mul_f32 {pk(T0+h)}, {pk(Q(0)+h)}, v[2:3]")
            a(f"v_pk_mul_f32 {pk(T1+h)}, {pk(Q(1)+h)}, v[2:3]")
        for i in range(4):
            a(f"v_exp_f32 v{T0+i}, v{T0+i}")
            a(f"v_fract_f32 v{T1+i}, v{T1+i}")
        for i in range(4):
            a(f"v_cos_f32 v{FR+i}, v{T1+i}")
            a(f"v_sin_f32 v{FI+i}, v{T1+i}")
        for h in (0, 2):
            a(f"v_pk_mul_f32 {pk(FR+h)}, {pk(FR+h)}, {pk(T0+h)}")
            a(f"v_pk_mul_f32 {pk(FI+h)}, {pk(FI+h)}, {pk(T0+h)}")
        def packF(dst):
            a(f"v_cvt_pk_bf16_f32 v{dst}, v{FR}, v{FR+1}")
            a(f"v_cvt_pk_bf16_f32 v{dst+1}, v{FR+2}, v{FR+3}")
            a(f"v_cvt_pk_bf16_f32 v{dst+2}, v{FI}, v{FI+1}")
            a(f"v_cvt_pk_bf16_f32 v{dst+3}, v{FI+2}, v{FI+3}")
        def sq():
            for h in (0, 2):
                a(f"v_pk_mul_f32 {pk(T0+h)}, {pk(FI+h)}, {pk(FI+h)}")
                a(f"v_pk_mul_f32 {pk(T1+h)}, {pk(FR+h)}, {pk(FI+h)}")
            for h in (0, 2):
                a(f"v_pk_fma_f32 {pk(FR+h)}, {pk(FR+h)}, {pk(FR+h)}, {pk(T0+h)} neg_lo:[0,0,1] neg_hi:[0,0,1]")
                a(f"v_pk_add_f32 {pk(FI+h)}, {pk(T1+h)}, {pk(T1+h)}")
        def gmul(q, dst):
            cr, ci = Q(q), Q(q+1)
            for h in (0, 2):
                a(f"v_pk_mul_f32 {pk(T0+h)}, {pk(ci+h)}, {pk(FI+h)}")
                a(f"v_pk_mul_f32 {pk(T1+h)}, {pk(ci+h)}, {pk(FR+h)}")
            for h in (0, 2):
                a(f"v_pk_fma_f32 {pk(T0+h)}, {pk(cr+h)}, {pk(FR+h)}, {pk(T0+h)} neg_lo:[0,0,1] neg_hi:[0,0,1]")
                a(f"v_pk_fma_f32 {pk(T1+h)}, {pk(cr+h)}, {pk(FI+h)}, {pk(T1+h)} neg_lo:[1,0,1] neg_hi:[1,0,1]")
            a(f"v_cvt_pk_bf16_f32 v{dst}, v{T0}, v{T0+1}")
            a(f"v_cvt_pk_bf16_f32 v{dst+1}, v{T0+2}, v{T0+3}")
            a(f"v_cvt_pk_bf16_f32 v{dst+2}, v{T1}, v{T1+1}")
            a(f"v_cvt_pk_bf16_f32 v{dst+3}, v{T1+2}, v{T1+3}")
        packF(F0F)
        sq(); sq()
        packF(F2F)
        sq(); sq()
        a("s_waitcnt lgkmcnt(0)")
        gmul(2, A0)
        a(f"v_mfma_f32_16x16x32_bf16 v[{ACC}:{ACC+3}], v[{A0}:{A0+3}], v[{F0F}:{F0F+3}], v[{ACC}:{ACC+3}]")
        gmul(4, A1)
        a(f"v_mfma_f32_16x16x32_bf16 v[{ACC+4}:{ACC+7}], v[{A1}:{A1+3}], v[{F0F}:{F0F+3}], v[{ACC+4}:{ACC+7}]")
        sq(); sq()
        gmul(6, A0)
        a(f"v_mfma_f32_16x16x32_bf16 v[{ACC+8}:{ACC+11}], v[{A0}:{A0+3}], v[{F2F}:{F2F+3}], v[{ACC+8}:{ACC+11}]")
        gmul(8, A1)
        a(f"v_mfma_f32_16x16x32_bf16 v[{ACC+12}:{ACC+15}], v[{A1}:{A1+3}], v[{F2F}:{F2F+3}], v[{ACC+12}:{ACC+15}]")
        a(f"""
        v_add_u32 v1, 64, v1
        s_add_u32 {S_T4}, {S_T4}, 1
        s_cmp_lt_u32 {S_T4}, 4
        s_cbranch_scc1 {loop}
        s_nop 7
        """)
        l1 = a.label('KR'); l2 = a.label('KR')
        a(f"""
        s_lshr_b32 {S_T0}, {S_W}, 1
        s_lshl_b32 {S_T0}, {S_T0}, 12
        s_add_u32 {S_T0}, {S_T0}, {L_KD}
        v_lshlrev_b32 v1, 8, v{V_H}
        v_lshl_add_u32 v1, v{V_L16}, 2, v1
        v_add_u32 v1, {S_T0}, v1
        s_and_b32 {S_T1}, {S_W}, 1
        s_cmp_eq_u32 {S_T1}, 0
        s_cbranch_scc0 {l1}
        """)
        for T in range(4):
            for r in range(4):
                a(f"ds_write_b32 v1, v{ACC+4*T+r} offset:{1024*T+64*r}")
        a(f"{l1}:\ns_waitcnt lgkmcnt(0)\ns_barrier\ns_cmp_eq_u32 {S_T1}, 1\ns_cbranch_scc0 {l2}")
        for T in range(4):
            for r in range(4):
                a(f"ds_add_f32 v1, v{ACC+4*T+r} offset:{1024*T+64*r}")
        a(f"{l2}:\ns_waitcnt lgkmcnt(0)\ns_barrier")
        a(f"""
        v_lshlrev_b32 v1, 3, v0
        v_sub_u32 v1, 2047, v1
        """)
        IDX = 80
        a(f"s_mov_b32 {S_T5}, {L_KD}")
        for i in range(0, 10, 2):
            a(f"""
            v_subrev_u32 v2, {i}, v1
            v_subrev_u32 v3, {i+1}, v1
            v_max_i32 v3, 0, v3
            v_cvt_f32_i32 v2, v2
            v_cvt_f32_i32 v3, v3
            v_cvt_pk_bf16_f32 v4, v2, v3
            v_lshlrev_b32 v2, 16, v4
            v_and_b32 v3, 0xffff0000, v4
            v_cvt_u32_f32 v2, v2
            v_cvt_u32_f32 v3, v3
            v_lshrrev_b32 v4, 2, v2
            v_lshrrev_b32 v5, 2, v3
            v_add_u32 v4, 384, v4
            v_add_u32 v5, 384, v5
            v_min_u32 v2, v2, v4
            v_min_u32 v3, v3, v5
            v_lshl_add_u32 v{IDX+i}, v2, 2, {S_T5}
            """)
            if i + 1 < 9: a(f"v_lshl_add_u32 v{IDX+i+1}, v3, 2, {S_T5}")
        VAL = 90
        for ch in range(2):
            for i in range(9):
                a(f"ds_read_b32 v{VAL+9*ch+i}, v{IDX+i} offset:{4096*ch}")
        a(f"""
        v_cmp_ne_u32 vcc, 255, v0
        v_lshlrev_b32 v1, 4, v0
        v_add_u32 v1, {L_KC + 8}, v1
        s_waitcnt lgkmcnt(0)
        v_cndmask_b32 v{VAL+8}, 0, v{VAL+8}, vcc
        v_cndmask_b32 v{VAL+17}, 0, v{VAL+17}, vcc
        """)
        for ch in range(2):
            for m0 in range(2):
                o = 110 + 4*(2*ch+m0)
                s0 = VAL + 9*ch + (1 - m0)
                for p in range(4):
                    a(f"v_cvt_pk_bf16_f32 v{o+p}, v{s0+2*p}, v{s0+2*p+1}")
                a(f"ds_write_b64 v1, v[{o}:{o+1}] offset:{ch*8448+m0*4224}")
                a(f"ds_write_b64 v1, v[{o+2}:{o+3}] offset:{ch*8448+m0*4224+8}")
        a(f"""
        v_cmp_gt_u32 vcc, 14, v{V_L16}
        s_cmp_eq_u32 {S_W}, 0
        s_cselect_b64 {S_EXS}, vcc, 0
        s_mov_b64 s[68:69], exec
        v_mul_u32_u24 v1, 4224, v{V_H}
        v_lshl_add_u32 v1, v{V_L16}, 2, v1
        v_add_u32 v1, {L_KC + 4104}, v1
        v_mov_b32 v2, 0
        s_mov_b64 exec, {S_EXS}
        ds_write_b32 v1, v2
        s_mov_b64 exec, s[68:69]
        s_waitcnt lgkmcnt(0)
        s_barrier
        """)

    def wread(self, lds_base, abase, part):
        a = self.a
        t = 10
        a(f"""
        v_lshrrev_b32 v{t}, 2, v{V_L16}
        v_lshl_add_u32 v{t+1}, v{V_H}, 3, v{t}
        v_lshlrev_b32 v{t+1}, 7, v{t+1}
        v_and_b32 v{t+2}, 3, v{V_L16}
        v_lshl_add_u32 v{t+1}, v{t+2}, 3, v{t+1}
        v_add_u32 v{t+1}, {lds_base}, v{t+1}
        v_lshrrev_b32 v{t}, 1, v{t}
        v_and_b32 v{t+2}, 1, v{V_H}
        v_lshl_or_b32 v{t}, v{t+2}, 1, v{t}
        v_xor_b32 v{t}, {S_W}, v{t}
        v_lshl_add_u32 v{t+3}, v{t}, 5, v{t+1}
        """)
        for ks in range(16):
            a(f"ds_read_b64_tr_b16 a[{abase+4*ks}:{abase+4*ks+1}], v{t+3} offset:{ks*4096}")
            a(f"ds_read_b64_tr_b16 a[{abase+4*ks+2}:{abase+4*ks+3}], v{t+3} offset:{ks*4096+512}")
        a(f"""
        v_mov_b32 v20, {S_ONES}
        v_mov_b32 v21, {S_ONES}
        v_mov_b32 v22, {S_ONES}
        v_mov_b32 v23, {S_ONES}
        v_mov_b32 v24, 0
        v_mov_b32 v25, 0
        v_mov_b32 v26, 0
        v_mov_b32 v27, 0
        s_waitcnt lgkmcnt(0)
        """)
        for ks in range(16):
            if part == 0:
                a(f"v_mfma_f32_16x16x32_bf16 v[24:27], a[{abase+4*ks}:{abase+4*ks+3}], v[20:23], v[24:27]")
            else:
                a(f"v_mfma_f32_16x16x32_bf16 v[24:27], v[20:23], a[{abase+4*ks}:{abase+4*ks+3}], v[24:27]")
        if part == 0:
            for i in range(4): a(f"v_mov_b32 v{V_WSQ+i}, v{24+i}")
        elif part == 1: a(f"v_mov_b32 v{V_WSK}, v24")
        else: a(f"v_mov_b32 v{V_WSV}, v24")

    def wstage(self):
        a = self.a
        a(f"s_lshl_b32 {S_T3}, {S_CG}, 7\ns_add_u32 {S_T3}, {S_T3}, 1024")
        self.dma_weight(SRD_WQ, 3072, S_T3, L_XL, 'x', 40)
        a("s_waitcnt vmcnt(16)\ns_barrier")
        self.wread(L_WO, 0, 0)
        a("s_barrier")
        a(f"s_lshl_b32 {S_T3}, {S_CG}, 7\ns_add_u32 {S_T3}, {S_T3}, 2048")
        self.dma_weight(SRD_WQ, 3072, S_T3, L_WO, 'x', 40)
        a("s_waitcnt vmcnt(16)\ns_barrier")
        self.wread(L_XL, 64, 1)
        a("s_waitcnt vmcnt(0)\ns_barrier")
        self.wread(L_WO, 128, 2)
        a("s_barrier")
        a(f"s_lshl_b32 {S_T3}, {S_CG}, 7")
        self.dma_weight(SRD_WO, 1024, S_T3, L_WO, 'wo', 40)

    def conv(self):
        a = self.a
        XA, XB = 10, 14
        STT = 20
        a(f"""
        v_lshrrev_b32 v1, 7, v0
        v_and_b32 v2, 127, v0
        s_lshl_b32 {S_T0}, {S_ID}, 13
        s_add_u32 {S_T0}, {S_T0}, {S_XIN}
        v_lshlrev_b32 v3, 12, v1
        v_lshl_add_u32 v3, v2, 4, v3
        v_add_u32 v3, {S_T0}, v3
        v_lshlrev_b32 v4, 6, v0
        v_add_u32 v4, {S_ST}, v4
        """)
        for j in range(4):
            a(f"buffer_load_dwordx4 v[{STT+4*j}:{STT+4*j+3}], v4, {SRD_WS}, 0 offen offset:{16*j} sc1")
        a(f"""
        buffer_load_dwordx4 v[{XA}:{XA+3}], v3, {SRD_WS}, 0 offen sc1
        buffer_load_dwordx4 v[{XB}:{XB+3}], v3, {SRD_WS}, 0 offen offset:2048 sc1
        """)
        a(f"""
        v_bfe_u32 v5, v0, 5, 2
        v_mul_u32_u24 v5, 4640, v5
        v_and_b32 v6, 31, v0
        v_lshl_add_u32 v5, v6, 4, v5
        v_add_u32 v5, {L_U}, v5
        v_mov_b32 v36, 0
        v_mov_b32 v37, 0
        v_mov_b32 v38, 0
        v_mov_b32 v39, 0
        v_cmp_gt_u32 vcc, 128, v0
        s_and_saveexec_b64 {S_EXS}, vcc
        ds_write_b128 v5, v[36:39]
        s_mov_b64 exec, {S_EXS}
        v_and_b32 v5, 1, v0
        v_mul_u32_u24 v5, 9280, v5
        v_add_u32 v5, {L_U + 512}, v5
        ds_write_b32 v5, v36
        """)
        a("s_waitcnt vmcnt(2)")
        for i in range(8):
            self.ln_final(STT+2*i, STT+2*i+1, 40+i, 48+i, 56)
        a(f"""
        v_lshlrev_b32 v5, 5, v0
        v_add_u32 v5, {L_SR}, v5
        ds_write_b128 v5, v[40:43]
        ds_write_b128 v5, v[44:47] offset:16
        ds_write_b128 v5, v[48:51] offset:8192
        ds_write_b128 v5, v[52:55] offset:8208
        s_waitcnt lgkmcnt(0)
        s_barrier
        v_lshlrev_b32 v5, 5, v2
        v_add_u32 v5, {L_SR}, v5
        """)
        RA, MA, RB, MB = 40, 48, 56, 64
        a(f"""
        ds_read_b128 v[{RA}:{RA+3}], v5
        ds_read_b128 v[{RA+4}:{RA+7}], v5 offset:16
        ds_read_b128 v[{MA}:{MA+3}], v5 offset:8192
        ds_read_b128 v[{MA+4}:{MA+7}], v5 offset:8208
        ds_read_b128 v[{RB}:{RB+3}], v5 offset:4096
        ds_read_b128 v[{RB+4}:{RB+7}], v5 offset:4112
        ds_read_b128 v[{MB}:{MB+3}], v5 offset:12288
        ds_read_b128 v[{MB+4}:{MB+7}], v5 offset:12304
        s_waitcnt vmcnt(0)
        """)
        X32 = 200
        U32 = 216
        for c, X in enumerate((XA, XB)):
            for p in range(4):
                a(f"v_lshlrev_b32 v{X32+8*c+2*p}, 16, v{X+p}")
                a(f"v_and_b32 v{X32+8*c+2*p+1}, 0xffff0000, v{X+p}")
        a("s_waitcnt lgkmcnt(0)")
        for c, (R, M) in enumerate(((RA, MA), (RB, MB))):
            for p in range(4):
                x = X32+8*c+2*p; u = U32+8*c+2*p
                a(f"v_pk_fma_f32 v[{u}:{u+1}], v[{x}:{x+1}], v[{R+2*p}:{R+2*p+1}], v[{M+2*p}:{M+2*p+1}] neg_lo:[0,0,1] neg_hi:[0,0,1]")
        UP = 72
        for c in range(2):
            for p in range(4):
                u = U32+8*c+2*p
                a(f"v_cvt_pk_bf16_f32 v{UP+4*c+p}, v{u}, v{u+1}")
        a(f"""
        v_mul_u32_u24 v5, 9280, v1
        v_lshl_add_u32 v5, v2, 4, v5
        v_add_u32 v5, {L_U + 512}, v5
        ds_write_b128 v5, v[{UP}:{UP+3}] offset:4640
        ds_write_b128 v5, v[{UP+4}:{UP+7}] offset:{4640+2048}
        """)
        for c in range(2):
            for p in range(4):
                a(f"ds_write_b32 v5, v{UP+4*c+p} offset:{2048*c + 4 + 4*p}")
        a(f"""
        s_lshr_b32 {S_T0}, {S_W}, 1
        s_and_b32 {S_T1}, {S_W}, 1
        s_mul_i32 {S_T2}, {S_T0}, 8448
        s_lshl_b32 {S_T3}, {S_T1}, 8
        s_sub_u32 {S_T2}, {S_T2}, {S_T3}
        s_add_u32 {S_T2}, {S_T2}, {L_KC + 4096 - 192 - 3584}
        v_and_b32 v6, 1, v{V_L16}
        v_lshrrev_b32 v7, 1, v{V_L16}
        v_mul_u32_u24 v8, 4224, v6
        v_lshl_add_u32 v8, v{V_H}, 4, v8
        v_lshlrev_b32 v9, 3, v7
        v_sub_u32 v8, v8, v9
        v_add_u32 v8, {S_T2}, v8
        s_mul_i32 {S_T2}, {S_T0}, 9280
        s_sub_u32 {S_T2}, {S_T2}, {S_T3}
        s_add_u32 {S_T2}, {S_T2}, {L_U + 512 - 192}
        v_mul_u32_u24 v9, 4640, v6
        v_lshl_add_u32 v9, v7, 6, v9
        v_lshl_add_u32 v9, v{V_H}, 4, v9
        v_add_u32 v9, {S_T2}, v9
        """)
        AK, AU = 8, 9
        ACC = 80
        FA = [112, 144 ]
        def fragA(st, i): return (f"v[{112+4*i}:{112+4*i+3}]" if st == 0 else f"a[{192+4*i}:{192+4*i+3}]")
        def fragB(st, i): return (f"v[{144+4*i}:{144+4*i+3}]" if st == 0 else f"a[{224+4*i}:{224+4*i+3}]")
        def halfA(st, i, hh):
            b = (112 if st == 0 else 192) + 4*i + 2*hh
            return f"{'v' if st == 0 else 'a'}[{b}:{b+1}]"
        def loads(i, st):
            for sh in range(8):
                off = (3-i)*64 + (7-sh)*512
                a(f"ds_read_b64 {halfA(st, sh, 0)}, v{AK} offset:{off}")
                a(f"ds_read_b64 {halfA(st, sh, 1)}, v{AK} offset:{off+8}")
            for q in range(8):
                a(f"ds_read_b128 {fragB(st, q)}, v{AU} offset:{(3-i)*64 + 512*q}")
        for i in range(32): a(f"v_mov_b32 v{ACC+i}, 0")
        a("s_waitcnt lgkmcnt(0)\ns_barrier")
        def loadlist(i, st):
            L = []
            for q in range(8):
                L.append(f"ds_read_b64 {halfA(st, q, 0)}, v{AK} offset:{(3-i)*64 + (7-q)*512}")
                L.append(f"ds_read_b64 {halfA(st, q, 1)}, v{AK} offset:{(3-i)*64 + (7-q)*512 + 8}")
                L.append(f"ds_read_b128 {fragB(st, q)}, v{AU} offset:{(3-i)*64 + 512*q}")
            return L
        for x in loadlist(0, 0): a(x)
        for i in range(4):
            st = i & 1
            a("s_waitcnt lgkmcnt(0)")
            nxt = loadlist(i+1, st ^ 1) if i < 3 else []
            for sh in range(8):
                for t in range(sh, 8):
                    a(f"v_mfma_f32_16x16x32_bf16 v[{ACC+4*t}:{ACC+4*t+3}], {fragA(st, sh)}, {fragB(st, t-sh)}, v[{ACC+4*t}:{ACC+4*t+3}]")
                    if nxt: a(nxt.pop(0))
        a(f"""
        s_and_b32 {S_T1}, {S_W}, 1
        s_lshr_b32 {S_T0}, {S_W}, 1
        s_lshl_b32 {S_T1}, {S_T1}, 1
        s_add_u32 {S_T0}, {S_T0}, {S_T1}
        s_mul_i32 {S_T0}, {S_T0}, 9216
        s_add_u32 {S_T0}, {S_T0}, {L_Y}
        v_mul_u32_u24 v5, 144, v7
        v_lshl_add_u32 v5, v{V_H}, 5, v5
        v_lshl_add_u32 v5, v6, 3, v5
        v_add_u32 v5, {S_T0}, v5
        """)
        for t in range(8):
            a(f"ds_write_b64 v5, v[{ACC+4*t}:{ACC+4*t+1}] offset:{1152*t}")
            a(f"ds_write_b64 v5, v[{ACC+4*t+2}:{ACC+4*t+3}] offset:{1152*t+16}")
        a(f"""
        v_lshrrev_b32 v6, 2, v2
        v_lshlrev_b32 v6, 4, v6
        v_lshl_add_u32 v6, v2, 5, v6
        v_mul_u32_u24 v7, 9216, v1
        v_add_u32 v6, v6, v7
        v_add_u32 v6, {L_Y}, v6
        s_waitcnt lgkmcnt(0)
        s_barrier
        """)
        Y0 = 112
        for sh in range(2):
            for c in range(2):
                for hh in range(2):
                    b = Y0 + 16*sh + 8*c + 4*hh
                    a(f"ds_read_b128 v[{b}:{b+3}], v6 offset:{sh*18432 + c*4608 + 16*hh}")
        a("s_waitcnt lgkmcnt(0)")
        for p in range(8):
            y = Y0 + 2*p
            a(f"v_pk_add_f32 v[{y}:{y+1}], v[{y}:{y+1}], v[{y+16}:{y+17}]")
        for p in range(8):
            y = Y0 + 2*p; u = U32 + 2*p; x = X32 + 2*p
            a(f"v_pk_fma_f32 v[{y}:{y+1}], v[{u}:{u+1}], v[{V_DSK}:{V_DSK+1}], v[{y}:{y+1}] op_sel_hi:[1,0,1]")
            a(f"v_pk_add_f32 v[{y}:{y+1}], v[{y}:{y+1}], v[{x}:{x+1}]")
        for p in range(8):
            y = Y0 + 2*p
            a(f"v_cvt_pk_bf16_f32 v{80+p}, v{y}, v{y+1}")
        a(f"""
        v_subrev_u32 v3, {S_XIN}, v3
        v_add_u32 v3, {S_XOUT}, v3
        buffer_store_dwordx4 v[80:83], v3, {SRD_WS}, 0 offen sc1
        buffer_store_dwordx4 v[84:87], v3, {SRD_WS}, 0 offen offset:2048 sc1
        """)

    def qkv(self):
        a = self.a
        t = 10
        a(f"""
        v_lshrrev_b32 v{t}, 3, v{V_LANE}
        v_lshlrev_b32 v{t}, 12, v{t}
        v_bfe_u32 v{t+1}, v{V_LANE}, 1, 2
        v_bfe_u32 v{t+2}, v{V_LANE}, 4, 1
        s_and_b32 {S_T0}, {S_W}, 1
        s_lshl_b32 {S_T0}, {S_T0}, 1
        v_or_b32 v{t+2}, {S_T0}, v{t+2}
        v_xor_b32 v{t+1}, v{t+1}, v{t+2}
        v_lshl_add_u32 v{t}, v{t+1}, 5, v{t}
        v_and_b32 v{t+1}, 1, v{V_LANE}
        v_lshl_add_u32 v{t}, v{t+1}, 4, v{t}
        s_lshl_b32 {S_T0}, {S_RT}, 7
        v_add_u32 v{t}, {S_T0}, v{t}
        s_lshl_b32 {S_T1}, {S_W}, 15
        s_add_u32 {S_T1}, {S_T1}, {S_XIN}
        s_lshl_b32 {S_T2}, {S_W}, 10
        s_add_u32 {S_T2}, {S_T2}, {L_XL}
        """)
        for i in range(16):
            a(f"""
            s_mov_b32 m0, {S_T2}
            s_add_u32 {S_T2}, {S_T2}, 4096
            buffer_load_dwordx4 v{t}, {SRD_WS}, {S_T1} offen sc1 lds
            s_add_u32 {S_T1}, {S_T1}, {4*32768}
            """)
        AD = 4
        self.tr_addr_x(AD, L_XL, 12, True)
        AK_, AV_, AQ_ = 16, 32, 48
        for i in range(48): a(f"v_mov_b32 v{16+i}, 0")
        SUM, SQ = 64, 65
        a(f"v_mov_b32 v{SUM}, 0\nv_mov_b32 v{SQ}, 0")
        XF = [72, 88]
        def xload(ks, st):
            for j in range(4):
                b = XF[st] + 4*j
                a(f"ds_read_b64_tr_b16 v[{b}:{b+1}], v{AD+j} offset:{ks*4096}")
                a(f"ds_read_b64_tr_b16 v[{b+2}:{b+3}], v{AD+j} offset:{ks*4096+512}")
        GRP = 4
        for g in range(16//GRP):
            a(f"s_waitcnt vmcnt({16 - GRP*(g+1)})\ns_barrier")
            xload(g*GRP, 0)
            for kk in range(GRP):
                ks = g*GRP + kk; st = kk & 1
                if kk + 1 < GRP:
                    xload(ks+1, st ^ 1)
                    a("s_waitcnt lgkmcnt(8)")
                else:
                    a("s_waitcnt lgkmcnt(0)")
                for j in range(4):
                    x = f"v[{XF[st]+4*j}:{XF[st]+4*j+3}]"
                    a(f"v_mfma_f32_16x16x32_bf16 v[{AK_+4*j}:{AK_+4*j+3}], {x}, a[{64+4*ks}:{64+4*ks+3}], v[{AK_+4*j}:{AK_+4*j+3}]")
                    a(f"v_mfma_f32_16x16x32_bf16 v[{AV_+4*j}:{AV_+4*j+3}], {x}, a[{128+4*ks}:{128+4*ks+3}], v[{AV_+4*j}:{AV_+4*j+3}]")
                    a(f"v_mfma_f32_16x16x32_bf16 v[{AQ_+4*j}:{AQ_+4*j+3}], a[{4*ks}:{4*ks+3}], {x}, v[{AQ_+4*j}:{AQ_+4*j+3}]")
                    if j == 0:
                        pass
                    r = XF[st] + j
                    a(f"v_dot2_f32_bf16 v{SUM}, v{r}, {S_ONES}, v{SUM}")
                    a(f"v_dot2_f32_bf16 v{SQ}, v{r}, v{r}, v{SQ}")
        self.reduce_h(SUM, 66); self.reduce_h(SQ, 66)
        self.ln_final(SUM, SQ, 67, 68, 69)
        if os.environ.get('DBGS'):
            a(f"""
            s_lshl_b32 {S_T0}, {S_RT}, 6
            s_lshl_b32 {S_T1}, {S_W}, 4
            s_add_u32 {S_T0}, {S_T0}, {S_T1}
            v_add_u32 v8, {S_T0}, v{V_L16}
            v_lshlrev_b32 v8, 4, v8
            v_add_u32 v8, 0x40000, v8
            v_mov_b32 v10, v64
            v_mov_b32 v11, v65
            v_mov_b32 v12, v67
            v_mov_b32 v13, v68
            buffer_store_dwordx4 v[10:13], v8, {SRD_WS}, 0 offen
            """)
        a(f"""
        s_lshl_b32 {S_T0}, {S_W}, 6
        s_add_u32 {S_T0}, {S_T0}, {L_S2R}
        v_lshlrev_b32 v8, 2, v{V_L16}
        v_add_u32 v8, {S_T0}, v8
        ds_write_b32 v8, v67
        ds_write_b32 v8, v68 offset:{L_S2M-L_S2R}
        s_waitcnt lgkmcnt(0)
        s_barrier
        """)
        R4, M4 = 72, 88
        a(f"""
        v_lshlrev_b32 v8, 4, v{V_H}
        v_add_u32 v8, {S_T0}, v8
        v_lshlrev_b32 v9, 2, v{V_L16}
        v_add_u32 v9, {S_T0}, v9
        """)
        for j in range(4):
            a(f"v_xor_b32 v10, {64*j}, v8")
            a(f"ds_read_b128 v[{R4+4*j}:{R4+4*j+3}], v10")
            a(f"ds_read_b128 v[{M4+4*j}:{M4+4*j+3}], v10 offset:{L_S2M-L_S2R}")
        RQ, MQ = 104, 108
        for j in range(4):
            a(f"v_xor_b32 v10, {64*j}, v9")
            a(f"ds_read_b32 v{RQ+j}, v10")
            a(f"ds_read_b32 v{MQ+j}, v10 offset:{L_S2M-L_S2R}")
        a(f"""
        s_mov_b32 s66, {fx(1e-6)}
        s_mov_b32 s67, {fx(LOG2E)}
        v_mov_b32 v112, s66
        v_mov_b32 v113, s66
        v_mov_b32 v114, s67
        v_mov_b32 v115, s67
        s_waitcnt lgkmcnt(0)
        """)
        EPS, L2E = 112, 114
        pk = lambda r: f"v[{r}:{r+1}]"
        T = 116
        def phi(x):
            a(f"v_pk_mul_f32 {pk(T+2)}, {pk(x)}, {pk(L2E)}")
            a(f"v_exp_f32_e64 v{T+2}, v{T+2} clamp")
            a(f"v_exp_f32_e64 v{T+3}, v{T+3} clamp")
            a(f"v_max_f32 v{x}, v{EPS}, v{x}")
            a(f"v_max_f32 v{x+1}, v{EPS}, v{x+1}")
            a(f"v_pk_add_f32 {pk(x)}, {pk(x)}, {pk(T+2)}")
        PKF, VF = 128, 136
        for j in range(4):
            for h2 in (0, 2):
                k = AK_+4*j+h2; vv = AV_+4*j+h2; r = R4+4*j+h2; m = M4+4*j+h2
                a(f"v_pk_fma_f32 {pk(T)}, {pk(m)}, v[{V_WSK}:{V_WSK+1}], {pk(EPS)} op_sel_hi:[1,0,1] neg_lo:[0,0,1] neg_hi:[0,0,1]")
                a(f"v_pk_fma_f32 {pk(k)}, {pk(k)}, {pk(r)}, {pk(T)} neg_lo:[0,0,1] neg_hi:[0,0,1]")
                phi(k)
                a(f"v_cvt_pk_bf16_f32 v{PKF + 2*j + h2//2}, v{k}, v{k+1}")
                a(f"v_pk_mul_f32 {pk(T+4)}, {pk(m)}, v[{V_WSV-1}:{V_WSV}] op_sel:[0,1] op_sel_hi:[1,1]")
                a(f"v_pk_fma_f32 {pk(vv)}, {pk(vv)}, {pk(r)}, {pk(T+4)} neg_lo:[0,0,1] neg_hi:[0,0,1]")
                a(f"v_cvt_pk_bf16_f32 v{VF + 2*j + h2//2}, v{vv}, v{vv+1}")
        DKV, DZ = 144, 148
        a(f"""
        v_mov_b32 v152, {S_ONES}
        v_mov_b32 v153, {S_ONES}
        v_mov_b32 v154, {S_ONES}
        v_mov_b32 v155, {S_ONES}
        v_mfma_f32_16x16x32_bf16 v[{DKV}:{DKV+3}], v[{VF}:{VF+3}], v[{PKF}:{PKF+3}], 0
        v_mfma_f32_16x16x32_bf16 v[{DZ}:{DZ+3}], v[152:155], v[{PKF}:{PKF+3}], 0
        v_mfma_f32_16x16x32_bf16 v[{DKV}:{DKV+3}], v[{VF+4}:{VF+7}], v[{PKF+4}:{PKF+7}], v[{DKV}:{DKV+3}]
        v_mfma_f32_16x16x32_bf16 v[{DZ}:{DZ+3}], v[152:155], v[{PKF+4}:{PKF+7}], v[{DZ}:{DZ+3}]
        s_lshl_b32 {S_T0}, {S_CG}, 2
        s_add_u32 {S_T0}, {S_T0}, {S_W}
        s_lshl_b32 {S_T1}, {S_T0}, 10
        s_add_u32 {S_T1}, {S_T1}, {S_KV}
        v_lshlrev_b32 v8, 2, v{V_LANE}
        v_add_u32 v9, {S_T1}, v8
        s_lshl_b32 {S_T1}, {S_T0}, 6
        s_add_u32 {S_T1}, {S_T1}, {S_Z}
        v_add_u32 v10, {S_T1}, v8
        """)
        for i in range(4):
            a(f"buffer_atomic_add_f32 v{DKV+i}, v9, {SRD_WS}, 0 offen offset:{256*i}")
        a(f"""
        s_mov_b64 {S_EXS}, exec
        s_mov_b64 exec, 0xffff
        buffer_atomic_add_f32 v{DZ}, v10, {SRD_WS}, 0 offen
        s_mov_b64 exec, {S_EXS}
        """)
        PQF = 160
        for j in range(4):
            for h2 in (0, 2):
                q = AQ_+4*j+h2
                mbase = MQ + (j & ~1); msel = j & 1
                rbase = RQ + (j & ~1)
                a(f"v_pk_fma_f32 {pk(T)}, {pk(mbase)}, {pk(V_WSQ+h2)}, {pk(EPS)} op_sel:[{msel},0,0] op_sel_hi:[{msel},1,1] neg_lo:[0,0,1] neg_hi:[0,0,1]")
                a(f"v_pk_fma_f32 {pk(q)}, {pk(q)}, {pk(rbase)}, {pk(T)} op_sel:[0,{msel},0] op_sel_hi:[1,{msel},1] neg_lo:[0,0,1] neg_hi:[0,0,1]")
                phi(q)
                a(f"v_cvt_pk_bf16_f32 v{PQF + 2*j + h2//2}, v{q}, v{q+1}")
        for u in range(2):
            b = PQF + 4*u
            a(f"v_permlane16_swap_b32 v{b}, v{b+2}")
            a(f"v_permlane16_swap_b32 v{b+1}, v{b+3}")
        a(f"""
        s_lshl_b32 {S_T1}, {S_RT}, 16
        s_add_u32 {S_T1}, {S_T1}, {S_PQ}
        s_lshl_b32 {S_T2}, {S_T0}, 10
        s_add_u32 {S_T1}, {S_T1}, {S_T2}
        s_and_b32 {S_T2}, {S_W}, 1
        s_lshl_b32 {S_T2}, {S_T2}, 4
        v_xor_b32 v8, {S_T2}, v{V_LANE}
        v_lshlrev_b32 v8, 4, v8
        v_add_u32 v8, {S_T1}, v8
        s_lshr_b32 {S_T2}, {S_W}, 1
        s_lshl_b32 {S_T2}, {S_T2}, 15
        v_add_u32 v9, {S_T2}, v8
        s_xor_b32 {S_T2}, {S_T2}, 0x8000
        v_add_u32 v10, {S_T2}, v8
        buffer_store_dwordx4 v[{PQF}:{PQF+3}], v9, {SRD_WS}, 0 offen sc1
        buffer_store_dwordx4 v[{PQF+4}:{PQF+7}], v10, {SRD_WS}, 0 offen sc1
        """)

    def outp(self):
        a = self.a
        KVL = 16
        a(f"""
        s_lshl_b32 {S_T0}, {S_W}, 13
        s_add_u32 {S_T0}, {S_T0}, {S_KV}
        v_lshlrev_b32 v4, 5, v{V_LANE}
        v_add_u32 v4, {S_T0}, v4
        """)
        for p in range(4):
            a(f"buffer_load_dwordx4 v[{KVL+8*p}:{KVL+8*p+3}], v4, {SRD_WS}, 0 offen offset:{2048*p} sc1" if 2048*p < 4096 else
              f"v_add_u32 v5, {2048*p}, v4\nbuffer_load_dwordx4 v[{KVL+8*p}:{KVL+8*p+3}], v5, {SRD_WS}, 0 offen sc1")
            a(f"buffer_load_dwordx4 v[{KVL+8*p+4}:{KVL+8*p+7}], v4, {SRD_WS}, 0 offen offset:{2048*p+16} sc1" if 2048*p < 4096 else
              f"buffer_load_dwordx4 v[{KVL+8*p+4}:{KVL+8*p+7}], v5, {SRD_WS}, 0 offen offset:16 sc1")
        a(f"""
        s_lshl_b32 {S_T0}, {S_W}, 9
        s_add_u32 {S_T0}, {S_T0}, {S_Z}
        v_lshlrev_b32 v5, 5, v{V_L16}
        v_add_u32 v5, {S_T0}, v5
        buffer_load_dwordx4 v[48:51], v5, {SRD_WS}, 0 offen sc1
        buffer_load_dwordx4 v[52:55], v5, {SRD_WS}, 0 offen offset:16 sc1
        """)
        a(f"""
        s_and_b32 {S_T0}, {S_W}, 1
        s_lshl_b32 {S_T0}, {S_T0}, 15
        s_lshr_b32 {S_T1}, {S_W}, 1
        s_lshl_b32 {S_T1}, {S_T1}, 14
        s_add_u32 {S_T0}, {S_T0}, {S_T1}
        s_lshl_b32 {S_T1}, {S_RT}, 16
        s_add_u32 {S_T0}, {S_T0}, {S_T1}
        s_add_u32 {S_T0}, {S_T0}, {S_PQ}
        v_lshlrev_b32 v6, 4, v{V_LANE}
        """)
        for i in range(16):
            a(f"buffer_load_dwordx4 a[{192+4*i}:{192+4*i+3}], v6, {SRD_WS}, {S_T0} offen sc1")
            a(f"s_add_u32 {S_T0}, {S_T0}, 1024")
        a(f"""
        v_lshrrev_b32 v1, 3, v0
        v_and_b32 v3, 7, v0
        s_lshl_b32 {S_T0}, {S_CG}, 18
        s_lshl_b32 {S_T1}, {S_RT}, 7
        s_add_u32 {S_T0}, {S_T0}, {S_T1}
        v_lshlrev_b32 v7, 12, v1
        v_lshl_add_u32 v7, v3, 4, v7
        v_add_u32 v7, {S_T0}, v7
        v_add_u32 v8, {S_XIN}, v7
        v_add_u32 v9, 0x20000, v8
        buffer_load_dwordx4 v[56:59], v8, {SRD_WS}, 0 offen sc1
        buffer_load_dwordx4 v[60:63], v9, {SRD_WS}, 0 offen sc1
        """)
        a(f"""
        v_bfe_u32 v10, v{V_LANE}, 3, 2
        v_bfe_u32 v11, v{V_LANE}, 1, 2
        v_lshl_add_u32 v10, v11, 2, v10
        v_and_b32 v11, 1, v{V_LANE}
        v_lshl_add_u32 v10, v11, 4, v10
        v_lshlrev_b32 v10, 4, v10
        v_lshrrev_b32 v11, 5, v{V_LANE}
        v_mul_u32_u24 v11, 544, v11
        v_add_u32 v10, v10, v11
        s_mul_i32 {S_T0}, {S_W}, {8*544}
        s_add_u32 {S_T0}, {S_T0}, {L_KVF}
        v_add_u32 v10, {S_T0}, v10
        v_lshrrev_b32 v11, 1, v{V_L16}
        v_mul_u32_u24 v11, 544, v11
        v_and_b32 v12, 1, v{V_L16}
        v_lshl_add_u32 v11, v12, 4, v11
        v_add_u32 v11, {S_T0}, v11
        s_waitcnt vmcnt(18)
        """)
        for p in range(4):
            b = KVL + 8*p
            for j in range(4):
                a(f"v_cvt_pk_bf16_f32 v{b+j}, v{b+2*j}, v{b+2*j+1}")
            a(f"ds_write_b128 v10, v[{b}:{b+3}] offset:{p*2*544}")
        for j in range(4):
            a(f"v_cvt_pk_bf16_f32 v{48+j}, v{48+2*j}, v{48+2*j+1}")
        a(f"ds_write_b128 v11, v[48:51] offset:512")
        a(f"""
        v_and_b32 v12, 31, v{V_LANE}
        v_lshrrev_b32 v13, 5, v{V_LANE}
        v_lshlrev_b32 v14, 4, v13
        v_add_u32 v15, v14, v12
        v_lshlrev_b32 v15, 4, v15
        v_lshlrev_b32 v14, 4, v13
        v_add_u32 v14, 512, v14
        v_cmp_gt_u32 vcc, 16, v12
        v_cndmask_b32 v15, v14, v15, vcc
        s_lshr_b32 {S_T0}, {S_W}, 1
        s_mul_i32 {S_T1}, {S_T0}, {16*544}
        s_add_u32 {S_T1}, {S_T1}, {L_KVF}
        v_add_u32 v15, {S_T1}, v15
        """)
        AKV = 15
        a(f"""
        v_lshrrev_b32 v16, 2, v{V_L16}
        v_lshrrev_b32 v17, 1, v{V_H}
        v_lshl_add_u32 v17, v17, 2, v16
        v_lshlrev_b32 v17, 7, v17
        v_and_b32 v18, 3, v{V_L16}
        v_lshl_add_u32 v17, v18, 3, v17
        s_lshl_b32 {S_T1}, {S_T0}, 15
        s_add_u32 {S_T1}, {S_T1}, {L_WO}
        v_add_u32 v17, {S_T1}, v17
        v_and_b32 v18, 2, v16
        v_and_b32 v19, 1, v{V_H}
        v_xor_b32 v18, v18, v19
        s_lshl_b32 {S_T1}, {S_T0}, 1
        v_xor_b32 v18, {S_T1}, v18
        v_lshl_add_u32 v4, v18, 5, v17
        v_xor_b32 v18, 2, v18
        v_lshl_add_u32 v5, v18, 5, v17
        """)
        AW = [4, 5]
        ACC = [64, 80]
        for i in range(32): a(f"v_mov_b32 v{64+i}, 0")
        D1 = [96, 112]; KF = [128, 132]; WF = [[136, 140], [144, 148]]; OF = [152, 156]
        a("s_waitcnt lgkmcnt(0)\ns_barrier")
        def rd(i):
            st = i & 1
            a(f"ds_read_b128 v[{KF[st]}:{KF[st]+3}], v{AKV} offset:{i*544}")
            for c in range(2):
                b = WF[st][c]
                a(f"ds_read_b64_tr_b16 v[{b}:{b+1}], v{AW[c]} offset:{i*2048}")
                a(f"ds_read_b64_tr_b16 v[{b+2}:{b+3}], v{AW[c]} offset:{i*2048+1024}")
        def m1(i):
            st = i & 1
            a(f"v_mfma_f32_32x32x16_bf16 v[{D1[st]}:{D1[st]+15}], v[{KF[st]}:{KF[st]+3}], a[{192+4*i}:{192+4*i+3}], 0")
        rd(0)
        a("s_waitcnt vmcnt(17) lgkmcnt(4)")
        m1(0)
        for i in range(16):
            st = i & 1
            if i + 1 < 16:
                rd(i+1)
                a(f"s_waitcnt vmcnt({max(0, 16 - i)}) lgkmcnt(4)")
                m1(i+1)
            else:
                a("s_nop 7")
            d = D1[st]; o = OF[st]
            a(f"v_add_f32 v{d+8}, {fx(1e-6)}, v{d+8}")
            a(f"v_rcp_f32 v{d+8}, v{d+8}")
            for p in range(4):
                a(f"v_pk_mul_f32 v[{d+2*p}:{d+2*p+1}], v[{d+2*p}:{d+2*p+1}], v[{d+8}:{d+9}] op_sel_hi:[1,0]")
            for p in range(4):
                a(f"v_cvt_pk_bf16_f32 v{o+p}, v{d+2*p}, v{d+2*p+1}")
            if i + 1 >= 16: a("s_waitcnt lgkmcnt(0)")
            for c in range(2):
                b = WF[st][c]
                a(f"v_mfma_f32_32x32x16_bf16 v[{ACC[c]}:{ACC[c]+15}], v[{o}:{o+3}], v[{b}:{b+3}], v[{ACC[c]}:{ACC[c]+15}]")
        a(f"""
        s_lshl_b32 {S_T0}, {S_W}, 12
        s_add_u32 {S_T0}, {S_T0}, {L_RED}
        v_lshlrev_b32 v6, 4, v{V_LANE}
        v_add_u32 v7, {S_T0}, v6
        """)
        for j in range(4):
            a(f"ds_write_b128 v7, v[{ACC[1]+4*j}:{ACC[1]+4*j+3}] offset:{1024*j}")
        a(f"""
        s_xor_b32 {S_T0}, {S_W}, 2
        s_lshl_b32 {S_T0}, {S_T0}, 12
        s_add_u32 {S_T0}, {S_T0}, {L_RED}
        v_add_u32 v7, {S_T0}, v6
        s_waitcnt lgkmcnt(0)
        s_barrier
        """)
        for j in range(4):
            a(f"ds_read_b128 v[{96+4*j}:{96+4*j+3}], v7 offset:{1024*j}")
        a(f"""
        v_and_b32 v8, 31, v{V_LANE}
        s_lshr_b32 {S_T0}, {S_W}, 1
        s_lshl_b32 {S_T0}, {S_T0}, 5
        v_add_u32 v8, {S_T0}, v8
        v_mul_u32_u24 v8, 144, v8
        v_lshrrev_b32 v9, 5, v{V_LANE}
        v_lshl_add_u32 v8, v9, 3, v8
        s_and_b32 {S_T0}, {S_W}, 1
        s_lshl_b32 {S_T0}, {S_T0}, 6
        s_add_u32 {S_T0}, {S_T0}, {L_OT}
        v_add_u32 v8, {S_T0}, v8
        s_waitcnt lgkmcnt(0)
        """)
        for p in range(8):
            a(f"v_pk_add_f32 v[{ACC[0]+2*p}:{ACC[0]+2*p+1}], v[{ACC[0]+2*p}:{ACC[0]+2*p+1}], v[{96+2*p}:{96+2*p+1}]")
        for p in range(8):
            a(f"v_cvt_pk_bf16_f32 v{112+p}, v{ACC[0]+2*p}, v{ACC[0]+2*p+1}")
        for aa in range(4):
            a(f"ds_write_b64 v8, v[{112+2*aa}:{112+2*aa+1}] offset:{16*aa}")
        a(f"""
        v_lshrrev_b32 v1, 3, v0
        v_and_b32 v3, 7, v0
        v_mul_u32_u24 v2, 144, v1
        v_lshl_add_u32 v2, v3, 4, v2
        v_add_u32 v2, {L_OT}, v2
        s_waitcnt lgkmcnt(0)
        s_barrier
        ds_read_b128 v[96:99], v2
        ds_read_b128 v[100:103], v2 offset:{32*144}
        s_waitcnt vmcnt(0) lgkmcnt(0)
        """)
        for c in range(2):
            for p in range(4):
                o = 96+4*c+p; x = 56+4*c+p; t = 104
                a(f"""
                v_lshlrev_b32 v{t}, 16, v{o}
                v_and_b32 v{t+1}, 0xffff0000, v{o}
                v_lshlrev_b32 v{t+2}, 16, v{x}
                v_and_b32 v{t+3}, 0xffff0000, v{x}
                v_pk_add_f32 v[{t}:{t+1}], v[{t}:{t+1}], v[{t+2}:{t+3}]
                v_cvt_pk_bf16_f32 v{o}, v{t}, v{t+1}
                """)
        lf = a.label('FIN'); le = a.label('OE')
        a(f"""
        ds_write_b128 v2, v[96:99]
        ds_write_b128 v2, v[100:103] offset:{32*144}
        s_cmp_eq_u32 {S_LAYER}, 0
        s_cbranch_scc0 {lf}
        v_lshrrev_b32 v1, 3, v0
        v_and_b32 v3, 7, v0
        s_lshl_b32 {S_T0}, {S_CG}, 18
        s_lshl_b32 {S_T1}, {S_RT}, 7
        s_add_u32 {S_T0}, {S_T0}, {S_T1}
        s_add_u32 {S_T0}, {S_T0}, {S_XOUT}
        v_lshlrev_b32 v7, 12, v1
        v_lshl_add_u32 v7, v3, 4, v7
        v_add_u32 v8, {S_T0}, v7
        v_add_u32 v9, 0x20000, v8
        buffer_store_dwordx4 v[96:99], v8, {SRD_WS}, 0 offen sc1
        buffer_store_dwordx4 v[100:103], v9, {SRD_WS}, 0 offen sc1
        {lf}:
        """)
        a(f"""
        v_lshrrev_b32 v10, 2, v{V_L16}
        v_lshl_add_u32 v10, v{V_H}, 3, v10
        v_mul_u32_u24 v10, 144, v10
        v_and_b32 v11, 3, v{V_L16}
        v_lshl_add_u32 v10, v11, 3, v10
        s_lshl_b32 {S_T0}, {S_W}, 5
        s_add_u32 {S_T0}, {S_T0}, {L_OT}
        v_add_u32 v10, {S_T0}, v10
        s_waitcnt lgkmcnt(0)
        s_barrier
        ds_read_b64_tr_b16 v[104:105], v10
        ds_read_b64_tr_b16 v[106:107], v10 offset:{4*144}
        ds_read_b64_tr_b16 v[108:109], v10 offset:{32*144}
        ds_read_b64_tr_b16 v[110:111], v10 offset:{36*144}
        s_cmp_eq_u32 {S_LAYER}, 0
        s_cbranch_scc0 {le}
        v_mov_b32 v112, 0
        v_mov_b32 v113, 0
        s_waitcnt lgkmcnt(0)
        """)
        for j in range(8):
            a(f"v_dot2_f32_bf16 v112, v{104+j}, {S_ONES}, v112")
            a(f"v_dot2_f32_bf16 v113, v{104+j}, v{104+j}, v113")
        self.reduce_h(112, 114); self.reduce_h(113, 114)
        a(f"""
        v_cmp_eq_u32 vcc, 0, v{V_H}
        v_cndmask_b32 v112, v113, v112, vcc
        s_lshl_b32 {S_T0}, {S_RT}, 9
        s_lshl_b32 {S_T1}, {S_W}, 7
        s_add_u32 {S_T0}, {S_T0}, {S_T1}
        s_add_u32 {S_T0}, {S_T0}, {ST3}
        v_lshlrev_b32 v11, 3, v{V_L16}
        v_lshl_add_u32 v11, v{V_H}, 2, v11
        v_add_u32 v11, {S_T0}, v11
        s_mov_b64 {S_EXS}, exec
        s_mov_b64 exec, 0xffffffff
        buffer_atomic_add_f32 v112, v11, {SRD_WS}, 0 offen
        s_mov_b64 exec, {S_EXS}
        """)
        lx = a.label('OX')
        a(f"""
        s_branch {lx}
        {le}:
        s_lshl_b32 {S_T0}, {S_RT}, 16
        s_lshl_b32 {S_T1}, {S_W}, 14
        s_add_u32 {S_T0}, {S_T0}, {S_T1}
        s_lshl_b32 {S_T1}, {S_CG}, 7
        s_add_u32 {S_T0}, {S_T0}, {S_T1}
        v_lshlrev_b32 v11, 10, v{V_L16}
        v_lshl_add_u32 v11, v{V_H}, 4, v11
        v_add_u32 v11, {S_T0}, v11
        s_waitcnt lgkmcnt(0)
        buffer_store_dwordx4 v[104:107], v11, {SRD_OUT}, 0 offen
        buffer_store_dwordx4 v[108:111], v11, {SRD_OUT}, 0 offen offset:64
        {lx}:
        """)

    def build(self):
        a = self.a
        self.prologue()
        self.stamp()
        self.p0()
        stop = self.stop
        if stop == 'p0':
            self.wait(); a("s_branch L_END")
        a("L_LAYER:")
        for reg, (x0, x1) in ((S_XIN, (XT[0], XT[2])), (S_XOUT, (XT[1], XT[3])), (S_ST, (ST1, ST3)), (S_PQ, PQ), (S_KV, KVM), (S_Z, ZZ)):
            a(f"s_mul_i32 {reg}, {S_LAYER}, {(x1 - x0) & 0xffffffff:#x}")
            a(f"s_add_u32 {reg}, {reg}, {x0:#x}")
        self.wait(); self.stamp()
        self.conv(); self.stamp()
        self.arrive(); self.stamp()
        if stop == 'conv1':
            self.wait(); a("s_branch L_END")
        a(f"s_mov_b32 {S_XIN}, {S_XOUT}")
        self.wait(); self.stamp()
        self.qkv(); self.stamp()
        self.arrive(); self.stamp()
        if stop == 'qkv1':
            self.wait(); a("s_branch L_END")
        a(f"s_mov_b32 {S_XOUT}, {XT[2]}")
        self.wait(); self.stamp()
        self.outp(); self.stamp()
        a(f"""
        s_cmp_eq_u32 {S_LAYER}, 1
        s_cbranch_scc1 L_END
        """)
        self.arrive(); self.stamp()
        if stop == 'out1':
            self.wait(); a("s_branch L_END")
        a(f"""
        s_mov_b32 {S_LAYER}, 1
        s_branch L_LAYER
        L_END:
        s_endpgm
        """)
        body = a.finalize()
        hdr = open(os.path.join(os.path.dirname(os.path.abspath(__file__)), 'header.txt')).read()
        hdr = hdr.replace('@@LAUNCH@@', f'; @launch grid=(256,1,1) block=(256,1,1) lds={LDS_SIZE}')
        txt = hdr + f""".amdgcn_target "amdgcn-amd-amdhsa--gfx950"
.text
.globl {NAME}_kernel
.p2align 8
.type {NAME}_kernel,@function
{NAME}_kernel:
""" + body + f""".section .rodata,"a"
.p2align 6
.amdhsa_kernel {NAME}_kernel
  .amdhsa_next_free_vgpr 512
  .amdhsa_next_free_sgpr 102
  .amdhsa_accum_offset 256
  .amdhsa_group_segment_fixed_size 0
  .amdhsa_kernarg_size 104
  .amdhsa_user_sgpr_count 2
  .amdhsa_user_sgpr_kernarg_segment_ptr 1
  .amdhsa_system_sgpr_workgroup_id_x 1
.end_amdhsa_kernel
"""
        return txt

if __name__ == '__main__':
    import argparse
    ap = argparse.ArgumentParser()
    ap.add_argument('--stop', default=None)
    ap.add_argument('--ts', action='store_true')
    ap.add_argument('-o', default='k.s')
    args = ap.parse_args()
    g = Gen(stop=args.stop, ts=args.ts)
    t = g.build()
    open(args.o, 'w').write(t)
    print('instructions', g.a.count(), 'nops inserted', g.a.nnop, 'bytes', len(t))
```

```python
import sys, os, math
sys.path.insert(0, os.path.dirname(os.path.abspath(__file__)))
from asmgen import Asm

NAME = 'interleave_layers__ssm_conv_s4d__linear_attn_block__prompt'

CNT  = 0x0
ZR   = 0x4000
KVM  = [ZR, ZR + 32768]
ZZ   = [ZR + 65536, ZR + 67584]
ST3  = ZR + 69632
ST1  = 0x1C000
GCNT = 0x20000
TS   = 0x80000
XT   = [0x100000, 0x300000, 0x500000, 0x700000]
PQ   = [0x900000, 0xB00000]
WQF  = 0xD00000
WOFG = 0xE80000
WS_SIZE = 0xF00000

L_WO = 0
L_KC = 65536
L_XL = 82432
L_MISC = L_XL + 65536
LDS_SIZE = 163840
L_U  = L_XL
L_Y  = L_XL + 18560
L_TA = L_XL
L_TB = L_XL + 9216
L_TW = L_XL + 46080
L_CT = L_XL + 18432
L_KD = L_XL + 28672
L_KVF = L_XL
L_O32 = L_XL + 17408
L_OT  = L_XL + 52224
L_S2R = L_MISC
L_S2M = L_MISC + 256
L_STG = L_MISC + 512

STPERM = True
CODE_CHUNKS = int(os.environ.get('CODE_CHUNKS', '5'))
SLEEP = int(os.environ.get('SLEEP', '2'))
SLEEP0 = int(os.environ.get('SLEEP0', '14'))
SLEEPG = int(os.environ.get('SLEEPG', '6'))
LOG2E = 1.4426950408889634
def f2u(x):
    import struct
    return struct.unpack('<I', struct.pack('<f', x))[0]
def fx(x): return '0x%08x' % f2u(x)
def pk(r): return f"v[{r}:{r+1}]"
def v4(r): return f"v[{r}:{r+3}]"

S_ID='s2'; S_W='s3'; S_RT='s4'; S_CG='s5'; S_LAYER='s6'; S_TGT='s7'
SRD_WS='s[44:47]'; SRD_WQ='s[48:51]'; SRD_WO='s[52:55]'; SRD_OUT='s[56:59]'; SRD_X0='s[60:63]'
S_ONES='s64'
S_EXS='s[70:71]'
S_XIN='s72'; S_XOUT='s73'; S_ST='s74'; S_PQ='s75'; S_KV='s76'; S_Z='s77'
S_SPIN='s78'
S_T0='s8'; S_T1='s9'; S_T2='s10'; S_T3='s11'; S_T4='s12'; S_T5='s13'
S_DM='s14'; S_DS='s15'

V_LANE=255; V_WSK=254; V_WSV=252; V_WSQ=248
V_DSK1=246; V_DSK0=244
V_CNT=239; V_POLL=238; V_ONE=237
V_L16=243; V_H=242
V_TS=241; V_TS2=240
V_GCNT=235; V_POLL2=234; V_TGT=233
V_PT=236

WOF = 104
def weave(main, fill, per=2, lead=0):
    out = []; fi = 0
    for k, m in enumerate(main):
        out.append(m)
        if k >= lead:
            for _ in range(per):
                if fi < len(fill): out.append(fill[fi]); fi += 1
    out += fill[fi:]
    return out
def zipmerge(*lists):
    out = []
    n = max(len(l) for l in lists)
    for i in range(n):
        for l in lists:
            if i < len(l): out.append(l[i])
    return out
import re as _re
def unpk(ins):
    m = _re.match(r'v_pk_(mul|add|fma)_f32 v\[(\d+):\d+\], (.*)', ins)
    if not m: return [ins]
    op, d, rest = m.group(1), int(m.group(2)), m.group(3)
    srcs = [int(x) for x in _re.findall(r'v\[(\d+):\d+\]', rest)]
    n = len(srcs)
    hi = [1]*n
    mm = _re.search(r'op_sel_hi:\[([\d,]+)\]', rest)
    if mm: hi = [int(x) for x in mm.group(1).split(',')]
    assert 'op_sel:[' not in rest
    neg = [0]*n
    mm = _re.search(r'neg_lo:\[([\d,]+)\]', rest)
    if mm: neg = [int(x) for x in mm.group(1).split(',')]
    out = []
    for h in range(2):
        ops = []
        for i in range(n):
            r = srcs[i] + (h if hi[i] else 0)
            ops.append(('-' if neg[i] else '') + f'v{r}')
        out.append(f"v_{op}_f32 v{d+h}, " + ', '.join(ops))
    return out
def unpk_all(L):
    o = []
    for x in L: o += unpk(x)
    return o
def lines(s): return [t.strip() for t in s.split('\n') if t.strip()]

class Gen:
    def __init__(self, stop=None, ts=False):
        self.a = Asm(); self.stop = stop; self.ts = ts; self.tsn = 0
    def emit(self, lst):
        for x in lst: self.a(x)

    def stamp(self):
        if not self.ts: return
        n = self.tsn; self.tsn += 1
        self.a(f"""
        s_memrealtime s[80:81]
        s_lshl_b32 s82, {S_LAYER}, 5
        s_add_u32 m0, s82, {n}
        s_waitcnt lgkmcnt(0)
        v_writelane_b32 v{V_TS}, s80, m0
        """)
    def sub(self, i):
        if self.ts: self.a(f"s_memtime s[{86+2*i}:{87+2*i}]")
    def subflush(self, phase, n):
        if not self.ts: return
        a = self.a
        a(f"s_waitcnt lgkmcnt(0)\ns_lshl_b32 s82, {S_LAYER}, 5\ns_add_u32 m0, s82, {phase*8}")
        for i in range(n):
            a(f"v_writelane_b32 v{V_TS2}, s{86+2*i}, m0\ns_add_u32 m0, m0, 1\ns_nop 3")
    def tsdump(self):
        if not self.ts: return
        a = self.a; l = a.label('TD')
        a(f"""
        s_cmp_eq_u32 {S_W}, 0
        s_cbranch_scc0 {l}
        s_lshl_b32 s82, {S_ID}, 9
        s_add_u32 s82, s82, {TS}
        v_lshlrev_b32 v1, 2, v{V_LANE}
        v_add_u32 v1, s82, v1
        buffer_store_dword v{V_TS}, v1, {SRD_WS}, 0 offen
        buffer_store_dword v{V_TS2}, v1, {SRD_WS}, 0 offen offset:256
        {l}:
        """)

    def arrive(self):
        a = self.a; l = a.label('ARR')
        a(f"""
        s_waitcnt vmcnt(0) lgkmcnt(0)
        s_barrier
        s_add_u32 {S_TGT}, {S_TGT}, 16
        s_cmp_eq_u32 {S_W}, 0
        s_cbranch_scc0 {l}
        s_mov_b64 exec, 1
        buffer_atomic_add v{V_ONE}, v{V_CNT}, {SRD_WS}, 0 offen sc1
        s_mov_b64 exec, -1
        {l}:
        """)
    def arrive_group(self):
        a = self.a; l = a.label('ARG')
        a(f"""
        s_waitcnt vmcnt(0) lgkmcnt(0)
        s_barrier
        s_cmp_eq_u32 {S_W}, 0
        s_cbranch_scc0 {l}
        s_mov_b64 exec, 1
        buffer_atomic_add v{V_ONE}, v{V_GCNT}, {SRD_WS}, 0 offen sc1
        s_mov_b64 exec, -1
        {l}:
        """)
    def wait_dual(self):
        a = self.a
        l = a.label('WT'); lp = a.label('POLL'); ld = a.label('PD')
        a(f"""
        s_cmp_eq_u32 {S_W}, 0
        s_cbranch_scc0 {l}
        s_add_u32 {S_T0}, {S_LAYER}, 1
        s_lshl_b32 {S_T0}, {S_T0}, 3
        v_mov_b32 v{V_TGT}, {S_TGT}
        v_mov_b32 v{V_PT}, {S_T0}
        v_cmp_eq_u32 vcc, 16, v{V_LANE}
        v_cndmask_b32 v{V_TGT}, v{V_TGT}, v{V_PT}, vcc
        s_mov_b64 exec, 0x1ffff
        s_mov_b32 {S_SPIN}, 0
        {('s_sleep ' + str(SLEEPG)) if SLEEPG else ''}
        {lp}:
        buffer_load_dword v{V_PT}, v{V_POLL2}, {SRD_WS}, 0 offen sc1
        s_add_u32 {S_SPIN}, {S_SPIN}, 1
        s_waitcnt vmcnt(0)
        v_cmp_gt_u32 vcc, v{V_TGT}, v{V_PT}
        s_cbranch_vccz {ld}
        {('s_sleep ' + str(SLEEP)) if SLEEP else ''}
        s_cmp_lt_u32 {S_SPIN}, 0x200000
        s_cbranch_scc1 {lp}
        {ld}:
        s_mov_b64 exec, -1
        {l}:
        s_barrier
        """)
    def wait(self):
        a = self.a
        l = a.label('WT'); lp = a.label('POLL'); ld = a.label('PD')
        a(f"""
        s_cmp_eq_u32 {S_W}, 0
        s_cbranch_scc0 {l}
        s_mov_b64 exec, 0xffff
        s_mov_b32 {S_SPIN}, 0
        {('s_sleep ' + str(SLEEP0)) if SLEEP0 else ''}
        {lp}:
        buffer_load_dword v{V_PT}, v{V_POLL}, {SRD_WS}, 0 offen sc1
        s_add_u32 {S_SPIN}, {S_SPIN}, 1
        s_waitcnt vmcnt(0)
        v_cmp_gt_u32 vcc, {S_TGT}, v{V_PT}
        s_cbranch_vccz {ld}
        {('s_sleep ' + str(SLEEP)) if SLEEP else ''}
        s_cmp_lt_u32 {S_SPIN}, 0x200000
        s_cbranch_scc1 {lp}
        {ld}:
        s_mov_b64 exec, -1
        {l}:
        s_barrier
        """)

    def reduce_h(self, r, t):
        return lines(f"""
        v_mov_b32 v{t}, v{r}
        v_permlane16_swap_b32 v{r}, v{t}
        v_add_f32 v{r}, v{r}, v{t}
        v_mov_b32 v{t}, v{r}
        v_permlane32_swap_b32 v{r}, v{t}
        v_add_f32 v{r}, v{r}, v{t}
        """)
    def reduce16(self, r):
        return lines(f"""
        v_add_f32_dpp v{r}, v{r}, v{r} quad_perm:[1,0,3,2] row_mask:0xf bank_mask:0xf
        v_add_f32_dpp v{r}, v{r}, v{r} quad_perm:[2,3,0,1] row_mask:0xf bank_mask:0xf
        v_add_f32_dpp v{r}, v{r}, v{r} row_half_mirror row_mask:0xf bank_mask:0xf
        v_add_f32_dpp v{r}, v{r}, v{r} row_mirror row_mask:0xf bank_mask:0xf
        """)
    def ln_final1(self, sm, sq, r_out, mr_out, t):
        return lines(f"""
        v_mul_f32 v{t}, {fx(1/512)}, v{sm}
        v_mul_f32 v{t+1}, {fx(1/512)}, v{sq}
        v_fma_f32 v{t+1}, -v{t}, v{t}, v{t+1}
        v_cvt_pk_bf16_f32 v{t+2}, v{t}, v{t+1}
        v_lshlrev_b32 v{t}, 16, v{t+2}
        v_and_b32 v{t+1}, 0xffff0000, v{t+2}
        v_add_f32 v{t+1}, {fx(1e-5)}, v{t+1}
        v_cvt_pk_bf16_f32 v{t+1}, v{t+1}, v{t+1}
        v_and_b32 v{t+1}, 0xffff0000, v{t+1}
        v_sqrt_f32 v{t+1}, v{t+1}
        v_cvt_pk_bf16_f32 v{t+1}, v{t+1}, v{t+1}
        v_and_b32 v{t+1}, 0xffff0000, v{t+1}
        v_rcp_f32 v{r_out}, v{t+1}
        v_mul_f32 v{mr_out}, v{t}, v{r_out}
        """)

    def prologue(self):
        a = self.a
        a(f"""
        s_cmp_ge_u32 {S_ID}, 256
        s_cbranch_scc1 L_EXIT
        s_load_dwordx16 s[16:31], s[0:1], 0
        s_load_dwordx8 s[32:39], s[0:1], 64
        s_load_dwordx2 s[40:41], s[0:1], 96
        v_and_b32 v{V_LANE}, 63, v0
        v_lshrrev_b32 v1, 6, v0
        v_and_b32 v{V_L16}, 15, v0
        v_bfe_u32 v{V_H}, v0, 4, 2
        v_readfirstlane_b32 {S_W}, v1
        s_and_b32 {S_T0}, {S_ID}, 7
        s_lshl_b32 {S_T0}, {S_T0}, 2
        s_lshr_b32 {S_T1}, {S_ID}, 6
        s_add_u32 {S_RT}, {S_T0}, {S_T1}
        s_lshr_b32 {S_CG}, {S_ID}, 3
        s_and_b32 {S_CG}, {S_CG}, 7
        s_mov_b32 {S_LAYER}, 0
        s_mov_b32 {S_TGT}, 0
        s_mov_b32 {S_ONES}, 0x3f803f80
        v_mov_b32 v{V_ONE}, 1
        s_and_b32 {S_T0}, {S_ID}, 15
        s_lshl_b32 {S_T0}, {S_T0}, 10
        v_mov_b32 v{V_CNT}, {S_T0}
        v_lshlrev_b32 v{V_POLL}, 10, v{V_LANE}
        s_waitcnt lgkmcnt(0)
        s_mov_b32 s60, s16
        s_and_b32 s61, s17, 0xffff
        s_mov_b32 s62, {2048*512*2}
        s_mov_b32 s63, 0x20000
        """)
    def prologue2(self):
        a = self.a
        a(f"""
        s_mov_b32 s44, s40
        s_and_b32 s45, s41, 0xffff
        s_mov_b32 s46, {WS_SIZE}
        s_mov_b32 s47, 0x20000
        s_mov_b32 s48, s32
        s_and_b32 s49, s33, 0xffff
        s_mov_b32 s50, {512*1536*2}
        s_mov_b32 s51, 0x20000
        s_mov_b32 s52, s34
        s_and_b32 s53, s35, 0xffff
        s_mov_b32 s54, {512*512*2}
        s_mov_b32 s55, 0x20000
        s_mov_b32 s56, s36
        s_and_b32 s57, s37, 0xffff
        s_mov_b32 s58, {2048*512*2}
        s_mov_b32 s59, 0x20000
        s_lshl_b32 {S_T0}, {S_RT}, 10
        s_add_u32 {S_T0}, {S_T0}, {GCNT}
        v_mov_b32 v{V_GCNT}, {S_T0}
        v_cmp_eq_u32 vcc, 16, v{V_LANE}
        v_cndmask_b32 v{V_POLL2}, v{V_POLL}, v{V_GCNT}, vcc
        """)

    def dma_weight(self, srd, rowpitch, colbyte, lds_base, swz, t, defer=False):
        a = self.a
        a(f"""
        v_lshrrev_b32 v{t}, 3, v{V_LANE}
        v_mul_u32_u24 v{t}, {rowpitch}, v{t}
        v_bfe_u32 v{t+1}, v{V_LANE}, 1, 2
        v_bfe_u32 v{t+2}, v{V_LANE}, 4, 1
        """)
        if swz == 'x':
            a(f"s_and_b32 {S_T0}, {S_W}, 1\ns_lshl_b32 {S_T0}, {S_T0}, 1\nv_or_b32 v{t+2}, {S_T0}, v{t+2}")
        else:
            a(f"v_lshlrev_b32 v{t+2}, 1, v{t+2}")
        a(f"""
        v_xor_b32 v{t+1}, v{t+1}, v{t+2}
        v_lshl_add_u32 v{t}, v{t+1}, 5, v{t}
        v_and_b32 v{t+1}, 1, v{V_LANE}
        v_lshl_add_u32 v{t}, v{t+1}, 4, v{t}
        s_lshl_b32 {S_T0}, {S_CG}, 7
        s_add_u32 {S_T0}, {S_T0}, {colbyte}
        v_add_u32 v{t}, {S_T0}, v{t}
        s_mul_i32 {S_DS}, {S_W}, {8*rowpitch}
        s_lshl_b32 {S_DM}, {S_W}, 10
        s_add_u32 {S_DM}, {S_DM}, {lds_base}
        """)
        groups = [lines(f"""
            s_mov_b32 m0, {S_DM}
            s_add_u32 {S_DM}, {S_DM}, 4096
            buffer_load_dwordx4 v{t}, {srd}, {S_DS} offen lds
            s_add_u32 {S_DS}, {S_DS}, {32*rowpitch}
            """) for i in range(16)]
        if defer: return groups
        for g in groups: self.emit(g)

    def wread_lists(self, lds_base, abase, part, t, o):
        rd = lines(f"""
        v_lshrrev_b32 v{t}, 2, v{V_L16}
        v_lshl_add_u32 v{t+1}, v{V_H}, 3, v{t}
        v_lshlrev_b32 v{t+1}, 7, v{t+1}
        v_and_b32 v{t+2}, 3, v{V_L16}
        v_lshl_add_u32 v{t+1}, v{t+2}, 3, v{t+1}
        v_add_u32 v{t+1}, {lds_base}, v{t+1}
        v_lshrrev_b32 v{t}, 1, v{t}
        v_and_b32 v{t+2}, 1, v{V_H}
        v_lshl_or_b32 v{t}, v{t+2}, 1, v{t}
        v_xor_b32 v{t}, {S_W}, v{t}
        v_lshl_add_u32 v{t+3}, v{t}, 5, v{t+1}
        """)
        for i in range(4): rd.append(f"v_mov_b32 v{o+i}, {S_ONES}")
        for ks in range(16):
            rd.append(f"ds_read_b64_tr_b16 a[{abase+4*ks}:{abase+4*ks+1}], v{t+3} offset:{ks*4096}")
            rd.append(f"ds_read_b64_tr_b16 a[{abase+4*ks+2}:{abase+4*ks+3}], v{t+3} offset:{ks*4096+512}")
        mf = []
        for ks in range(16):
            c = '0' if ks == 0 else v4(o+4)
            w = f"a[{abase+4*ks}:{abase+4*ks+3}]"
            if part == 0: mf.append(f"v_mfma_f32_16x16x32_bf16 {v4(o+4)}, {w}, {v4(o)}, {c}")
            else: mf.append(f"v_mfma_f32_16x16x32_bf16 {v4(o+4)}, {v4(o)}, {w}, {c}")
        if part == 0: mf += [f"v_mov_b32 v{V_WSQ+i}, v{o+4+i}" for i in range(4)]
        elif part == 1: mf.append(f"v_mov_b32 v{V_WSK}, v{o+4}")
        else: mf.append(f"v_mov_b32 v{V_WSV}, v{o+4}")
        return rd, mf

    def p0(self):
        a = self.a
        a(f"""
        v_lshrrev_b32 v1, 3, v0
        s_lshl_b32 {S_T0}, {S_RT}, 16
        s_lshl_b32 {S_T1}, {S_CG}, 7
        s_add_u32 {S_T0}, {S_T0}, {S_T1}
        v_lshlrev_b32 v2, 10, v1
        v_and_b32 v3, 7, v0
        v_lshl_add_u32 v2, v3, 4, v2
        v_add_u32 v2, {S_T0}, v2
        buffer_load_dwordx4 v[10:13], v2, {SRD_X0}, 0 offen
        v_add_u32 v4, 0x8000, v2
        buffer_load_dwordx4 v[14:17], v4, {SRD_X0}, 0 offen
        s_and_b32 {S_T0}, {S_ID}, 63
        s_lshl_b32 {S_T0}, {S_T0}, 2
        s_add_u32 {S_T0}, {S_T0}, {S_W}
        s_lshl_b32 {S_T0}, {S_T0}, 3
        s_lshr_b32 {S_T1}, {S_ID}, 6
        s_lshl_b32 {S_T1}, {S_T1}, 1
        s_add_u32 {S_T0}, {S_T0}, {S_T1}
        s_lshl_b32 {S_T0}, {S_T0}, 10
        v_lshlrev_b32 v5, 4, v{V_LANE}
        v_add_u32 v5, {S_T0}, v5
        buffer_load_dwordx4 v[18:21], v5, {SRD_X0}, 0 offen
        buffer_load_dwordx4 v[22:25], v5, {SRD_X0}, 0 offen offset:1024
        s_lshl_b32 {S_T0}, {S_ID}, 9
        v_lshlrev_b32 v6, 1, v0
        v_add_u32 v6, {S_T0}, v6
        global_load_ushort v26, v6, s[18:19]
        global_load_ushort v27, v6, s[20:21]
        global_load_ushort v28, v6, s[22:23]
        global_load_ushort v29, v6, s[24:25]
        v_lshrrev_b32 v7, 7, v0
        s_lshl_b32 {S_T0}, {S_ID}, 1
        v_add_lshl_u32 v7, v7, {S_T0}, 1
        global_load_ushort v30, v7, s[26:27]
        s_lshl_b32 {S_T0}, {S_ID}, 2
        v_mov_b32 v7, {S_T0}
        global_load_dword v{V_DSK0}, v7, s[28:29]
        """)
        self.prologue2()
        lp = a.label('PFC')
        a(f"""
        s_getpc_b64 s[66:67]
        s_and_b32 s66, s66, 0xffffff00
        s_lshr_b32 {S_T0}, {S_ID}, 3
        s_cmp_lt_u32 {S_T0}, {CODE_CHUNKS}
        s_cbranch_scc0 {lp}
        s_cmp_eq_u32 {S_W}, 3
        s_cbranch_scc0 {lp}
        s_lshl_b32 {S_T0}, {S_T0}, 13
        v_lshlrev_b32 v8, 7, v{V_LANE}
        v_add_u32 v8, {S_T0}, v8
        global_load_dword v198, v8, s[66:67]
        {lp}:
        v_and_b32 v8, 15, v{V_LANE}
        v_lshlrev_b32 v8, 20, v8
        buffer_load_dword v197, v8, {SRD_WS}, 0 offen
        """)
        lw = a.label('WT'); lw2 = a.label('WT')
        a(f"""
        s_and_b32 {S_T2}, {S_ID}, 7
        s_cmp_lt_u32 {S_ID}, 192
        s_cbranch_scc0 {lw}
        s_lshr_b32 {S_T3}, {S_ID}, 3
        s_mul_i32 {S_T0}, {S_T2}, {64*3072}
        s_lshl_b32 {S_T1}, {S_T3}, 7
        s_add_u32 {S_T0}, {S_T0}, {S_T1}
        v_mul_u32_u24 v8, 3072, v1
        v_lshl_add_u32 v8, v3, 4, v8
        v_add_u32 v8, {S_T0}, v8
        buffer_load_dwordx4 v[200:203], v8, {SRD_WQ}, 0 offen
        v_add_u32 v8, {32*3072}, v8
        buffer_load_dwordx4 v[204:207], v8, {SRD_WQ}, 0 offen
        s_branch {lw2}
        {lw}:
        s_sub_u32 {S_T3}, {S_ID}, 192
        s_lshr_b32 {S_T3}, {S_T3}, 3
        s_lshl_b32 {S_T0}, {S_T2}, 16
        s_lshl_b32 {S_T1}, {S_T3}, 7
        s_add_u32 {S_T0}, {S_T0}, {S_T1}
        v_lshlrev_b32 v8, 10, v1
        v_lshl_add_u32 v8, v3, 4, v8
        v_add_u32 v8, {S_T0}, v8
        buffer_load_dwordx4 v[200:203], v8, {SRD_WO}, 0 offen
        v_add_u32 v8, 0x8000, v8
        buffer_load_dwordx4 v[204:207], v8, {SRD_WO}, 0 offen
        {lw2}:
        """)
        l = a.label('CI')
        a(f"""
        s_cmp_lt_u32 {S_ID}, 16
        s_cbranch_scc0 {l}
        s_cmp_eq_u32 {S_W}, 0
        s_cbranch_scc0 {l}
        s_mov_b64 exec, 1
        v_mov_b32 v8, 0
        buffer_store_dword v8, v{V_CNT}, {SRD_WS}, 0 offen sc1
        s_waitcnt vmcnt(0)
        global_atomic_add v8, v{V_ONE}, s[38:39] sc1
        s_mov_b64 exec, -1
        {l}:
        """)
        IDX = 180
        a(f"v_lshlrev_b32 v31, 3, v0\nv_sub_u32 v31, 2047, v31\ns_mov_b32 {S_T5}, {L_KD}")
        chains = []
        for i in range(0, 10, 2):
            t = 32 + 4*(i//2)
            c = lines(f"""
            v_subrev_u32 v{t}, {i}, v31
            v_subrev_u32 v{t+1}, {i+1}, v31
            v_max_i32 v{t}, 0, v{t}
            v_max_i32 v{t+1}, 0, v{t+1}
            v_cvt_f32_i32 v{t}, v{t}
            v_cvt_f32_i32 v{t+1}, v{t+1}
            v_cvt_pk_bf16_f32 v{t+2}, v{t}, v{t+1}
            v_lshlrev_b32 v{t}, 16, v{t+2}
            v_and_b32 v{t+1}, 0xffff0000, v{t+2}
            v_cvt_u32_f32 v{t}, v{t}
            v_cvt_u32_f32 v{t+1}, v{t+1}
            v_lshrrev_b32 v{t+2}, 2, v{t}
            v_lshrrev_b32 v{t+3}, 2, v{t+1}
            v_add_u32 v{t+2}, 384, v{t+2}
            v_add_u32 v{t+3}, 384, v{t+3}
            v_min_u32 v{t}, v{t}, v{t+2}
            v_min_u32 v{t+1}, v{t+1}, v{t+3}
            v_lshrrev_b32 v{t+2}, 5, v{t}
            v_lshrrev_b32 v{t+3}, 5, v{t+1}
            v_add_u32 v{t}, v{t}, v{t+2}
            v_add_u32 v{t+1}, v{t+1}, v{t+3}
            v_lshl_add_u32 v{IDX+i}, v{t}, 2, {S_T5}
            """)
            if i + 1 < 9: c.append(f"v_lshl_add_u32 v{IDX+i+1}, v{t+1}, 2, {S_T5}")
            chains.append(c)
        self.emit(zipmerge(*chains))
        a(f"""
        v_mul_u32_u24 v8, 144, v1
        v_lshl_add_u32 v8, v3, 4, v8
        v_add_u32 v9, {L_TW}, v8
        v_add_u32 v8, {L_TA}, v8
        s_waitcnt vmcnt(11)
        ds_write_b128 v8, v[10:13]
        ds_write_b128 v8, v[14:17] offset:{32*144}
        s_waitcnt vmcnt(9)
        """)
        for r in range(32, 36): a(f"v_mov_b32 v{r}, 0")
        for j in range(4):
            for row in range(2):
                b = 18 + 4*row; sm = 32 + 2*row
                a(f"v_dot2_f32_bf16 v{sm}, v{b+j}, {S_ONES}, v{sm}\nv_dot2_f32_bf16 v{sm+1}, v{b+j}, v{b+j}, v{sm+1}")
        self.emit(zipmerge(*[self.reduce16(r) for r in range(32, 36)]))
        self.emit(zipmerge(*[self.reduce_h(r, 36 + (r-32)) for r in range(32, 36)]))
        a(f"""
        s_lshl_b32 {S_T0}, {S_W}, 4
        s_add_u32 {S_T0}, {S_T0}, {L_STG}
        v_mov_b32 v36, {S_T0}
        ds_write_b128 v36, v[32:35]
        s_waitcnt vmcnt(0)
        ds_write_b128 v9, v[200:203]
        ds_write_b128 v9, v[204:207] offset:{32*144}
        v_lshrrev_b32 v9, 2, v{V_L16}
        v_lshl_add_u32 v9, v{V_H}, 3, v9
        v_mul_u32_u24 v9, 144, v9
        v_and_b32 v2, 3, v{V_L16}
        v_lshl_add_u32 v9, v2, 3, v9
        s_lshl_b32 {S_T0}, {S_W}, 5
        s_add_u32 {S_T0}, {S_T0}, {L_TA}
        v_add_u32 v9, {S_T0}, v9
        s_lshl_b32 {S_T0}, {S_W}, 4
        v_add_u32 v2, {S_T0}, v{V_L16}
        v_mul_u32_u24 v2, 144, v2
        v_lshl_add_u32 v2, v{V_H}, 4, v2
        v_add_u32 v2, {L_TB}, v2
        s_waitcnt lgkmcnt(0)
        s_barrier
        ds_read_b64_tr_b16 v[10:11], v9
        ds_read_b64_tr_b16 v[12:13], v9 offset:{4*144}
        ds_read_b64_tr_b16 v[14:15], v9 offset:{32*144}
        ds_read_b64_tr_b16 v[16:17], v9 offset:{36*144}
        """)
        lz = a.label('WF'); lz2 = a.label('WF')
        a(f"""
        s_cmp_lt_u32 {S_ID}, 192
        s_cbranch_scc0 {lz}
        v_add_u32 v8, {L_TW - L_TA}, v9
        ds_read_b64_tr_b16 v[200:201], v8
        ds_read_b64_tr_b16 v[202:203], v8 offset:{4*144}
        ds_read_b64_tr_b16 v[204:205], v8 offset:{32*144}
        ds_read_b64_tr_b16 v[206:207], v8 offset:{36*144}
        s_lshr_b32 {S_T0}, {S_T3}, 3
        s_lshl_b32 {S_T0}, {S_T0}, 19
        s_and_b32 {S_T1}, {S_T3}, 7
        s_lshl_b32 {S_T1}, {S_T1}, 2
        s_add_u32 {S_T1}, {S_T1}, {S_W}
        s_lshl_b32 {S_T1}, {S_T1}, 14
        s_add_u32 {S_T0}, {S_T0}, {S_T1}
        s_lshl_b32 {S_T1}, {S_T2}, 11
        s_add_u32 {S_T0}, {S_T0}, {S_T1}
        s_add_u32 {S_T0}, {S_T0}, {WQF}
        s_branch {lz2}
        {lz}:
        v_lshrrev_b32 v8, 2, v{V_L16}
        v_lshrrev_b32 v7, 1, v{V_H}
        v_lshl_add_u32 v8, v7, 2, v8
        s_lshl_b32 {S_T0}, {S_W}, 4
        v_add_u32 v8, {S_T0}, v8
        v_mul_u32_u24 v8, 144, v8
        v_and_b32 v7, 1, v{V_H}
        v_lshl_add_u32 v8, v7, 5, v8
        v_and_b32 v7, 3, v{V_L16}
        v_lshl_add_u32 v8, v7, 3, v8
        v_add_u32 v8, {L_TW}, v8
        ds_read_b64_tr_b16 v[200:201], v8
        ds_read_b64_tr_b16 v[202:203], v8 offset:{8*144}
        ds_read_b64_tr_b16 v[204:205], v8 offset:64
        ds_read_b64_tr_b16 v[206:207], v8 offset:{8*144+64}
        s_lshl_b32 {S_T0}, {S_T3}, 16
        s_lshl_b32 {S_T1}, {S_T2}, 2
        s_add_u32 {S_T1}, {S_T1}, {S_W}
        s_lshl_b32 {S_T1}, {S_T1}, 11
        s_add_u32 {S_T0}, {S_T0}, {S_T1}
        s_add_u32 {S_T0}, {S_T0}, {WOFG}
        {lz2}:
        v_lshlrev_b32 v7, 4, v{V_LANE}
        v_add_u32 v7, {S_T0}, v7
        v_mul_u32_u24 v9, 144, v1
        v_lshl_add_u32 v9, v3, 4, v9
        v_add_u32 v9, {L_TB}, v9
        s_lshl_b32 {S_T0}, {S_CG}, 18
        s_lshl_b32 {S_T1}, {S_RT}, 7
        s_add_u32 {S_T0}, {S_T0}, {S_T1}
        s_add_u32 {S_T0}, {S_T0}, {XT[0]}
        v_lshlrev_b32 v4, 12, v1
        v_lshl_add_u32 v4, v3, 4, v4
        v_add_u32 v4, {S_T0}, v4
        v_add_u32 v5, 0x20000, v4
        s_waitcnt lgkmcnt(0)
        ds_write_b128 v2, v[10:13]
        ds_write_b128 v2, v[14:17] offset:64
        buffer_store_dwordx4 v[200:203], v7, {SRD_WS}, 0 offen sc1
        buffer_store_dwordx4 v[204:207], v7, {SRD_WS}, 0 offen offset:1024 sc1
        v_mov_b32 v6, 0
        s_waitcnt lgkmcnt(0)
        s_barrier
        ds_read_b128 v[10:13], v9
        ds_read_b128 v[14:17], v9 offset:{32*144}
        s_waitcnt lgkmcnt(0)
        buffer_store_dwordx4 v[10:13], v4, {SRD_WS}, 0 offen sc1
        buffer_store_dwordx4 v[14:17], v5, {SRD_WS}, 0 offen sc1
        global_load_dword v{V_PT}, v6, s[38:39] sc1
        """)
        l1 = a.label('Z1'); l2 = a.label('Z2')
        a(f"""
        s_cmp_eq_u32 {S_W}, 1
        s_cbranch_scc0 {l1}
        s_mov_b64 exec, 0xffffff
        v_mov_b32 v10, 0
        v_mov_b32 v11, 0
        v_mov_b32 v12, 0
        v_mov_b32 v13, 0
        s_mul_i32 {S_T0}, {S_ID}, 384
        s_add_u32 {S_T0}, {S_T0}, {ZR}
        v_lshlrev_b32 v4, 4, v{V_LANE}
        v_add_u32 v4, {S_T0}, v4
        buffer_store_dwordx4 v[10:13], v4, {SRD_WS}, 0 offen sc1
        s_mov_b64 exec, -1
        {l1}:
        s_cmp_eq_u32 {S_W}, 2
        s_cbranch_scc0 {l2}
        s_mov_b64 exec, 0xf
        v_lshlrev_b32 v4, 4, v{V_LANE}
        v_add_u32 v5, {L_STG}, v4
        ds_read_b128 v[10:13], v5
        s_lshl_b32 {S_T0}, {S_ID}, 6
        s_add_u32 {S_T0}, {S_T0}, {ST1}
        v_add_u32 v4, {S_T0}, v4
        s_waitcnt lgkmcnt(0)
        buffer_store_dwordx4 v[10:13], v4, {SRD_WS}, 0 offen sc1
        s_mov_b64 exec, -1
        {l2}:
        """)
        self.stamp()
        self.kgen_consts()
        a("s_waitcnt lgkmcnt(0)\ns_barrier")
        self.sub(0)
        self.sub(1)
        self.kgen_main(IDX)
        self.sub(6)
        self.subflush(3, 7)
        self.stamp()

    def arrive_first(self):
        a = self.a
        la = a.label('ARR1'); lp = a.label('INITP'); ld = a.label('INITD')
        a(f"""
        s_waitcnt vmcnt(0)
        s_barrier
        s_add_u32 {S_TGT}, {S_TGT}, 16
        s_cmp_eq_u32 {S_W}, 0
        s_cbranch_scc0 {la}
        s_mov_b64 exec, 1
        s_mov_b32 {S_SPIN}, 0
        v_mov_b32 v6, 0
        {lp}:
        v_cmp_eq_u32 vcc, 16, v{V_PT}
        s_cbranch_vccnz {ld}
        global_load_dword v{V_PT}, v6, s[38:39] sc1
        s_add_u32 {S_SPIN}, {S_SPIN}, 1
        s_waitcnt vmcnt(0)
        s_cmp_lt_u32 {S_SPIN}, 0x200000
        s_cbranch_scc1 {lp}
        {ld}:
        buffer_atomic_add v{V_ONE}, v{V_CNT}, {SRD_WS}, 0 offen sc1
        s_mov_b64 exec, -1
        {la}:
        """)

    def cexp(self, p, dr, di, t):
        return lines(f"""
        v_mul_f32 v{t}, {fx(p)}, v40
        v_mul_f32 v{t+1}, {fx(p)}, v41
        v_exp_f32 v{t}, v{t}
        v_fract_f32 v{t+1}, v{t+1}
        v_cos_f32 v{t+2}, v{t+1}
        v_sin_f32 v{t+1}, v{t+1}
        v_mul_f32 v{dr}, v{t}, v{t+2}
        v_mul_f32 v{di}, v{t}, v{t+1}
        """)

    def kgen_consts(self):
        a = self.a
        a(f"""
        v_and_b32 v{V_DSK1}, 0xffff0000, v{V_DSK0}
        v_lshlrev_b32 v{V_DSK0}, 16, v{V_DSK0}
        v_lshlrev_b32 v26, 16, v26
        v_lshlrev_b32 v30, 16, v30
        v_lshlrev_b32 v27, 16, v27
        v_lshlrev_b32 v28, 16, v28
        v_mul_f32 v30, {fx(LOG2E)}, v30
        v_mul_f32 v26, {fx(LOG2E)}, v26
        v_lshlrev_b32 v29, 16, v29
        v_exp_f32 v30, v30
        v_exp_f32 v26, v26
        v_cvt_pk_bf16_f32 v31, v30, v26
        v_lshlrev_b32 v30, 16, v31
        v_and_b32 v26, 0xffff0000, v31
        v_mul_f32 v40, v26, v30
        v_mul_f32 v41, v27, v30
        v_mul_f32 v42, v28, v30
        v_mul_f32 v43, v29, v30
        v_mul_f32 v40, {fx(-LOG2E)}, v40
        v_mul_f32 v41, {fx(1/(2*math.pi))}, v41
        v_add_f32 v42, v42, v42
        v_add_f32 v43, v43, v43
        v_rndne_f32 v31, v41
        v_sub_f32 v41, v41, v31
        """)
        ch = []
        for i, p in enumerate((256.0, 512.0, 1536.0)):
            t = 52 + 6*i; d = 44 + 2*i
            c = self.cexp(p, t+3, t+4, t)
            c += lines(f"""
            v_mul_f32 v{d}, v42, v{t+3}
            v_mul_f32 v{d+1}, v42, v{t+4}
            v_fma_f32 v{d}, -v43, v{t+4}, v{d}
            v_fma_f32 v{d+1}, v43, v{t+3}, v{d+1}
            """)
            ch.append(c)
        self.emit(zipmerge(*ch))
        a(f"""
        v_lshrrev_b32 v1, 7, v0
        v_mul_u32_u24 v1, 5120, v1
        v_and_b32 v2, 127, v0
        v_lshl_add_u32 v1, v2, 2, v1
        v_add_u32 v1, {L_CT}, v1
        """)
        for q in range(10): a(f"ds_write_b32 v1, v{40+q} offset:{q*512}")

    def kgen_main(self, IDX):
        a = self.a
        a(f"""
        s_lshr_b32 {S_T0}, {S_W}, 1
        s_mul_i32 {S_T0}, {S_T0}, 5120
        s_and_b32 {S_T1}, {S_W}, 1
        s_lshl_b32 {S_T1}, {S_T1}, 8
        s_add_u32 {S_T0}, {S_T0}, {S_T1}
        s_add_u32 {S_T0}, {S_T0}, {L_CT}
        v_lshlrev_b32 v1, 4, v{V_H}
        v_add_u32 v1, {S_T0}, v1
        v_cvt_f32_u32 v2, v{V_L16}
        v_mov_b32 v3, v2
        """)
        ACC = 160
        def kstep(B, off, first):
            Q = lambda q: B + 4*q
            FR, FI, T0, T1 = B+40, B+44, B+48, B+52
            A0, A1, F0F, F2F = B+56, B+60, B+64, B+68
            rd = [f"ds_read_b128 {v4(Q(q))}, v1 offset:{q*512 + off}" for q in range(10)]
            L = []
            for h in (0, 2):
                L.append(f"v_pk_mul_f32 {pk(T0+h)}, {pk(Q(0)+h)}, v[2:3]")
                L.append(f"v_pk_mul_f32 {pk(T1+h)}, {pk(Q(1)+h)}, v[2:3]")
            for i in range(4):
                L.append(f"v_exp_f32 v{T0+i}, v{T0+i}")
            for i in range(4):
                L.append(f"v_cos_f32 v{FR+i}, v{T1+i}")
                L.append(f"v_sin_f32 v{FI+i}, v{T1+i}")
            for h in (0, 2):
                L.append(f"v_pk_mul_f32 {pk(FR+h)}, {pk(FR+h)}, {pk(T0+h)}")
                L.append(f"v_pk_mul_f32 {pk(FI+h)}, {pk(FI+h)}, {pk(T0+h)}")
            def packF(dst):
                L.extend([f"v_cvt_pk_bf16_f32 v{dst}, v{FR}, v{FR+1}", f"v_cvt_pk_bf16_f32 v{dst+1}, v{FR+2}, v{FR+3}",
                          f"v_cvt_pk_bf16_f32 v{dst+2}, v{FI}, v{FI+1}", f"v_cvt_pk_bf16_f32 v{dst+3}, v{FI+2}, v{FI+3}"])
            def sq():
                for h in (0, 2):
                    L.append(f"v_pk_mul_f32 {pk(T0+h)}, {pk(FI+h)}, {pk(FI+h)}")
                    L.append(f"v_pk_mul_f32 {pk(T1+h)}, {pk(FR+h)}, {pk(FI+h)}")
                for h in (0, 2):
                    L.append(f"v_pk_fma_f32 {pk(FR+h)}, {pk(FR+h)}, {pk(FR+h)}, {pk(T0+h)} neg_lo:[0,0,1] neg_hi:[0,0,1]")
                    L.append(f"v_pk_add_f32 {pk(FI+h)}, {pk(T1+h)}, {pk(T1+h)}")
            def gmul(q, dst):
                cr, ci = Q(q), Q(q+1)
                for h in (0, 2):
                    L.append(f"v_pk_mul_f32 {pk(T0+h)}, {pk(ci+h)}, {pk(FI+h)}")
                    L.append(f"v_pk_mul_f32 {pk(T1+h)}, {pk(ci+h)}, {pk(FR+h)}")
                for h in (0, 2):
                    L.append(f"v_pk_fma_f32 {pk(T0+h)}, {pk(cr+h)}, {pk(FR+h)}, {pk(T0+h)} neg_lo:[0,0,1] neg_hi:[0,0,1]")
                    L.append(f"v_pk_fma_f32 {pk(T1+h)}, {pk(cr+h)}, {pk(FI+h)}, {pk(T1+h)} neg_lo:[1,0,1] neg_hi:[1,0,1]")
                L.extend([f"v_cvt_pk_bf16_f32 v{dst}, v{T0}, v{T0+1}", f"v_cvt_pk_bf16_f32 v{dst+1}, v{T0+2}, v{T0+3}",
                          f"v_cvt_pk_bf16_f32 v{dst+2}, v{T1}, v{T1+1}", f"v_cvt_pk_bf16_f32 v{dst+3}, v{T1+2}, v{T1+3}"])
            def mm(T, A, F):
                c = '0' if first else v4(ACC+4*T)
                L.append(f"v_mfma_f32_16x16x32_bf16 {v4(ACC+4*T)}, {v4(A)}, {v4(F)}, {c}")
            packF(F0F); sq(); sq(); packF(F2F); sq(); sq()
            gmul(2, A0); mm(0, A0, F0F); gmul(4, A1); mm(1, A1, F0F)
            sq(); sq()
            gmul(6, A0); mm(2, A0, F2F); gmul(8, A1); mm(3, A1, F2F)
            return rd, L
        BA, BB = 8, 84
        def sprinkle(L, groups):
            step = max(1, len(L) // (len(groups) + 1)); out = []
            for i, x in enumerate(L):
                out.append(x)
                if groups and (i + 1) % step == 0: out += groups.pop(0)
            for g in groups: out += g
            return out
        for i in range(16): a(f"v_mov_b32 v{ACC+i}, 0")
        lk = a.label('KG'); lk2 = a.label('KG')
        a(f"s_mov_b32 {S_T4}, 0\n{lk}:")
        rdA, LA = kstep(BA, 0, False)
        rdB, LB = kstep(BB, 64, False)
        self.emit(rdA[:2] + rdB[:2] + rdA[2:] + rdB[2:])
        a("s_waitcnt lgkmcnt(15)")
        n_pre = 4+4+8+4 + 4+16+4+16
        self.emit(zipmerge(LA[:n_pre], LB[:n_pre]))
        a("s_waitcnt lgkmcnt(0)")
        self.emit(zipmerge(LA[n_pre:], LB[n_pre:]))
        a(f"v_add_u32 v1, 128, v1\ns_cmp_eq_u32 {S_T4}, 0\ns_cbranch_scc0 {lk2}")
        self.arrive_first()
        self.stamp()
        a(f"s_mov_b32 {S_T4}, 1\ns_branch {lk}\n{lk2}:\ns_nop 7")
        self.sub(2)
        a(f"""
        s_lshr_b32 {S_T0}, {S_W}, 1
        s_mul_i32 {S_T0}, {S_T0}, 4224
        s_and_b32 {S_T1}, {S_W}, 1
        s_mul_i32 {S_T1}, {S_T1}, 8448
        s_add_u32 {S_T0}, {S_T0}, {S_T1}
        s_add_u32 {S_T0}, {S_T0}, {L_KD}
        v_mul_u32_u24 v1, 264, v{V_H}
        v_lshl_add_u32 v1, v{V_L16}, 2, v1
        v_add_u32 v1, {S_T0}, v1
        """)
        for T in range(4):
            for r in range(4):
                a(f"ds_write_b32 v1, v{ACC+4*T+r} offset:{1056*T+64*r+4*(r>>1)}")
        a("s_waitcnt vmcnt(0) lgkmcnt(0)\ns_barrier")
        self.sub(3)
        VAL = 8
        for part in range(2):
            for ch in range(2):
                for i in range(9):
                    a(f"ds_read_b32 v{VAL+18*part+9*ch+i}, v{IDX+i} offset:{8448*part + 4224*ch}")
        a(f"""
        v_cmp_ne_u32 vcc, 255, v0
        v_lshlrev_b32 v1, 4, v0
        v_add_u32 v1, {L_KC + 8}, v1
        s_waitcnt lgkmcnt(0)
        """)
        for i in range(18): a(f"v_add_f32 v{VAL+i}, v{VAL+i}, v{VAL+18+i}")
        a(f"v_cndmask_b32 v{VAL+8}, 0, v{VAL+8}, vcc\nv_cndmask_b32 v{VAL+17}, 0, v{VAL+17}, vcc")
        self.sub(4)
        for ch in range(2):
            for m0 in range(2):
                o = 80 + 4*(2*ch+m0)
                s0 = VAL + 9*ch + (1 - m0)
                for p in range(4): a(f"v_cvt_pk_bf16_f32 v{o+p}, v{s0+2*p}, v{s0+2*p+1}")
                a(f"ds_write_b64 v1, {pk(o)} offset:{ch*8448+m0*4224}")
                a(f"ds_write_b64 v1, {pk(o+2)} offset:{ch*8448+m0*4224+8}")
        a(f"""
        v_cmp_gt_u32 vcc, 14, v{V_L16}
        v_mul_u32_u24 v1, 4224, v{V_H}
        v_lshl_add_u32 v1, v{V_L16}, 2, v1
        v_add_u32 v1, {L_KC + 4104}, v1
        v_mov_b32 v2, 0
        s_cmp_eq_u32 {S_W}, 0
        s_cselect_b64 {S_EXS}, vcc, 0
        s_mov_b64 exec, {S_EXS}
        ds_write_b32 v1, v2
        s_mov_b64 exec, -1
        s_waitcnt lgkmcnt(0)
        """)
        self.sub(5)
        a("s_barrier")

    def wfrag_loads(self):
        setup = lines(f"""
        s_lshl_b32 {S_T0}, {S_CG}, 2
        s_add_u32 {S_T0}, {S_T0}, {S_W}
        s_lshl_b32 {S_T0}, {S_T0}, 14
        s_add_u32 {S_DS}, {S_T0}, {WQF}
        v_lshlrev_b32 v199, 4, v{V_LANE}
        """)
        groups = []
        for p in range(3):
            for ks in range(16):
                g = [f"buffer_load_dwordx4 a[{64*p+4*ks}:{64*p+4*ks+3}], v199, {SRD_WS}, {S_DS} offen sc1"]
                g.append(f"s_add_u32 {S_DS}, {S_DS}, {1024 if ks < 15 else (1 << 19) - 15*1024}")
                groups.append(g)
        return setup, groups

    def wsum(self):
        a = self.a
        o = 16
        for i in range(4): a(f"v_mov_b32 v{o+i}, {S_ONES}")
        for ks in range(16):
            for p in range(3):
                d = v4(o+4+4*p); c = '0' if ks == 0 else d
                w = f"a[{64*p+4*ks}:{64*p+4*ks+3}]"
                if p == 0: a(f"v_mfma_f32_16x16x32_bf16 {d}, {w}, {v4(o)}, {c}")
                else: a(f"v_mfma_f32_16x16x32_bf16 {d}, {v4(o)}, {w}, {c}")
        for i in range(4): a(f"v_mov_b32 v{V_WSQ+i}, v{o+4+i}")
        a(f"v_mov_b32 v{V_WSK}, v{o+8}\nv_mov_b32 v{V_WSV}, v{o+12}")

    CV = dict(XA=10, ST=20, AX=3, AS=4, AU0=5, AU1=6, AK=8, AU=9, ACC=80, X32=200, U32=216)
    def conv_pre(self):
        a = self.a
        a(f"""
        s_lshl_b32 {S_T0}, {S_ID}, 13
        s_add_u32 {S_T0}, {S_T0}, {S_XIN}
        v_lshlrev_b32 v3, 4, v0
        v_add_u32 v3, {S_T0}, v3
        v_lshlrev_b32 v4, 4, v0
        v_add_u32 v4, {S_ST}, v4
        v_lshlrev_b32 v5, 4, v0
        v_add_u32 v5, {L_U + 512}, v5
        v_add_u32 v6, 9280, v5
        v_bfe_u32 v1, v0, 5, 2
        v_mul_u32_u24 v1, 4640, v1
        v_and_b32 v2, 31, v0
        v_lshl_add_u32 v1, v2, 4, v1
        v_add_u32 v1, {L_U}, v1
        v_mov_b32 v36, 0
        v_mov_b32 v37, 0
        v_mov_b32 v38, 0
        v_mov_b32 v39, 0
        v_and_b32 v2, 1, v0
        v_mul_u32_u24 v2, 9280, v2
        v_add_u32 v2, {L_U + 512}, v2
        ds_write_b32 v2, v36
        v_cmp_gt_u32 vcc, 128, v0
        s_and_saveexec_b64 {S_EXS}, vcc
        ds_write_b128 v1, v[36:39]
        s_mov_b64 exec, -1
        s_lshr_b32 {S_T0}, {S_W}, 1
        s_and_b32 {S_T1}, {S_W}, 1
        s_mul_i32 {S_T2}, {S_T0}, 8448
        s_lshl_b32 {S_T3}, {S_T1}, 8
        s_sub_u32 {S_T2}, {S_T2}, {S_T3}
        s_add_u32 {S_T2}, {S_T2}, {L_KC + 4096 - 192 - 3584}
        v_and_b32 v1, 1, v{V_L16}
        v_lshrrev_b32 v7, 1, v{V_L16}
        v_mul_u32_u24 v8, 4224, v1
        v_lshl_add_u32 v8, v{V_H}, 4, v8
        v_lshlrev_b32 v9, 3, v7
        v_sub_u32 v8, v8, v9
        v_add_u32 v8, {S_T2}, v8
        s_mul_i32 {S_T2}, {S_T0}, 9280
        s_sub_u32 {S_T2}, {S_T2}, {S_T3}
        s_add_u32 {S_T2}, {S_T2}, {L_U + 512 - 192}
        v_mul_u32_u24 v9, 4640, v1
        v_lshl_add_u32 v9, v7, 6, v9
        v_lshl_add_u32 v9, v{V_H}, 4, v9
        v_add_u32 v9, {S_T2}, v9
        s_lshl_b32 {S_T1}, {S_T1}, 1
        s_add_u32 {S_T0}, {S_T0}, {S_T1}
        s_mul_i32 {S_T0}, {S_T0}, 9216
        s_add_u32 {S_T0}, {S_T0}, {L_Y}
        v_mul_u32_u24 v2, 144, v7
        v_lshl_add_u32 v2, v{V_H}, 5, v2
        v_lshl_add_u32 v2, v1, 3, v2
        v_add_u32 v2, {S_T0}, v2
        v_lshrrev_b32 v7, 2, v0
        v_lshlrev_b32 v7, 4, v7
        v_lshl_add_u32 v7, v0, 5, v7
        v_add_u32 v7, {L_Y}, v7
        s_waitcnt lgkmcnt(0)
        """)

    def conv(self):
        a = self.a
        self.sub(0)
        XA, XB, ST = 10, 14, 20
        for j in range(4):
            a(f"s_mov_b32 {S_T0}, {4096*j}\nbuffer_load_dwordx4 {v4(ST+4*j)}, v4, {SRD_WS}, {S_T0} offen sc1")
        a(f"""
        buffer_load_dwordx4 {v4(XA)}, v3, {SRD_WS}, 0 offen sc1
        v_add_u32 v1, 4096, v3
        buffer_load_dwordx4 {v4(XB)}, v1, {SRD_WS}, 0 offen sc1
        s_mov_b32 s66, {fx(1/512)}
        s_mov_b32 s67, {fx(1e-5)}
        v_mov_b32 v36, s66
        v_mov_b32 v37, s66
        v_mov_b32 v38, s67
        v_mov_b32 v39, s67
        """)
        setup, self.wg = self.wfrag_loads()
        self.emit(setup)
        for g in self.wg[:12]: self.emit(g)
        a("s_waitcnt vmcnt(14)")
        self.sub(1)
        S = lambda i: ST + 2*i
        P  = 40
        MB = 48; VB = 56; R = 64; MR = 72
        for i in range(8): a(f"v_pk_mul_f32 {pk(S(i))}, {pk(S(i))}, v[36:37]")
        for i in range(8): a(f"v_fma_f32 v{S(i)+1}, -v{S(i)}, v{S(i)}, v{S(i)+1}")
        for i in range(8): a(f"v_cvt_pk_bf16_f32 v{P+i}, v{S(i)}, v{S(i)+1}")
        for i in range(8): a(f"v_and_b32 v{VB+i}, 0xffff0000, v{P+i}")
        for i in range(4): a(f"v_pk_add_f32 {pk(VB+2*i)}, {pk(VB+2*i)}, v[38:39]")
        for i in range(8): a(f"v_lshlrev_b32 v{MB+i}, 16, v{P+i}")
        for i in range(4): a(f"v_cvt_pk_bf16_f32 v{P+i}, v{VB+2*i}, v{VB+2*i+1}")
        for i in range(4):
            a(f"v_lshlrev_b32 v{VB+2*i}, 16, v{P+i}\nv_and_b32 v{VB+2*i+1}, 0xffff0000, v{P+i}")
        X32, U32 = 200, 216
        fill = []
        for c, X in enumerate((XA, XB)):
            for p in range(4):
                fill.append(f"v_lshlrev_b32 v{X32+8*c+2*p}, 16, v{X+p}")
                fill.append(f"v_and_b32 v{X32+8*c+2*p+1}, 0xffff0000, v{X+p}")
        for i in range(8): a(f"v_sqrt_f32 v{VB+i}, v{VB+i}")
        for i in range(4): a(f"v_cvt_pk_bf16_f32 v{P+i}, v{VB+2*i}, v{VB+2*i+1}")
        for i in range(4):
            a(f"v_lshlrev_b32 v{VB+2*i}, 16, v{P+i}\nv_and_b32 v{VB+2*i+1}, 0xffff0000, v{P+i}")
        a("s_waitcnt vmcnt(12)")
        self.emit(weave([f"v_rcp_f32 v{R+i}, v{VB+i}" for i in range(8)], fill, per=2))
        for i in range(4): a(f"v_pk_mul_f32 {pk(MR+2*i)}, {pk(MB+2*i)}, {pk(R+2*i)}")
        self.sub(2)
        for c in range(2):
            for p in range(4):
                x = X32+8*c+2*p; u = U32+8*c+2*p
                a(f"v_pk_fma_f32 {pk(u)}, {pk(x)}, {pk(R+2*p)}, {pk(MR+2*p)} neg_lo:[0,0,1] neg_hi:[0,0,1]")
        UP = 40
        for c in range(2):
            for p in range(4):
                u = U32+8*c+2*p
                a(f"v_cvt_pk_bf16_f32 v{UP+4*c+p}, v{u}, v{u+1}")
            ad = 5 + c
            a(f"ds_write_b128 v{ad}, {v4(UP+4*c)} offset:4640")
            a(f"ds_write2_b32 v{ad}, v{UP+4*c}, v{UP+4*c+1} offset0:1 offset1:2")
            a(f"ds_write2_b32 v{ad}, v{UP+4*c+2}, v{UP+4*c+3} offset0:3 offset1:4")
        AK, AU, ACC = 8, 9, 80
        a("s_waitcnt lgkmcnt(0)\ns_barrier")
        self.sub(3)
        def fragA(st, i): return (v4(112+4*i) if st == 0 else f"a[{192+4*i}:{192+4*i+3}]")
        def fragB(st, i): return (v4(144+4*i) if st == 0 else f"a[{224+4*i}:{224+4*i+3}]")
        def halfA(st, i, hh):
            b = (112 if st == 0 else 192) + 4*i + 2*hh
            return f"{'v' if st == 0 else 'a'}[{b}:{b+1}]"
        def loadlist(i, st):
            L = []
            for q in range(8):
                L.append(f"ds_read_b128 {fragB(st, q)}, v{AU} offset:{(3-i)*64 + 512*q}")
                L.append(f"ds_read_b64 {halfA(st, q, 0)}, v{AK} offset:{(3-i)*64 + (7-q)*512}")
                L.append(f"ds_read_b64 {halfA(st, q, 1)}, v{AK} offset:{(3-i)*64 + (7-q)*512 + 8}")
            return L
        self.emit(loadlist(0, 0))
        def mainloop(groups):
            written = set(); cnt = 0
            for i in range(4):
                st = i & 1
                a("s_waitcnt lgkmcnt(0)")
                nxt = loadlist(i+1, st ^ 1) if i < 3 else []
                for sh in range(8):
                    for t in range(sh, 8):
                        c = v4(ACC+4*t) if t in written else '0'
                        written.add(t)
                        a(f"v_mfma_f32_16x16x32_bf16 {v4(ACC+4*t)}, {fragA(st, sh)}, {fragB(st, t-sh)}, {c}")
                        cnt += 1
                        if nxt: a(nxt.pop(0))
                        elif groups and cnt % 2 == 0: self.emit(groups.pop(0))
            assert not groups
        mainloop(self.wg[12:36])
        self.wrest = self.wg[36:]
        self.sub(4)
        for t in range(8):
            a(f"ds_write_b64 v2, {pk(ACC+4*t)} offset:{1152*t}")
            a(f"ds_write_b64 v2, {pk(ACC+4*t+2)} offset:{1152*t+16}")
        a("s_waitcnt lgkmcnt(0)\ns_barrier")
        self.sub(5)
        Y0 = 112
        for ch in range(2):
            for sh in range(2):
                for hh in range(2):
                    b = Y0 + 16*sh + 8*ch + 4*hh
                    a(f"ds_read_b128 {v4(b)}, v7 offset:{sh*18432 + ch*9216 + 16*hh}")
        a(f"""
        v_subrev_u32 v3, {S_XIN}, v3
        v_add_u32 v3, {S_XOUT}, v3
        v_add_u32 v1, 4096, v3
        """)
        for ch in range(2):
            a(f"s_waitcnt lgkmcnt({4*(1-ch)})")
            D = V_DSK0 if ch == 0 else V_DSK1
            for p in range(4):
                y = Y0 + 8*ch + 2*p
                a(f"v_pk_add_f32 {pk(y)}, {pk(y)}, {pk(y+16)}")
            for p in range(4):
                y = Y0 + 8*ch + 2*p; u = U32 + 8*ch + 2*p
                a(f"v_pk_fma_f32 {pk(y)}, {pk(u)}, {pk(D)}, {pk(y)} op_sel_hi:[1,0,1]")
            for p in range(4):
                y = Y0 + 8*ch + 2*p; x = X32 + 8*ch + 2*p
                a(f"v_pk_add_f32 {pk(y)}, {pk(y)}, {pk(x)}")
            for p in range(4):
                y = Y0 + 8*ch + 2*p
                a(f"v_cvt_pk_bf16_f32 v{80+4*ch+p}, v{y}, v{y+1}")
            a(f"buffer_store_dwordx4 {v4(80+4*ch)}, v{3 if ch == 0 else 1}, {SRD_WS}, 0 offen sc1")
        self.sub(6)
        self.subflush(0, 7)

    def wstage_kv(self):
        a = self.a
        l = a.label('WS')
        a(f"s_cmp_eq_u32 {S_LAYER}, 0\ns_cbranch_scc0 {l}")
        for g in self.wrest: self.emit(g)
        a("s_waitcnt vmcnt(0)")
        self.wsum()
        a(f"{l}:")

    def qkv_pre(self):
        a = self.a
        t = 10
        a(f"""
        v_lshrrev_b32 v{t}, 3, v{V_LANE}
        v_lshlrev_b32 v{t}, 12, v{t}
        v_bfe_u32 v{t+1}, v{V_LANE}, 1, 2
        v_bfe_u32 v{t+2}, v{V_LANE}, 4, 1
        s_and_b32 {S_T0}, {S_W}, 1
        s_lshl_b32 {S_T0}, {S_T0}, 1
        v_or_b32 v{t+2}, {S_T0}, v{t+2}
        v_xor_b32 v{t+1}, v{t+1}, v{t+2}
        v_lshl_add_u32 v{t}, v{t+1}, 5, v{t}
        v_and_b32 v{t+1}, 1, v{V_LANE}
        v_lshl_add_u32 v{t}, v{t+1}, 4, v{t}
        s_lshl_b32 {S_T0}, {S_RT}, 7
        v_add_u32 v{t}, {S_T0}, v{t}
        s_lshl_b32 {S_DS}, {S_W}, 15
        s_add_u32 {S_DS}, {S_DS}, {S_XIN}
        s_lshl_b32 {S_DM}, {S_W}, 10
        s_add_u32 {S_DM}, {S_DM}, {L_XL}
        """)
        t = 12
        a(f"""
        v_lshrrev_b32 v{t}, 2, v{V_L16}
        v_lshl_add_u32 v{t+1}, v{V_H}, 3, v{t}
        v_lshlrev_b32 v{t+1}, 7, v{t+1}
        v_and_b32 v{t+2}, 3, v{V_L16}
        v_lshl_add_u32 v{t+1}, v{t+2}, 3, v{t+1}
        v_add_u32 v{t+1}, {L_XL}, v{t+1}
        v_lshrrev_b32 v{t}, 1, v{t}
        v_and_b32 v{t+2}, 1, v{V_H}
        v_lshl_or_b32 v{t}, v{t+2}, 1, v{t}
        v_xor_b32 v{t}, {S_W}, v{t}
        """)
        for j in range(4):
            a(f"v_xor_b32 v{t+2}, {j}, v{t}\nv_lshl_add_u32 v{4+j}, v{t+2}, 5, v{t+1}")
        for i in range(4): a(f"v_mov_b32 v{104+i}, {S_ONES}")
        a(f"""
        s_mov_b32 s66, {fx(1e-6)}
        s_mov_b32 s67, {fx(LOG2E)}
        v_mov_b32 v112, s66
        v_mov_b32 v113, s66
        v_mov_b32 v114, s67
        v_mov_b32 v115, s67
        """)

    def qkv(self):
        a = self.a
        self.sub(0)
        def dma():
            return lines(f"""
            s_mov_b32 m0, {S_DM}
            s_add_u32 {S_DM}, {S_DM}, 4096
            buffer_load_dwordx4 v10, {SRD_WS}, {S_DS} offen sc1 lds
            s_add_u32 {S_DS}, {S_DS}, {4*32768}
            """)
        for i in range(8): self.emit(dma())
        AD = 4
        AK_, AV_, AQ_ = 16, 32, 48
        DS, DG = 64, 68
        ONES = 104
        XF = [72, 88]
        def xload(ks, st):
            L = []
            for j in range(4):
                b = XF[st] + 4*j
                L.append(f"ds_read_b64_tr_b16 {pk(b)}, v{AD+j} offset:{ks*4096}")
                L.append(f"ds_read_b64_tr_b16 {pk(b+2)}, v{AD+j} offset:{ks*4096+512}")
            return L
        gstart = {0: 6, 2: 6, 4: 6, 8: 4, 12: 0}
        a(f"s_waitcnt vmcnt({gstart[0]})\ns_barrier")
        self.sub(1)
        self.emit(xload(0, 0))
        for ks in range(16):
            st = ks & 1
            pre = []
            if ks + 1 < 16:
                if ks + 1 in gstart: pre += [f"s_waitcnt vmcnt({gstart[ks+1]})", "s_barrier"]
                fill = xload(ks+1, st ^ 1)
            else:
                fill = xload(0, st ^ 1)
            a("s_waitcnt lgkmcnt(0)")
            self.emit(pre)
            M = []
            for j in range(4):
                x = v4(XF[st]+4*j)
                ck = '0' if ks == 0 else v4(AK_+4*j); cv = '0' if ks == 0 else v4(AV_+4*j)
                M.append(f"v_mfma_f32_16x16x32_bf16 {v4(AK_+4*j)}, {x}, a[{64+4*ks}:{64+4*ks+3}], {ck}")
                M.append(f"v_mfma_f32_16x16x32_bf16 {v4(AV_+4*j)}, {x}, a[{128+4*ks}:{128+4*ks+3}], {cv}")
            x0 = v4(XF[st])
            M.append(f"v_mfma_f32_16x16x32_bf16 {v4(DS)}, {v4(ONES)}, {x0}, {'0' if ks == 0 else v4(DS)}")
            M.append(f"v_mfma_f32_16x16x32_bf16 {v4(DG)}, {x0}, {x0}, {'0' if ks == 0 else v4(DG)}")
            if ks < 4: fill = fill + dma() + dma()
            self.emit(weave(M, fill, per=1 if ks >= 4 else 2))
        self.sub(2)
        SQ = 109
        F1 = lines(f"""
        v_and_b32 v8, 3, v{V_L16}
        v_lshrrev_b32 v9, 2, v{V_L16}
        v_cmp_eq_u32 s[66:67], 1, v8
        v_cmp_eq_u32 s[68:69], 2, v8
        v_cmp_eq_u32 vcc, 3, v8
        v_cndmask_b32 v{SQ}, v{DG}, v{DG+1}, s[66:67]
        v_cndmask_b32 v{SQ}, v{SQ}, v{DG+2}, s[68:69]
        v_cndmask_b32 v{SQ}, v{SQ}, v{DG+3}, vcc
        v_cmp_eq_u32 vcc, v9, v{V_H}
        s_lshl_b32 {S_T0}, {S_W}, 6
        s_add_u32 {S_T0}, {S_T0}, {L_S2R}
        v_cndmask_b32 v{SQ}, 0, v{SQ}, vcc
        v_lshlrev_b32 v8, 2, v{V_L16}
        v_add_u32 v9, {S_T0}, v8
        """)
        F1 += self.reduce_h(SQ, 110)
        F1 += self.ln_final1(DS, SQ, 116, 117, 118)
        F1 += lines(f"""
        ds_write_b32 v9, v116
        ds_write_b32 v9, v117 offset:{L_S2M-L_S2R}
        v_lshlrev_b32 v8, 4, v{V_H}
        v_add_u32 v8, {S_T0}, v8
        """)
        R4, M4 = 128, 144
        RQ, MQ = 160, 208
        F2 = []
        for j in range(4):
            F2.append(f"v_xor_b32 v{120+j}, {64*j}, v8")
            F2.append(f"v_xor_b32 v{124+j}, {64*j}, v9")
        for j in range(4):
            F2.append(f"ds_read_b128 {v4(R4+4*j)}, v{120+j}")
            F2.append(f"ds_read_b128 {v4(M4+4*j)}, v{120+j} offset:{L_S2M-L_S2R}")
        for j in range(4):
            F2.append(f"ds_read_b32 v{RQ+2*j}, v{124+j}")
            F2.append(f"ds_read_b32 v{MQ+2*j}, v{124+j} offset:{L_S2M-L_S2R}")
        EPS, L2E = 112, 114
        def phi(x, T):
            return [f"v_pk_mul_f32 {pk(T)}, {pk(x)}, {pk(L2E)}",
                    f"v_exp_f32_e64 v{T}, v{T} clamp", f"v_exp_f32_e64 v{T+1}, v{T+1} clamp",
                    f"v_max_f32 v{x}, v{EPS}, v{x}", f"v_max_f32 v{x+1}, v{EPS}, v{x+1}",
                    f"v_pk_add_f32 {pk(x)}, {pk(x)}, {pk(T)}"]
        PKF, VF, PQF = 168, 176, 200
        DKV, DZ = 196, 216
        def kv_chain(j, h2, T):
            k = AK_+4*j+h2; vv = AV_+4*j+h2; r = R4+4*j+h2; m = M4+4*j+h2
            c = [f"v_pk_fma_f32 {pk(T)}, {pk(m)}, v[{V_WSK}:{V_WSK+1}], {pk(EPS)} op_sel_hi:[1,0,1] neg_lo:[0,0,1] neg_hi:[0,0,1]",
                 f"v_pk_mul_f32 {pk(T+4)}, {pk(m)}, v[{V_WSV}:{V_WSV+1}] op_sel_hi:[1,0]",
                 f"v_pk_fma_f32 {pk(k)}, {pk(k)}, {pk(r)}, {pk(T)} neg_lo:[0,0,1] neg_hi:[0,0,1]",
                 f"v_pk_fma_f32 {pk(vv)}, {pk(vv)}, {pk(r)}, {pk(T+4)} neg_lo:[0,0,1] neg_hi:[0,0,1]"]
            ph = phi(k, T+2)
            c += [ph[0], f"v_cvt_pk_bf16_f32 v{VF + 2*j + h2//2}, v{vv}, v{vv+1}"] + ph[1:]
            c.append(f"v_cvt_pk_bf16_f32 v{PKF + 2*j + h2//2}, v{k}, v{k+1}")
            return c
        def q_chain(j, h2, T):
            q = AQ_+4*j+h2
            c = [f"v_pk_fma_f32 {pk(T)}, {pk(MQ+2*j)}, {pk(V_WSQ+h2)}, {pk(EPS)} op_sel_hi:[0,1,1] neg_lo:[0,0,1] neg_hi:[0,0,1]",
                 f"v_pk_fma_f32 {pk(q)}, {pk(q)}, {pk(RQ+2*j)}, {pk(T)} op_sel_hi:[1,0,1] neg_lo:[0,0,1] neg_hi:[0,0,1]"]
            c += phi(q, T+2)
            c.append(f"v_cvt_pk_bf16_f32 v{PQF + 2*j + h2//2}, v{q}, v{q+1}")
            return c
        adr = lines(f"""
        s_lshl_b32 {S_T0}, {S_CG}, 2
        s_add_u32 {S_T0}, {S_T0}, {S_W}
        s_lshl_b32 {S_T1}, {S_T0}, 10
        s_add_u32 {S_T1}, {S_T1}, {S_KV}
        v_lshlrev_b32 v11, 2, v{V_LANE}
        v_add_u32 v14, {S_T1}, v11
        s_lshl_b32 {S_T1}, {S_T0}, 6
        s_add_u32 {S_T1}, {S_T1}, {S_Z}
        v_add_u32 v15, {S_T1}, v11
        s_lshl_b32 {S_T1}, {S_RT}, 16
        s_add_u32 {S_T1}, {S_T1}, {S_PQ}
        s_lshl_b32 {S_T2}, {S_T0}, 10
        s_add_u32 {S_T1}, {S_T1}, {S_T2}
        s_and_b32 {S_T2}, {S_W}, 1
        s_lshl_b32 {S_T2}, {S_T2}, 4
        v_xor_b32 v11, {S_T2}, v{V_LANE}
        v_lshlrev_b32 v11, 4, v11
        v_add_u32 v11, {S_T1}, v11
        s_lshr_b32 {S_T2}, {S_W}, 1
        s_lshl_b32 {S_T2}, {S_T2}, 15
        v_add_u32 v12, {S_T2}, v11
        s_xor_b32 {S_T2}, {S_T2}, 0x8000
        v_add_u32 v13, {S_T2}, v11
        """)
        def passQ(ks_range, fill, per):
            for ks in ks_range:
                st = ks & 1
                nx = xload(ks+1, st ^ 1) if ks + 1 < 16 else []
                a("s_waitcnt lgkmcnt(0)")
                for j in range(4):
                    x = v4(XF[st]+4*j)
                    a(f"v_mfma_f32_16x16x32_bf16 {v4(AQ_+4*j)}, a[{4*ks}:{4*ks+3}], {x}, {'0' if ks == 0 else v4(AQ_+4*j)}")
                    k = 4 if j < 2 else 0
                    for _ in range(k):
                        if nx: a(nx.pop(0))
                    for _ in range(per):
                        if fill: a(fill.pop(0))
        fill = list(F1); passQ(range(0, 3), fill, 4); self.emit(fill)
        a("s_waitcnt lgkmcnt(0)\ns_barrier")
        fill = list(F2) + adr; passQ(range(3, 5), fill, 4); self.emit(fill)
        a("s_waitcnt lgkmcnt(0)")
        self.sub(3)
        TT = [184, 190, 220, 226]
        for j0 in (0, 2):
            self.emit(zipmerge(kv_chain(j0, 0, TT[0]), kv_chain(j0, 2, TT[1]), kv_chain(j0+1, 0, TT[2]), kv_chain(j0+1, 2, TT[3])))
            u = j0 // 2
            c1 = '0' if u == 0 else v4(DKV); c2 = '0' if u == 0 else v4(DZ)
            a(f"v_mfma_f32_16x16x32_bf16 {v4(DKV)}, {v4(VF+4*u)}, {v4(PKF+4*u)}, {c1}")
            a(f"v_mfma_f32_16x16x32_bf16 {v4(DZ)}, {v4(ONES)}, {v4(PKF+4*u)}, {c2}")
        for i in range(4):
            a(f"buffer_atomic_add_f32 v{DKV+i}, v14, {SRD_WS}, 0 offen offset:{256*i}")
        a(f"""
        s_mov_b64 exec, 0xffff
        buffer_atomic_add_f32 v{DZ}, v15, {SRD_WS}, 0 offen
        s_mov_b64 exec, -1
        """)
        self.sub(4)
        passQ(range(5, 16), [], 0)
        self.sub(5)
        TQ = [184, 188, 220, 224]
        for u in range(2):
            j0 = 2*u
            self.emit(zipmerge(q_chain(j0, 0, TQ[0]), q_chain(j0, 2, TQ[1]), q_chain(j0+1, 0, TQ[2]), q_chain(j0+1, 2, TQ[3])))
            b = PQF + 4*u
            a(f"v_permlane16_swap_b32 v{b}, v{b+2}\nv_permlane16_swap_b32 v{b+1}, v{b+3}")
            a(f"buffer_store_dwordx4 {v4(b)}, v{12+u}, {SRD_WS}, 0 offen sc1")
        self.sub(6)
        self.subflush(1, 7)

    def outp_pre(self):
        a = self.a
        a(f"""
        s_lshl_b32 {S_T0}, {S_W}, 13
        s_add_u32 {S_T0}, {S_T0}, {S_KV}
        v_lshlrev_b32 v4, 4, v{V_LANE}
        v_add_u32 v4, {S_T0}, v4
        v_add_u32 v5, 4096, v4
        s_lshl_b32 {S_T0}, {S_W}, 9
        s_add_u32 {S_T0}, {S_T0}, {S_Z}
        v_and_b32 v6, 31, v{V_LANE}
        v_lshlrev_b32 v6, 4, v6
        v_add_u32 v6, {S_T0}, v6
        s_and_b32 {S_T0}, {S_W}, 1
        s_lshl_b32 {S_T0}, {S_T0}, 15
        s_lshr_b32 {S_T1}, {S_W}, 1
        s_lshl_b32 {S_T1}, {S_T1}, 14
        s_add_u32 {S_T0}, {S_T0}, {S_T1}
        s_lshl_b32 {S_T1}, {S_RT}, 16
        s_add_u32 {S_T0}, {S_T0}, {S_T1}
        s_add_u32 {S_DS}, {S_T0}, {S_PQ}
        v_lshlrev_b32 v7, 4, v{V_LANE}
        v_lshrrev_b32 v1, 3, v0
        v_and_b32 v3, 7, v0
        s_lshl_b32 {S_T0}, {S_CG}, 18
        s_lshl_b32 {S_T1}, {S_RT}, 7
        s_add_u32 {S_T0}, {S_T0}, {S_T1}
        v_lshlrev_b32 v8, 12, v1
        v_lshl_add_u32 v8, v3, 4, v8
        v_add_u32 v8, {S_T0}, v8
        v_add_u32 v9, {S_XIN}, v8
        v_add_u32 v2, 0x20000, v9
        v_lshrrev_b32 v10, 4, v{V_LANE}
        v_bfe_u32 v11, v{V_LANE}, 2, 2
        v_lshl_add_u32 v10, v11, 2, v10
        v_bfe_u32 v11, v{V_LANE}, 1, 1
        v_lshl_add_u32 v10, v11, 4, v10
        v_lshlrev_b32 v10, 4, v10
        v_and_b32 v11, 1, v{V_LANE}
        v_lshl_add_u32 v10, v11, 3, v10
        s_mul_i32 {S_T0}, {S_W}, {8*544}
        s_add_u32 {S_T0}, {S_T0}, {L_KVF}
        v_add_u32 v10, {S_T0}, v10
        v_bfe_u32 v11, v{V_LANE}, 2, 3
        v_mul_u32_u24 v11, 544, v11
        v_and_b32 v12, 3, v{V_LANE}
        v_lshl_add_u32 v11, v12, 3, v11
        v_add_u32 v11, {S_T0}, v11
        v_and_b32 v12, 31, v{V_LANE}
        v_lshrrev_b32 v13, 5, v{V_LANE}
        v_lshlrev_b32 v14, 4, v13
        v_add_u32 v15, v14, v12
        v_lshlrev_b32 v15, 4, v15
        v_lshlrev_b32 v14, 4, v13
        v_add_u32 v14, 512, v14
        v_cmp_gt_u32 vcc, 16, v12
        v_cndmask_b32 v15, v14, v15, vcc
        s_lshr_b32 {S_T0}, {S_W}, 1
        s_mul_i32 {S_T1}, {S_T0}, {16*544}
        s_add_u32 {S_T1}, {S_T1}, {L_KVF}
        v_add_u32 v15, {S_T1}, v15
        v_lshrrev_b32 v16, 2, v{V_L16}
        v_lshrrev_b32 v17, 1, v{V_H}
        v_lshl_add_u32 v17, v17, 2, v16
        v_lshlrev_b32 v17, 7, v17
        v_and_b32 v18, 3, v{V_L16}
        v_lshl_add_u32 v17, v18, 3, v17
        s_lshl_b32 {S_T1}, {S_T0}, 15
        s_add_u32 {S_T1}, {S_T1}, {L_WO}
        v_add_u32 v17, {S_T1}, v17
        v_and_b32 v18, 2, v16
        v_and_b32 v19, 1, v{V_H}
        v_xor_b32 v18, v18, v19
        v_lshl_add_u32 v13, v18, 5, v17
        v_xor_b32 v18, 2, v18
        v_lshl_add_u32 v14, v18, 5, v17
        s_mul_i32 {S_T1}, {S_T0}, {64*272}
        s_and_b32 {S_T0}, {S_W}, 1
        s_lshl_b32 {S_T0}, {S_T0}, 7
        s_add_u32 {S_T1}, {S_T1}, {S_T0}
        s_add_u32 {S_T1}, {S_T1}, {L_O32}
        v_mul_u32_u24 v16, 272, v12
        v_lshrrev_b32 v17, 5, v{V_LANE}
        v_lshl_add_u32 v16, v17, 4, v16
        v_add_u32 v16, {S_T1}, v16
        v_mul_u32_u24 v17, 272, v1
        v_lshl_add_u32 v17, v3, 5, v17
        v_add_u32 v17, {L_O32}, v17
        v_mul_u32_u24 v18, 144, v1
        v_lshl_add_u32 v18, v3, 4, v18
        v_add_u32 v18, {L_OT}, v18
        """)
        a(f"""
        s_lshr_b32 {S_T0}, {S_W}, 1
        s_lshl_b32 {S_T0}, {S_T0}, 15
        s_add_u32 {S_T0}, {S_T0}, {L_WO}
        v_lshlrev_b32 v13, 4, v{V_LANE}
        v_add_u32 v13, {S_T0}, v13
        """)
        for i in range(16):
            for c in range(2):
                a(f"ds_read_b128 {v4(WOF + 8*i + 4*c)}, v13 offset:{i*2048 + c*1024}")

    def outp(self):
        a = self.a
        self.sub(0)
        KVL = 24
        issued = []
        def ld(txt, tag): a(txt); issued.append(tag)
        for p in range(8):
            ad = 4 if p < 4 else 5; off = (p & 3)*1024
            ld(f"buffer_load_dwordx4 {v4(KVL+4*p)}, v{ad}, {SRD_WS}, 0 offen offset:{off} sc1", 'kv')
        ld(f"buffer_load_dwordx4 v[56:59], v6, {SRD_WS}, 0 offen sc1", 'kv')
        def pqload(i):
            ld(f"buffer_load_dwordx4 a[{192+4*(i%8)}:{192+4*(i%8)+3}], v7, {SRD_WS}, {S_DS} offen sc1", f'pq{i}')
            a(f"s_add_u32 {S_DS}, {S_DS}, 1024")
        PD = 6
        for i in range(PD): pqload(i)
        def vm(tag):
            idx = max(i for i, t in enumerate(issued) if t == tag)
            return len(issued) - 1 - idx
        self.sub(1)
        a(f"s_waitcnt vmcnt({vm('kv')})")
        self.sub(2)
        for p in range(8):
            b = KVL + 4*p
            a(f"v_cvt_pk_bf16_f32 v{b}, v{b}, v{b+1}\nv_cvt_pk_bf16_f32 v{b+1}, v{b+2}, v{b+3}")
            a(f"ds_write_b64 v10, {pk(b)} offset:{p*544}")
        a("v_cvt_pk_bf16_f32 v56, v56, v57\nv_cvt_pk_bf16_f32 v57, v58, v59")
        a(f"ds_write_b64 v11, v[56:57] offset:512")
        AKV = 15
        ACC = [224, 240]
        D1 = [32, 48]; KF = [64, 68, 72]; OF = [76, 80]
        XR = 84
        a("s_waitcnt lgkmcnt(0)\ns_barrier")
        ld(f"buffer_load_dwordx4 {v4(XR)}, v9, {SRD_WS}, 0 offen sc1", 'x')
        ld(f"buffer_load_dwordx4 {v4(XR+4)}, v2, {SRD_WS}, 0 offen sc1", 'x')
        self.sub(3)
        def acc(c): return f"a[{ACC[c]}:{ACC[c]+15}]"
        def rdK(i): return [f"ds_read_b128 {v4(KF[i % 3])}, v{AKV} offset:{i*544}"]
        def m1(i): return f"v_mfma_f32_32x32x16_bf16 v[{D1[i&1]}:{D1[i&1]+15}], {v4(KF[i % 3])}, a[{192+4*(i%8)}:{192+4*(i%8)+3}], 0"
        def valu(i):
            d = D1[i & 1]; o = OF[i & 1]
            L = [f"v_add_f32 v{d+8}, {fx(1e-6)}, v{d+8}", f"v_rcp_f32 v{d+8}, v{d+8}"]
            L += [f"v_mul_f32 v{d+p}, v{d+p}, v{d+8}" for p in range(8)]
            L += [f"v_cvt_pk_bf16_f32 v{o+p}, v{d+2*p}, v{d+2*p+1}" for p in range(4)]
            return L
        def mo(i, c):
            b = WOF + 8*i + 4*c
            return f"v_mfma_f32_32x32x16_bf16 {acc(c)}, {v4(OF[i&1])}, {v4(b)}, {'0' if i == 0 else acc(c)}"
        self.emit(rdK(0) + rdK(1) + rdK(2))
        a(f"s_waitcnt vmcnt({vm('pq0')}) lgkmcnt(2)")
        a(m1(0))
        a(f"s_waitcnt vmcnt({vm('pq1')}) lgkmcnt(1)")
        a(m1(1))
        self.emit(valu(0))
        for i in range(16):
            V = valu(i+1) if i + 1 < 16 else []
            K_ = rdK(i+3) if i + 3 < 16 else []
            if i + 2 < 16: a(f"s_waitcnt vmcnt({vm(f'pq{i+2}')}) lgkmcnt(0)")
            a(mo(i, 0))
            self.emit(V[:2] + K_ + V[2:4])
            if i + 2 < 16: a(m1(i+2))
            self.emit(V[4:10])
            a(mo(i, 1))
            self.emit(V[10:])
            if i + PD < 16: pqload(i + PD)
        self.sub(4)
        for c in range(2):
            for aa in range(4):
                a(f"ds_write_b128 v16, a[{ACC[c]+4*aa}:{ACC[c]+4*aa+3}] offset:{c*32*272 + 32*aa}")
        a("s_waitcnt lgkmcnt(0)\ns_barrier")
        Y = 96
        for i in range(2):
            for part in range(2):
                for hh in range(2):
                    a(f"ds_read_b128 {v4(Y+16*i+8*part+4*hh)}, v17 offset:{i*32*272 + part*64*272 + 16*hh}")
        a("s_waitcnt vmcnt(0)")
        self.sub(5)
        lf = a.label('FIN'); le = a.label('OE'); lx = a.label('OX')
        a(f"v_add_u32 v8, {S_XOUT}, v8\nv_add_u32 v9, 0x20000, v8")
        for i in range(2):
            a(f"s_waitcnt lgkmcnt({4*(1-i)})")
            y = Y + 16*i; x = XR + 4*i; t = 132 + 8*i
            for p in range(4): a(f"v_pk_add_f32 {pk(y+2*p)}, {pk(y+2*p)}, {pk(y+8+2*p)}")
            for p in range(4): a(f"v_cvt_pk_bf16_f32 v{y+8+p}, v{y+2*p}, v{y+2*p+1}")
            for p in range(4):
                a(f"v_lshlrev_b32 v{y+2*p}, 16, v{y+8+p}\nv_and_b32 v{y+2*p+1}, 0xffff0000, v{y+8+p}")
                a(f"v_lshlrev_b32 v{t+2*p}, 16, v{x+p}\nv_and_b32 v{t+2*p+1}, 0xffff0000, v{x+p}")
            for p in range(4): a(f"v_pk_add_f32 {pk(y+2*p)}, {pk(y+2*p)}, {pk(t+2*p)}")
            for p in range(4): a(f"v_cvt_pk_bf16_f32 v{160+4*i+p}, v{y+2*p}, v{y+2*p+1}")
            a(f"ds_write_b128 v18, {v4(160+4*i)} offset:{i*32*144}")
        a(f"""
        s_cmp_eq_u32 {S_LAYER}, 0
        s_cbranch_scc0 {lf}
        buffer_store_dwordx4 v[160:163], v8, {SRD_WS}, 0 offen sc1
        buffer_store_dwordx4 v[164:167], v9, {SRD_WS}, 0 offen sc1
        {lf}:
        v_lshrrev_b32 v10, 2, v{V_L16}
        v_lshl_add_u32 v10, v{V_H}, 3, v10
        v_mul_u32_u24 v10, 144, v10
        v_and_b32 v11, 3, v{V_L16}
        v_lshl_add_u32 v10, v11, 3, v10
        s_lshl_b32 {S_T0}, {S_W}, 5
        s_add_u32 {S_T0}, {S_T0}, {L_OT}
        v_add_u32 v10, {S_T0}, v10
        s_waitcnt lgkmcnt(0)
        s_barrier
        ds_read_b64_tr_b16 v[104:105], v10
        ds_read_b64_tr_b16 v[106:107], v10 offset:{4*144}
        ds_read_b64_tr_b16 v[108:109], v10 offset:{32*144}
        ds_read_b64_tr_b16 v[110:111], v10 offset:{36*144}
        s_cmp_eq_u32 {S_LAYER}, 0
        s_cbranch_scc0 {le}
        s_lshl_b32 {S_T0}, {S_RT}, 7
        s_lshl_b32 {S_T1}, {S_W}, 5
        s_add_u32 {S_T0}, {S_T0}, {S_T1}
        s_add_u32 {S_T0}, {S_T0}, {ST3}
        v_bfe_u32 v11, v{V_L16}, 1, 2
        v_lshlrev_b32 v11, 12, v11
        v_lshrrev_b32 v12, 3, v{V_L16}
        v_lshl_add_u32 v11, v12, 4, v11
        v_and_b32 v12, 1, v{V_L16}
        v_lshl_add_u32 v11, v12, 3, v11
        v_lshl_add_u32 v11, v{V_H}, 2, v11
        v_add_u32 v11, {S_T0}, v11
        v_mov_b32 v112, 0
        v_mov_b32 v113, 0
        v_mov_b32 v114, 0
        v_mov_b32 v115, 0
        s_waitcnt lgkmcnt(0)
        """)
        for j in range(4):
            a(f"v_dot2_f32_bf16 v112, v{104+j}, {S_ONES}, v112")
            a(f"v_dot2_f32_bf16 v113, v{104+j}, v{104+j}, v113")
            a(f"v_dot2_f32_bf16 v114, v{108+j}, {S_ONES}, v114")
            a(f"v_dot2_f32_bf16 v115, v{108+j}, v{108+j}, v115")
        a("v_pk_add_f32 v[112:113], v[112:113], v[114:115]")
        self.emit(zipmerge(self.reduce_h(112, 116), self.reduce_h(113, 117)))
        a(f"""
        v_cmp_eq_u32 vcc, 0, v{V_H}
        v_cndmask_b32 v112, v113, v112, vcc
        s_mov_b64 exec, 0xffffffff
        buffer_atomic_add_f32 v112, v11, {SRD_WS}, 0 offen
        s_mov_b64 exec, -1
        s_branch {lx}
        {le}:
        s_lshl_b32 {S_T0}, {S_RT}, 16
        s_lshl_b32 {S_T1}, {S_W}, 14
        s_add_u32 {S_T0}, {S_T0}, {S_T1}
        s_lshl_b32 {S_T1}, {S_CG}, 7
        s_add_u32 {S_T0}, {S_T0}, {S_T1}
        v_lshlrev_b32 v11, 10, v{V_L16}
        v_lshl_add_u32 v11, v{V_H}, 4, v11
        v_add_u32 v11, {S_T0}, v11
        s_waitcnt lgkmcnt(0)
        buffer_store_dwordx4 v[104:107], v11, {SRD_OUT}, 0 offen
        buffer_store_dwordx4 v[108:111], v11, {SRD_OUT}, 0 offen offset:64
        {lx}:
        """)
        self.sub(6)
        self.subflush(2, 7)

    def build(self):
        a = self.a
        self.prologue()
        if self.ts: a(f"v_mov_b32 v{V_TS}, 0\nv_mov_b32 v{V_TS2}, 0")
        self.stamp()
        self.p0()
        stop = self.stop
        if stop == 'p0':
            self.wait(); a("s_branch L_END")
        a("L_LAYER:")
        for reg, (x0, x1) in ((S_XIN, (XT[0], XT[2])), (S_XOUT, (XT[1], XT[3])), (S_ST, (ST1, ST3)), (S_PQ, PQ), (S_KV, KVM), (S_Z, ZZ)):
            a(f"s_mul_i32 {reg}, {S_LAYER}, {(x1 - x0) & 0xffffffff:#x}")
            a(f"s_add_u32 {reg}, {reg}, {x0:#x}")
        self.conv_pre()
        self.wait(); self.stamp()
        self.conv(); self.stamp()
        self.arrive(); self.stamp()
        if stop == 'conv1':
            self.wait(); a("s_branch L_END")
        a(f"s_mov_b32 {S_XIN}, {S_XOUT}")
        self.wstage_kv()
        self.qkv_pre()
        self.wait(); self.stamp()
        self.qkv(); self.stamp()
        self.arrive(); self.stamp()
        if stop == 'qkv1':
            self.wait(); a("s_branch L_END")
            if os.environ.get('DBGW'):
                a(f"""
                s_lshl_b32 {S_T0}, {S_ID}, 11
                s_add_u32 {S_T0}, {S_T0}, 0x40000
                v_lshlrev_b32 v1, 3, v0
                v_add_u32 v1, {S_T0}, v1
                v_mov_b32 v2, v{V_WSK}
                v_mov_b32 v3, v{V_WSV}
                buffer_store_dwordx2 v[2:3], v1, {SRD_WS}, 0 offen
                """)
            self.wait(); a("s_branch L_END")
        a(f"s_mov_b32 {S_XOUT}, {XT[2]}")
        lk = a.label('WOD')
        a(f"s_cmp_eq_u32 {S_LAYER}, 0\ns_cbranch_scc0 {lk}")
        a(f"""
        s_lshl_b32 {S_DS}, {S_CG}, 16
        s_lshl_b32 {S_T0}, {S_W}, 14
        s_add_u32 {S_DS}, {S_DS}, {S_T0}
        s_add_u32 {S_DS}, {S_DS}, {WOFG}
        s_add_u32 {S_DM}, {S_T0}, {L_WO}
        v_lshlrev_b32 v120, 4, v{V_LANE}
        """)
        for i in range(16):
            a(f"""
            s_mov_b32 m0, {S_DM}
            s_add_u32 {S_DM}, {S_DM}, 1024
            buffer_load_dwordx4 v120, {SRD_WS}, {S_DS} offen sc1 lds
            s_add_u32 {S_DS}, {S_DS}, 1024
            """)
        a("s_waitcnt vmcnt(0)\ns_barrier")
        a(f"{lk}:")
        self.outp_pre()
        self.wait(); self.stamp()
        self.outp(); self.stamp()
        a(f"s_cmp_eq_u32 {S_LAYER}, 1\ns_cbranch_scc1 L_END")
        self.arrive(); self.stamp()
        if stop == 'out1':
            self.wait(); a("s_branch L_END")
        a(f"s_mov_b32 {S_LAYER}, 1\ns_branch L_LAYER\nL_END:")
        self.tsdump()
        a("L_EXIT:\ns_endpgm")
        body = a.finalize()
        hdr = open(os.path.join(os.path.dirname(os.path.abspath(__file__)), 'header.txt')).read()
        hdr = hdr.replace('@@LAUNCH@@', f'; @launch grid=(256,1,1) block=(256,1,1) lds={LDS_SIZE}')
        txt = hdr + f""".amdgcn_target "amdgcn-amd-amdhsa--gfx950"
.text
.globl {NAME}_kernel
.p2align 8
.type {NAME}_kernel,@function
{NAME}_kernel:
""" + body + f""".section .rodata,"a"
.p2align 6
.amdhsa_kernel {NAME}_kernel
  .amdhsa_next_free_vgpr 512
  .amdhsa_next_free_sgpr 102
  .amdhsa_accum_offset 256
  .amdhsa_group_segment_fixed_size 0
  .amdhsa_kernarg_size 104
  .amdhsa_user_sgpr_count 2
  .amdhsa_user_sgpr_kernarg_segment_ptr 1
  .amdhsa_system_sgpr_workgroup_id_x 1
.end_amdhsa_kernel
"""
        return txt

if __name__ == '__main__':
    import argparse
    ap = argparse.ArgumentParser()
    ap.add_argument('--stop', default=None)
    ap.add_argument('--ts', action='store_true')
    ap.add_argument('-o', default='k.s')
    args = ap.parse_args()
    g = Gen(stop=args.stop, ts=args.ts)
    t = g.build()
    open(args.o, 'w').write(t)
    print('instructions', g.a.count(), 'nops inserted', g.a.nnop, 'bytes', len(t))
```

```python
import sys, os, math
sys.path.insert(0, os.path.dirname(os.path.abspath(__file__)))
from asmgen import Asm

NAME = 'interleave_layers__ssm_conv_s4d__linear_attn_block__prompt'

CNT  = 0x0
ZR   = 0x4000
KVM  = [ZR, ZR + 32768]
ZZ   = [ZR + 65536, ZR + 67584]
ST3  = ZR + 69632
ST1  = 0x1C000
GCNT = 0x20000
TS   = 0x80000
XT   = [0x100000, 0x300000, 0x500000, 0x700000]
PQ   = [0x900000, 0xB00000]
WQF  = 0xD00000
WOFG = 0xE80000
WS_SIZE = 0xF00000

L_WO = 0
L_KC = 65536
L_XL = 82432
L_MISC = L_XL + 65536
LDS_SIZE = 163840
L_U  = L_XL
L_Y  = L_XL + 18560
L_TA = L_XL
L_TB = L_XL + 9216
L_TW = L_XL + 46080
L_CT = L_XL + 18432
L_KD = L_XL + 28672
L_KVF = L_XL
L_O32 = L_XL + 17408
L_OT  = L_XL + 52224
L_S2R = L_MISC
L_S2M = L_MISC + 256
L_STG = L_MISC + 512

STPERM = True
CODE_CHUNKS = int(os.environ.get('CODE_CHUNKS', '5'))
SLEEP = int(os.environ.get('SLEEP', '2'))
SLEEP0 = int(os.environ.get('SLEEP0', '14'))
SLEEPG = int(os.environ.get('SLEEPG', '6'))
LOG2E = 1.4426950408889634
def f2u(x):
    import struct
    return struct.unpack('<I', struct.pack('<f', x))[0]
def fx(x): return '0x%08x' % f2u(x)
def pk(r): return f"v[{r}:{r+1}]"
def v4(r): return f"v[{r}:{r+3}]"

S_ID='s2'; S_W='s3'; S_RT='s4'; S_CG='s5'; S_LAYER='s6'; S_TGT='s7'
SRD_WS='s[44:47]'; SRD_WQ='s[48:51]'; SRD_WO='s[52:55]'; SRD_OUT='s[56:59]'; SRD_X0='s[60:63]'
S_ONES='s64'
S_EXS='s[70:71]'
S_XIN='s72'; S_XOUT='s73'; S_ST='s74'; S_PQ='s75'; S_KV='s76'; S_Z='s77'
S_SPIN='s78'
S_T0='s8'; S_T1='s9'; S_T2='s10'; S_T3='s11'; S_T4='s12'; S_T5='s13'
S_DM='s14'; S_DS='s15'

V_LANE=255; V_WSK=254; V_WSV=252; V_WSQ=248
V_DSK1=246; V_DSK0=244
V_CNT=239; V_POLL=238; V_ONE=237
V_L16=243; V_H=242
V_TS=241; V_TS2=240
V_GCNT=235; V_POLL2=234; V_TGT=233
V_PT=236

WOF = 104
def weave(main, fill, per=2, lead=0):
    out = []; fi = 0
    for k, m in enumerate(main):
        out.append(m)
        if k >= lead:
            for _ in range(per):
                if fi < len(fill): out.append(fill[fi]); fi += 1
    out += fill[fi:]
    return out
def zipmerge(*lists):
    out = []
    n = max(len(l) for l in lists)
    for i in range(n):
        for l in lists:
            if i < len(l): out.append(l[i])
    return out
import re as _re
def unpk(ins):
    m = _re.match(r'v_pk_(mul|add|fma)_f32 v\[(\d+):\d+\], (.*)', ins)
    if not m: return [ins]
    op, d, rest = m.group(1), int(m.group(2)), m.group(3)
    srcs = [int(x) for x in _re.findall(r'v\[(\d+):\d+\]', rest)]
    n = len(srcs)
    hi = [1]*n
    mm = _re.search(r'op_sel_hi:\[([\d,]+)\]', rest)
    if mm: hi = [int(x) for x in mm.group(1).split(',')]
    assert 'op_sel:[' not in rest
    neg = [0]*n
    mm = _re.search(r'neg_lo:\[([\d,]+)\]', rest)
    if mm: neg = [int(x) for x in mm.group(1).split(',')]
    out = []
    for h in range(2):
        ops = []
        for i in range(n):
            r = srcs[i] + (h if hi[i] else 0)
            ops.append(('-' if neg[i] else '') + f'v{r}')
        out.append(f"v_{op}_f32 v{d+h}, " + ', '.join(ops))
    return out
def unpk_all(L):
    o = []
    for x in L: o += unpk(x)
    return o
def lines(s): return [t.strip() for t in s.split('\n') if t.strip()]

class Gen:
    def __init__(self, stop=None, ts=False):
        self.a = Asm(); self.stop = stop; self.ts = ts; self.tsn = 0
    def emit(self, lst):
        for x in lst: self.a(x)

    def stamp(self):
        if not self.ts: return
        n = self.tsn; self.tsn += 1
        self.a(f"""
        s_memrealtime s[80:81]
        s_lshl_b32 s82, {S_LAYER}, 5
        s_add_u32 m0, s82, {n}
        s_waitcnt lgkmcnt(0)
        v_writelane_b32 v{V_TS}, s80, m0
        """)
    def sub(self, i):
        if self.ts: self.a(f"s_memtime s[{86+2*i}:{87+2*i}]")
    def subflush(self, phase, n):
        if not self.ts: return
        a = self.a
        a(f"s_waitcnt lgkmcnt(0)\ns_lshl_b32 s82, {S_LAYER}, 5\ns_add_u32 m0, s82, {phase*8}")
        for i in range(n):
            a(f"v_writelane_b32 v{V_TS2}, s{86+2*i}, m0\ns_add_u32 m0, m0, 1\ns_nop 3")
    def tsdump(self):
        if not self.ts: return
        a = self.a; l = a.label('TD')
        if os.environ.get('DBGTS'):
            sel = [1,2,3,4,5,7,8,10,11,12, 32+4,32+5,32+7,32+8,32+10]
            a(f"""
            s_cmp_eq_u32 {S_ID}, 0
            s_cbranch_scc0 {l}
            s_cmp_eq_u32 {S_W}, 0
            s_cbranch_scc0 {l}
            v_readlane_b32 s80, v{V_TS}, 0
            """)
            for i, k in enumerate(sel):
                lane = k
                a(f"v_readlane_b32 s81, v{V_TS}, {lane}\ns_nop 3\ns_sub_u32 s81, s81, s80\nv_mov_b32 v1, s81\nv_mov_b32 v2, {4*(i+1)}\ns_mov_b64 exec, 1\nglobal_store_dword v2, v1, s[38:39]\ns_mov_b64 exec, -1")
            a(f"{l}:")
            return
        a(f"""
        s_cmp_eq_u32 {S_W}, 0
        s_cbranch_scc0 {l}
        s_lshl_b32 s82, {S_ID}, 9
        s_add_u32 s82, s82, {TS}
        v_lshlrev_b32 v1, 2, v{V_LANE}
        v_add_u32 v1, s82, v1
        buffer_store_dword v{V_TS}, v1, {SRD_WS}, 0 offen
        buffer_store_dword v{V_TS2}, v1, {SRD_WS}, 0 offen offset:256
        {l}:
        """)

    def arrive(self):
        a = self.a; l = a.label('ARR')
        a(f"""
        s_waitcnt vmcnt(0) lgkmcnt(0)
        s_barrier
        s_add_u32 {S_TGT}, {S_TGT}, 16
        s_cmp_eq_u32 {S_W}, 0
        s_cbranch_scc0 {l}
        s_mov_b64 exec, 1
        buffer_atomic_add v{V_ONE}, v{V_CNT}, {SRD_WS}, 0 offen sc1
        s_mov_b64 exec, -1
        {l}:
        """)
    def arrive_group(self):
        a = self.a; l = a.label('ARG')
        a(f"""
        s_waitcnt vmcnt(0) lgkmcnt(0)
        s_barrier
        s_cmp_eq_u32 {S_W}, 0
        s_cbranch_scc0 {l}
        s_mov_b64 exec, 1
        buffer_atomic_add v{V_ONE}, v{V_GCNT}, {SRD_WS}, 0 offen sc1
        s_mov_b64 exec, -1
        {l}:
        """)
    def wait_dual(self):
        a = self.a
        l = a.label('WT'); lp = a.label('POLL'); ld = a.label('PD')
        a(f"""
        s_cmp_eq_u32 {S_W}, 0
        s_cbranch_scc0 {l}
        s_add_u32 {S_T0}, {S_LAYER}, 1
        s_lshl_b32 {S_T0}, {S_T0}, 3
        v_mov_b32 v{V_TGT}, {S_TGT}
        v_mov_b32 v{V_PT}, {S_T0}
        v_cmp_eq_u32 vcc, 16, v{V_LANE}
        v_cndmask_b32 v{V_TGT}, v{V_TGT}, v{V_PT}, vcc
        s_mov_b64 exec, 0x1ffff
        s_mov_b32 {S_SPIN}, 0
        {('s_sleep ' + str(SLEEPG)) if SLEEPG else ''}
        {lp}:
        buffer_load_dword v{V_PT}, v{V_POLL2}, {SRD_WS}, 0 offen sc1
        s_add_u32 {S_SPIN}, {S_SPIN}, 1
        s_waitcnt vmcnt(0)
        v_cmp_gt_u32 vcc, v{V_TGT}, v{V_PT}
        s_cbranch_vccz {ld}
        {('s_sleep ' + str(SLEEP)) if SLEEP else ''}
        s_cmp_lt_u32 {S_SPIN}, 0x200000
        s_cbranch_scc1 {lp}
        {ld}:
        s_mov_b64 exec, -1
        {l}:
        s_barrier
        """)
    def wait(self):
        a = self.a
        l = a.label('WT'); lp = a.label('POLL'); ld = a.label('PD')
        a(f"""
        s_cmp_eq_u32 {S_W}, 0
        s_cbranch_scc0 {l}
        s_mov_b64 exec, 0xffff
        s_mov_b32 {S_SPIN}, 0
        {('s_sleep ' + str(SLEEP0)) if SLEEP0 else ''}
        {lp}:
        buffer_load_dword v{V_PT}, v{V_POLL}, {SRD_WS}, 0 offen sc1
        s_add_u32 {S_SPIN}, {S_SPIN}, 1
        s_waitcnt vmcnt(0)
        v_cmp_gt_u32 vcc, {S_TGT}, v{V_PT}
        s_cbranch_vccz {ld}
        {('s_sleep ' + str(SLEEP)) if SLEEP else ''}
        s_cmp_lt_u32 {S_SPIN}, 0x200000
        s_cbranch_scc1 {lp}
        {ld}:
        s_mov_b64 exec, -1
        {l}:
        s_barrier
        """)

    def reduce_h(self, r, t):
        return lines(f"""
        v_mov_b32 v{t}, v{r}
        v_permlane16_swap_b32 v{r}, v{t}
        v_add_f32 v{r}, v{r}, v{t}
        v_mov_b32 v{t}, v{r}
        v_permlane32_swap_b32 v{r}, v{t}
        v_add_f32 v{r}, v{r}, v{t}
        """)
    def reduce16(self, r):
        return lines(f"""
        v_add_f32_dpp v{r}, v{r}, v{r} quad_perm:[1,0,3,2] row_mask:0xf bank_mask:0xf
        v_add_f32_dpp v{r}, v{r}, v{r} quad_perm:[2,3,0,1] row_mask:0xf bank_mask:0xf
        v_add_f32_dpp v{r}, v{r}, v{r} row_half_mirror row_mask:0xf bank_mask:0xf
        v_add_f32_dpp v{r}, v{r}, v{r} row_mirror row_mask:0xf bank_mask:0xf
        """)
    def ln_final1(self, sm, sq, r_out, mr_out, t):
        return lines(f"""
        v_mul_f32 v{t}, {fx(1/512)}, v{sm}
        v_mul_f32 v{t+1}, {fx(1/512)}, v{sq}
        v_fma_f32 v{t+1}, -v{t}, v{t}, v{t+1}
        v_cvt_pk_bf16_f32 v{t+2}, v{t}, v{t+1}
        v_lshlrev_b32 v{t}, 16, v{t+2}
        v_and_b32 v{t+1}, 0xffff0000, v{t+2}
        v_add_f32 v{t+1}, {fx(1e-5)}, v{t+1}
        v_cvt_pk_bf16_f32 v{t+1}, v{t+1}, v{t+1}
        v_and_b32 v{t+1}, 0xffff0000, v{t+1}
        v_sqrt_f32 v{t+1}, v{t+1}
        v_cvt_pk_bf16_f32 v{t+1}, v{t+1}, v{t+1}
        v_and_b32 v{t+1}, 0xffff0000, v{t+1}
        v_rcp_f32 v{r_out}, v{t+1}
        v_mul_f32 v{mr_out}, v{t}, v{r_out}
        """)

    def prologue(self):
        a = self.a
        a(f"""
        s_cmp_ge_u32 {S_ID}, 256
        s_cbranch_scc1 L_EXIT
        s_load_dwordx16 s[16:31], s[0:1], 0
        s_load_dwordx8 s[32:39], s[0:1], 64
        s_load_dwordx2 s[40:41], s[0:1], 96
        v_and_b32 v{V_LANE}, 63, v0
        v_lshrrev_b32 v1, 6, v0
        v_and_b32 v{V_L16}, 15, v0
        v_bfe_u32 v{V_H}, v0, 4, 2
        v_readfirstlane_b32 {S_W}, v1
        s_and_b32 {S_T0}, {S_ID}, 7
        s_lshl_b32 {S_T0}, {S_T0}, 2
        s_lshr_b32 {S_T1}, {S_ID}, 6
        s_add_u32 {S_RT}, {S_T0}, {S_T1}
        s_lshr_b32 {S_CG}, {S_ID}, 3
        s_and_b32 {S_CG}, {S_CG}, 7
        s_mov_b32 {S_LAYER}, 0
        s_mov_b32 {S_TGT}, 0
        s_mov_b32 {S_ONES}, 0x3f803f80
        v_mov_b32 v{V_ONE}, 1
        s_and_b32 {S_T0}, {S_ID}, 15
        s_lshl_b32 {S_T0}, {S_T0}, 10
        v_mov_b32 v{V_CNT}, {S_T0}
        v_lshlrev_b32 v{V_POLL}, 10, v{V_LANE}
        s_waitcnt lgkmcnt(0)
        s_mov_b32 s60, s16
        s_and_b32 s61, s17, 0xffff
        s_mov_b32 s62, {2048*512*2}
        s_mov_b32 s63, 0x20000
        """)
    def prologue2(self):
        a = self.a
        a(f"""
        s_mov_b32 s44, s40
        s_and_b32 s45, s41, 0xffff
        s_mov_b32 s46, {WS_SIZE}
        s_mov_b32 s47, 0x20000
        s_mov_b32 s48, s32
        s_and_b32 s49, s33, 0xffff
        s_mov_b32 s50, {512*1536*2}
        s_mov_b32 s51, 0x20000
        s_mov_b32 s52, s34
        s_and_b32 s53, s35, 0xffff
        s_mov_b32 s54, {512*512*2}
        s_mov_b32 s55, 0x20000
        s_mov_b32 s56, s36
        s_and_b32 s57, s37, 0xffff
        s_mov_b32 s58, {2048*512*2}
        s_mov_b32 s59, 0x20000
        s_lshl_b32 {S_T0}, {S_RT}, 10
        s_add_u32 {S_T0}, {S_T0}, {GCNT}
        v_mov_b32 v{V_GCNT}, {S_T0}
        v_cmp_eq_u32 vcc, 16, v{V_LANE}
        v_cndmask_b32 v{V_POLL2}, v{V_POLL}, v{V_GCNT}, vcc
        """)

    def dma_weight(self, srd, rowpitch, colbyte, lds_base, swz, t, defer=False):
        a = self.a
        a(f"""
        v_lshrrev_b32 v{t}, 3, v{V_LANE}
        v_mul_u32_u24 v{t}, {rowpitch}, v{t}
        v_bfe_u32 v{t+1}, v{V_LANE}, 1, 2
        v_bfe_u32 v{t+2}, v{V_LANE}, 4, 1
        """)
        if swz == 'x':
            a(f"s_and_b32 {S_T0}, {S_W}, 1\ns_lshl_b32 {S_T0}, {S_T0}, 1\nv_or_b32 v{t+2}, {S_T0}, v{t+2}")
        else:
            a(f"v_lshlrev_b32 v{t+2}, 1, v{t+2}")
        a(f"""
        v_xor_b32 v{t+1}, v{t+1}, v{t+2}
        v_lshl_add_u32 v{t}, v{t+1}, 5, v{t}
        v_and_b32 v{t+1}, 1, v{V_LANE}
        v_lshl_add_u32 v{t}, v{t+1}, 4, v{t}
        s_lshl_b32 {S_T0}, {S_CG}, 7
        s_add_u32 {S_T0}, {S_T0}, {colbyte}
        v_add_u32 v{t}, {S_T0}, v{t}
        s_mul_i32 {S_DS}, {S_W}, {8*rowpitch}
        s_lshl_b32 {S_DM}, {S_W}, 10
        s_add_u32 {S_DM}, {S_DM}, {lds_base}
        """)
        groups = [lines(f"""
            s_mov_b32 m0, {S_DM}
            s_add_u32 {S_DM}, {S_DM}, 4096
            buffer_load_dwordx4 v{t}, {srd}, {S_DS} offen lds
            s_add_u32 {S_DS}, {S_DS}, {32*rowpitch}
            """) for i in range(16)]
        if defer: return groups
        for g in groups: self.emit(g)

    def wread_lists(self, lds_base, abase, part, t, o):
        rd = lines(f"""
        v_lshrrev_b32 v{t}, 2, v{V_L16}
        v_lshl_add_u32 v{t+1}, v{V_H}, 3, v{t}
        v_lshlrev_b32 v{t+1}, 7, v{t+1}
        v_and_b32 v{t+2}, 3, v{V_L16}
        v_lshl_add_u32 v{t+1}, v{t+2}, 3, v{t+1}
        v_add_u32 v{t+1}, {lds_base}, v{t+1}
        v_lshrrev_b32 v{t}, 1, v{t}
        v_and_b32 v{t+2}, 1, v{V_H}
        v_lshl_or_b32 v{t}, v{t+2}, 1, v{t}
        v_xor_b32 v{t}, {S_W}, v{t}
        v_lshl_add_u32 v{t+3}, v{t}, 5, v{t+1}
        """)
        for i in range(4): rd.append(f"v_mov_b32 v{o+i}, {S_ONES}")
        for ks in range(16):
            rd.append(f"ds_read_b64_tr_b16 a[{abase+4*ks}:{abase+4*ks+1}], v{t+3} offset:{ks*4096}")
            rd.append(f"ds_read_b64_tr_b16 a[{abase+4*ks+2}:{abase+4*ks+3}], v{t+3} offset:{ks*4096+512}")
        mf = []
        for ks in range(16):
            c = '0' if ks == 0 else v4(o+4)
            w = f"a[{abase+4*ks}:{abase+4*ks+3}]"
            if part == 0: mf.append(f"v_mfma_f32_16x16x32_bf16 {v4(o+4)}, {w}, {v4(o)}, {c}")
            else: mf.append(f"v_mfma_f32_16x16x32_bf16 {v4(o+4)}, {v4(o)}, {w}, {c}")
        if part == 0: mf += [f"v_mov_b32 v{V_WSQ+i}, v{o+4+i}" for i in range(4)]
        elif part == 1: mf.append(f"v_mov_b32 v{V_WSK}, v{o+4}")
        else: mf.append(f"v_mov_b32 v{V_WSV}, v{o+4}")
        return rd, mf

    def p0(self):
        a = self.a
        a(f"""
        v_lshrrev_b32 v1, 3, v0
        s_lshl_b32 {S_T0}, {S_RT}, 16
        s_lshl_b32 {S_T1}, {S_CG}, 7
        s_add_u32 {S_T0}, {S_T0}, {S_T1}
        v_lshlrev_b32 v2, 10, v1
        v_and_b32 v3, 7, v0
        v_lshl_add_u32 v2, v3, 4, v2
        v_add_u32 v2, {S_T0}, v2
        buffer_load_dwordx4 v[10:13], v2, {SRD_X0}, 0 offen
        v_add_u32 v4, 0x8000, v2
        buffer_load_dwordx4 v[14:17], v4, {SRD_X0}, 0 offen
        s_and_b32 {S_T0}, {S_ID}, 63
        s_lshl_b32 {S_T0}, {S_T0}, 2
        s_add_u32 {S_T0}, {S_T0}, {S_W}
        s_lshl_b32 {S_T0}, {S_T0}, 3
        s_lshr_b32 {S_T1}, {S_ID}, 6
        s_lshl_b32 {S_T1}, {S_T1}, 1
        s_add_u32 {S_T0}, {S_T0}, {S_T1}
        s_lshl_b32 {S_T0}, {S_T0}, 10
        v_lshlrev_b32 v5, 4, v{V_LANE}
        v_add_u32 v5, {S_T0}, v5
        buffer_load_dwordx4 v[18:21], v5, {SRD_X0}, 0 offen
        buffer_load_dwordx4 v[22:25], v5, {SRD_X0}, 0 offen offset:1024
        s_lshl_b32 {S_T0}, {S_ID}, 9
        v_lshlrev_b32 v6, 1, v0
        v_add_u32 v6, {S_T0}, v6
        global_load_ushort v26, v6, s[18:19]
        global_load_ushort v27, v6, s[20:21]
        global_load_ushort v28, v6, s[22:23]
        global_load_ushort v29, v6, s[24:25]
        v_lshrrev_b32 v7, 7, v0
        s_lshl_b32 {S_T0}, {S_ID}, 1
        v_add_lshl_u32 v7, v7, {S_T0}, 1
        global_load_ushort v30, v7, s[26:27]
        s_lshl_b32 {S_T0}, {S_ID}, 2
        v_mov_b32 v7, {S_T0}
        global_load_dword v{V_DSK0}, v7, s[28:29]
        """)
        self.prologue2()
        lp = a.label('PFC')
        a(f"""
        s_getpc_b64 s[66:67]
        s_and_b32 s66, s66, 0xffffff00
        s_lshr_b32 {S_T0}, {S_ID}, 3
        s_cmp_lt_u32 {S_T0}, {CODE_CHUNKS}
        s_cbranch_scc0 {lp}
        s_cmp_eq_u32 {S_W}, 3
        s_cbranch_scc0 {lp}
        s_lshl_b32 {S_T0}, {S_T0}, 13
        v_lshlrev_b32 v8, 7, v{V_LANE}
        v_add_u32 v8, {S_T0}, v8
        global_load_dword v198, v8, s[66:67]
        {lp}:
        v_and_b32 v8, 15, v{V_LANE}
        v_lshlrev_b32 v8, 20, v8
        buffer_load_dword v197, v8, {SRD_WS}, 0 offen
        """)
        lw = a.label('WT'); lw2 = a.label('WT')
        a(f"""
        s_and_b32 {S_T2}, {S_ID}, 7
        s_cmp_lt_u32 {S_ID}, 192
        s_cbranch_scc0 {lw}
        s_lshr_b32 {S_T3}, {S_ID}, 3
        s_mul_i32 {S_T0}, {S_T2}, {64*3072}
        s_lshl_b32 {S_T1}, {S_T3}, 7
        s_add_u32 {S_T0}, {S_T0}, {S_T1}
        v_mul_u32_u24 v8, 3072, v1
        v_lshl_add_u32 v8, v3, 4, v8
        v_add_u32 v8, {S_T0}, v8
        buffer_load_dwordx4 v[200:203], v8, {SRD_WQ}, 0 offen
        v_add_u32 v8, {32*3072}, v8
        buffer_load_dwordx4 v[204:207], v8, {SRD_WQ}, 0 offen
        s_branch {lw2}
        {lw}:
        s_sub_u32 {S_T3}, {S_ID}, 192
        s_lshr_b32 {S_T3}, {S_T3}, 3
        s_lshl_b32 {S_T0}, {S_T2}, 16
        s_lshl_b32 {S_T1}, {S_T3}, 7
        s_add_u32 {S_T0}, {S_T0}, {S_T1}
        v_lshlrev_b32 v8, 10, v1
        v_lshl_add_u32 v8, v3, 4, v8
        v_add_u32 v8, {S_T0}, v8
        buffer_load_dwordx4 v[200:203], v8, {SRD_WO}, 0 offen
        v_add_u32 v8, 0x8000, v8
        buffer_load_dwordx4 v[204:207], v8, {SRD_WO}, 0 offen
        {lw2}:
        """)
        l = a.label('CI')
        a(f"""
        s_cmp_lt_u32 {S_ID}, 16
        s_cbranch_scc0 {l}
        s_cmp_eq_u32 {S_W}, 0
        s_cbranch_scc0 {l}
        s_mov_b64 exec, 1
        v_mov_b32 v8, 0
        buffer_store_dword v8, v{V_CNT}, {SRD_WS}, 0 offen sc1
        s_waitcnt vmcnt(0)
        global_atomic_add v8, v{V_ONE}, s[38:39] sc1
        s_mov_b64 exec, -1
        {l}:
        """)
        IDX = 180
        a(f"v_lshlrev_b32 v31, 3, v0\nv_sub_u32 v31, 2047, v31\ns_mov_b32 {S_T5}, {L_KD}")
        chains = []
        for i in range(0, 10, 2):
            t = 32 + 4*(i//2)
            c = lines(f"""
            v_subrev_u32 v{t}, {i}, v31
            v_subrev_u32 v{t+1}, {i+1}, v31
            v_max_i32 v{t}, 0, v{t}
            v_max_i32 v{t+1}, 0, v{t+1}
            v_cvt_f32_i32 v{t}, v{t}
            v_cvt_f32_i32 v{t+1}, v{t+1}
            v_cvt_pk_bf16_f32 v{t+2}, v{t}, v{t+1}
            v_lshlrev_b32 v{t}, 16, v{t+2}
            v_and_b32 v{t+1}, 0xffff0000, v{t+2}
            v_cvt_u32_f32 v{t}, v{t}
            v_cvt_u32_f32 v{t+1}, v{t+1}
            v_lshrrev_b32 v{t+2}, 2, v{t}
            v_lshrrev_b32 v{t+3}, 2, v{t+1}
            v_add_u32 v{t+2}, 384, v{t+2}
            v_add_u32 v{t+3}, 384, v{t+3}
            v_min_u32 v{t}, v{t}, v{t+2}
            v_min_u32 v{t+1}, v{t+1}, v{t+3}
            v_lshrrev_b32 v{t+2}, 5, v{t}
            v_lshrrev_b32 v{t+3}, 5, v{t+1}
            v_add_u32 v{t}, v{t}, v{t+2}
            v_add_u32 v{t+1}, v{t+1}, v{t+3}
            v_lshl_add_u32 v{IDX+i}, v{t}, 2, {S_T5}
            """)
            if i + 1 < 9: c.append(f"v_lshl_add_u32 v{IDX+i+1}, v{t+1}, 2, {S_T5}")
            chains.append(c)
        self.emit(zipmerge(*chains))
        a(f"""
        v_mul_u32_u24 v8, 144, v1
        v_lshl_add_u32 v8, v3, 4, v8
        v_add_u32 v9, {L_TW}, v8
        v_add_u32 v8, {L_TA}, v8
        s_waitcnt vmcnt(11)
        ds_write_b128 v8, v[10:13]
        ds_write_b128 v8, v[14:17] offset:{32*144}
        s_waitcnt vmcnt(9)
        """)
        for r in range(32, 36): a(f"v_mov_b32 v{r}, 0")
        for j in range(4):
            for row in range(2):
                b = 18 + 4*row; sm = 32 + 2*row
                a(f"v_dot2_f32_bf16 v{sm}, v{b+j}, {S_ONES}, v{sm}\nv_dot2_f32_bf16 v{sm+1}, v{b+j}, v{b+j}, v{sm+1}")
        self.emit(zipmerge(*[self.reduce16(r) for r in range(32, 36)]))
        self.emit(zipmerge(*[self.reduce_h(r, 36 + (r-32)) for r in range(32, 36)]))
        a(f"""
        s_lshl_b32 {S_T0}, {S_W}, 4
        s_add_u32 {S_T0}, {S_T0}, {L_STG}
        v_mov_b32 v36, {S_T0}
        ds_write_b128 v36, v[32:35]
        s_waitcnt vmcnt(0)
        ds_write_b128 v9, v[200:203]
        ds_write_b128 v9, v[204:207] offset:{32*144}
        v_lshrrev_b32 v9, 2, v{V_L16}
        v_lshl_add_u32 v9, v{V_H}, 3, v9
        v_mul_u32_u24 v9, 144, v9
        v_and_b32 v2, 3, v{V_L16}
        v_lshl_add_u32 v9, v2, 3, v9
        s_lshl_b32 {S_T0}, {S_W}, 5
        s_add_u32 {S_T0}, {S_T0}, {L_TA}
        v_add_u32 v9, {S_T0}, v9
        s_lshl_b32 {S_T0}, {S_W}, 4
        v_add_u32 v2, {S_T0}, v{V_L16}
        v_mul_u32_u24 v2, 144, v2
        v_lshl_add_u32 v2, v{V_H}, 4, v2
        v_add_u32 v2, {L_TB}, v2
        s_waitcnt lgkmcnt(0)
        s_barrier
        ds_read_b64_tr_b16 v[10:11], v9
        ds_read_b64_tr_b16 v[12:13], v9 offset:{4*144}
        ds_read_b64_tr_b16 v[14:15], v9 offset:{32*144}
        ds_read_b64_tr_b16 v[16:17], v9 offset:{36*144}
        """)
        lz = a.label('WF'); lz2 = a.label('WF')
        a(f"""
        s_cmp_lt_u32 {S_ID}, 192
        s_cbranch_scc0 {lz}
        v_add_u32 v8, {L_TW - L_TA}, v9
        ds_read_b64_tr_b16 v[200:201], v8
        ds_read_b64_tr_b16 v[202:203], v8 offset:{4*144}
        ds_read_b64_tr_b16 v[204:205], v8 offset:{32*144}
        ds_read_b64_tr_b16 v[206:207], v8 offset:{36*144}
        s_lshr_b32 {S_T0}, {S_T3}, 3
        s_lshl_b32 {S_T0}, {S_T0}, 19
        s_and_b32 {S_T1}, {S_T3}, 7
        s_lshl_b32 {S_T1}, {S_T1}, 2
        s_add_u32 {S_T1}, {S_T1}, {S_W}
        s_lshl_b32 {S_T1}, {S_T1}, 14
        s_add_u32 {S_T0}, {S_T0}, {S_T1}
        s_lshl_b32 {S_T1}, {S_T2}, 11
        s_add_u32 {S_T0}, {S_T0}, {S_T1}
        s_add_u32 {S_T0}, {S_T0}, {WQF}
        s_branch {lz2}
        {lz}:
        v_lshrrev_b32 v8, 2, v{V_L16}
        v_lshrrev_b32 v7, 1, v{V_H}
        v_lshl_add_u32 v8, v7, 2, v8
        s_lshl_b32 {S_T0}, {S_W}, 4
        v_add_u32 v8, {S_T0}, v8
        v_mul_u32_u24 v8, 144, v8
        v_and_b32 v7, 1, v{V_H}
        v_lshl_add_u32 v8, v7, 5, v8
        v_and_b32 v7, 3, v{V_L16}
        v_lshl_add_u32 v8, v7, 3, v8
        v_add_u32 v8, {L_TW}, v8
        ds_read_b64_tr_b16 v[200:201], v8
        ds_read_b64_tr_b16 v[202:203], v8 offset:{8*144}
        ds_read_b64_tr_b16 v[204:205], v8 offset:64
        ds_read_b64_tr_b16 v[206:207], v8 offset:{8*144+64}
        s_lshl_b32 {S_T0}, {S_T3}, 16
        s_lshl_b32 {S_T1}, {S_T2}, 2
        s_add_u32 {S_T1}, {S_T1}, {S_W}
        s_lshl_b32 {S_T1}, {S_T1}, 11
        s_add_u32 {S_T0}, {S_T0}, {S_T1}
        s_add_u32 {S_T0}, {S_T0}, {WOFG}
        {lz2}:
        v_lshlrev_b32 v7, 4, v{V_LANE}
        v_add_u32 v7, {S_T0}, v7
        v_mul_u32_u24 v9, 144, v1
        v_lshl_add_u32 v9, v3, 4, v9
        v_add_u32 v9, {L_TB}, v9
        s_lshl_b32 {S_T0}, {S_CG}, 18
        s_lshl_b32 {S_T1}, {S_RT}, 7
        s_add_u32 {S_T0}, {S_T0}, {S_T1}
        s_add_u32 {S_T0}, {S_T0}, {XT[0]}
        v_lshlrev_b32 v4, 12, v1
        v_lshl_add_u32 v4, v3, 4, v4
        v_add_u32 v4, {S_T0}, v4
        v_add_u32 v5, 0x20000, v4
        s_waitcnt lgkmcnt(0)
        ds_write_b128 v2, v[10:13]
        ds_write_b128 v2, v[14:17] offset:64
        buffer_store_dwordx4 v[200:203], v7, {SRD_WS}, 0 offen sc1
        buffer_store_dwordx4 v[204:207], v7, {SRD_WS}, 0 offen offset:1024 sc1
        v_mov_b32 v6, 0
        s_waitcnt lgkmcnt(0)
        s_barrier
        ds_read_b128 v[10:13], v9
        ds_read_b128 v[14:17], v9 offset:{32*144}
        s_waitcnt lgkmcnt(0)
        buffer_store_dwordx4 v[10:13], v4, {SRD_WS}, 0 offen sc1
        buffer_store_dwordx4 v[14:17], v5, {SRD_WS}, 0 offen sc1
        global_load_dword v{V_PT}, v6, s[38:39] sc1
        """)
        l1 = a.label('Z1'); l2 = a.label('Z2')
        a(f"""
        s_cmp_eq_u32 {S_W}, 1
        s_cbranch_scc0 {l1}
        s_mov_b64 exec, 0xffffff
        v_mov_b32 v10, 0
        v_mov_b32 v11, 0
        v_mov_b32 v12, 0
        v_mov_b32 v13, 0
        s_mul_i32 {S_T0}, {S_ID}, 384
        s_add_u32 {S_T0}, {S_T0}, {ZR}
        v_lshlrev_b32 v4, 4, v{V_LANE}
        v_add_u32 v4, {S_T0}, v4
        buffer_store_dwordx4 v[10:13], v4, {SRD_WS}, 0 offen sc1
        s_mov_b64 exec, -1
        {l1}:
        s_cmp_eq_u32 {S_W}, 2
        s_cbranch_scc0 {l2}
        s_mov_b64 exec, 0xf
        v_lshlrev_b32 v4, 4, v{V_LANE}
        v_add_u32 v5, {L_STG}, v4
        ds_read_b128 v[10:13], v5
        s_lshl_b32 {S_T0}, {S_ID}, 6
        s_add_u32 {S_T0}, {S_T0}, {ST1}
        v_add_u32 v4, {S_T0}, v4
        s_waitcnt lgkmcnt(0)
        buffer_store_dwordx4 v[10:13], v4, {SRD_WS}, 0 offen sc1
        s_mov_b64 exec, -1
        {l2}:
        """)
        self.stamp()
        self.kgen_consts()
        a("s_waitcnt lgkmcnt(0)\ns_barrier")
        self.sub(0)
        self.sub(1)
        self.kgen_main(IDX)
        self.sub(6)
        self.subflush(3, 7)
        self.stamp()

    def arrive_first(self):
        a = self.a
        la = a.label('ARR1'); lp = a.label('INITP'); ld = a.label('INITD')
        a(f"""
        s_waitcnt vmcnt(0)
        s_barrier
        s_add_u32 {S_TGT}, {S_TGT}, 16
        s_cmp_eq_u32 {S_W}, 0
        s_cbranch_scc0 {la}
        s_mov_b64 exec, 1
        s_mov_b32 {S_SPIN}, 0
        v_mov_b32 v6, 0
        {lp}:
        v_cmp_le_u32 vcc, 16, v{V_PT}
        s_cbranch_vccnz {ld}
        global_load_dword v{V_PT}, v6, s[38:39] sc1
        s_add_u32 {S_SPIN}, {S_SPIN}, 1
        s_waitcnt vmcnt(0)
        s_cmp_lt_u32 {S_SPIN}, 0x200000
        s_cbranch_scc1 {lp}
        {ld}:
        buffer_atomic_add v{V_ONE}, v{V_CNT}, {SRD_WS}, 0 offen sc1
        s_mov_b64 exec, -1
        {la}:
        """)

    def cexp(self, p, dr, di, t):
        return lines(f"""
        v_mul_f32 v{t}, {fx(p)}, v40
        v_mul_f32 v{t+1}, {fx(p)}, v41
        v_exp_f32 v{t}, v{t}
        v_fract_f32 v{t+1}, v{t+1}
        v_cos_f32 v{t+2}, v{t+1}
        v_sin_f32 v{t+1}, v{t+1}
        v_mul_f32 v{dr}, v{t}, v{t+2}
        v_mul_f32 v{di}, v{t}, v{t+1}
        """)

    def kgen_consts(self):
        a = self.a
        a(f"""
        v_and_b32 v{V_DSK1}, 0xffff0000, v{V_DSK0}
        v_lshlrev_b32 v{V_DSK0}, 16, v{V_DSK0}
        v_lshlrev_b32 v26, 16, v26
        v_lshlrev_b32 v30, 16, v30
        v_lshlrev_b32 v27, 16, v27
        v_lshlrev_b32 v28, 16, v28
        v_mul_f32 v30, {fx(LOG2E)}, v30
        v_mul_f32 v26, {fx(LOG2E)}, v26
        v_lshlrev_b32 v29, 16, v29
        v_exp_f32 v30, v30
        v_exp_f32 v26, v26
        v_cvt_pk_bf16_f32 v31, v30, v26
        v_lshlrev_b32 v30, 16, v31
        v_and_b32 v26, 0xffff0000, v31
        v_mul_f32 v40, v26, v30
        v_mul_f32 v41, v27, v30
        v_mul_f32 v42, v28, v30
        v_mul_f32 v43, v29, v30
        v_mul_f32 v40, {fx(-LOG2E)}, v40
        v_mul_f32 v41, {fx(1/(2*math.pi))}, v41
        v_add_f32 v42, v42, v42
        v_add_f32 v43, v43, v43
        v_rndne_f32 v31, v41
        v_sub_f32 v41, v41, v31
        """)
        ch = []
        for i, p in enumerate((256.0, 512.0, 1536.0)):
            t = 52 + 6*i; d = 44 + 2*i
            c = self.cexp(p, t+3, t+4, t)
            c += lines(f"""
            v_mul_f32 v{d}, v42, v{t+3}
            v_mul_f32 v{d+1}, v42, v{t+4}
            v_fma_f32 v{d}, -v43, v{t+4}, v{d}
            v_fma_f32 v{d+1}, v43, v{t+3}, v{d+1}
            """)
            ch.append(c)
        self.emit(zipmerge(*ch))
        a(f"""
        v_lshrrev_b32 v1, 7, v0
        v_mul_u32_u24 v1, 5120, v1
        v_and_b32 v2, 127, v0
        v_lshl_add_u32 v1, v2, 2, v1
        v_add_u32 v1, {L_CT}, v1
        """)
        for q in range(10): a(f"ds_write_b32 v1, v{40+q} offset:{q*512}")

    def kgen_main(self, IDX):
        a = self.a
        a(f"""
        s_lshr_b32 {S_T0}, {S_W}, 1
        s_mul_i32 {S_T0}, {S_T0}, 5120
        s_and_b32 {S_T1}, {S_W}, 1
        s_lshl_b32 {S_T1}, {S_T1}, 8
        s_add_u32 {S_T0}, {S_T0}, {S_T1}
        s_add_u32 {S_T0}, {S_T0}, {L_CT}
        v_lshlrev_b32 v1, 4, v{V_H}
        v_add_u32 v1, {S_T0}, v1
        v_cvt_f32_u32 v2, v{V_L16}
        v_mov_b32 v3, v2
        """)
        ACC = 160
        def kstep(B, off, first):
            Q = lambda q: B + 4*q
            FR, FI, T0, T1 = B+40, B+44, B+48, B+52
            A0, A1, F0F, F2F = B+56, B+60, B+64, B+68
            rd = [f"ds_read_b128 {v4(Q(q))}, v1 offset:{q*512 + off}" for q in range(10)]
            L = []
            for h in (0, 2):
                L.append(f"v_pk_mul_f32 {pk(T0+h)}, {pk(Q(0)+h)}, v[2:3]")
                L.append(f"v_pk_mul_f32 {pk(T1+h)}, {pk(Q(1)+h)}, v[2:3]")
            for i in range(4):
                L.append(f"v_exp_f32 v{T0+i}, v{T0+i}")
            for i in range(4):
                L.append(f"v_cos_f32 v{FR+i}, v{T1+i}")
                L.append(f"v_sin_f32 v{FI+i}, v{T1+i}")
            for h in (0, 2):
                L.append(f"v_pk_mul_f32 {pk(FR+h)}, {pk(FR+h)}, {pk(T0+h)}")
                L.append(f"v_pk_mul_f32 {pk(FI+h)}, {pk(FI+h)}, {pk(T0+h)}")
            def packF(dst):
                L.extend([f"v_cvt_pk_bf16_f32 v{dst}, v{FR}, v{FR+1}", f"v_cvt_pk_bf16_f32 v{dst+1}, v{FR+2}, v{FR+3}",
                          f"v_cvt_pk_bf16_f32 v{dst+2}, v{FI}, v{FI+1}", f"v_cvt_pk_bf16_f32 v{dst+3}, v{FI+2}, v{FI+3}"])
            def sq():
                for h in (0, 2):
                    L.append(f"v_pk_mul_f32 {pk(T0+h)}, {pk(FI+h)}, {pk(FI+h)}")
                    L.append(f"v_pk_mul_f32 {pk(T1+h)}, {pk(FR+h)}, {pk(FI+h)}")
                for h in (0, 2):
                    L.append(f"v_pk_fma_f32 {pk(FR+h)}, {pk(FR+h)}, {pk(FR+h)}, {pk(T0+h)} neg_lo:[0,0,1] neg_hi:[0,0,1]")
                    L.append(f"v_pk_add_f32 {pk(FI+h)}, {pk(T1+h)}, {pk(T1+h)}")
            def gmul(q, dst):
                cr, ci = Q(q), Q(q+1)
                for h in (0, 2):
                    L.append(f"v_pk_mul_f32 {pk(T0+h)}, {pk(ci+h)}, {pk(FI+h)}")
                    L.append(f"v_pk_mul_f32 {pk(T1+h)}, {pk(ci+h)}, {pk(FR+h)}")
                for h in (0, 2):
                    L.append(f"v_pk_fma_f32 {pk(T0+h)}, {pk(cr+h)}, {pk(FR+h)}, {pk(T0+h)} neg_lo:[0,0,1] neg_hi:[0,0,1]")
                    L.append(f"v_pk_fma_f32 {pk(T1+h)}, {pk(cr+h)}, {pk(FI+h)}, {pk(T1+h)} neg_lo:[1,0,1] neg_hi:[1,0,1]")
                L.extend([f"v_cvt_pk_bf16_f32 v{dst}, v{T0}, v{T0+1}", f"v_cvt_pk_bf16_f32 v{dst+1}, v{T0+2}, v{T0+3}",
                          f"v_cvt_pk_bf16_f32 v{dst+2}, v{T1}, v{T1+1}", f"v_cvt_pk_bf16_f32 v{dst+3}, v{T1+2}, v{T1+3}"])
            def mm(T, A, F):
                c = '0' if first else v4(ACC+4*T)
                L.append(f"v_mfma_f32_16x16x32_bf16 {v4(ACC+4*T)}, {v4(A)}, {v4(F)}, {c}")
            packF(F0F); sq(); sq(); packF(F2F); sq(); sq()
            gmul(2, A0); mm(0, A0, F0F); gmul(4, A1); mm(1, A1, F0F)
            sq(); sq()
            gmul(6, A0); mm(2, A0, F2F); gmul(8, A1); mm(3, A1, F2F)
            return rd, L
        BA, BB = 8, 84
        def sprinkle(L, groups):
            step = max(1, len(L) // (len(groups) + 1)); out = []
            for i, x in enumerate(L):
                out.append(x)
                if groups and (i + 1) % step == 0: out += groups.pop(0)
            for g in groups: out += g
            return out
        for i in range(16): a(f"v_mov_b32 v{ACC+i}, 0")
        lk = a.label('KG'); lk2 = a.label('KG')
        a(f"s_mov_b32 {S_T4}, 0\n{lk}:")
        rdA, LA = kstep(BA, 0, False)
        rdB, LB = kstep(BB, 64, False)
        self.emit(rdA[:2] + rdB[:2] + rdA[2:] + rdB[2:])
        a("s_waitcnt lgkmcnt(15)")
        n_pre = 4+4+8+4 + 4+16+4+16
        self.emit(zipmerge(LA[:n_pre], LB[:n_pre]))
        a("s_waitcnt lgkmcnt(0)")
        self.emit(zipmerge(LA[n_pre:], LB[n_pre:]))
        a(f"v_add_u32 v1, 128, v1\ns_cmp_eq_u32 {S_T4}, 0\ns_cbranch_scc0 {lk2}")
        self.arrive_first()
        self.stamp()
        a(f"s_mov_b32 {S_T4}, 1\ns_branch {lk}\n{lk2}:\ns_nop 7")
        self.sub(2)
        a(f"""
        s_lshr_b32 {S_T0}, {S_W}, 1
        s_mul_i32 {S_T0}, {S_T0}, 4224
        s_and_b32 {S_T1}, {S_W}, 1
        s_mul_i32 {S_T1}, {S_T1}, 8448
        s_add_u32 {S_T0}, {S_T0}, {S_T1}
        s_add_u32 {S_T0}, {S_T0}, {L_KD}
        v_mul_u32_u24 v1, 264, v{V_H}
        v_lshl_add_u32 v1, v{V_L16}, 2, v1
        v_add_u32 v1, {S_T0}, v1
        """)
        for T in range(4):
            for r in range(4):
                a(f"ds_write_b32 v1, v{ACC+4*T+r} offset:{1056*T+64*r+4*(r>>1)}")
        a("s_waitcnt vmcnt(0) lgkmcnt(0)\ns_barrier")
        self.sub(3)
        VAL = 8
        for part in range(2):
            for ch in range(2):
                for i in range(9):
                    a(f"ds_read_b32 v{VAL+18*part+9*ch+i}, v{IDX+i} offset:{8448*part + 4224*ch}")
        a(f"""
        v_cmp_ne_u32 vcc, 255, v0
        v_lshlrev_b32 v1, 4, v0
        v_add_u32 v1, {L_KC + 8}, v1
        s_waitcnt lgkmcnt(0)
        """)
        for i in range(18): a(f"v_add_f32 v{VAL+i}, v{VAL+i}, v{VAL+18+i}")
        a(f"v_cndmask_b32 v{VAL+8}, 0, v{VAL+8}, vcc\nv_cndmask_b32 v{VAL+17}, 0, v{VAL+17}, vcc")
        self.sub(4)
        for ch in range(2):
            for m0 in range(2):
                o = 80 + 4*(2*ch+m0)
                s0 = VAL + 9*ch + (1 - m0)
                for p in range(4): a(f"v_cvt_pk_bf16_f32 v{o+p}, v{s0+2*p}, v{s0+2*p+1}")
                a(f"ds_write_b64 v1, {pk(o)} offset:{ch*8448+m0*4224}")
                a(f"ds_write_b64 v1, {pk(o+2)} offset:{ch*8448+m0*4224+8}")
        a(f"""
        v_cmp_gt_u32 vcc, 14, v{V_L16}
        v_mul_u32_u24 v1, 4224, v{V_H}
        v_lshl_add_u32 v1, v{V_L16}, 2, v1
        v_add_u32 v1, {L_KC + 4104}, v1
        v_mov_b32 v2, 0
        s_cmp_eq_u32 {S_W}, 0
        s_cselect_b64 {S_EXS}, vcc, 0
        s_mov_b64 exec, {S_EXS}
        ds_write_b32 v1, v2
        s_mov_b64 exec, -1
        s_waitcnt lgkmcnt(0)
        """)
        self.sub(5)
        a("s_barrier")

    def wfrag_loads(self):
        setup = lines(f"""
        s_lshl_b32 {S_T0}, {S_CG}, 2
        s_add_u32 {S_T0}, {S_T0}, {S_W}
        s_lshl_b32 {S_T0}, {S_T0}, 14
        s_add_u32 {S_DS}, {S_T0}, {WQF}
        v_lshlrev_b32 v199, 4, v{V_LANE}
        """)
        groups = []
        for p in range(3):
            for ks in range(16):
                g = [f"buffer_load_dwordx4 a[{64*p+4*ks}:{64*p+4*ks+3}], v199, {SRD_WS}, {S_DS} offen sc1"]
                g.append(f"s_add_u32 {S_DS}, {S_DS}, {1024 if ks < 15 else (1 << 19) - 15*1024}")
                groups.append(g)
        return setup, groups

    def wsum(self):
        a = self.a
        o = 16
        for i in range(4): a(f"v_mov_b32 v{o+i}, {S_ONES}")
        for ks in range(16):
            for p in range(3):
                d = v4(o+4+4*p); c = '0' if ks == 0 else d
                w = f"a[{64*p+4*ks}:{64*p+4*ks+3}]"
                if p == 0: a(f"v_mfma_f32_16x16x32_bf16 {d}, {w}, {v4(o)}, {c}")
                else: a(f"v_mfma_f32_16x16x32_bf16 {d}, {v4(o)}, {w}, {c}")
        for i in range(4): a(f"v_mov_b32 v{V_WSQ+i}, v{o+4+i}")
        a(f"v_mov_b32 v{V_WSK}, v{o+8}\nv_mov_b32 v{V_WSV}, v{o+12}")

    CV = dict(XA=10, ST=20, AX=3, AS=4, AU0=5, AU1=6, AK=8, AU=9, ACC=80, X32=200, U32=216)
    def conv_pre(self):
        a = self.a
        a(f"""
        s_lshl_b32 {S_T0}, {S_ID}, 13
        s_add_u32 {S_T0}, {S_T0}, {S_XIN}
        v_lshlrev_b32 v3, 4, v0
        v_add_u32 v3, {S_T0}, v3
        v_lshlrev_b32 v4, 4, v0
        v_add_u32 v4, {S_ST}, v4
        v_lshlrev_b32 v5, 4, v0
        v_add_u32 v5, {L_U + 512}, v5
        v_add_u32 v6, 9280, v5
        v_bfe_u32 v1, v0, 5, 2
        v_mul_u32_u24 v1, 4640, v1
        v_and_b32 v2, 31, v0
        v_lshl_add_u32 v1, v2, 4, v1
        v_add_u32 v1, {L_U}, v1
        v_mov_b32 v36, 0
        v_mov_b32 v37, 0
        v_mov_b32 v38, 0
        v_mov_b32 v39, 0
        v_and_b32 v2, 1, v0
        v_mul_u32_u24 v2, 9280, v2
        v_add_u32 v2, {L_U + 512}, v2
        ds_write_b32 v2, v36
        v_cmp_gt_u32 vcc, 128, v0
        s_and_saveexec_b64 {S_EXS}, vcc
        ds_write_b128 v1, v[36:39]
        s_mov_b64 exec, -1
        s_lshr_b32 {S_T0}, {S_W}, 1
        s_and_b32 {S_T1}, {S_W}, 1
        s_mul_i32 {S_T2}, {S_T0}, 8448
        s_lshl_b32 {S_T3}, {S_T1}, 8
        s_sub_u32 {S_T2}, {S_T2}, {S_T3}
        s_add_u32 {S_T2}, {S_T2}, {L_KC + 4096 - 192 - 3584}
        v_and_b32 v1, 1, v{V_L16}
        v_lshrrev_b32 v7, 1, v{V_L16}
        v_mul_u32_u24 v8, 4224, v1
        v_lshl_add_u32 v8, v{V_H}, 4, v8
        v_lshlrev_b32 v9, 3, v7
        v_sub_u32 v8, v8, v9
        v_add_u32 v8, {S_T2}, v8
        s_mul_i32 {S_T2}, {S_T0}, 9280
        s_sub_u32 {S_T2}, {S_T2}, {S_T3}
        s_add_u32 {S_T2}, {S_T2}, {L_U + 512 - 192}
        v_mul_u32_u24 v9, 4640, v1
        v_lshl_add_u32 v9, v7, 6, v9
        v_lshl_add_u32 v9, v{V_H}, 4, v9
        v_add_u32 v9, {S_T2}, v9
        s_lshl_b32 {S_T1}, {S_T1}, 1
        s_add_u32 {S_T0}, {S_T0}, {S_T1}
        s_mul_i32 {S_T0}, {S_T0}, 9216
        s_add_u32 {S_T0}, {S_T0}, {L_Y}
        v_mul_u32_u24 v2, 144, v7
        v_lshl_add_u32 v2, v{V_H}, 5, v2
        v_lshl_add_u32 v2, v1, 3, v2
        v_add_u32 v2, {S_T0}, v2
        v_lshrrev_b32 v7, 2, v0
        v_lshlrev_b32 v7, 4, v7
        v_lshl_add_u32 v7, v0, 5, v7
        v_add_u32 v7, {L_Y}, v7
        s_waitcnt lgkmcnt(0)
        """)

    def conv(self):
        a = self.a
        self.sub(0)
        XA, XB, ST = 10, 14, 20
        for j in range(4):
            a(f"s_mov_b32 {S_T0}, {4096*j}\nbuffer_load_dwordx4 {v4(ST+4*j)}, v4, {SRD_WS}, {S_T0} offen sc1")
        a(f"""
        buffer_load_dwordx4 {v4(XA)}, v3, {SRD_WS}, 0 offen sc1
        v_add_u32 v1, 4096, v3
        buffer_load_dwordx4 {v4(XB)}, v1, {SRD_WS}, 0 offen sc1
        s_mov_b32 s66, {fx(1/512)}
        s_mov_b32 s67, {fx(1e-5)}
        v_mov_b32 v36, s66
        v_mov_b32 v37, s66
        v_mov_b32 v38, s67
        v_mov_b32 v39, s67
        """)
        setup, self.wg = self.wfrag_loads()
        self.emit(setup)
        for g in self.wg[:12]: self.emit(g)
        a("s_waitcnt vmcnt(14)")
        self.sub(1)
        S = lambda i: ST + 2*i
        P  = 40
        MB = 48; VB = 56; R = 64; MR = 72
        for i in range(8): a(f"v_pk_mul_f32 {pk(S(i))}, {pk(S(i))}, v[36:37]")
        for i in range(8): a(f"v_fma_f32 v{S(i)+1}, -v{S(i)}, v{S(i)}, v{S(i)+1}")
        for i in range(8): a(f"v_cvt_pk_bf16_f32 v{P+i}, v{S(i)}, v{S(i)+1}")
        for i in range(8): a(f"v_and_b32 v{VB+i}, 0xffff0000, v{P+i}")
        for i in range(4): a(f"v_pk_add_f32 {pk(VB+2*i)}, {pk(VB+2*i)}, v[38:39]")
        for i in range(8): a(f"v_lshlrev_b32 v{MB+i}, 16, v{P+i}")
        for i in range(4): a(f"v_cvt_pk_bf16_f32 v{P+i}, v{VB+2*i}, v{VB+2*i+1}")
        for i in range(4):
            a(f"v_lshlrev_b32 v{VB+2*i}, 16, v{P+i}\nv_and_b32 v{VB+2*i+1}, 0xffff0000, v{P+i}")
        X32, U32 = 200, 216
        fill = []
        for c, X in enumerate((XA, XB)):
            for p in range(4):
                fill.append(f"v_lshlrev_b32 v{X32+8*c+2*p}, 16, v{X+p}")
                fill.append(f"v_and_b32 v{X32+8*c+2*p+1}, 0xffff0000, v{X+p}")
        for i in range(8): a(f"v_sqrt_f32 v{VB+i}, v{VB+i}")
        for i in range(4): a(f"v_cvt_pk_bf16_f32 v{P+i}, v{VB+2*i}, v{VB+2*i+1}")
        for i in range(4):
            a(f"v_lshlrev_b32 v{VB+2*i}, 16, v{P+i}\nv_and_b32 v{VB+2*i+1}, 0xffff0000, v{P+i}")
        a("s_waitcnt vmcnt(12)")
        self.emit(weave([f"v_rcp_f32 v{R+i}, v{VB+i}" for i in range(8)], fill, per=2))
        for i in range(4): a(f"v_pk_mul_f32 {pk(MR+2*i)}, {pk(MB+2*i)}, {pk(R+2*i)}")
        self.sub(2)
        for c in range(2):
            for p in range(4):
                x = X32+8*c+2*p; u = U32+8*c+2*p
                a(f"v_pk_fma_f32 {pk(u)}, {pk(x)}, {pk(R+2*p)}, {pk(MR+2*p)} neg_lo:[0,0,1] neg_hi:[0,0,1]")
        UP = 40
        for c in range(2):
            for p in range(4):
                u = U32+8*c+2*p
                a(f"v_cvt_pk_bf16_f32 v{UP+4*c+p}, v{u}, v{u+1}")
            ad = 5 + c
            a(f"ds_write_b128 v{ad}, {v4(UP+4*c)} offset:4640")
            a(f"ds_write2_b32 v{ad}, v{UP+4*c}, v{UP+4*c+1} offset0:1 offset1:2")
            a(f"ds_write2_b32 v{ad}, v{UP+4*c+2}, v{UP+4*c+3} offset0:3 offset1:4")
        AK, AU, ACC = 8, 9, 80
        a("s_waitcnt lgkmcnt(0)\ns_barrier")
        self.sub(3)
        def fragA(st, i): return (v4(112+4*i) if st == 0 else f"a[{192+4*i}:{192+4*i+3}]")
        def fragB(st, i): return (v4(144+4*i) if st == 0 else f"a[{224+4*i}:{224+4*i+3}]")
        def halfA(st, i, hh):
            b = (112 if st == 0 else 192) + 4*i + 2*hh
            return f"{'v' if st == 0 else 'a'}[{b}:{b+1}]"
        def loadlist(i, st):
            L = []
            for q in range(8):
                L.append(f"ds_read_b128 {fragB(st, q)}, v{AU} offset:{(3-i)*64 + 512*q}")
                L.append(f"ds_read_b64 {halfA(st, q, 0)}, v{AK} offset:{(3-i)*64 + (7-q)*512}")
                L.append(f"ds_read_b64 {halfA(st, q, 1)}, v{AK} offset:{(3-i)*64 + (7-q)*512 + 8}")
            return L
        self.emit(loadlist(0, 0))
        def mainloop(groups):
            written = set(); cnt = 0
            for i in range(4):
                st = i & 1
                a("s_waitcnt lgkmcnt(0)")
                nxt = loadlist(i+1, st ^ 1) if i < 3 else []
                for sh in range(8):
                    for t in range(sh, 8):
                        c = v4(ACC+4*t) if t in written else '0'
                        written.add(t)
                        a(f"v_mfma_f32_16x16x32_bf16 {v4(ACC+4*t)}, {fragA(st, sh)}, {fragB(st, t-sh)}, {c}")
                        cnt += 1
                        if nxt: a(nxt.pop(0))
                        elif groups and cnt % 2 == 0: self.emit(groups.pop(0))
            assert not groups
        mainloop(self.wg[12:36])
        self.wrest = self.wg[36:]
        self.sub(4)
        for t in range(8):
            a(f"ds_write_b64 v2, {pk(ACC+4*t)} offset:{1152*t}")
            a(f"ds_write_b64 v2, {pk(ACC+4*t+2)} offset:{1152*t+16}")
        a("s_waitcnt lgkmcnt(0)\ns_barrier")
        self.sub(5)
        Y0 = 112
        for ch in range(2):
            for sh in range(2):
                for hh in range(2):
                    b = Y0 + 16*sh + 8*ch + 4*hh
                    a(f"ds_read_b128 {v4(b)}, v7 offset:{sh*18432 + ch*9216 + 16*hh}")
        a(f"""
        v_subrev_u32 v3, {S_XIN}, v3
        v_add_u32 v3, {S_XOUT}, v3
        v_add_u32 v1, 4096, v3
        """)
        for ch in range(2):
            a(f"s_waitcnt lgkmcnt({4*(1-ch)})")
            D = V_DSK0 if ch == 0 else V_DSK1
            for p in range(4):
                y = Y0 + 8*ch + 2*p
                a(f"v_pk_add_f32 {pk(y)}, {pk(y)}, {pk(y+16)}")
            for p in range(4):
                y = Y0 + 8*ch + 2*p; u = U32 + 8*ch + 2*p
                a(f"v_pk_fma_f32 {pk(y)}, {pk(u)}, {pk(D)}, {pk(y)} op_sel_hi:[1,0,1]")
            for p in range(4):
                y = Y0 + 8*ch + 2*p; x = X32 + 8*ch + 2*p
                a(f"v_pk_add_f32 {pk(y)}, {pk(y)}, {pk(x)}")
            for p in range(4):
                y = Y0 + 8*ch + 2*p
                a(f"v_cvt_pk_bf16_f32 v{80+4*ch+p}, v{y}, v{y+1}")
            a(f"buffer_store_dwordx4 {v4(80+4*ch)}, v{3 if ch == 0 else 1}, {SRD_WS}, 0 offen sc1")
        self.sub(6)
        self.subflush(0, 7)

    def wstage_kv(self):
        a = self.a
        l = a.label('WS')
        a(f"s_cmp_eq_u32 {S_LAYER}, 0\ns_cbranch_scc0 {l}")
        for g in self.wrest: self.emit(g)
        a("s_waitcnt vmcnt(0)")
        self.wsum()
        a(f"{l}:")

    def qkv_pre(self):
        a = self.a
        t = 10
        a(f"""
        v_lshrrev_b32 v{t}, 3, v{V_LANE}
        v_lshlrev_b32 v{t}, 12, v{t}
        v_bfe_u32 v{t+1}, v{V_LANE}, 1, 2
        v_bfe_u32 v{t+2}, v{V_LANE}, 4, 1
        s_and_b32 {S_T0}, {S_W}, 1
        s_lshl_b32 {S_T0}, {S_T0}, 1
        v_or_b32 v{t+2}, {S_T0}, v{t+2}
        v_xor_b32 v{t+1}, v{t+1}, v{t+2}
        v_lshl_add_u32 v{t}, v{t+1}, 5, v{t}
        v_and_b32 v{t+1}, 1, v{V_LANE}
        v_lshl_add_u32 v{t}, v{t+1}, 4, v{t}
        s_lshl_b32 {S_T0}, {S_RT}, 7
        v_add_u32 v{t}, {S_T0}, v{t}
        s_lshl_b32 {S_DS}, {S_W}, 15
        s_add_u32 {S_DS}, {S_DS}, {S_XIN}
        s_lshl_b32 {S_DM}, {S_W}, 10
        s_add_u32 {S_DM}, {S_DM}, {L_XL}
        """)
        t = 12
        a(f"""
        v_lshrrev_b32 v{t}, 2, v{V_L16}
        v_lshl_add_u32 v{t+1}, v{V_H}, 3, v{t}
        v_lshlrev_b32 v{t+1}, 7, v{t+1}
        v_and_b32 v{t+2}, 3, v{V_L16}
        v_lshl_add_u32 v{t+1}, v{t+2}, 3, v{t+1}
        v_add_u32 v{t+1}, {L_XL}, v{t+1}
        v_lshrrev_b32 v{t}, 1, v{t}
        v_and_b32 v{t+2}, 1, v{V_H}
        v_lshl_or_b32 v{t}, v{t+2}, 1, v{t}
        v_xor_b32 v{t}, {S_W}, v{t}
        """)
        for j in range(4):
            a(f"v_xor_b32 v{t+2}, {j}, v{t}\nv_lshl_add_u32 v{4+j}, v{t+2}, 5, v{t+1}")
        for i in range(4): a(f"v_mov_b32 v{104+i}, {S_ONES}")
        a(f"""
        s_mov_b32 s66, {fx(1e-6)}
        s_mov_b32 s67, {fx(LOG2E)}
        v_mov_b32 v112, s66
        v_mov_b32 v113, s66
        v_mov_b32 v114, s67
        v_mov_b32 v115, s67
        """)

    def qkv(self):
        a = self.a
        self.sub(0)
        def dma():
            return lines(f"""
            s_mov_b32 m0, {S_DM}
            s_add_u32 {S_DM}, {S_DM}, 4096
            buffer_load_dwordx4 v10, {SRD_WS}, {S_DS} offen sc1 lds
            s_add_u32 {S_DS}, {S_DS}, {4*32768}
            """)
        for i in range(8): self.emit(dma())
        AD = 4
        AK_, AV_, AQ_ = 16, 32, 48
        DS, DG = 64, 68
        ONES = 104
        XF = [72, 88]
        def xload(ks, st):
            L = []
            for j in range(4):
                b = XF[st] + 4*j
                L.append(f"ds_read_b64_tr_b16 {pk(b)}, v{AD+j} offset:{ks*4096}")
                L.append(f"ds_read_b64_tr_b16 {pk(b+2)}, v{AD+j} offset:{ks*4096+512}")
            return L
        gstart = {0: 6, 2: 6, 4: 6, 8: 4, 12: 0}
        a(f"s_waitcnt vmcnt({gstart[0]})\ns_barrier")
        self.sub(1)
        self.emit(xload(0, 0))
        for ks in range(16):
            st = ks & 1
            pre = []
            if ks + 1 < 16:
                if ks + 1 in gstart: pre += [f"s_waitcnt vmcnt({gstart[ks+1]})", "s_barrier"]
                fill = xload(ks+1, st ^ 1)
            else:
                fill = xload(0, st ^ 1)
            a("s_waitcnt lgkmcnt(0)")
            self.emit(pre)
            M = []
            for j in range(4):
                x = v4(XF[st]+4*j)
                ck = '0' if ks == 0 else v4(AK_+4*j); cv = '0' if ks == 0 else v4(AV_+4*j)
                M.append(f"v_mfma_f32_16x16x32_bf16 {v4(AK_+4*j)}, {x}, a[{64+4*ks}:{64+4*ks+3}], {ck}")
                M.append(f"v_mfma_f32_16x16x32_bf16 {v4(AV_+4*j)}, {x}, a[{128+4*ks}:{128+4*ks+3}], {cv}")
            x0 = v4(XF[st])
            M.append(f"v_mfma_f32_16x16x32_bf16 {v4(DS)}, {v4(ONES)}, {x0}, {'0' if ks == 0 else v4(DS)}")
            M.append(f"v_mfma_f32_16x16x32_bf16 {v4(DG)}, {x0}, {x0}, {'0' if ks == 0 else v4(DG)}")
            if ks < 4: fill = fill + dma() + dma()
            self.emit(weave(M, fill, per=1 if ks >= 4 else 2))
        self.sub(2)
        SQ = 109
        F1 = lines(f"""
        v_and_b32 v8, 3, v{V_L16}
        v_lshrrev_b32 v9, 2, v{V_L16}
        v_cmp_eq_u32 s[66:67], 1, v8
        v_cmp_eq_u32 s[68:69], 2, v8
        v_cmp_eq_u32 vcc, 3, v8
        v_cndmask_b32 v{SQ}, v{DG}, v{DG+1}, s[66:67]
        v_cndmask_b32 v{SQ}, v{SQ}, v{DG+2}, s[68:69]
        v_cndmask_b32 v{SQ}, v{SQ}, v{DG+3}, vcc
        v_cmp_eq_u32 vcc, v9, v{V_H}
        s_lshl_b32 {S_T0}, {S_W}, 6
        s_add_u32 {S_T0}, {S_T0}, {L_S2R}
        v_cndmask_b32 v{SQ}, 0, v{SQ}, vcc
        v_lshlrev_b32 v8, 2, v{V_L16}
        v_add_u32 v9, {S_T0}, v8
        """)
        F1 += self.reduce_h(SQ, 110)
        F1 += self.ln_final1(DS, SQ, 116, 117, 118)
        F1 += lines(f"""
        ds_write_b32 v9, v116
        ds_write_b32 v9, v117 offset:{L_S2M-L_S2R}
        v_lshlrev_b32 v8, 4, v{V_H}
        v_add_u32 v8, {S_T0}, v8
        """)
        R4, M4 = 128, 144
        RQ, MQ = 160, 208
        F2 = []
        for j in range(4):
            F2.append(f"v_xor_b32 v{120+j}, {64*j}, v8")
            F2.append(f"v_xor_b32 v{124+j}, {64*j}, v9")
        for j in range(4):
            F2.append(f"ds_read_b128 {v4(R4+4*j)}, v{120+j}")
            F2.append(f"ds_read_b128 {v4(M4+4*j)}, v{120+j} offset:{L_S2M-L_S2R}")
        for j in range(4):
            F2.append(f"ds_read_b32 v{RQ+2*j}, v{124+j}")
            F2.append(f"ds_read_b32 v{MQ+2*j}, v{124+j} offset:{L_S2M-L_S2R}")
        EPS, L2E = 112, 114
        def phi(x, T):
            return [f"v_pk_mul_f32 {pk(T)}, {pk(x)}, {pk(L2E)}",
                    f"v_exp_f32_e64 v{T}, v{T} clamp", f"v_exp_f32_e64 v{T+1}, v{T+1} clamp",
                    f"v_max_f32 v{x}, v{EPS}, v{x}", f"v_max_f32 v{x+1}, v{EPS}, v{x+1}",
                    f"v_pk_add_f32 {pk(x)}, {pk(x)}, {pk(T)}"]
        PKF, VF, PQF = 168, 176, 200
        DKV, DZ = 196, 216
        def kv_chain(j, h2, T):
            k = AK_+4*j+h2; vv = AV_+4*j+h2; r = R4+4*j+h2; m = M4+4*j+h2
            c = [f"v_pk_fma_f32 {pk(T)}, {pk(m)}, v[{V_WSK}:{V_WSK+1}], {pk(EPS)} op_sel_hi:[1,0,1] neg_lo:[0,0,1] neg_hi:[0,0,1]",
                 f"v_pk_mul_f32 {pk(T+4)}, {pk(m)}, v[{V_WSV}:{V_WSV+1}] op_sel_hi:[1,0]",
                 f"v_pk_fma_f32 {pk(k)}, {pk(k)}, {pk(r)}, {pk(T)} neg_lo:[0,0,1] neg_hi:[0,0,1]",
                 f"v_pk_fma_f32 {pk(vv)}, {pk(vv)}, {pk(r)}, {pk(T+4)} neg_lo:[0,0,1] neg_hi:[0,0,1]"]
            ph = phi(k, T+2)
            c += [ph[0], f"v_cvt_pk_bf16_f32 v{VF + 2*j + h2//2}, v{vv}, v{vv+1}"] + ph[1:]
            c.append(f"v_cvt_pk_bf16_f32 v{PKF + 2*j + h2//2}, v{k}, v{k+1}")
            return c
        def q_chain(j, h2, T):
            q = AQ_+4*j+h2
            c = [f"v_pk_fma_f32 {pk(T)}, {pk(MQ+2*j)}, {pk(V_WSQ+h2)}, {pk(EPS)} op_sel_hi:[0,1,1] neg_lo:[0,0,1] neg_hi:[0,0,1]",
                 f"v_pk_fma_f32 {pk(q)}, {pk(q)}, {pk(RQ+2*j)}, {pk(T)} op_sel_hi:[1,0,1] neg_lo:[0,0,1] neg_hi:[0,0,1]"]
            c += phi(q, T+2)
            c.append(f"v_cvt_pk_bf16_f32 v{PQF + 2*j + h2//2}, v{q}, v{q+1}")
            return c
        adr = lines(f"""
        s_lshl_b32 {S_T0}, {S_CG}, 2
        s_add_u32 {S_T0}, {S_T0}, {S_W}
        s_lshl_b32 {S_T1}, {S_T0}, 10
        s_add_u32 {S_T1}, {S_T1}, {S_KV}
        v_lshlrev_b32 v11, 2, v{V_LANE}
        v_add_u32 v14, {S_T1}, v11
        s_lshl_b32 {S_T1}, {S_T0}, 6
        s_add_u32 {S_T1}, {S_T1}, {S_Z}
        v_add_u32 v15, {S_T1}, v11
        s_lshl_b32 {S_T1}, {S_RT}, 16
        s_add_u32 {S_T1}, {S_T1}, {S_PQ}
        s_lshl_b32 {S_T2}, {S_T0}, 10
        s_add_u32 {S_T1}, {S_T1}, {S_T2}
        s_and_b32 {S_T2}, {S_W}, 1
        s_lshl_b32 {S_T2}, {S_T2}, 4
        v_xor_b32 v11, {S_T2}, v{V_LANE}
        v_lshlrev_b32 v11, 4, v11
        v_add_u32 v11, {S_T1}, v11
        s_lshr_b32 {S_T2}, {S_W}, 1
        s_lshl_b32 {S_T2}, {S_T2}, 15
        v_add_u32 v12, {S_T2}, v11
        s_xor_b32 {S_T2}, {S_T2}, 0x8000
        v_add_u32 v13, {S_T2}, v11
        """)
        def passQ(ks_range, fill, per):
            for ks in ks_range:
                st = ks & 1
                nx = xload(ks+1, st ^ 1) if ks + 1 < 16 else []
                a("s_waitcnt lgkmcnt(0)")
                for j in range(4):
                    x = v4(XF[st]+4*j)
                    a(f"v_mfma_f32_16x16x32_bf16 {v4(AQ_+4*j)}, a[{4*ks}:{4*ks+3}], {x}, {'0' if ks == 0 else v4(AQ_+4*j)}")
                    k = 4 if j < 2 else 0
                    for _ in range(k):
                        if nx: a(nx.pop(0))
                    for _ in range(per):
                        if fill: a(fill.pop(0))
        fill = list(F1); passQ(range(0, 3), fill, 4); self.emit(fill)
        a("s_waitcnt lgkmcnt(0)\ns_barrier")
        fill = list(F2) + adr; passQ(range(3, 5), fill, 4); self.emit(fill)
        a("s_waitcnt lgkmcnt(0)")
        self.sub(3)
        TT = [184, 190, 220, 226]
        for j0 in (0, 2):
            self.emit(zipmerge(kv_chain(j0, 0, TT[0]), kv_chain(j0, 2, TT[1]), kv_chain(j0+1, 0, TT[2]), kv_chain(j0+1, 2, TT[3])))
            u = j0 // 2
            c1 = '0' if u == 0 else v4(DKV); c2 = '0' if u == 0 else v4(DZ)
            a(f"v_mfma_f32_16x16x32_bf16 {v4(DKV)}, {v4(VF+4*u)}, {v4(PKF+4*u)}, {c1}")
            a(f"v_mfma_f32_16x16x32_bf16 {v4(DZ)}, {v4(ONES)}, {v4(PKF+4*u)}, {c2}")
        for i in range(4):
            a(f"buffer_atomic_add_f32 v{DKV+i}, v14, {SRD_WS}, 0 offen offset:{256*i}")
        a(f"""
        s_mov_b64 exec, 0xffff
        buffer_atomic_add_f32 v{DZ}, v15, {SRD_WS}, 0 offen
        s_mov_b64 exec, -1
        """)
        self.sub(4)
        passQ(range(5, 16), [], 0)
        self.sub(5)
        TQ = [184, 188, 220, 224]
        for u in range(2):
            j0 = 2*u
            self.emit(zipmerge(q_chain(j0, 0, TQ[0]), q_chain(j0, 2, TQ[1]), q_chain(j0+1, 0, TQ[2]), q_chain(j0+1, 2, TQ[3])))
            b = PQF + 4*u
            a(f"v_permlane16_swap_b32 v{b}, v{b+2}\nv_permlane16_swap_b32 v{b+1}, v{b+3}")
            a(f"buffer_store_dwordx4 {v4(b)}, v{12+u}, {SRD_WS}, 0 offen sc1")
        self.sub(6)
        self.subflush(1, 7)

    def outp_pre(self):
        a = self.a
        a(f"""
        s_lshl_b32 {S_T0}, {S_W}, 13
        s_add_u32 {S_T0}, {S_T0}, {S_KV}
        v_lshlrev_b32 v4, 4, v{V_LANE}
        v_add_u32 v4, {S_T0}, v4
        v_add_u32 v5, 4096, v4
        s_lshl_b32 {S_T0}, {S_W}, 9
        s_add_u32 {S_T0}, {S_T0}, {S_Z}
        v_and_b32 v6, 31, v{V_LANE}
        v_lshlrev_b32 v6, 4, v6
        v_add_u32 v6, {S_T0}, v6
        s_and_b32 {S_T0}, {S_W}, 1
        s_lshl_b32 {S_T0}, {S_T0}, 15
        s_lshr_b32 {S_T1}, {S_W}, 1
        s_lshl_b32 {S_T1}, {S_T1}, 14
        s_add_u32 {S_T0}, {S_T0}, {S_T1}
        s_lshl_b32 {S_T1}, {S_RT}, 16
        s_add_u32 {S_T0}, {S_T0}, {S_T1}
        s_add_u32 {S_DS}, {S_T0}, {S_PQ}
        v_lshlrev_b32 v7, 4, v{V_LANE}
        v_lshrrev_b32 v1, 3, v0
        v_and_b32 v3, 7, v0
        s_lshl_b32 {S_T0}, {S_CG}, 18
        s_lshl_b32 {S_T1}, {S_RT}, 7
        s_add_u32 {S_T0}, {S_T0}, {S_T1}
        v_lshlrev_b32 v8, 12, v1
        v_lshl_add_u32 v8, v3, 4, v8
        v_add_u32 v8, {S_T0}, v8
        v_add_u32 v9, {S_XIN}, v8
        v_add_u32 v2, 0x20000, v9
        v_lshrrev_b32 v10, 4, v{V_LANE}
        v_bfe_u32 v11, v{V_LANE}, 2, 2
        v_lshl_add_u32 v10, v11, 2, v10
        v_bfe_u32 v11, v{V_LANE}, 1, 1
        v_lshl_add_u32 v10, v11, 4, v10
        v_lshlrev_b32 v10, 4, v10
        v_and_b32 v11, 1, v{V_LANE}
        v_lshl_add_u32 v10, v11, 3, v10
        s_mul_i32 {S_T0}, {S_W}, {8*544}
        s_add_u32 {S_T0}, {S_T0}, {L_KVF}
        v_add_u32 v10, {S_T0}, v10
        v_bfe_u32 v11, v{V_LANE}, 2, 3
        v_mul_u32_u24 v11, 544, v11
        v_and_b32 v12, 3, v{V_LANE}
        v_lshl_add_u32 v11, v12, 3, v11
        v_add_u32 v11, {S_T0}, v11
        v_and_b32 v12, 31, v{V_LANE}
        v_lshrrev_b32 v13, 5, v{V_LANE}
        v_lshlrev_b32 v14, 4, v13
        v_add_u32 v15, v14, v12
        v_lshlrev_b32 v15, 4, v15
        v_lshlrev_b32 v14, 4, v13
        v_add_u32 v14, 512, v14
        v_cmp_gt_u32 vcc, 16, v12
        v_cndmask_b32 v15, v14, v15, vcc
        s_lshr_b32 {S_T0}, {S_W}, 1
        s_mul_i32 {S_T1}, {S_T0}, {16*544}
        s_add_u32 {S_T1}, {S_T1}, {L_KVF}
        v_add_u32 v15, {S_T1}, v15
        v_lshrrev_b32 v16, 2, v{V_L16}
        v_lshrrev_b32 v17, 1, v{V_H}
        v_lshl_add_u32 v17, v17, 2, v16
        v_lshlrev_b32 v17, 7, v17
        v_and_b32 v18, 3, v{V_L16}
        v_lshl_add_u32 v17, v18, 3, v17
        s_lshl_b32 {S_T1}, {S_T0}, 15
        s_add_u32 {S_T1}, {S_T1}, {L_WO}
        v_add_u32 v17, {S_T1}, v17
        v_and_b32 v18, 2, v16
        v_and_b32 v19, 1, v{V_H}
        v_xor_b32 v18, v18, v19
        v_lshl_add_u32 v13, v18, 5, v17
        v_xor_b32 v18, 2, v18
        v_lshl_add_u32 v14, v18, 5, v17
        s_mul_i32 {S_T1}, {S_T0}, {64*272}
        s_and_b32 {S_T0}, {S_W}, 1
        s_lshl_b32 {S_T0}, {S_T0}, 7
        s_add_u32 {S_T1}, {S_T1}, {S_T0}
        s_add_u32 {S_T1}, {S_T1}, {L_O32}
        v_mul_u32_u24 v16, 272, v12
        v_lshrrev_b32 v17, 5, v{V_LANE}
        v_lshl_add_u32 v16, v17, 4, v16
        v_add_u32 v16, {S_T1}, v16
        v_mul_u32_u24 v17, 272, v1
        v_lshl_add_u32 v17, v3, 5, v17
        v_add_u32 v17, {L_O32}, v17
        v_mul_u32_u24 v18, 144, v1
        v_lshl_add_u32 v18, v3, 4, v18
        v_add_u32 v18, {L_OT}, v18
        """)
        a(f"""
        s_lshr_b32 {S_T0}, {S_W}, 1
        s_lshl_b32 {S_T0}, {S_T0}, 15
        s_add_u32 {S_T0}, {S_T0}, {L_WO}
        v_lshlrev_b32 v13, 4, v{V_LANE}
        v_add_u32 v13, {S_T0}, v13
        """)
        for i in range(16):
            for c in range(2):
                a(f"ds_read_b128 {v4(WOF + 8*i + 4*c)}, v13 offset:{i*2048 + c*1024}")

    def outp(self):
        a = self.a
        self.sub(0)
        KVL = 24
        issued = []
        def ld(txt, tag): a(txt); issued.append(tag)
        for p in range(8):
            ad = 4 if p < 4 else 5; off = (p & 3)*1024
            ld(f"buffer_load_dwordx4 {v4(KVL+4*p)}, v{ad}, {SRD_WS}, 0 offen offset:{off} sc1", 'kv')
        ld(f"buffer_load_dwordx4 v[56:59], v6, {SRD_WS}, 0 offen sc1", 'kv')
        def pqload(i):
            ld(f"buffer_load_dwordx4 a[{192+4*(i%8)}:{192+4*(i%8)+3}], v7, {SRD_WS}, {S_DS} offen sc1", f'pq{i}')
            a(f"s_add_u32 {S_DS}, {S_DS}, 1024")
        PD = 6
        for i in range(PD): pqload(i)
        def vm(tag):
            idx = max(i for i, t in enumerate(issued) if t == tag)
            return len(issued) - 1 - idx
        self.sub(1)
        a(f"s_waitcnt vmcnt({vm('kv')})")
        self.sub(2)
        for p in range(8):
            b = KVL + 4*p
            a(f"v_cvt_pk_bf16_f32 v{b}, v{b}, v{b+1}\nv_cvt_pk_bf16_f32 v{b+1}, v{b+2}, v{b+3}")
            a(f"ds_write_b64 v10, {pk(b)} offset:{p*544}")
        a("v_cvt_pk_bf16_f32 v56, v56, v57\nv_cvt_pk_bf16_f32 v57, v58, v59")
        a(f"ds_write_b64 v11, v[56:57] offset:512")
        AKV = 15
        ACC = [224, 240]
        D1 = [32, 48]; KF = [64, 68, 72]; OF = [76, 80]
        XR = 84
        a("s_waitcnt lgkmcnt(0)\ns_barrier")
        ld(f"buffer_load_dwordx4 {v4(XR)}, v9, {SRD_WS}, 0 offen sc1", 'x')
        ld(f"buffer_load_dwordx4 {v4(XR+4)}, v2, {SRD_WS}, 0 offen sc1", 'x')
        self.sub(3)
        def acc(c): return f"a[{ACC[c]}:{ACC[c]+15}]"
        def rdK(i): return [f"ds_read_b128 {v4(KF[i % 3])}, v{AKV} offset:{i*544}"]
        def m1(i): return f"v_mfma_f32_32x32x16_bf16 v[{D1[i&1]}:{D1[i&1]+15}], {v4(KF[i % 3])}, a[{192+4*(i%8)}:{192+4*(i%8)+3}], 0"
        def valu(i):
            d = D1[i & 1]; o = OF[i & 1]
            L = [f"v_add_f32 v{d+8}, {fx(1e-6)}, v{d+8}", f"v_rcp_f32 v{d+8}, v{d+8}"]
            L += [f"v_mul_f32 v{d+p}, v{d+p}, v{d+8}" for p in range(8)]
            L += [f"v_cvt_pk_bf16_f32 v{o+p}, v{d+2*p}, v{d+2*p+1}" for p in range(4)]
            return L
        def mo(i, c):
            b = WOF + 8*i + 4*c
            return f"v_mfma_f32_32x32x16_bf16 {acc(c)}, {v4(OF[i&1])}, {v4(b)}, {'0' if i == 0 else acc(c)}"
        self.emit(rdK(0) + rdK(1) + rdK(2))
        a(f"s_waitcnt vmcnt({vm('pq0')}) lgkmcnt(2)")
        a(m1(0))
        a(f"s_waitcnt vmcnt({vm('pq1')}) lgkmcnt(1)")
        a(m1(1))
        self.emit(valu(0))
        for i in range(16):
            V = valu(i+1) if i + 1 < 16 else []
            K_ = rdK(i+3) if i + 3 < 16 else []
            if i + 2 < 16: a(f"s_waitcnt vmcnt({vm(f'pq{i+2}')}) lgkmcnt(0)")
            a(mo(i, 0))
            self.emit(V[:2] + K_ + V[2:4])
            if i + 2 < 16: a(m1(i+2))
            self.emit(V[4:10])
            a(mo(i, 1))
            self.emit(V[10:])
            if i + PD < 16: pqload(i + PD)
        self.sub(4)
        for c in range(2):
            for aa in range(4):
                a(f"ds_write_b128 v16, a[{ACC[c]+4*aa}:{ACC[c]+4*aa+3}] offset:{c*32*272 + 32*aa}")
        a("s_waitcnt lgkmcnt(0)\ns_barrier")
        Y = 96
        for i in range(2):
            for part in range(2):
                for hh in range(2):
                    a(f"ds_read_b128 {v4(Y+16*i+8*part+4*hh)}, v17 offset:{i*32*272 + part*64*272 + 16*hh}")
        a("s_waitcnt vmcnt(0)")
        self.sub(5)
        lf = a.label('FIN'); le = a.label('OE'); lx = a.label('OX')
        a(f"v_add_u32 v8, {S_XOUT}, v8\nv_add_u32 v9, 0x20000, v8")
        for i in range(2):
            a(f"s_waitcnt lgkmcnt({4*(1-i)})")
            y = Y + 16*i; x = XR + 4*i; t = 132 + 8*i
            for p in range(4): a(f"v_pk_add_f32 {pk(y+2*p)}, {pk(y+2*p)}, {pk(y+8+2*p)}")
            for p in range(4): a(f"v_cvt_pk_bf16_f32 v{y+8+p}, v{y+2*p}, v{y+2*p+1}")
            for p in range(4):
                a(f"v_lshlrev_b32 v{y+2*p}, 16, v{y+8+p}\nv_and_b32 v{y+2*p+1}, 0xffff0000, v{y+8+p}")
                a(f"v_lshlrev_b32 v{t+2*p}, 16, v{x+p}\nv_and_b32 v{t+2*p+1}, 0xffff0000, v{x+p}")
            for p in range(4): a(f"v_pk_add_f32 {pk(y+2*p)}, {pk(y+2*p)}, {pk(t+2*p)}")
            for p in range(4): a(f"v_cvt_pk_bf16_f32 v{160+4*i+p}, v{y+2*p}, v{y+2*p+1}")
            a(f"ds_write_b128 v18, {v4(160+4*i)} offset:{i*32*144}")
        a(f"""
        s_cmp_eq_u32 {S_LAYER}, 0
        s_cbranch_scc0 {lf}
        buffer_store_dwordx4 v[160:163], v8, {SRD_WS}, 0 offen sc1
        buffer_store_dwordx4 v[164:167], v9, {SRD_WS}, 0 offen sc1
        {lf}:
        v_lshrrev_b32 v10, 2, v{V_L16}
        v_lshl_add_u32 v10, v{V_H}, 3, v10
        v_mul_u32_u24 v10, 144, v10
        v_and_b32 v11, 3, v{V_L16}
        v_lshl_add_u32 v10, v11, 3, v10
        s_lshl_b32 {S_T0}, {S_W}, 5
        s_add_u32 {S_T0}, {S_T0}, {L_OT}
        v_add_u32 v10, {S_T0}, v10
        s_waitcnt lgkmcnt(0)
        s_barrier
        ds_read_b64_tr_b16 v[104:105], v10
        ds_read_b64_tr_b16 v[106:107], v10 offset:{4*144}
        ds_read_b64_tr_b16 v[108:109], v10 offset:{32*144}
        ds_read_b64_tr_b16 v[110:111], v10 offset:{36*144}
        s_cmp_eq_u32 {S_LAYER}, 0
        s_cbranch_scc0 {le}
        s_lshl_b32 {S_T0}, {S_RT}, 7
        s_lshl_b32 {S_T1}, {S_W}, 5
        s_add_u32 {S_T0}, {S_T0}, {S_T1}
        s_add_u32 {S_T0}, {S_T0}, {ST3}
        v_bfe_u32 v11, v{V_L16}, 1, 2
        v_lshlrev_b32 v11, 12, v11
        v_lshrrev_b32 v12, 3, v{V_L16}
        v_lshl_add_u32 v11, v12, 4, v11
        v_and_b32 v12, 1, v{V_L16}
        v_lshl_add_u32 v11, v12, 3, v11
        v_lshl_add_u32 v11, v{V_H}, 2, v11
        v_add_u32 v11, {S_T0}, v11
        v_mov_b32 v112, 0
        v_mov_b32 v113, 0
        v_mov_b32 v114, 0
        v_mov_b32 v115, 0
        s_waitcnt lgkmcnt(0)
        """)
        for j in range(4):
            a(f"v_dot2_f32_bf16 v112, v{104+j}, {S_ONES}, v112")
            a(f"v_dot2_f32_bf16 v113, v{104+j}, v{104+j}, v113")
            a(f"v_dot2_f32_bf16 v114, v{108+j}, {S_ONES}, v114")
            a(f"v_dot2_f32_bf16 v115, v{108+j}, v{108+j}, v115")
        a("v_pk_add_f32 v[112:113], v[112:113], v[114:115]")
        self.emit(zipmerge(self.reduce_h(112, 116), self.reduce_h(113, 117)))
        a(f"""
        v_cmp_eq_u32 vcc, 0, v{V_H}
        v_cndmask_b32 v112, v113, v112, vcc
        s_mov_b64 exec, 0xffffffff
        buffer_atomic_add_f32 v112, v11, {SRD_WS}, 0 offen
        s_mov_b64 exec, -1
        s_branch {lx}
        {le}:
        s_lshl_b32 {S_T0}, {S_RT}, 16
        s_lshl_b32 {S_T1}, {S_W}, 14
        s_add_u32 {S_T0}, {S_T0}, {S_T1}
        s_lshl_b32 {S_T1}, {S_CG}, 7
        s_add_u32 {S_T0}, {S_T0}, {S_T1}
        v_lshlrev_b32 v11, 10, v{V_L16}
        v_lshl_add_u32 v11, v{V_H}, 4, v11
        v_add_u32 v11, {S_T0}, v11
        s_waitcnt lgkmcnt(0)
        buffer_store_dwordx4 v[104:107], v11, {SRD_OUT}, 0 offen
        buffer_store_dwordx4 v[108:111], v11, {SRD_OUT}, 0 offen offset:64
        {lx}:
        """)
        self.sub(6)
        self.subflush(2, 7)

    def build(self):
        a = self.a
        self.prologue()
        if self.ts: a(f"v_mov_b32 v{V_TS}, 0\nv_mov_b32 v{V_TS2}, 0")
        self.stamp()
        self.p0()
        stop = self.stop
        if stop == 'p0':
            self.wait(); a("s_branch L_END")
        a("L_LAYER:")
        for reg, (x0, x1) in ((S_XIN, (XT[0], XT[2])), (S_XOUT, (XT[1], XT[3])), (S_ST, (ST1, ST3)), (S_PQ, PQ), (S_KV, KVM), (S_Z, ZZ)):
            a(f"s_mul_i32 {reg}, {S_LAYER}, {(x1 - x0) & 0xffffffff:#x}")
            a(f"s_add_u32 {reg}, {reg}, {x0:#x}")
        self.conv_pre()
        self.wait(); self.stamp()
        self.conv(); self.stamp()
        self.arrive(); self.stamp()
        if stop == 'conv1':
            self.wait(); a("s_branch L_END")
        a(f"s_mov_b32 {S_XIN}, {S_XOUT}")
        self.wstage_kv()
        self.qkv_pre()
        self.wait(); self.stamp()
        self.qkv(); self.stamp()
        self.arrive(); self.stamp()
        if stop == 'qkv1':
            self.wait(); a("s_branch L_END")
            if os.environ.get('DBGW'):
                a(f"""
                s_lshl_b32 {S_T0}, {S_ID}, 11
                s_add_u32 {S_T0}, {S_T0}, 0x40000
                v_lshlrev_b32 v1, 3, v0
                v_add_u32 v1, {S_T0}, v1
                v_mov_b32 v2, v{V_WSK}
                v_mov_b32 v3, v{V_WSV}
                buffer_store_dwordx2 v[2:3], v1, {SRD_WS}, 0 offen
                """)
            self.wait(); a("s_branch L_END")
        a(f"s_mov_b32 {S_XOUT}, {XT[2]}")
        lk = a.label('WOD')
        a(f"s_cmp_eq_u32 {S_LAYER}, 0\ns_cbranch_scc0 {lk}")
        a(f"""
        s_lshl_b32 {S_DS}, {S_CG}, 16
        s_lshl_b32 {S_T0}, {S_W}, 14
        s_add_u32 {S_DS}, {S_DS}, {S_T0}
        s_add_u32 {S_DS}, {S_DS}, {WOFG}
        s_add_u32 {S_DM}, {S_T0}, {L_WO}
        v_lshlrev_b32 v120, 4, v{V_LANE}
        """)
        for i in range(16):
            a(f"""
            s_mov_b32 m0, {S_DM}
            s_add_u32 {S_DM}, {S_DM}, 1024
            buffer_load_dwordx4 v120, {SRD_WS}, {S_DS} offen sc1 lds
            s_add_u32 {S_DS}, {S_DS}, 1024
            """)
        a("s_waitcnt vmcnt(0)\ns_barrier")
        a(f"{lk}:")
        self.outp_pre()
        self.wait(); self.stamp()
        self.outp(); self.stamp()
        a(f"s_cmp_eq_u32 {S_LAYER}, 1\ns_cbranch_scc1 L_END")
        self.arrive(); self.stamp()
        if stop == 'out1':
            self.wait(); a("s_branch L_END")
        a(f"s_mov_b32 {S_LAYER}, 1\ns_branch L_LAYER\nL_END:")
        self.tsdump()
        a("L_EXIT:\ns_endpgm")
        body = a.finalize()
        hdr = open(os.path.join(os.path.dirname(os.path.abspath(__file__)), 'header.txt')).read()
        hdr = hdr.replace('@@LAUNCH@@', f'; @launch grid=(256,1,1) block=(256,1,1) lds={LDS_SIZE}')
        txt = hdr + f""".amdgcn_target "amdgcn-amd-amdhsa--gfx950"
.text
.globl {NAME}_kernel
.p2align 8
.type {NAME}_kernel,@function
{NAME}_kernel:
""" + body + f""".section .rodata,"a"
.p2align 6
.amdhsa_kernel {NAME}_kernel
  .amdhsa_next_free_vgpr 512
  .amdhsa_next_free_sgpr 102
  .amdhsa_accum_offset 256
  .amdhsa_group_segment_fixed_size 0
  .amdhsa_kernarg_size 104
  .amdhsa_user_sgpr_count 2
  .amdhsa_user_sgpr_kernarg_segment_ptr 1
  .amdhsa_system_sgpr_workgroup_id_x 1
.end_amdhsa_kernel
"""
        return txt

if __name__ == '__main__':
    import argparse
    ap = argparse.ArgumentParser()
    ap.add_argument('--stop', default=None)
    ap.add_argument('--ts', action='store_true')
    ap.add_argument('-o', default='k.s')
    args = ap.parse_args()
    g = Gen(stop=args.stop, ts=args.ts)
    t = g.build()
    open(args.o, 'w').write(t)
    print('instructions', g.a.count(), 'nops inserted', g.a.nnop, 'bytes', len(t))
```

```python
import sys, os, math
sys.path.insert(0, os.path.dirname(os.path.abspath(__file__)))
from asmgen import Asm

NAME = 'interleave_layers__ssm_conv_s4d__linear_attn_block__prompt'

CNT  = 0x0
ZR   = 0x4000
KVM  = [ZR, ZR + 32768]
ZZ   = [ZR + 65536, ZR + 67584]
ST3  = ZR + 69632
ST1  = 0x1C000
GCNT = 0x20000
TS   = 0x80000
XT   = [0x100000, 0x300000, 0x500000, 0x700000]
PQ   = [0x900000, 0xB00000]
WQF  = 0xD00000
WOFG = 0xE80000
WS_SIZE = 0xF00000

L_WO = 0
L_KC = 65536
L_XL = 82432
L_MISC = L_XL + 65536
LDS_SIZE = 163840
L_U  = L_XL
L_Y  = L_XL + 18560
L_TA = L_XL
L_TB = L_XL + 9216
L_TW = L_XL + 46080
L_CT = L_XL + 18432
L_KD = L_XL + 28672
L_KVF = L_XL
L_O32 = L_XL + 17408
L_OT  = L_XL + 52224
L_S2R = L_MISC
L_S2M = L_MISC + 256
L_STG = L_MISC + 512

STPERM = True
OUTF = os.environ.get('OUTF', '')
CODE_CHUNKS = int(os.environ.get('CODE_CHUNKS', '5'))
SLEEP = int(os.environ.get('SLEEP', '4'))
SLEEP0 = int(os.environ.get('SLEEP0', '14'))
SLEEPG = int(os.environ.get('SLEEPG', '6'))
LOG2E = 1.4426950408889634
def f2u(x):
    import struct
    return struct.unpack('<I', struct.pack('<f', x))[0]
def fx(x): return '0x%08x' % f2u(x)
def pk(r): return f"v[{r}:{r+1}]"
def v4(r): return f"v[{r}:{r+3}]"

S_ID='s2'; S_W='s3'; S_RT='s4'; S_CG='s5'; S_LAYER='s6'; S_TGT='s7'
SRD_WS='s[44:47]'; SRD_WQ='s[48:51]'; SRD_WO='s[52:55]'; SRD_OUT='s[56:59]'; SRD_X0='s[60:63]'
S_ONES='s64'
S_EXS='s[70:71]'
S_XIN='s72'; S_XOUT='s73'; S_ST='s74'; S_PQ='s75'; S_KV='s76'; S_Z='s77'
S_SPIN='s78'
S_T0='s8'; S_T1='s9'; S_T2='s10'; S_T3='s11'; S_T4='s12'; S_T5='s13'
S_DM='s14'; S_DS='s15'

V_LANE=255; V_WSK=254; V_WSV=252; V_WSQ=248
V_DSK1=246; V_DSK0=244
V_CNT=239; V_POLL=238; V_ONE=237
V_L16=243; V_H=242
V_TS=241; V_TS2=240
V_GCNT=235; V_POLL2=234; V_TGT=233
V_PT=236

WOF = 104
def weave(main, fill, per=2, lead=0):
    out = []; fi = 0
    for k, m in enumerate(main):
        out.append(m)
        if k >= lead:
            for _ in range(per):
                if fi < len(fill): out.append(fill[fi]); fi += 1
    out += fill[fi:]
    return out
def zipmerge(*lists):
    out = []
    n = max(len(l) for l in lists)
    for i in range(n):
        for l in lists:
            if i < len(l): out.append(l[i])
    return out
import re as _re
def unpk(ins):
    m = _re.match(r'v_pk_(mul|add|fma)_f32 v\[(\d+):\d+\], (.*)', ins)
    if not m: return [ins]
    op, d, rest = m.group(1), int(m.group(2)), m.group(3)
    srcs = [int(x) for x in _re.findall(r'v\[(\d+):\d+\]', rest)]
    n = len(srcs)
    hi = [1]*n
    mm = _re.search(r'op_sel_hi:\[([\d,]+)\]', rest)
    if mm: hi = [int(x) for x in mm.group(1).split(',')]
    assert 'op_sel:[' not in rest
    neg = [0]*n
    mm = _re.search(r'neg_lo:\[([\d,]+)\]', rest)
    if mm: neg = [int(x) for x in mm.group(1).split(',')]
    out = []
    for h in range(2):
        ops = []
        for i in range(n):
            r = srcs[i] + (h if hi[i] else 0)
            ops.append(('-' if neg[i] else '') + f'v{r}')
        out.append(f"v_{op}_f32 v{d+h}, " + ', '.join(ops))
    return out
def unpk_all(L):
    o = []
    for x in L: o += unpk(x)
    return o
def lines(s): return [t.strip() for t in s.split('\n') if t.strip()]

class Gen:
    def __init__(self, stop=None, ts=False):
        self.a = Asm(); self.stop = stop; self.ts = ts; self.tsn = 0
    def emit(self, lst):
        for x in lst: self.a(x)

    def stamp(self):
        if not self.ts: return
        n = self.tsn; self.tsn += 1
        self.a(f"""
        s_memrealtime s[80:81]
        s_lshl_b32 s82, {S_LAYER}, 5
        s_add_u32 m0, s82, {n}
        s_waitcnt lgkmcnt(0)
        v_writelane_b32 v{V_TS}, s80, m0
        """)
    def sub(self, i):
        if self.ts: self.a(f"s_memtime s[{86+2*i}:{87+2*i}]")
    def subflush(self, phase, n):
        if not self.ts: return
        a = self.a
        a(f"s_waitcnt lgkmcnt(0)\ns_lshl_b32 s82, {S_LAYER}, 5\ns_add_u32 m0, s82, {phase*8}")
        for i in range(n):
            a(f"v_writelane_b32 v{V_TS2}, s{86+2*i}, m0\ns_add_u32 m0, m0, 1\ns_nop 3")
    def tsdump(self):
        if not self.ts: return
        a = self.a; l = a.label('TD')
        if os.environ.get('DBGTS'):
            sel = [1,2,3,4,5,7,8,10,11,12, 32+4,32+5,32+7,32+8,32+10]
            a(f"""
            s_cmp_eq_u32 {S_ID}, 0
            s_cbranch_scc0 {l}
            s_cmp_eq_u32 {S_W}, 0
            s_cbranch_scc0 {l}
            v_readlane_b32 s80, v{V_TS}, 0
            """)
            for i, k in enumerate(sel):
                lane = k
                a(f"v_readlane_b32 s81, v{V_TS}, {lane}\ns_nop 3\ns_sub_u32 s81, s81, s80\nv_mov_b32 v1, s81\nv_mov_b32 v2, {4*(i+1)}\ns_mov_b64 exec, 1\nglobal_store_dword v2, v1, s[38:39]\ns_mov_b64 exec, -1")
            a(f"{l}:")
            return
        a(f"""
        s_cmp_eq_u32 {S_W}, 0
        s_cbranch_scc0 {l}
        s_lshl_b32 s82, {S_ID}, 9
        s_add_u32 s82, s82, {TS}
        v_lshlrev_b32 v1, 2, v{V_LANE}
        v_add_u32 v1, s82, v1
        buffer_store_dword v{V_TS}, v1, {SRD_WS}, 0 offen
        buffer_store_dword v{V_TS2}, v1, {SRD_WS}, 0 offen offset:256
        {l}:
        """)

    def arrive(self):
        a = self.a; l = a.label('ARR')
        a(f"""
        s_waitcnt vmcnt(0) lgkmcnt(0)
        s_barrier
        s_add_u32 {S_TGT}, {S_TGT}, 16
        s_cmp_eq_u32 {S_W}, 0
        s_cbranch_scc0 {l}
        s_mov_b64 exec, 1
        buffer_atomic_add v{V_ONE}, v{V_CNT}, {SRD_WS}, 0 offen sc1
        s_mov_b64 exec, -1
        {l}:
        """)
    def arrive_group(self):
        a = self.a; l = a.label('ARG')
        a(f"""
        s_waitcnt vmcnt(0) lgkmcnt(0)
        s_barrier
        s_cmp_eq_u32 {S_W}, 0
        s_cbranch_scc0 {l}
        s_mov_b64 exec, 1
        buffer_atomic_add v{V_ONE}, v{V_GCNT}, {SRD_WS}, 0 offen sc1
        s_mov_b64 exec, -1
        {l}:
        """)
    def wait_dual(self):
        a = self.a
        l = a.label('WT'); lp = a.label('POLL'); ld = a.label('PD')
        a(f"""
        s_cmp_eq_u32 {S_W}, 0
        s_cbranch_scc0 {l}
        s_add_u32 {S_T0}, {S_LAYER}, 1
        s_lshl_b32 {S_T0}, {S_T0}, 3
        v_mov_b32 v{V_TGT}, {S_TGT}
        v_mov_b32 v{V_PT}, {S_T0}
        v_cmp_eq_u32 vcc, 16, v{V_LANE}
        v_cndmask_b32 v{V_TGT}, v{V_TGT}, v{V_PT}, vcc
        s_mov_b64 exec, 0x1ffff
        s_mov_b32 {S_SPIN}, 0
        {('s_sleep ' + str(SLEEPG)) if SLEEPG else ''}
        {lp}:
        buffer_load_dword v{V_PT}, v{V_POLL2}, {SRD_WS}, 0 offen sc1
        s_add_u32 {S_SPIN}, {S_SPIN}, 1
        s_waitcnt vmcnt(0)
        v_cmp_gt_u32 vcc, v{V_TGT}, v{V_PT}
        s_cbranch_vccz {ld}
        {('s_sleep ' + str(SLEEP)) if SLEEP else ''}
        s_cmp_lt_u32 {S_SPIN}, 0x200000
        s_cbranch_scc1 {lp}
        {ld}:
        s_mov_b64 exec, -1
        {l}:
        s_barrier
        """)
    def wait(self, l0skip=False, sleep0=None):
        a = self.a
        l = a.label('WT'); lp = a.label('POLL'); ld = a.label('PD'); ls = a.label('NS')
        SLEEP0 = sleep0 if sleep0 is not None else globals()['SLEEP0']
        a(f"""
        s_cmp_eq_u32 {S_W}, 0
        s_cbranch_scc0 {l}
        s_mov_b64 exec, 0xffff
        s_mov_b32 {S_SPIN}, 0
        {(f's_cmp_eq_u32 {S_LAYER}, 0' + chr(10) + f's_cbranch_scc1 {lp}') if l0skip else ''}
        {('s_sleep ' + str(SLEEP0)) if SLEEP0 else ''}
        {lp}:
        buffer_load_dword v{V_PT}, v{V_POLL}, {SRD_WS}, 0 offen sc1
        s_add_u32 {S_SPIN}, {S_SPIN}, 1
        s_waitcnt vmcnt(0)
        v_cmp_gt_u32 vcc, {S_TGT}, v{V_PT}
        s_cbranch_vccz {ld}
        {('s_sleep ' + str(SLEEP)) if SLEEP else ''}
        s_cmp_lt_u32 {S_SPIN}, 0x200000
        s_cbranch_scc1 {lp}
        {ld}:
        s_mov_b64 exec, -1
        {l}:
        s_barrier
        """)

    def reduce_h(self, r, t):
        return lines(f"""
        v_mov_b32 v{t}, v{r}
        v_permlane16_swap_b32 v{r}, v{t}
        v_add_f32 v{r}, v{r}, v{t}
        v_mov_b32 v{t}, v{r}
        v_permlane32_swap_b32 v{r}, v{t}
        v_add_f32 v{r}, v{r}, v{t}
        """)
    def reduce16(self, r):
        return lines(f"""
        v_add_f32_dpp v{r}, v{r}, v{r} quad_perm:[1,0,3,2] row_mask:0xf bank_mask:0xf
        v_add_f32_dpp v{r}, v{r}, v{r} quad_perm:[2,3,0,1] row_mask:0xf bank_mask:0xf
        v_add_f32_dpp v{r}, v{r}, v{r} row_half_mirror row_mask:0xf bank_mask:0xf
        v_add_f32_dpp v{r}, v{r}, v{r} row_mirror row_mask:0xf bank_mask:0xf
        """)
    def ln_final1(self, sm, sq, r_out, mr_out, t):
        return lines(f"""
        v_mul_f32 v{t}, {fx(1/512)}, v{sm}
        v_mul_f32 v{t+1}, {fx(1/512)}, v{sq}
        v_fma_f32 v{t+1}, -v{t}, v{t}, v{t+1}
        v_cvt_pk_bf16_f32 v{t+2}, v{t}, v{t+1}
        v_lshlrev_b32 v{t}, 16, v{t+2}
        v_and_b32 v{t+1}, 0xffff0000, v{t+2}
        v_add_f32 v{t+1}, {fx(1e-5)}, v{t+1}
        v_cvt_pk_bf16_f32 v{t+1}, v{t+1}, v{t+1}
        v_and_b32 v{t+1}, 0xffff0000, v{t+1}
        v_sqrt_f32 v{t+1}, v{t+1}
        v_cvt_pk_bf16_f32 v{t+1}, v{t+1}, v{t+1}
        v_and_b32 v{t+1}, 0xffff0000, v{t+1}
        v_rcp_f32 v{r_out}, v{t+1}
        v_mul_f32 v{mr_out}, v{t}, v{r_out}
        """)

    def prologue(self):
        a = self.a
        a(f"""
        s_cmp_ge_u32 {S_ID}, 256
        s_cbranch_scc1 L_EXIT
        s_load_dwordx16 s[16:31], s[0:1], 0
        s_load_dwordx8 s[32:39], s[0:1], 64
        s_load_dwordx2 s[40:41], s[0:1], 96
        v_and_b32 v{V_LANE}, 63, v0
        v_lshrrev_b32 v1, 6, v0
        v_and_b32 v{V_L16}, 15, v0
        v_bfe_u32 v{V_H}, v0, 4, 2
        v_readfirstlane_b32 {S_W}, v1
        s_and_b32 {S_T0}, {S_ID}, 7
        s_lshl_b32 {S_T0}, {S_T0}, 2
        s_lshr_b32 {S_T1}, {S_ID}, 6
        s_add_u32 {S_RT}, {S_T0}, {S_T1}
        s_lshr_b32 {S_CG}, {S_ID}, 3
        s_and_b32 {S_CG}, {S_CG}, 7
        s_mov_b32 {S_LAYER}, 0
        s_mov_b32 {S_TGT}, 0
        s_mov_b32 {S_ONES}, 0x3f803f80
        v_mov_b32 v{V_ONE}, 1
        s_and_b32 {S_T0}, {S_ID}, 15
        s_lshl_b32 {S_T0}, {S_T0}, 10
        v_mov_b32 v{V_CNT}, {S_T0}
        v_lshlrev_b32 v{V_POLL}, 10, v{V_LANE}
        s_waitcnt lgkmcnt(0)
        s_mov_b32 s60, s16
        s_and_b32 s61, s17, 0xffff
        s_mov_b32 s62, {2048*512*2}
        s_mov_b32 s63, 0x20000
        """)
    def prologue2(self):
        a = self.a
        a(f"""
        s_mov_b32 s44, s40
        s_and_b32 s45, s41, 0xffff
        s_mov_b32 s46, {WS_SIZE}
        s_mov_b32 s47, 0x20000
        s_mov_b32 s48, s32
        s_and_b32 s49, s33, 0xffff
        s_mov_b32 s50, {512*1536*2}
        s_mov_b32 s51, 0x20000
        s_mov_b32 s52, s34
        s_and_b32 s53, s35, 0xffff
        s_mov_b32 s54, {512*512*2}
        s_mov_b32 s55, 0x20000
        s_mov_b32 s56, s36
        s_and_b32 s57, s37, 0xffff
        s_mov_b32 s58, {2048*512*2}
        s_mov_b32 s59, 0x20000
        s_lshl_b32 {S_T0}, {S_RT}, 10
        s_add_u32 {S_T0}, {S_T0}, {GCNT}
        v_mov_b32 v{V_GCNT}, {S_T0}
        v_cmp_eq_u32 vcc, 16, v{V_LANE}
        v_cndmask_b32 v{V_POLL2}, v{V_POLL}, v{V_GCNT}, vcc
        """)

    def dma_weight(self, srd, rowpitch, colbyte, lds_base, swz, t, defer=False):
        a = self.a
        a(f"""
        v_lshrrev_b32 v{t}, 3, v{V_LANE}
        v_mul_u32_u24 v{t}, {rowpitch}, v{t}
        v_bfe_u32 v{t+1}, v{V_LANE}, 1, 2
        v_bfe_u32 v{t+2}, v{V_LANE}, 4, 1
        """)
        if swz == 'x':
            a(f"s_and_b32 {S_T0}, {S_W}, 1\ns_lshl_b32 {S_T0}, {S_T0}, 1\nv_or_b32 v{t+2}, {S_T0}, v{t+2}")
        else:
            a(f"v_lshlrev_b32 v{t+2}, 1, v{t+2}")
        a(f"""
        v_xor_b32 v{t+1}, v{t+1}, v{t+2}
        v_lshl_add_u32 v{t}, v{t+1}, 5, v{t}
        v_and_b32 v{t+1}, 1, v{V_LANE}
        v_lshl_add_u32 v{t}, v{t+1}, 4, v{t}
        s_lshl_b32 {S_T0}, {S_CG}, 7
        s_add_u32 {S_T0}, {S_T0}, {colbyte}
        v_add_u32 v{t}, {S_T0}, v{t}
        s_mul_i32 {S_DS}, {S_W}, {8*rowpitch}
        s_lshl_b32 {S_DM}, {S_W}, 10
        s_add_u32 {S_DM}, {S_DM}, {lds_base}
        """)
        groups = [lines(f"""
            s_mov_b32 m0, {S_DM}
            s_add_u32 {S_DM}, {S_DM}, 4096
            buffer_load_dwordx4 v{t}, {srd}, {S_DS} offen lds
            s_add_u32 {S_DS}, {S_DS}, {32*rowpitch}
            """) for i in range(16)]
        if defer: return groups
        for g in groups: self.emit(g)

    def wread_lists(self, lds_base, abase, part, t, o):
        rd = lines(f"""
        v_lshrrev_b32 v{t}, 2, v{V_L16}
        v_lshl_add_u32 v{t+1}, v{V_H}, 3, v{t}
        v_lshlrev_b32 v{t+1}, 7, v{t+1}
        v_and_b32 v{t+2}, 3, v{V_L16}
        v_lshl_add_u32 v{t+1}, v{t+2}, 3, v{t+1}
        v_add_u32 v{t+1}, {lds_base}, v{t+1}
        v_lshrrev_b32 v{t}, 1, v{t}
        v_and_b32 v{t+2}, 1, v{V_H}
        v_lshl_or_b32 v{t}, v{t+2}, 1, v{t}
        v_xor_b32 v{t}, {S_W}, v{t}
        v_lshl_add_u32 v{t+3}, v{t}, 5, v{t+1}
        """)
        for i in range(4): rd.append(f"v_mov_b32 v{o+i}, {S_ONES}")
        for ks in range(16):
            rd.append(f"ds_read_b64_tr_b16 a[{abase+4*ks}:{abase+4*ks+1}], v{t+3} offset:{ks*4096}")
            rd.append(f"ds_read_b64_tr_b16 a[{abase+4*ks+2}:{abase+4*ks+3}], v{t+3} offset:{ks*4096+512}")
        mf = []
        for ks in range(16):
            c = '0' if ks == 0 else v4(o+4)
            w = f"a[{abase+4*ks}:{abase+4*ks+3}]"
            if part == 0: mf.append(f"v_mfma_f32_16x16x32_bf16 {v4(o+4)}, {w}, {v4(o)}, {c}")
            else: mf.append(f"v_mfma_f32_16x16x32_bf16 {v4(o+4)}, {v4(o)}, {w}, {c}")
        if part == 0: mf += [f"v_mov_b32 v{V_WSQ+i}, v{o+4+i}" for i in range(4)]
        elif part == 1: mf.append(f"v_mov_b32 v{V_WSK}, v{o+4}")
        else: mf.append(f"v_mov_b32 v{V_WSV}, v{o+4}")
        return rd, mf

    def p0(self):
        a = self.a
        a(f"""
        v_lshrrev_b32 v1, 3, v0
        s_lshl_b32 {S_T0}, {S_RT}, 16
        s_lshl_b32 {S_T1}, {S_CG}, 7
        s_add_u32 {S_T0}, {S_T0}, {S_T1}
        v_lshlrev_b32 v2, 10, v1
        v_and_b32 v3, 7, v0
        v_lshl_add_u32 v2, v3, 4, v2
        v_add_u32 v2, {S_T0}, v2
        buffer_load_dwordx4 v[10:13], v2, {SRD_X0}, 0 offen
        v_add_u32 v4, 0x8000, v2
        buffer_load_dwordx4 v[14:17], v4, {SRD_X0}, 0 offen
        s_and_b32 {S_T0}, {S_ID}, 63
        s_lshl_b32 {S_T0}, {S_T0}, 2
        s_add_u32 {S_T0}, {S_T0}, {S_W}
        s_lshl_b32 {S_T0}, {S_T0}, 3
        s_lshr_b32 {S_T1}, {S_ID}, 6
        s_lshl_b32 {S_T1}, {S_T1}, 1
        s_add_u32 {S_T0}, {S_T0}, {S_T1}
        s_lshl_b32 {S_T0}, {S_T0}, 10
        v_lshlrev_b32 v5, 4, v{V_LANE}
        v_add_u32 v5, {S_T0}, v5
        buffer_load_dwordx4 v[18:21], v5, {SRD_X0}, 0 offen
        buffer_load_dwordx4 v[22:25], v5, {SRD_X0}, 0 offen offset:1024
        s_lshl_b32 {S_T0}, {S_ID}, 9
        v_lshlrev_b32 v6, 1, v0
        v_add_u32 v6, {S_T0}, v6
        global_load_ushort v26, v6, s[18:19]
        global_load_ushort v27, v6, s[20:21]
        global_load_ushort v28, v6, s[22:23]
        global_load_ushort v29, v6, s[24:25]
        v_lshrrev_b32 v7, 7, v0
        s_lshl_b32 {S_T0}, {S_ID}, 1
        v_add_lshl_u32 v7, v7, {S_T0}, 1
        global_load_ushort v30, v7, s[26:27]
        s_lshl_b32 {S_T0}, {S_ID}, 2
        v_mov_b32 v7, {S_T0}
        global_load_dword v{V_DSK0}, v7, s[28:29]
        """)
        self.prologue2()
        lp = a.label('PFC')
        a(f"""
        s_getpc_b64 s[66:67]
        s_and_b32 s66, s66, 0xffffff00
        s_lshr_b32 {S_T0}, {S_ID}, 3
        s_cmp_lt_u32 {S_T0}, {CODE_CHUNKS}
        s_cbranch_scc0 {lp}
        s_cmp_eq_u32 {S_W}, 3
        s_cbranch_scc0 {lp}
        s_lshl_b32 {S_T0}, {S_T0}, 13
        v_lshlrev_b32 v8, 7, v{V_LANE}
        v_add_u32 v8, {S_T0}, v8
        global_load_dword v198, v8, s[66:67]
        {lp}:
        v_and_b32 v8, 15, v{V_LANE}
        v_lshlrev_b32 v8, 20, v8
        buffer_load_dword v197, v8, {SRD_WS}, 0 offen
        """)
        lw = a.label('WT'); lw2 = a.label('WT')
        a(f"""
        s_and_b32 {S_T2}, {S_ID}, 7
        s_cmp_lt_u32 {S_ID}, 192
        s_cbranch_scc0 {lw}
        s_lshr_b32 {S_T3}, {S_ID}, 3
        s_mul_i32 {S_T0}, {S_T2}, {64*3072}
        s_lshl_b32 {S_T1}, {S_T3}, 7
        s_add_u32 {S_T0}, {S_T0}, {S_T1}
        v_mul_u32_u24 v8, 3072, v1
        v_lshl_add_u32 v8, v3, 4, v8
        v_add_u32 v8, {S_T0}, v8
        buffer_load_dwordx4 v[200:203], v8, {SRD_WQ}, 0 offen
        v_add_u32 v8, {32*3072}, v8
        buffer_load_dwordx4 v[204:207], v8, {SRD_WQ}, 0 offen
        s_branch {lw2}
        {lw}:
        s_sub_u32 {S_T3}, {S_ID}, 192
        s_lshr_b32 {S_T3}, {S_T3}, 3
        s_lshl_b32 {S_T0}, {S_T2}, 16
        s_lshl_b32 {S_T1}, {S_T3}, 7
        s_add_u32 {S_T0}, {S_T0}, {S_T1}
        v_lshlrev_b32 v8, 10, v1
        v_lshl_add_u32 v8, v3, 4, v8
        v_add_u32 v8, {S_T0}, v8
        buffer_load_dwordx4 v[200:203], v8, {SRD_WO}, 0 offen
        v_add_u32 v8, 0x8000, v8
        buffer_load_dwordx4 v[204:207], v8, {SRD_WO}, 0 offen
        {lw2}:
        """)
        l = a.label('CI')
        a(f"""
        s_cmp_lt_u32 {S_ID}, 16
        s_cbranch_scc0 {l}
        s_cmp_eq_u32 {S_W}, 0
        s_cbranch_scc0 {l}
        s_mov_b64 exec, 1
        v_mov_b32 v8, 0
        buffer_store_dword v8, v{V_CNT}, {SRD_WS}, 0 offen sc1
        s_waitcnt vmcnt(0)
        global_atomic_add v8, v{V_ONE}, s[38:39] sc1
        s_mov_b64 exec, -1
        {l}:
        """)
        IDX = 180
        a(f"v_lshlrev_b32 v31, 3, v0\nv_sub_u32 v31, 2047, v31\ns_mov_b32 {S_T5}, {L_KD}")
        chains = []
        for i in range(0, 10, 2):
            t = 32 + 4*(i//2)
            c = lines(f"""
            v_subrev_u32 v{t}, {i}, v31
            v_subrev_u32 v{t+1}, {i+1}, v31
            v_max_i32 v{t}, 0, v{t}
            v_max_i32 v{t+1}, 0, v{t+1}
            v_cvt_f32_i32 v{t}, v{t}
            v_cvt_f32_i32 v{t+1}, v{t+1}
            v_cvt_pk_bf16_f32 v{t+2}, v{t}, v{t+1}
            v_lshlrev_b32 v{t}, 16, v{t+2}
            v_and_b32 v{t+1}, 0xffff0000, v{t+2}
            v_cvt_u32_f32 v{t}, v{t}
            v_cvt_u32_f32 v{t+1}, v{t+1}
            v_lshrrev_b32 v{t+2}, 2, v{t}
            v_lshrrev_b32 v{t+3}, 2, v{t+1}
            v_add_u32 v{t+2}, 384, v{t+2}
            v_add_u32 v{t+3}, 384, v{t+3}
            v_min_u32 v{t}, v{t}, v{t+2}
            v_min_u32 v{t+1}, v{t+1}, v{t+3}
            v_lshrrev_b32 v{t+2}, 5, v{t}
            v_lshrrev_b32 v{t+3}, 5, v{t+1}
            v_add_u32 v{t}, v{t}, v{t+2}
            v_add_u32 v{t+1}, v{t+1}, v{t+3}
            v_lshl_add_u32 v{IDX+i}, v{t}, 2, {S_T5}
            """)
            if i + 1 < 9: c.append(f"v_lshl_add_u32 v{IDX+i+1}, v{t+1}, 2, {S_T5}")
            chains.append(c)
        self.emit(zipmerge(*chains))
        a(f"""
        v_mul_u32_u24 v8, 144, v1
        v_lshl_add_u32 v8, v3, 4, v8
        v_add_u32 v9, {L_TW}, v8
        v_add_u32 v8, {L_TA}, v8
        s_waitcnt vmcnt(11)
        ds_write_b128 v8, v[10:13]
        ds_write_b128 v8, v[14:17] offset:{32*144}
        s_waitcnt vmcnt(9)
        """)
        for r in range(32, 36): a(f"v_mov_b32 v{r}, 0")
        for j in range(4):
            for row in range(2):
                b = 18 + 4*row; sm = 32 + 2*row
                a(f"v_dot2_f32_bf16 v{sm}, v{b+j}, {S_ONES}, v{sm}\nv_dot2_f32_bf16 v{sm+1}, v{b+j}, v{b+j}, v{sm+1}")
        self.emit(zipmerge(*[self.reduce16(r) for r in range(32, 36)]))
        self.emit(zipmerge(*[self.reduce_h(r, 36 + (r-32)) for r in range(32, 36)]))
        a(f"""
        s_lshl_b32 {S_T0}, {S_W}, 4
        s_add_u32 {S_T0}, {S_T0}, {L_STG}
        v_mov_b32 v36, {S_T0}
        ds_write_b128 v36, v[32:35]
        s_waitcnt vmcnt(0)
        ds_write_b128 v9, v[200:203]
        ds_write_b128 v9, v[204:207] offset:{32*144}
        v_lshrrev_b32 v9, 2, v{V_L16}
        v_lshl_add_u32 v9, v{V_H}, 3, v9
        v_mul_u32_u24 v9, 144, v9
        v_and_b32 v2, 3, v{V_L16}
        v_lshl_add_u32 v9, v2, 3, v9
        s_lshl_b32 {S_T0}, {S_W}, 5
        s_add_u32 {S_T0}, {S_T0}, {L_TA}
        v_add_u32 v9, {S_T0}, v9
        s_lshl_b32 {S_T0}, {S_W}, 4
        v_add_u32 v2, {S_T0}, v{V_L16}
        v_mul_u32_u24 v2, 144, v2
        v_lshl_add_u32 v2, v{V_H}, 4, v2
        v_add_u32 v2, {L_TB}, v2
        s_waitcnt lgkmcnt(0)
        s_barrier
        ds_read_b64_tr_b16 v[10:11], v9
        ds_read_b64_tr_b16 v[12:13], v9 offset:{4*144}
        ds_read_b64_tr_b16 v[14:15], v9 offset:{32*144}
        ds_read_b64_tr_b16 v[16:17], v9 offset:{36*144}
        """)
        lz = a.label('WF'); lz2 = a.label('WF')
        a(f"""
        s_cmp_lt_u32 {S_ID}, 192
        s_cbranch_scc0 {lz}
        v_add_u32 v8, {L_TW - L_TA}, v9
        ds_read_b64_tr_b16 v[200:201], v8
        ds_read_b64_tr_b16 v[202:203], v8 offset:{4*144}
        ds_read_b64_tr_b16 v[204:205], v8 offset:{32*144}
        ds_read_b64_tr_b16 v[206:207], v8 offset:{36*144}
        s_lshr_b32 {S_T0}, {S_T3}, 3
        s_lshl_b32 {S_T0}, {S_T0}, 19
        s_and_b32 {S_T1}, {S_T3}, 7
        s_lshl_b32 {S_T1}, {S_T1}, 2
        s_add_u32 {S_T1}, {S_T1}, {S_W}
        s_lshl_b32 {S_T1}, {S_T1}, 14
        s_add_u32 {S_T0}, {S_T0}, {S_T1}
        s_lshl_b32 {S_T1}, {S_T2}, 11
        s_add_u32 {S_T0}, {S_T0}, {S_T1}
        s_add_u32 {S_T0}, {S_T0}, {WQF}
        s_branch {lz2}
        {lz}:
        v_lshrrev_b32 v8, 2, v{V_L16}
        v_lshrrev_b32 v7, 1, v{V_H}
        v_lshl_add_u32 v8, v7, 2, v8
        s_lshl_b32 {S_T0}, {S_W}, 4
        v_add_u32 v8, {S_T0}, v8
        v_mul_u32_u24 v8, 144, v8
        v_and_b32 v7, 1, v{V_H}
        v_lshl_add_u32 v8, v7, 5, v8
        v_and_b32 v7, 3, v{V_L16}
        v_lshl_add_u32 v8, v7, 3, v8
        v_add_u32 v8, {L_TW}, v8
        ds_read_b64_tr_b16 v[200:201], v8
        ds_read_b64_tr_b16 v[202:203], v8 offset:{8*144}
        ds_read_b64_tr_b16 v[204:205], v8 offset:64
        ds_read_b64_tr_b16 v[206:207], v8 offset:{8*144+64}
        s_lshl_b32 {S_T0}, {S_T3}, 16
        s_lshl_b32 {S_T1}, {S_T2}, 2
        s_add_u32 {S_T1}, {S_T1}, {S_W}
        s_lshl_b32 {S_T1}, {S_T1}, 11
        s_add_u32 {S_T0}, {S_T0}, {S_T1}
        s_add_u32 {S_T0}, {S_T0}, {WOFG}
        {lz2}:
        v_lshlrev_b32 v7, 4, v{V_LANE}
        v_add_u32 v7, {S_T0}, v7
        v_mul_u32_u24 v9, 144, v1
        v_lshl_add_u32 v9, v3, 4, v9
        v_add_u32 v9, {L_TB}, v9
        s_lshl_b32 {S_T0}, {S_CG}, 18
        s_lshl_b32 {S_T1}, {S_RT}, 7
        s_add_u32 {S_T0}, {S_T0}, {S_T1}
        s_add_u32 {S_T0}, {S_T0}, {XT[0]}
        v_lshlrev_b32 v4, 12, v1
        v_lshl_add_u32 v4, v3, 4, v4
        v_add_u32 v4, {S_T0}, v4
        v_add_u32 v5, 0x20000, v4
        s_waitcnt lgkmcnt(0)
        ds_write_b128 v2, v[10:13]
        ds_write_b128 v2, v[14:17] offset:64
        buffer_store_dwordx4 v[200:203], v7, {SRD_WS}, 0 offen sc1
        buffer_store_dwordx4 v[204:207], v7, {SRD_WS}, 0 offen offset:1024 sc1
        v_mov_b32 v6, 0
        s_waitcnt lgkmcnt(0)
        s_barrier
        ds_read_b128 v[10:13], v9
        ds_read_b128 v[14:17], v9 offset:{32*144}
        s_waitcnt lgkmcnt(0)
        buffer_store_dwordx4 v[10:13], v4, {SRD_WS}, 0 offen sc1
        buffer_store_dwordx4 v[14:17], v5, {SRD_WS}, 0 offen sc1
        global_load_dword v{V_PT}, v6, s[38:39] sc1
        """)
        l1 = a.label('Z1'); l2 = a.label('Z2')
        a(f"""
        s_cmp_eq_u32 {S_W}, 1
        s_cbranch_scc0 {l1}
        s_mov_b64 exec, 0xffffff
        v_mov_b32 v10, 0
        v_mov_b32 v11, 0
        v_mov_b32 v12, 0
        v_mov_b32 v13, 0
        s_mul_i32 {S_T0}, {S_ID}, 384
        s_add_u32 {S_T0}, {S_T0}, {ZR}
        v_lshlrev_b32 v4, 4, v{V_LANE}
        v_add_u32 v4, {S_T0}, v4
        buffer_store_dwordx4 v[10:13], v4, {SRD_WS}, 0 offen sc1
        s_mov_b64 exec, -1
        {l1}:
        s_cmp_eq_u32 {S_W}, 2
        s_cbranch_scc0 {l2}
        s_mov_b64 exec, 0xf
        v_lshlrev_b32 v4, 4, v{V_LANE}
        v_add_u32 v5, {L_STG}, v4
        ds_read_b128 v[10:13], v5
        s_lshl_b32 {S_T0}, {S_ID}, 6
        s_add_u32 {S_T0}, {S_T0}, {ST1}
        v_add_u32 v4, {S_T0}, v4
        s_waitcnt lgkmcnt(0)
        buffer_store_dwordx4 v[10:13], v4, {SRD_WS}, 0 offen sc1
        s_mov_b64 exec, -1
        {l2}:
        """)
        self.stamp()
        self.kgen_consts()
        a("s_waitcnt lgkmcnt(0)\ns_barrier")
        self.sub(0)
        self.sub(1)
        self.kgen_main(IDX)
        self.sub(6)
        self.subflush(3, 7)
        self.stamp()

    def arrive_first(self):
        a = self.a
        la = a.label('ARR1'); lp = a.label('INITP'); ld = a.label('INITD')
        a(f"""
        s_waitcnt vmcnt(0)
        s_barrier
        s_add_u32 {S_TGT}, {S_TGT}, 16
        s_cmp_eq_u32 {S_W}, 0
        s_cbranch_scc0 {la}
        s_mov_b64 exec, 1
        s_mov_b32 {S_SPIN}, 0
        v_mov_b32 v6, 0
        {lp}:
        v_cmp_le_u32 vcc, 16, v{V_PT}
        s_cbranch_vccnz {ld}
        global_load_dword v{V_PT}, v6, s[38:39] sc1
        s_add_u32 {S_SPIN}, {S_SPIN}, 1
        s_waitcnt vmcnt(0)
        s_cmp_lt_u32 {S_SPIN}, 0x200000
        s_cbranch_scc1 {lp}
        {ld}:
        buffer_atomic_add v{V_ONE}, v{V_CNT}, {SRD_WS}, 0 offen sc1
        s_mov_b64 exec, -1
        {la}:
        """)

    def cexp(self, p, dr, di, t):
        return lines(f"""
        v_mul_f32 v{t}, {fx(p)}, v40
        v_mul_f32 v{t+1}, {fx(p)}, v41
        v_exp_f32 v{t}, v{t}
        v_fract_f32 v{t+1}, v{t+1}
        v_cos_f32 v{t+2}, v{t+1}
        v_sin_f32 v{t+1}, v{t+1}
        v_mul_f32 v{dr}, v{t}, v{t+2}
        v_mul_f32 v{di}, v{t}, v{t+1}
        """)

    def kgen_consts(self):
        a = self.a
        a(f"""
        v_and_b32 v{V_DSK1}, 0xffff0000, v{V_DSK0}
        v_lshlrev_b32 v{V_DSK0}, 16, v{V_DSK0}
        v_lshlrev_b32 v26, 16, v26
        v_lshlrev_b32 v30, 16, v30
        v_lshlrev_b32 v27, 16, v27
        v_lshlrev_b32 v28, 16, v28
        v_mul_f32 v30, {fx(LOG2E)}, v30
        v_mul_f32 v26, {fx(LOG2E)}, v26
        v_lshlrev_b32 v29, 16, v29
        v_exp_f32 v30, v30
        v_exp_f32 v26, v26
        v_cvt_pk_bf16_f32 v31, v30, v26
        v_lshlrev_b32 v30, 16, v31
        v_and_b32 v26, 0xffff0000, v31
        v_mul_f32 v40, v26, v30
        v_mul_f32 v41, v27, v30
        v_mul_f32 v42, v28, v30
        v_mul_f32 v43, v29, v30
        v_mul_f32 v40, {fx(-LOG2E)}, v40
        v_mul_f32 v41, {fx(1/(2*math.pi))}, v41
        v_add_f32 v42, v42, v42
        v_add_f32 v43, v43, v43
        v_rndne_f32 v31, v41
        v_sub_f32 v41, v41, v31
        """)
        ch = []
        for i, p in enumerate((256.0, 512.0, 1536.0)):
            t = 52 + 6*i; d = 44 + 2*i
            c = self.cexp(p, t+3, t+4, t)
            c += lines(f"""
            v_mul_f32 v{d}, v42, v{t+3}
            v_mul_f32 v{d+1}, v42, v{t+4}
            v_fma_f32 v{d}, -v43, v{t+4}, v{d}
            v_fma_f32 v{d+1}, v43, v{t+3}, v{d+1}
            """)
            ch.append(c)
        self.emit(zipmerge(*ch))
        a(f"""
        v_lshrrev_b32 v1, 7, v0
        v_mul_u32_u24 v1, 5120, v1
        v_and_b32 v2, 127, v0
        v_lshl_add_u32 v1, v2, 2, v1
        v_add_u32 v1, {L_CT}, v1
        """)
        for q in range(10): a(f"ds_write_b32 v1, v{40+q} offset:{q*512}")

    def kgen_main(self, IDX):
        a = self.a
        a(f"""
        s_lshr_b32 {S_T0}, {S_W}, 1
        s_mul_i32 {S_T0}, {S_T0}, 5120
        s_and_b32 {S_T1}, {S_W}, 1
        s_lshl_b32 {S_T1}, {S_T1}, 8
        s_add_u32 {S_T0}, {S_T0}, {S_T1}
        s_add_u32 {S_T0}, {S_T0}, {L_CT}
        v_lshlrev_b32 v1, 4, v{V_H}
        v_add_u32 v1, {S_T0}, v1
        v_cvt_f32_u32 v2, v{V_L16}
        v_mov_b32 v3, v2
        """)
        ACC = 160
        def kstep(B, off, first):
            Q = lambda q: B + 4*q
            FR, FI, T0, T1 = B+40, B+44, B+48, B+52
            A0, A1, F0F, F2F = B+56, B+60, B+64, B+68
            rd = [f"ds_read_b128 {v4(Q(q))}, v1 offset:{q*512 + off}" for q in range(10)]
            L = []
            for h in (0, 2):
                L.append(f"v_pk_mul_f32 {pk(T0+h)}, {pk(Q(0)+h)}, v[2:3]")
                L.append(f"v_pk_mul_f32 {pk(T1+h)}, {pk(Q(1)+h)}, v[2:3]")
            for i in range(4):
                L.append(f"v_exp_f32 v{T0+i}, v{T0+i}")
            for i in range(4):
                L.append(f"v_cos_f32 v{FR+i}, v{T1+i}")
                L.append(f"v_sin_f32 v{FI+i}, v{T1+i}")
            for h in (0, 2):
                L.append(f"v_pk_mul_f32 {pk(FR+h)}, {pk(FR+h)}, {pk(T0+h)}")
                L.append(f"v_pk_mul_f32 {pk(FI+h)}, {pk(FI+h)}, {pk(T0+h)}")
            def packF(dst):
                L.extend([f"v_cvt_pk_bf16_f32 v{dst}, v{FR}, v{FR+1}", f"v_cvt_pk_bf16_f32 v{dst+1}, v{FR+2}, v{FR+3}",
                          f"v_cvt_pk_bf16_f32 v{dst+2}, v{FI}, v{FI+1}", f"v_cvt_pk_bf16_f32 v{dst+3}, v{FI+2}, v{FI+3}"])
            def sq():
                for h in (0, 2):
                    L.append(f"v_pk_mul_f32 {pk(T0+h)}, {pk(FI+h)}, {pk(FI+h)}")
                    L.append(f"v_pk_mul_f32 {pk(T1+h)}, {pk(FR+h)}, {pk(FI+h)}")
                for h in (0, 2):
                    L.append(f"v_pk_fma_f32 {pk(FR+h)}, {pk(FR+h)}, {pk(FR+h)}, {pk(T0+h)} neg_lo:[0,0,1] neg_hi:[0,0,1]")
                    L.append(f"v_pk_add_f32 {pk(FI+h)}, {pk(T1+h)}, {pk(T1+h)}")
            def gmul(q, dst):
                cr, ci = Q(q), Q(q+1)
                for h in (0, 2):
                    L.append(f"v_pk_mul_f32 {pk(T0+h)}, {pk(ci+h)}, {pk(FI+h)}")
                    L.append(f"v_pk_mul_f32 {pk(T1+h)}, {pk(ci+h)}, {pk(FR+h)}")
                for h in (0, 2):
                    L.append(f"v_pk_fma_f32 {pk(T0+h)}, {pk(cr+h)}, {pk(FR+h)}, {pk(T0+h)} neg_lo:[0,0,1] neg_hi:[0,0,1]")
                    L.append(f"v_pk_fma_f32 {pk(T1+h)}, {pk(cr+h)}, {pk(FI+h)}, {pk(T1+h)} neg_lo:[1,0,1] neg_hi:[1,0,1]")
                L.extend([f"v_cvt_pk_bf16_f32 v{dst}, v{T0}, v{T0+1}", f"v_cvt_pk_bf16_f32 v{dst+1}, v{T0+2}, v{T0+3}",
                          f"v_cvt_pk_bf16_f32 v{dst+2}, v{T1}, v{T1+1}", f"v_cvt_pk_bf16_f32 v{dst+3}, v{T1+2}, v{T1+3}"])
            def mm(T, A, F):
                c = '0' if first else v4(ACC+4*T)
                L.append(f"v_mfma_f32_16x16x32_bf16 {v4(ACC+4*T)}, {v4(A)}, {v4(F)}, {c}")
            packF(F0F); sq(); sq(); packF(F2F); sq(); sq()
            gmul(2, A0); mm(0, A0, F0F); gmul(4, A1); mm(1, A1, F0F)
            sq(); sq()
            gmul(6, A0); mm(2, A0, F2F); gmul(8, A1); mm(3, A1, F2F)
            return rd, L
        BA, BB = 8, 84
        def sprinkle(L, groups):
            step = max(1, len(L) // (len(groups) + 1)); out = []
            for i, x in enumerate(L):
                out.append(x)
                if groups and (i + 1) % step == 0: out += groups.pop(0)
            for g in groups: out += g
            return out
        for i in range(16): a(f"v_mov_b32 v{ACC+i}, 0")
        lk = a.label('KG'); lk2 = a.label('KG')
        a(f"s_mov_b32 {S_T4}, 0\n{lk}:")
        rdA, LA = kstep(BA, 0, False)
        rdB, LB = kstep(BB, 64, False)
        self.emit(rdA[:2] + rdB[:2] + rdA[2:] + rdB[2:])
        a("s_waitcnt lgkmcnt(15)")
        n_pre = 4+4+8+4 + 4+16+4+16
        self.emit(zipmerge(LA[:n_pre], LB[:n_pre]))
        a("s_waitcnt lgkmcnt(0)")
        self.emit(zipmerge(LA[n_pre:], LB[n_pre:]))
        a(f"v_add_u32 v1, 128, v1\ns_cmp_eq_u32 {S_T4}, 0\ns_cbranch_scc0 {lk2}")
        self.arrive_first()
        self.stamp()
        a(f"s_mov_b32 {S_T4}, 1\ns_branch {lk}\n{lk2}:\ns_nop 7")
        self.sub(2)
        a(f"""
        s_lshr_b32 {S_T0}, {S_W}, 1
        s_mul_i32 {S_T0}, {S_T0}, 4224
        s_and_b32 {S_T1}, {S_W}, 1
        s_mul_i32 {S_T1}, {S_T1}, 8448
        s_add_u32 {S_T0}, {S_T0}, {S_T1}
        s_add_u32 {S_T0}, {S_T0}, {L_KD}
        v_mul_u32_u24 v1, 264, v{V_H}
        v_lshl_add_u32 v1, v{V_L16}, 2, v1
        v_add_u32 v1, {S_T0}, v1
        """)
        for T in range(4):
            for r in range(4):
                a(f"ds_write_b32 v1, v{ACC+4*T+r} offset:{1056*T+64*r+4*(r>>1)}")
        a("s_waitcnt vmcnt(0) lgkmcnt(0)\ns_barrier")
        self.sub(3)
        VAL = 8
        for part in range(2):
            for ch in range(2):
                for i in range(9):
                    a(f"ds_read_b32 v{VAL+18*part+9*ch+i}, v{IDX+i} offset:{8448*part + 4224*ch}")
        a(f"""
        v_cmp_ne_u32 vcc, 255, v0
        v_lshlrev_b32 v1, 4, v0
        v_add_u32 v1, {L_KC + 8}, v1
        s_waitcnt lgkmcnt(0)
        """)
        for i in range(18): a(f"v_add_f32 v{VAL+i}, v{VAL+i}, v{VAL+18+i}")
        a(f"v_cndmask_b32 v{VAL+8}, 0, v{VAL+8}, vcc\nv_cndmask_b32 v{VAL+17}, 0, v{VAL+17}, vcc")
        self.sub(4)
        for ch in range(2):
            for m0 in range(2):
                o = 80 + 4*(2*ch+m0)
                s0 = VAL + 9*ch + (1 - m0)
                for p in range(4): a(f"v_cvt_pk_bf16_f32 v{o+p}, v{s0+2*p}, v{s0+2*p+1}")
                a(f"ds_write_b64 v1, {pk(o)} offset:{ch*8448+m0*4224}")
                a(f"ds_write_b64 v1, {pk(o+2)} offset:{ch*8448+m0*4224+8}")
        a(f"""
        v_cmp_gt_u32 vcc, 14, v{V_L16}
        v_mul_u32_u24 v1, 4224, v{V_H}
        v_lshl_add_u32 v1, v{V_L16}, 2, v1
        v_add_u32 v1, {L_KC + 4104}, v1
        v_mov_b32 v2, 0
        s_cmp_eq_u32 {S_W}, 0
        s_cselect_b64 {S_EXS}, vcc, 0
        s_mov_b64 exec, {S_EXS}
        ds_write_b32 v1, v2
        s_mov_b64 exec, -1
        s_waitcnt lgkmcnt(0)
        """)
        self.sub(5)
        a("s_barrier")

    def wfrag_loads(self):
        setup = lines(f"""
        s_lshl_b32 {S_T0}, {S_CG}, 2
        s_add_u32 {S_T0}, {S_T0}, {S_W}
        s_lshl_b32 {S_T0}, {S_T0}, 14
        s_add_u32 {S_DS}, {S_T0}, {WQF}
        v_lshlrev_b32 v18, 4, v{V_LANE}
        """)
        groups = []
        for p in range(3):
            for ks in range(16):
                g = [f"buffer_load_dwordx4 a[{64*p+4*ks}:{64*p+4*ks+3}], v18, {SRD_WS}, {S_DS} offen sc1"]
                g.append(f"s_add_u32 {S_DS}, {S_DS}, {1024 if ks < 15 else (1 << 19) - 15*1024}")
                groups.append(g)
        return setup, groups

    def wsum(self, o=16):
        a = self.a
        for i in range(4): a(f"v_mov_b32 v{o+i}, {S_ONES}")
        for ks in range(16):
            for p in range(3):
                d = v4(o+4+4*p); c = '0' if ks == 0 else d
                w = f"a[{64*p+4*ks}:{64*p+4*ks+3}]"
                if p == 0: a(f"v_mfma_f32_16x16x32_bf16 {d}, {w}, {v4(o)}, {c}")
                else: a(f"v_mfma_f32_16x16x32_bf16 {d}, {v4(o)}, {w}, {c}")
        for i in range(4): a(f"v_mov_b32 v{V_WSQ+i}, v{o+4+i}")
        a(f"v_mov_b32 v{V_WSK}, v{o+8}\nv_mov_b32 v{V_WSV}, v{o+12}")

    CV = dict(XA=10, ST=20, AX=3, AS=4, AU0=5, AU1=6, AK=8, AU=9, ACC=80, X32=200, U32=216)
    def conv_pre(self):
        a = self.a
        a(f"""
        s_lshl_b32 {S_T0}, {S_ID}, 13
        s_add_u32 {S_T0}, {S_T0}, {S_XIN}
        v_lshlrev_b32 v3, 4, v0
        v_add_u32 v3, {S_T0}, v3
        v_lshlrev_b32 v4, 4, v0
        v_add_u32 v4, {S_ST}, v4
        v_lshlrev_b32 v5, 4, v0
        v_add_u32 v5, {L_U + 512}, v5
        v_add_u32 v6, 9280, v5
        v_bfe_u32 v1, v0, 5, 2
        v_mul_u32_u24 v1, 4640, v1
        v_and_b32 v2, 31, v0
        v_lshl_add_u32 v1, v2, 4, v1
        v_add_u32 v1, {L_U}, v1
        v_mov_b32 v36, 0
        v_mov_b32 v37, 0
        v_mov_b32 v38, 0
        v_mov_b32 v39, 0
        v_and_b32 v2, 1, v0
        v_mul_u32_u24 v2, 9280, v2
        v_add_u32 v2, {L_U + 512}, v2
        ds_write_b32 v2, v36
        v_cmp_gt_u32 vcc, 128, v0
        s_and_saveexec_b64 {S_EXS}, vcc
        ds_write_b128 v1, v[36:39]
        s_mov_b64 exec, -1
        s_lshr_b32 {S_T0}, {S_W}, 1
        s_and_b32 {S_T1}, {S_W}, 1
        s_mul_i32 {S_T2}, {S_T0}, 8448
        s_lshl_b32 {S_T3}, {S_T1}, 8
        s_sub_u32 {S_T2}, {S_T2}, {S_T3}
        s_add_u32 {S_T2}, {S_T2}, {L_KC + 4096 - 192 - 3584}
        v_and_b32 v1, 1, v{V_L16}
        v_lshrrev_b32 v7, 1, v{V_L16}
        v_mul_u32_u24 v8, 4224, v1
        v_lshl_add_u32 v8, v{V_H}, 4, v8
        v_lshlrev_b32 v9, 3, v7
        v_sub_u32 v8, v8, v9
        v_add_u32 v8, {S_T2}, v8
        s_mul_i32 {S_T2}, {S_T0}, 9280
        s_sub_u32 {S_T2}, {S_T2}, {S_T3}
        s_add_u32 {S_T2}, {S_T2}, {L_U + 512 - 192}
        v_mul_u32_u24 v9, 4640, v1
        v_lshl_add_u32 v9, v7, 6, v9
        v_lshl_add_u32 v9, v{V_H}, 4, v9
        v_add_u32 v9, {S_T2}, v9
        s_lshl_b32 {S_T1}, {S_T1}, 1
        s_add_u32 {S_T0}, {S_T0}, {S_T1}
        s_mul_i32 {S_T0}, {S_T0}, 9216
        s_add_u32 {S_T0}, {S_T0}, {L_Y}
        v_mul_u32_u24 v2, 144, v7
        v_lshl_add_u32 v2, v{V_H}, 5, v2
        v_lshl_add_u32 v2, v1, 3, v2
        v_add_u32 v2, {S_T0}, v2
        v_lshrrev_b32 v7, 2, v0
        v_lshlrev_b32 v7, 4, v7
        v_lshl_add_u32 v7, v0, 5, v7
        v_add_u32 v7, {L_Y}, v7
        s_waitcnt lgkmcnt(0)
        """)
        for i in (0, 1, 3):
            for q in range(8):
                for hh in range(2):
                    b = {0: 112, 1: 192, 3: 224}[i] + 4*q + 2*hh
                    reg = f"{'v' if i == 0 else 'a'}[{b}:{b+1}]"
                    a(f"ds_read_b64 {reg}, v8 offset:{(3-i)*64 + (7-q)*512 + 8*hh}")

    def conv(self):
        a = self.a
        self.sub(0)
        XA, XB, ST = 10, 14, 20
        for j in range(4):
            a(f"s_mov_b32 {S_T0}, {4096*j}\nbuffer_load_dwordx4 {v4(ST+4*j)}, v4, {SRD_WS}, {S_T0} offen sc1")
        a(f"""
        buffer_load_dwordx4 {v4(XA)}, v3, {SRD_WS}, 0 offen sc1
        v_add_u32 v1, 4096, v3
        buffer_load_dwordx4 {v4(XB)}, v1, {SRD_WS}, 0 offen sc1
        s_mov_b32 s66, {fx(1/512)}
        s_mov_b32 s67, {fx(1e-5)}
        v_mov_b32 v36, s66
        v_mov_b32 v37, s66
        v_mov_b32 v38, s67
        v_mov_b32 v39, s67
        """)
        setup, self.wg = self.wfrag_loads()
        l1 = a.label('CW'); l2 = a.label('CW')
        a(f"s_cmp_eq_u32 {S_LAYER}, 0\ns_cselect_b64 vcc, -1, 0\ns_cbranch_scc0 {l1}")
        self.emit(setup)
        for g in self.wg[:12]: self.emit(g)
        a(f"s_waitcnt vmcnt(14)\ns_branch {l2}\n{l1}:\ns_waitcnt vmcnt(2)\n{l2}:")
        self.sub(1)
        S = lambda i: ST + 2*i
        P  = 40
        MB = 48; VB = 56; R = 64; MR = 72
        for i in range(8): a(f"v_pk_mul_f32 {pk(S(i))}, {pk(S(i))}, v[36:37]")
        for i in range(8): a(f"v_fma_f32 v{S(i)+1}, -v{S(i)}, v{S(i)}, v{S(i)+1}")
        for i in range(8): a(f"v_cvt_pk_bf16_f32 v{P+i}, v{S(i)}, v{S(i)+1}")
        for i in range(8): a(f"v_and_b32 v{VB+i}, 0xffff0000, v{P+i}")
        for i in range(4): a(f"v_pk_add_f32 {pk(VB+2*i)}, {pk(VB+2*i)}, v[38:39]")
        for i in range(8): a(f"v_lshlrev_b32 v{MB+i}, 16, v{P+i}")
        for i in range(4): a(f"v_cvt_pk_bf16_f32 v{P+i}, v{VB+2*i}, v{VB+2*i+1}")
        for i in range(4):
            a(f"v_lshlrev_b32 v{VB+2*i}, 16, v{P+i}\nv_and_b32 v{VB+2*i+1}, 0xffff0000, v{P+i}")
        X32, U32 = 200, 216
        fill = []
        for c, X in enumerate((XA, XB)):
            for p in range(4):
                fill.append(f"v_lshlrev_b32 v{X32+8*c+2*p}, 16, v{X+p}")
                fill.append(f"v_and_b32 v{X32+8*c+2*p+1}, 0xffff0000, v{X+p}")
        for i in range(8): a(f"v_sqrt_f32 v{VB+i}, v{VB+i}")
        for i in range(4): a(f"v_cvt_pk_bf16_f32 v{P+i}, v{VB+2*i}, v{VB+2*i+1}")
        for i in range(4):
            a(f"v_lshlrev_b32 v{VB+2*i}, 16, v{P+i}\nv_and_b32 v{VB+2*i+1}, 0xffff0000, v{P+i}")
        l1 = a.label('CW'); l2 = a.label('CW')
        a(f"s_cbranch_vccz {l1}\ns_waitcnt vmcnt(12)\ns_branch {l2}\n{l1}:\ns_waitcnt vmcnt(0)\n{l2}:")
        self.emit(weave([f"v_rcp_f32 v{R+i}, v{VB+i}" for i in range(8)], fill, per=2))
        for i in range(4): a(f"v_pk_mul_f32 {pk(MR+2*i)}, {pk(MB+2*i)}, {pk(R+2*i)}")
        self.sub(2)
        for c in range(2):
            for p in range(4):
                x = X32+8*c+2*p; u = U32+8*c+2*p
                a(f"v_pk_fma_f32 {pk(u)}, {pk(x)}, {pk(R+2*p)}, {pk(MR+2*p)} neg_lo:[0,0,1] neg_hi:[0,0,1]")
        UP = 40
        for c in range(2):
            for p in range(4):
                u = U32+8*c+2*p
                a(f"v_cvt_pk_bf16_f32 v{UP+4*c+p}, v{u}, v{u+1}")
            ad = 5 + c
            a(f"ds_write_b128 v{ad}, {v4(UP+4*c)} offset:4640")
            a(f"ds_write2_b32 v{ad}, v{UP+4*c}, v{UP+4*c+1} offset0:1 offset1:2")
            a(f"ds_write2_b32 v{ad}, v{UP+4*c+2}, v{UP+4*c+3} offset0:3 offset1:4")
        AK, AU, ACC = 8, 9, 80
        a("s_waitcnt lgkmcnt(0)\ns_barrier")
        self.sub(3)
        ABASE = {0: ('v', 112), 1: ('a', 192), 2: ('v', 40), 3: ('a', 224)}
        def fragA(i, q):
            f, b = ABASE[i]; return f"{f}[{b+4*q}:{b+4*q+3}]"
        BB = [[144+4*q for q in range(8)], [176, 180, 184, 188, 192, 196, 72, 76]]
        def fragB(st, q): return v4(BB[st][q])
        def loadB(i, st): return [f"ds_read_b128 {fragB(st, q)}, v{AU} offset:{(3-i)*64 + 512*q}" for q in range(8)]
        def loadA2():
            L = []
            for q in range(8):
                for hh in range(2):
                    b = 40 + 4*q + 2*hh
                    L.append(f"ds_read_b64 v[{b}:{b+1}], v{AK} offset:{(3-2)*64 + (7-q)*512 + 8*hh}")
            return L
        self.emit(loadB(0, 0))
        def mainloop(groups):
            written = set(); cnt = 0
            for i in range(4):
                st = i & 1
                a("s_waitcnt lgkmcnt(0)")
                nxt = loadB(i+1, st ^ 1) if i < 3 else []
                if i == 0: nxt = nxt + loadA2()
                for sh in range(8):
                    for t in range(sh, 8):
                        c = v4(ACC+4*t) if t in written else '0'
                        written.add(t)
                        a(f"v_mfma_f32_16x16x32_bf16 {v4(ACC+4*t)}, {fragA(i, sh)}, {fragB(st, t-sh)}, {c}")
                        cnt += 1
                        if nxt: a(nxt.pop(0))
                        if groups and cnt % 20 == 10:
                            lg = a.label('WG')
                            a(f"s_cbranch_vccz {lg}")
                            for _ in range(4): self.emit(groups.pop(0))
                            a(f"{lg}:")
            assert not groups
        mainloop(self.wg[12:36])
        lb = a.label('WB')
        a(f"s_cbranch_vccz {lb}")
        for g in self.wg[36:]: self.emit(g)
        a(f"{lb}:")
        self.sub(4)
        for t in range(8):
            a(f"ds_write_b64 v2, {pk(ACC+4*t)} offset:{1152*t}")
            a(f"ds_write_b64 v2, {pk(ACC+4*t+2)} offset:{1152*t+16}")
        a("s_waitcnt lgkmcnt(0)\ns_barrier")
        self.sub(5)
        Y0 = 112
        for ch in range(2):
            for sh in range(2):
                for hh in range(2):
                    b = Y0 + 16*sh + 8*ch + 4*hh
                    a(f"ds_read_b128 {v4(b)}, v7 offset:{sh*18432 + ch*9216 + 16*hh}")
        a(f"""
        v_subrev_u32 v3, {S_XIN}, v3
        v_add_u32 v3, {S_XOUT}, v3
        v_add_u32 v1, 4096, v3
        """)
        for ch in range(2):
            a(f"s_waitcnt lgkmcnt({4*(1-ch)})")
            D = V_DSK0 if ch == 0 else V_DSK1
            for p in range(4):
                y = Y0 + 8*ch + 2*p
                a(f"v_pk_add_f32 {pk(y)}, {pk(y)}, {pk(y+16)}")
            for p in range(4):
                y = Y0 + 8*ch + 2*p; u = U32 + 8*ch + 2*p
                a(f"v_pk_fma_f32 {pk(y)}, {pk(u)}, {pk(D)}, {pk(y)} op_sel_hi:[1,0,1]")
            for p in range(4):
                y = Y0 + 8*ch + 2*p; x = X32 + 8*ch + 2*p
                a(f"v_pk_add_f32 {pk(y)}, {pk(y)}, {pk(x)}")
            for p in range(4):
                y = Y0 + 8*ch + 2*p
                a(f"v_cvt_pk_bf16_f32 v{80+4*ch+p}, v{y}, v{y+1}")
            a(f"buffer_store_dwordx4 {v4(80+4*ch)}, v{3 if ch == 0 else 1}, {SRD_WS}, 0 offen sc1")
        self.sub(6)
        self.subflush(0, 7)

    def wstage_kv(self):
        a = self.a
        l = a.label('WS')
        a(f"s_cmp_eq_u32 {S_LAYER}, 0\ns_cbranch_scc0 {l}")
        self.wsum()
        a(f"{l}:")

    def qkv_pre(self):
        a = self.a
        t = 10
        a(f"""
        v_lshrrev_b32 v{t}, 3, v{V_LANE}
        v_lshlrev_b32 v{t}, 12, v{t}
        v_bfe_u32 v{t+1}, v{V_LANE}, 1, 2
        v_bfe_u32 v{t+2}, v{V_LANE}, 4, 1
        s_and_b32 {S_T0}, {S_W}, 1
        s_lshl_b32 {S_T0}, {S_T0}, 1
        v_or_b32 v{t+2}, {S_T0}, v{t+2}
        v_xor_b32 v{t+1}, v{t+1}, v{t+2}
        v_lshl_add_u32 v{t}, v{t+1}, 5, v{t}
        v_and_b32 v{t+1}, 1, v{V_LANE}
        v_lshl_add_u32 v{t}, v{t+1}, 4, v{t}
        s_lshl_b32 {S_T0}, {S_RT}, 7
        v_add_u32 v{t}, {S_T0}, v{t}
        s_lshl_b32 {S_DS}, {S_W}, 15
        s_add_u32 {S_DS}, {S_DS}, {S_XIN}
        s_lshl_b32 {S_DM}, {S_W}, 10
        s_add_u32 {S_DM}, {S_DM}, {L_XL}
        """)
        t = 12
        a(f"""
        v_lshrrev_b32 v{t}, 2, v{V_L16}
        v_lshl_add_u32 v{t+1}, v{V_H}, 3, v{t}
        v_lshlrev_b32 v{t+1}, 7, v{t+1}
        v_and_b32 v{t+2}, 3, v{V_L16}
        v_lshl_add_u32 v{t+1}, v{t+2}, 3, v{t+1}
        v_add_u32 v{t+1}, {L_XL}, v{t+1}
        v_lshrrev_b32 v{t}, 1, v{t}
        v_and_b32 v{t+2}, 1, v{V_H}
        v_lshl_or_b32 v{t}, v{t+2}, 1, v{t}
        v_xor_b32 v{t}, {S_W}, v{t}
        """)
        for j in range(4):
            a(f"v_xor_b32 v{t+2}, {j}, v{t}\nv_lshl_add_u32 v{4+j}, v{t+2}, 5, v{t+1}")
        for i in range(4): a(f"v_mov_b32 v{104+i}, {S_ONES}")
        a(f"""
        s_mov_b32 s66, {fx(1e-6)}
        s_mov_b32 s67, {fx(LOG2E)}
        v_mov_b32 v112, s66
        v_mov_b32 v113, s66
        v_mov_b32 v114, s67
        v_mov_b32 v115, s67
        """)

    def qkv(self):
        a = self.a
        self.sub(0)
        def dma():
            return lines(f"""
            s_mov_b32 m0, {S_DM}
            s_add_u32 {S_DM}, {S_DM}, 4096
            buffer_load_dwordx4 v10, {SRD_WS}, {S_DS} offen sc1 lds
            s_add_u32 {S_DS}, {S_DS}, {4*32768}
            """)
        NUPF = int(os.environ.get('NUPF', '12'))
        for i in range(NUPF): self.emit(dma())
        AD = 4
        AK_, AV_, AQ_ = 16, 32, 48
        DS, DG = 64, 68
        ONES = 104
        XF = [72, 88]
        def xload(ks, st):
            L = []
            for j in range(4):
                b = XF[st] + 4*j
                L.append(f"ds_read_b64_tr_b16 {pk(b)}, v{AD+j} offset:{ks*4096}")
                L.append(f"ds_read_b64_tr_b16 {pk(b+2)}, v{AD+j} offset:{ks*4096+512}")
            return L
        S_WDS, S_WDM = 's84', 's85'
        a(f"""
        s_lshl_b32 {S_WDS}, {S_CG}, 16
        s_lshl_b32 {S_T0}, {S_W}, 14
        s_add_u32 {S_WDS}, {S_WDS}, {S_T0}
        s_add_u32 {S_WDS}, {S_WDS}, {WOFG}
        s_add_u32 {S_WDM}, {S_T0}, {L_WO}
        v_lshlrev_b32 v111, 4, v{V_LANE}
        """)
        def wo_group():
            lg = a.label('WOG')
            a(f"s_cmp_eq_u32 {S_LAYER}, 0\ns_cbranch_scc0 {lg}")
            for _ in range(4):
                a(f"""
                s_mov_b32 m0, {S_WDM}
                s_add_u32 {S_WDM}, {S_WDM}, 1024
                buffer_load_dwordx4 v111, {SRD_WS}, {S_WDS} offen sc1 lds
                s_add_u32 {S_WDS}, {S_WDS}, 1024
                """)
            a(f"{lg}:")
        SF = [200, 208]
        S = {0: [0], 1: [1, 2], 2: [3, 4], 3: [5, 6], 4: [7, 8], 5: [9, 10], 6: [11, 12], 7: [13, 14], 8: [15]}
        def sload(ks, st):
            L = []
            for n, kss in enumerate(S.get(ks, [])):
                b = SF[st] + 4*n
                L.append(f"ds_read_b64_tr_b16 {pk(b)}, v{AD} offset:{kss*4096}")
                L.append(f"ds_read_b64_tr_b16 {pk(b+2)}, v{AD} offset:{kss*4096+512}")
            return L
        ndma = [NUPF]
        landed = [-1]
        def need(idx):
            if idx <= landed[0]: return []
            landed[0] = idx
            return [f"s_waitcnt vmcnt({ndma[0] - 1 - idx})", "s_barrier"]
        waits = {0: 2, 1: 4, 2: 8, 4: 12, 6: 15}
        self.emit(need(1))
        self.sub(1)
        self.emit(xload(0, 0) + sload(0, 0))
        self.P1 = {}
        fillers = {}
        def pass1(ks, extra):
            st = ks & 1
            a("s_waitcnt lgkmcnt(0)")
            if ks in waits: self.emit(need(waits[ks]))
            fill = (xload(ks+1, st ^ 1) + sload(ks+1, st ^ 1)) if ks + 1 < 16 else xload(0, st ^ 1)
            M = []
            for j in range(4):
                x = v4(XF[st]+4*j)
                ck = '0' if ks == 0 else v4(AK_+4*j); cv = '0' if ks == 0 else v4(AV_+4*j)
                M.append(f"v_mfma_f32_16x16x32_bf16 {v4(AK_+4*j)}, {x}, a[{64+4*ks}:{64+4*ks+3}], {ck}")
                M.append(f"v_mfma_f32_16x16x32_bf16 {v4(AV_+4*j)}, {x}, a[{128+4*ks}:{128+4*ks+3}], {cv}")
                if ks >= 8:
                    M.append(f"v_mfma_f32_16x16x32_bf16 {v4(AQ_+4*j)}, a[{4*ks}:{4*ks+3}], {x}, {'0' if ks == 8 else v4(AQ_+4*j)}")
            for n, kss in enumerate(S.get(ks, [])):
                x0 = v4(SF[st] + 4*n)
                M.append(f"v_mfma_f32_16x16x32_bf16 {v4(DS)}, {v4(ONES)}, {x0}, {'0' if kss == 0 else v4(DS)}")
                M.append(f"v_mfma_f32_16x16x32_bf16 {v4(DG)}, {x0}, {x0}, {'0' if kss == 0 else v4(DG)}")
            k = min(2, 16 - ndma[0])
            for _ in range(k): fill = fill + dma()
            ndma[0] += k
            out = []; fi = list(fill); ex = list(extra)
            for mi, m in enumerate(M):
                out.append(m)
                n = 2
                while n > 0 and fi: out.append(fi.pop(0)); n -= 1
                while n > 0 and ex: out.append(ex.pop(0)); n -= 1
            out += fi
            self.emit(out)
            return ex
        self._pass1 = pass1
        SQ = 109
        F1 = lines(f"""
        v_and_b32 v8, 3, v{V_L16}
        v_lshrrev_b32 v9, 2, v{V_L16}
        v_cmp_eq_u32 s[66:67], 1, v8
        v_cmp_eq_u32 s[68:69], 2, v8
        v_cmp_eq_u32 vcc, 3, v8
        v_cndmask_b32 v{SQ}, v{DG}, v{DG+1}, s[66:67]
        v_cndmask_b32 v{SQ}, v{SQ}, v{DG+2}, s[68:69]
        v_cndmask_b32 v{SQ}, v{SQ}, v{DG+3}, vcc
        v_cmp_eq_u32 vcc, v9, v{V_H}
        s_lshl_b32 {S_T0}, {S_W}, 6
        s_add_u32 {S_T0}, {S_T0}, {L_S2R}
        v_cndmask_b32 v{SQ}, 0, v{SQ}, vcc
        v_lshlrev_b32 v8, 2, v{V_L16}
        v_add_u32 v9, {S_T0}, v8
        """)
        F1 += self.reduce_h(SQ, 110)
        F1 += self.ln_final1(DS, SQ, 116, 117, 118)
        F1 += lines(f"""
        ds_write_b32 v9, v116
        ds_write_b32 v9, v117 offset:{L_S2M-L_S2R}
        v_lshlrev_b32 v8, 4, v{V_H}
        v_add_u32 v8, {S_T0}, v8
        """)
        R4, M4 = 128, 144
        RQ, MQ = 160, 208
        F2 = []
        for j in range(4):
            F2.append(f"v_xor_b32 v{120+j}, {64*j}, v8")
            F2.append(f"v_xor_b32 v{124+j}, {64*j}, v9")
        for j in range(4):
            F2.append(f"ds_read_b128 {v4(R4+4*j)}, v{120+j}")
            F2.append(f"ds_read_b128 {v4(M4+4*j)}, v{120+j} offset:{L_S2M-L_S2R}")
        for j in range(4):
            F2.append(f"ds_read_b32 v{RQ+2*j}, v{124+j}")
            F2.append(f"ds_read_b32 v{MQ+2*j}, v{124+j} offset:{L_S2M-L_S2R}")
        EPS, L2E = 112, 114
        def phi(x, T):
            return [f"v_pk_mul_f32 {pk(T)}, {pk(x)}, {pk(L2E)}",
                    f"v_exp_f32_e64 v{T}, v{T} clamp", f"v_exp_f32_e64 v{T+1}, v{T+1} clamp",
                    f"v_max_f32 v{x}, v{EPS}, v{x}", f"v_max_f32 v{x+1}, v{EPS}, v{x+1}",
                    f"v_pk_add_f32 {pk(x)}, {pk(x)}, {pk(T)}"]
        PKF, VF, PQF = 168, 176, 200
        DKV, DZ = 196, 216
        def kv_chain(j, h2, T):
            k = AK_+4*j+h2; vv = AV_+4*j+h2; r = R4+4*j+h2; m = M4+4*j+h2
            c = [f"v_pk_fma_f32 {pk(T)}, {pk(m)}, v[{V_WSK}:{V_WSK+1}], {pk(EPS)} op_sel_hi:[1,0,1] neg_lo:[0,0,1] neg_hi:[0,0,1]",
                 f"v_pk_mul_f32 {pk(T+4)}, {pk(m)}, v[{V_WSV}:{V_WSV+1}] op_sel_hi:[1,0]",
                 f"v_pk_fma_f32 {pk(k)}, {pk(k)}, {pk(r)}, {pk(T)} neg_lo:[0,0,1] neg_hi:[0,0,1]",
                 f"v_pk_fma_f32 {pk(vv)}, {pk(vv)}, {pk(r)}, {pk(T+4)} neg_lo:[0,0,1] neg_hi:[0,0,1]"]
            ph = phi(k, T+2)
            c += [ph[0], f"v_cvt_pk_bf16_f32 v{VF + 2*j + h2//2}, v{vv}, v{vv+1}"] + ph[1:]
            c.append(f"v_cvt_pk_bf16_f32 v{PKF + 2*j + h2//2}, v{k}, v{k+1}")
            return c
        def q_chain(j, h2, T):
            q = AQ_+4*j+h2
            c = [f"v_pk_fma_f32 {pk(T)}, {pk(MQ+2*j)}, {pk(V_WSQ+h2)}, {pk(EPS)} op_sel_hi:[0,1,1] neg_lo:[0,0,1] neg_hi:[0,0,1]",
                 f"v_pk_fma_f32 {pk(q)}, {pk(q)}, {pk(RQ+2*j)}, {pk(T)} op_sel_hi:[1,0,1] neg_lo:[0,0,1] neg_hi:[0,0,1]"]
            c += phi(q, T+2)
            c.append(f"v_cvt_pk_bf16_f32 v{PQF + 2*j + h2//2}, v{q}, v{q+1}")
            return c
        adr = lines(f"""
        s_lshl_b32 {S_T0}, {S_CG}, 2
        s_add_u32 {S_T0}, {S_T0}, {S_W}
        s_lshl_b32 {S_T1}, {S_T0}, 10
        s_add_u32 {S_T1}, {S_T1}, {S_KV}
        v_lshlrev_b32 v11, 2, v{V_LANE}
        v_add_u32 v14, {S_T1}, v11
        s_lshl_b32 {S_T1}, {S_T0}, 6
        s_add_u32 {S_T1}, {S_T1}, {S_Z}
        v_add_u32 v15, {S_T1}, v11
        s_lshl_b32 {S_T1}, {S_RT}, 16
        s_add_u32 {S_T1}, {S_T1}, {S_PQ}
        s_lshl_b32 {S_T2}, {S_T0}, 10
        s_add_u32 {S_T1}, {S_T1}, {S_T2}
        s_and_b32 {S_T2}, {S_W}, 1
        s_lshl_b32 {S_T2}, {S_T2}, 4
        v_xor_b32 v11, {S_T2}, v{V_LANE}
        v_lshlrev_b32 v11, 4, v11
        v_add_u32 v11, {S_T1}, v11
        s_lshr_b32 {S_T2}, {S_W}, 1
        s_lshl_b32 {S_T2}, {S_T2}, 15
        v_add_u32 v12, {S_T2}, v11
        s_xor_b32 {S_T2}, {S_T2}, 0x8000
        v_add_u32 v13, {S_T2}, v11
        """)
        def passQ(ks_range):
            for ks in ks_range:
                st = ks & 1
                nx = xload(ks+1, st ^ 1) if ks + 1 < 8 else []
                a("s_waitcnt lgkmcnt(0)")
                for j in range(4):
                    x = v4(XF[st]+4*j)
                    a(f"v_mfma_f32_16x16x32_bf16 {v4(AQ_+4*j)}, a[{4*ks}:{4*ks+3}], {x}, {v4(AQ_+4*j)}")
                    k = 4 if j < 2 else 0
                    for _ in range(k):
                        if nx: a(nx.pop(0))
        for ks in range(0, 9):
            pass1(ks, [])
            if ks == 3: self.sub(2)
        self.sub(3)
        ex = list(F1)
        for ks in range(9, 12): ex = pass1(ks, ex)
        self.emit(ex)
        a("s_waitcnt lgkmcnt(0)\ns_barrier")
        self.sub(4)
        ex = list(F2) + adr
        for ks in range(12, 16):
            ex = pass1(ks, ex)
            if ks == 12: wo_group()
        self.emit(ex)
        wo_group()
        a("s_waitcnt lgkmcnt(0)")
        self.sub(5)
        TT = [184, 190, 220, 226]
        for j0 in (0, 2):
            self.emit(zipmerge(kv_chain(j0, 0, TT[0]), kv_chain(j0, 2, TT[1]), kv_chain(j0+1, 0, TT[2]), kv_chain(j0+1, 2, TT[3])))
            u = j0 // 2
            c1 = '0' if u == 0 else v4(DKV); c2 = '0' if u == 0 else v4(DZ)
            a(f"v_mfma_f32_16x16x32_bf16 {v4(DKV)}, {v4(VF+4*u)}, {v4(PKF+4*u)}, {c1}")
            a(f"v_mfma_f32_16x16x32_bf16 {v4(DZ)}, {v4(ONES)}, {v4(PKF+4*u)}, {c2}")
        for i in range(4):
            a(f"buffer_atomic_add_f32 v{DKV+i}, v14, {SRD_WS}, 0 offen offset:{256*i}")
        a(f"""
        s_mov_b64 exec, 0xffff
        buffer_atomic_add_f32 v{DZ}, v15, {SRD_WS}, 0 offen
        s_mov_b64 exec, -1
        """)
        wo_group()
        passQ(range(0, 4))
        wo_group()
        passQ(range(4, 8))
        TQ = [184, 188, 220, 224]
        for u in range(2):
            j0 = 2*u
            self.emit(zipmerge(q_chain(j0, 0, TQ[0]), q_chain(j0, 2, TQ[1]), q_chain(j0+1, 0, TQ[2]), q_chain(j0+1, 2, TQ[3])))
            b = PQF + 4*u
            a(f"v_permlane16_swap_b32 v{b}, v{b+2}\nv_permlane16_swap_b32 v{b+1}, v{b+3}")
            a(f"buffer_store_dwordx4 {v4(b)}, v{12+u}, {SRD_WS}, 0 offen sc1")
        self.sub(6)
        self.subflush(1, 7)

    def outp_pre(self):
        a = self.a
        a(f"""
        s_lshl_b32 {S_T0}, {S_W}, 13
        s_add_u32 {S_T0}, {S_T0}, {S_KV}
        v_lshlrev_b32 v4, 4, v{V_LANE}
        v_add_u32 v4, {S_T0}, v4
        v_add_u32 v5, 4096, v4
        s_lshl_b32 {S_T0}, {S_W}, 9
        s_add_u32 {S_T0}, {S_T0}, {S_Z}
        v_and_b32 v6, 31, v{V_LANE}
        v_lshlrev_b32 v6, 4, v6
        v_add_u32 v6, {S_T0}, v6
        s_and_b32 {S_T0}, {S_W}, 1
        s_lshl_b32 {S_T0}, {S_T0}, 15
        s_lshr_b32 {S_T1}, {S_W}, 1
        s_lshl_b32 {S_T1}, {S_T1}, 14
        s_add_u32 {S_T0}, {S_T0}, {S_T1}
        s_lshl_b32 {S_T1}, {S_RT}, 16
        s_add_u32 {S_T0}, {S_T0}, {S_T1}
        s_add_u32 {S_DS}, {S_T0}, {S_PQ}
        v_lshlrev_b32 v7, 4, v{V_LANE}
        v_lshrrev_b32 v1, 3, v0
        v_and_b32 v3, 7, v0
        s_lshl_b32 {S_T0}, {S_CG}, 18
        s_lshl_b32 {S_T1}, {S_RT}, 7
        s_add_u32 {S_T0}, {S_T0}, {S_T1}
        v_lshlrev_b32 v8, 12, v1
        v_lshl_add_u32 v8, v3, 4, v8
        v_add_u32 v8, {S_T0}, v8
        v_add_u32 v9, {S_XIN}, v8
        v_add_u32 v2, 0x20000, v9
        v_lshrrev_b32 v10, 4, v{V_LANE}
        v_bfe_u32 v11, v{V_LANE}, 2, 2
        v_lshl_add_u32 v10, v11, 2, v10
        v_bfe_u32 v11, v{V_LANE}, 1, 1
        v_lshl_add_u32 v10, v11, 4, v10
        v_lshlrev_b32 v10, 4, v10
        v_and_b32 v11, 1, v{V_LANE}
        v_lshl_add_u32 v10, v11, 3, v10
        s_mul_i32 {S_T0}, {S_W}, {8*544}
        s_add_u32 {S_T0}, {S_T0}, {L_KVF}
        v_add_u32 v10, {S_T0}, v10
        v_bfe_u32 v11, v{V_LANE}, 2, 3
        v_mul_u32_u24 v11, 544, v11
        v_and_b32 v12, 3, v{V_LANE}
        v_lshl_add_u32 v11, v12, 3, v11
        v_add_u32 v11, {S_T0}, v11
        v_and_b32 v12, 31, v{V_LANE}
        v_lshrrev_b32 v13, 5, v{V_LANE}
        v_lshlrev_b32 v14, 4, v13
        v_add_u32 v15, v14, v12
        v_lshlrev_b32 v15, 4, v15
        v_lshlrev_b32 v14, 4, v13
        v_add_u32 v14, 512, v14
        v_cmp_gt_u32 vcc, 16, v12
        v_cndmask_b32 v15, v14, v15, vcc
        s_lshr_b32 {S_T0}, {S_W}, 1
        s_mul_i32 {S_T1}, {S_T0}, {16*544}
        s_add_u32 {S_T1}, {S_T1}, {L_KVF}
        v_add_u32 v15, {S_T1}, v15
        v_lshrrev_b32 v16, 2, v{V_L16}
        v_lshrrev_b32 v17, 1, v{V_H}
        v_lshl_add_u32 v17, v17, 2, v16
        v_lshlrev_b32 v17, 7, v17
        v_and_b32 v18, 3, v{V_L16}
        v_lshl_add_u32 v17, v18, 3, v17
        s_lshl_b32 {S_T1}, {S_T0}, 15
        s_add_u32 {S_T1}, {S_T1}, {L_WO}
        v_add_u32 v17, {S_T1}, v17
        v_and_b32 v18, 2, v16
        v_and_b32 v19, 1, v{V_H}
        v_xor_b32 v18, v18, v19
        v_lshl_add_u32 v13, v18, 5, v17
        v_xor_b32 v18, 2, v18
        v_lshl_add_u32 v14, v18, 5, v17
        s_mul_i32 {S_T1}, {S_T0}, {64*272}
        s_and_b32 {S_T0}, {S_W}, 1
        s_lshl_b32 {S_T0}, {S_T0}, 7
        s_add_u32 {S_T1}, {S_T1}, {S_T0}
        s_add_u32 {S_T1}, {S_T1}, {L_O32}
        v_mul_u32_u24 v16, 272, v12
        v_lshrrev_b32 v17, 5, v{V_LANE}
        v_lshl_add_u32 v16, v17, 4, v16
        v_add_u32 v16, {S_T1}, v16
        v_mul_u32_u24 v17, 272, v1
        v_lshl_add_u32 v17, v3, 5, v17
        v_add_u32 v17, {L_O32}, v17
        v_mul_u32_u24 v18, 144, v1
        v_lshl_add_u32 v18, v3, 4, v18
        v_add_u32 v18, {L_OT}, v18
        """)
        a(f"""
        s_lshr_b32 {S_T0}, {S_W}, 1
        s_lshl_b32 {S_T0}, {S_T0}, 15
        s_add_u32 {S_T0}, {S_T0}, {L_WO}
        v_lshlrev_b32 v13, 4, v{V_LANE}
        v_add_u32 v13, {S_T0}, v13
        """)
        for i in range(16):
            for c in range(2):
                a(f"ds_read_b128 {v4(WOF + 8*i + 4*c)}, v13 offset:{i*2048 + c*1024}")

    def outp(self):
        a = self.a
        self.sub(0)
        KVL = 24
        issued = []
        def ld(txt, tag): a(txt); issued.append(tag)
        for p in range(8):
            ad = 4 if p < 4 else 5; off = (p & 3)*1024
            ld(f"buffer_load_dwordx4 {v4(KVL+4*p)}, v{ad}, {SRD_WS}, 0 offen offset:{off} sc1", 'kv')
        ld(f"buffer_load_dwordx4 v[56:59], v6, {SRD_WS}, 0 offen sc1", 'kv')
        def pqload(i):
            ld(f"buffer_load_dwordx4 a[{192+4*i}:{192+4*i+3}], v7, {SRD_WS}, {S_DS} offen sc1", f'pq{i}')
            a(f"s_add_u32 {S_DS}, {S_DS}, 1024")
        NUP = 4
        for i in range(NUP): pqload(i)
        def vm(tag):
            idx = max(i for i, t in enumerate(issued) if t == tag)
            return len(issued) - 1 - idx
        self.sub(1)
        a(f"s_waitcnt vmcnt({vm('kv')})")
        self.sub(2)
        for p in range(8):
            b = KVL + 4*p
            a(f"v_cvt_pk_bf16_f32 v{b}, v{b}, v{b+1}\nv_cvt_pk_bf16_f32 v{b+1}, v{b+2}, v{b+3}")
            a(f"ds_write_b64 v10, {pk(b)} offset:{p*544}")
        a("v_cvt_pk_bf16_f32 v56, v56, v57\nv_cvt_pk_bf16_f32 v57, v58, v59")
        a(f"ds_write_b64 v11, v[56:57] offset:512")
        AKV = 15
        ACC = [72, 88]
        D1 = [32, 48]; KF = [20, 24, 28]; OF = [64, 68]
        XR = WOF
        for i in range(NUP, 10): pqload(i)
        a("s_waitcnt lgkmcnt(0)\ns_barrier")
        self.sub(3)
        def acc(c): return f"v[{ACC[c]}:{ACC[c]+15}]"
        def rdK(i): return [f"ds_read_b128 {v4(KF[i % 3])}, v{AKV} offset:{i*544}"]
        def m1(i): return f"v_mfma_f32_32x32x16_bf16 v[{D1[i&1]}:{D1[i&1]+15}], {v4(KF[i % 3])}, a[{192+4*i}:{192+4*i+3}], 0"
        def valu(i):
            d = D1[i & 1]; o = OF[i & 1]
            L = [f"v_add_f32 v{d+8}, {fx(1e-6)}, v{d+8}", f"v_rcp_f32 v{d+8}, v{d+8}"]
            L += [f"v_mul_f32 v{d+p}, v{d+p}, v{d+8}" for p in range(8)]
            L += [f"v_cvt_pk_bf16_f32 v{o+p}, v{d+2*p}, v{d+2*p+1}" for p in range(4)]
            return L
        def mo(i, c):
            b = WOF + 8*i + 4*c
            return f"v_mfma_f32_32x32x16_bf16 {acc(c)}, {v4(OF[i&1])}, {v4(b)}, {'0' if i == 0 else acc(c)}"
        self.emit(rdK(0) + rdK(1) + rdK(2))
        a(f"s_waitcnt vmcnt({vm('pq0')}) lgkmcnt(2)")
        a(m1(0))
        a(f"s_waitcnt vmcnt({vm('pq1')}) lgkmcnt(1)")
        a(m1(1))
        self.emit(valu(0))
        nxt = 10
        for i in range(16):
            V = valu(i+1) if i + 1 < 16 else []
            K_ = rdK(i+3) if i + 3 < 16 else []
            if i + 2 < 16: a(f"s_waitcnt vmcnt({vm(f'pq{i+2}')}) lgkmcnt(0)")
            a(mo(i, 0))
            self.emit(V[:2] + K_ + V[2:4])
            if i + 2 < 16: a(m1(i+2))
            self.emit(V[4:10])
            a(mo(i, 1))
            self.emit(V[10:])
            if nxt < 16:
                pqload(nxt); nxt += 1
            if i == 6:
                ld(f"buffer_load_dwordx4 {v4(XR)}, v9, {SRD_WS}, 0 offen sc1", 'x')
                ld(f"buffer_load_dwordx4 {v4(XR+4)}, v2, {SRD_WS}, 0 offen sc1", 'x')
        self.sub(4)
        for c in range(2):
            for aa in range(4):
                a(f"ds_write_b128 v16, {v4(ACC[c]+4*aa)} offset:{c*32*272 + 32*aa}")
        a("s_waitcnt lgkmcnt(0)\ns_barrier")
        Y = 32
        for i in range(2):
            for part in range(2):
                for hh in range(2):
                    a(f"ds_read_b128 {v4(Y+16*i+8*part+4*hh)}, v17 offset:{i*32*272 + part*64*272 + 16*hh}")
        a("s_waitcnt vmcnt(0)")
        self.sub(5)
        lf = a.label('FIN'); le = a.label('OE'); lx = a.label('OX')
        a(f"v_add_u32 v8, {S_XOUT}, v8\nv_add_u32 v9, 0x20000, v8")
        for i in range(2):
            a(f"s_waitcnt lgkmcnt({4*(1-i)})")
            y = Y + 16*i; x = XR + 4*i; t = 132 + 8*i
            for p in range(4): a(f"v_pk_add_f32 {pk(y+2*p)}, {pk(y+2*p)}, {pk(y+8+2*p)}")
            for p in range(4): a(f"v_cvt_pk_bf16_f32 v{y+8+p}, v{y+2*p}, v{y+2*p+1}")
            for p in range(4):
                a(f"v_lshlrev_b32 v{y+2*p}, 16, v{y+8+p}\nv_and_b32 v{y+2*p+1}, 0xffff0000, v{y+8+p}")
                a(f"v_lshlrev_b32 v{t+2*p}, 16, v{x+p}\nv_and_b32 v{t+2*p+1}, 0xffff0000, v{x+p}")
            for p in range(4): a(f"v_pk_add_f32 {pk(y+2*p)}, {pk(y+2*p)}, {pk(t+2*p)}")
            for p in range(4): a(f"v_cvt_pk_bf16_f32 v{160+4*i+p}, v{y+2*p}, v{y+2*p+1}")
            a(f"ds_write_b128 v18, {v4(160+4*i)} offset:{i*32*144}")
        a(f"""
        s_cmp_eq_u32 {S_LAYER}, 0
        s_cbranch_scc0 {lf}
        buffer_store_dwordx4 v[160:163], v8, {SRD_WS}, 0 offen sc1
        buffer_store_dwordx4 v[164:167], v9, {SRD_WS}, 0 offen sc1
        {lf}:
        v_lshrrev_b32 v10, 2, v{V_L16}
        v_lshl_add_u32 v10, v{V_H}, 3, v10
        v_mul_u32_u24 v10, 144, v10
        v_and_b32 v11, 3, v{V_L16}
        v_lshl_add_u32 v10, v11, 3, v10
        s_lshl_b32 {S_T0}, {S_W}, 5
        s_add_u32 {S_T0}, {S_T0}, {L_OT}
        v_add_u32 v10, {S_T0}, v10
        s_waitcnt lgkmcnt(0)
        s_barrier
        ds_read_b64_tr_b16 v[104:105], v10
        ds_read_b64_tr_b16 v[106:107], v10 offset:{4*144}
        ds_read_b64_tr_b16 v[108:109], v10 offset:{32*144}
        ds_read_b64_tr_b16 v[110:111], v10 offset:{36*144}
        s_cmp_eq_u32 {S_LAYER}, 0
        s_cbranch_scc0 {le}
        s_lshl_b32 {S_T0}, {S_RT}, 7
        s_lshl_b32 {S_T1}, {S_W}, 5
        s_add_u32 {S_T0}, {S_T0}, {S_T1}
        s_add_u32 {S_T0}, {S_T0}, {ST3}
        v_bfe_u32 v11, v{V_L16}, 1, 2
        v_lshlrev_b32 v11, 12, v11
        v_lshrrev_b32 v12, 3, v{V_L16}
        v_lshl_add_u32 v11, v12, 4, v11
        v_and_b32 v12, 1, v{V_L16}
        v_lshl_add_u32 v11, v12, 3, v11
        v_lshl_add_u32 v11, v{V_H}, 2, v11
        v_add_u32 v11, {S_T0}, v11
        v_mov_b32 v112, 0
        v_mov_b32 v113, 0
        v_mov_b32 v114, 0
        v_mov_b32 v115, 0
        s_waitcnt lgkmcnt(0)
        """)
        for j in range(4):
            a(f"v_dot2_f32_bf16 v112, v{104+j}, {S_ONES}, v112")
            a(f"v_dot2_f32_bf16 v113, v{104+j}, v{104+j}, v113")
            a(f"v_dot2_f32_bf16 v114, v{108+j}, {S_ONES}, v114")
            a(f"v_dot2_f32_bf16 v115, v{108+j}, v{108+j}, v115")
        a("v_pk_add_f32 v[112:113], v[112:113], v[114:115]")
        self.emit(zipmerge(self.reduce_h(112, 116), self.reduce_h(113, 117)))
        a(f"""
        v_cmp_eq_u32 vcc, 0, v{V_H}
        v_cndmask_b32 v112, v113, v112, vcc
        s_mov_b64 exec, 0xffffffff
        buffer_atomic_add_f32 v112, v11, {SRD_WS}, 0 offen
        s_mov_b64 exec, -1
        s_branch {lx}
        {le}:
        s_lshl_b32 {S_T0}, {S_RT}, 16
        s_lshl_b32 {S_T1}, {S_W}, 14
        s_add_u32 {S_T0}, {S_T0}, {S_T1}
        s_lshl_b32 {S_T1}, {S_CG}, 7
        s_add_u32 {S_T0}, {S_T0}, {S_T1}
        v_lshlrev_b32 v11, 10, v{V_L16}
        v_lshl_add_u32 v11, v{V_H}, 4, v11
        v_add_u32 v11, {S_T0}, v11
        s_waitcnt lgkmcnt(0)
        buffer_store_dwordx4 v[104:107], v11, {SRD_OUT}, 0 offen {OUTF}
        buffer_store_dwordx4 v[108:111], v11, {SRD_OUT}, 0 offen offset:64 {OUTF}
        {lx}:
        """)
        self.sub(6)
        self.subflush(2, 7)

    def build(self):
        a = self.a
        self.prologue()
        if self.ts: a(f"v_mov_b32 v{V_TS}, 0\nv_mov_b32 v{V_TS2}, 0")
        self.stamp()
        self.p0()
        stop = self.stop
        if stop == 'p0':
            self.wait(); a("s_branch L_END")
        a("L_LAYER:")
        for reg, (x0, x1) in ((S_XIN, (XT[0], XT[2])), (S_XOUT, (XT[1], XT[3])), (S_ST, (ST1, ST3)), (S_PQ, PQ), (S_KV, KVM), (S_Z, ZZ)):
            a(f"s_mul_i32 {reg}, {S_LAYER}, {(x1 - x0) & 0xffffffff:#x}")
            a(f"s_add_u32 {reg}, {reg}, {x0:#x}")
        self.conv_pre()
        self.wait(l0skip=True, sleep0=int(os.environ.get('SL_C', '16'))); self.stamp()
        self.conv(); self.stamp()
        self.arrive(); self.stamp()
        if stop == 'conv1':
            self.wait(); a("s_branch L_END")
        a(f"s_mov_b32 {S_XIN}, {S_XOUT}")
        self.wstage_kv()
        self.qkv_pre()
        self.wait(l0skip=True, sleep0=int(os.environ.get('SL_Q', '12'))); self.stamp()
        self.qkv(); self.stamp()
        self.arrive(); self.stamp()
        if stop == 'qkv1':
            self.wait(); a("s_branch L_END")
            if os.environ.get('DBGW'):
                a(f"""
                s_lshl_b32 {S_T0}, {S_ID}, 11
                s_add_u32 {S_T0}, {S_T0}, 0x40000
                v_lshlrev_b32 v1, 3, v0
                v_add_u32 v1, {S_T0}, v1
                v_mov_b32 v2, v{V_WSK}
                v_mov_b32 v3, v{V_WSV}
                buffer_store_dwordx2 v[2:3], v1, {SRD_WS}, 0 offen
                """)
            self.wait(); a("s_branch L_END")
        a(f"s_mov_b32 {S_XOUT}, {XT[2]}")
        self.outp_pre()
        self.wait(sleep0=int(os.environ.get('SL_O', '22'))); self.stamp()
        self.outp(); self.stamp()
        a(f"s_cmp_eq_u32 {S_LAYER}, 1\ns_cbranch_scc1 L_END")
        self.arrive(); self.stamp()
        if stop == 'out1':
            self.wait(); a("s_branch L_END")
        a(f"s_mov_b32 {S_LAYER}, 1\ns_branch L_LAYER\nL_END:")
        self.tsdump()
        a("L_EXIT:\ns_endpgm")
        body = a.finalize()
        hdr = open(os.path.join(os.path.dirname(os.path.abspath(__file__)), 'header.txt')).read()
        hdr = hdr.replace('@@LAUNCH@@', f'; @launch grid=(256,1,1) block=(256,1,1) lds={LDS_SIZE}')
        txt = hdr + f""".amdgcn_target "amdgcn-amd-amdhsa--gfx950"
.text
.globl {NAME}_kernel
.p2align 8
.type {NAME}_kernel,@function
{NAME}_kernel:
""" + body + f""".section .rodata,"a"
.p2align 6
.amdhsa_kernel {NAME}_kernel
  .amdhsa_next_free_vgpr 512
  .amdhsa_next_free_sgpr 102
  .amdhsa_accum_offset 256
  .amdhsa_group_segment_fixed_size 0
  .amdhsa_kernarg_size 104
  .amdhsa_user_sgpr_count 2
  .amdhsa_user_sgpr_kernarg_segment_ptr 1
  .amdhsa_system_sgpr_workgroup_id_x 1
.end_amdhsa_kernel
"""
        return txt

if __name__ == '__main__':
    import argparse
    ap = argparse.ArgumentParser()
    ap.add_argument('--stop', default=None)
    ap.add_argument('--ts', action='store_true')
    ap.add_argument('-o', default='k.s')
    args = ap.parse_args()
    g = Gen(stop=args.stop, ts=args.ts)
    t = g.build()
    open(args.o, 'w').write(t)
    print('instructions', g.a.count(), 'nops inserted', g.a.nnop, 'bytes', len(t))
```

```python
import sys, os, math
sys.path.insert(0, os.path.dirname(os.path.abspath(__file__)))
from asmgen import Asm

NAME = 'interleave_layers__ssm_conv_s4d__linear_attn_block__prompt'

CNT  = 0x0
ZR   = 0x4000
KVM  = [ZR, ZR + 32768]
ZZ   = [ZR + 65536, ZR + 67584]
ST3  = ZR + 69632
ST1  = 0x1C000
GCNT = 0x20000
TS   = 0x80000
XT   = [0x100000, 0x300000, 0x500000, 0x700000]
PQ   = [0x900000, 0xB00000]
WQF  = 0xD00000
WOFG = 0xE80000
WS_SIZE = 0xF00000

L_WO = 0
L_KC = 65536
L_XL = 82432
L_MISC = L_XL + 65536
LDS_SIZE = 163840
L_U  = L_XL
L_Y  = L_XL + 18560
L_TA = L_XL
L_TB = L_XL + 9216
L_TW = L_XL + 46080
L_CT = L_XL + 18432
L_KD = L_XL + 28672
L_KVF = L_XL
L_O32 = L_XL + 17408
L_OT  = L_XL + 52224
L_S2R = L_MISC
L_S2M = L_MISC + 256
L_STG = L_MISC + 512

STPERM = True
BMODE = os.environ.get('BMODE', 'flag16')
ADR = int(os.environ.get('ADR', '1'))
ADB = int(os.environ.get('ADB', '2'))
FLG = 0x24000
OUTF = os.environ.get('OUTF', '')
CODE_CHUNKS = int(os.environ.get('CODE_CHUNKS', '5'))
SLEEP = int(os.environ.get('SLEEP', '1' if os.environ.get('BMODE','flag16') == 'flag16' else '3'))
SLEEP0 = int(os.environ.get('SLEEP0', '14'))
SLEEPG = int(os.environ.get('SLEEPG', '6'))
LOG2E = 1.4426950408889634
def f2u(x):
    import struct
    return struct.unpack('<I', struct.pack('<f', x))[0]
def fx(x): return '0x%08x' % f2u(x)
def pk(r): return f"v[{r}:{r+1}]"
def v4(r): return f"v[{r}:{r+3}]"

S_ID='s2'; S_W='s3'; S_RT='s4'; S_CG='s5'; S_LAYER='s6'; S_TGT='s7'
SRD_WS='s[44:47]'; SRD_WQ='s[48:51]'; SRD_WO='s[52:55]'; SRD_OUT='s[56:59]'; SRD_X0='s[60:63]'
S_ONES='s64'
S_EXS='s[70:71]'
S_XIN='s72'; S_XOUT='s73'; S_ST='s74'; S_PQ='s75'; S_KV='s76'; S_Z='s77'
S_SPIN='s78'
S_T0='s8'; S_T1='s9'; S_T2='s10'; S_T3='s11'; S_T4='s12'; S_T5='s13'
S_DM='s14'; S_DS='s15'

V_LANE=255; V_WSK=254; V_WSV=252; V_WSQ=248
V_DSK1=246; V_DSK0=244
V_CNT=239; V_POLL=238; V_ONE=237
V_L16=243; V_H=242
V_TS=241; V_TS2=240
V_GCNT=235; V_POLL2=234; V_TGT=233
V_RANK=232
V_PT=236

WOF = 104
def weave(main, fill, per=2, lead=0):
    out = []; fi = 0
    for k, m in enumerate(main):
        out.append(m)
        if k >= lead:
            for _ in range(per):
                if fi < len(fill): out.append(fill[fi]); fi += 1
    out += fill[fi:]
    return out
def zipmerge(*lists):
    out = []
    n = max(len(l) for l in lists)
    for i in range(n):
        for l in lists:
            if i < len(l): out.append(l[i])
    return out
import re as _re
def unpk(ins):
    m = _re.match(r'v_pk_(mul|add|fma)_f32 v\[(\d+):\d+\], (.*)', ins)
    if not m: return [ins]
    op, d, rest = m.group(1), int(m.group(2)), m.group(3)
    srcs = [int(x) for x in _re.findall(r'v\[(\d+):\d+\]', rest)]
    n = len(srcs)
    hi = [1]*n
    mm = _re.search(r'op_sel_hi:\[([\d,]+)\]', rest)
    if mm: hi = [int(x) for x in mm.group(1).split(',')]
    assert 'op_sel:[' not in rest
    neg = [0]*n
    mm = _re.search(r'neg_lo:\[([\d,]+)\]', rest)
    if mm: neg = [int(x) for x in mm.group(1).split(',')]
    out = []
    for h in range(2):
        ops = []
        for i in range(n):
            r = srcs[i] + (h if hi[i] else 0)
            ops.append(('-' if neg[i] else '') + f'v{r}')
        out.append(f"v_{op}_f32 v{d+h}, " + ', '.join(ops))
    return out
def unpk_all(L):
    o = []
    for x in L: o += unpk(x)
    return o
def lines(s): return [t.strip() for t in s.split('\n') if t.strip()]

class Gen:
    def __init__(self, stop=None, ts=False):
        self.a = Asm(); self.stop = stop; self.ts = ts; self.tsn = 0
    def emit(self, lst):
        for x in lst: self.a(x)

    def stamp(self):
        if not self.ts: return
        n = self.tsn; self.tsn += 1
        self.a(f"""
        s_memrealtime s[80:81]
        s_lshl_b32 s82, {S_LAYER}, 5
        s_add_u32 m0, s82, {n}
        s_waitcnt lgkmcnt(0)
        v_writelane_b32 v{V_TS}, s80, m0
        """)
    def sub(self, i):
        if self.ts: self.a(f"s_memtime s[{86+2*i}:{87+2*i}]")
    def subflush(self, phase, n):
        if not self.ts: return
        a = self.a
        a(f"s_waitcnt lgkmcnt(0)\ns_lshl_b32 s82, {S_LAYER}, 5\ns_add_u32 m0, s82, {phase*8}")
        for i in range(n):
            a(f"v_writelane_b32 v{V_TS2}, s{86+2*i}, m0\ns_add_u32 m0, m0, 1\ns_nop 3")
    def tsdump(self):
        if not self.ts: return
        a = self.a; l = a.label('TD')
        if os.environ.get('DBGTS'):
            sel = [1,2,3,4,5,7,8,10,11,12, 32+4,32+5,32+7,32+8,32+10]
            a(f"""
            s_cmp_eq_u32 {S_ID}, 0
            s_cbranch_scc0 {l}
            s_cmp_eq_u32 {S_W}, 0
            s_cbranch_scc0 {l}
            v_readlane_b32 s80, v{V_TS}, 0
            """)
            for i, k in enumerate(sel):
                lane = k
                a(f"v_readlane_b32 s81, v{V_TS}, {lane}\ns_nop 3\ns_sub_u32 s81, s81, s80\nv_mov_b32 v1, s81\nv_mov_b32 v2, {4*(i+1)}\ns_mov_b64 exec, 1\nglobal_store_dword v2, v1, s[38:39]\ns_mov_b64 exec, -1")
            a(f"{l}:")
            return
        a(f"""
        s_cmp_eq_u32 {S_W}, 0
        s_cbranch_scc0 {l}
        s_lshl_b32 s82, {S_ID}, 9
        s_add_u32 s82, s82, {TS}
        v_lshlrev_b32 v1, 2, v{V_LANE}
        v_add_u32 v1, s82, v1
        buffer_store_dword v{V_TS}, v1, {SRD_WS}, 0 offen
        buffer_store_dword v{V_TS2}, v1, {SRD_WS}, 0 offen offset:256
        {l}:
        """)

    def arrive_core(self, finish=True):
        a = self.a
        if BMODE == 'flat':
            a(f"buffer_atomic_add v{V_ONE}, v{V_CNT}, {SRD_WS}, 0 offen sc1")
            return
        a(f"""
        v_mov_b32 v{V_RANK}, 1
        buffer_atomic_add v{V_RANK}, v{V_CNT}, {SRD_WS}, 0 offen sc0 sc1
        """)
        if finish: self.arrive_finish()
    def arrive_finish(self):
        a = self.a
        if BMODE == 'flag16':
            l = a.label('NL')
            a(f"""
            s_sub_u32 {S_T0}, {S_TGT}, 1
            s_waitcnt vmcnt(0)
            v_cmp_eq_u32 vcc, {S_T0}, v{V_RANK}
            s_cbranch_vccz {l}
            v_mov_b32 v{V_RANK}, {S_TGT}
            v_add_u32 v{V_PT}, {FLG - CNT}, v{V_CNT}
            buffer_store_dword v{V_RANK}, v{V_PT}, {SRD_WS}, 0 offen sc1
            {l}:
            """)
    def arrive(self):
        a = self.a; l = a.label('ARR')
        a(f"""
        s_waitcnt vmcnt(0) lgkmcnt(0)
        s_barrier
        s_add_u32 {S_TGT}, {S_TGT}, 16
        s_cmp_eq_u32 {S_W}, 0
        s_cbranch_scc0 {l}
        s_mov_b64 exec, 1
        """)
        self.arrive_core()
        a(f"""
        s_mov_b64 exec, -1
        {l}:
        """)
    def arrive_group(self):
        a = self.a; l = a.label('ARG')
        a(f"""
        s_waitcnt vmcnt(0) lgkmcnt(0)
        s_barrier
        s_cmp_eq_u32 {S_W}, 0
        s_cbranch_scc0 {l}
        s_mov_b64 exec, 1
        buffer_atomic_add v{V_ONE}, v{V_GCNT}, {SRD_WS}, 0 offen sc1
        s_mov_b64 exec, -1
        {l}:
        """)
    def wait_dual(self):
        a = self.a
        l = a.label('WT'); lp = a.label('POLL'); ld = a.label('PD')
        a(f"""
        s_cmp_eq_u32 {S_W}, 0
        s_cbranch_scc0 {l}
        s_add_u32 {S_T0}, {S_LAYER}, 1
        s_lshl_b32 {S_T0}, {S_T0}, 3
        v_mov_b32 v{V_TGT}, {S_TGT}
        v_mov_b32 v{V_PT}, {S_T0}
        v_cmp_eq_u32 vcc, 16, v{V_LANE}
        v_cndmask_b32 v{V_TGT}, v{V_TGT}, v{V_PT}, vcc
        s_mov_b64 exec, 0x1ffff
        s_mov_b32 {S_SPIN}, 0
        {('s_sleep ' + str(SLEEPG)) if SLEEPG else ''}
        {lp}:
        buffer_load_dword v{V_PT}, v{V_POLL2}, {SRD_WS}, 0 offen sc1
        s_add_u32 {S_SPIN}, {S_SPIN}, 1
        s_waitcnt vmcnt(0)
        v_cmp_gt_u32 vcc, v{V_TGT}, v{V_PT}
        s_cbranch_vccz {ld}
        {('s_sleep ' + str(SLEEP)) if SLEEP else ''}
        s_cmp_lt_u32 {S_SPIN}, 0x200000
        s_cbranch_scc1 {lp}
        {ld}:
        s_mov_b64 exec, -1
        {l}:
        s_barrier
        """)
    def wait(self, l0skip=False, sleep0=None):
        a = self.a
        l = a.label('WT'); lp = a.label('POLL'); ld = a.label('PD'); ls = a.label('NS')
        SLEEP0 = sleep0 if sleep0 is not None else globals()['SLEEP0']
        if BMODE == 'flat':
            pre = ((f's_cmp_eq_u32 {S_LAYER}, 0' + chr(10) + f's_cbranch_scc1 {lp}' + chr(10)) if l0skip else '') + (f's_sleep {SLEEP0}' if SLEEP0 else '')
        elif BMODE == 'flag16':
            pre = ''
        else:
            la = a.label('AD'); lb = a.label('AD')
            pre = f'''s_waitcnt vmcnt(0)
            v_readfirstlane_b32 {S_T0}, v{V_RANK}
            s_and_b32 {S_T0}, {S_T0}, 15
            s_sub_u32 {S_T0}, 15, {S_T0}
            s_mul_i32 {S_T0}, {S_T0}, {ADR}
            s_add_u32 {S_T0}, {S_T0}, {ADB}
            {la}:
            s_sleep 1
            s_sub_u32 {S_T0}, {S_T0}, 1
            s_cmp_gt_i32 {S_T0}, 0
            s_cbranch_scc1 {la}'''
        a(f"""
        s_cmp_eq_u32 {S_W}, 0
        s_cbranch_scc0 {l}
        s_mov_b64 exec, 0xffff
        s_mov_b32 {S_SPIN}, 0
        {pre}
        {lp}:
        buffer_load_dword v{V_PT}, v{V_POLL}, {SRD_WS}, 0 offen {('offset:0' if BMODE != 'flag16' else '')} sc1
        s_add_u32 {S_SPIN}, {S_SPIN}, 1
        s_waitcnt vmcnt(0)
        v_cmp_gt_u32 vcc, {S_TGT}, v{V_PT}
        s_cbranch_vccz {ld}
        {('s_sleep ' + str(SLEEP)) if SLEEP else ''}
        s_cmp_lt_u32 {S_SPIN}, 0x200000
        s_cbranch_scc1 {lp}
        {ld}:
        s_mov_b64 exec, -1
        {l}:
        s_barrier
        """)

    def reduce_h(self, r, t):
        return lines(f"""
        v_mov_b32 v{t}, v{r}
        v_permlane16_swap_b32 v{r}, v{t}
        v_add_f32 v{r}, v{r}, v{t}
        v_mov_b32 v{t}, v{r}
        v_permlane32_swap_b32 v{r}, v{t}
        v_add_f32 v{r}, v{r}, v{t}
        """)
    def reduce16(self, r):
        return lines(f"""
        v_add_f32_dpp v{r}, v{r}, v{r} quad_perm:[1,0,3,2] row_mask:0xf bank_mask:0xf
        v_add_f32_dpp v{r}, v{r}, v{r} quad_perm:[2,3,0,1] row_mask:0xf bank_mask:0xf
        v_add_f32_dpp v{r}, v{r}, v{r} row_half_mirror row_mask:0xf bank_mask:0xf
        v_add_f32_dpp v{r}, v{r}, v{r} row_mirror row_mask:0xf bank_mask:0xf
        """)
    def ln_final1(self, sm, sq, r_out, mr_out, t):
        return lines(f"""
        v_mul_f32 v{t}, {fx(1/512)}, v{sm}
        v_mul_f32 v{t+1}, {fx(1/512)}, v{sq}
        v_fma_f32 v{t+1}, -v{t}, v{t}, v{t+1}
        v_cvt_pk_bf16_f32 v{t+2}, v{t}, v{t+1}
        v_lshlrev_b32 v{t}, 16, v{t+2}
        v_and_b32 v{t+1}, 0xffff0000, v{t+2}
        v_add_f32 v{t+1}, {fx(1e-5)}, v{t+1}
        v_cvt_pk_bf16_f32 v{t+1}, v{t+1}, v{t+1}
        v_and_b32 v{t+1}, 0xffff0000, v{t+1}
        v_sqrt_f32 v{t+1}, v{t+1}
        v_cvt_pk_bf16_f32 v{t+1}, v{t+1}, v{t+1}
        v_and_b32 v{t+1}, 0xffff0000, v{t+1}
        v_rcp_f32 v{r_out}, v{t+1}
        v_mul_f32 v{mr_out}, v{t}, v{r_out}
        """)

    def prologue(self):
        a = self.a
        a(f"""
        s_cmp_ge_u32 {S_ID}, 256
        s_cbranch_scc1 L_EXIT
        s_load_dwordx16 s[16:31], s[0:1], 0
        s_load_dwordx8 s[32:39], s[0:1], 64
        s_load_dwordx2 s[40:41], s[0:1], 96
        v_and_b32 v{V_LANE}, 63, v0
        v_lshrrev_b32 v1, 6, v0
        v_and_b32 v{V_L16}, 15, v0
        v_bfe_u32 v{V_H}, v0, 4, 2
        v_readfirstlane_b32 {S_W}, v1
        s_and_b32 {S_T0}, {S_ID}, 7
        s_lshl_b32 {S_T0}, {S_T0}, 2
        s_lshr_b32 {S_T1}, {S_ID}, 6
        s_add_u32 {S_RT}, {S_T0}, {S_T1}
        s_lshr_b32 {S_CG}, {S_ID}, 3
        s_and_b32 {S_CG}, {S_CG}, 7
        s_mov_b32 {S_LAYER}, 0
        s_mov_b32 {S_TGT}, 0
        s_mov_b32 {S_ONES}, 0x3f803f80
        v_mov_b32 v{V_ONE}, 1
        s_and_b32 {S_T0}, {S_ID}, 15
        s_lshl_b32 {S_T0}, {S_T0}, 10
        v_mov_b32 v{V_CNT}, {S_T0}
        v_lshlrev_b32 v{V_POLL}, 10, v{V_LANE}
        v_add_u32 v{V_POLL}, {FLG if BMODE == 'flag16' else CNT}, v{V_POLL}
        s_waitcnt lgkmcnt(0)
        s_mov_b32 s60, s16
        s_and_b32 s61, s17, 0xffff
        s_mov_b32 s62, {2048*512*2}
        s_mov_b32 s63, 0x20000
        """)
    def prologue2(self):
        a = self.a
        a(f"""
        s_mov_b32 s44, s40
        s_and_b32 s45, s41, 0xffff
        s_mov_b32 s46, {WS_SIZE}
        s_mov_b32 s47, 0x20000
        s_mov_b32 s48, s32
        s_and_b32 s49, s33, 0xffff
        s_mov_b32 s50, {512*1536*2}
        s_mov_b32 s51, 0x20000
        s_mov_b32 s52, s34
        s_and_b32 s53, s35, 0xffff
        s_mov_b32 s54, {512*512*2}
        s_mov_b32 s55, 0x20000
        s_mov_b32 s56, s36
        s_and_b32 s57, s37, 0xffff
        s_mov_b32 s58, {2048*512*2}
        s_mov_b32 s59, 0x20000
        s_lshl_b32 {S_T0}, {S_RT}, 10
        s_add_u32 {S_T0}, {S_T0}, {GCNT}
        v_mov_b32 v{V_GCNT}, {S_T0}
        v_cmp_eq_u32 vcc, 16, v{V_LANE}
        v_cndmask_b32 v{V_POLL2}, v{V_POLL}, v{V_GCNT}, vcc
        """)

    def dma_weight(self, srd, rowpitch, colbyte, lds_base, swz, t, defer=False):
        a = self.a
        a(f"""
        v_lshrrev_b32 v{t}, 3, v{V_LANE}
        v_mul_u32_u24 v{t}, {rowpitch}, v{t}
        v_bfe_u32 v{t+1}, v{V_LANE}, 1, 2
        v_bfe_u32 v{t+2}, v{V_LANE}, 4, 1
        """)
        if swz == 'x':
            a(f"s_and_b32 {S_T0}, {S_W}, 1\ns_lshl_b32 {S_T0}, {S_T0}, 1\nv_or_b32 v{t+2}, {S_T0}, v{t+2}")
        else:
            a(f"v_lshlrev_b32 v{t+2}, 1, v{t+2}")
        a(f"""
        v_xor_b32 v{t+1}, v{t+1}, v{t+2}
        v_lshl_add_u32 v{t}, v{t+1}, 5, v{t}
        v_and_b32 v{t+1}, 1, v{V_LANE}
        v_lshl_add_u32 v{t}, v{t+1}, 4, v{t}
        s_lshl_b32 {S_T0}, {S_CG}, 7
        s_add_u32 {S_T0}, {S_T0}, {colbyte}
        v_add_u32 v{t}, {S_T0}, v{t}
        s_mul_i32 {S_DS}, {S_W}, {8*rowpitch}
        s_lshl_b32 {S_DM}, {S_W}, 10
        s_add_u32 {S_DM}, {S_DM}, {lds_base}
        """)
        groups = [lines(f"""
            s_mov_b32 m0, {S_DM}
            s_add_u32 {S_DM}, {S_DM}, 4096
            buffer_load_dwordx4 v{t}, {srd}, {S_DS} offen lds
            s_add_u32 {S_DS}, {S_DS}, {32*rowpitch}
            """) for i in range(16)]
        if defer: return groups
        for g in groups: self.emit(g)

    def wread_lists(self, lds_base, abase, part, t, o):
        rd = lines(f"""
        v_lshrrev_b32 v{t}, 2, v{V_L16}
        v_lshl_add_u32 v{t+1}, v{V_H}, 3, v{t}
        v_lshlrev_b32 v{t+1}, 7, v{t+1}
        v_and_b32 v{t+2}, 3, v{V_L16}
        v_lshl_add_u32 v{t+1}, v{t+2}, 3, v{t+1}
        v_add_u32 v{t+1}, {lds_base}, v{t+1}
        v_lshrrev_b32 v{t}, 1, v{t}
        v_and_b32 v{t+2}, 1, v{V_H}
        v_lshl_or_b32 v{t}, v{t+2}, 1, v{t}
        v_xor_b32 v{t}, {S_W}, v{t}
        v_lshl_add_u32 v{t+3}, v{t}, 5, v{t+1}
        """)
        for i in range(4): rd.append(f"v_mov_b32 v{o+i}, {S_ONES}")
        for ks in range(16):
            rd.append(f"ds_read_b64_tr_b16 a[{abase+4*ks}:{abase+4*ks+1}], v{t+3} offset:{ks*4096}")
            rd.append(f"ds_read_b64_tr_b16 a[{abase+4*ks+2}:{abase+4*ks+3}], v{t+3} offset:{ks*4096+512}")
        mf = []
        for ks in range(16):
            c = '0' if ks == 0 else v4(o+4)
            w = f"a[{abase+4*ks}:{abase+4*ks+3}]"
            if part == 0: mf.append(f"v_mfma_f32_16x16x32_bf16 {v4(o+4)}, {w}, {v4(o)}, {c}")
            else: mf.append(f"v_mfma_f32_16x16x32_bf16 {v4(o+4)}, {v4(o)}, {w}, {c}")
        if part == 0: mf += [f"v_mov_b32 v{V_WSQ+i}, v{o+4+i}" for i in range(4)]
        elif part == 1: mf.append(f"v_mov_b32 v{V_WSK}, v{o+4}")
        else: mf.append(f"v_mov_b32 v{V_WSV}, v{o+4}")
        return rd, mf

    def p0(self):
        a = self.a
        a(f"""
        v_lshrrev_b32 v1, 3, v0
        s_lshl_b32 {S_T0}, {S_RT}, 16
        s_lshl_b32 {S_T1}, {S_CG}, 7
        s_add_u32 {S_T0}, {S_T0}, {S_T1}
        v_lshlrev_b32 v2, 10, v1
        v_and_b32 v3, 7, v0
        v_lshl_add_u32 v2, v3, 4, v2
        v_add_u32 v2, {S_T0}, v2
        buffer_load_dwordx4 v[10:13], v2, {SRD_X0}, 0 offen
        v_add_u32 v4, 0x8000, v2
        buffer_load_dwordx4 v[14:17], v4, {SRD_X0}, 0 offen
        s_and_b32 {S_T0}, {S_ID}, 63
        s_lshl_b32 {S_T0}, {S_T0}, 2
        s_add_u32 {S_T0}, {S_T0}, {S_W}
        s_lshl_b32 {S_T0}, {S_T0}, 3
        s_lshr_b32 {S_T1}, {S_ID}, 6
        s_lshl_b32 {S_T1}, {S_T1}, 1
        s_add_u32 {S_T0}, {S_T0}, {S_T1}
        s_lshl_b32 {S_T0}, {S_T0}, 10
        v_lshlrev_b32 v5, 4, v{V_LANE}
        v_add_u32 v5, {S_T0}, v5
        buffer_load_dwordx4 v[18:21], v5, {SRD_X0}, 0 offen
        buffer_load_dwordx4 v[22:25], v5, {SRD_X0}, 0 offen offset:1024
        s_lshl_b32 {S_T0}, {S_ID}, 9
        v_lshlrev_b32 v6, 1, v0
        v_add_u32 v6, {S_T0}, v6
        global_load_ushort v26, v6, s[18:19]
        global_load_ushort v27, v6, s[20:21]
        global_load_ushort v28, v6, s[22:23]
        global_load_ushort v29, v6, s[24:25]
        v_lshrrev_b32 v7, 7, v0
        s_lshl_b32 {S_T0}, {S_ID}, 1
        v_add_lshl_u32 v7, v7, {S_T0}, 1
        global_load_ushort v30, v7, s[26:27]
        s_lshl_b32 {S_T0}, {S_ID}, 2
        v_mov_b32 v7, {S_T0}
        global_load_dword v{V_DSK0}, v7, s[28:29]
        """)
        self.prologue2()
        lp = a.label('PFC')
        a(f"""
        s_getpc_b64 s[66:67]
        s_and_b32 s66, s66, 0xffffff00
        s_lshr_b32 {S_T0}, {S_ID}, 3
        s_cmp_lt_u32 {S_T0}, {CODE_CHUNKS}
        s_cbranch_scc0 {lp}
        s_cmp_eq_u32 {S_W}, 3
        s_cbranch_scc0 {lp}
        s_lshl_b32 {S_T0}, {S_T0}, 13
        v_lshlrev_b32 v8, 7, v{V_LANE}
        v_add_u32 v8, {S_T0}, v8
        global_load_dword v198, v8, s[66:67]
        {lp}:
        v_and_b32 v8, 15, v{V_LANE}
        v_lshlrev_b32 v8, 20, v8
        buffer_load_dword v197, v8, {SRD_WS}, 0 offen
        """)
        lw = a.label('WT'); lw2 = a.label('WT')
        a(f"""
        s_and_b32 {S_T2}, {S_ID}, 7
        s_cmp_lt_u32 {S_ID}, 192
        s_cbranch_scc0 {lw}
        s_lshr_b32 {S_T3}, {S_ID}, 3
        s_mul_i32 {S_T0}, {S_T2}, {64*3072}
        s_lshl_b32 {S_T1}, {S_T3}, 7
        s_add_u32 {S_T0}, {S_T0}, {S_T1}
        v_mul_u32_u24 v8, 3072, v1
        v_lshl_add_u32 v8, v3, 4, v8
        v_add_u32 v8, {S_T0}, v8
        buffer_load_dwordx4 v[200:203], v8, {SRD_WQ}, 0 offen
        v_add_u32 v8, {32*3072}, v8
        buffer_load_dwordx4 v[204:207], v8, {SRD_WQ}, 0 offen
        s_branch {lw2}
        {lw}:
        s_sub_u32 {S_T3}, {S_ID}, 192
        s_lshr_b32 {S_T3}, {S_T3}, 3
        s_lshl_b32 {S_T0}, {S_T2}, 16
        s_lshl_b32 {S_T1}, {S_T3}, 7
        s_add_u32 {S_T0}, {S_T0}, {S_T1}
        v_lshlrev_b32 v8, 10, v1
        v_lshl_add_u32 v8, v3, 4, v8
        v_add_u32 v8, {S_T0}, v8
        buffer_load_dwordx4 v[200:203], v8, {SRD_WO}, 0 offen
        v_add_u32 v8, 0x8000, v8
        buffer_load_dwordx4 v[204:207], v8, {SRD_WO}, 0 offen
        {lw2}:
        """)
        l = a.label('CI')
        a(f"""
        s_cmp_lt_u32 {S_ID}, 16
        s_cbranch_scc0 {l}
        s_cmp_eq_u32 {S_W}, 0
        s_cbranch_scc0 {l}
        s_mov_b64 exec, 1
        v_mov_b32 v8, 0
        buffer_store_dword v8, v{V_CNT}, {SRD_WS}, 0 offen sc1
        v_add_u32 v9, {FLG - CNT}, v{V_CNT}
        buffer_store_dword v8, v9, {SRD_WS}, 0 offen sc1
        s_waitcnt vmcnt(0)
        global_atomic_add v8, v{V_ONE}, s[38:39] sc1
        s_mov_b64 exec, -1
        {l}:
        """)
        IDX = 180
        a(f"v_lshlrev_b32 v31, 3, v0\nv_sub_u32 v31, 2047, v31\ns_mov_b32 {S_T5}, {L_KD}")
        chains = []
        for i in range(0, 10, 2):
            t = 32 + 4*(i//2)
            c = lines(f"""
            v_subrev_u32 v{t}, {i}, v31
            v_subrev_u32 v{t+1}, {i+1}, v31
            v_max_i32 v{t}, 0, v{t}
            v_max_i32 v{t+1}, 0, v{t+1}
            v_cvt_f32_i32 v{t}, v{t}
            v_cvt_f32_i32 v{t+1}, v{t+1}
            v_cvt_pk_bf16_f32 v{t+2}, v{t}, v{t+1}
            v_lshlrev_b32 v{t}, 16, v{t+2}
            v_and_b32 v{t+1}, 0xffff0000, v{t+2}
            v_cvt_u32_f32 v{t}, v{t}
            v_cvt_u32_f32 v{t+1}, v{t+1}
            v_lshrrev_b32 v{t+2}, 2, v{t}
            v_lshrrev_b32 v{t+3}, 2, v{t+1}
            v_add_u32 v{t+2}, 384, v{t+2}
            v_add_u32 v{t+3}, 384, v{t+3}
            v_min_u32 v{t}, v{t}, v{t+2}
            v_min_u32 v{t+1}, v{t+1}, v{t+3}
            v_lshrrev_b32 v{t+2}, 5, v{t}
            v_lshrrev_b32 v{t+3}, 5, v{t+1}
            v_add_u32 v{t}, v{t}, v{t+2}
            v_add_u32 v{t+1}, v{t+1}, v{t+3}
            v_lshl_add_u32 v{IDX+i}, v{t}, 2, {S_T5}
            """)
            if i + 1 < 9: c.append(f"v_lshl_add_u32 v{IDX+i+1}, v{t+1}, 2, {S_T5}")
            chains.append(c)
        self.emit(zipmerge(*chains))
        a(f"""
        v_mul_u32_u24 v8, 144, v1
        v_lshl_add_u32 v8, v3, 4, v8
        v_add_u32 v9, {L_TW}, v8
        v_add_u32 v8, {L_TA}, v8
        s_waitcnt vmcnt(11)
        ds_write_b128 v8, v[10:13]
        ds_write_b128 v8, v[14:17] offset:{32*144}
        s_waitcnt vmcnt(9)
        """)
        for r in range(32, 36): a(f"v_mov_b32 v{r}, 0")
        for j in range(4):
            for row in range(2):
                b = 18 + 4*row; sm = 32 + 2*row
                a(f"v_dot2_f32_bf16 v{sm}, v{b+j}, {S_ONES}, v{sm}\nv_dot2_f32_bf16 v{sm+1}, v{b+j}, v{b+j}, v{sm+1}")
        self.emit(zipmerge(*[self.reduce16(r) for r in range(32, 36)]))
        self.emit(zipmerge(*[self.reduce_h(r, 36 + (r-32)) for r in range(32, 36)]))
        a(f"""
        s_lshl_b32 {S_T0}, {S_W}, 4
        s_add_u32 {S_T0}, {S_T0}, {L_STG}
        v_mov_b32 v36, {S_T0}
        ds_write_b128 v36, v[32:35]
        s_waitcnt vmcnt(0)
        ds_write_b128 v9, v[200:203]
        ds_write_b128 v9, v[204:207] offset:{32*144}
        v_lshrrev_b32 v9, 2, v{V_L16}
        v_lshl_add_u32 v9, v{V_H}, 3, v9
        v_mul_u32_u24 v9, 144, v9
        v_and_b32 v2, 3, v{V_L16}
        v_lshl_add_u32 v9, v2, 3, v9
        s_lshl_b32 {S_T0}, {S_W}, 5
        s_add_u32 {S_T0}, {S_T0}, {L_TA}
        v_add_u32 v9, {S_T0}, v9
        s_lshl_b32 {S_T0}, {S_W}, 4
        v_add_u32 v2, {S_T0}, v{V_L16}
        v_mul_u32_u24 v2, 144, v2
        v_lshl_add_u32 v2, v{V_H}, 4, v2
        v_add_u32 v2, {L_TB}, v2
        s_waitcnt lgkmcnt(0)
        s_barrier
        ds_read_b64_tr_b16 v[10:11], v9
        ds_read_b64_tr_b16 v[12:13], v9 offset:{4*144}
        ds_read_b64_tr_b16 v[14:15], v9 offset:{32*144}
        ds_read_b64_tr_b16 v[16:17], v9 offset:{36*144}
        """)
        lz = a.label('WF'); lz2 = a.label('WF')
        a(f"""
        s_cmp_lt_u32 {S_ID}, 192
        s_cbranch_scc0 {lz}
        v_add_u32 v8, {L_TW - L_TA}, v9
        ds_read_b64_tr_b16 v[200:201], v8
        ds_read_b64_tr_b16 v[202:203], v8 offset:{4*144}
        ds_read_b64_tr_b16 v[204:205], v8 offset:{32*144}
        ds_read_b64_tr_b16 v[206:207], v8 offset:{36*144}
        s_lshr_b32 {S_T0}, {S_T3}, 3
        s_lshl_b32 {S_T0}, {S_T0}, 19
        s_and_b32 {S_T1}, {S_T3}, 7
        s_lshl_b32 {S_T1}, {S_T1}, 2
        s_add_u32 {S_T1}, {S_T1}, {S_W}
        s_lshl_b32 {S_T1}, {S_T1}, 14
        s_add_u32 {S_T0}, {S_T0}, {S_T1}
        s_lshl_b32 {S_T1}, {S_T2}, 11
        s_add_u32 {S_T0}, {S_T0}, {S_T1}
        s_add_u32 {S_T0}, {S_T0}, {WQF}
        s_branch {lz2}
        {lz}:
        v_lshrrev_b32 v8, 2, v{V_L16}
        v_lshrrev_b32 v7, 1, v{V_H}
        v_lshl_add_u32 v8, v7, 2, v8
        s_lshl_b32 {S_T0}, {S_W}, 4
        v_add_u32 v8, {S_T0}, v8
        v_mul_u32_u24 v8, 144, v8
        v_and_b32 v7, 1, v{V_H}
        v_lshl_add_u32 v8, v7, 5, v8
        v_and_b32 v7, 3, v{V_L16}
        v_lshl_add_u32 v8, v7, 3, v8
        v_add_u32 v8, {L_TW}, v8
        ds_read_b64_tr_b16 v[200:201], v8
        ds_read_b64_tr_b16 v[202:203], v8 offset:{8*144}
        ds_read_b64_tr_b16 v[204:205], v8 offset:64
        ds_read_b64_tr_b16 v[206:207], v8 offset:{8*144+64}
        s_lshl_b32 {S_T0}, {S_T3}, 16
        s_lshl_b32 {S_T1}, {S_T2}, 2
        s_add_u32 {S_T1}, {S_T1}, {S_W}
        s_lshl_b32 {S_T1}, {S_T1}, 11
        s_add_u32 {S_T0}, {S_T0}, {S_T1}
        s_add_u32 {S_T0}, {S_T0}, {WOFG}
        {lz2}:
        v_lshlrev_b32 v7, 4, v{V_LANE}
        v_add_u32 v7, {S_T0}, v7
        v_mul_u32_u24 v9, 144, v1
        v_lshl_add_u32 v9, v3, 4, v9
        v_add_u32 v9, {L_TB}, v9
        s_lshl_b32 {S_T0}, {S_CG}, 18
        s_lshl_b32 {S_T1}, {S_RT}, 7
        s_add_u32 {S_T0}, {S_T0}, {S_T1}
        s_add_u32 {S_T0}, {S_T0}, {XT[0]}
        v_lshlrev_b32 v4, 12, v1
        v_lshl_add_u32 v4, v3, 4, v4
        v_add_u32 v4, {S_T0}, v4
        v_add_u32 v5, 0x20000, v4
        s_waitcnt lgkmcnt(0)
        ds_write_b128 v2, v[10:13]
        ds_write_b128 v2, v[14:17] offset:64
        buffer_store_dwordx4 v[200:203], v7, {SRD_WS}, 0 offen sc1
        buffer_store_dwordx4 v[204:207], v7, {SRD_WS}, 0 offen offset:1024 sc1
        v_mov_b32 v6, 0
        s_waitcnt lgkmcnt(0)
        s_barrier
        ds_read_b128 v[10:13], v9
        ds_read_b128 v[14:17], v9 offset:{32*144}
        s_waitcnt lgkmcnt(0)
        buffer_store_dwordx4 v[10:13], v4, {SRD_WS}, 0 offen sc1
        buffer_store_dwordx4 v[14:17], v5, {SRD_WS}, 0 offen sc1
        global_load_dword v{V_PT}, v6, s[38:39] sc1
        """)
        l1 = a.label('Z1'); l2 = a.label('Z2')
        a(f"""
        s_cmp_eq_u32 {S_W}, 1
        s_cbranch_scc0 {l1}
        s_mov_b64 exec, 0xffffff
        v_mov_b32 v10, 0
        v_mov_b32 v11, 0
        v_mov_b32 v12, 0
        v_mov_b32 v13, 0
        s_mul_i32 {S_T0}, {S_ID}, 384
        s_add_u32 {S_T0}, {S_T0}, {ZR}
        v_lshlrev_b32 v4, 4, v{V_LANE}
        v_add_u32 v4, {S_T0}, v4
        buffer_store_dwordx4 v[10:13], v4, {SRD_WS}, 0 offen sc1
        s_mov_b64 exec, -1
        {l1}:
        s_cmp_eq_u32 {S_W}, 2
        s_cbranch_scc0 {l2}
        s_mov_b64 exec, 0xf
        v_lshlrev_b32 v4, 4, v{V_LANE}
        v_add_u32 v5, {L_STG}, v4
        ds_read_b128 v[10:13], v5
        s_lshl_b32 {S_T0}, {S_ID}, 6
        s_add_u32 {S_T0}, {S_T0}, {ST1}
        v_add_u32 v4, {S_T0}, v4
        s_waitcnt lgkmcnt(0)
        buffer_store_dwordx4 v[10:13], v4, {SRD_WS}, 0 offen sc1
        s_mov_b64 exec, -1
        {l2}:
        """)
        self.stamp()
        self.kgen_consts()
        a("s_waitcnt lgkmcnt(0)\ns_barrier")
        self.sub(0)
        self.sub(1)
        self.kgen_main(IDX)
        self.sub(6)
        self.subflush(3, 7)
        self.stamp()

    def arrive_first(self):
        a = self.a
        la = a.label('ARR1'); lp = a.label('INITP'); ld = a.label('INITD')
        a(f"""
        s_waitcnt vmcnt(0)
        s_barrier
        s_add_u32 {S_TGT}, {S_TGT}, 16
        s_cmp_eq_u32 {S_W}, 0
        s_cbranch_scc0 {la}
        s_mov_b64 exec, 1
        s_mov_b32 {S_SPIN}, 0
        v_mov_b32 v6, 0
        {lp}:
        v_cmp_le_u32 vcc, 16, v{V_PT}
        s_cbranch_vccnz {ld}
        global_load_dword v{V_PT}, v6, s[38:39] sc1
        s_add_u32 {S_SPIN}, {S_SPIN}, 1
        s_waitcnt vmcnt(0)
        s_cmp_lt_u32 {S_SPIN}, 0x200000
        s_cbranch_scc1 {lp}
        {ld}:
        """)
        self.arrive_core(finish=False)
        a(f"""
        s_mov_b64 exec, -1
        {la}:
        """)

    def cexp(self, p, dr, di, t):
        return lines(f"""
        v_mul_f32 v{t}, {fx(p)}, v40
        v_mul_f32 v{t+1}, {fx(p)}, v41
        v_exp_f32 v{t}, v{t}
        v_fract_f32 v{t+1}, v{t+1}
        v_cos_f32 v{t+2}, v{t+1}
        v_sin_f32 v{t+1}, v{t+1}
        v_mul_f32 v{dr}, v{t}, v{t+2}
        v_mul_f32 v{di}, v{t}, v{t+1}
        """)

    def kgen_consts(self):
        a = self.a
        a(f"""
        v_and_b32 v{V_DSK1}, 0xffff0000, v{V_DSK0}
        v_lshlrev_b32 v{V_DSK0}, 16, v{V_DSK0}
        v_lshlrev_b32 v26, 16, v26
        v_lshlrev_b32 v30, 16, v30
        v_lshlrev_b32 v27, 16, v27
        v_lshlrev_b32 v28, 16, v28
        v_mul_f32 v30, {fx(LOG2E)}, v30
        v_mul_f32 v26, {fx(LOG2E)}, v26
        v_lshlrev_b32 v29, 16, v29
        v_exp_f32 v30, v30
        v_exp_f32 v26, v26
        v_cvt_pk_bf16_f32 v31, v30, v26
        v_lshlrev_b32 v30, 16, v31
        v_and_b32 v26, 0xffff0000, v31
        v_mul_f32 v40, v26, v30
        v_mul_f32 v41, v27, v30
        v_mul_f32 v42, v28, v30
        v_mul_f32 v43, v29, v30
        v_mul_f32 v40, {fx(-LOG2E)}, v40
        v_mul_f32 v41, {fx(1/(2*math.pi))}, v41
        v_add_f32 v42, v42, v42
        v_add_f32 v43, v43, v43
        v_rndne_f32 v31, v41
        v_sub_f32 v41, v41, v31
        """)
        ch = []
        for i, p in enumerate((256.0, 512.0, 1536.0)):
            t = 52 + 6*i; d = 44 + 2*i
            c = self.cexp(p, t+3, t+4, t)
            c += lines(f"""
            v_mul_f32 v{d}, v42, v{t+3}
            v_mul_f32 v{d+1}, v42, v{t+4}
            v_fma_f32 v{d}, -v43, v{t+4}, v{d}
            v_fma_f32 v{d+1}, v43, v{t+3}, v{d+1}
            """)
            ch.append(c)
        self.emit(zipmerge(*ch))
        a(f"""
        v_lshrrev_b32 v1, 7, v0
        v_mul_u32_u24 v1, 5120, v1
        v_and_b32 v2, 127, v0
        v_lshl_add_u32 v1, v2, 2, v1
        v_add_u32 v1, {L_CT}, v1
        """)
        for q in range(10): a(f"ds_write_b32 v1, v{40+q} offset:{q*512}")

    def kgen_main(self, IDX):
        a = self.a
        a(f"""
        s_lshr_b32 {S_T0}, {S_W}, 1
        s_mul_i32 {S_T0}, {S_T0}, 5120
        s_and_b32 {S_T1}, {S_W}, 1
        s_lshl_b32 {S_T1}, {S_T1}, 8
        s_add_u32 {S_T0}, {S_T0}, {S_T1}
        s_add_u32 {S_T0}, {S_T0}, {L_CT}
        v_lshlrev_b32 v1, 4, v{V_H}
        v_add_u32 v1, {S_T0}, v1
        v_cvt_f32_u32 v2, v{V_L16}
        v_mov_b32 v3, v2
        """)
        ACC = 160
        def kstep(B, off, first):
            Q = lambda q: B + 4*q
            FR, FI, T0, T1 = B+40, B+44, B+48, B+52
            A0, A1, F0F, F2F = B+56, B+60, B+64, B+68
            rd = [f"ds_read_b128 {v4(Q(q))}, v1 offset:{q*512 + off}" for q in range(10)]
            L = []
            for h in (0, 2):
                L.append(f"v_pk_mul_f32 {pk(T0+h)}, {pk(Q(0)+h)}, v[2:3]")
                L.append(f"v_pk_mul_f32 {pk(T1+h)}, {pk(Q(1)+h)}, v[2:3]")
            for i in range(4):
                L.append(f"v_exp_f32 v{T0+i}, v{T0+i}")
            for i in range(4):
                L.append(f"v_cos_f32 v{FR+i}, v{T1+i}")
                L.append(f"v_sin_f32 v{FI+i}, v{T1+i}")
            for h in (0, 2):
                L.append(f"v_pk_mul_f32 {pk(FR+h)}, {pk(FR+h)}, {pk(T0+h)}")
                L.append(f"v_pk_mul_f32 {pk(FI+h)}, {pk(FI+h)}, {pk(T0+h)}")
            def packF(dst):
                L.extend([f"v_cvt_pk_bf16_f32 v{dst}, v{FR}, v{FR+1}", f"v_cvt_pk_bf16_f32 v{dst+1}, v{FR+2}, v{FR+3}",
                          f"v_cvt_pk_bf16_f32 v{dst+2}, v{FI}, v{FI+1}", f"v_cvt_pk_bf16_f32 v{dst+3}, v{FI+2}, v{FI+3}"])
            def sq():
                for h in (0, 2):
                    L.append(f"v_pk_mul_f32 {pk(T0+h)}, {pk(FI+h)}, {pk(FI+h)}")
                    L.append(f"v_pk_mul_f32 {pk(T1+h)}, {pk(FR+h)}, {pk(FI+h)}")
                for h in (0, 2):
                    L.append(f"v_pk_fma_f32 {pk(FR+h)}, {pk(FR+h)}, {pk(FR+h)}, {pk(T0+h)} neg_lo:[0,0,1] neg_hi:[0,0,1]")
                    L.append(f"v_pk_add_f32 {pk(FI+h)}, {pk(T1+h)}, {pk(T1+h)}")
            def gmul(q, dst):
                cr, ci = Q(q), Q(q+1)
                for h in (0, 2):
                    L.append(f"v_pk_mul_f32 {pk(T0+h)}, {pk(ci+h)}, {pk(FI+h)}")
                    L.append(f"v_pk_mul_f32 {pk(T1+h)}, {pk(ci+h)}, {pk(FR+h)}")
                for h in (0, 2):
                    L.append(f"v_pk_fma_f32 {pk(T0+h)}, {pk(cr+h)}, {pk(FR+h)}, {pk(T0+h)} neg_lo:[0,0,1] neg_hi:[0,0,1]")
                    L.append(f"v_pk_fma_f32 {pk(T1+h)}, {pk(cr+h)}, {pk(FI+h)}, {pk(T1+h)} neg_lo:[1,0,1] neg_hi:[1,0,1]")
                L.extend([f"v_cvt_pk_bf16_f32 v{dst}, v{T0}, v{T0+1}", f"v_cvt_pk_bf16_f32 v{dst+1}, v{T0+2}, v{T0+3}",
                          f"v_cvt_pk_bf16_f32 v{dst+2}, v{T1}, v{T1+1}", f"v_cvt_pk_bf16_f32 v{dst+3}, v{T1+2}, v{T1+3}"])
            def mm(T, A, F):
                c = '0' if first else v4(ACC+4*T)
                L.append(f"v_mfma_f32_16x16x32_bf16 {v4(ACC+4*T)}, {v4(A)}, {v4(F)}, {c}")
            packF(F0F); sq(); sq(); packF(F2F); sq(); sq()
            gmul(2, A0); mm(0, A0, F0F); gmul(4, A1); mm(1, A1, F0F)
            sq(); sq()
            gmul(6, A0); mm(2, A0, F2F); gmul(8, A1); mm(3, A1, F2F)
            return rd, L
        BA, BB = 8, 84
        def sprinkle(L, groups):
            step = max(1, len(L) // (len(groups) + 1)); out = []
            for i, x in enumerate(L):
                out.append(x)
                if groups and (i + 1) % step == 0: out += groups.pop(0)
            for g in groups: out += g
            return out
        for i in range(16): a(f"v_mov_b32 v{ACC+i}, 0")
        lk = a.label('KG'); lk2 = a.label('KG')
        a(f"s_mov_b32 {S_T4}, 0\n{lk}:")
        rdA, LA = kstep(BA, 0, False)
        rdB, LB = kstep(BB, 64, False)
        self.emit(rdA[:2] + rdB[:2] + rdA[2:] + rdB[2:])
        a("s_waitcnt lgkmcnt(15)")
        n_pre = 4+4+8+4 + 4+16+4+16
        self.emit(zipmerge(LA[:n_pre], LB[:n_pre]))
        a("s_waitcnt lgkmcnt(0)")
        self.emit(zipmerge(LA[n_pre:], LB[n_pre:]))
        a(f"v_add_u32 v1, 128, v1\ns_cmp_eq_u32 {S_T4}, 0\ns_cbranch_scc0 {lk2}")
        self.arrive_first()
        self.stamp()
        a(f"s_mov_b32 {S_T4}, 1\ns_branch {lk}\n{lk2}:\ns_nop 7")
        lf = a.label('AF')
        a(f"s_cmp_eq_u32 {S_W}, 0\ns_cbranch_scc0 {lf}\ns_mov_b64 exec, 1")
        self.arrive_finish()
        a(f"s_mov_b64 exec, -1\n{lf}:")
        self.sub(2)
        a(f"""
        s_lshr_b32 {S_T0}, {S_W}, 1
        s_mul_i32 {S_T0}, {S_T0}, 4224
        s_and_b32 {S_T1}, {S_W}, 1
        s_mul_i32 {S_T1}, {S_T1}, 8448
        s_add_u32 {S_T0}, {S_T0}, {S_T1}
        s_add_u32 {S_T0}, {S_T0}, {L_KD}
        v_mul_u32_u24 v1, 264, v{V_H}
        v_lshl_add_u32 v1, v{V_L16}, 2, v1
        v_add_u32 v1, {S_T0}, v1
        """)
        for T in range(4):
            for r in range(4):
                a(f"ds_write_b32 v1, v{ACC+4*T+r} offset:{1056*T+64*r+4*(r>>1)}")
        a("s_waitcnt vmcnt(0) lgkmcnt(0)\ns_barrier")
        self.sub(3)
        VAL = 8
        for part in range(2):
            for ch in range(2):
                for i in range(9):
                    a(f"ds_read_b32 v{VAL+18*part+9*ch+i}, v{IDX+i} offset:{8448*part + 4224*ch}")
        a(f"""
        v_cmp_ne_u32 vcc, 255, v0
        v_lshlrev_b32 v1, 4, v0
        v_add_u32 v1, {L_KC + 8}, v1
        s_waitcnt lgkmcnt(0)
        """)
        for i in range(18): a(f"v_add_f32 v{VAL+i}, v{VAL+i}, v{VAL+18+i}")
        a(f"v_cndmask_b32 v{VAL+8}, 0, v{VAL+8}, vcc\nv_cndmask_b32 v{VAL+17}, 0, v{VAL+17}, vcc")
        self.sub(4)
        for ch in range(2):
            for m0 in range(2):
                o = 80 + 4*(2*ch+m0)
                s0 = VAL + 9*ch + (1 - m0)
                for p in range(4): a(f"v_cvt_pk_bf16_f32 v{o+p}, v{s0+2*p}, v{s0+2*p+1}")
                a(f"ds_write_b64 v1, {pk(o)} offset:{ch*8448+m0*4224}")
                a(f"ds_write_b64 v1, {pk(o+2)} offset:{ch*8448+m0*4224+8}")
        a(f"""
        v_cmp_gt_u32 vcc, 14, v{V_L16}
        v_mul_u32_u24 v1, 4224, v{V_H}
        v_lshl_add_u32 v1, v{V_L16}, 2, v1
        v_add_u32 v1, {L_KC + 4104}, v1
        v_mov_b32 v2, 0
        s_cmp_eq_u32 {S_W}, 0
        s_cselect_b64 {S_EXS}, vcc, 0
        s_mov_b64 exec, {S_EXS}
        ds_write_b32 v1, v2
        s_mov_b64 exec, -1
        s_waitcnt lgkmcnt(0)
        """)
        self.sub(5)
        a("s_barrier")

    def wfrag_loads(self):
        setup = lines(f"""
        s_lshl_b32 {S_T0}, {S_CG}, 2
        s_add_u32 {S_T0}, {S_T0}, {S_W}
        s_lshl_b32 {S_T0}, {S_T0}, 14
        s_add_u32 {S_DS}, {S_T0}, {WQF}
        v_lshlrev_b32 v18, 4, v{V_LANE}
        """)
        groups = []
        for p in range(3):
            for ks in range(16):
                g = [f"buffer_load_dwordx4 a[{64*p+4*ks}:{64*p+4*ks+3}], v18, {SRD_WS}, {S_DS} offen sc1"]
                g.append(f"s_add_u32 {S_DS}, {S_DS}, {1024 if ks < 15 else (1 << 19) - 15*1024}")
                groups.append(g)
        return setup, groups

    def wsum(self, o=16):
        a = self.a
        for i in range(4): a(f"v_mov_b32 v{o+i}, {S_ONES}")
        for ks in range(16):
            for p in range(3):
                d = v4(o+4+4*p); c = '0' if ks == 0 else d
                w = f"a[{64*p+4*ks}:{64*p+4*ks+3}]"
                if p == 0: a(f"v_mfma_f32_16x16x32_bf16 {d}, {w}, {v4(o)}, {c}")
                else: a(f"v_mfma_f32_16x16x32_bf16 {d}, {v4(o)}, {w}, {c}")
        for i in range(4): a(f"v_mov_b32 v{V_WSQ+i}, v{o+4+i}")
        a(f"v_mov_b32 v{V_WSK}, v{o+8}\nv_mov_b32 v{V_WSV}, v{o+12}")

    CV = dict(XA=10, ST=20, AX=3, AS=4, AU0=5, AU1=6, AK=8, AU=9, ACC=80, X32=200, U32=216)
    def conv_pre(self):
        a = self.a
        a(f"""
        s_lshl_b32 {S_T0}, {S_ID}, 13
        s_add_u32 {S_T0}, {S_T0}, {S_XIN}
        v_lshlrev_b32 v3, 4, v0
        v_add_u32 v3, {S_T0}, v3
        v_lshlrev_b32 v4, 4, v0
        v_add_u32 v4, {S_ST}, v4
        v_lshlrev_b32 v5, 4, v0
        v_add_u32 v5, {L_U + 512}, v5
        v_add_u32 v6, 9280, v5
        v_bfe_u32 v1, v0, 5, 2
        v_mul_u32_u24 v1, 4640, v1
        v_and_b32 v2, 31, v0
        v_lshl_add_u32 v1, v2, 4, v1
        v_add_u32 v1, {L_U}, v1
        v_mov_b32 v36, 0
        v_mov_b32 v37, 0
        v_mov_b32 v38, 0
        v_mov_b32 v39, 0
        v_and_b32 v2, 1, v0
        v_mul_u32_u24 v2, 9280, v2
        v_add_u32 v2, {L_U + 512}, v2
        ds_write_b32 v2, v36
        v_cmp_gt_u32 vcc, 128, v0
        s_and_saveexec_b64 {S_EXS}, vcc
        ds_write_b128 v1, v[36:39]
        s_mov_b64 exec, -1
        s_lshr_b32 {S_T0}, {S_W}, 1
        s_and_b32 {S_T1}, {S_W}, 1
        s_mul_i32 {S_T2}, {S_T0}, 8448
        s_lshl_b32 {S_T3}, {S_T1}, 8
        s_sub_u32 {S_T2}, {S_T2}, {S_T3}
        s_add_u32 {S_T2}, {S_T2}, {L_KC + 4096 - 192 - 3584}
        v_and_b32 v1, 1, v{V_L16}
        v_lshrrev_b32 v7, 1, v{V_L16}
        v_mul_u32_u24 v8, 4224, v1
        v_lshl_add_u32 v8, v{V_H}, 4, v8
        v_lshlrev_b32 v9, 3, v7
        v_sub_u32 v8, v8, v9
        v_add_u32 v8, {S_T2}, v8
        s_mul_i32 {S_T2}, {S_T0}, 9280
        s_sub_u32 {S_T2}, {S_T2}, {S_T3}
        s_add_u32 {S_T2}, {S_T2}, {L_U + 512 - 192}
        v_mul_u32_u24 v9, 4640, v1
        v_lshl_add_u32 v9, v7, 6, v9
        v_lshl_add_u32 v9, v{V_H}, 4, v9
        v_add_u32 v9, {S_T2}, v9
        s_lshl_b32 {S_T1}, {S_T1}, 1
        s_add_u32 {S_T0}, {S_T0}, {S_T1}
        s_mul_i32 {S_T0}, {S_T0}, 9216
        s_add_u32 {S_T0}, {S_T0}, {L_Y}
        v_mul_u32_u24 v2, 144, v7
        v_lshl_add_u32 v2, v{V_H}, 5, v2
        v_lshl_add_u32 v2, v1, 3, v2
        v_add_u32 v2, {S_T0}, v2
        v_lshrrev_b32 v7, 2, v0
        v_lshlrev_b32 v7, 4, v7
        v_lshl_add_u32 v7, v0, 5, v7
        v_add_u32 v7, {L_Y}, v7
        s_waitcnt lgkmcnt(0)
        """)
        for i in (0, 1, 3):
            for q in range(8):
                for hh in range(2):
                    b = {0: 112, 1: 192, 3: 224}[i] + 4*q + 2*hh
                    reg = f"{'v' if i == 0 else 'a'}[{b}:{b+1}]"
                    a(f"ds_read_b64 {reg}, v8 offset:{(3-i)*64 + (7-q)*512 + 8*hh}")

    def conv(self):
        a = self.a
        self.sub(0)
        XA, XB, ST = 10, 14, 20
        for j in range(4):
            a(f"s_mov_b32 {S_T0}, {4096*j}\nbuffer_load_dwordx4 {v4(ST+4*j)}, v4, {SRD_WS}, {S_T0} offen sc1")
        a(f"""
        buffer_load_dwordx4 {v4(XA)}, v3, {SRD_WS}, 0 offen sc1
        v_add_u32 v1, 4096, v3
        buffer_load_dwordx4 {v4(XB)}, v1, {SRD_WS}, 0 offen sc1
        s_mov_b32 s66, {fx(1/512)}
        s_mov_b32 s67, {fx(1e-5)}
        v_mov_b32 v36, s66
        v_mov_b32 v37, s66
        v_mov_b32 v38, s67
        v_mov_b32 v39, s67
        """)
        setup, self.wg = self.wfrag_loads()
        l1 = a.label('CW'); l2 = a.label('CW')
        a(f"s_cmp_eq_u32 {S_LAYER}, 0\ns_cselect_b64 vcc, -1, 0\ns_cbranch_scc0 {l1}")
        self.emit(setup)
        for g in self.wg[:12]: self.emit(g)
        a(f"s_waitcnt vmcnt(14)\ns_branch {l2}\n{l1}:\ns_waitcnt vmcnt(2)\n{l2}:")
        self.sub(1)
        S = lambda i: ST + 2*i
        P  = 40
        MB = 48; VB = 56; R = 64; MR = 72
        for i in range(8): a(f"v_pk_mul_f32 {pk(S(i))}, {pk(S(i))}, v[36:37]")
        for i in range(8): a(f"v_fma_f32 v{S(i)+1}, -v{S(i)}, v{S(i)}, v{S(i)+1}")
        for i in range(8): a(f"v_cvt_pk_bf16_f32 v{P+i}, v{S(i)}, v{S(i)+1}")
        for i in range(8): a(f"v_and_b32 v{VB+i}, 0xffff0000, v{P+i}")
        for i in range(4): a(f"v_pk_add_f32 {pk(VB+2*i)}, {pk(VB+2*i)}, v[38:39]")
        for i in range(8): a(f"v_lshlrev_b32 v{MB+i}, 16, v{P+i}")
        for i in range(4): a(f"v_cvt_pk_bf16_f32 v{P+i}, v{VB+2*i}, v{VB+2*i+1}")
        for i in range(4):
            a(f"v_lshlrev_b32 v{VB+2*i}, 16, v{P+i}\nv_and_b32 v{VB+2*i+1}, 0xffff0000, v{P+i}")
        X32, U32 = 200, 216
        fill = []
        for c, X in enumerate((XA, XB)):
            for p in range(4):
                fill.append(f"v_lshlrev_b32 v{X32+8*c+2*p}, 16, v{X+p}")
                fill.append(f"v_and_b32 v{X32+8*c+2*p+1}, 0xffff0000, v{X+p}")
        for i in range(8): a(f"v_sqrt_f32 v{VB+i}, v{VB+i}")
        for i in range(4): a(f"v_cvt_pk_bf16_f32 v{P+i}, v{VB+2*i}, v{VB+2*i+1}")
        for i in range(4):
            a(f"v_lshlrev_b32 v{VB+2*i}, 16, v{P+i}\nv_and_b32 v{VB+2*i+1}, 0xffff0000, v{P+i}")
        l1 = a.label('CW'); l2 = a.label('CW')
        a(f"s_cbranch_vccz {l1}\ns_waitcnt vmcnt(12)\ns_branch {l2}\n{l1}:\ns_waitcnt vmcnt(0)\n{l2}:")
        self.emit(weave([f"v_rcp_f32 v{R+i}, v{VB+i}" for i in range(8)], fill, per=2))
        for i in range(4): a(f"v_pk_mul_f32 {pk(MR+2*i)}, {pk(MB+2*i)}, {pk(R+2*i)}")
        self.sub(2)
        for c in range(2):
            for p in range(4):
                x = X32+8*c+2*p; u = U32+8*c+2*p
                a(f"v_pk_fma_f32 {pk(u)}, {pk(x)}, {pk(R+2*p)}, {pk(MR+2*p)} neg_lo:[0,0,1] neg_hi:[0,0,1]")
        UP = 40
        for c in range(2):
            for p in range(4):
                u = U32+8*c+2*p
                a(f"v_cvt_pk_bf16_f32 v{UP+4*c+p}, v{u}, v{u+1}")
            ad = 5 + c
            a(f"ds_write_b128 v{ad}, {v4(UP+4*c)} offset:4640")
            a(f"ds_write2_b32 v{ad}, v{UP+4*c}, v{UP+4*c+1} offset0:1 offset1:2")
            a(f"ds_write2_b32 v{ad}, v{UP+4*c+2}, v{UP+4*c+3} offset0:3 offset1:4")
        AK, AU, ACC = 8, 9, 80
        a("s_waitcnt lgkmcnt(0)\ns_barrier")
        self.sub(3)
        ABASE = {0: ('v', 112), 1: ('a', 192), 2: ('v', 40), 3: ('a', 224)}
        def fragA(i, q):
            f, b = ABASE[i]; return f"{f}[{b+4*q}:{b+4*q+3}]"
        BB = [[144+4*q for q in range(8)], [176, 180, 184, 188, 192, 196, 72, 76]]
        def fragB(st, q): return v4(BB[st][q])
        def loadB(i, st): return [f"ds_read_b128 {fragB(st, q)}, v{AU} offset:{(3-i)*64 + 512*q}" for q in range(8)]
        def loadA2():
            L = []
            for q in range(8):
                for hh in range(2):
                    b = 40 + 4*q + 2*hh
                    L.append(f"ds_read_b64 v[{b}:{b+1}], v{AK} offset:{(3-2)*64 + (7-q)*512 + 8*hh}")
            return L
        self.emit(loadB(0, 0))
        def mainloop(groups):
            written = set(); cnt = 0
            for i in range(4):
                st = i & 1
                a("s_waitcnt lgkmcnt(0)")
                nxt = loadB(i+1, st ^ 1) if i < 3 else []
                if i == 0: nxt = nxt + loadA2()
                for sh in range(8):
                    for t in range(sh, 8):
                        c = v4(ACC+4*t) if t in written else '0'
                        written.add(t)
                        a(f"v_mfma_f32_16x16x32_bf16 {v4(ACC+4*t)}, {fragA(i, sh)}, {fragB(st, t-sh)}, {c}")
                        cnt += 1
                        if nxt: a(nxt.pop(0))
                        if groups and cnt % 20 == 10:
                            lg = a.label('WG')
                            a(f"s_cbranch_vccz {lg}")
                            for _ in range(4): self.emit(groups.pop(0))
                            a(f"{lg}:")
            assert not groups
        mainloop(self.wg[12:36])
        lb = a.label('WB')
        a(f"s_cbranch_vccz {lb}")
        for g in self.wg[36:]: self.emit(g)
        a(f"{lb}:")
        self.sub(4)
        for t in range(8):
            a(f"ds_write_b64 v2, {pk(ACC+4*t)} offset:{1152*t}")
            a(f"ds_write_b64 v2, {pk(ACC+4*t+2)} offset:{1152*t+16}")
        a("s_waitcnt lgkmcnt(0)\ns_barrier")
        self.sub(5)
        Y0 = 112
        for ch in range(2):
            for sh in range(2):
                for hh in range(2):
                    b = Y0 + 16*sh + 8*ch + 4*hh
                    a(f"ds_read_b128 {v4(b)}, v7 offset:{sh*18432 + ch*9216 + 16*hh}")
        a(f"""
        v_subrev_u32 v3, {S_XIN}, v3
        v_add_u32 v3, {S_XOUT}, v3
        v_add_u32 v1, 4096, v3
        """)
        for ch in range(2):
            a(f"s_waitcnt lgkmcnt({4*(1-ch)})")
            D = V_DSK0 if ch == 0 else V_DSK1
            for p in range(4):
                y = Y0 + 8*ch + 2*p
                a(f"v_pk_add_f32 {pk(y)}, {pk(y)}, {pk(y+16)}")
            for p in range(4):
                y = Y0 + 8*ch + 2*p; u = U32 + 8*ch + 2*p
                a(f"v_pk_fma_f32 {pk(y)}, {pk(u)}, {pk(D)}, {pk(y)} op_sel_hi:[1,0,1]")
            for p in range(4):
                y = Y0 + 8*ch + 2*p; x = X32 + 8*ch + 2*p
                a(f"v_pk_add_f32 {pk(y)}, {pk(y)}, {pk(x)}")
            for p in range(4):
                y = Y0 + 8*ch + 2*p
                a(f"v_cvt_pk_bf16_f32 v{80+4*ch+p}, v{y}, v{y+1}")
            a(f"buffer_store_dwordx4 {v4(80+4*ch)}, v{3 if ch == 0 else 1}, {SRD_WS}, 0 offen sc1")
        self.sub(6)
        self.subflush(0, 7)

    def wstage_kv(self):
        a = self.a
        l = a.label('WS')
        a(f"s_cmp_eq_u32 {S_LAYER}, 0\ns_cbranch_scc0 {l}")
        self.wsum()
        a(f"{l}:")

    def qkv_pre(self):
        a = self.a
        t = 10
        a(f"""
        v_lshrrev_b32 v{t}, 3, v{V_LANE}
        v_lshlrev_b32 v{t}, 12, v{t}
        v_bfe_u32 v{t+1}, v{V_LANE}, 1, 2
        v_bfe_u32 v{t+2}, v{V_LANE}, 4, 1
        s_and_b32 {S_T0}, {S_W}, 1
        s_lshl_b32 {S_T0}, {S_T0}, 1
        v_or_b32 v{t+2}, {S_T0}, v{t+2}
        v_xor_b32 v{t+1}, v{t+1}, v{t+2}
        v_lshl_add_u32 v{t}, v{t+1}, 5, v{t}
        v_and_b32 v{t+1}, 1, v{V_LANE}
        v_lshl_add_u32 v{t}, v{t+1}, 4, v{t}
        s_lshl_b32 {S_T0}, {S_RT}, 7
        v_add_u32 v{t}, {S_T0}, v{t}
        s_lshl_b32 {S_DS}, {S_W}, 15
        s_add_u32 {S_DS}, {S_DS}, {S_XIN}
        s_lshl_b32 {S_DM}, {S_W}, 10
        s_add_u32 {S_DM}, {S_DM}, {L_XL}
        """)
        t = 12
        a(f"""
        v_lshrrev_b32 v{t}, 2, v{V_L16}
        v_lshl_add_u32 v{t+1}, v{V_H}, 3, v{t}
        v_lshlrev_b32 v{t+1}, 7, v{t+1}
        v_and_b32 v{t+2}, 3, v{V_L16}
        v_lshl_add_u32 v{t+1}, v{t+2}, 3, v{t+1}
        v_add_u32 v{t+1}, {L_XL}, v{t+1}
        v_lshrrev_b32 v{t}, 1, v{t}
        v_and_b32 v{t+2}, 1, v{V_H}
        v_lshl_or_b32 v{t}, v{t+2}, 1, v{t}
        v_xor_b32 v{t}, {S_W}, v{t}
        """)
        for j in range(4):
            a(f"v_xor_b32 v{t+2}, {j}, v{t}\nv_lshl_add_u32 v{4+j}, v{t+2}, 5, v{t+1}")
        for i in range(4): a(f"v_mov_b32 v{104+i}, {S_ONES}")
        a(f"""
        s_mov_b32 s66, {fx(1e-6)}
        s_mov_b32 s67, {fx(LOG2E)}
        v_mov_b32 v112, s66
        v_mov_b32 v113, s66
        v_mov_b32 v114, s67
        v_mov_b32 v115, s67
        """)

    def qkv(self):
        a = self.a
        self.sub(0)
        def dma():
            return lines(f"""
            s_mov_b32 m0, {S_DM}
            s_add_u32 {S_DM}, {S_DM}, 4096
            buffer_load_dwordx4 v10, {SRD_WS}, {S_DS} offen sc1 lds
            s_add_u32 {S_DS}, {S_DS}, {4*32768}
            """)
        NUPF = int(os.environ.get('NUPF', '12'))
        for i in range(NUPF): self.emit(dma())
        AD = 4
        AK_, AV_, AQ_ = 16, 32, 48
        DS, DG = 64, 68
        ONES = 104
        XF = [72, 88]
        def xload(ks, st):
            L = []
            for j in range(4):
                b = XF[st] + 4*j
                L.append(f"ds_read_b64_tr_b16 {pk(b)}, v{AD+j} offset:{ks*4096}")
                L.append(f"ds_read_b64_tr_b16 {pk(b+2)}, v{AD+j} offset:{ks*4096+512}")
            return L
        S_WDS, S_WDM = 's84', 's85'
        a(f"""
        s_lshl_b32 {S_WDS}, {S_CG}, 16
        s_lshl_b32 {S_T0}, {S_W}, 14
        s_add_u32 {S_WDS}, {S_WDS}, {S_T0}
        s_add_u32 {S_WDS}, {S_WDS}, {WOFG}
        s_add_u32 {S_WDM}, {S_T0}, {L_WO}
        v_lshlrev_b32 v111, 4, v{V_LANE}
        """)
        def wo_group():
            lg = a.label('WOG')
            a(f"s_cmp_eq_u32 {S_LAYER}, 0\ns_cbranch_scc0 {lg}")
            for _ in range(4):
                a(f"""
                s_mov_b32 m0, {S_WDM}
                s_add_u32 {S_WDM}, {S_WDM}, 1024
                buffer_load_dwordx4 v111, {SRD_WS}, {S_WDS} offen sc1 lds
                s_add_u32 {S_WDS}, {S_WDS}, 1024
                """)
            a(f"{lg}:")
        SF = [200, 208]
        S = {0: [0], 1: [1, 2], 2: [3, 4], 3: [5, 6], 4: [7, 8], 5: [9, 10], 6: [11, 12], 7: [13, 14], 8: [15]}
        def sload(ks, st):
            L = []
            for n, kss in enumerate(S.get(ks, [])):
                b = SF[st] + 4*n
                L.append(f"ds_read_b64_tr_b16 {pk(b)}, v{AD} offset:{kss*4096}")
                L.append(f"ds_read_b64_tr_b16 {pk(b+2)}, v{AD} offset:{kss*4096+512}")
            return L
        ndma = [NUPF]
        landed = [-1]
        def need(idx):
            if idx <= landed[0]: return []
            landed[0] = idx
            return [f"s_waitcnt vmcnt({ndma[0] - 1 - idx})", "s_barrier"]
        waits = {0: 2, 1: 4, 2: 8, 4: 12, 6: 15}
        self.emit(need(1))
        self.sub(1)
        self.emit(xload(0, 0) + sload(0, 0))
        self.P1 = {}
        fillers = {}
        def pass1(ks, extra):
            st = ks & 1
            a("s_waitcnt lgkmcnt(0)")
            if ks in waits: self.emit(need(waits[ks]))
            fill = (xload(ks+1, st ^ 1) + sload(ks+1, st ^ 1)) if ks + 1 < 16 else xload(0, st ^ 1)
            M = []
            for j in range(4):
                x = v4(XF[st]+4*j)
                ck = '0' if ks == 0 else v4(AK_+4*j); cv = '0' if ks == 0 else v4(AV_+4*j)
                M.append(f"v_mfma_f32_16x16x32_bf16 {v4(AK_+4*j)}, {x}, a[{64+4*ks}:{64+4*ks+3}], {ck}")
                M.append(f"v_mfma_f32_16x16x32_bf16 {v4(AV_+4*j)}, {x}, a[{128+4*ks}:{128+4*ks+3}], {cv}")
                if ks >= 8:
                    M.append(f"v_mfma_f32_16x16x32_bf16 {v4(AQ_+4*j)}, a[{4*ks}:{4*ks+3}], {x}, {'0' if ks == 8 else v4(AQ_+4*j)}")
            for n, kss in enumerate(S.get(ks, [])):
                x0 = v4(SF[st] + 4*n)
                M.append(f"v_mfma_f32_16x16x32_bf16 {v4(DS)}, {v4(ONES)}, {x0}, {'0' if kss == 0 else v4(DS)}")
                M.append(f"v_mfma_f32_16x16x32_bf16 {v4(DG)}, {x0}, {x0}, {'0' if kss == 0 else v4(DG)}")
            k = min(2, 16 - ndma[0])
            for _ in range(k): fill = fill + dma()
            ndma[0] += k
            out = []; fi = list(fill); ex = list(extra)
            for mi, m in enumerate(M):
                out.append(m)
                n = 2
                while n > 0 and fi: out.append(fi.pop(0)); n -= 1
                while n > 0 and ex: out.append(ex.pop(0)); n -= 1
            out += fi
            self.emit(out)
            return ex
        self._pass1 = pass1
        SQ = 109
        F1 = lines(f"""
        v_and_b32 v8, 3, v{V_L16}
        v_lshrrev_b32 v9, 2, v{V_L16}
        v_cmp_eq_u32 s[66:67], 1, v8
        v_cmp_eq_u32 s[68:69], 2, v8
        v_cmp_eq_u32 vcc, 3, v8
        v_cndmask_b32 v{SQ}, v{DG}, v{DG+1}, s[66:67]
        v_cndmask_b32 v{SQ}, v{SQ}, v{DG+2}, s[68:69]
        v_cndmask_b32 v{SQ}, v{SQ}, v{DG+3}, vcc
        v_cmp_eq_u32 vcc, v9, v{V_H}
        s_lshl_b32 {S_T0}, {S_W}, 6
        s_add_u32 {S_T0}, {S_T0}, {L_S2R}
        v_cndmask_b32 v{SQ}, 0, v{SQ}, vcc
        v_lshlrev_b32 v8, 2, v{V_L16}
        v_add_u32 v9, {S_T0}, v8
        """)
        F1 += self.reduce_h(SQ, 110)
        F1 += self.ln_final1(DS, SQ, 116, 117, 118)
        F1 += lines(f"""
        ds_write_b32 v9, v116
        ds_write_b32 v9, v117 offset:{L_S2M-L_S2R}
        v_lshlrev_b32 v8, 4, v{V_H}
        v_add_u32 v8, {S_T0}, v8
        """)
        R4, M4 = 128, 144
        RQ, MQ = 160, 208
        F2 = []
        for j in range(4):
            F2.append(f"v_xor_b32 v{120+j}, {64*j}, v8")
            F2.append(f"v_xor_b32 v{124+j}, {64*j}, v9")
        for j in range(4):
            F2.append(f"ds_read_b128 {v4(R4+4*j)}, v{120+j}")
            F2.append(f"ds_read_b128 {v4(M4+4*j)}, v{120+j} offset:{L_S2M-L_S2R}")
        for j in range(4):
            F2.append(f"ds_read_b32 v{RQ+2*j}, v{124+j}")
            F2.append(f"ds_read_b32 v{MQ+2*j}, v{124+j} offset:{L_S2M-L_S2R}")
        EPS, L2E = 112, 114
        def phi(x, T):
            return [f"v_pk_mul_f32 {pk(T)}, {pk(x)}, {pk(L2E)}",
                    f"v_exp_f32_e64 v{T}, v{T} clamp", f"v_exp_f32_e64 v{T+1}, v{T+1} clamp",
                    f"v_max_f32 v{x}, v{EPS}, v{x}", f"v_max_f32 v{x+1}, v{EPS}, v{x+1}",
                    f"v_pk_add_f32 {pk(x)}, {pk(x)}, {pk(T)}"]
        PKF, VF, PQF = 168, 176, 200
        DKV, DZ = 196, 216
        def kv_chain(j, h2, T):
            k = AK_+4*j+h2; vv = AV_+4*j+h2; r = R4+4*j+h2; m = M4+4*j+h2
            c = [f"v_pk_fma_f32 {pk(T)}, {pk(m)}, v[{V_WSK}:{V_WSK+1}], {pk(EPS)} op_sel_hi:[1,0,1] neg_lo:[0,0,1] neg_hi:[0,0,1]",
                 f"v_pk_mul_f32 {pk(T+4)}, {pk(m)}, v[{V_WSV}:{V_WSV+1}] op_sel_hi:[1,0]",
                 f"v_pk_fma_f32 {pk(k)}, {pk(k)}, {pk(r)}, {pk(T)} neg_lo:[0,0,1] neg_hi:[0,0,1]",
                 f"v_pk_fma_f32 {pk(vv)}, {pk(vv)}, {pk(r)}, {pk(T+4)} neg_lo:[0,0,1] neg_hi:[0,0,1]"]
            ph = phi(k, T+2)
            c += [ph[0], f"v_cvt_pk_bf16_f32 v{VF + 2*j + h2//2}, v{vv}, v{vv+1}"] + ph[1:]
            c.append(f"v_cvt_pk_bf16_f32 v{PKF + 2*j + h2//2}, v{k}, v{k+1}")
            return c
        def q_chain(j, h2, T):
            q = AQ_+4*j+h2
            c = [f"v_pk_fma_f32 {pk(T)}, {pk(MQ+2*j)}, {pk(V_WSQ+h2)}, {pk(EPS)} op_sel_hi:[0,1,1] neg_lo:[0,0,1] neg_hi:[0,0,1]",
                 f"v_pk_fma_f32 {pk(q)}, {pk(q)}, {pk(RQ+2*j)}, {pk(T)} op_sel_hi:[1,0,1] neg_lo:[0,0,1] neg_hi:[0,0,1]"]
            c += phi(q, T+2)
            c.append(f"v_cvt_pk_bf16_f32 v{PQF + 2*j + h2//2}, v{q}, v{q+1}")
            return c
        adr = lines(f"""
        s_lshl_b32 {S_T0}, {S_CG}, 2
        s_add_u32 {S_T0}, {S_T0}, {S_W}
        s_lshl_b32 {S_T1}, {S_T0}, 10
        s_add_u32 {S_T1}, {S_T1}, {S_KV}
        v_lshlrev_b32 v11, 2, v{V_LANE}
        v_add_u32 v14, {S_T1}, v11
        s_lshl_b32 {S_T1}, {S_T0}, 6
        s_add_u32 {S_T1}, {S_T1}, {S_Z}
        v_add_u32 v15, {S_T1}, v11
        s_lshl_b32 {S_T1}, {S_RT}, 16
        s_add_u32 {S_T1}, {S_T1}, {S_PQ}
        s_lshl_b32 {S_T2}, {S_T0}, 10
        s_add_u32 {S_T1}, {S_T1}, {S_T2}
        s_and_b32 {S_T2}, {S_W}, 1
        s_lshl_b32 {S_T2}, {S_T2}, 4
        v_xor_b32 v11, {S_T2}, v{V_LANE}
        v_lshlrev_b32 v11, 4, v11
        v_add_u32 v11, {S_T1}, v11
        s_lshr_b32 {S_T2}, {S_W}, 1
        s_lshl_b32 {S_T2}, {S_T2}, 15
        v_add_u32 v12, {S_T2}, v11
        s_xor_b32 {S_T2}, {S_T2}, 0x8000
        v_add_u32 v13, {S_T2}, v11
        """)
        def passQ(ks_range):
            for ks in ks_range:
                st = ks & 1
                nx = xload(ks+1, st ^ 1) if ks + 1 < 8 else []
                a("s_waitcnt lgkmcnt(0)")
                for j in range(4):
                    x = v4(XF[st]+4*j)
                    a(f"v_mfma_f32_16x16x32_bf16 {v4(AQ_+4*j)}, a[{4*ks}:{4*ks+3}], {x}, {v4(AQ_+4*j)}")
                    k = 4 if j < 2 else 0
                    for _ in range(k):
                        if nx: a(nx.pop(0))
        for ks in range(0, 9):
            pass1(ks, [])
            if ks == 3: self.sub(2)
        self.sub(3)
        ex = list(F1)
        for ks in range(9, 12): ex = pass1(ks, ex)
        self.emit(ex)
        a("s_waitcnt lgkmcnt(0)\ns_barrier")
        self.sub(4)
        ex = list(F2) + adr
        for ks in range(12, 16):
            ex = pass1(ks, ex)
            if ks == 12: wo_group()
        self.emit(ex)
        wo_group()
        a("s_waitcnt lgkmcnt(0)")
        self.sub(5)
        TT = [184, 190, 220, 226]
        for j0 in (0, 2):
            self.emit(zipmerge(kv_chain(j0, 0, TT[0]), kv_chain(j0, 2, TT[1]), kv_chain(j0+1, 0, TT[2]), kv_chain(j0+1, 2, TT[3])))
            u = j0 // 2
            c1 = '0' if u == 0 else v4(DKV); c2 = '0' if u == 0 else v4(DZ)
            a(f"v_mfma_f32_16x16x32_bf16 {v4(DKV)}, {v4(VF+4*u)}, {v4(PKF+4*u)}, {c1}")
            a(f"v_mfma_f32_16x16x32_bf16 {v4(DZ)}, {v4(ONES)}, {v4(PKF+4*u)}, {c2}")
        for i in range(4):
            a(f"buffer_atomic_add_f32 v{DKV+i}, v14, {SRD_WS}, 0 offen offset:{256*i}")
        a(f"""
        s_mov_b64 exec, 0xffff
        buffer_atomic_add_f32 v{DZ}, v15, {SRD_WS}, 0 offen
        s_mov_b64 exec, -1
        """)
        wo_group()
        passQ(range(0, 4))
        wo_group()
        passQ(range(4, 8))
        TQ = [184, 188, 220, 224]
        for u in range(2):
            j0 = 2*u
            self.emit(zipmerge(q_chain(j0, 0, TQ[0]), q_chain(j0, 2, TQ[1]), q_chain(j0+1, 0, TQ[2]), q_chain(j0+1, 2, TQ[3])))
            b = PQF + 4*u
            a(f"v_permlane16_swap_b32 v{b}, v{b+2}\nv_permlane16_swap_b32 v{b+1}, v{b+3}")
            a(f"buffer_store_dwordx4 {v4(b)}, v{12+u}, {SRD_WS}, 0 offen sc1")
        self.sub(6)
        self.subflush(1, 7)

    def outp_pre(self):
        a = self.a
        a(f"""
        s_lshl_b32 {S_T0}, {S_W}, 13
        s_add_u32 {S_T0}, {S_T0}, {S_KV}
        v_lshlrev_b32 v4, 4, v{V_LANE}
        v_add_u32 v4, {S_T0}, v4
        v_add_u32 v5, 4096, v4
        s_lshl_b32 {S_T0}, {S_W}, 9
        s_add_u32 {S_T0}, {S_T0}, {S_Z}
        v_and_b32 v6, 31, v{V_LANE}
        v_lshlrev_b32 v6, 4, v6
        v_add_u32 v6, {S_T0}, v6
        s_and_b32 {S_T0}, {S_W}, 1
        s_lshl_b32 {S_T0}, {S_T0}, 15
        s_lshr_b32 {S_T1}, {S_W}, 1
        s_lshl_b32 {S_T1}, {S_T1}, 14
        s_add_u32 {S_T0}, {S_T0}, {S_T1}
        s_lshl_b32 {S_T1}, {S_RT}, 16
        s_add_u32 {S_T0}, {S_T0}, {S_T1}
        s_add_u32 {S_DS}, {S_T0}, {S_PQ}
        v_lshlrev_b32 v7, 4, v{V_LANE}
        v_lshrrev_b32 v1, 3, v0
        v_and_b32 v3, 7, v0
        s_lshl_b32 {S_T0}, {S_CG}, 18
        s_lshl_b32 {S_T1}, {S_RT}, 7
        s_add_u32 {S_T0}, {S_T0}, {S_T1}
        v_lshlrev_b32 v8, 12, v1
        v_lshl_add_u32 v8, v3, 4, v8
        v_add_u32 v8, {S_T0}, v8
        v_add_u32 v9, {S_XIN}, v8
        v_add_u32 v2, 0x20000, v9
        v_lshrrev_b32 v10, 4, v{V_LANE}
        v_bfe_u32 v11, v{V_LANE}, 2, 2
        v_lshl_add_u32 v10, v11, 2, v10
        v_bfe_u32 v11, v{V_LANE}, 1, 1
        v_lshl_add_u32 v10, v11, 4, v10
        v_lshlrev_b32 v10, 4, v10
        v_and_b32 v11, 1, v{V_LANE}
        v_lshl_add_u32 v10, v11, 3, v10
        s_mul_i32 {S_T0}, {S_W}, {8*544}
        s_add_u32 {S_T0}, {S_T0}, {L_KVF}
        v_add_u32 v10, {S_T0}, v10
        v_bfe_u32 v11, v{V_LANE}, 2, 3
        v_mul_u32_u24 v11, 544, v11
        v_and_b32 v12, 3, v{V_LANE}
        v_lshl_add_u32 v11, v12, 3, v11
        v_add_u32 v11, {S_T0}, v11
        v_and_b32 v12, 31, v{V_LANE}
        v_lshrrev_b32 v13, 5, v{V_LANE}
        v_lshlrev_b32 v14, 4, v13
        v_add_u32 v15, v14, v12
        v_lshlrev_b32 v15, 4, v15
        v_lshlrev_b32 v14, 4, v13
        v_add_u32 v14, 512, v14
        v_cmp_gt_u32 vcc, 16, v12
        v_cndmask_b32 v15, v14, v15, vcc
        s_lshr_b32 {S_T0}, {S_W}, 1
        s_mul_i32 {S_T1}, {S_T0}, {16*544}
        s_add_u32 {S_T1}, {S_T1}, {L_KVF}
        v_add_u32 v15, {S_T1}, v15
        v_lshrrev_b32 v16, 2, v{V_L16}
        v_lshrrev_b32 v17, 1, v{V_H}
        v_lshl_add_u32 v17, v17, 2, v16
        v_lshlrev_b32 v17, 7, v17
        v_and_b32 v18, 3, v{V_L16}
        v_lshl_add_u32 v17, v18, 3, v17
        s_lshl_b32 {S_T1}, {S_T0}, 15
        s_add_u32 {S_T1}, {S_T1}, {L_WO}
        v_add_u32 v17, {S_T1}, v17
        v_and_b32 v18, 2, v16
        v_and_b32 v19, 1, v{V_H}
        v_xor_b32 v18, v18, v19
        v_lshl_add_u32 v13, v18, 5, v17
        v_xor_b32 v18, 2, v18
        v_lshl_add_u32 v14, v18, 5, v17
        s_mul_i32 {S_T1}, {S_T0}, {64*272}
        s_and_b32 {S_T0}, {S_W}, 1
        s_lshl_b32 {S_T0}, {S_T0}, 7
        s_add_u32 {S_T1}, {S_T1}, {S_T0}
        s_add_u32 {S_T1}, {S_T1}, {L_O32}
        v_mul_u32_u24 v16, 272, v12
        v_lshrrev_b32 v17, 5, v{V_LANE}
        v_lshl_add_u32 v16, v17, 4, v16
        v_add_u32 v16, {S_T1}, v16
        v_mul_u32_u24 v17, 272, v1
        v_lshl_add_u32 v17, v3, 5, v17
        v_add_u32 v17, {L_O32}, v17
        v_mul_u32_u24 v18, 144, v1
        v_lshl_add_u32 v18, v3, 4, v18
        v_add_u32 v18, {L_OT}, v18
        """)
        a(f"""
        s_lshr_b32 {S_T0}, {S_W}, 1
        s_lshl_b32 {S_T0}, {S_T0}, 15
        s_add_u32 {S_T0}, {S_T0}, {L_WO}
        v_lshlrev_b32 v13, 4, v{V_LANE}
        v_add_u32 v13, {S_T0}, v13
        """)
        for i in range(16):
            for c in range(2):
                a(f"ds_read_b128 {v4(WOF + 8*i + 4*c)}, v13 offset:{i*2048 + c*1024}")

    def outp(self):
        a = self.a
        self.sub(0)
        KVL = 24
        issued = []
        def ld(txt, tag): a(txt); issued.append(tag)
        for p in range(8):
            ad = 4 if p < 4 else 5; off = (p & 3)*1024
            ld(f"buffer_load_dwordx4 {v4(KVL+4*p)}, v{ad}, {SRD_WS}, 0 offen offset:{off} sc1", 'kv')
        ld(f"buffer_load_dwordx4 v[56:59], v6, {SRD_WS}, 0 offen sc1", 'kv')
        def pqload(i):
            ld(f"buffer_load_dwordx4 a[{192+4*i}:{192+4*i+3}], v7, {SRD_WS}, {S_DS} offen sc1", f'pq{i}')
            a(f"s_add_u32 {S_DS}, {S_DS}, 1024")
        NUP = 4
        for i in range(NUP): pqload(i)
        def vm(tag):
            idx = max(i for i, t in enumerate(issued) if t == tag)
            return len(issued) - 1 - idx
        self.sub(1)
        a(f"s_waitcnt vmcnt({vm('kv')})")
        self.sub(2)
        for p in range(8):
            b = KVL + 4*p
            a(f"v_cvt_pk_bf16_f32 v{b}, v{b}, v{b+1}\nv_cvt_pk_bf16_f32 v{b+1}, v{b+2}, v{b+3}")
            a(f"ds_write_b64 v10, {pk(b)} offset:{p*544}")
        a("v_cvt_pk_bf16_f32 v56, v56, v57\nv_cvt_pk_bf16_f32 v57, v58, v59")
        a(f"ds_write_b64 v11, v[56:57] offset:512")
        AKV = 15
        ACC = [72, 88]
        D1 = [32, 48]; KF = [20, 24, 28]; OF = [64, 68]
        XR = WOF
        for i in range(NUP, 10): pqload(i)
        a("s_waitcnt lgkmcnt(0)\ns_barrier")
        self.sub(3)
        def acc(c): return f"v[{ACC[c]}:{ACC[c]+15}]"
        def rdK(i): return [f"ds_read_b128 {v4(KF[i % 3])}, v{AKV} offset:{i*544}"]
        def m1(i): return f"v_mfma_f32_32x32x16_bf16 v[{D1[i&1]}:{D1[i&1]+15}], {v4(KF[i % 3])}, a[{192+4*i}:{192+4*i+3}], 0"
        def valu(i):
            d = D1[i & 1]; o = OF[i & 1]
            L = [f"v_add_f32 v{d+8}, {fx(1e-6)}, v{d+8}", f"v_rcp_f32 v{d+8}, v{d+8}"]
            L += [f"v_mul_f32 v{d+p}, v{d+p}, v{d+8}" for p in range(8)]
            L += [f"v_cvt_pk_bf16_f32 v{o+p}, v{d+2*p}, v{d+2*p+1}" for p in range(4)]
            return L
        def mo(i, c):
            b = WOF + 8*i + 4*c
            return f"v_mfma_f32_32x32x16_bf16 {acc(c)}, {v4(OF[i&1])}, {v4(b)}, {'0' if i == 0 else acc(c)}"
        self.emit(rdK(0) + rdK(1) + rdK(2))
        a(f"s_waitcnt vmcnt({vm('pq0')}) lgkmcnt(2)")
        a(m1(0))
        a(f"s_waitcnt vmcnt({vm('pq1')}) lgkmcnt(1)")
        a(m1(1))
        self.emit(valu(0))
        nxt = 10
        for i in range(16):
            V = valu(i+1) if i + 1 < 16 else []
            K_ = rdK(i+3) if i + 3 < 16 else []
            if i + 2 < 16: a(f"s_waitcnt vmcnt({vm(f'pq{i+2}')}) lgkmcnt(0)")
            a(mo(i, 0))
            self.emit(V[:2] + K_ + V[2:4])
            if i + 2 < 16: a(m1(i+2))
            self.emit(V[4:10])
            a(mo(i, 1))
            self.emit(V[10:])
            if nxt < 16:
                pqload(nxt); nxt += 1
            if i == 6:
                ld(f"buffer_load_dwordx4 {v4(XR)}, v9, {SRD_WS}, 0 offen sc1", 'x')
                ld(f"buffer_load_dwordx4 {v4(XR+4)}, v2, {SRD_WS}, 0 offen sc1", 'x')
        self.sub(4)
        for c in range(2):
            for aa in range(4):
                a(f"ds_write_b128 v16, {v4(ACC[c]+4*aa)} offset:{c*32*272 + 32*aa}")
        a("s_waitcnt lgkmcnt(0)\ns_barrier")
        Y = 32
        for i in range(2):
            for part in range(2):
                for hh in range(2):
                    a(f"ds_read_b128 {v4(Y+16*i+8*part+4*hh)}, v17 offset:{i*32*272 + part*64*272 + 16*hh}")
        a("s_waitcnt vmcnt(0)")
        self.sub(5)
        lf = a.label('FIN'); le = a.label('OE'); lx = a.label('OX')
        a(f"v_add_u32 v8, {S_XOUT}, v8\nv_add_u32 v9, 0x20000, v8")
        for i in range(2):
            a(f"s_waitcnt lgkmcnt({4*(1-i)})")
            y = Y + 16*i; x = XR + 4*i; t = 132 + 8*i
            for p in range(4): a(f"v_pk_add_f32 {pk(y+2*p)}, {pk(y+2*p)}, {pk(y+8+2*p)}")
            for p in range(4): a(f"v_cvt_pk_bf16_f32 v{y+8+p}, v{y+2*p}, v{y+2*p+1}")
            for p in range(4):
                a(f"v_lshlrev_b32 v{y+2*p}, 16, v{y+8+p}\nv_and_b32 v{y+2*p+1}, 0xffff0000, v{y+8+p}")
                a(f"v_lshlrev_b32 v{t+2*p}, 16, v{x+p}\nv_and_b32 v{t+2*p+1}, 0xffff0000, v{x+p}")
            for p in range(4): a(f"v_pk_add_f32 {pk(y+2*p)}, {pk(y+2*p)}, {pk(t+2*p)}")
            for p in range(4): a(f"v_cvt_pk_bf16_f32 v{160+4*i+p}, v{y+2*p}, v{y+2*p+1}")
            a(f"ds_write_b128 v18, {v4(160+4*i)} offset:{i*32*144}")
        a(f"""
        s_cmp_eq_u32 {S_LAYER}, 0
        s_cbranch_scc0 {lf}
        buffer_store_dwordx4 v[160:163], v8, {SRD_WS}, 0 offen sc1
        buffer_store_dwordx4 v[164:167], v9, {SRD_WS}, 0 offen sc1
        {lf}:
        v_lshrrev_b32 v10, 2, v{V_L16}
        v_lshl_add_u32 v10, v{V_H}, 3, v10
        v_mul_u32_u24 v10, 144, v10
        v_and_b32 v11, 3, v{V_L16}
        v_lshl_add_u32 v10, v11, 3, v10
        s_lshl_b32 {S_T0}, {S_W}, 5
        s_add_u32 {S_T0}, {S_T0}, {L_OT}
        v_add_u32 v10, {S_T0}, v10
        s_waitcnt lgkmcnt(0)
        s_barrier
        ds_read_b64_tr_b16 v[104:105], v10
        ds_read_b64_tr_b16 v[106:107], v10 offset:{4*144}
        ds_read_b64_tr_b16 v[108:109], v10 offset:{32*144}
        ds_read_b64_tr_b16 v[110:111], v10 offset:{36*144}
        s_cmp_eq_u32 {S_LAYER}, 0
        s_cbranch_scc0 {le}
        s_lshl_b32 {S_T0}, {S_RT}, 7
        s_lshl_b32 {S_T1}, {S_W}, 5
        s_add_u32 {S_T0}, {S_T0}, {S_T1}
        s_add_u32 {S_T0}, {S_T0}, {ST3}
        v_bfe_u32 v11, v{V_L16}, 1, 2
        v_lshlrev_b32 v11, 12, v11
        v_lshrrev_b32 v12, 3, v{V_L16}
        v_lshl_add_u32 v11, v12, 4, v11
        v_and_b32 v12, 1, v{V_L16}
        v_lshl_add_u32 v11, v12, 3, v11
        v_lshl_add_u32 v11, v{V_H}, 2, v11
        v_add_u32 v11, {S_T0}, v11
        v_mov_b32 v112, 0
        v_mov_b32 v113, 0
        v_mov_b32 v114, 0
        v_mov_b32 v115, 0
        s_waitcnt lgkmcnt(0)
        """)
        for j in range(4):
            a(f"v_dot2_f32_bf16 v112, v{104+j}, {S_ONES}, v112")
            a(f"v_dot2_f32_bf16 v113, v{104+j}, v{104+j}, v113")
            a(f"v_dot2_f32_bf16 v114, v{108+j}, {S_ONES}, v114")
            a(f"v_dot2_f32_bf16 v115, v{108+j}, v{108+j}, v115")
        a("v_pk_add_f32 v[112:113], v[112:113], v[114:115]")
        self.emit(zipmerge(self.reduce_h(112, 116), self.reduce_h(113, 117)))
        a(f"""
        v_cmp_eq_u32 vcc, 0, v{V_H}
        v_cndmask_b32 v112, v113, v112, vcc
        s_mov_b64 exec, 0xffffffff
        buffer_atomic_add_f32 v112, v11, {SRD_WS}, 0 offen
        s_mov_b64 exec, -1
        s_branch {lx}
        {le}:
        s_lshl_b32 {S_T0}, {S_RT}, 16
        s_lshl_b32 {S_T1}, {S_W}, 14
        s_add_u32 {S_T0}, {S_T0}, {S_T1}
        s_lshl_b32 {S_T1}, {S_CG}, 7
        s_add_u32 {S_T0}, {S_T0}, {S_T1}
        v_lshlrev_b32 v11, 10, v{V_L16}
        v_lshl_add_u32 v11, v{V_H}, 4, v11
        v_add_u32 v11, {S_T0}, v11
        s_waitcnt lgkmcnt(0)
        buffer_store_dwordx4 v[104:107], v11, {SRD_OUT}, 0 offen {OUTF}
        buffer_store_dwordx4 v[108:111], v11, {SRD_OUT}, 0 offen offset:64 {OUTF}
        {lx}:
        """)
        self.sub(6)
        self.subflush(2, 7)

    def build(self):
        a = self.a
        self.prologue()
        if self.ts: a(f"v_mov_b32 v{V_TS}, 0\nv_mov_b32 v{V_TS2}, 0")
        self.stamp()
        self.p0()
        stop = self.stop
        if stop == 'p0':
            self.wait(); a("s_branch L_END")
        a("L_LAYER:")
        for reg, (x0, x1) in ((S_XIN, (XT[0], XT[2])), (S_XOUT, (XT[1], XT[3])), (S_ST, (ST1, ST3)), (S_PQ, PQ), (S_KV, KVM), (S_Z, ZZ)):
            a(f"s_mul_i32 {reg}, {S_LAYER}, {(x1 - x0) & 0xffffffff:#x}")
            a(f"s_add_u32 {reg}, {reg}, {x0:#x}")
        self.conv_pre()
        self.wait(l0skip=True, sleep0=int(os.environ.get('SL_C', '16'))); self.stamp()
        self.conv(); self.stamp()
        self.arrive(); self.stamp()
        if stop == 'conv1':
            self.wait(); a("s_branch L_END")
        a(f"s_mov_b32 {S_XIN}, {S_XOUT}")
        self.wstage_kv()
        self.qkv_pre()
        self.wait(l0skip=True, sleep0=int(os.environ.get('SL_Q', '12'))); self.stamp()
        self.qkv(); self.stamp()
        self.arrive(); self.stamp()
        if stop == 'qkv1':
            self.wait(); a("s_branch L_END")
            if os.environ.get('DBGW'):
                a(f"""
                s_lshl_b32 {S_T0}, {S_ID}, 11
                s_add_u32 {S_T0}, {S_T0}, 0x40000
                v_lshlrev_b32 v1, 3, v0
                v_add_u32 v1, {S_T0}, v1
                v_mov_b32 v2, v{V_WSK}
                v_mov_b32 v3, v{V_WSV}
                buffer_store_dwordx2 v[2:3], v1, {SRD_WS}, 0 offen
                """)
            self.wait(); a("s_branch L_END")
        a(f"s_mov_b32 {S_XOUT}, {XT[2]}")
        self.outp_pre()
        self.wait(sleep0=int(os.environ.get('SL_O', '22'))); self.stamp()
        self.outp(); self.stamp()
        a(f"s_cmp_eq_u32 {S_LAYER}, 1\ns_cbranch_scc1 L_END")
        self.arrive(); self.stamp()
        if stop == 'out1':
            self.wait(); a("s_branch L_END")
        a(f"s_mov_b32 {S_LAYER}, 1\ns_branch L_LAYER\nL_END:")
        self.tsdump()
        a("L_EXIT:\ns_endpgm")
        body = a.finalize()
        hdr = open(os.path.join(os.path.dirname(os.path.abspath(__file__)), 'header.txt')).read()
        hdr = hdr.replace('@@LAUNCH@@', f'; @launch grid=(256,1,1) block=(256,1,1) lds={LDS_SIZE}')
        txt = hdr + f""".amdgcn_target "amdgcn-amd-amdhsa--gfx950"
.text
.globl {NAME}_kernel
.p2align 8
.type {NAME}_kernel,@function
{NAME}_kernel:
""" + body + f""".section .rodata,"a"
.p2align 6
.amdhsa_kernel {NAME}_kernel
  .amdhsa_next_free_vgpr 512
  .amdhsa_next_free_sgpr 102
  .amdhsa_accum_offset 256
  .amdhsa_group_segment_fixed_size 0
  .amdhsa_kernarg_size 104
  .amdhsa_user_sgpr_count 2
  .amdhsa_user_sgpr_kernarg_segment_ptr 1
  .amdhsa_system_sgpr_workgroup_id_x 1
.end_amdhsa_kernel
"""
        return txt

if __name__ == '__main__':
    import argparse
    ap = argparse.ArgumentParser()
    ap.add_argument('--stop', default=None)
    ap.add_argument('--ts', action='store_true')
    ap.add_argument('-o', default='k.s')
    args = ap.parse_args()
    g = Gen(stop=args.stop, ts=args.ts)
    t = g.build()
    open(args.o, 'w').write(t)
    print('instructions', g.a.count(), 'nops inserted', g.a.nnop, 'bytes', len(t))
```

```python
import sys, os, math
sys.path.insert(0, os.path.dirname(os.path.abspath(__file__)))
from asmgen import Asm

NAME = 'interleave_layers__ssm_conv_s4d__linear_attn_block__prompt'

CNT  = 0x0
ZR   = 0x4000
KVM  = [ZR, ZR + 32768]
ZZ   = [ZR + 65536, ZR + 67584]
ST3  = ZR + 69632
ST1  = 0x1C000
GCNT = 0x20000
TS   = 0x80000
XT   = [0x100000, 0x300000, 0x500000, 0x700000]
PQ   = [0x900000, 0xB00000]
WQF  = 0xD00000
WOFG = 0xE80000
WS_SIZE = 0xF00000

L_WO = 0
L_KC = 65536
L_XL = 82432
L_MISC = L_XL + 65536
LDS_SIZE = 163840
L_U  = L_XL
L_Y  = L_XL + 18560
L_TA = L_XL
L_TB = L_XL + 9216
L_TW = L_XL + 46080
L_CT = L_XL + 18432
L_KD = L_XL + 28672
L_KVF = L_XL
L_O32 = L_XL + 17408
L_OT  = L_XL + 52224
L_S2R = L_MISC
L_S2M = L_MISC + 256
L_STG = L_MISC + 512

STPERM = True
BMODE = os.environ.get('BMODE', 'adapt')
ADR = int(os.environ.get('ADR', '1'))
ADB = int(os.environ.get('ADB', '2'))
FLG = 0x24000
OUTF = os.environ.get('OUTF', '')
CODE_CHUNKS = int(os.environ.get('CODE_CHUNKS', '5'))
SLEEP = int(os.environ.get('SLEEP', '1' if os.environ.get('BMODE','adapt') == 'flag16' else '3'))
SLEEP0 = int(os.environ.get('SLEEP0', '14'))
SLEEPG = int(os.environ.get('SLEEPG', '6'))
LOG2E = 1.4426950408889634
def f2u(x):
    import struct
    return struct.unpack('<I', struct.pack('<f', x))[0]
def fx(x): return '0x%08x' % f2u(x)
def pk(r): return f"v[{r}:{r+1}]"
def v4(r): return f"v[{r}:{r+3}]"

S_ID='s2'; S_W='s3'; S_RT='s4'; S_CG='s5'; S_LAYER='s6'; S_TGT='s7'
SRD_WS='s[44:47]'; SRD_WQ='s[48:51]'; SRD_WO='s[52:55]'; SRD_OUT='s[56:59]'; SRD_X0='s[60:63]'
S_ONES='s64'
S_EXS='s[70:71]'
S_XIN='s72'; S_XOUT='s73'; S_ST='s74'; S_PQ='s75'; S_KV='s76'; S_Z='s77'
S_SPIN='s78'
S_T0='s8'; S_T1='s9'; S_T2='s10'; S_T3='s11'; S_T4='s12'; S_T5='s13'
S_DM='s14'; S_DS='s15'

V_LANE=255; V_WSK=254; V_WSV=252; V_WSQ=248
V_DSK1=246; V_DSK0=244
V_CNT=239; V_POLL=238; V_ONE=237
V_L16=243; V_H=242
V_TS=241; V_TS2=240
V_GCNT=235; V_POLL2=234; V_TGT=233
V_RANK=232
V_PT=236

WOF = 104
def weave(main, fill, per=2, lead=0):
    out = []; fi = 0
    for k, m in enumerate(main):
        out.append(m)
        if k >= lead:
            for _ in range(per):
                if fi < len(fill): out.append(fill[fi]); fi += 1
    out += fill[fi:]
    return out
def zipmerge(*lists):
    out = []
    n = max(len(l) for l in lists)
    for i in range(n):
        for l in lists:
            if i < len(l): out.append(l[i])
    return out
import re as _re
def unpk(ins):
    m = _re.match(r'v_pk_(mul|add|fma)_f32 v\[(\d+):\d+\], (.*)', ins)
    if not m: return [ins]
    op, d, rest = m.group(1), int(m.group(2)), m.group(3)
    srcs = [int(x) for x in _re.findall(r'v\[(\d+):\d+\]', rest)]
    n = len(srcs)
    hi = [1]*n
    mm = _re.search(r'op_sel_hi:\[([\d,]+)\]', rest)
    if mm: hi = [int(x) for x in mm.group(1).split(',')]
    assert 'op_sel:[' not in rest
    neg = [0]*n
    mm = _re.search(r'neg_lo:\[([\d,]+)\]', rest)
    if mm: neg = [int(x) for x in mm.group(1).split(',')]
    out = []
    for h in range(2):
        ops = []
        for i in range(n):
            r = srcs[i] + (h if hi[i] else 0)
            ops.append(('-' if neg[i] else '') + f'v{r}')
        out.append(f"v_{op}_f32 v{d+h}, " + ', '.join(ops))
    return out
def unpk_all(L):
    o = []
    for x in L: o += unpk(x)
    return o
def lines(s): return [t.strip() for t in s.split('\n') if t.strip()]

class Gen:
    def __init__(self, stop=None, ts=False):
        self.a = Asm(); self.stop = stop; self.ts = ts; self.tsn = 0
    def emit(self, lst):
        for x in lst: self.a(x)

    def stamp(self):
        if not self.ts: return
        n = self.tsn; self.tsn += 1
        self.a(f"""
        s_memrealtime s[80:81]
        s_lshl_b32 s82, {S_LAYER}, 5
        s_add_u32 m0, s82, {n}
        s_waitcnt lgkmcnt(0)
        v_writelane_b32 v{V_TS}, s80, m0
        """)
    def sub(self, i):
        if self.ts: self.a(f"s_memtime s[{86+2*i}:{87+2*i}]")
    def subflush(self, phase, n):
        if not self.ts: return
        a = self.a
        a(f"s_waitcnt lgkmcnt(0)\ns_lshl_b32 s82, {S_LAYER}, 5\ns_add_u32 m0, s82, {phase*8}")
        for i in range(n):
            a(f"v_writelane_b32 v{V_TS2}, s{86+2*i}, m0\ns_add_u32 m0, m0, 1\ns_nop 3")
    def tsdump(self):
        if not self.ts: return
        a = self.a; l = a.label('TD')
        if os.environ.get('DBGTS'):
            sel = [1,2,3,4,5,7,8,10,11,12, 32+4,32+5,32+7,32+8,32+10]
            a(f"""
            s_cmp_eq_u32 {S_ID}, 0
            s_cbranch_scc0 {l}
            s_cmp_eq_u32 {S_W}, 0
            s_cbranch_scc0 {l}
            v_readlane_b32 s80, v{V_TS}, 0
            """)
            for i, k in enumerate(sel):
                lane = k
                a(f"v_readlane_b32 s81, v{V_TS}, {lane}\ns_nop 3\ns_sub_u32 s81, s81, s80\nv_mov_b32 v1, s81\nv_mov_b32 v2, {4*(i+1)}\ns_mov_b64 exec, 1\nglobal_store_dword v2, v1, s[38:39]\ns_mov_b64 exec, -1")
            a(f"{l}:")
            return
        a(f"""
        s_cmp_eq_u32 {S_W}, 0
        s_cbranch_scc0 {l}
        s_lshl_b32 s82, {S_ID}, 9
        s_add_u32 s82, s82, {TS}
        v_lshlrev_b32 v1, 2, v{V_LANE}
        v_add_u32 v1, s82, v1
        buffer_store_dword v{V_TS}, v1, {SRD_WS}, 0 offen
        buffer_store_dword v{V_TS2}, v1, {SRD_WS}, 0 offen offset:256
        {l}:
        """)

    def arrive_core(self, finish=True):
        a = self.a
        if BMODE == 'flat':
            a(f"buffer_atomic_add v{V_ONE}, v{V_CNT}, {SRD_WS}, 0 offen sc1")
            return
        a(f"""
        v_mov_b32 v{V_RANK}, 1
        buffer_atomic_add v{V_RANK}, v{V_CNT}, {SRD_WS}, 0 offen sc0 sc1
        """)
        if finish: self.arrive_finish()
    def arrive_finish(self):
        a = self.a
        if BMODE == 'flag16':
            l = a.label('NL')
            a(f"""
            s_sub_u32 {S_T0}, {S_TGT}, 1
            s_waitcnt vmcnt(0)
            v_cmp_eq_u32 vcc, {S_T0}, v{V_RANK}
            s_cbranch_vccz {l}
            v_mov_b32 v{V_RANK}, {S_TGT}
            v_add_u32 v{V_PT}, {FLG - CNT}, v{V_CNT}
            buffer_store_dword v{V_RANK}, v{V_PT}, {SRD_WS}, 0 offen sc1
            {l}:
            """)
    def arrive(self):
        a = self.a; l = a.label('ARR')
        a(f"""
        s_waitcnt vmcnt(0) lgkmcnt(0)
        s_barrier
        s_add_u32 {S_TGT}, {S_TGT}, 16
        s_cmp_eq_u32 {S_W}, 0
        s_cbranch_scc0 {l}
        s_mov_b64 exec, 1
        """)
        self.arrive_core()
        a(f"""
        s_mov_b64 exec, -1
        {l}:
        """)
    def arrive_group(self):
        a = self.a; l = a.label('ARG')
        a(f"""
        s_waitcnt vmcnt(0) lgkmcnt(0)
        s_barrier
        s_cmp_eq_u32 {S_W}, 0
        s_cbranch_scc0 {l}
        s_mov_b64 exec, 1
        buffer_atomic_add v{V_ONE}, v{V_GCNT}, {SRD_WS}, 0 offen sc1
        s_mov_b64 exec, -1
        {l}:
        """)
    def wait_dual(self):
        a = self.a
        l = a.label('WT'); lp = a.label('POLL'); ld = a.label('PD')
        a(f"""
        s_cmp_eq_u32 {S_W}, 0
        s_cbranch_scc0 {l}
        s_add_u32 {S_T0}, {S_LAYER}, 1
        s_lshl_b32 {S_T0}, {S_T0}, 3
        v_mov_b32 v{V_TGT}, {S_TGT}
        v_mov_b32 v{V_PT}, {S_T0}
        v_cmp_eq_u32 vcc, 16, v{V_LANE}
        v_cndmask_b32 v{V_TGT}, v{V_TGT}, v{V_PT}, vcc
        s_mov_b64 exec, 0x1ffff
        s_mov_b32 {S_SPIN}, 0
        {('s_sleep ' + str(SLEEPG)) if SLEEPG else ''}
        {lp}:
        buffer_load_dword v{V_PT}, v{V_POLL2}, {SRD_WS}, 0 offen sc1
        s_add_u32 {S_SPIN}, {S_SPIN}, 1
        s_waitcnt vmcnt(0)
        v_cmp_gt_u32 vcc, v{V_TGT}, v{V_PT}
        s_cbranch_vccz {ld}
        {('s_sleep ' + str(SLEEP)) if SLEEP else ''}
        s_cmp_lt_u32 {S_SPIN}, 0x200000
        s_cbranch_scc1 {lp}
        {ld}:
        s_mov_b64 exec, -1
        {l}:
        s_barrier
        """)
    def wait(self, l0skip=False, sleep0=None, adr=None, adb=None, adr0=None):
        a = self.a
        l = a.label('WT'); lp = a.label('POLL'); ld = a.label('PD'); ls = a.label('NS')
        SLEEP0 = sleep0 if sleep0 is not None else globals()['SLEEP0']
        if BMODE == 'flat':
            pre = ((f's_cmp_eq_u32 {S_LAYER}, 0' + chr(10) + f's_cbranch_scc1 {lp}' + chr(10)) if l0skip else '') + (f's_sleep {SLEEP0}' if SLEEP0 else '')
        elif BMODE == 'flag16':
            pre = ''
        else:
            la = a.label('AD'); lb = a.label('AD')
            ADR = adr if adr is not None else globals()['ADR']; ADB = adb if adb is not None else globals()['ADB']
            adr0 = adr0 if adr0 is not None else ADR
            pre = f'''s_cmp_eq_u32 {S_LAYER}, 0
            s_cselect_b32 {S_T1}, {adr0}, {ADR}
            s_waitcnt vmcnt(0)
            v_readfirstlane_b32 {S_T0}, v{V_RANK}
            s_and_b32 {S_T0}, {S_T0}, 15
            s_sub_u32 {S_T0}, 15, {S_T0}
            s_mul_i32 {S_T0}, {S_T0}, {S_T1}
            s_add_u32 {S_T0}, {S_T0}, {ADB}
            {la}:
            s_sleep 1
            s_sub_u32 {S_T0}, {S_T0}, 1
            s_cmp_gt_i32 {S_T0}, 0
            s_cbranch_scc1 {la}'''
        a(f"""
        s_cmp_eq_u32 {S_W}, 0
        s_cbranch_scc0 {l}
        s_mov_b64 exec, 0xffff
        s_mov_b32 {S_SPIN}, 0
        {pre}
        {lp}:
        buffer_load_dword v{V_PT}, v{V_POLL}, {SRD_WS}, 0 offen {('offset:0' if BMODE != 'flag16' else '')} sc1
        s_add_u32 {S_SPIN}, {S_SPIN}, 1
        s_waitcnt vmcnt(0)
        v_cmp_gt_u32 vcc, {S_TGT}, v{V_PT}
        s_cbranch_vccz {ld}
        {('s_sleep ' + str(SLEEP)) if SLEEP else ''}
        s_cmp_lt_u32 {S_SPIN}, 0x200000
        s_cbranch_scc1 {lp}
        {ld}:
        s_mov_b64 exec, -1
        {l}:
        s_barrier
        """)

    def reduce_h(self, r, t):
        return lines(f"""
        v_mov_b32 v{t}, v{r}
        v_permlane16_swap_b32 v{r}, v{t}
        v_add_f32 v{r}, v{r}, v{t}
        v_mov_b32 v{t}, v{r}
        v_permlane32_swap_b32 v{r}, v{t}
        v_add_f32 v{r}, v{r}, v{t}
        """)
    def reduce16(self, r):
        return lines(f"""
        v_add_f32_dpp v{r}, v{r}, v{r} quad_perm:[1,0,3,2] row_mask:0xf bank_mask:0xf
        v_add_f32_dpp v{r}, v{r}, v{r} quad_perm:[2,3,0,1] row_mask:0xf bank_mask:0xf
        v_add_f32_dpp v{r}, v{r}, v{r} row_half_mirror row_mask:0xf bank_mask:0xf
        v_add_f32_dpp v{r}, v{r}, v{r} row_mirror row_mask:0xf bank_mask:0xf
        """)
    def ln_final1(self, sm, sq, r_out, mr_out, t):
        return lines(f"""
        v_mul_f32 v{t}, {fx(1/512)}, v{sm}
        v_mul_f32 v{t+1}, {fx(1/512)}, v{sq}
        v_fma_f32 v{t+1}, -v{t}, v{t}, v{t+1}
        v_cvt_pk_bf16_f32 v{t+2}, v{t}, v{t+1}
        v_lshlrev_b32 v{t}, 16, v{t+2}
        v_and_b32 v{t+1}, 0xffff0000, v{t+2}
        v_add_f32 v{t+1}, {fx(1e-5)}, v{t+1}
        v_cvt_pk_bf16_f32 v{t+1}, v{t+1}, v{t+1}
        v_and_b32 v{t+1}, 0xffff0000, v{t+1}
        v_sqrt_f32 v{t+1}, v{t+1}
        v_cvt_pk_bf16_f32 v{t+1}, v{t+1}, v{t+1}
        v_and_b32 v{t+1}, 0xffff0000, v{t+1}
        v_rcp_f32 v{r_out}, v{t+1}
        v_mul_f32 v{mr_out}, v{t}, v{r_out}
        """)

    def prologue(self):
        a = self.a
        a(f"""
        s_cmp_ge_u32 {S_ID}, 256
        s_cbranch_scc1 L_EXIT
        s_load_dwordx16 s[16:31], s[0:1], 0
        s_load_dwordx8 s[32:39], s[0:1], 64
        s_load_dwordx2 s[40:41], s[0:1], 96
        v_and_b32 v{V_LANE}, 63, v0
        v_lshrrev_b32 v1, 6, v0
        v_and_b32 v{V_L16}, 15, v0
        v_bfe_u32 v{V_H}, v0, 4, 2
        v_readfirstlane_b32 {S_W}, v1
        s_and_b32 {S_T0}, {S_ID}, 7
        s_lshl_b32 {S_T0}, {S_T0}, 2
        s_lshr_b32 {S_T1}, {S_ID}, 6
        s_add_u32 {S_RT}, {S_T0}, {S_T1}
        s_lshr_b32 {S_CG}, {S_ID}, 3
        s_and_b32 {S_CG}, {S_CG}, 7
        s_mov_b32 {S_LAYER}, 0
        s_mov_b32 {S_TGT}, 0
        s_mov_b32 {S_ONES}, 0x3f803f80
        v_mov_b32 v{V_ONE}, 1
        s_and_b32 {S_T0}, {S_ID}, 15
        s_lshl_b32 {S_T0}, {S_T0}, 10
        v_mov_b32 v{V_CNT}, {S_T0}
        v_lshlrev_b32 v{V_POLL}, 10, v{V_LANE}
        v_add_u32 v{V_POLL}, {FLG if BMODE == 'flag16' else CNT}, v{V_POLL}
        s_waitcnt lgkmcnt(0)
        s_mov_b32 s60, s16
        s_and_b32 s61, s17, 0xffff
        s_mov_b32 s62, {2048*512*2}
        s_mov_b32 s63, 0x20000
        """)
    def prologue2(self):
        a = self.a
        a(f"""
        s_mov_b32 s44, s40
        s_and_b32 s45, s41, 0xffff
        s_mov_b32 s46, {WS_SIZE}
        s_mov_b32 s47, 0x20000
        s_mov_b32 s48, s32
        s_and_b32 s49, s33, 0xffff
        s_mov_b32 s50, {512*1536*2}
        s_mov_b32 s51, 0x20000
        s_mov_b32 s52, s34
        s_and_b32 s53, s35, 0xffff
        s_mov_b32 s54, {512*512*2}
        s_mov_b32 s55, 0x20000
        s_mov_b32 s56, s36
        s_and_b32 s57, s37, 0xffff
        s_mov_b32 s58, {2048*512*2}
        s_mov_b32 s59, 0x20000
        s_lshl_b32 {S_T0}, {S_RT}, 10
        s_add_u32 {S_T0}, {S_T0}, {GCNT}
        v_mov_b32 v{V_GCNT}, {S_T0}
        v_cmp_eq_u32 vcc, 16, v{V_LANE}
        v_cndmask_b32 v{V_POLL2}, v{V_POLL}, v{V_GCNT}, vcc
        """)

    def dma_weight(self, srd, rowpitch, colbyte, lds_base, swz, t, defer=False):
        a = self.a
        a(f"""
        v_lshrrev_b32 v{t}, 3, v{V_LANE}
        v_mul_u32_u24 v{t}, {rowpitch}, v{t}
        v_bfe_u32 v{t+1}, v{V_LANE}, 1, 2
        v_bfe_u32 v{t+2}, v{V_LANE}, 4, 1
        """)
        if swz == 'x':
            a(f"s_and_b32 {S_T0}, {S_W}, 1\ns_lshl_b32 {S_T0}, {S_T0}, 1\nv_or_b32 v{t+2}, {S_T0}, v{t+2}")
        else:
            a(f"v_lshlrev_b32 v{t+2}, 1, v{t+2}")
        a(f"""
        v_xor_b32 v{t+1}, v{t+1}, v{t+2}
        v_lshl_add_u32 v{t}, v{t+1}, 5, v{t}
        v_and_b32 v{t+1}, 1, v{V_LANE}
        v_lshl_add_u32 v{t}, v{t+1}, 4, v{t}
        s_lshl_b32 {S_T0}, {S_CG}, 7
        s_add_u32 {S_T0}, {S_T0}, {colbyte}
        v_add_u32 v{t}, {S_T0}, v{t}
        s_mul_i32 {S_DS}, {S_W}, {8*rowpitch}
        s_lshl_b32 {S_DM}, {S_W}, 10
        s_add_u32 {S_DM}, {S_DM}, {lds_base}
        """)
        groups = [lines(f"""
            s_mov_b32 m0, {S_DM}
            s_add_u32 {S_DM}, {S_DM}, 4096
            buffer_load_dwordx4 v{t}, {srd}, {S_DS} offen lds
            s_add_u32 {S_DS}, {S_DS}, {32*rowpitch}
            """) for i in range(16)]
        if defer: return groups
        for g in groups: self.emit(g)

    def wread_lists(self, lds_base, abase, part, t, o):
        rd = lines(f"""
        v_lshrrev_b32 v{t}, 2, v{V_L16}
        v_lshl_add_u32 v{t+1}, v{V_H}, 3, v{t}
        v_lshlrev_b32 v{t+1}, 7, v{t+1}
        v_and_b32 v{t+2}, 3, v{V_L16}
        v_lshl_add_u32 v{t+1}, v{t+2}, 3, v{t+1}
        v_add_u32 v{t+1}, {lds_base}, v{t+1}
        v_lshrrev_b32 v{t}, 1, v{t}
        v_and_b32 v{t+2}, 1, v{V_H}
        v_lshl_or_b32 v{t}, v{t+2}, 1, v{t}
        v_xor_b32 v{t}, {S_W}, v{t}
        v_lshl_add_u32 v{t+3}, v{t}, 5, v{t+1}
        """)
        for i in range(4): rd.append(f"v_mov_b32 v{o+i}, {S_ONES}")
        for ks in range(16):
            rd.append(f"ds_read_b64_tr_b16 a[{abase+4*ks}:{abase+4*ks+1}], v{t+3} offset:{ks*4096}")
            rd.append(f"ds_read_b64_tr_b16 a[{abase+4*ks+2}:{abase+4*ks+3}], v{t+3} offset:{ks*4096+512}")
        mf = []
        for ks in range(16):
            c = '0' if ks == 0 else v4(o+4)
            w = f"a[{abase+4*ks}:{abase+4*ks+3}]"
            if part == 0: mf.append(f"v_mfma_f32_16x16x32_bf16 {v4(o+4)}, {w}, {v4(o)}, {c}")
            else: mf.append(f"v_mfma_f32_16x16x32_bf16 {v4(o+4)}, {v4(o)}, {w}, {c}")
        if part == 0: mf += [f"v_mov_b32 v{V_WSQ+i}, v{o+4+i}" for i in range(4)]
        elif part == 1: mf.append(f"v_mov_b32 v{V_WSK}, v{o+4}")
        else: mf.append(f"v_mov_b32 v{V_WSV}, v{o+4}")
        return rd, mf

    def p0(self):
        a = self.a
        a(f"""
        v_lshrrev_b32 v1, 3, v0
        s_lshl_b32 {S_T0}, {S_RT}, 16
        s_lshl_b32 {S_T1}, {S_CG}, 7
        s_add_u32 {S_T0}, {S_T0}, {S_T1}
        v_lshlrev_b32 v2, 10, v1
        v_and_b32 v3, 7, v0
        v_lshl_add_u32 v2, v3, 4, v2
        v_add_u32 v2, {S_T0}, v2
        buffer_load_dwordx4 v[10:13], v2, {SRD_X0}, 0 offen
        v_add_u32 v4, 0x8000, v2
        buffer_load_dwordx4 v[14:17], v4, {SRD_X0}, 0 offen
        s_and_b32 {S_T0}, {S_ID}, 63
        s_lshl_b32 {S_T0}, {S_T0}, 2
        s_add_u32 {S_T0}, {S_T0}, {S_W}
        s_lshl_b32 {S_T0}, {S_T0}, 3
        s_lshr_b32 {S_T1}, {S_ID}, 6
        s_lshl_b32 {S_T1}, {S_T1}, 1
        s_add_u32 {S_T0}, {S_T0}, {S_T1}
        s_lshl_b32 {S_T0}, {S_T0}, 10
        v_lshlrev_b32 v5, 4, v{V_LANE}
        v_add_u32 v5, {S_T0}, v5
        buffer_load_dwordx4 v[18:21], v5, {SRD_X0}, 0 offen
        buffer_load_dwordx4 v[22:25], v5, {SRD_X0}, 0 offen offset:1024
        s_lshl_b32 {S_T0}, {S_ID}, 9
        v_lshlrev_b32 v6, 1, v0
        v_add_u32 v6, {S_T0}, v6
        global_load_ushort v26, v6, s[18:19]
        global_load_ushort v27, v6, s[20:21]
        global_load_ushort v28, v6, s[22:23]
        global_load_ushort v29, v6, s[24:25]
        v_lshrrev_b32 v7, 7, v0
        s_lshl_b32 {S_T0}, {S_ID}, 1
        v_add_lshl_u32 v7, v7, {S_T0}, 1
        global_load_ushort v30, v7, s[26:27]
        s_lshl_b32 {S_T0}, {S_ID}, 2
        v_mov_b32 v7, {S_T0}
        global_load_dword v{V_DSK0}, v7, s[28:29]
        """)
        self.prologue2()
        lp = a.label('PFC')
        a(f"""
        s_getpc_b64 s[66:67]
        s_and_b32 s66, s66, 0xffffff00
        s_lshr_b32 {S_T0}, {S_ID}, 3
        s_cmp_lt_u32 {S_T0}, {CODE_CHUNKS}
        s_cbranch_scc0 {lp}
        s_cmp_eq_u32 {S_W}, 3
        s_cbranch_scc0 {lp}
        s_lshl_b32 {S_T0}, {S_T0}, 13
        v_lshlrev_b32 v8, 7, v{V_LANE}
        v_add_u32 v8, {S_T0}, v8
        global_load_dword v198, v8, s[66:67]
        {lp}:
        v_and_b32 v8, 15, v{V_LANE}
        v_lshlrev_b32 v8, 20, v8
        buffer_load_dword v197, v8, {SRD_WS}, 0 offen
        """)
        lw = a.label('WT'); lw2 = a.label('WT')
        a(f"""
        s_and_b32 {S_T2}, {S_ID}, 7
        s_cmp_lt_u32 {S_ID}, 192
        s_cbranch_scc0 {lw}
        s_lshr_b32 {S_T3}, {S_ID}, 3
        s_mul_i32 {S_T0}, {S_T2}, {64*3072}
        s_lshl_b32 {S_T1}, {S_T3}, 7
        s_add_u32 {S_T0}, {S_T0}, {S_T1}
        v_mul_u32_u24 v8, 3072, v1
        v_lshl_add_u32 v8, v3, 4, v8
        v_add_u32 v8, {S_T0}, v8
        buffer_load_dwordx4 v[200:203], v8, {SRD_WQ}, 0 offen
        v_add_u32 v8, {32*3072}, v8
        buffer_load_dwordx4 v[204:207], v8, {SRD_WQ}, 0 offen
        s_branch {lw2}
        {lw}:
        s_sub_u32 {S_T3}, {S_ID}, 192
        s_lshr_b32 {S_T3}, {S_T3}, 3
        s_lshl_b32 {S_T0}, {S_T2}, 16
        s_lshl_b32 {S_T1}, {S_T3}, 7
        s_add_u32 {S_T0}, {S_T0}, {S_T1}
        v_lshlrev_b32 v8, 10, v1
        v_lshl_add_u32 v8, v3, 4, v8
        v_add_u32 v8, {S_T0}, v8
        buffer_load_dwordx4 v[200:203], v8, {SRD_WO}, 0 offen
        v_add_u32 v8, 0x8000, v8
        buffer_load_dwordx4 v[204:207], v8, {SRD_WO}, 0 offen
        {lw2}:
        """)
        l = a.label('CI')
        a(f"""
        s_cmp_lt_u32 {S_ID}, 16
        s_cbranch_scc0 {l}
        s_cmp_eq_u32 {S_W}, 0
        s_cbranch_scc0 {l}
        s_mov_b64 exec, 1
        v_mov_b32 v8, 0
        buffer_store_dword v8, v{V_CNT}, {SRD_WS}, 0 offen sc1
        v_add_u32 v9, {FLG - CNT}, v{V_CNT}
        buffer_store_dword v8, v9, {SRD_WS}, 0 offen sc1
        s_waitcnt vmcnt(0)
        global_atomic_add v8, v{V_ONE}, s[38:39] sc1
        s_mov_b64 exec, -1
        {l}:
        """)
        IDX = 180
        a(f"v_lshlrev_b32 v31, 3, v0\nv_sub_u32 v31, 2047, v31\ns_mov_b32 {S_T5}, {L_KD}")
        chains = []
        for i in range(0, 10, 2):
            t = 32 + 4*(i//2)
            c = lines(f"""
            v_subrev_u32 v{t}, {i}, v31
            v_subrev_u32 v{t+1}, {i+1}, v31
            v_max_i32 v{t}, 0, v{t}
            v_max_i32 v{t+1}, 0, v{t+1}
            v_cvt_f32_i32 v{t}, v{t}
            v_cvt_f32_i32 v{t+1}, v{t+1}
            v_cvt_pk_bf16_f32 v{t+2}, v{t}, v{t+1}
            v_lshlrev_b32 v{t}, 16, v{t+2}
            v_and_b32 v{t+1}, 0xffff0000, v{t+2}
            v_cvt_u32_f32 v{t}, v{t}
            v_cvt_u32_f32 v{t+1}, v{t+1}
            v_lshrrev_b32 v{t+2}, 2, v{t}
            v_lshrrev_b32 v{t+3}, 2, v{t+1}
            v_add_u32 v{t+2}, 384, v{t+2}
            v_add_u32 v{t+3}, 384, v{t+3}
            v_min_u32 v{t}, v{t}, v{t+2}
            v_min_u32 v{t+1}, v{t+1}, v{t+3}
            v_lshrrev_b32 v{t+2}, 5, v{t}
            v_lshrrev_b32 v{t+3}, 5, v{t+1}
            v_add_u32 v{t}, v{t}, v{t+2}
            v_add_u32 v{t+1}, v{t+1}, v{t+3}
            v_lshl_add_u32 v{IDX+i}, v{t}, 2, {S_T5}
            """)
            if i + 1 < 9: c.append(f"v_lshl_add_u32 v{IDX+i+1}, v{t+1}, 2, {S_T5}")
            chains.append(c)
        self.emit(zipmerge(*chains))
        a(f"""
        v_mul_u32_u24 v8, 144, v1
        v_lshl_add_u32 v8, v3, 4, v8
        v_add_u32 v9, {L_TW}, v8
        v_add_u32 v8, {L_TA}, v8
        s_waitcnt vmcnt(11)
        ds_write_b128 v8, v[10:13]
        ds_write_b128 v8, v[14:17] offset:{32*144}
        s_waitcnt vmcnt(9)
        """)
        for r in range(32, 36): a(f"v_mov_b32 v{r}, 0")
        for j in range(4):
            for row in range(2):
                b = 18 + 4*row; sm = 32 + 2*row
                a(f"v_dot2_f32_bf16 v{sm}, v{b+j}, {S_ONES}, v{sm}\nv_dot2_f32_bf16 v{sm+1}, v{b+j}, v{b+j}, v{sm+1}")
        self.emit(zipmerge(*[self.reduce16(r) for r in range(32, 36)]))
        self.emit(zipmerge(*[self.reduce_h(r, 36 + (r-32)) for r in range(32, 36)]))
        a(f"""
        s_lshl_b32 {S_T0}, {S_W}, 4
        s_add_u32 {S_T0}, {S_T0}, {L_STG}
        v_mov_b32 v36, {S_T0}
        ds_write_b128 v36, v[32:35]
        s_waitcnt vmcnt(0)
        ds_write_b128 v9, v[200:203]
        ds_write_b128 v9, v[204:207] offset:{32*144}
        v_lshrrev_b32 v9, 2, v{V_L16}
        v_lshl_add_u32 v9, v{V_H}, 3, v9
        v_mul_u32_u24 v9, 144, v9
        v_and_b32 v2, 3, v{V_L16}
        v_lshl_add_u32 v9, v2, 3, v9
        s_lshl_b32 {S_T0}, {S_W}, 5
        s_add_u32 {S_T0}, {S_T0}, {L_TA}
        v_add_u32 v9, {S_T0}, v9
        s_lshl_b32 {S_T0}, {S_W}, 4
        v_add_u32 v2, {S_T0}, v{V_L16}
        v_mul_u32_u24 v2, 144, v2
        v_lshl_add_u32 v2, v{V_H}, 4, v2
        v_add_u32 v2, {L_TB}, v2
        s_waitcnt lgkmcnt(0)
        s_barrier
        ds_read_b64_tr_b16 v[10:11], v9
        ds_read_b64_tr_b16 v[12:13], v9 offset:{4*144}
        ds_read_b64_tr_b16 v[14:15], v9 offset:{32*144}
        ds_read_b64_tr_b16 v[16:17], v9 offset:{36*144}
        """)
        lz = a.label('WF'); lz2 = a.label('WF')
        a(f"""
        s_cmp_lt_u32 {S_ID}, 192
        s_cbranch_scc0 {lz}
        v_add_u32 v8, {L_TW - L_TA}, v9
        ds_read_b64_tr_b16 v[200:201], v8
        ds_read_b64_tr_b16 v[202:203], v8 offset:{4*144}
        ds_read_b64_tr_b16 v[204:205], v8 offset:{32*144}
        ds_read_b64_tr_b16 v[206:207], v8 offset:{36*144}
        s_lshr_b32 {S_T0}, {S_T3}, 3
        s_lshl_b32 {S_T0}, {S_T0}, 19
        s_and_b32 {S_T1}, {S_T3}, 7
        s_lshl_b32 {S_T1}, {S_T1}, 2
        s_add_u32 {S_T1}, {S_T1}, {S_W}
        s_lshl_b32 {S_T1}, {S_T1}, 14
        s_add_u32 {S_T0}, {S_T0}, {S_T1}
        s_lshl_b32 {S_T1}, {S_T2}, 11
        s_add_u32 {S_T0}, {S_T0}, {S_T1}
        s_add_u32 {S_T0}, {S_T0}, {WQF}
        s_branch {lz2}
        {lz}:
        v_lshrrev_b32 v8, 2, v{V_L16}
        v_lshrrev_b32 v7, 1, v{V_H}
        v_lshl_add_u32 v8, v7, 2, v8
        s_lshl_b32 {S_T0}, {S_W}, 4
        v_add_u32 v8, {S_T0}, v8
        v_mul_u32_u24 v8, 144, v8
        v_and_b32 v7, 1, v{V_H}
        v_lshl_add_u32 v8, v7, 5, v8
        v_and_b32 v7, 3, v{V_L16}
        v_lshl_add_u32 v8, v7, 3, v8
        v_add_u32 v8, {L_TW}, v8
        ds_read_b64_tr_b16 v[200:201], v8
        ds_read_b64_tr_b16 v[202:203], v8 offset:{8*144}
        ds_read_b64_tr_b16 v[204:205], v8 offset:64
        ds_read_b64_tr_b16 v[206:207], v8 offset:{8*144+64}
        s_lshl_b32 {S_T0}, {S_T3}, 16
        s_lshl_b32 {S_T1}, {S_T2}, 2
        s_add_u32 {S_T1}, {S_T1}, {S_W}
        s_lshl_b32 {S_T1}, {S_T1}, 11
        s_add_u32 {S_T0}, {S_T0}, {S_T1}
        s_add_u32 {S_T0}, {S_T0}, {WOFG}
        {lz2}:
        v_lshlrev_b32 v7, 4, v{V_LANE}
        v_add_u32 v7, {S_T0}, v7
        v_mul_u32_u24 v9, 144, v1
        v_lshl_add_u32 v9, v3, 4, v9
        v_add_u32 v9, {L_TB}, v9
        s_lshl_b32 {S_T0}, {S_CG}, 18
        s_lshl_b32 {S_T1}, {S_RT}, 7
        s_add_u32 {S_T0}, {S_T0}, {S_T1}
        s_add_u32 {S_T0}, {S_T0}, {XT[0]}
        v_lshlrev_b32 v4, 12, v1
        v_lshl_add_u32 v4, v3, 4, v4
        v_add_u32 v4, {S_T0}, v4
        v_add_u32 v5, 0x20000, v4
        s_waitcnt lgkmcnt(0)
        ds_write_b128 v2, v[10:13]
        ds_write_b128 v2, v[14:17] offset:64
        buffer_store_dwordx4 v[200:203], v7, {SRD_WS}, 0 offen sc1
        buffer_store_dwordx4 v[204:207], v7, {SRD_WS}, 0 offen offset:1024 sc1
        v_mov_b32 v6, 0
        s_waitcnt lgkmcnt(0)
        s_barrier
        ds_read_b128 v[10:13], v9
        ds_read_b128 v[14:17], v9 offset:{32*144}
        s_waitcnt lgkmcnt(0)
        buffer_store_dwordx4 v[10:13], v4, {SRD_WS}, 0 offen sc1
        buffer_store_dwordx4 v[14:17], v5, {SRD_WS}, 0 offen sc1
        global_load_dword v{V_PT}, v6, s[38:39] sc1
        """)
        l1 = a.label('Z1'); l2 = a.label('Z2')
        a(f"""
        s_cmp_eq_u32 {S_W}, 1
        s_cbranch_scc0 {l1}
        s_mov_b64 exec, 0xffffff
        v_mov_b32 v10, 0
        v_mov_b32 v11, 0
        v_mov_b32 v12, 0
        v_mov_b32 v13, 0
        s_mul_i32 {S_T0}, {S_ID}, 384
        s_add_u32 {S_T0}, {S_T0}, {ZR}
        v_lshlrev_b32 v4, 4, v{V_LANE}
        v_add_u32 v4, {S_T0}, v4
        buffer_store_dwordx4 v[10:13], v4, {SRD_WS}, 0 offen sc1
        s_mov_b64 exec, -1
        {l1}:
        s_cmp_eq_u32 {S_W}, 2
        s_cbranch_scc0 {l2}
        s_mov_b64 exec, 0xf
        v_lshlrev_b32 v4, 4, v{V_LANE}
        v_add_u32 v5, {L_STG}, v4
        ds_read_b128 v[10:13], v5
        s_lshl_b32 {S_T0}, {S_ID}, 6
        s_add_u32 {S_T0}, {S_T0}, {ST1}
        v_add_u32 v4, {S_T0}, v4
        s_waitcnt lgkmcnt(0)
        buffer_store_dwordx4 v[10:13], v4, {SRD_WS}, 0 offen sc1
        s_mov_b64 exec, -1
        {l2}:
        """)
        self.stamp()
        self.kgen_consts()
        a("s_waitcnt lgkmcnt(0)\ns_barrier")
        self.sub(0)
        self.sub(1)
        self.kgen_main(IDX)
        self.sub(6)
        self.subflush(3, 7)
        self.stamp()

    def arrive_first(self):
        a = self.a
        la = a.label('ARR1'); lp = a.label('INITP'); ld = a.label('INITD')
        a(f"""
        s_waitcnt vmcnt(0)
        s_barrier
        s_add_u32 {S_TGT}, {S_TGT}, 16
        s_cmp_eq_u32 {S_W}, 0
        s_cbranch_scc0 {la}
        s_mov_b64 exec, 1
        s_mov_b32 {S_SPIN}, 0
        v_mov_b32 v6, 0
        {lp}:
        v_cmp_le_u32 vcc, 16, v{V_PT}
        s_cbranch_vccnz {ld}
        global_load_dword v{V_PT}, v6, s[38:39] sc1
        s_add_u32 {S_SPIN}, {S_SPIN}, 1
        s_waitcnt vmcnt(0)
        s_cmp_lt_u32 {S_SPIN}, 0x200000
        s_cbranch_scc1 {lp}
        {ld}:
        """)
        self.arrive_core(finish=False)
        a(f"""
        s_mov_b64 exec, -1
        {la}:
        """)

    def cexp(self, p, dr, di, t):
        return lines(f"""
        v_mul_f32 v{t}, {fx(p)}, v40
        v_mul_f32 v{t+1}, {fx(p)}, v41
        v_exp_f32 v{t}, v{t}
        v_fract_f32 v{t+1}, v{t+1}
        v_cos_f32 v{t+2}, v{t+1}
        v_sin_f32 v{t+1}, v{t+1}
        v_mul_f32 v{dr}, v{t}, v{t+2}
        v_mul_f32 v{di}, v{t}, v{t+1}
        """)

    def kgen_consts(self):
        a = self.a
        a(f"""
        v_and_b32 v{V_DSK1}, 0xffff0000, v{V_DSK0}
        v_lshlrev_b32 v{V_DSK0}, 16, v{V_DSK0}
        v_lshlrev_b32 v26, 16, v26
        v_lshlrev_b32 v30, 16, v30
        v_lshlrev_b32 v27, 16, v27
        v_lshlrev_b32 v28, 16, v28
        v_mul_f32 v30, {fx(LOG2E)}, v30
        v_mul_f32 v26, {fx(LOG2E)}, v26
        v_lshlrev_b32 v29, 16, v29
        v_exp_f32 v30, v30
        v_exp_f32 v26, v26
        v_cvt_pk_bf16_f32 v31, v30, v26
        v_lshlrev_b32 v30, 16, v31
        v_and_b32 v26, 0xffff0000, v31
        v_mul_f32 v40, v26, v30
        v_mul_f32 v41, v27, v30
        v_mul_f32 v42, v28, v30
        v_mul_f32 v43, v29, v30
        v_mul_f32 v40, {fx(-LOG2E)}, v40
        v_mul_f32 v41, {fx(1/(2*math.pi))}, v41
        v_add_f32 v42, v42, v42
        v_add_f32 v43, v43, v43
        v_rndne_f32 v31, v41
        v_sub_f32 v41, v41, v31
        """)
        ch = []
        for i, p in enumerate((256.0, 512.0, 1536.0)):
            t = 52 + 6*i; d = 44 + 2*i
            c = self.cexp(p, t+3, t+4, t)
            c += lines(f"""
            v_mul_f32 v{d}, v42, v{t+3}
            v_mul_f32 v{d+1}, v42, v{t+4}
            v_fma_f32 v{d}, -v43, v{t+4}, v{d}
            v_fma_f32 v{d+1}, v43, v{t+3}, v{d+1}
            """)
            ch.append(c)
        self.emit(zipmerge(*ch))
        a(f"""
        v_lshrrev_b32 v1, 7, v0
        v_mul_u32_u24 v1, 5120, v1
        v_and_b32 v2, 127, v0
        v_lshl_add_u32 v1, v2, 2, v1
        v_add_u32 v1, {L_CT}, v1
        """)
        for q in range(10): a(f"ds_write_b32 v1, v{40+q} offset:{q*512}")

    def kgen_main(self, IDX):
        a = self.a
        a(f"""
        s_lshr_b32 {S_T0}, {S_W}, 1
        s_mul_i32 {S_T0}, {S_T0}, 5120
        s_and_b32 {S_T1}, {S_W}, 1
        s_lshl_b32 {S_T1}, {S_T1}, 8
        s_add_u32 {S_T0}, {S_T0}, {S_T1}
        s_add_u32 {S_T0}, {S_T0}, {L_CT}
        v_lshlrev_b32 v1, 4, v{V_H}
        v_add_u32 v1, {S_T0}, v1
        v_cvt_f32_u32 v2, v{V_L16}
        v_mov_b32 v3, v2
        """)
        ACC = 160
        def kstep(B, off, first):
            Q = lambda q: B + 4*q
            FR, FI, T0, T1 = B+40, B+44, B+48, B+52
            A0, A1, F0F, F2F = B+56, B+60, B+64, B+68
            rd = [f"ds_read_b128 {v4(Q(q))}, v1 offset:{q*512 + off}" for q in range(10)]
            L = []
            for h in (0, 2):
                L.append(f"v_pk_mul_f32 {pk(T0+h)}, {pk(Q(0)+h)}, v[2:3]")
                L.append(f"v_pk_mul_f32 {pk(T1+h)}, {pk(Q(1)+h)}, v[2:3]")
            for i in range(4):
                L.append(f"v_exp_f32 v{T0+i}, v{T0+i}")
            for i in range(4):
                L.append(f"v_cos_f32 v{FR+i}, v{T1+i}")
                L.append(f"v_sin_f32 v{FI+i}, v{T1+i}")
            for h in (0, 2):
                L.append(f"v_pk_mul_f32 {pk(FR+h)}, {pk(FR+h)}, {pk(T0+h)}")
                L.append(f"v_pk_mul_f32 {pk(FI+h)}, {pk(FI+h)}, {pk(T0+h)}")
            def packF(dst):
                L.extend([f"v_cvt_pk_bf16_f32 v{dst}, v{FR}, v{FR+1}", f"v_cvt_pk_bf16_f32 v{dst+1}, v{FR+2}, v{FR+3}",
                          f"v_cvt_pk_bf16_f32 v{dst+2}, v{FI}, v{FI+1}", f"v_cvt_pk_bf16_f32 v{dst+3}, v{FI+2}, v{FI+3}"])
            def sq():
                for h in (0, 2):
                    L.append(f"v_pk_mul_f32 {pk(T0+h)}, {pk(FI+h)}, {pk(FI+h)}")
                    L.append(f"v_pk_mul_f32 {pk(T1+h)}, {pk(FR+h)}, {pk(FI+h)}")
                for h in (0, 2):
                    L.append(f"v_pk_fma_f32 {pk(FR+h)}, {pk(FR+h)}, {pk(FR+h)}, {pk(T0+h)} neg_lo:[0,0,1] neg_hi:[0,0,1]")
                    L.append(f"v_pk_add_f32 {pk(FI+h)}, {pk(T1+h)}, {pk(T1+h)}")
            def gmul(q, dst):
                cr, ci = Q(q), Q(q+1)
                for h in (0, 2):
                    L.append(f"v_pk_mul_f32 {pk(T0+h)}, {pk(ci+h)}, {pk(FI+h)}")
                    L.append(f"v_pk_mul_f32 {pk(T1+h)}, {pk(ci+h)}, {pk(FR+h)}")
                for h in (0, 2):
                    L.append(f"v_pk_fma_f32 {pk(T0+h)}, {pk(cr+h)}, {pk(FR+h)}, {pk(T0+h)} neg_lo:[0,0,1] neg_hi:[0,0,1]")
                    L.append(f"v_pk_fma_f32 {pk(T1+h)}, {pk(cr+h)}, {pk(FI+h)}, {pk(T1+h)} neg_lo:[1,0,1] neg_hi:[1,0,1]")
                L.extend([f"v_cvt_pk_bf16_f32 v{dst}, v{T0}, v{T0+1}", f"v_cvt_pk_bf16_f32 v{dst+1}, v{T0+2}, v{T0+3}",
                          f"v_cvt_pk_bf16_f32 v{dst+2}, v{T1}, v{T1+1}", f"v_cvt_pk_bf16_f32 v{dst+3}, v{T1+2}, v{T1+3}"])
            def mm(T, A, F):
                c = '0' if first else v4(ACC+4*T)
                L.append(f"v_mfma_f32_16x16x32_bf16 {v4(ACC+4*T)}, {v4(A)}, {v4(F)}, {c}")
            packF(F0F); sq(); sq(); packF(F2F); sq(); sq()
            gmul(2, A0); mm(0, A0, F0F); gmul(4, A1); mm(1, A1, F0F)
            sq(); sq()
            gmul(6, A0); mm(2, A0, F2F); gmul(8, A1); mm(3, A1, F2F)
            return rd, L
        BA, BB = 8, 84
        def sprinkle(L, groups):
            step = max(1, len(L) // (len(groups) + 1)); out = []
            for i, x in enumerate(L):
                out.append(x)
                if groups and (i + 1) % step == 0: out += groups.pop(0)
            for g in groups: out += g
            return out
        for i in range(16): a(f"v_mov_b32 v{ACC+i}, 0")
        lk = a.label('KG'); lk2 = a.label('KG')
        a(f"s_mov_b32 {S_T4}, 0\n{lk}:")
        rdA, LA = kstep(BA, 0, False)
        rdB, LB = kstep(BB, 64, False)
        self.emit(rdA[:2] + rdB[:2] + rdA[2:] + rdB[2:])
        a("s_waitcnt lgkmcnt(15)")
        n_pre = 4+4+8+4 + 4+16+4+16
        self.emit(zipmerge(LA[:n_pre], LB[:n_pre]))
        a("s_waitcnt lgkmcnt(0)")
        self.emit(zipmerge(LA[n_pre:], LB[n_pre:]))
        a(f"v_add_u32 v1, 128, v1\ns_cmp_eq_u32 {S_T4}, 0\ns_cbranch_scc0 {lk2}")
        self.arrive_first()
        self.stamp()
        a(f"s_mov_b32 {S_T4}, 1\ns_branch {lk}\n{lk2}:\ns_nop 7")
        lf = a.label('AF')
        a(f"s_cmp_eq_u32 {S_W}, 0\ns_cbranch_scc0 {lf}\ns_mov_b64 exec, 1")
        self.arrive_finish()
        a(f"s_mov_b64 exec, -1\n{lf}:")
        self.sub(2)
        a(f"""
        s_lshr_b32 {S_T0}, {S_W}, 1
        s_mul_i32 {S_T0}, {S_T0}, 4224
        s_and_b32 {S_T1}, {S_W}, 1
        s_mul_i32 {S_T1}, {S_T1}, 8448
        s_add_u32 {S_T0}, {S_T0}, {S_T1}
        s_add_u32 {S_T0}, {S_T0}, {L_KD}
        v_mul_u32_u24 v1, 264, v{V_H}
        v_lshl_add_u32 v1, v{V_L16}, 2, v1
        v_add_u32 v1, {S_T0}, v1
        """)
        for T in range(4):
            for r in range(4):
                a(f"ds_write_b32 v1, v{ACC+4*T+r} offset:{1056*T+64*r+4*(r>>1)}")
        a("s_waitcnt vmcnt(0) lgkmcnt(0)\ns_barrier")
        self.sub(3)
        VAL = 8
        for part in range(2):
            for ch in range(2):
                for i in range(9):
                    a(f"ds_read_b32 v{VAL+18*part+9*ch+i}, v{IDX+i} offset:{8448*part + 4224*ch}")
        a(f"""
        v_cmp_ne_u32 vcc, 255, v0
        v_lshlrev_b32 v1, 4, v0
        v_add_u32 v1, {L_KC + 8}, v1
        s_waitcnt lgkmcnt(0)
        """)
        for i in range(18): a(f"v_add_f32 v{VAL+i}, v{VAL+i}, v{VAL+18+i}")
        a(f"v_cndmask_b32 v{VAL+8}, 0, v{VAL+8}, vcc\nv_cndmask_b32 v{VAL+17}, 0, v{VAL+17}, vcc")
        self.sub(4)
        for ch in range(2):
            for m0 in range(2):
                o = 80 + 4*(2*ch+m0)
                s0 = VAL + 9*ch + (1 - m0)
                for p in range(4): a(f"v_cvt_pk_bf16_f32 v{o+p}, v{s0+2*p}, v{s0+2*p+1}")
                a(f"ds_write_b64 v1, {pk(o)} offset:{ch*8448+m0*4224}")
                a(f"ds_write_b64 v1, {pk(o+2)} offset:{ch*8448+m0*4224+8}")
        a(f"""
        v_cmp_gt_u32 vcc, 14, v{V_L16}
        v_mul_u32_u24 v1, 4224, v{V_H}
        v_lshl_add_u32 v1, v{V_L16}, 2, v1
        v_add_u32 v1, {L_KC + 4104}, v1
        v_mov_b32 v2, 0
        s_cmp_eq_u32 {S_W}, 0
        s_cselect_b64 {S_EXS}, vcc, 0
        s_mov_b64 exec, {S_EXS}
        ds_write_b32 v1, v2
        s_mov_b64 exec, -1
        s_waitcnt lgkmcnt(0)
        """)
        self.sub(5)
        a("s_barrier")

    def wfrag_loads(self):
        setup = lines(f"""
        s_lshl_b32 {S_T0}, {S_CG}, 2
        s_add_u32 {S_T0}, {S_T0}, {S_W}
        s_lshl_b32 {S_T0}, {S_T0}, 14
        s_add_u32 {S_DS}, {S_T0}, {WQF}
        v_lshlrev_b32 v18, 4, v{V_LANE}
        """)
        groups = []
        for p in range(3):
            for ks in range(16):
                g = [f"buffer_load_dwordx4 a[{64*p+4*ks}:{64*p+4*ks+3}], v18, {SRD_WS}, {S_DS} offen sc1"]
                g.append(f"s_add_u32 {S_DS}, {S_DS}, {1024 if ks < 15 else (1 << 19) - 15*1024}")
                groups.append(g)
        return setup, groups

    def wsum(self, o=16):
        a = self.a
        for i in range(4): a(f"v_mov_b32 v{o+i}, {S_ONES}")
        for ks in range(16):
            for p in range(3):
                d = v4(o+4+4*p); c = '0' if ks == 0 else d
                w = f"a[{64*p+4*ks}:{64*p+4*ks+3}]"
                if p == 0: a(f"v_mfma_f32_16x16x32_bf16 {d}, {w}, {v4(o)}, {c}")
                else: a(f"v_mfma_f32_16x16x32_bf16 {d}, {v4(o)}, {w}, {c}")
        for i in range(4): a(f"v_mov_b32 v{V_WSQ+i}, v{o+4+i}")
        a(f"v_mov_b32 v{V_WSK}, v{o+8}\nv_mov_b32 v{V_WSV}, v{o+12}")

    CV = dict(XA=10, ST=20, AX=3, AS=4, AU0=5, AU1=6, AK=8, AU=9, ACC=80, X32=200, U32=216)
    def conv_pre(self):
        a = self.a
        a(f"""
        s_lshl_b32 {S_T0}, {S_ID}, 13
        s_add_u32 {S_T0}, {S_T0}, {S_XIN}
        v_lshlrev_b32 v3, 4, v0
        v_add_u32 v3, {S_T0}, v3
        v_lshlrev_b32 v4, 4, v0
        v_add_u32 v4, {S_ST}, v4
        v_lshlrev_b32 v5, 4, v0
        v_add_u32 v5, {L_U + 512}, v5
        v_add_u32 v6, 9280, v5
        v_bfe_u32 v1, v0, 5, 2
        v_mul_u32_u24 v1, 4640, v1
        v_and_b32 v2, 31, v0
        v_lshl_add_u32 v1, v2, 4, v1
        v_add_u32 v1, {L_U}, v1
        v_mov_b32 v36, 0
        v_mov_b32 v37, 0
        v_mov_b32 v38, 0
        v_mov_b32 v39, 0
        v_and_b32 v2, 1, v0
        v_mul_u32_u24 v2, 9280, v2
        v_add_u32 v2, {L_U + 512}, v2
        ds_write_b32 v2, v36
        v_cmp_gt_u32 vcc, 128, v0
        s_and_saveexec_b64 {S_EXS}, vcc
        ds_write_b128 v1, v[36:39]
        s_mov_b64 exec, -1
        s_lshr_b32 {S_T0}, {S_W}, 1
        s_and_b32 {S_T1}, {S_W}, 1
        s_mul_i32 {S_T2}, {S_T0}, 8448
        s_lshl_b32 {S_T3}, {S_T1}, 8
        s_sub_u32 {S_T2}, {S_T2}, {S_T3}
        s_add_u32 {S_T2}, {S_T2}, {L_KC + 4096 - 192 - 3584}
        v_and_b32 v1, 1, v{V_L16}
        v_lshrrev_b32 v7, 1, v{V_L16}
        v_mul_u32_u24 v8, 4224, v1
        v_lshl_add_u32 v8, v{V_H}, 4, v8
        v_lshlrev_b32 v9, 3, v7
        v_sub_u32 v8, v8, v9
        v_add_u32 v8, {S_T2}, v8
        s_mul_i32 {S_T2}, {S_T0}, 9280
        s_sub_u32 {S_T2}, {S_T2}, {S_T3}
        s_add_u32 {S_T2}, {S_T2}, {L_U + 512 - 192}
        v_mul_u32_u24 v9, 4640, v1
        v_lshl_add_u32 v9, v7, 6, v9
        v_lshl_add_u32 v9, v{V_H}, 4, v9
        v_add_u32 v9, {S_T2}, v9
        s_lshl_b32 {S_T1}, {S_T1}, 1
        s_add_u32 {S_T0}, {S_T0}, {S_T1}
        s_mul_i32 {S_T0}, {S_T0}, 9216
        s_add_u32 {S_T0}, {S_T0}, {L_Y}
        v_mul_u32_u24 v2, 144, v7
        v_lshl_add_u32 v2, v{V_H}, 5, v2
        v_lshl_add_u32 v2, v1, 3, v2
        v_add_u32 v2, {S_T0}, v2
        v_lshrrev_b32 v7, 2, v0
        v_lshlrev_b32 v7, 4, v7
        v_lshl_add_u32 v7, v0, 5, v7
        v_add_u32 v7, {L_Y}, v7
        s_waitcnt lgkmcnt(0)
        """)
        for i in (0, 1, 3):
            for q in range(8):
                for hh in range(2):
                    b = {0: 112, 1: 192, 3: 224}[i] + 4*q + 2*hh
                    reg = f"{'v' if i == 0 else 'a'}[{b}:{b+1}]"
                    a(f"ds_read_b64 {reg}, v8 offset:{(3-i)*64 + (7-q)*512 + 8*hh}")

    def conv(self):
        a = self.a
        self.sub(0)
        XA, XB, ST = 10, 14, 20
        for j in range(4):
            a(f"s_mov_b32 {S_T0}, {4096*j}\nbuffer_load_dwordx4 {v4(ST+4*j)}, v4, {SRD_WS}, {S_T0} offen sc1")
        a(f"""
        buffer_load_dwordx4 {v4(XA)}, v3, {SRD_WS}, 0 offen sc1
        v_add_u32 v1, 4096, v3
        buffer_load_dwordx4 {v4(XB)}, v1, {SRD_WS}, 0 offen sc1
        s_mov_b32 s66, {fx(1/512)}
        s_mov_b32 s67, {fx(1e-5)}
        v_mov_b32 v36, s66
        v_mov_b32 v37, s66
        v_mov_b32 v38, s67
        v_mov_b32 v39, s67
        """)
        setup, self.wg = self.wfrag_loads()
        l1 = a.label('CW'); l2 = a.label('CW')
        a(f"s_cmp_eq_u32 {S_LAYER}, 0\ns_cselect_b64 vcc, -1, 0\ns_cbranch_scc0 {l1}")
        self.emit(setup)
        for g in self.wg[:12]: self.emit(g)
        a(f"s_waitcnt vmcnt(14)\ns_branch {l2}\n{l1}:\ns_waitcnt vmcnt(2)\n{l2}:")
        self.sub(1)
        S = lambda i: ST + 2*i
        P  = 40
        MB = 48; VB = 56; R = 64; MR = 72
        for i in range(8): a(f"v_pk_mul_f32 {pk(S(i))}, {pk(S(i))}, v[36:37]")
        for i in range(8): a(f"v_fma_f32 v{S(i)+1}, -v{S(i)}, v{S(i)}, v{S(i)+1}")
        for i in range(8): a(f"v_cvt_pk_bf16_f32 v{P+i}, v{S(i)}, v{S(i)+1}")
        for i in range(8): a(f"v_and_b32 v{VB+i}, 0xffff0000, v{P+i}")
        for i in range(4): a(f"v_pk_add_f32 {pk(VB+2*i)}, {pk(VB+2*i)}, v[38:39]")
        for i in range(8): a(f"v_lshlrev_b32 v{MB+i}, 16, v{P+i}")
        for i in range(4): a(f"v_cvt_pk_bf16_f32 v{P+i}, v{VB+2*i}, v{VB+2*i+1}")
        for i in range(4):
            a(f"v_lshlrev_b32 v{VB+2*i}, 16, v{P+i}\nv_and_b32 v{VB+2*i+1}, 0xffff0000, v{P+i}")
        X32, U32 = 200, 216
        fill = []
        for c, X in enumerate((XA, XB)):
            for p in range(4):
                fill.append(f"v_lshlrev_b32 v{X32+8*c+2*p}, 16, v{X+p}")
                fill.append(f"v_and_b32 v{X32+8*c+2*p+1}, 0xffff0000, v{X+p}")
        for i in range(8): a(f"v_sqrt_f32 v{VB+i}, v{VB+i}")
        for i in range(4): a(f"v_cvt_pk_bf16_f32 v{P+i}, v{VB+2*i}, v{VB+2*i+1}")
        for i in range(4):
            a(f"v_lshlrev_b32 v{VB+2*i}, 16, v{P+i}\nv_and_b32 v{VB+2*i+1}, 0xffff0000, v{P+i}")
        l1 = a.label('CW'); l2 = a.label('CW')
        a(f"s_cbranch_vccz {l1}\ns_waitcnt vmcnt(12)\ns_branch {l2}\n{l1}:\ns_waitcnt vmcnt(0)\n{l2}:")
        self.emit(weave([f"v_rcp_f32 v{R+i}, v{VB+i}" for i in range(8)], fill, per=2))
        for i in range(4): a(f"v_pk_mul_f32 {pk(MR+2*i)}, {pk(MB+2*i)}, {pk(R+2*i)}")
        self.sub(2)
        for c in range(2):
            for p in range(4):
                x = X32+8*c+2*p; u = U32+8*c+2*p
                a(f"v_pk_fma_f32 {pk(u)}, {pk(x)}, {pk(R+2*p)}, {pk(MR+2*p)} neg_lo:[0,0,1] neg_hi:[0,0,1]")
        UP = 40
        for c in range(2):
            for p in range(4):
                u = U32+8*c+2*p
                a(f"v_cvt_pk_bf16_f32 v{UP+4*c+p}, v{u}, v{u+1}")
            ad = 5 + c
            a(f"ds_write_b128 v{ad}, {v4(UP+4*c)} offset:4640")
            a(f"ds_write2_b32 v{ad}, v{UP+4*c}, v{UP+4*c+1} offset0:1 offset1:2")
            a(f"ds_write2_b32 v{ad}, v{UP+4*c+2}, v{UP+4*c+3} offset0:3 offset1:4")
        AK, AU, ACC = 8, 9, 80
        a("s_waitcnt lgkmcnt(0)\ns_barrier")
        self.sub(3)
        ABASE = {0: ('v', 112), 1: ('a', 192), 2: ('v', 40), 3: ('a', 224)}
        def fragA(i, q):
            f, b = ABASE[i]; return f"{f}[{b+4*q}:{b+4*q+3}]"
        BB = [[144+4*q for q in range(8)], [176, 180, 184, 188, 192, 196, 72, 76]]
        def fragB(st, q): return v4(BB[st][q])
        def loadB(i, st): return [f"ds_read_b128 {fragB(st, q)}, v{AU} offset:{(3-i)*64 + 512*q}" for q in range(8)]
        def loadA2():
            L = []
            for q in range(8):
                for hh in range(2):
                    b = 40 + 4*q + 2*hh
                    L.append(f"ds_read_b64 v[{b}:{b+1}], v{AK} offset:{(3-2)*64 + (7-q)*512 + 8*hh}")
            return L
        self.emit(loadB(0, 0))
        def mainloop(groups):
            written = set(); cnt = 0
            for i in range(4):
                st = i & 1
                a("s_waitcnt lgkmcnt(0)")
                nxt = loadB(i+1, st ^ 1) if i < 3 else []
                if i == 0: nxt = nxt + loadA2()
                for sh in range(8):
                    for t in range(sh, 8):
                        c = v4(ACC+4*t) if t in written else '0'
                        written.add(t)
                        a(f"v_mfma_f32_16x16x32_bf16 {v4(ACC+4*t)}, {fragA(i, sh)}, {fragB(st, t-sh)}, {c}")
                        cnt += 1
                        if nxt: a(nxt.pop(0))
                        if groups and cnt % 20 == 10:
                            lg = a.label('WG')
                            a(f"s_cbranch_vccz {lg}")
                            for _ in range(4): self.emit(groups.pop(0))
                            a(f"{lg}:")
            assert not groups
        mainloop(self.wg[12:36])
        lb = a.label('WB')
        a(f"s_cbranch_vccz {lb}")
        for g in self.wg[36:]: self.emit(g)
        a(f"{lb}:")
        self.sub(4)
        for t in range(8):
            a(f"ds_write_b64 v2, {pk(ACC+4*t)} offset:{1152*t}")
            a(f"ds_write_b64 v2, {pk(ACC+4*t+2)} offset:{1152*t+16}")
        a("s_waitcnt lgkmcnt(0)\ns_barrier")
        self.sub(5)
        Y0 = 112
        for ch in range(2):
            for sh in range(2):
                for hh in range(2):
                    b = Y0 + 16*sh + 8*ch + 4*hh
                    a(f"ds_read_b128 {v4(b)}, v7 offset:{sh*18432 + ch*9216 + 16*hh}")
        a(f"""
        v_subrev_u32 v3, {S_XIN}, v3
        v_add_u32 v3, {S_XOUT}, v3
        v_add_u32 v1, 4096, v3
        """)
        for ch in range(2):
            a(f"s_waitcnt lgkmcnt({4*(1-ch)})")
            D = V_DSK0 if ch == 0 else V_DSK1
            for p in range(4):
                y = Y0 + 8*ch + 2*p
                a(f"v_pk_add_f32 {pk(y)}, {pk(y)}, {pk(y+16)}")
            for p in range(4):
                y = Y0 + 8*ch + 2*p; u = U32 + 8*ch + 2*p
                a(f"v_pk_fma_f32 {pk(y)}, {pk(u)}, {pk(D)}, {pk(y)} op_sel_hi:[1,0,1]")
            for p in range(4):
                y = Y0 + 8*ch + 2*p; x = X32 + 8*ch + 2*p
                a(f"v_pk_add_f32 {pk(y)}, {pk(y)}, {pk(x)}")
            for p in range(4):
                y = Y0 + 8*ch + 2*p
                a(f"v_cvt_pk_bf16_f32 v{80+4*ch+p}, v{y}, v{y+1}")
            a(f"buffer_store_dwordx4 {v4(80+4*ch)}, v{3 if ch == 0 else 1}, {SRD_WS}, 0 offen sc1")
        self.sub(6)
        self.subflush(0, 7)

    def wstage_kv(self):
        a = self.a
        l = a.label('WS')
        a(f"s_cmp_eq_u32 {S_LAYER}, 0\ns_cbranch_scc0 {l}")
        self.wsum()
        a(f"{l}:")

    def qkv_pre(self):
        a = self.a
        t = 10
        a(f"""
        v_lshrrev_b32 v{t}, 3, v{V_LANE}
        v_lshlrev_b32 v{t}, 12, v{t}
        v_bfe_u32 v{t+1}, v{V_LANE}, 1, 2
        v_bfe_u32 v{t+2}, v{V_LANE}, 4, 1
        s_and_b32 {S_T0}, {S_W}, 1
        s_lshl_b32 {S_T0}, {S_T0}, 1
        v_or_b32 v{t+2}, {S_T0}, v{t+2}
        v_xor_b32 v{t+1}, v{t+1}, v{t+2}
        v_lshl_add_u32 v{t}, v{t+1}, 5, v{t}
        v_and_b32 v{t+1}, 1, v{V_LANE}
        v_lshl_add_u32 v{t}, v{t+1}, 4, v{t}
        s_lshl_b32 {S_T0}, {S_RT}, 7
        v_add_u32 v{t}, {S_T0}, v{t}
        s_lshl_b32 {S_DS}, {S_W}, 15
        s_add_u32 {S_DS}, {S_DS}, {S_XIN}
        s_lshl_b32 {S_DM}, {S_W}, 10
        s_add_u32 {S_DM}, {S_DM}, {L_XL}
        """)
        t = 12
        a(f"""
        v_lshrrev_b32 v{t}, 2, v{V_L16}
        v_lshl_add_u32 v{t+1}, v{V_H}, 3, v{t}
        v_lshlrev_b32 v{t+1}, 7, v{t+1}
        v_and_b32 v{t+2}, 3, v{V_L16}
        v_lshl_add_u32 v{t+1}, v{t+2}, 3, v{t+1}
        v_add_u32 v{t+1}, {L_XL}, v{t+1}
        v_lshrrev_b32 v{t}, 1, v{t}
        v_and_b32 v{t+2}, 1, v{V_H}
        v_lshl_or_b32 v{t}, v{t+2}, 1, v{t}
        v_xor_b32 v{t}, {S_W}, v{t}
        """)
        for j in range(4):
            a(f"v_xor_b32 v{t+2}, {j}, v{t}\nv_lshl_add_u32 v{4+j}, v{t+2}, 5, v{t+1}")
        for i in range(4): a(f"v_mov_b32 v{104+i}, {S_ONES}")
        a(f"""
        s_mov_b32 s66, {fx(1e-6)}
        s_mov_b32 s67, {fx(LOG2E)}
        v_mov_b32 v112, s66
        v_mov_b32 v113, s66
        v_mov_b32 v114, s67
        v_mov_b32 v115, s67
        """)

    def qkv(self):
        a = self.a
        self.sub(0)
        def dma():
            return lines(f"""
            s_mov_b32 m0, {S_DM}
            s_add_u32 {S_DM}, {S_DM}, 4096
            buffer_load_dwordx4 v10, {SRD_WS}, {S_DS} offen sc1 lds
            s_add_u32 {S_DS}, {S_DS}, {4*32768}
            """)
        NUPF = int(os.environ.get('NUPF', '12'))
        for i in range(NUPF): self.emit(dma())
        AD = 4
        AK_, AV_, AQ_ = 16, 32, 48
        DS, DG = 64, 68
        ONES = 104
        XF = [72, 88]
        def xload(ks, st):
            L = []
            for j in range(4):
                b = XF[st] + 4*j
                L.append(f"ds_read_b64_tr_b16 {pk(b)}, v{AD+j} offset:{ks*4096}")
                L.append(f"ds_read_b64_tr_b16 {pk(b+2)}, v{AD+j} offset:{ks*4096+512}")
            return L
        S_WDS, S_WDM = 's84', 's85'
        a(f"""
        s_lshl_b32 {S_WDS}, {S_CG}, 16
        s_lshl_b32 {S_T0}, {S_W}, 14
        s_add_u32 {S_WDS}, {S_WDS}, {S_T0}
        s_add_u32 {S_WDS}, {S_WDS}, {WOFG}
        s_add_u32 {S_WDM}, {S_T0}, {L_WO}
        v_lshlrev_b32 v111, 4, v{V_LANE}
        """)
        def wo_group():
            lg = a.label('WOG')
            a(f"s_cmp_eq_u32 {S_LAYER}, 0\ns_cbranch_scc0 {lg}")
            for _ in range(4):
                a(f"""
                s_mov_b32 m0, {S_WDM}
                s_add_u32 {S_WDM}, {S_WDM}, 1024
                buffer_load_dwordx4 v111, {SRD_WS}, {S_WDS} offen sc1 lds
                s_add_u32 {S_WDS}, {S_WDS}, 1024
                """)
            a(f"{lg}:")
        SF = [200, 208]
        S = {0: [0], 1: [1, 2], 2: [3, 4], 3: [5, 6], 4: [7, 8], 5: [9, 10], 6: [11, 12], 7: [13, 14], 8: [15]}
        def sload(ks, st):
            L = []
            for n, kss in enumerate(S.get(ks, [])):
                b = SF[st] + 4*n
                L.append(f"ds_read_b64_tr_b16 {pk(b)}, v{AD} offset:{kss*4096}")
                L.append(f"ds_read_b64_tr_b16 {pk(b+2)}, v{AD} offset:{kss*4096+512}")
            return L
        ndma = [NUPF]
        landed = [-1]
        def need(idx):
            if idx <= landed[0]: return []
            landed[0] = idx
            return [f"s_waitcnt vmcnt({ndma[0] - 1 - idx})", "s_barrier"]
        waits = {0: 2, 1: 4, 2: 8, 4: 12, 6: 15}
        self.emit(need(1))
        self.sub(1)
        self.emit(xload(0, 0) + sload(0, 0))
        self.P1 = {}
        fillers = {}
        def pass1(ks, extra):
            st = ks & 1
            a("s_waitcnt lgkmcnt(0)")
            if ks in waits: self.emit(need(waits[ks]))
            fill = (xload(ks+1, st ^ 1) + sload(ks+1, st ^ 1)) if ks + 1 < 16 else xload(0, st ^ 1)
            M = []
            for j in range(4):
                x = v4(XF[st]+4*j)
                ck = '0' if ks == 0 else v4(AK_+4*j); cv = '0' if ks == 0 else v4(AV_+4*j)
                M.append(f"v_mfma_f32_16x16x32_bf16 {v4(AK_+4*j)}, {x}, a[{64+4*ks}:{64+4*ks+3}], {ck}")
                M.append(f"v_mfma_f32_16x16x32_bf16 {v4(AV_+4*j)}, {x}, a[{128+4*ks}:{128+4*ks+3}], {cv}")
                if ks >= 8:
                    M.append(f"v_mfma_f32_16x16x32_bf16 {v4(AQ_+4*j)}, a[{4*ks}:{4*ks+3}], {x}, {'0' if ks == 8 else v4(AQ_+4*j)}")
            for n, kss in enumerate(S.get(ks, [])):
                x0 = v4(SF[st] + 4*n)
                M.append(f"v_mfma_f32_16x16x32_bf16 {v4(DS)}, {v4(ONES)}, {x0}, {'0' if kss == 0 else v4(DS)}")
                M.append(f"v_mfma_f32_16x16x32_bf16 {v4(DG)}, {x0}, {x0}, {'0' if kss == 0 else v4(DG)}")
            k = min(2, 16 - ndma[0])
            for _ in range(k): fill = fill + dma()
            ndma[0] += k
            out = []; fi = list(fill); ex = list(extra)
            for mi, m in enumerate(M):
                out.append(m)
                n = 2
                while n > 0 and fi: out.append(fi.pop(0)); n -= 1
                while n > 0 and ex: out.append(ex.pop(0)); n -= 1
            out += fi
            self.emit(out)
            return ex
        self._pass1 = pass1
        SQ = 109
        F1 = lines(f"""
        v_and_b32 v8, 3, v{V_L16}
        v_lshrrev_b32 v9, 2, v{V_L16}
        v_cmp_eq_u32 s[66:67], 1, v8
        v_cmp_eq_u32 s[68:69], 2, v8
        v_cmp_eq_u32 vcc, 3, v8
        v_cndmask_b32 v{SQ}, v{DG}, v{DG+1}, s[66:67]
        v_cndmask_b32 v{SQ}, v{SQ}, v{DG+2}, s[68:69]
        v_cndmask_b32 v{SQ}, v{SQ}, v{DG+3}, vcc
        v_cmp_eq_u32 vcc, v9, v{V_H}
        s_lshl_b32 {S_T0}, {S_W}, 6
        s_add_u32 {S_T0}, {S_T0}, {L_S2R}
        v_cndmask_b32 v{SQ}, 0, v{SQ}, vcc
        v_lshlrev_b32 v8, 2, v{V_L16}
        v_add_u32 v9, {S_T0}, v8
        """)
        F1 += self.reduce_h(SQ, 110)
        F1 += self.ln_final1(DS, SQ, 116, 117, 118)
        F1 += lines(f"""
        ds_write_b32 v9, v116
        ds_write_b32 v9, v117 offset:{L_S2M-L_S2R}
        v_lshlrev_b32 v8, 4, v{V_H}
        v_add_u32 v8, {S_T0}, v8
        """)
        R4, M4 = 128, 144
        RQ, MQ = 160, 208
        F2 = []
        for j in range(4):
            F2.append(f"v_xor_b32 v{120+j}, {64*j}, v8")
            F2.append(f"v_xor_b32 v{124+j}, {64*j}, v9")
        for j in range(4):
            F2.append(f"ds_read_b128 {v4(R4+4*j)}, v{120+j}")
            F2.append(f"ds_read_b128 {v4(M4+4*j)}, v{120+j} offset:{L_S2M-L_S2R}")
        for j in range(4):
            F2.append(f"ds_read_b32 v{RQ+2*j}, v{124+j}")
            F2.append(f"ds_read_b32 v{MQ+2*j}, v{124+j} offset:{L_S2M-L_S2R}")
        EPS, L2E = 112, 114
        def phi(x, T):
            return [f"v_pk_mul_f32 {pk(T)}, {pk(x)}, {pk(L2E)}",
                    f"v_exp_f32_e64 v{T}, v{T} clamp", f"v_exp_f32_e64 v{T+1}, v{T+1} clamp",
                    f"v_max_f32 v{x}, v{EPS}, v{x}", f"v_max_f32 v{x+1}, v{EPS}, v{x+1}",
                    f"v_pk_add_f32 {pk(x)}, {pk(x)}, {pk(T)}"]
        PKF, VF, PQF = 168, 176, 200
        DKV, DZ = 196, 216
        def kv_chain(j, h2, T):
            k = AK_+4*j+h2; vv = AV_+4*j+h2; r = R4+4*j+h2; m = M4+4*j+h2
            c = [f"v_pk_fma_f32 {pk(T)}, {pk(m)}, v[{V_WSK}:{V_WSK+1}], {pk(EPS)} op_sel_hi:[1,0,1] neg_lo:[0,0,1] neg_hi:[0,0,1]",
                 f"v_pk_mul_f32 {pk(T+4)}, {pk(m)}, v[{V_WSV}:{V_WSV+1}] op_sel_hi:[1,0]",
                 f"v_pk_fma_f32 {pk(k)}, {pk(k)}, {pk(r)}, {pk(T)} neg_lo:[0,0,1] neg_hi:[0,0,1]",
                 f"v_pk_fma_f32 {pk(vv)}, {pk(vv)}, {pk(r)}, {pk(T+4)} neg_lo:[0,0,1] neg_hi:[0,0,1]"]
            ph = phi(k, T+2)
            c += [ph[0], f"v_cvt_pk_bf16_f32 v{VF + 2*j + h2//2}, v{vv}, v{vv+1}"] + ph[1:]
            c.append(f"v_cvt_pk_bf16_f32 v{PKF + 2*j + h2//2}, v{k}, v{k+1}")
            return c
        def q_chain(j, h2, T):
            q = AQ_+4*j+h2
            c = [f"v_pk_fma_f32 {pk(T)}, {pk(MQ+2*j)}, {pk(V_WSQ+h2)}, {pk(EPS)} op_sel_hi:[0,1,1] neg_lo:[0,0,1] neg_hi:[0,0,1]",
                 f"v_pk_fma_f32 {pk(q)}, {pk(q)}, {pk(RQ+2*j)}, {pk(T)} op_sel_hi:[1,0,1] neg_lo:[0,0,1] neg_hi:[0,0,1]"]
            c += phi(q, T+2)
            c.append(f"v_cvt_pk_bf16_f32 v{PQF + 2*j + h2//2}, v{q}, v{q+1}")
            return c
        adr = lines(f"""
        s_lshl_b32 {S_T0}, {S_CG}, 2
        s_add_u32 {S_T0}, {S_T0}, {S_W}
        s_lshl_b32 {S_T1}, {S_T0}, 10
        s_add_u32 {S_T1}, {S_T1}, {S_KV}
        v_lshlrev_b32 v11, 2, v{V_LANE}
        v_add_u32 v14, {S_T1}, v11
        s_lshl_b32 {S_T1}, {S_T0}, 6
        s_add_u32 {S_T1}, {S_T1}, {S_Z}
        v_add_u32 v15, {S_T1}, v11
        s_lshl_b32 {S_T1}, {S_RT}, 16
        s_add_u32 {S_T1}, {S_T1}, {S_PQ}
        s_lshl_b32 {S_T2}, {S_T0}, 10
        s_add_u32 {S_T1}, {S_T1}, {S_T2}
        s_and_b32 {S_T2}, {S_W}, 1
        s_lshl_b32 {S_T2}, {S_T2}, 4
        v_xor_b32 v11, {S_T2}, v{V_LANE}
        v_lshlrev_b32 v11, 4, v11
        v_add_u32 v11, {S_T1}, v11
        s_lshr_b32 {S_T2}, {S_W}, 1
        s_lshl_b32 {S_T2}, {S_T2}, 15
        v_add_u32 v12, {S_T2}, v11
        s_xor_b32 {S_T2}, {S_T2}, 0x8000
        v_add_u32 v13, {S_T2}, v11
        """)
        def passQ(ks_range):
            for ks in ks_range:
                st = ks & 1
                nx = xload(ks+1, st ^ 1) if ks + 1 < 8 else []
                a("s_waitcnt lgkmcnt(0)")
                for j in range(4):
                    x = v4(XF[st]+4*j)
                    a(f"v_mfma_f32_16x16x32_bf16 {v4(AQ_+4*j)}, a[{4*ks}:{4*ks+3}], {x}, {v4(AQ_+4*j)}")
                    k = 4 if j < 2 else 0
                    for _ in range(k):
                        if nx: a(nx.pop(0))
        for ks in range(0, 9):
            pass1(ks, [])
            if ks == 3: self.sub(2)
        self.sub(3)
        ex = list(F1)
        for ks in range(9, 12): ex = pass1(ks, ex)
        self.emit(ex)
        a("s_waitcnt lgkmcnt(0)\ns_barrier")
        self.sub(4)
        ex = list(F2) + adr
        for ks in range(12, 16):
            ex = pass1(ks, ex)
            if ks == 12: wo_group()
        self.emit(ex)
        wo_group()
        a("s_waitcnt lgkmcnt(0)")
        self.sub(5)
        TT = [184, 190, 220, 226]
        for j0 in (0, 2):
            self.emit(zipmerge(kv_chain(j0, 0, TT[0]), kv_chain(j0, 2, TT[1]), kv_chain(j0+1, 0, TT[2]), kv_chain(j0+1, 2, TT[3])))
            u = j0 // 2
            c1 = '0' if u == 0 else v4(DKV); c2 = '0' if u == 0 else v4(DZ)
            a(f"v_mfma_f32_16x16x32_bf16 {v4(DKV)}, {v4(VF+4*u)}, {v4(PKF+4*u)}, {c1}")
            a(f"v_mfma_f32_16x16x32_bf16 {v4(DZ)}, {v4(ONES)}, {v4(PKF+4*u)}, {c2}")
        for i in range(4):
            a(f"buffer_atomic_add_f32 v{DKV+i}, v14, {SRD_WS}, 0 offen offset:{256*i}")
        a(f"""
        s_mov_b64 exec, 0xffff
        buffer_atomic_add_f32 v{DZ}, v15, {SRD_WS}, 0 offen
        s_mov_b64 exec, -1
        """)
        wo_group()
        passQ(range(0, 4))
        wo_group()
        passQ(range(4, 8))
        TQ = [184, 188, 220, 224]
        for u in range(2):
            j0 = 2*u
            self.emit(zipmerge(q_chain(j0, 0, TQ[0]), q_chain(j0, 2, TQ[1]), q_chain(j0+1, 0, TQ[2]), q_chain(j0+1, 2, TQ[3])))
            b = PQF + 4*u
            a(f"v_permlane16_swap_b32 v{b}, v{b+2}\nv_permlane16_swap_b32 v{b+1}, v{b+3}")
            a(f"buffer_store_dwordx4 {v4(b)}, v{12+u}, {SRD_WS}, 0 offen sc1")
        self.sub(6)
        self.subflush(1, 7)

    def outp_pre(self):
        a = self.a
        a(f"""
        s_lshl_b32 {S_T0}, {S_W}, 13
        s_add_u32 {S_T0}, {S_T0}, {S_KV}
        v_lshlrev_b32 v4, 4, v{V_LANE}
        v_add_u32 v4, {S_T0}, v4
        v_add_u32 v5, 4096, v4
        s_lshl_b32 {S_T0}, {S_W}, 9
        s_add_u32 {S_T0}, {S_T0}, {S_Z}
        v_and_b32 v6, 31, v{V_LANE}
        v_lshlrev_b32 v6, 4, v6
        v_add_u32 v6, {S_T0}, v6
        s_and_b32 {S_T0}, {S_W}, 1
        s_lshl_b32 {S_T0}, {S_T0}, 15
        s_lshr_b32 {S_T1}, {S_W}, 1
        s_lshl_b32 {S_T1}, {S_T1}, 14
        s_add_u32 {S_T0}, {S_T0}, {S_T1}
        s_lshl_b32 {S_T1}, {S_RT}, 16
        s_add_u32 {S_T0}, {S_T0}, {S_T1}
        s_add_u32 {S_DS}, {S_T0}, {S_PQ}
        v_lshlrev_b32 v7, 4, v{V_LANE}
        v_lshrrev_b32 v1, 3, v0
        v_and_b32 v3, 7, v0
        s_lshl_b32 {S_T0}, {S_CG}, 18
        s_lshl_b32 {S_T1}, {S_RT}, 7
        s_add_u32 {S_T0}, {S_T0}, {S_T1}
        v_lshlrev_b32 v8, 12, v1
        v_lshl_add_u32 v8, v3, 4, v8
        v_add_u32 v8, {S_T0}, v8
        v_add_u32 v9, {S_XIN}, v8
        v_add_u32 v2, 0x20000, v9
        v_lshrrev_b32 v10, 4, v{V_LANE}
        v_bfe_u32 v11, v{V_LANE}, 2, 2
        v_lshl_add_u32 v10, v11, 2, v10
        v_bfe_u32 v11, v{V_LANE}, 1, 1
        v_lshl_add_u32 v10, v11, 4, v10
        v_lshlrev_b32 v10, 4, v10
        v_and_b32 v11, 1, v{V_LANE}
        v_lshl_add_u32 v10, v11, 3, v10
        s_mul_i32 {S_T0}, {S_W}, {8*544}
        s_add_u32 {S_T0}, {S_T0}, {L_KVF}
        v_add_u32 v10, {S_T0}, v10
        v_bfe_u32 v11, v{V_LANE}, 2, 3
        v_mul_u32_u24 v11, 544, v11
        v_and_b32 v12, 3, v{V_LANE}
        v_lshl_add_u32 v11, v12, 3, v11
        v_add_u32 v11, {S_T0}, v11
        v_and_b32 v12, 31, v{V_LANE}
        v_lshrrev_b32 v13, 5, v{V_LANE}
        v_lshlrev_b32 v14, 4, v13
        v_add_u32 v15, v14, v12
        v_lshlrev_b32 v15, 4, v15
        v_lshlrev_b32 v14, 4, v13
        v_add_u32 v14, 512, v14
        v_cmp_gt_u32 vcc, 16, v12
        v_cndmask_b32 v15, v14, v15, vcc
        s_lshr_b32 {S_T0}, {S_W}, 1
        s_mul_i32 {S_T1}, {S_T0}, {16*544}
        s_add_u32 {S_T1}, {S_T1}, {L_KVF}
        v_add_u32 v15, {S_T1}, v15
        v_lshrrev_b32 v16, 2, v{V_L16}
        v_lshrrev_b32 v17, 1, v{V_H}
        v_lshl_add_u32 v17, v17, 2, v16
        v_lshlrev_b32 v17, 7, v17
        v_and_b32 v18, 3, v{V_L16}
        v_lshl_add_u32 v17, v18, 3, v17
        s_lshl_b32 {S_T1}, {S_T0}, 15
        s_add_u32 {S_T1}, {S_T1}, {L_WO}
        v_add_u32 v17, {S_T1}, v17
        v_and_b32 v18, 2, v16
        v_and_b32 v19, 1, v{V_H}
        v_xor_b32 v18, v18, v19
        v_lshl_add_u32 v13, v18, 5, v17
        v_xor_b32 v18, 2, v18
        v_lshl_add_u32 v14, v18, 5, v17
        s_mul_i32 {S_T1}, {S_T0}, {64*272}
        s_and_b32 {S_T0}, {S_W}, 1
        s_lshl_b32 {S_T0}, {S_T0}, 7
        s_add_u32 {S_T1}, {S_T1}, {S_T0}
        s_add_u32 {S_T1}, {S_T1}, {L_O32}
        v_mul_u32_u24 v16, 272, v12
        v_lshrrev_b32 v17, 5, v{V_LANE}
        v_lshl_add_u32 v16, v17, 4, v16
        v_add_u32 v16, {S_T1}, v16
        v_mul_u32_u24 v17, 272, v1
        v_lshl_add_u32 v17, v3, 5, v17
        v_add_u32 v17, {L_O32}, v17
        v_mul_u32_u24 v18, 144, v1
        v_lshl_add_u32 v18, v3, 4, v18
        v_add_u32 v18, {L_OT}, v18
        """)
        a(f"""
        s_lshr_b32 {S_T0}, {S_W}, 1
        s_lshl_b32 {S_T0}, {S_T0}, 15
        s_add_u32 {S_T0}, {S_T0}, {L_WO}
        v_lshlrev_b32 v13, 4, v{V_LANE}
        v_add_u32 v13, {S_T0}, v13
        """)
        for i in range(16):
            for c in range(2):
                a(f"ds_read_b128 {v4(WOF + 8*i + 4*c)}, v13 offset:{i*2048 + c*1024}")

    def outp(self):
        a = self.a
        self.sub(0)
        KVL = 24
        issued = []
        def ld(txt, tag): a(txt); issued.append(tag)
        for p in range(8):
            ad = 4 if p < 4 else 5; off = (p & 3)*1024
            ld(f"buffer_load_dwordx4 {v4(KVL+4*p)}, v{ad}, {SRD_WS}, 0 offen offset:{off} sc1", 'kv')
        ld(f"buffer_load_dwordx4 v[56:59], v6, {SRD_WS}, 0 offen sc1", 'kv')
        def pqload(i):
            ld(f"buffer_load_dwordx4 a[{192+4*i}:{192+4*i+3}], v7, {SRD_WS}, {S_DS} offen sc1", f'pq{i}')
            a(f"s_add_u32 {S_DS}, {S_DS}, 1024")
        NUP = 4
        for i in range(NUP): pqload(i)
        def vm(tag):
            idx = max(i for i, t in enumerate(issued) if t == tag)
            return len(issued) - 1 - idx
        self.sub(1)
        a(f"s_waitcnt vmcnt({vm('kv')})")
        self.sub(2)
        for p in range(8):
            b = KVL + 4*p
            a(f"v_cvt_pk_bf16_f32 v{b}, v{b}, v{b+1}\nv_cvt_pk_bf16_f32 v{b+1}, v{b+2}, v{b+3}")
            a(f"ds_write_b64 v10, {pk(b)} offset:{p*544}")
        a("v_cvt_pk_bf16_f32 v56, v56, v57\nv_cvt_pk_bf16_f32 v57, v58, v59")
        a(f"ds_write_b64 v11, v[56:57] offset:512")
        AKV = 15
        ACC = [72, 88]
        D1 = [32, 48]; KF = [20, 24, 28]; OF = [64, 68]
        XR = WOF
        for i in range(NUP, 10): pqload(i)
        a("s_waitcnt lgkmcnt(0)\ns_barrier")
        self.sub(3)
        def acc(c): return f"v[{ACC[c]}:{ACC[c]+15}]"
        def rdK(i): return [f"ds_read_b128 {v4(KF[i % 3])}, v{AKV} offset:{i*544}"]
        def m1(i): return f"v_mfma_f32_32x32x16_bf16 v[{D1[i&1]}:{D1[i&1]+15}], {v4(KF[i % 3])}, a[{192+4*i}:{192+4*i+3}], 0"
        def valu(i):
            d = D1[i & 1]; o = OF[i & 1]
            L = [f"v_add_f32 v{d+8}, {fx(1e-6)}, v{d+8}", f"v_rcp_f32 v{d+8}, v{d+8}"]
            L += [f"v_mul_f32 v{d+p}, v{d+p}, v{d+8}" for p in range(8)]
            L += [f"v_cvt_pk_bf16_f32 v{o+p}, v{d+2*p}, v{d+2*p+1}" for p in range(4)]
            return L
        def mo(i, c):
            b = WOF + 8*i + 4*c
            return f"v_mfma_f32_32x32x16_bf16 {acc(c)}, {v4(OF[i&1])}, {v4(b)}, {'0' if i == 0 else acc(c)}"
        self.emit(rdK(0) + rdK(1) + rdK(2))
        a(f"s_waitcnt vmcnt({vm('pq0')}) lgkmcnt(2)")
        a(m1(0))
        a(f"s_waitcnt vmcnt({vm('pq1')}) lgkmcnt(1)")
        a(m1(1))
        self.emit(valu(0))
        nxt = 10
        for i in range(16):
            V = valu(i+1) if i + 1 < 16 else []
            K_ = rdK(i+3) if i + 3 < 16 else []
            if i + 2 < 16: a(f"s_waitcnt vmcnt({vm(f'pq{i+2}')}) lgkmcnt(0)")
            a(mo(i, 0))
            self.emit(V[:2] + K_ + V[2:4])
            if i + 2 < 16: a(m1(i+2))
            self.emit(V[4:10])
            a(mo(i, 1))
            self.emit(V[10:])
            if nxt < 16:
                pqload(nxt); nxt += 1
            if i == 6:
                ld(f"buffer_load_dwordx4 {v4(XR)}, v9, {SRD_WS}, 0 offen sc1", 'x')
                ld(f"buffer_load_dwordx4 {v4(XR+4)}, v2, {SRD_WS}, 0 offen sc1", 'x')
        self.sub(4)
        for c in range(2):
            for aa in range(4):
                a(f"ds_write_b128 v16, {v4(ACC[c]+4*aa)} offset:{c*32*272 + 32*aa}")
        a("s_waitcnt lgkmcnt(0)\ns_barrier")
        Y = 32
        for i in range(2):
            for part in range(2):
                for hh in range(2):
                    a(f"ds_read_b128 {v4(Y+16*i+8*part+4*hh)}, v17 offset:{i*32*272 + part*64*272 + 16*hh}")
        a("s_waitcnt vmcnt(0)")
        self.sub(5)
        lf = a.label('FIN'); le = a.label('OE'); lx = a.label('OX')
        a(f"v_add_u32 v8, {S_XOUT}, v8\nv_add_u32 v9, 0x20000, v8")
        for i in range(2):
            a(f"s_waitcnt lgkmcnt({4*(1-i)})")
            y = Y + 16*i; x = XR + 4*i; t = 132 + 8*i
            for p in range(4): a(f"v_pk_add_f32 {pk(y+2*p)}, {pk(y+2*p)}, {pk(y+8+2*p)}")
            for p in range(4): a(f"v_cvt_pk_bf16_f32 v{y+8+p}, v{y+2*p}, v{y+2*p+1}")
            for p in range(4):
                a(f"v_lshlrev_b32 v{y+2*p}, 16, v{y+8+p}\nv_and_b32 v{y+2*p+1}, 0xffff0000, v{y+8+p}")
                a(f"v_lshlrev_b32 v{t+2*p}, 16, v{x+p}\nv_and_b32 v{t+2*p+1}, 0xffff0000, v{x+p}")
            for p in range(4): a(f"v_pk_add_f32 {pk(y+2*p)}, {pk(y+2*p)}, {pk(t+2*p)}")
            for p in range(4): a(f"v_cvt_pk_bf16_f32 v{160+4*i+p}, v{y+2*p}, v{y+2*p+1}")
            a(f"ds_write_b128 v18, {v4(160+4*i)} offset:{i*32*144}")
        a(f"""
        s_cmp_eq_u32 {S_LAYER}, 0
        s_cbranch_scc0 {lf}
        buffer_store_dwordx4 v[160:163], v8, {SRD_WS}, 0 offen sc1
        buffer_store_dwordx4 v[164:167], v9, {SRD_WS}, 0 offen sc1
        {lf}:
        v_lshrrev_b32 v10, 2, v{V_L16}
        v_lshl_add_u32 v10, v{V_H}, 3, v10
        v_mul_u32_u24 v10, 144, v10
        v_and_b32 v11, 3, v{V_L16}
        v_lshl_add_u32 v10, v11, 3, v10
        s_lshl_b32 {S_T0}, {S_W}, 5
        s_add_u32 {S_T0}, {S_T0}, {L_OT}
        v_add_u32 v10, {S_T0}, v10
        s_waitcnt lgkmcnt(0)
        s_barrier
        ds_read_b64_tr_b16 v[104:105], v10
        ds_read_b64_tr_b16 v[106:107], v10 offset:{4*144}
        ds_read_b64_tr_b16 v[108:109], v10 offset:{32*144}
        ds_read_b64_tr_b16 v[110:111], v10 offset:{36*144}
        s_cmp_eq_u32 {S_LAYER}, 0
        s_cbranch_scc0 {le}
        s_lshl_b32 {S_T0}, {S_RT}, 7
        s_lshl_b32 {S_T1}, {S_W}, 5
        s_add_u32 {S_T0}, {S_T0}, {S_T1}
        s_add_u32 {S_T0}, {S_T0}, {ST3}
        v_bfe_u32 v11, v{V_L16}, 1, 2
        v_lshlrev_b32 v11, 12, v11
        v_lshrrev_b32 v12, 3, v{V_L16}
        v_lshl_add_u32 v11, v12, 4, v11
        v_and_b32 v12, 1, v{V_L16}
        v_lshl_add_u32 v11, v12, 3, v11
        v_lshl_add_u32 v11, v{V_H}, 2, v11
        v_add_u32 v11, {S_T0}, v11
        v_mov_b32 v112, 0
        v_mov_b32 v113, 0
        v_mov_b32 v114, 0
        v_mov_b32 v115, 0
        s_waitcnt lgkmcnt(0)
        """)
        for j in range(4):
            a(f"v_dot2_f32_bf16 v112, v{104+j}, {S_ONES}, v112")
            a(f"v_dot2_f32_bf16 v113, v{104+j}, v{104+j}, v113")
            a(f"v_dot2_f32_bf16 v114, v{108+j}, {S_ONES}, v114")
            a(f"v_dot2_f32_bf16 v115, v{108+j}, v{108+j}, v115")
        a("v_pk_add_f32 v[112:113], v[112:113], v[114:115]")
        self.emit(zipmerge(self.reduce_h(112, 116), self.reduce_h(113, 117)))
        a(f"""
        v_cmp_eq_u32 vcc, 0, v{V_H}
        v_cndmask_b32 v112, v113, v112, vcc
        s_mov_b64 exec, 0xffffffff
        buffer_atomic_add_f32 v112, v11, {SRD_WS}, 0 offen
        s_mov_b64 exec, -1
        s_branch {lx}
        {le}:
        s_lshl_b32 {S_T0}, {S_RT}, 16
        s_lshl_b32 {S_T1}, {S_W}, 14
        s_add_u32 {S_T0}, {S_T0}, {S_T1}
        s_lshl_b32 {S_T1}, {S_CG}, 7
        s_add_u32 {S_T0}, {S_T0}, {S_T1}
        v_lshlrev_b32 v11, 10, v{V_L16}
        v_lshl_add_u32 v11, v{V_H}, 4, v11
        v_add_u32 v11, {S_T0}, v11
        s_waitcnt lgkmcnt(0)
        buffer_store_dwordx4 v[104:107], v11, {SRD_OUT}, 0 offen {OUTF}
        buffer_store_dwordx4 v[108:111], v11, {SRD_OUT}, 0 offen offset:64 {OUTF}
        {lx}:
        """)
        self.sub(6)
        self.subflush(2, 7)

    def build(self):
        a = self.a
        self.prologue()
        if self.ts: a(f"v_mov_b32 v{V_TS}, 0\nv_mov_b32 v{V_TS2}, 0")
        self.stamp()
        self.p0()
        stop = self.stop
        if stop == 'p0':
            self.wait(); a("s_branch L_END")
        a("L_LAYER:")
        for reg, (x0, x1) in ((S_XIN, (XT[0], XT[2])), (S_XOUT, (XT[1], XT[3])), (S_ST, (ST1, ST3)), (S_PQ, PQ), (S_KV, KVM), (S_Z, ZZ)):
            a(f"s_mul_i32 {reg}, {S_LAYER}, {(x1 - x0) & 0xffffffff:#x}")
            a(f"s_add_u32 {reg}, {reg}, {x0:#x}")
        self.conv_pre()
        self.wait(l0skip=True, sleep0=16, adr=int(os.environ.get('AR_C','1')), adr0=0, adb=int(os.environ.get('AB_C','1'))); self.stamp()
        self.conv(); self.stamp()
        self.arrive(); self.stamp()
        if stop == 'conv1':
            self.wait(); a("s_branch L_END")
        a(f"s_mov_b32 {S_XIN}, {S_XOUT}")
        self.wstage_kv()
        self.qkv_pre()
        self.wait(l0skip=True, sleep0=12, adr=int(os.environ.get('AR_Q','1')), adr0=int(os.environ.get('AR_Q0','3')), adb=int(os.environ.get('AB_Q','1'))); self.stamp()
        self.qkv(); self.stamp()
        self.arrive(); self.stamp()
        if stop == 'qkv1':
            self.wait(); a("s_branch L_END")
            if os.environ.get('DBGW'):
                a(f"""
                s_lshl_b32 {S_T0}, {S_ID}, 11
                s_add_u32 {S_T0}, {S_T0}, 0x40000
                v_lshlrev_b32 v1, 3, v0
                v_add_u32 v1, {S_T0}, v1
                v_mov_b32 v2, v{V_WSK}
                v_mov_b32 v3, v{V_WSV}
                buffer_store_dwordx2 v[2:3], v1, {SRD_WS}, 0 offen
                """)
            self.wait(); a("s_branch L_END")
        a(f"s_mov_b32 {S_XOUT}, {XT[2]}")
        self.outp_pre()
        self.wait(sleep0=22, adr=int(os.environ.get('AR_O','2')), adr0=int(os.environ.get('AR_O0','3')), adb=int(os.environ.get('AB_O','2'))); self.stamp()
        self.outp(); self.stamp()
        a(f"s_cmp_eq_u32 {S_LAYER}, 1\ns_cbranch_scc1 L_END")
        self.arrive(); self.stamp()
        if stop == 'out1':
            self.wait(); a("s_branch L_END")
        a(f"s_mov_b32 {S_LAYER}, 1\ns_branch L_LAYER\nL_END:")
        self.tsdump()
        a("L_EXIT:\ns_endpgm")
        body = a.finalize()
        hdr = open(os.path.join(os.path.dirname(os.path.abspath(__file__)), 'header.txt')).read()
        hdr = hdr.replace('@@LAUNCH@@', f'; @launch grid=(256,1,1) block=(256,1,1) lds={LDS_SIZE}')
        txt = hdr + f""".amdgcn_target "amdgcn-amd-amdhsa--gfx950"
.text
.globl {NAME}_kernel
.p2align 8
.type {NAME}_kernel,@function
{NAME}_kernel:
""" + body + f""".section .rodata,"a"
.p2align 6
.amdhsa_kernel {NAME}_kernel
  .amdhsa_next_free_vgpr 512
  .amdhsa_next_free_sgpr 102
  .amdhsa_accum_offset 256
  .amdhsa_group_segment_fixed_size 0
  .amdhsa_kernarg_size 104
  .amdhsa_user_sgpr_count 2
  .amdhsa_user_sgpr_kernarg_segment_ptr 1
  .amdhsa_system_sgpr_workgroup_id_x 1
.end_amdhsa_kernel
"""
        return txt

if __name__ == '__main__':
    import argparse
    ap = argparse.ArgumentParser()
    ap.add_argument('--stop', default=None)
    ap.add_argument('--ts', action='store_true')
    ap.add_argument('-o', default='k.s')
    args = ap.parse_args()
    g = Gen(stop=args.stop, ts=args.ts)
    t = g.build()
    open(args.o, 'w').write(t)
    print('instructions', g.a.count(), 'nops inserted', g.a.nnop, 'bytes', len(t))
```

```python
import sys, os, math
sys.path.insert(0, os.path.dirname(os.path.abspath(__file__)))
from asmgen import Asm

NAME = 'interleave_layers__ssm_conv_s4d__linear_attn_block__prompt'

CNT  = 0x0
ZR   = 0x30000
KVM  = [ZR, ZR + 32768]
ZZ   = [ZR + 65536, ZR + 98304]
ST3  = ZR + 131072
ZRSZ = 147456
ST1  = 0x1C000
GCNT = 0x20000
TS   = 0x80000
XT   = [0x100000, 0x300000, 0x500000, 0x700000]
PQ   = [0x900000, 0xB00000]
WQF  = 0xD00000
WOFG = 0xE80000
WS_SIZE = 0xF00000

L_WO = 0
L_KC = 65536
L_XL = 82432
L_MISC = L_XL + 65536
LDS_SIZE = 163840
L_U  = L_XL
L_Y  = L_XL + 18560
L_TA = L_XL
L_TB = L_XL + 9216
L_TW = L_XL + 46080
L_CT = L_XL + 18432
L_KD = L_XL + 28672
L_KVF = L_XL
L_O32 = L_XL + 17408
L_OT  = L_XL + 52224
L_S2R = L_MISC
L_S2M = L_MISC + 256
L_STG = L_MISC + 512

STPERM = True
QSPLIT = int(os.environ.get('QSPLIT', '4'))
BMODE = os.environ.get('BMODE', 'adapt')
ADR = int(os.environ.get('ADR', '1'))
ADB = int(os.environ.get('ADB', '2'))
FLG = 0x24000
OUTF = os.environ.get('OUTF', '')
CODE_CHUNKS = int(os.environ.get('CODE_CHUNKS', '5'))
SLEEP = int(os.environ.get('SLEEP', '1' if os.environ.get('BMODE','adapt') == 'flag16' else '3'))
SLEEP0 = int(os.environ.get('SLEEP0', '14'))
SLEEPG = int(os.environ.get('SLEEPG', '6'))
LOG2E = 1.4426950408889634
def f2u(x):
    import struct
    return struct.unpack('<I', struct.pack('<f', x))[0]
def fx(x): return '0x%08x' % f2u(x)
def pk(r): return f"v[{r}:{r+1}]"
def v4(r): return f"v[{r}:{r+3}]"

S_ID='s2'; S_W='s3'; S_RT='s4'; S_CG='s5'; S_LAYER='s6'; S_TGT='s7'
SRD_WS='s[44:47]'; SRD_WQ='s[48:51]'; SRD_WO='s[52:55]'; SRD_OUT='s[56:59]'; SRD_X0='s[60:63]'
S_ONES='s64'
S_EXS='s[70:71]'
S_XIN='s72'; S_XOUT='s73'; S_ST='s74'; S_PQ='s75'; S_KV='s76'; S_Z='s77'
S_SPIN='s78'
S_T0='s8'; S_T1='s9'; S_T2='s10'; S_T3='s11'; S_T4='s12'; S_T5='s13'
S_DM='s14'; S_DS='s15'

V_LANE=255; V_WSK=254; V_WSV=252; V_WSQ=248
V_DSK1=246; V_DSK0=244
V_CNT=239; V_POLL=238; V_ONE=237
V_L16=243; V_H=242
V_TS=241; V_TS2=240
V_GCNT=235; V_POLL2=234; V_TGT=233
V_RANK=232
V_PT=236

WOF = 104
def weave(main, fill, per=2, lead=0):
    out = []; fi = 0
    for k, m in enumerate(main):
        out.append(m)
        if k >= lead:
            for _ in range(per):
                if fi < len(fill): out.append(fill[fi]); fi += 1
    out += fill[fi:]
    return out
def zipmerge(*lists):
    out = []
    n = max(len(l) for l in lists)
    for i in range(n):
        for l in lists:
            if i < len(l): out.append(l[i])
    return out
import re as _re
def unpk(ins):
    m = _re.match(r'v_pk_(mul|add|fma)_f32 v\[(\d+):\d+\], (.*)', ins)
    if not m: return [ins]
    op, d, rest = m.group(1), int(m.group(2)), m.group(3)
    srcs = [int(x) for x in _re.findall(r'v\[(\d+):\d+\]', rest)]
    n = len(srcs)
    hi = [1]*n
    mm = _re.search(r'op_sel_hi:\[([\d,]+)\]', rest)
    if mm: hi = [int(x) for x in mm.group(1).split(',')]
    assert 'op_sel:[' not in rest
    neg = [0]*n
    mm = _re.search(r'neg_lo:\[([\d,]+)\]', rest)
    if mm: neg = [int(x) for x in mm.group(1).split(',')]
    out = []
    for h in range(2):
        ops = []
        for i in range(n):
            r = srcs[i] + (h if hi[i] else 0)
            ops.append(('-' if neg[i] else '') + f'v{r}')
        out.append(f"v_{op}_f32 v{d+h}, " + ', '.join(ops))
    return out
def unpk_all(L):
    o = []
    for x in L: o += unpk(x)
    return o
def lines(s): return [t.strip() for t in s.split('\n') if t.strip()]

class Gen:
    def __init__(self, stop=None, ts=False):
        self.a = Asm(); self.stop = stop; self.ts = ts; self.tsn = 0
    def emit(self, lst):
        for x in lst: self.a(x)

    def stamp(self):
        if not self.ts: return
        n = self.tsn; self.tsn += 1
        self.a(f"""
        s_memrealtime s[80:81]
        s_lshl_b32 s82, {S_LAYER}, 5
        s_add_u32 m0, s82, {n}
        s_waitcnt lgkmcnt(0)
        v_writelane_b32 v{V_TS}, s80, m0
        """)
    def sub(self, i):
        if self.ts: self.a(f"s_memtime s[{86+2*i}:{87+2*i}]")
    def subflush(self, phase, n):
        if not self.ts: return
        a = self.a
        a(f"s_waitcnt lgkmcnt(0)\ns_lshl_b32 s82, {S_LAYER}, 5\ns_add_u32 m0, s82, {phase*8}")
        for i in range(n):
            a(f"v_writelane_b32 v{V_TS2}, s{86+2*i}, m0\ns_add_u32 m0, m0, 1\ns_nop 3")
    def tsdump(self):
        if not self.ts: return
        a = self.a; l = a.label('TD')
        if os.environ.get('DBGTS'):
            sel = [1,2,3,4,5,7,8,10,11,12, 32+4,32+5,32+7,32+8,32+10]
            a(f"""
            s_cmp_eq_u32 {S_ID}, 0
            s_cbranch_scc0 {l}
            s_cmp_eq_u32 {S_W}, 0
            s_cbranch_scc0 {l}
            v_readlane_b32 s80, v{V_TS}, 0
            """)
            for i, k in enumerate(sel):
                lane = k
                a(f"v_readlane_b32 s81, v{V_TS}, {lane}\ns_nop 3\ns_sub_u32 s81, s81, s80\nv_mov_b32 v1, s81\nv_mov_b32 v2, {4*(i+1)}\ns_mov_b64 exec, 1\nglobal_store_dword v2, v1, s[38:39]\ns_mov_b64 exec, -1")
            a(f"{l}:")
            return
        a(f"""
        s_cmp_eq_u32 {S_W}, 0
        s_cbranch_scc0 {l}
        s_lshl_b32 s82, {S_ID}, 9
        s_add_u32 s82, s82, {TS}
        v_lshlrev_b32 v1, 2, v{V_LANE}
        v_add_u32 v1, s82, v1
        buffer_store_dword v{V_TS}, v1, {SRD_WS}, 0 offen
        buffer_store_dword v{V_TS2}, v1, {SRD_WS}, 0 offen offset:256
        {l}:
        """)

    def arrive_core(self, finish=True):
        a = self.a
        if BMODE == 'flat':
            a(f"buffer_atomic_add v{V_ONE}, v{V_CNT}, {SRD_WS}, 0 offen sc1")
            return
        a(f"""
        v_mov_b32 v{V_RANK}, 1
        buffer_atomic_add v{V_RANK}, v{V_CNT}, {SRD_WS}, 0 offen sc0 sc1
        """)
        if finish: self.arrive_finish()
    def arrive_finish(self):
        a = self.a
        if BMODE == 'flag16':
            l = a.label('NL')
            a(f"""
            s_sub_u32 {S_T0}, {S_TGT}, 1
            s_waitcnt vmcnt(0)
            v_cmp_eq_u32 vcc, {S_T0}, v{V_RANK}
            s_cbranch_vccz {l}
            v_mov_b32 v{V_RANK}, {S_TGT}
            v_add_u32 v{V_PT}, {FLG - CNT}, v{V_CNT}
            buffer_store_dword v{V_RANK}, v{V_PT}, {SRD_WS}, 0 offen sc1
            {l}:
            """)
    def arrive(self):
        a = self.a; l = a.label('ARR')
        a(f"""
        s_waitcnt vmcnt(0) lgkmcnt(0)
        s_barrier
        s_add_u32 {S_TGT}, {S_TGT}, 16
        s_cmp_eq_u32 {S_W}, 0
        s_cbranch_scc0 {l}
        s_mov_b64 exec, 1
        """)
        self.arrive_core()
        a(f"""
        s_mov_b64 exec, -1
        {l}:
        """)
    def arrive_group(self):
        a = self.a; l = a.label('ARG')
        a(f"""
        s_waitcnt vmcnt(0) lgkmcnt(0)
        s_barrier
        s_cmp_eq_u32 {S_W}, 0
        s_cbranch_scc0 {l}
        s_mov_b64 exec, 1
        buffer_atomic_add v{V_ONE}, v{V_GCNT}, {SRD_WS}, 0 offen sc1
        s_mov_b64 exec, -1
        {l}:
        """)
    def wait_dual(self):
        a = self.a
        l = a.label('WT'); lp = a.label('POLL'); ld = a.label('PD')
        a(f"""
        s_cmp_eq_u32 {S_W}, 0
        s_cbranch_scc0 {l}
        s_add_u32 {S_T0}, {S_LAYER}, 1
        s_lshl_b32 {S_T0}, {S_T0}, 3
        v_mov_b32 v{V_TGT}, {S_TGT}
        v_mov_b32 v{V_PT}, {S_T0}
        v_cmp_eq_u32 vcc, 16, v{V_LANE}
        v_cndmask_b32 v{V_TGT}, v{V_TGT}, v{V_PT}, vcc
        s_mov_b64 exec, 0x1ffff
        s_mov_b32 {S_SPIN}, 0
        {('s_sleep ' + str(SLEEPG)) if SLEEPG else ''}
        {lp}:
        buffer_load_dword v{V_PT}, v{V_POLL2}, {SRD_WS}, 0 offen sc1
        s_add_u32 {S_SPIN}, {S_SPIN}, 1
        s_waitcnt vmcnt(0)
        v_cmp_gt_u32 vcc, v{V_TGT}, v{V_PT}
        s_cbranch_vccz {ld}
        {('s_sleep ' + str(SLEEP)) if SLEEP else ''}
        s_cmp_lt_u32 {S_SPIN}, 0x200000
        s_cbranch_scc1 {lp}
        {ld}:
        s_mov_b64 exec, -1
        {l}:
        s_barrier
        """)
    def wait(self, l0skip=False, sleep0=None, adr=None, adb=None, adr0=None):
        a = self.a
        l = a.label('WT'); lp = a.label('POLL'); ld = a.label('PD'); ls = a.label('NS')
        SLEEP0 = sleep0 if sleep0 is not None else globals()['SLEEP0']
        if BMODE == 'flat':
            pre = ((f's_cmp_eq_u32 {S_LAYER}, 0' + chr(10) + f's_cbranch_scc1 {lp}' + chr(10)) if l0skip else '') + (f's_sleep {SLEEP0}' if SLEEP0 else '')
        elif BMODE == 'flag16':
            pre = ''
        else:
            la = a.label('AD'); lb = a.label('AD')
            ADR = adr if adr is not None else globals()['ADR']; ADB = adb if adb is not None else globals()['ADB']
            adr0 = adr0 if adr0 is not None else ADR
            pre = f'''s_cmp_eq_u32 {S_LAYER}, 0
            s_cselect_b32 {S_T1}, {adr0}, {ADR}
            s_waitcnt vmcnt(0)
            v_readfirstlane_b32 {S_T0}, v{V_RANK}
            s_and_b32 {S_T0}, {S_T0}, 15
            s_sub_u32 {S_T0}, 15, {S_T0}
            s_mul_i32 {S_T0}, {S_T0}, {S_T1}
            s_add_u32 {S_T0}, {S_T0}, {ADB}
            {la}:
            s_sleep 1
            s_sub_u32 {S_T0}, {S_T0}, 1
            s_cmp_gt_i32 {S_T0}, 0
            s_cbranch_scc1 {la}'''
        a(f"""
        s_cmp_eq_u32 {S_W}, 0
        s_cbranch_scc0 {l}
        s_mov_b64 exec, 0xffff
        s_mov_b32 {S_SPIN}, 0
        {pre}
        {lp}:
        buffer_load_dword v{V_PT}, v{V_POLL}, {SRD_WS}, 0 offen {('offset:0' if BMODE != 'flag16' else '')} sc1
        s_add_u32 {S_SPIN}, {S_SPIN}, 1
        s_waitcnt vmcnt(0)
        v_cmp_gt_u32 vcc, {S_TGT}, v{V_PT}
        s_cbranch_vccz {ld}
        {('s_sleep ' + str(SLEEP)) if SLEEP else ''}
        s_cmp_lt_u32 {S_SPIN}, 0x200000
        s_cbranch_scc1 {lp}
        {ld}:
        s_mov_b64 exec, -1
        {l}:
        s_barrier
        """)

    def reduce_h(self, r, t):
        return lines(f"""
        v_mov_b32 v{t}, v{r}
        v_permlane16_swap_b32 v{r}, v{t}
        v_add_f32 v{r}, v{r}, v{t}
        v_mov_b32 v{t}, v{r}
        v_permlane32_swap_b32 v{r}, v{t}
        v_add_f32 v{r}, v{r}, v{t}
        """)
    def reduce16(self, r):
        return lines(f"""
        v_add_f32_dpp v{r}, v{r}, v{r} quad_perm:[1,0,3,2] row_mask:0xf bank_mask:0xf
        v_add_f32_dpp v{r}, v{r}, v{r} quad_perm:[2,3,0,1] row_mask:0xf bank_mask:0xf
        v_add_f32_dpp v{r}, v{r}, v{r} row_half_mirror row_mask:0xf bank_mask:0xf
        v_add_f32_dpp v{r}, v{r}, v{r} row_mirror row_mask:0xf bank_mask:0xf
        """)
    def ln_final1(self, sm, sq, r_out, mr_out, t):
        return lines(f"""
        v_mul_f32 v{t}, {fx(1/512)}, v{sm}
        v_mul_f32 v{t+1}, {fx(1/512)}, v{sq}
        v_fma_f32 v{t+1}, -v{t}, v{t}, v{t+1}
        v_cvt_pk_bf16_f32 v{t+2}, v{t}, v{t+1}
        v_lshlrev_b32 v{t}, 16, v{t+2}
        v_and_b32 v{t+1}, 0xffff0000, v{t+2}
        v_add_f32 v{t+1}, {fx(1e-5)}, v{t+1}
        v_cvt_pk_bf16_f32 v{t+1}, v{t+1}, v{t+1}
        v_and_b32 v{t+1}, 0xffff0000, v{t+1}
        v_sqrt_f32 v{t+1}, v{t+1}
        v_cvt_pk_bf16_f32 v{t+1}, v{t+1}, v{t+1}
        v_and_b32 v{t+1}, 0xffff0000, v{t+1}
        v_rcp_f32 v{r_out}, v{t+1}
        v_mul_f32 v{mr_out}, v{t}, v{r_out}
        """)

    def prologue(self):
        a = self.a
        a(f"""
        s_cmp_ge_u32 {S_ID}, 256
        s_cbranch_scc1 L_EXIT
        s_load_dwordx16 s[16:31], s[0:1], 0
        s_load_dwordx8 s[32:39], s[0:1], 64
        s_load_dwordx2 s[40:41], s[0:1], 96
        v_and_b32 v{V_LANE}, 63, v0
        v_lshrrev_b32 v1, 6, v0
        v_and_b32 v{V_L16}, 15, v0
        v_bfe_u32 v{V_H}, v0, 4, 2
        v_readfirstlane_b32 {S_W}, v1
        s_and_b32 {S_T0}, {S_ID}, 7
        s_lshl_b32 {S_T0}, {S_T0}, 2
        s_lshr_b32 {S_T1}, {S_ID}, 6
        s_add_u32 {S_RT}, {S_T0}, {S_T1}
        s_lshr_b32 {S_CG}, {S_ID}, 3
        s_and_b32 {S_CG}, {S_CG}, 7
        s_mov_b32 {S_LAYER}, 0
        s_mov_b32 {S_TGT}, 0
        s_mov_b32 {S_ONES}, 0x3f803f80
        v_mov_b32 v{V_ONE}, 1
        s_and_b32 {S_T0}, {S_ID}, 15
        s_lshl_b32 {S_T0}, {S_T0}, 10
        v_mov_b32 v{V_CNT}, {S_T0}
        v_lshlrev_b32 v{V_POLL}, 10, v{V_LANE}
        v_add_u32 v{V_POLL}, {FLG if BMODE == 'flag16' else CNT}, v{V_POLL}
        s_waitcnt lgkmcnt(0)
        s_mov_b32 s60, s16
        s_and_b32 s61, s17, 0xffff
        s_mov_b32 s62, {2048*512*2}
        s_mov_b32 s63, 0x20000
        """)
    def prologue2(self):
        a = self.a
        a(f"""
        s_mov_b32 s44, s40
        s_and_b32 s45, s41, 0xffff
        s_mov_b32 s46, {WS_SIZE}
        s_mov_b32 s47, 0x20000
        s_mov_b32 s48, s32
        s_and_b32 s49, s33, 0xffff
        s_mov_b32 s50, {512*1536*2}
        s_mov_b32 s51, 0x20000
        s_mov_b32 s52, s34
        s_and_b32 s53, s35, 0xffff
        s_mov_b32 s54, {512*512*2}
        s_mov_b32 s55, 0x20000
        s_mov_b32 s56, s36
        s_and_b32 s57, s37, 0xffff
        s_mov_b32 s58, {2048*512*2}
        s_mov_b32 s59, 0x20000
        s_lshl_b32 {S_T0}, {S_RT}, 10
        s_add_u32 {S_T0}, {S_T0}, {GCNT}
        v_mov_b32 v{V_GCNT}, {S_T0}
        v_cmp_eq_u32 vcc, 16, v{V_LANE}
        v_cndmask_b32 v{V_POLL2}, v{V_POLL}, v{V_GCNT}, vcc
        """)

    def dma_weight(self, srd, rowpitch, colbyte, lds_base, swz, t, defer=False):
        a = self.a
        a(f"""
        v_lshrrev_b32 v{t}, 3, v{V_LANE}
        v_mul_u32_u24 v{t}, {rowpitch}, v{t}
        v_bfe_u32 v{t+1}, v{V_LANE}, 1, 2
        v_bfe_u32 v{t+2}, v{V_LANE}, 4, 1
        """)
        if swz == 'x':
            a(f"s_and_b32 {S_T0}, {S_W}, 1\ns_lshl_b32 {S_T0}, {S_T0}, 1\nv_or_b32 v{t+2}, {S_T0}, v{t+2}")
        else:
            a(f"v_lshlrev_b32 v{t+2}, 1, v{t+2}")
        a(f"""
        v_xor_b32 v{t+1}, v{t+1}, v{t+2}
        v_lshl_add_u32 v{t}, v{t+1}, 5, v{t}
        v_and_b32 v{t+1}, 1, v{V_LANE}
        v_lshl_add_u32 v{t}, v{t+1}, 4, v{t}
        s_lshl_b32 {S_T0}, {S_CG}, 7
        s_add_u32 {S_T0}, {S_T0}, {colbyte}
        v_add_u32 v{t}, {S_T0}, v{t}
        s_mul_i32 {S_DS}, {S_W}, {8*rowpitch}
        s_lshl_b32 {S_DM}, {S_W}, 10
        s_add_u32 {S_DM}, {S_DM}, {lds_base}
        """)
        groups = [lines(f"""
            s_mov_b32 m0, {S_DM}
            s_add_u32 {S_DM}, {S_DM}, 4096
            buffer_load_dwordx4 v{t}, {srd}, {S_DS} offen lds
            s_add_u32 {S_DS}, {S_DS}, {32*rowpitch}
            """) for i in range(16)]
        if defer: return groups
        for g in groups: self.emit(g)

    def wread_lists(self, lds_base, abase, part, t, o):
        rd = lines(f"""
        v_lshrrev_b32 v{t}, 2, v{V_L16}
        v_lshl_add_u32 v{t+1}, v{V_H}, 3, v{t}
        v_lshlrev_b32 v{t+1}, 7, v{t+1}
        v_and_b32 v{t+2}, 3, v{V_L16}
        v_lshl_add_u32 v{t+1}, v{t+2}, 3, v{t+1}
        v_add_u32 v{t+1}, {lds_base}, v{t+1}
        v_lshrrev_b32 v{t}, 1, v{t}
        v_and_b32 v{t+2}, 1, v{V_H}
        v_lshl_or_b32 v{t}, v{t+2}, 1, v{t}
        v_xor_b32 v{t}, {S_W}, v{t}
        v_lshl_add_u32 v{t+3}, v{t}, 5, v{t+1}
        """)
        for i in range(4): rd.append(f"v_mov_b32 v{o+i}, {S_ONES}")
        for ks in range(16):
            rd.append(f"ds_read_b64_tr_b16 a[{abase+4*ks}:{abase+4*ks+1}], v{t+3} offset:{ks*4096}")
            rd.append(f"ds_read_b64_tr_b16 a[{abase+4*ks+2}:{abase+4*ks+3}], v{t+3} offset:{ks*4096+512}")
        mf = []
        for ks in range(16):
            c = '0' if ks == 0 else v4(o+4)
            w = f"a[{abase+4*ks}:{abase+4*ks+3}]"
            if part == 0: mf.append(f"v_mfma_f32_16x16x32_bf16 {v4(o+4)}, {w}, {v4(o)}, {c}")
            else: mf.append(f"v_mfma_f32_16x16x32_bf16 {v4(o+4)}, {v4(o)}, {w}, {c}")
        if part == 0: mf += [f"v_mov_b32 v{V_WSQ+i}, v{o+4+i}" for i in range(4)]
        elif part == 1: mf.append(f"v_mov_b32 v{V_WSK}, v{o+4}")
        else: mf.append(f"v_mov_b32 v{V_WSV}, v{o+4}")
        return rd, mf

    def p0(self):
        a = self.a
        a(f"""
        v_lshrrev_b32 v1, 3, v0
        s_lshl_b32 {S_T0}, {S_RT}, 16
        s_lshl_b32 {S_T1}, {S_CG}, 7
        s_add_u32 {S_T0}, {S_T0}, {S_T1}
        v_lshlrev_b32 v2, 10, v1
        v_and_b32 v3, 7, v0
        v_lshl_add_u32 v2, v3, 4, v2
        v_add_u32 v2, {S_T0}, v2
        buffer_load_dwordx4 v[10:13], v2, {SRD_X0}, 0 offen
        v_add_u32 v4, 0x8000, v2
        buffer_load_dwordx4 v[14:17], v4, {SRD_X0}, 0 offen
        s_and_b32 {S_T0}, {S_ID}, 63
        s_lshl_b32 {S_T0}, {S_T0}, 2
        s_add_u32 {S_T0}, {S_T0}, {S_W}
        s_lshl_b32 {S_T0}, {S_T0}, 3
        s_lshr_b32 {S_T1}, {S_ID}, 6
        s_lshl_b32 {S_T1}, {S_T1}, 1
        s_add_u32 {S_T0}, {S_T0}, {S_T1}
        s_lshl_b32 {S_T0}, {S_T0}, 10
        v_lshlrev_b32 v5, 4, v{V_LANE}
        v_add_u32 v5, {S_T0}, v5
        buffer_load_dwordx4 v[18:21], v5, {SRD_X0}, 0 offen
        buffer_load_dwordx4 v[22:25], v5, {SRD_X0}, 0 offen offset:1024
        s_lshl_b32 {S_T0}, {S_ID}, 9
        v_lshlrev_b32 v6, 1, v0
        v_add_u32 v6, {S_T0}, v6
        global_load_ushort v26, v6, s[18:19]
        global_load_ushort v27, v6, s[20:21]
        global_load_ushort v28, v6, s[22:23]
        global_load_ushort v29, v6, s[24:25]
        v_lshrrev_b32 v7, 7, v0
        s_lshl_b32 {S_T0}, {S_ID}, 1
        v_add_lshl_u32 v7, v7, {S_T0}, 1
        global_load_ushort v30, v7, s[26:27]
        s_lshl_b32 {S_T0}, {S_ID}, 2
        v_mov_b32 v7, {S_T0}
        global_load_dword v{V_DSK0}, v7, s[28:29]
        """)
        self.prologue2()
        lp = a.label('PFC')
        a(f"""
        s_getpc_b64 s[66:67]
        s_and_b32 s66, s66, 0xffffff00
        s_lshr_b32 {S_T0}, {S_ID}, 3
        s_cmp_lt_u32 {S_T0}, {CODE_CHUNKS}
        s_cbranch_scc0 {lp}
        s_cmp_eq_u32 {S_W}, 3
        s_cbranch_scc0 {lp}
        s_lshl_b32 {S_T0}, {S_T0}, 13
        v_lshlrev_b32 v8, 7, v{V_LANE}
        v_add_u32 v8, {S_T0}, v8
        global_load_dword v198, v8, s[66:67]
        {lp}:
        v_and_b32 v8, 15, v{V_LANE}
        v_lshlrev_b32 v8, 20, v8
        buffer_load_dword v197, v8, {SRD_WS}, 0 offen
        """)
        lw = a.label('WT'); lw2 = a.label('WT')
        a(f"""
        s_and_b32 {S_T2}, {S_ID}, 7
        s_cmp_lt_u32 {S_ID}, 192
        s_cbranch_scc0 {lw}
        s_lshr_b32 {S_T3}, {S_ID}, 3
        s_mul_i32 {S_T0}, {S_T2}, {64*3072}
        s_lshl_b32 {S_T1}, {S_T3}, 7
        s_add_u32 {S_T0}, {S_T0}, {S_T1}
        v_mul_u32_u24 v8, 3072, v1
        v_lshl_add_u32 v8, v3, 4, v8
        v_add_u32 v8, {S_T0}, v8
        buffer_load_dwordx4 v[200:203], v8, {SRD_WQ}, 0 offen
        v_add_u32 v8, {32*3072}, v8
        buffer_load_dwordx4 v[204:207], v8, {SRD_WQ}, 0 offen
        s_branch {lw2}
        {lw}:
        s_sub_u32 {S_T3}, {S_ID}, 192
        s_lshr_b32 {S_T3}, {S_T3}, 3
        s_lshl_b32 {S_T0}, {S_T2}, 16
        s_lshl_b32 {S_T1}, {S_T3}, 7
        s_add_u32 {S_T0}, {S_T0}, {S_T1}
        v_lshlrev_b32 v8, 10, v1
        v_lshl_add_u32 v8, v3, 4, v8
        v_add_u32 v8, {S_T0}, v8
        buffer_load_dwordx4 v[200:203], v8, {SRD_WO}, 0 offen
        v_add_u32 v8, 0x8000, v8
        buffer_load_dwordx4 v[204:207], v8, {SRD_WO}, 0 offen
        {lw2}:
        """)
        l = a.label('CI')
        a(f"""
        s_cmp_lt_u32 {S_ID}, 16
        s_cbranch_scc0 {l}
        s_cmp_eq_u32 {S_W}, 0
        s_cbranch_scc0 {l}
        s_mov_b64 exec, 1
        v_mov_b32 v8, 0
        buffer_store_dword v8, v{V_CNT}, {SRD_WS}, 0 offen sc1
        v_add_u32 v9, {FLG - CNT}, v{V_CNT}
        buffer_store_dword v8, v9, {SRD_WS}, 0 offen sc1
        s_mov_b64 exec, -1
        {l}:
        """)
        IDX = 180
        a(f"v_lshlrev_b32 v31, 3, v0\nv_sub_u32 v31, 2047, v31\ns_mov_b32 {S_T5}, {L_KD}")
        chains = []
        for i in range(0, 10, 2):
            t = 32 + 4*(i//2)
            c = lines(f"""
            v_subrev_u32 v{t}, {i}, v31
            v_subrev_u32 v{t+1}, {i+1}, v31
            v_max_i32 v{t}, 0, v{t}
            v_max_i32 v{t+1}, 0, v{t+1}
            v_cvt_f32_i32 v{t}, v{t}
            v_cvt_f32_i32 v{t+1}, v{t+1}
            v_cvt_pk_bf16_f32 v{t+2}, v{t}, v{t+1}
            v_lshlrev_b32 v{t}, 16, v{t+2}
            v_and_b32 v{t+1}, 0xffff0000, v{t+2}
            v_cvt_u32_f32 v{t}, v{t}
            v_cvt_u32_f32 v{t+1}, v{t+1}
            v_lshrrev_b32 v{t+2}, 2, v{t}
            v_lshrrev_b32 v{t+3}, 2, v{t+1}
            v_add_u32 v{t+2}, 384, v{t+2}
            v_add_u32 v{t+3}, 384, v{t+3}
            v_min_u32 v{t}, v{t}, v{t+2}
            v_min_u32 v{t+1}, v{t+1}, v{t+3}
            v_lshrrev_b32 v{t+2}, 5, v{t}
            v_lshrrev_b32 v{t+3}, 5, v{t+1}
            v_add_u32 v{t}, v{t}, v{t+2}
            v_add_u32 v{t+1}, v{t+1}, v{t+3}
            v_lshl_add_u32 v{IDX+i}, v{t}, 2, {S_T5}
            """)
            if i + 1 < 9: c.append(f"v_lshl_add_u32 v{IDX+i+1}, v{t+1}, 2, {S_T5}")
            chains.append(c)
        self.emit(zipmerge(*chains))
        a(f"""
        v_mul_u32_u24 v8, 144, v1
        v_lshl_add_u32 v8, v3, 4, v8
        v_add_u32 v9, {L_TW}, v8
        v_add_u32 v8, {L_TA}, v8
        s_waitcnt vmcnt(11)
        ds_write_b128 v8, v[10:13]
        ds_write_b128 v8, v[14:17] offset:{32*144}
        s_waitcnt vmcnt(9)
        """)
        for r in range(32, 36): a(f"v_mov_b32 v{r}, 0")
        for j in range(4):
            for row in range(2):
                b = 18 + 4*row; sm = 32 + 2*row
                a(f"v_dot2_f32_bf16 v{sm}, v{b+j}, {S_ONES}, v{sm}\nv_dot2_f32_bf16 v{sm+1}, v{b+j}, v{b+j}, v{sm+1}")
        self.emit(zipmerge(*[self.reduce16(r) for r in range(32, 36)]))
        self.emit(zipmerge(*[self.reduce_h(r, 36 + (r-32)) for r in range(32, 36)]))
        a(f"""
        s_lshl_b32 {S_T0}, {S_W}, 4
        s_add_u32 {S_T0}, {S_T0}, {L_STG}
        v_mov_b32 v36, {S_T0}
        ds_write_b128 v36, v[32:35]
        s_waitcnt vmcnt(0)
        ds_write_b128 v9, v[200:203]
        ds_write_b128 v9, v[204:207] offset:{32*144}
        s_cmp_lt_u32 {S_ID}, 16
        s_cbranch_scc0 L_CI2
        s_cmp_eq_u32 {S_W}, 0
        s_cbranch_scc0 L_CI2
        s_mov_b64 exec, 1
        v_mov_b32 v37, 0
        global_atomic_add v37, v{V_ONE}, s[38:39] sc1
        s_mov_b64 exec, -1
        L_CI2:
        v_lshrrev_b32 v9, 2, v{V_L16}
        v_lshl_add_u32 v9, v{V_H}, 3, v9
        v_mul_u32_u24 v9, 144, v9
        v_and_b32 v2, 3, v{V_L16}
        v_lshl_add_u32 v9, v2, 3, v9
        s_lshl_b32 {S_T0}, {S_W}, 5
        s_add_u32 {S_T0}, {S_T0}, {L_TA}
        v_add_u32 v9, {S_T0}, v9
        s_lshl_b32 {S_T0}, {S_W}, 4
        v_add_u32 v2, {S_T0}, v{V_L16}
        v_mul_u32_u24 v2, 144, v2
        v_lshl_add_u32 v2, v{V_H}, 4, v2
        v_add_u32 v2, {L_TB}, v2
        s_waitcnt lgkmcnt(0)
        s_barrier
        ds_read_b64_tr_b16 v[10:11], v9
        ds_read_b64_tr_b16 v[12:13], v9 offset:{4*144}
        ds_read_b64_tr_b16 v[14:15], v9 offset:{32*144}
        ds_read_b64_tr_b16 v[16:17], v9 offset:{36*144}
        """)
        lz = a.label('WF'); lz2 = a.label('WF')
        a(f"""
        s_cmp_lt_u32 {S_ID}, 192
        s_cbranch_scc0 {lz}
        v_add_u32 v8, {L_TW - L_TA}, v9
        ds_read_b64_tr_b16 v[200:201], v8
        ds_read_b64_tr_b16 v[202:203], v8 offset:{4*144}
        ds_read_b64_tr_b16 v[204:205], v8 offset:{32*144}
        ds_read_b64_tr_b16 v[206:207], v8 offset:{36*144}
        s_lshr_b32 {S_T0}, {S_T3}, 3
        s_lshl_b32 {S_T0}, {S_T0}, 19
        s_and_b32 {S_T1}, {S_T3}, 7
        s_lshl_b32 {S_T1}, {S_T1}, 2
        s_add_u32 {S_T1}, {S_T1}, {S_W}
        s_lshl_b32 {S_T1}, {S_T1}, 14
        s_add_u32 {S_T0}, {S_T0}, {S_T1}
        s_lshl_b32 {S_T1}, {S_T2}, 11
        s_add_u32 {S_T0}, {S_T0}, {S_T1}
        s_add_u32 {S_T0}, {S_T0}, {WQF}
        s_branch {lz2}
        {lz}:
        v_lshrrev_b32 v8, 2, v{V_L16}
        v_lshrrev_b32 v7, 1, v{V_H}
        v_lshl_add_u32 v8, v7, 2, v8
        s_lshl_b32 {S_T0}, {S_W}, 4
        v_add_u32 v8, {S_T0}, v8
        v_mul_u32_u24 v8, 144, v8
        v_and_b32 v7, 1, v{V_H}
        v_lshl_add_u32 v8, v7, 5, v8
        v_and_b32 v7, 3, v{V_L16}
        v_lshl_add_u32 v8, v7, 3, v8
        v_add_u32 v8, {L_TW}, v8
        ds_read_b64_tr_b16 v[200:201], v8
        ds_read_b64_tr_b16 v[202:203], v8 offset:{8*144}
        ds_read_b64_tr_b16 v[204:205], v8 offset:64
        ds_read_b64_tr_b16 v[206:207], v8 offset:{8*144+64}
        s_lshl_b32 {S_T0}, {S_T3}, 16
        s_lshl_b32 {S_T1}, {S_T2}, 2
        s_add_u32 {S_T1}, {S_T1}, {S_W}
        s_lshl_b32 {S_T1}, {S_T1}, 11
        s_add_u32 {S_T0}, {S_T0}, {S_T1}
        s_add_u32 {S_T0}, {S_T0}, {WOFG}
        {lz2}:
        v_lshlrev_b32 v7, 4, v{V_LANE}
        v_add_u32 v7, {S_T0}, v7
        v_mul_u32_u24 v9, 144, v1
        v_lshl_add_u32 v9, v3, 4, v9
        v_add_u32 v9, {L_TB}, v9
        s_lshl_b32 {S_T0}, {S_CG}, 18
        s_lshl_b32 {S_T1}, {S_RT}, 7
        s_add_u32 {S_T0}, {S_T0}, {S_T1}
        s_add_u32 {S_T0}, {S_T0}, {XT[0]}
        v_lshlrev_b32 v4, 12, v1
        v_lshl_add_u32 v4, v3, 4, v4
        v_add_u32 v4, {S_T0}, v4
        v_add_u32 v5, 0x20000, v4
        s_waitcnt lgkmcnt(0)
        ds_write_b128 v2, v[10:13]
        ds_write_b128 v2, v[14:17] offset:64
        buffer_store_dwordx4 v[200:203], v7, {SRD_WS}, 0 offen sc1
        buffer_store_dwordx4 v[204:207], v7, {SRD_WS}, 0 offen offset:1024 sc1
        v_mov_b32 v6, 0
        s_waitcnt lgkmcnt(0)
        s_barrier
        ds_read_b128 v[10:13], v9
        ds_read_b128 v[14:17], v9 offset:{32*144}
        s_waitcnt lgkmcnt(0)
        buffer_store_dwordx4 v[10:13], v4, {SRD_WS}, 0 offen sc1
        buffer_store_dwordx4 v[14:17], v5, {SRD_WS}, 0 offen sc1
        global_load_dword v{V_PT}, v6, s[38:39] sc1
        """)
        l1 = a.label('Z1'); l2 = a.label('Z2')
        a(f"""
        s_cmp_eq_u32 {S_W}, 1
        s_cbranch_scc0 {l1}
        s_mov_b32 exec_lo, -1
        s_mov_b32 exec_hi, 0xf
        v_mov_b32 v10, 0
        v_mov_b32 v11, 0
        v_mov_b32 v12, 0
        v_mov_b32 v13, 0
        s_mul_i32 {S_T0}, {S_ID}, 576
        s_add_u32 {S_T0}, {S_T0}, {ZR}
        v_lshlrev_b32 v4, 4, v{V_LANE}
        v_add_u32 v4, {S_T0}, v4
        buffer_store_dwordx4 v[10:13], v4, {SRD_WS}, 0 offen sc1
        s_mov_b64 exec, -1
        {l1}:
        s_cmp_eq_u32 {S_W}, 2
        s_cbranch_scc0 {l2}
        s_mov_b64 exec, 0xf
        v_lshlrev_b32 v4, 4, v{V_LANE}
        v_add_u32 v5, {L_STG}, v4
        ds_read_b128 v[10:13], v5
        s_lshl_b32 {S_T0}, {S_ID}, 6
        s_add_u32 {S_T0}, {S_T0}, {ST1}
        v_add_u32 v4, {S_T0}, v4
        s_waitcnt lgkmcnt(0)
        buffer_store_dwordx4 v[10:13], v4, {SRD_WS}, 0 offen sc1
        s_mov_b64 exec, -1
        {l2}:
        """)
        self.stamp()
        self.kgen_consts()
        a("s_waitcnt lgkmcnt(0)\ns_barrier")
        self.sub(0)
        self.sub(1)
        self.kgen_main(IDX)
        self.sub(6)
        self.subflush(3, 7)
        self.stamp()

    def arrive_first(self):
        a = self.a
        la = a.label('ARR1'); lp = a.label('INITP'); ld = a.label('INITD')
        a(f"""
        s_waitcnt vmcnt(0)
        s_barrier
        s_add_u32 {S_TGT}, {S_TGT}, 16
        s_cmp_eq_u32 {S_W}, 0
        s_cbranch_scc0 {la}
        s_mov_b64 exec, 1
        s_mov_b32 {S_SPIN}, 0
        v_mov_b32 v6, 0
        {lp}:
        v_cmp_le_u32 vcc, 16, v{V_PT}
        s_cbranch_vccnz {ld}
        global_load_dword v{V_PT}, v6, s[38:39] sc1
        s_add_u32 {S_SPIN}, {S_SPIN}, 1
        s_waitcnt vmcnt(0)
        s_cmp_lt_u32 {S_SPIN}, 0x200000
        s_cbranch_scc1 {lp}
        {ld}:
        """)
        self.arrive_core(finish=False)
        a(f"""
        s_mov_b64 exec, -1
        {la}:
        """)

    def cexp(self, p, dr, di, t):
        return lines(f"""
        v_mul_f32 v{t}, {fx(p)}, v40
        v_mul_f32 v{t+1}, {fx(p)}, v41
        v_exp_f32 v{t}, v{t}
        v_fract_f32 v{t+1}, v{t+1}
        v_cos_f32 v{t+2}, v{t+1}
        v_sin_f32 v{t+1}, v{t+1}
        v_mul_f32 v{dr}, v{t}, v{t+2}
        v_mul_f32 v{di}, v{t}, v{t+1}
        """)

    def kgen_consts(self):
        a = self.a
        a(f"""
        v_and_b32 v{V_DSK1}, 0xffff0000, v{V_DSK0}
        v_lshlrev_b32 v{V_DSK0}, 16, v{V_DSK0}
        v_lshlrev_b32 v26, 16, v26
        v_lshlrev_b32 v30, 16, v30
        v_lshlrev_b32 v27, 16, v27
        v_lshlrev_b32 v28, 16, v28
        v_mul_f32 v30, {fx(LOG2E)}, v30
        v_mul_f32 v26, {fx(LOG2E)}, v26
        v_lshlrev_b32 v29, 16, v29
        v_exp_f32 v30, v30
        v_exp_f32 v26, v26
        v_cvt_pk_bf16_f32 v31, v30, v26
        v_lshlrev_b32 v30, 16, v31
        v_and_b32 v26, 0xffff0000, v31
        v_mul_f32 v40, v26, v30
        v_mul_f32 v41, v27, v30
        v_mul_f32 v42, v28, v30
        v_mul_f32 v43, v29, v30
        v_mul_f32 v40, {fx(-LOG2E)}, v40
        v_mul_f32 v41, {fx(1/(2*math.pi))}, v41
        v_add_f32 v42, v42, v42
        v_add_f32 v43, v43, v43
        v_rndne_f32 v31, v41
        v_sub_f32 v41, v41, v31
        """)
        ch = []
        for i, p in enumerate((256.0, 512.0, 1536.0)):
            t = 52 + 6*i; d = 44 + 2*i
            c = self.cexp(p, t+3, t+4, t)
            c += lines(f"""
            v_mul_f32 v{d}, v42, v{t+3}
            v_mul_f32 v{d+1}, v42, v{t+4}
            v_fma_f32 v{d}, -v43, v{t+4}, v{d}
            v_fma_f32 v{d+1}, v43, v{t+3}, v{d+1}
            """)
            ch.append(c)
        self.emit(zipmerge(*ch))
        a(f"""
        v_lshrrev_b32 v1, 7, v0
        v_mul_u32_u24 v1, 5120, v1
        v_and_b32 v2, 127, v0
        v_lshl_add_u32 v1, v2, 2, v1
        v_add_u32 v1, {L_CT}, v1
        """)
        for q in range(10): a(f"ds_write_b32 v1, v{40+q} offset:{q*512}")

    def kgen_main(self, IDX):
        a = self.a
        a(f"""
        s_lshr_b32 {S_T0}, {S_W}, 1
        s_mul_i32 {S_T0}, {S_T0}, 5120
        s_and_b32 {S_T1}, {S_W}, 1
        s_lshl_b32 {S_T1}, {S_T1}, 8
        s_add_u32 {S_T0}, {S_T0}, {S_T1}
        s_add_u32 {S_T0}, {S_T0}, {L_CT}
        v_lshlrev_b32 v1, 4, v{V_H}
        v_add_u32 v1, {S_T0}, v1
        v_cvt_f32_u32 v2, v{V_L16}
        v_mov_b32 v3, v2
        """)
        ACC = 160
        def kstep(B, off, first):
            Q = lambda q: B + 4*q
            FR, FI, T0, T1 = B+40, B+44, B+48, B+52
            A0, A1, F0F, F2F = B+56, B+60, B+64, B+68
            rd = [f"ds_read_b128 {v4(Q(q))}, v1 offset:{q*512 + off}" for q in range(10)]
            L = []
            for h in (0, 2):
                L.append(f"v_pk_mul_f32 {pk(T0+h)}, {pk(Q(0)+h)}, v[2:3]")
                L.append(f"v_pk_mul_f32 {pk(T1+h)}, {pk(Q(1)+h)}, v[2:3]")
            for i in range(4):
                L.append(f"v_exp_f32 v{T0+i}, v{T0+i}")
            for i in range(4):
                L.append(f"v_cos_f32 v{FR+i}, v{T1+i}")
                L.append(f"v_sin_f32 v{FI+i}, v{T1+i}")
            for h in (0, 2):
                L.append(f"v_pk_mul_f32 {pk(FR+h)}, {pk(FR+h)}, {pk(T0+h)}")
                L.append(f"v_pk_mul_f32 {pk(FI+h)}, {pk(FI+h)}, {pk(T0+h)}")
            def packF(dst):
                L.extend([f"v_cvt_pk_bf16_f32 v{dst}, v{FR}, v{FR+1}", f"v_cvt_pk_bf16_f32 v{dst+1}, v{FR+2}, v{FR+3}",
                          f"v_cvt_pk_bf16_f32 v{dst+2}, v{FI}, v{FI+1}", f"v_cvt_pk_bf16_f32 v{dst+3}, v{FI+2}, v{FI+3}"])
            def sq():
                for h in (0, 2):
                    L.append(f"v_pk_mul_f32 {pk(T0+h)}, {pk(FI+h)}, {pk(FI+h)}")
                    L.append(f"v_pk_mul_f32 {pk(T1+h)}, {pk(FR+h)}, {pk(FI+h)}")
                for h in (0, 2):
                    L.append(f"v_pk_fma_f32 {pk(FR+h)}, {pk(FR+h)}, {pk(FR+h)}, {pk(T0+h)} neg_lo:[0,0,1] neg_hi:[0,0,1]")
                    L.append(f"v_pk_add_f32 {pk(FI+h)}, {pk(T1+h)}, {pk(T1+h)}")
            def gmul(q, dst):
                cr, ci = Q(q), Q(q+1)
                for h in (0, 2):
                    L.append(f"v_pk_mul_f32 {pk(T0+h)}, {pk(ci+h)}, {pk(FI+h)}")
                    L.append(f"v_pk_mul_f32 {pk(T1+h)}, {pk(ci+h)}, {pk(FR+h)}")
                for h in (0, 2):
                    L.append(f"v_pk_fma_f32 {pk(T0+h)}, {pk(cr+h)}, {pk(FR+h)}, {pk(T0+h)} neg_lo:[0,0,1] neg_hi:[0,0,1]")
                    L.append(f"v_pk_fma_f32 {pk(T1+h)}, {pk(cr+h)}, {pk(FI+h)}, {pk(T1+h)} neg_lo:[1,0,1] neg_hi:[1,0,1]")
                L.extend([f"v_cvt_pk_bf16_f32 v{dst}, v{T0}, v{T0+1}", f"v_cvt_pk_bf16_f32 v{dst+1}, v{T0+2}, v{T0+3}",
                          f"v_cvt_pk_bf16_f32 v{dst+2}, v{T1}, v{T1+1}", f"v_cvt_pk_bf16_f32 v{dst+3}, v{T1+2}, v{T1+3}"])
            def mm(T, A, F):
                c = '0' if first else v4(ACC+4*T)
                L.append(f"v_mfma_f32_16x16x32_bf16 {v4(ACC+4*T)}, {v4(A)}, {v4(F)}, {c}")
            packF(F0F); sq(); sq(); packF(F2F); sq(); sq()
            gmul(2, A0); mm(0, A0, F0F); gmul(4, A1); mm(1, A1, F0F)
            sq(); sq()
            gmul(6, A0); mm(2, A0, F2F); gmul(8, A1); mm(3, A1, F2F)
            return rd, L
        BA, BB = 8, 84
        def sprinkle(L, groups):
            step = max(1, len(L) // (len(groups) + 1)); out = []
            for i, x in enumerate(L):
                out.append(x)
                if groups and (i + 1) % step == 0: out += groups.pop(0)
            for g in groups: out += g
            return out
        for i in range(16): a(f"v_mov_b32 v{ACC+i}, 0")
        lk = a.label('KG'); lk2 = a.label('KG')
        a(f"s_mov_b32 {S_T4}, 0\n{lk}:")
        rdA, LA = kstep(BA, 0, False)
        rdB, LB = kstep(BB, 64, False)
        self.emit(rdA[:2] + rdB[:2] + rdA[2:] + rdB[2:])
        a("s_waitcnt lgkmcnt(15)")
        n_pre = 4+4+8+4 + 4+16+4+16
        self.emit(zipmerge(LA[:n_pre], LB[:n_pre]))
        a("s_waitcnt lgkmcnt(0)")
        self.emit(zipmerge(LA[n_pre:], LB[n_pre:]))
        a(f"v_add_u32 v1, 128, v1\ns_cmp_eq_u32 {S_T4}, 0\ns_cbranch_scc0 {lk2}")
        self.arrive_first()
        self.stamp()
        a(f"s_mov_b32 {S_T4}, 1\ns_branch {lk}\n{lk2}:\ns_nop 7")
        lf = a.label('AF')
        a(f"s_cmp_eq_u32 {S_W}, 0\ns_cbranch_scc0 {lf}\ns_mov_b64 exec, 1")
        self.arrive_finish()
        a(f"s_mov_b64 exec, -1\n{lf}:")
        self.sub(2)
        a(f"""
        s_lshr_b32 {S_T0}, {S_W}, 1
        s_mul_i32 {S_T0}, {S_T0}, 4224
        s_and_b32 {S_T1}, {S_W}, 1
        s_mul_i32 {S_T1}, {S_T1}, 8448
        s_add_u32 {S_T0}, {S_T0}, {S_T1}
        s_add_u32 {S_T0}, {S_T0}, {L_KD}
        v_mul_u32_u24 v1, 264, v{V_H}
        v_lshl_add_u32 v1, v{V_L16}, 2, v1
        v_add_u32 v1, {S_T0}, v1
        """)
        for T in range(4):
            for r in range(4):
                a(f"ds_write_b32 v1, v{ACC+4*T+r} offset:{1056*T+64*r+4*(r>>1)}")
        a("s_waitcnt vmcnt(0) lgkmcnt(0)\ns_barrier")
        self.sub(3)
        VAL = 8
        for part in range(2):
            for ch in range(2):
                for i in range(9):
                    a(f"ds_read_b32 v{VAL+18*part+9*ch+i}, v{IDX+i} offset:{8448*part + 4224*ch}")
        a(f"""
        v_cmp_ne_u32 vcc, 255, v0
        v_lshlrev_b32 v1, 4, v0
        v_add_u32 v1, {L_KC + 8}, v1
        s_waitcnt lgkmcnt(0)
        """)
        for i in range(18): a(f"v_add_f32 v{VAL+i}, v{VAL+i}, v{VAL+18+i}")
        a(f"v_cndmask_b32 v{VAL+8}, 0, v{VAL+8}, vcc\nv_cndmask_b32 v{VAL+17}, 0, v{VAL+17}, vcc")
        self.sub(4)
        for ch in range(2):
            for m0 in range(2):
                o = 80 + 4*(2*ch+m0)
                s0 = VAL + 9*ch + (1 - m0)
                for p in range(4): a(f"v_cvt_pk_bf16_f32 v{o+p}, v{s0+2*p}, v{s0+2*p+1}")
                a(f"ds_write_b64 v1, {pk(o)} offset:{ch*8448+m0*4224}")
                a(f"ds_write_b64 v1, {pk(o+2)} offset:{ch*8448+m0*4224+8}")
        a(f"""
        v_cmp_gt_u32 vcc, 14, v{V_L16}
        v_mul_u32_u24 v1, 4224, v{V_H}
        v_lshl_add_u32 v1, v{V_L16}, 2, v1
        v_add_u32 v1, {L_KC + 4104}, v1
        v_mov_b32 v2, 0
        s_cmp_eq_u32 {S_W}, 0
        s_cselect_b64 {S_EXS}, vcc, 0
        s_mov_b64 exec, {S_EXS}
        ds_write_b32 v1, v2
        s_mov_b64 exec, -1
        s_waitcnt lgkmcnt(0)
        """)
        self.sub(5)
        a("s_barrier")

    def wfrag_loads(self):
        setup = lines(f"""
        s_lshl_b32 {S_T0}, {S_CG}, 2
        s_add_u32 {S_T0}, {S_T0}, {S_W}
        s_lshl_b32 {S_T0}, {S_T0}, 14
        s_add_u32 s79, {S_T0}, {WQF}
        s_add_u32 {S_DS}, s79, {1 << 19}
        v_lshlrev_b32 v18, 4, v{V_LANE}
        """)
        groups = []
        for p in (1, 2):
            for ks in range(16):
                g = [f"buffer_load_dwordx4 a[{64*p+4*ks}:{64*p+4*ks+3}], v18, {SRD_WS}, {S_DS} offen sc1"]
                g.append(f"s_add_u32 {S_DS}, {S_DS}, {1024 if ks < 15 else (1 << 19) - 15*1024}")
                groups.append(g)
        for ks in list(range(QSPLIT, 16)):
            groups.append([f"s_add_u32 {S_T5}, s79, {ks*1024}", f"buffer_load_dwordx4 a[{4*ks}:{4*ks+3}], v18, {SRD_WS}, {S_T5} offen sc1"])
        for ks in range(QSPLIT):
            groups.append([f"s_add_u32 {S_T5}, s79, {ks*1024}", f"buffer_load_dwordx4 a[{4*ks}:{4*ks+3}], v111, {SRD_WS}, {S_T5} offen sc1"])
        return setup, groups

    def wsum(self, o=16, parts=(1, 2)):
        a = self.a
        for i in range(4): a(f"v_mov_b32 v{o+i}, {S_ONES}")
        for ks in range(16):
            for p in parts:
                d = v4(o+4+4*p); c = '0' if ks == 0 else d
                w = f"a[{64*p+4*ks}:{64*p+4*ks+3}]"
                if p == 0: a(f"v_mfma_f32_16x16x32_bf16 {d}, {w}, {v4(o)}, {c}")
                else: a(f"v_mfma_f32_16x16x32_bf16 {d}, {v4(o)}, {w}, {c}")
        if 0 in parts:
            for i in range(4): a(f"v_mov_b32 v{V_WSQ+i}, v{o+4+i}")
        if 1 in parts: a(f"v_mov_b32 v{V_WSK}, v{o+8}")
        if 2 in parts: a(f"v_mov_b32 v{V_WSV}, v{o+12}")

    CV = dict(XA=10, ST=20, AX=3, AS=4, AU0=5, AU1=6, AK=8, AU=9, ACC=80, X32=200, U32=216)
    def conv_pre(self):
        a = self.a
        a(f"""
        s_lshl_b32 {S_T0}, {S_ID}, 13
        s_add_u32 {S_T0}, {S_T0}, {S_XIN}
        v_lshlrev_b32 v3, 4, v0
        v_add_u32 v3, {S_T0}, v3
        v_lshlrev_b32 v4, 4, v0
        v_add_u32 v4, {S_ST}, v4
        v_lshlrev_b32 v5, 4, v0
        v_add_u32 v5, {L_U + 512}, v5
        v_add_u32 v6, 9280, v5
        v_bfe_u32 v1, v0, 5, 2
        v_mul_u32_u24 v1, 4640, v1
        v_and_b32 v2, 31, v0
        v_lshl_add_u32 v1, v2, 4, v1
        v_add_u32 v1, {L_U}, v1
        v_mov_b32 v36, 0
        v_mov_b32 v37, 0
        v_mov_b32 v38, 0
        v_mov_b32 v39, 0
        v_and_b32 v2, 1, v0
        v_mul_u32_u24 v2, 9280, v2
        v_add_u32 v2, {L_U + 512}, v2
        ds_write_b32 v2, v36
        v_cmp_gt_u32 vcc, 128, v0
        s_and_saveexec_b64 {S_EXS}, vcc
        ds_write_b128 v1, v[36:39]
        s_mov_b64 exec, -1
        s_lshr_b32 {S_T0}, {S_W}, 1
        s_and_b32 {S_T1}, {S_W}, 1
        s_mul_i32 {S_T2}, {S_T0}, 8448
        s_lshl_b32 {S_T3}, {S_T1}, 8
        s_sub_u32 {S_T2}, {S_T2}, {S_T3}
        s_add_u32 {S_T2}, {S_T2}, {L_KC + 4096 - 192 - 3584}
        v_and_b32 v1, 1, v{V_L16}
        v_lshrrev_b32 v7, 1, v{V_L16}
        v_mul_u32_u24 v8, 4224, v1
        v_lshl_add_u32 v8, v{V_H}, 4, v8
        v_lshlrev_b32 v9, 3, v7
        v_sub_u32 v8, v8, v9
        v_add_u32 v8, {S_T2}, v8
        s_mul_i32 {S_T2}, {S_T0}, 9280
        s_sub_u32 {S_T2}, {S_T2}, {S_T3}
        s_add_u32 {S_T2}, {S_T2}, {L_U + 512 - 192}
        v_mul_u32_u24 v9, 4640, v1
        v_lshl_add_u32 v9, v7, 6, v9
        v_lshl_add_u32 v9, v{V_H}, 4, v9
        v_add_u32 v9, {S_T2}, v9
        s_lshl_b32 {S_T1}, {S_T1}, 1
        s_add_u32 {S_T0}, {S_T0}, {S_T1}
        s_mul_i32 {S_T0}, {S_T0}, 9216
        s_add_u32 {S_T0}, {S_T0}, {L_Y}
        v_mul_u32_u24 v2, 144, v7
        v_lshl_add_u32 v2, v{V_H}, 5, v2
        v_lshl_add_u32 v2, v1, 3, v2
        v_add_u32 v2, {S_T0}, v2
        v_lshrrev_b32 v7, 2, v0
        v_lshlrev_b32 v7, 4, v7
        v_lshl_add_u32 v7, v0, 5, v7
        v_add_u32 v7, {L_Y}, v7
        s_waitcnt lgkmcnt(0)
        """)
        for i in (0, 1, 3):
            for q in range(8):
                for hh in range(2):
                    b = {0: 112, 1: 192, 3: 224}[i] + 4*q + 2*hh
                    reg = f"{'v' if i == 0 else 'a'}[{b}:{b+1}]"
                    a(f"ds_read_b64 {reg}, v8 offset:{(3-i)*64 + (7-q)*512 + 8*hh}")

    def conv(self):
        a = self.a
        self.sub(0)
        XA, XB, ST = 10, 14, 20
        for j in range(4):
            a(f"s_mov_b32 {S_T0}, {4096*j}\nbuffer_load_dwordx4 {v4(ST+4*j)}, v4, {SRD_WS}, {S_T0} offen sc1")
        a(f"""
        buffer_load_dwordx4 {v4(XA)}, v3, {SRD_WS}, 0 offen sc1
        v_add_u32 v1, 4096, v3
        buffer_load_dwordx4 {v4(XB)}, v1, {SRD_WS}, 0 offen sc1
        s_mov_b32 s66, {fx(1/512)}
        s_mov_b32 s67, {fx(1e-5)}
        v_mov_b32 v36, s66
        v_mov_b32 v37, s66
        v_mov_b32 v38, s67
        v_mov_b32 v39, s67
        """)
        setup, self.wg = self.wfrag_loads()
        l1 = a.label('CW'); l2 = a.label('CW')
        a(f"s_cmp_eq_u32 {S_LAYER}, 0\ns_cselect_b64 vcc, -1, 0\ns_cbranch_scc0 {l1}")
        self.emit(setup)
        for g in self.wg[:8]: self.emit(g)
        a(f"s_waitcnt vmcnt(10)\ns_branch {l2}\n{l1}:\ns_waitcnt vmcnt(2)\n{l2}:")
        self.sub(1)
        S = lambda i: ST + 2*i
        P  = 40
        MB = 48; VB = 56; R = 64; MR = 72
        for i in range(8): a(f"v_pk_mul_f32 {pk(S(i))}, {pk(S(i))}, v[36:37]")
        for i in range(8): a(f"v_fma_f32 v{S(i)+1}, -v{S(i)}, v{S(i)}, v{S(i)+1}")
        for i in range(8): a(f"v_cvt_pk_bf16_f32 v{P+i}, v{S(i)}, v{S(i)+1}")
        for i in range(8): a(f"v_and_b32 v{VB+i}, 0xffff0000, v{P+i}")
        for i in range(4): a(f"v_pk_add_f32 {pk(VB+2*i)}, {pk(VB+2*i)}, v[38:39]")
        for i in range(8): a(f"v_lshlrev_b32 v{MB+i}, 16, v{P+i}")
        for i in range(4): a(f"v_cvt_pk_bf16_f32 v{P+i}, v{VB+2*i}, v{VB+2*i+1}")
        for i in range(4):
            a(f"v_lshlrev_b32 v{VB+2*i}, 16, v{P+i}\nv_and_b32 v{VB+2*i+1}, 0xffff0000, v{P+i}")
        X32, U32 = 200, 216
        fill = []
        for c, X in enumerate((XA, XB)):
            for p in range(4):
                fill.append(f"v_lshlrev_b32 v{X32+8*c+2*p}, 16, v{X+p}")
                fill.append(f"v_and_b32 v{X32+8*c+2*p+1}, 0xffff0000, v{X+p}")
        for i in range(8): a(f"v_sqrt_f32 v{VB+i}, v{VB+i}")
        for i in range(4): a(f"v_cvt_pk_bf16_f32 v{P+i}, v{VB+2*i}, v{VB+2*i+1}")
        for i in range(4):
            a(f"v_lshlrev_b32 v{VB+2*i}, 16, v{P+i}\nv_and_b32 v{VB+2*i+1}, 0xffff0000, v{P+i}")
        l1 = a.label('CW'); l2 = a.label('CW')
        a(f"s_cbranch_vccz {l1}\ns_waitcnt vmcnt(8)\ns_branch {l2}\n{l1}:\ns_waitcnt vmcnt(0)\n{l2}:")
        self.emit(weave([f"v_rcp_f32 v{R+i}, v{VB+i}" for i in range(8)], fill, per=2))
        for i in range(4): a(f"v_pk_mul_f32 {pk(MR+2*i)}, {pk(MB+2*i)}, {pk(R+2*i)}")
        self.sub(2)
        for c in range(2):
            for p in range(4):
                x = X32+8*c+2*p; u = U32+8*c+2*p
                a(f"v_pk_fma_f32 {pk(u)}, {pk(x)}, {pk(R+2*p)}, {pk(MR+2*p)} neg_lo:[0,0,1] neg_hi:[0,0,1]")
        UP = 40
        for c in range(2):
            for p in range(4):
                u = U32+8*c+2*p
                a(f"v_cvt_pk_bf16_f32 v{UP+4*c+p}, v{u}, v{u+1}")
            ad = 5 + c
            a(f"ds_write_b128 v{ad}, {v4(UP+4*c)} offset:4640")
            a(f"ds_write2_b32 v{ad}, v{UP+4*c}, v{UP+4*c+1} offset0:1 offset1:2")
            a(f"ds_write2_b32 v{ad}, v{UP+4*c+2}, v{UP+4*c+3} offset0:3 offset1:4")
        AK, AU, ACC = 8, 9, 80
        a("s_waitcnt lgkmcnt(0)\ns_barrier")
        self.sub(3)
        ABASE = {0: ('v', 112), 1: ('a', 192), 2: ('v', 40), 3: ('a', 224)}
        def fragA(i, q):
            f, b = ABASE[i]; return f"{f}[{b+4*q}:{b+4*q+3}]"
        BB = [[144+4*q for q in range(8)], [176, 180, 184, 188, 192, 196, 72, 76]]
        def fragB(st, q): return v4(BB[st][q])
        def loadB(i, st): return [f"ds_read_b128 {fragB(st, q)}, v{AU} offset:{(3-i)*64 + 512*q}" for q in range(8)]
        def loadA2():
            L = []
            for q in range(8):
                for hh in range(2):
                    b = 40 + 4*q + 2*hh
                    L.append(f"ds_read_b64 v[{b}:{b+1}], v{AK} offset:{(3-2)*64 + (7-q)*512 + 8*hh}")
            return L
        self.emit(loadB(0, 0))
        def mainloop(groups):
            written = set(); cnt = 0
            for i in range(4):
                st = i & 1
                a("s_waitcnt lgkmcnt(0)")
                nxt = loadB(i+1, st ^ 1) if i < 3 else []
                if i == 0: nxt = nxt + loadA2()
                for sh in range(8):
                    for t in range(sh, 8):
                        c = v4(ACC+4*t) if t in written else '0'
                        written.add(t)
                        a(f"v_mfma_f32_16x16x32_bf16 {v4(ACC+4*t)}, {fragA(i, sh)}, {fragB(st, t-sh)}, {c}")
                        cnt += 1
                        if nxt: a(nxt.pop(0))
                        if groups and cnt % 20 == 10:
                            lg = a.label('WG')
                            a(f"s_cbranch_vccz {lg}")
                            for _ in range(4): self.emit(groups.pop(0))
                            a(f"{lg}:")
            assert not groups
        NC = 48 - QSPLIT
        nloop = min(24, (NC - 8) * 2 // 3 // 4 * 4)
        self.nloop = nloop
        mainloop(self.wg[8:8+nloop])
        lb = a.label('WB')
        a(f"s_cbranch_vccz {lb}")
        for g in self.wg[8+self.nloop:48-QSPLIT]: self.emit(g)
        a(f"{lb}:")
        self.sub(4)
        for t in range(8):
            a(f"ds_write_b64 v2, {pk(ACC+4*t)} offset:{1152*t}")
            a(f"ds_write_b64 v2, {pk(ACC+4*t+2)} offset:{1152*t+16}")
        a("s_waitcnt lgkmcnt(0)\ns_barrier")
        self.sub(5)
        Y0 = 112
        for ch in range(2):
            for sh in range(2):
                for hh in range(2):
                    b = Y0 + 16*sh + 8*ch + 4*hh
                    a(f"ds_read_b128 {v4(b)}, v7 offset:{sh*18432 + ch*9216 + 16*hh}")
        a(f"""
        v_subrev_u32 v3, {S_XIN}, v3
        v_add_u32 v3, {S_XOUT}, v3
        v_add_u32 v1, 4096, v3
        """)
        for ch in range(2):
            a(f"s_waitcnt lgkmcnt({4*(1-ch)})")
            D = V_DSK0 if ch == 0 else V_DSK1
            for p in range(4):
                y = Y0 + 8*ch + 2*p
                a(f"v_pk_add_f32 {pk(y)}, {pk(y)}, {pk(y+16)}")
            for p in range(4):
                y = Y0 + 8*ch + 2*p; u = U32 + 8*ch + 2*p
                a(f"v_pk_fma_f32 {pk(y)}, {pk(u)}, {pk(D)}, {pk(y)} op_sel_hi:[1,0,1]")
            for p in range(4):
                y = Y0 + 8*ch + 2*p; x = X32 + 8*ch + 2*p
                a(f"v_pk_add_f32 {pk(y)}, {pk(y)}, {pk(x)}")
            for p in range(4):
                y = Y0 + 8*ch + 2*p
                a(f"v_cvt_pk_bf16_f32 v{80+4*ch+p}, v{y}, v{y+1}")
            a(f"buffer_store_dwordx4 {v4(80+4*ch)}, v{3 if ch == 0 else 1}, {SRD_WS}, 0 offen sc1")
        self.sub(6)
        self.subflush(0, 7)

    def wstage_kv(self):
        a = self.a
        l = a.label('WS')
        a(f"s_cmp_eq_u32 {S_LAYER}, 0\ns_cbranch_scc0 {l}")
        self.wsum()
        a(f"{l}:")

    def qkv_pre(self):
        a = self.a
        t = 10
        a(f"""
        v_lshrrev_b32 v{t}, 3, v{V_LANE}
        v_lshlrev_b32 v{t}, 12, v{t}
        v_bfe_u32 v{t+1}, v{V_LANE}, 1, 2
        v_bfe_u32 v{t+2}, v{V_LANE}, 4, 1
        s_and_b32 {S_T0}, {S_W}, 1
        s_lshl_b32 {S_T0}, {S_T0}, 1
        v_or_b32 v{t+2}, {S_T0}, v{t+2}
        v_xor_b32 v{t+1}, v{t+1}, v{t+2}
        v_lshl_add_u32 v{t}, v{t+1}, 5, v{t}
        v_and_b32 v{t+1}, 1, v{V_LANE}
        v_lshl_add_u32 v{t}, v{t+1}, 4, v{t}
        s_lshl_b32 {S_T0}, {S_RT}, 7
        v_add_u32 v{t}, {S_T0}, v{t}
        s_lshl_b32 {S_DS}, {S_W}, 15
        s_add_u32 {S_DS}, {S_DS}, {S_XIN}
        s_lshl_b32 {S_DM}, {S_W}, 10
        s_add_u32 {S_DM}, {S_DM}, {L_XL}
        """)
        t = 12
        a(f"""
        v_lshrrev_b32 v{t}, 2, v{V_L16}
        v_lshl_add_u32 v{t+1}, v{V_H}, 3, v{t}
        v_lshlrev_b32 v{t+1}, 7, v{t+1}
        v_and_b32 v{t+2}, 3, v{V_L16}
        v_lshl_add_u32 v{t+1}, v{t+2}, 3, v{t+1}
        v_add_u32 v{t+1}, {L_XL}, v{t+1}
        v_lshrrev_b32 v{t}, 1, v{t}
        v_and_b32 v{t+2}, 1, v{V_H}
        v_lshl_or_b32 v{t}, v{t+2}, 1, v{t}
        v_xor_b32 v{t}, {S_W}, v{t}
        """)
        for j in range(4):
            a(f"v_xor_b32 v{t+2}, {j}, v{t}\nv_lshl_add_u32 v{4+j}, v{t+2}, 5, v{t+1}")
        for i in range(4): a(f"v_mov_b32 v{104+i}, {S_ONES}")
        a(f"""
        s_mov_b32 s66, {fx(1e-6)}
        s_mov_b32 s67, {fx(LOG2E)}
        v_mov_b32 v112, s66
        v_mov_b32 v113, s66
        v_mov_b32 v114, s67
        v_mov_b32 v115, s67
        """)

    def qkv(self):
        a = self.a
        self.sub(0)
        def dma():
            return lines(f"""
            s_mov_b32 m0, {S_DM}
            s_add_u32 {S_DM}, {S_DM}, 4096
            buffer_load_dwordx4 v10, {SRD_WS}, {S_DS} offen sc1 lds
            s_add_u32 {S_DS}, {S_DS}, {4*32768}
            """)
        NUPF = int(os.environ.get('NUPF', '12'))
        for i in range(NUPF): self.emit(dma())
        AD = 4
        AK_, AV_, AQ_ = 16, 32, 48
        DS, DG = 64, 68
        ONES = 104
        XF = [72, 88]
        def xload(ks, st):
            L = []
            for j in range(4):
                b = XF[st] + 4*j
                L.append(f"ds_read_b64_tr_b16 {pk(b)}, v{AD+j} offset:{ks*4096}")
                L.append(f"ds_read_b64_tr_b16 {pk(b+2)}, v{AD+j} offset:{ks*4096+512}")
            return L
        S_WDS, S_WDM = 's84', 's85'
        a(f"""
        s_lshl_b32 {S_WDS}, {S_CG}, 16
        s_lshl_b32 {S_T0}, {S_W}, 14
        s_add_u32 {S_WDS}, {S_WDS}, {S_T0}
        s_add_u32 {S_WDS}, {S_WDS}, {WOFG}
        s_add_u32 {S_WDM}, {S_T0}, {L_WO}
        v_lshlrev_b32 v111, 4, v{V_LANE}
        """)
        def wo_group():
            lg = a.label('WOG')
            a(f"s_cmp_eq_u32 {S_LAYER}, 0\ns_cbranch_scc0 {lg}")
            for _ in range(4):
                a(f"""
                s_mov_b32 m0, {S_WDM}
                s_add_u32 {S_WDM}, {S_WDM}, 1024
                buffer_load_dwordx4 v111, {SRD_WS}, {S_WDS} offen sc1 lds
                s_add_u32 {S_WDS}, {S_WDS}, 1024
                """)
            a(f"{lg}:")
        SF = [200, 208]
        S = {0: [0], 1: [1, 2], 2: [3, 4], 3: [5, 6], 4: [7, 8], 5: [9, 10], 6: [11, 12], 7: [13, 14], 8: [15]}
        def sload(ks, st):
            L = []
            for n, kss in enumerate(S.get(ks, [])):
                b = SF[st] + 4*n
                L.append(f"ds_read_b64_tr_b16 {pk(b)}, v{AD} offset:{kss*4096}")
                L.append(f"ds_read_b64_tr_b16 {pk(b+2)}, v{AD} offset:{kss*4096+512}")
            return L
        ndma = [NUPF]
        landed = [-1]
        def need(idx):
            if idx <= landed[0]: return []
            landed[0] = idx
            return [f"s_waitcnt vmcnt({ndma[0] - 1 - idx})", "s_barrier"]
        waits = {0: 2, 1: 4, 2: 8, 4: 12, 6: 15}
        self.emit(need(1))
        self.sub(1)
        self.emit(xload(0, 0) + sload(0, 0))
        self.P1 = {}
        fillers = {}
        def pass1(ks, extra):
            st = ks & 1
            a("s_waitcnt lgkmcnt(0)")
            if ks in waits: self.emit(need(waits[ks]))
            fill = (xload(ks+1, st ^ 1) + sload(ks+1, st ^ 1)) if ks + 1 < 16 else (xload(0, st ^ 1) if QSPLIT > 0 else [])
            M = []
            for j in range(4):
                x = v4(XF[st]+4*j)
                ck = '0' if ks == 0 else v4(AK_+4*j); cv = '0' if ks == 0 else v4(AV_+4*j)
                M.append(f"v_mfma_f32_16x16x32_bf16 {v4(AK_+4*j)}, {x}, a[{64+4*ks}:{64+4*ks+3}], {ck}")
                M.append(f"v_mfma_f32_16x16x32_bf16 {v4(AV_+4*j)}, {x}, a[{128+4*ks}:{128+4*ks+3}], {cv}")
                if ks >= QSPLIT:
                    M.append(f"v_mfma_f32_16x16x32_bf16 {v4(AQ_+4*j)}, a[{4*ks}:{4*ks+3}], {x}, {'0' if ks == QSPLIT else v4(AQ_+4*j)}")
            for n, kss in enumerate(S.get(ks, [])):
                x0 = v4(SF[st] + 4*n)
                M.append(f"v_mfma_f32_16x16x32_bf16 {v4(DS)}, {v4(ONES)}, {x0}, {'0' if kss == 0 else v4(DS)}")
                M.append(f"v_mfma_f32_16x16x32_bf16 {v4(DG)}, {x0}, {x0}, {'0' if kss == 0 else v4(DG)}")
            k = min(2, 16 - ndma[0])
            for _ in range(k): fill = fill + dma()
            ndma[0] += k
            out = []; fi = list(fill); ex = list(extra)
            for mi, m in enumerate(M):
                out.append(m)
                n = 2
                while n > 0 and fi: out.append(fi.pop(0)); n -= 1
                while n > 0 and ex: out.append(ex.pop(0)); n -= 1
            out += fi
            self.emit(out)
            return ex
        self._pass1 = pass1
        SQ = 109
        F1 = lines(f"""
        v_and_b32 v8, 3, v{V_L16}
        v_lshrrev_b32 v9, 2, v{V_L16}
        v_cmp_eq_u32 s[66:67], 1, v8
        v_cmp_eq_u32 s[68:69], 2, v8
        v_cmp_eq_u32 vcc, 3, v8
        v_cndmask_b32 v{SQ}, v{DG}, v{DG+1}, s[66:67]
        v_cndmask_b32 v{SQ}, v{SQ}, v{DG+2}, s[68:69]
        v_cndmask_b32 v{SQ}, v{SQ}, v{DG+3}, vcc
        v_cmp_eq_u32 vcc, v9, v{V_H}
        s_lshl_b32 {S_T0}, {S_W}, 6
        s_add_u32 {S_T0}, {S_T0}, {L_S2R}
        v_cndmask_b32 v{SQ}, 0, v{SQ}, vcc
        v_lshlrev_b32 v8, 2, v{V_L16}
        v_add_u32 v9, {S_T0}, v8
        """)
        F1 += self.reduce_h(SQ, 110)
        F1 += self.ln_final1(DS, SQ, 116, 117, 118)
        F1 += lines(f"""
        ds_write_b32 v9, v116
        ds_write_b32 v9, v117 offset:{L_S2M-L_S2R}
        v_lshlrev_b32 v8, 4, v{V_H}
        v_add_u32 v8, {S_T0}, v8
        """)
        R4, M4 = 128, 144
        RQ, MQ = 160, 208
        F2 = []
        for j in range(4):
            F2.append(f"v_xor_b32 v{120+j}, {64*j}, v8")
            F2.append(f"v_xor_b32 v{124+j}, {64*j}, v9")
        for j in range(4):
            F2.append(f"ds_read_b128 {v4(R4+4*j)}, v{120+j}")
            F2.append(f"ds_read_b128 {v4(M4+4*j)}, v{120+j} offset:{L_S2M-L_S2R}")
        for j in range(4):
            F2.append(f"ds_read_b32 v{RQ+2*j}, v{124+j}")
            F2.append(f"ds_read_b32 v{MQ+2*j}, v{124+j} offset:{L_S2M-L_S2R}")
        EPS, L2E = 112, 114
        def phi(x, T):
            return [f"v_pk_mul_f32 {pk(T)}, {pk(x)}, {pk(L2E)}",
                    f"v_exp_f32_e64 v{T}, v{T} clamp", f"v_exp_f32_e64 v{T+1}, v{T+1} clamp",
                    f"v_max_f32 v{x}, v{EPS}, v{x}", f"v_max_f32 v{x+1}, v{EPS}, v{x+1}",
                    f"v_pk_add_f32 {pk(x)}, {pk(x)}, {pk(T)}"]
        PKF, VF, PQF = 168, 176, 200
        DKV, DZ = 196, 216
        def kv_chain(j, h2, T):
            k = AK_+4*j+h2; vv = AV_+4*j+h2; r = R4+4*j+h2; m = M4+4*j+h2
            c = [f"v_pk_fma_f32 {pk(T)}, {pk(m)}, v[{V_WSK}:{V_WSK+1}], {pk(EPS)} op_sel_hi:[1,0,1] neg_lo:[0,0,1] neg_hi:[0,0,1]",
                 f"v_pk_mul_f32 {pk(T+4)}, {pk(m)}, v[{V_WSV}:{V_WSV+1}] op_sel_hi:[1,0]",
                 f"v_pk_fma_f32 {pk(k)}, {pk(k)}, {pk(r)}, {pk(T)} neg_lo:[0,0,1] neg_hi:[0,0,1]",
                 f"v_pk_fma_f32 {pk(vv)}, {pk(vv)}, {pk(r)}, {pk(T+4)} neg_lo:[0,0,1] neg_hi:[0,0,1]"]
            ph = phi(k, T+2)
            c += [ph[0], f"v_cvt_pk_bf16_f32 v{VF + 2*j + h2//2}, v{vv}, v{vv+1}"] + ph[1:]
            c.append(f"v_cvt_pk_bf16_f32 v{PKF + 2*j + h2//2}, v{k}, v{k+1}")
            return c
        def q_chain(j, h2, T):
            q = AQ_+4*j+h2
            c = [f"v_pk_fma_f32 {pk(T)}, {pk(MQ+2*j)}, {pk(V_WSQ+h2)}, {pk(EPS)} op_sel_hi:[0,1,1] neg_lo:[0,0,1] neg_hi:[0,0,1]",
                 f"v_pk_fma_f32 {pk(q)}, {pk(q)}, {pk(RQ+2*j)}, {pk(T)} op_sel_hi:[1,0,1] neg_lo:[0,0,1] neg_hi:[0,0,1]"]
            c += phi(q, T+2)
            c.append(f"v_cvt_pk_bf16_f32 v{PQF + 2*j + h2//2}, v{q}, v{q+1}")
            return c
        adr = lines(f"""
        s_lshl_b32 {S_T0}, {S_CG}, 2
        s_add_u32 {S_T0}, {S_T0}, {S_W}
        s_lshl_b32 {S_T1}, {S_T0}, 10
        s_add_u32 {S_T1}, {S_T1}, {S_KV}
        v_lshlrev_b32 v11, 2, v{V_LANE}
        v_add_u32 v14, {S_T1}, v11
        s_lshl_b32 {S_T1}, {S_T0}, 10
        s_add_u32 {S_T1}, {S_T1}, {S_Z}
        s_and_b32 {S_T2}, {S_RT}, 3
        s_lshl_b32 {S_T2}, {S_T2}, 8
        s_add_u32 {S_T1}, {S_T1}, {S_T2}
        v_add_u32 v15, {S_T1}, v11
        s_lshl_b32 {S_T1}, {S_RT}, 16
        s_add_u32 {S_T1}, {S_T1}, {S_PQ}
        s_lshl_b32 {S_T2}, {S_T0}, 10
        s_add_u32 {S_T1}, {S_T1}, {S_T2}
        s_and_b32 {S_T2}, {S_W}, 1
        s_lshl_b32 {S_T2}, {S_T2}, 4
        v_xor_b32 v11, {S_T2}, v{V_LANE}
        v_lshlrev_b32 v11, 4, v11
        v_add_u32 v11, {S_T1}, v11
        s_lshr_b32 {S_T2}, {S_W}, 1
        s_lshl_b32 {S_T2}, {S_T2}, 15
        v_add_u32 v12, {S_T2}, v11
        s_xor_b32 {S_T2}, {S_T2}, 0x8000
        v_add_u32 v13, {S_T2}, v11
        """)
        def passQ(ks_range):
            for ks in ks_range:
                st = ks & 1
                nx = xload(ks+1, st ^ 1) if ks + 1 < QSPLIT else []
                a("s_waitcnt lgkmcnt(0)")
                for j in range(4):
                    x = v4(XF[st]+4*j)
                    c = '0' if (QSPLIT == 16 and ks == 0) else v4(AQ_+4*j)
                    a(f"v_mfma_f32_16x16x32_bf16 {v4(AQ_+4*j)}, a[{4*ks}:{4*ks+3}], {x}, {c}")
                    k = 4 if j < 2 else 0
                    for _ in range(k):
                        if nx: a(nx.pop(0))
        wq = list(self.wg[48-QSPLIT:])
        def wq_group():
            if not wq: return
            lg = a.label('WQG')
            a(f"s_cmp_eq_u32 {S_LAYER}, 0\ns_cbranch_scc0 {lg}")
            for _ in range(4):
                if wq: self.emit(wq.pop(0))
            a(f"{lg}:")
        for ks in range(0, 9):
            pass1(ks, [])
            if ks == 3: self.sub(2)
            if ks in (6, 8): wq_group()
        self.sub(3)
        ex = list(F1)
        for ks in range(9, 12):
            ex = pass1(ks, ex)
            if ks == 10: wq_group()
        self.emit(ex)
        wq_group()
        a("s_waitcnt lgkmcnt(0)\ns_barrier")
        self.sub(4)
        ex = list(F2) + adr
        for ks in range(12, 16):
            ex = pass1(ks, ex)
            if ks == 12: wo_group()
        self.emit(ex)
        wo_group()
        a("s_waitcnt lgkmcnt(0)")
        self.sub(5)
        TT = [184, 190, 220, 226]
        for j0 in (0, 2):
            self.emit(zipmerge(kv_chain(j0, 0, TT[0]), kv_chain(j0, 2, TT[1]), kv_chain(j0+1, 0, TT[2]), kv_chain(j0+1, 2, TT[3])))
            u = j0 // 2
            c1 = '0' if u == 0 else v4(DKV); c2 = '0' if u == 0 else v4(DZ)
            a(f"v_mfma_f32_16x16x32_bf16 {v4(DKV)}, {v4(VF+4*u)}, {v4(PKF+4*u)}, {c1}")
            a(f"v_mfma_f32_16x16x32_bf16 {v4(DZ)}, {v4(ONES)}, {v4(PKF+4*u)}, {c2}")
        for i in range(4):
            a(f"buffer_atomic_add_f32 v{DKV+i}, v14, {SRD_WS}, 0 offen offset:{256*i}")
        a(f"""
        s_mov_b64 exec, 0xffff
        buffer_atomic_add_f32 v{DZ}, v15, {SRD_WS}, 0 offen
        s_mov_b64 exec, -1
        """)
        wo_group()
        a("s_waitcnt vmcnt(17)")
        passQ(range(0, QSPLIT // 2))
        wo_group()
        passQ(range(QSPLIT // 2, QSPLIT))
        lq = a.label('WSQ')
        a(f"s_cmp_eq_u32 {S_LAYER}, 0\ns_cbranch_scc0 {lq}")
        self.wsum(o=120, parts=(0,))
        a(f"{lq}:")
        TQ = [184, 188, 220, 224]
        for u in range(2):
            j0 = 2*u
            self.emit(zipmerge(q_chain(j0, 0, TQ[0]), q_chain(j0, 2, TQ[1]), q_chain(j0+1, 0, TQ[2]), q_chain(j0+1, 2, TQ[3])))
            b = PQF + 4*u
            a(f"v_permlane16_swap_b32 v{b}, v{b+2}\nv_permlane16_swap_b32 v{b+1}, v{b+3}")
            a(f"buffer_store_dwordx4 {v4(b)}, v{12+u}, {SRD_WS}, 0 offen sc1")
        self.sub(6)
        self.subflush(1, 7)

    def outp_pre(self):
        a = self.a
        a(f"""
        s_lshl_b32 {S_T0}, {S_W}, 13
        s_add_u32 {S_T0}, {S_T0}, {S_KV}
        v_lshlrev_b32 v4, 4, v{V_LANE}
        v_add_u32 v4, {S_T0}, v4
        v_add_u32 v5, 4096, v4
        s_lshl_b32 {S_T0}, {S_W}, 13
        s_add_u32 {S_T0}, {S_T0}, {S_Z}
        v_bfe_u32 v6, v{V_LANE}, 2, 3
        v_lshlrev_b32 v6, 10, v6
        v_lshrrev_b32 v12, 5, v{V_LANE}
        v_lshl_add_u32 v6, v12, 8, v6
        v_and_b32 v12, 3, v{V_LANE}
        v_lshl_add_u32 v6, v12, 4, v6
        v_add_u32 v6, {S_T0}, v6
        s_and_b32 {S_T0}, {S_W}, 1
        s_lshl_b32 {S_T0}, {S_T0}, 15
        s_lshr_b32 {S_T1}, {S_W}, 1
        s_lshl_b32 {S_T1}, {S_T1}, 14
        s_add_u32 {S_T0}, {S_T0}, {S_T1}
        s_lshl_b32 {S_T1}, {S_RT}, 16
        s_add_u32 {S_T0}, {S_T0}, {S_T1}
        s_add_u32 {S_DS}, {S_T0}, {S_PQ}
        v_lshlrev_b32 v7, 4, v{V_LANE}
        v_lshrrev_b32 v1, 3, v0
        v_and_b32 v3, 7, v0
        s_lshl_b32 {S_T0}, {S_CG}, 18
        s_lshl_b32 {S_T1}, {S_RT}, 7
        s_add_u32 {S_T0}, {S_T0}, {S_T1}
        v_lshlrev_b32 v8, 12, v1
        v_lshl_add_u32 v8, v3, 4, v8
        v_add_u32 v8, {S_T0}, v8
        v_add_u32 v9, {S_XIN}, v8
        v_add_u32 v2, 0x20000, v9
        v_lshrrev_b32 v10, 4, v{V_LANE}
        v_bfe_u32 v11, v{V_LANE}, 2, 2
        v_lshl_add_u32 v10, v11, 2, v10
        v_bfe_u32 v11, v{V_LANE}, 1, 1
        v_lshl_add_u32 v10, v11, 4, v10
        v_lshlrev_b32 v10, 4, v10
        v_and_b32 v11, 1, v{V_LANE}
        v_lshl_add_u32 v10, v11, 3, v10
        s_mul_i32 {S_T0}, {S_W}, {8*544}
        s_add_u32 {S_T0}, {S_T0}, {L_KVF}
        v_add_u32 v10, {S_T0}, v10
        v_bfe_u32 v11, v{V_LANE}, 2, 3
        v_mul_u32_u24 v11, 544, v11
        v_and_b32 v12, 3, v{V_LANE}
        v_lshl_add_u32 v11, v12, 3, v11
        v_add_u32 v11, {S_T0}, v11
        v_and_b32 v12, 31, v{V_LANE}
        v_lshrrev_b32 v13, 5, v{V_LANE}
        v_lshlrev_b32 v14, 4, v13
        v_add_u32 v15, v14, v12
        v_lshlrev_b32 v15, 4, v15
        v_lshlrev_b32 v14, 4, v13
        v_add_u32 v14, 512, v14
        v_cmp_gt_u32 vcc, 16, v12
        v_cndmask_b32 v15, v14, v15, vcc
        s_lshr_b32 {S_T0}, {S_W}, 1
        s_mul_i32 {S_T1}, {S_T0}, {16*544}
        s_add_u32 {S_T1}, {S_T1}, {L_KVF}
        v_add_u32 v15, {S_T1}, v15
        v_lshrrev_b32 v16, 2, v{V_L16}
        v_lshrrev_b32 v17, 1, v{V_H}
        v_lshl_add_u32 v17, v17, 2, v16
        v_lshlrev_b32 v17, 7, v17
        v_and_b32 v18, 3, v{V_L16}
        v_lshl_add_u32 v17, v18, 3, v17
        s_lshl_b32 {S_T1}, {S_T0}, 15
        s_add_u32 {S_T1}, {S_T1}, {L_WO}
        v_add_u32 v17, {S_T1}, v17
        v_and_b32 v18, 2, v16
        v_and_b32 v19, 1, v{V_H}
        v_xor_b32 v18, v18, v19
        v_lshl_add_u32 v13, v18, 5, v17
        v_xor_b32 v18, 2, v18
        v_lshl_add_u32 v14, v18, 5, v17
        s_mul_i32 {S_T1}, {S_T0}, {64*272}
        s_and_b32 {S_T0}, {S_W}, 1
        s_lshl_b32 {S_T0}, {S_T0}, 7
        s_add_u32 {S_T1}, {S_T1}, {S_T0}
        s_add_u32 {S_T1}, {S_T1}, {L_O32}
        v_mul_u32_u24 v16, 272, v12
        v_lshrrev_b32 v17, 5, v{V_LANE}
        v_lshl_add_u32 v16, v17, 4, v16
        v_add_u32 v16, {S_T1}, v16
        v_mul_u32_u24 v17, 272, v1
        v_lshl_add_u32 v17, v3, 5, v17
        v_add_u32 v17, {L_O32}, v17
        v_mul_u32_u24 v18, 144, v1
        v_lshl_add_u32 v18, v3, 4, v18
        v_add_u32 v18, {L_OT}, v18
        """)
        a(f"""
        s_lshr_b32 {S_T0}, {S_W}, 1
        s_lshl_b32 {S_T0}, {S_T0}, 15
        s_add_u32 {S_T0}, {S_T0}, {L_WO}
        v_lshlrev_b32 v13, 4, v{V_LANE}
        v_add_u32 v13, {S_T0}, v13
        """)
        for i in range(16):
            for c in range(2):
                a(f"ds_read_b128 {v4(WOF + 8*i + 4*c)}, v13 offset:{i*2048 + c*1024}")

    def outp(self):
        a = self.a
        self.sub(0)
        KVL = 24
        issued = []
        def ld(txt, tag): a(txt); issued.append(tag)
        for p in range(8):
            ad = 4 if p < 4 else 5; off = (p & 3)*1024
            ld(f"buffer_load_dwordx4 {v4(KVL+4*p)}, v{ad}, {SRD_WS}, 0 offen offset:{off} sc1", 'kv')
        ld(f"buffer_load_dwordx4 v[56:59], v6, {SRD_WS}, 0 offen sc1", 'kv')
        ld(f"buffer_load_dwordx4 v[60:63], v6, {SRD_WS}, 0 offen offset:512 sc1", 'kv')
        def pqload(i):
            ld(f"buffer_load_dwordx4 a[{192+4*i}:{192+4*i+3}], v7, {SRD_WS}, {S_DS} offen sc1", f'pq{i}')
            a(f"s_add_u32 {S_DS}, {S_DS}, 1024")
        NUP = 4
        for i in range(NUP): pqload(i)
        def vm(tag):
            idx = max(i for i, t in enumerate(issued) if t == tag)
            return len(issued) - 1 - idx
        self.sub(1)
        a(f"s_waitcnt vmcnt({vm('kv')})")
        self.sub(2)
        for p in range(8):
            b = KVL + 4*p
            a(f"v_cvt_pk_bf16_f32 v{b}, v{b}, v{b+1}\nv_cvt_pk_bf16_f32 v{b+1}, v{b+2}, v{b+3}")
            a(f"ds_write_b64 v10, {pk(b)} offset:{p*544}")
        a("v_pk_add_f32 v[56:57], v[56:57], v[60:61]\nv_pk_add_f32 v[58:59], v[58:59], v[62:63]")
        for i in range(4):
            a(f"v_mov_b32 v{60+i}, v{56+i}\nv_permlane32_swap_b32 v{56+i}, v{60+i}\nv_add_f32 v{56+i}, v{56+i}, v{60+i}")
        a("v_cvt_pk_bf16_f32 v56, v56, v57\nv_cvt_pk_bf16_f32 v57, v58, v59")
        a(f"ds_write_b64 v11, v[56:57] offset:512")
        AKV = 15
        ACC = [72, 88]
        D1 = [32, 48]; KF = [20, 24, 28]; OF = [64, 68]
        XR = WOF
        for i in range(NUP, 10): pqload(i)
        a("s_waitcnt lgkmcnt(0)\ns_barrier")
        self.sub(3)
        def acc(c): return f"v[{ACC[c]}:{ACC[c]+15}]"
        def rdK(i): return [f"ds_read_b128 {v4(KF[i % 3])}, v{AKV} offset:{i*544}"]
        def m1(i): return f"v_mfma_f32_32x32x16_bf16 v[{D1[i&1]}:{D1[i&1]+15}], {v4(KF[i % 3])}, a[{192+4*i}:{192+4*i+3}], 0"
        def valu(i):
            d = D1[i & 1]; o = OF[i & 1]
            L = [f"v_add_f32 v{d+8}, {fx(1e-6)}, v{d+8}", f"v_rcp_f32 v{d+8}, v{d+8}"]
            L += [f"v_mul_f32 v{d+p}, v{d+p}, v{d+8}" for p in range(8)]
            L += [f"v_cvt_pk_bf16_f32 v{o+p}, v{d+2*p}, v{d+2*p+1}" for p in range(4)]
            return L
        def mo(i, c):
            b = WOF + 8*i + 4*c
            return f"v_mfma_f32_32x32x16_bf16 {acc(c)}, {v4(OF[i&1])}, {v4(b)}, {'0' if i == 0 else acc(c)}"
        self.emit(rdK(0) + rdK(1) + rdK(2))
        a(f"s_waitcnt vmcnt({vm('pq0')}) lgkmcnt(2)")
        a(m1(0))
        a(f"s_waitcnt vmcnt({vm('pq1')}) lgkmcnt(1)")
        a(m1(1))
        self.emit(valu(0))
        nxt = 10
        for i in range(16):
            V = valu(i+1) if i + 1 < 16 else []
            K_ = rdK(i+3) if i + 3 < 16 else []
            if i + 2 < 16: a(f"s_waitcnt vmcnt({vm(f'pq{i+2}')}) lgkmcnt(0)")
            a(mo(i, 0))
            self.emit(V[:2] + K_ + V[2:4])
            if i + 2 < 16: a(m1(i+2))
            self.emit(V[4:10])
            a(mo(i, 1))
            self.emit(V[10:])
            if nxt < 16:
                pqload(nxt); nxt += 1
            if i == 6:
                ld(f"buffer_load_dwordx4 {v4(XR)}, v9, {SRD_WS}, 0 offen sc1", 'x')
                ld(f"buffer_load_dwordx4 {v4(XR+4)}, v2, {SRD_WS}, 0 offen sc1", 'x')
        self.sub(4)
        for c in range(2):
            for aa in range(4):
                a(f"ds_write_b128 v16, {v4(ACC[c]+4*aa)} offset:{c*32*272 + 32*aa}")
        a("s_waitcnt lgkmcnt(0)\ns_barrier")
        Y = 32
        for i in range(2):
            for part in range(2):
                for hh in range(2):
                    a(f"ds_read_b128 {v4(Y+16*i+8*part+4*hh)}, v17 offset:{i*32*272 + part*64*272 + 16*hh}")
        a("s_waitcnt vmcnt(0)")
        self.sub(5)
        lf = a.label('FIN'); le = a.label('OE'); lx = a.label('OX')
        a(f"v_add_u32 v8, {S_XOUT}, v8\nv_add_u32 v9, 0x20000, v8")
        for i in range(2):
            a(f"s_waitcnt lgkmcnt({4*(1-i)})")
            y = Y + 16*i; x = XR + 4*i; t = 132 + 8*i
            for p in range(4): a(f"v_pk_add_f32 {pk(y+2*p)}, {pk(y+2*p)}, {pk(y+8+2*p)}")
            for p in range(4): a(f"v_cvt_pk_bf16_f32 v{y+8+p}, v{y+2*p}, v{y+2*p+1}")
            for p in range(4):
                a(f"v_lshlrev_b32 v{y+2*p}, 16, v{y+8+p}\nv_and_b32 v{y+2*p+1}, 0xffff0000, v{y+8+p}")
                a(f"v_lshlrev_b32 v{t+2*p}, 16, v{x+p}\nv_and_b32 v{t+2*p+1}, 0xffff0000, v{x+p}")
            for p in range(4): a(f"v_pk_add_f32 {pk(y+2*p)}, {pk(y+2*p)}, {pk(t+2*p)}")
            for p in range(4): a(f"v_cvt_pk_bf16_f32 v{160+4*i+p}, v{y+2*p}, v{y+2*p+1}")
            a(f"ds_write_b128 v18, {v4(160+4*i)} offset:{i*32*144}")
        a(f"""
        s_cmp_eq_u32 {S_LAYER}, 0
        s_cbranch_scc0 {lf}
        buffer_store_dwordx4 v[160:163], v8, {SRD_WS}, 0 offen sc1
        buffer_store_dwordx4 v[164:167], v9, {SRD_WS}, 0 offen sc1
        {lf}:
        v_lshrrev_b32 v10, 2, v{V_L16}
        v_lshl_add_u32 v10, v{V_H}, 3, v10
        v_mul_u32_u24 v10, 144, v10
        v_and_b32 v11, 3, v{V_L16}
        v_lshl_add_u32 v10, v11, 3, v10
        s_lshl_b32 {S_T0}, {S_W}, 5
        s_add_u32 {S_T0}, {S_T0}, {L_OT}
        v_add_u32 v10, {S_T0}, v10
        s_waitcnt lgkmcnt(0)
        s_barrier
        ds_read_b64_tr_b16 v[104:105], v10
        ds_read_b64_tr_b16 v[106:107], v10 offset:{4*144}
        ds_read_b64_tr_b16 v[108:109], v10 offset:{32*144}
        ds_read_b64_tr_b16 v[110:111], v10 offset:{36*144}
        s_cmp_eq_u32 {S_LAYER}, 0
        s_cbranch_scc0 {le}
        s_lshl_b32 {S_T0}, {S_RT}, 7
        s_lshl_b32 {S_T1}, {S_W}, 5
        s_add_u32 {S_T0}, {S_T0}, {S_T1}
        s_add_u32 {S_T0}, {S_T0}, {ST3}
        v_bfe_u32 v11, v{V_L16}, 1, 2
        v_lshlrev_b32 v11, 12, v11
        v_lshrrev_b32 v12, 3, v{V_L16}
        v_lshl_add_u32 v11, v12, 4, v11
        v_and_b32 v12, 1, v{V_L16}
        v_lshl_add_u32 v11, v12, 3, v11
        v_lshl_add_u32 v11, v{V_H}, 2, v11
        v_add_u32 v11, {S_T0}, v11
        v_mov_b32 v112, 0
        v_mov_b32 v113, 0
        v_mov_b32 v114, 0
        v_mov_b32 v115, 0
        s_waitcnt lgkmcnt(0)
        """)
        for j in range(4):
            a(f"v_dot2_f32_bf16 v112, v{104+j}, {S_ONES}, v112")
            a(f"v_dot2_f32_bf16 v113, v{104+j}, v{104+j}, v113")
            a(f"v_dot2_f32_bf16 v114, v{108+j}, {S_ONES}, v114")
            a(f"v_dot2_f32_bf16 v115, v{108+j}, v{108+j}, v115")
        a("v_pk_add_f32 v[112:113], v[112:113], v[114:115]")
        self.emit(zipmerge(self.reduce_h(112, 116), self.reduce_h(113, 117)))
        a(f"""
        v_cmp_eq_u32 vcc, 0, v{V_H}
        v_cndmask_b32 v112, v113, v112, vcc
        s_mov_b64 exec, 0xffffffff
        buffer_atomic_add_f32 v112, v11, {SRD_WS}, 0 offen
        s_mov_b64 exec, -1
        s_branch {lx}
        {le}:
        s_lshl_b32 {S_T0}, {S_RT}, 16
        s_lshl_b32 {S_T1}, {S_W}, 14
        s_add_u32 {S_T0}, {S_T0}, {S_T1}
        s_lshl_b32 {S_T1}, {S_CG}, 7
        s_add_u32 {S_T0}, {S_T0}, {S_T1}
        v_lshlrev_b32 v11, 10, v{V_L16}
        v_lshl_add_u32 v11, v{V_H}, 4, v11
        v_add_u32 v11, {S_T0}, v11
        s_waitcnt lgkmcnt(0)
        buffer_store_dwordx4 v[104:107], v11, {SRD_OUT}, 0 offen {OUTF}
        buffer_store_dwordx4 v[108:111], v11, {SRD_OUT}, 0 offen offset:64 {OUTF}
        {lx}:
        """)
        self.sub(6)
        self.subflush(2, 7)

    def build(self):
        a = self.a
        self.prologue()
        if self.ts: a(f"v_mov_b32 v{V_TS}, 0\nv_mov_b32 v{V_TS2}, 0")
        self.stamp()
        self.p0()
        stop = self.stop
        if stop == 'p0':
            self.wait(); a("s_branch L_END")
        a("L_LAYER:")
        for reg, (x0, x1) in ((S_XIN, (XT[0], XT[2])), (S_XOUT, (XT[1], XT[3])), (S_ST, (ST1, ST3)), (S_PQ, PQ), (S_KV, KVM), (S_Z, ZZ)):
            a(f"s_mul_i32 {reg}, {S_LAYER}, {(x1 - x0) & 0xffffffff:#x}")
            a(f"s_add_u32 {reg}, {reg}, {x0:#x}")
        self.conv_pre()
        self.wait(l0skip=True, sleep0=16, adr=int(os.environ.get('AR_C','1')), adr0=0, adb=int(os.environ.get('AB_C','1'))); self.stamp()
        self.conv(); self.stamp()
        self.arrive(); self.stamp()
        if stop == 'conv1':
            self.wait(); a("s_branch L_END")
        a(f"s_mov_b32 {S_XIN}, {S_XOUT}")
        self.wstage_kv()
        self.qkv_pre()
        self.wait(l0skip=True, sleep0=12, adr=int(os.environ.get('AR_Q','1')), adr0=int(os.environ.get('AR_Q0','3')), adb=int(os.environ.get('AB_Q','1'))); self.stamp()
        self.qkv(); self.stamp()
        self.arrive(); self.stamp()
        if stop == 'qkv1':
            self.wait(); a("s_branch L_END")
            if os.environ.get('DBGW'):
                a(f"""
                s_lshl_b32 {S_T0}, {S_ID}, 11
                s_add_u32 {S_T0}, {S_T0}, 0x40000
                v_lshlrev_b32 v1, 3, v0
                v_add_u32 v1, {S_T0}, v1
                v_mov_b32 v2, v{V_WSK}
                v_mov_b32 v3, v{V_WSV}
                buffer_store_dwordx2 v[2:3], v1, {SRD_WS}, 0 offen
                """)
            self.wait(); a("s_branch L_END")
        a(f"s_mov_b32 {S_XOUT}, {XT[2]}")
        self.outp_pre()
        self.wait(sleep0=22, adr=int(os.environ.get('AR_O','2')), adr0=int(os.environ.get('AR_O0','3')), adb=int(os.environ.get('AB_O','2'))); self.stamp()
        self.outp(); self.stamp()
        a(f"s_cmp_eq_u32 {S_LAYER}, 1\ns_cbranch_scc1 L_END")
        self.arrive(); self.stamp()
        if stop == 'out1':
            self.wait(); a("s_branch L_END")
        a(f"s_mov_b32 {S_LAYER}, 1\ns_branch L_LAYER\nL_END:")
        self.tsdump()
        a("L_EXIT:\ns_endpgm")
        body = a.finalize()
        hdr = open(os.path.join(os.path.dirname(os.path.abspath(__file__)), 'header.txt')).read()
        hdr = hdr.replace('@@LAUNCH@@', f'; @launch grid=(256,1,1) block=(256,1,1) lds={LDS_SIZE}')
        txt = hdr + f""".amdgcn_target "amdgcn-amd-amdhsa--gfx950"
.text
.globl {NAME}_kernel
.p2align 8
.type {NAME}_kernel,@function
{NAME}_kernel:
""" + body + f""".section .rodata,"a"
.p2align 6
.amdhsa_kernel {NAME}_kernel
  .amdhsa_next_free_vgpr 512
  .amdhsa_next_free_sgpr 102
  .amdhsa_accum_offset 256
  .amdhsa_group_segment_fixed_size 0
  .amdhsa_kernarg_size 104
  .amdhsa_user_sgpr_count 2
  .amdhsa_user_sgpr_kernarg_segment_ptr 1
  .amdhsa_system_sgpr_workgroup_id_x 1
.end_amdhsa_kernel
"""
        return txt

if __name__ == '__main__':
    import argparse
    ap = argparse.ArgumentParser()
    ap.add_argument('--stop', default=None)
    ap.add_argument('--ts', action='store_true')
    ap.add_argument('-o', default='k.s')
    args = ap.parse_args()
    g = Gen(stop=args.stop, ts=args.ts)
    t = g.build()
    open(args.o, 'w').write(t)
    print('instructions', g.a.count(), 'nops inserted', g.a.nnop, 'bytes', len(t))
```

```python
import sys, os, math
sys.path.insert(0, os.path.dirname(os.path.abspath(__file__)))
from asmgen import Asm

NAME = 'interleave_layers__ssm_conv_s4d__linear_attn_block__prompt'

CNT  = 0x0
ZR   = 0x30000
KVM  = [ZR, ZR + 32768]
ZZ   = [ZR + 65536, ZR + 98304]
ST3  = ZR + 131072
ZRSZ = 147456
ST1  = 0x1C000
GCNT = 0x20000
TS   = 0x80000
XT   = [0x100000, 0x300000, 0x500000, 0x700000]
PQ   = [0x900000, 0xB00000]
WQF  = 0xD00000
WOFG = 0xE80000
WS_SIZE = 0xF00000

L_WO = 0
L_KC = 65536
L_XL = 82432
L_MISC = L_XL + 65536
LDS_SIZE = 163840
L_U  = L_XL
L_Y  = L_XL + 18560
L_TA = L_XL
L_TB = L_XL + 9216
L_TW = L_XL + 46080
L_CT = L_XL + 18432
L_KD = L_XL + 28672
L_KVF = L_XL
L_O32 = L_XL + 17408
L_OT  = L_XL + 52224
L_S2R = L_MISC
L_S2M = L_MISC + 256
L_STG = L_MISC + 512

STPERM = True
EARLYPF = ('v_lshlrev_b32 v198, 7, v0\n        global_load_dword v198, v198, s[66:67]' if os.environ.get('EARLY', '1') == '1' else '')
QSPLIT = int(os.environ.get('QSPLIT', '4'))
BMODE = os.environ.get('BMODE', 'adapt')
ADR = int(os.environ.get('ADR', '1'))
ADB = int(os.environ.get('ADB', '2'))
FLG = 0x24000
OUTF = os.environ.get('OUTF', '')
CODE_CHUNKS = int(os.environ.get('CODE_CHUNKS', '5'))
SLEEP = int(os.environ.get('SLEEP', '1' if os.environ.get('BMODE','adapt') == 'flag16' else '3'))
SLEEP0 = int(os.environ.get('SLEEP0', '14'))
SLEEPG = int(os.environ.get('SLEEPG', '6'))
LOG2E = 1.4426950408889634
def f2u(x):
    import struct
    return struct.unpack('<I', struct.pack('<f', x))[0]
def fx(x): return '0x%08x' % f2u(x)
def pk(r): return f"v[{r}:{r+1}]"
def v4(r): return f"v[{r}:{r+3}]"

S_ID='s2'; S_W='s3'; S_RT='s4'; S_CG='s5'; S_LAYER='s6'; S_TGT='s7'
SRD_WS='s[44:47]'; SRD_WQ='s[48:51]'; SRD_WO='s[52:55]'; SRD_OUT='s[56:59]'; SRD_X0='s[60:63]'
S_ONES='s64'
S_EXS='s[70:71]'
S_XIN='s72'; S_XOUT='s73'; S_ST='s74'; S_PQ='s75'; S_KV='s76'; S_Z='s77'
S_SPIN='s78'
S_T0='s8'; S_T1='s9'; S_T2='s10'; S_T3='s11'; S_T4='s12'; S_T5='s13'
S_DM='s14'; S_DS='s15'

V_LANE=255; V_WSK=254; V_WSV=252; V_WSQ=248
V_DSK1=246; V_DSK0=244
V_CNT=239; V_POLL=238; V_ONE=237
V_L16=243; V_H=242
V_TS=241; V_TS2=240
V_GCNT=235; V_POLL2=234; V_TGT=233
V_RANK=232
V_PT=236

WOF = 104
def weave(main, fill, per=2, lead=0):
    out = []; fi = 0
    for k, m in enumerate(main):
        out.append(m)
        if k >= lead:
            for _ in range(per):
                if fi < len(fill): out.append(fill[fi]); fi += 1
    out += fill[fi:]
    return out
def zipmerge(*lists):
    out = []
    n = max(len(l) for l in lists)
    for i in range(n):
        for l in lists:
            if i < len(l): out.append(l[i])
    return out
import re as _re
def unpk(ins):
    m = _re.match(r'v_pk_(mul|add|fma)_f32 v\[(\d+):\d+\], (.*)', ins)
    if not m: return [ins]
    op, d, rest = m.group(1), int(m.group(2)), m.group(3)
    srcs = [int(x) for x in _re.findall(r'v\[(\d+):\d+\]', rest)]
    n = len(srcs)
    hi = [1]*n
    mm = _re.search(r'op_sel_hi:\[([\d,]+)\]', rest)
    if mm: hi = [int(x) for x in mm.group(1).split(',')]
    assert 'op_sel:[' not in rest
    neg = [0]*n
    mm = _re.search(r'neg_lo:\[([\d,]+)\]', rest)
    if mm: neg = [int(x) for x in mm.group(1).split(',')]
    out = []
    for h in range(2):
        ops = []
        for i in range(n):
            r = srcs[i] + (h if hi[i] else 0)
            ops.append(('-' if neg[i] else '') + f'v{r}')
        out.append(f"v_{op}_f32 v{d+h}, " + ', '.join(ops))
    return out
def unpk_all(L):
    o = []
    for x in L: o += unpk(x)
    return o
def lines(s): return [t.strip() for t in s.split('\n') if t.strip()]

class Gen:
    def __init__(self, stop=None, ts=False):
        self.a = Asm(); self.stop = stop; self.ts = ts; self.tsn = 0
    def emit(self, lst):
        for x in lst: self.a(x)

    def stamp(self):
        if not self.ts: return
        n = self.tsn; self.tsn += 1
        self.a(f"""
        s_memrealtime s[80:81]
        s_lshl_b32 s82, {S_LAYER}, 5
        s_add_u32 m0, s82, {n}
        s_waitcnt lgkmcnt(0)
        v_writelane_b32 v{V_TS}, s80, m0
        """)
    def sub(self, i):
        if self.ts: self.a(f"s_memtime s[{86+2*i}:{87+2*i}]")
    def subflush(self, phase, n):
        if not self.ts: return
        a = self.a
        a(f"s_waitcnt lgkmcnt(0)\ns_lshl_b32 s82, {S_LAYER}, 5\ns_add_u32 m0, s82, {phase*8}")
        for i in range(n):
            a(f"v_writelane_b32 v{V_TS2}, s{86+2*i}, m0\ns_add_u32 m0, m0, 1\ns_nop 3")
    def tsdump(self):
        if not self.ts: return
        a = self.a; l = a.label('TD')
        if os.environ.get('DBGTS'):
            sel = [1,2,3,4,5,7,8,10,11,12, 32+4,32+5,32+7,32+8,32+10]
            a(f"""
            s_cmp_eq_u32 {S_ID}, 0
            s_cbranch_scc0 {l}
            s_cmp_eq_u32 {S_W}, 0
            s_cbranch_scc0 {l}
            v_readlane_b32 s80, v{V_TS}, 0
            """)
            for i, k in enumerate(sel):
                lane = k
                a(f"v_readlane_b32 s81, v{V_TS}, {lane}\ns_nop 3\ns_sub_u32 s81, s81, s80\nv_mov_b32 v1, s81\nv_mov_b32 v2, {4*(i+1)}\ns_mov_b64 exec, 1\nglobal_store_dword v2, v1, s[38:39]\ns_mov_b64 exec, -1")
            a(f"{l}:")
            return
        a(f"""
        s_cmp_eq_u32 {S_W}, 0
        s_cbranch_scc0 {l}
        s_lshl_b32 s82, {S_ID}, 9
        s_add_u32 s82, s82, {TS}
        v_lshlrev_b32 v1, 2, v{V_LANE}
        v_add_u32 v1, s82, v1
        buffer_store_dword v{V_TS}, v1, {SRD_WS}, 0 offen
        buffer_store_dword v{V_TS2}, v1, {SRD_WS}, 0 offen offset:256
        {l}:
        """)

    def arrive_core(self, finish=True):
        a = self.a
        if BMODE == 'flat':
            a(f"buffer_atomic_add v{V_ONE}, v{V_CNT}, {SRD_WS}, 0 offen sc1")
            return
        a(f"""
        v_mov_b32 v{V_RANK}, 1
        buffer_atomic_add v{V_RANK}, v{V_CNT}, {SRD_WS}, 0 offen sc0 sc1
        """)
        if finish: self.arrive_finish()
    def arrive_finish(self):
        a = self.a
        if BMODE == 'flag16':
            l = a.label('NL')
            a(f"""
            s_sub_u32 {S_T0}, {S_TGT}, 1
            s_waitcnt vmcnt(0)
            v_cmp_eq_u32 vcc, {S_T0}, v{V_RANK}
            s_cbranch_vccz {l}
            v_mov_b32 v{V_RANK}, {S_TGT}
            v_add_u32 v{V_PT}, {FLG - CNT}, v{V_CNT}
            buffer_store_dword v{V_RANK}, v{V_PT}, {SRD_WS}, 0 offen sc1
            {l}:
            """)
    def arrive(self):
        a = self.a; l = a.label('ARR')
        a(f"""
        s_waitcnt vmcnt(0) lgkmcnt(0)
        s_barrier
        s_add_u32 {S_TGT}, {S_TGT}, 16
        s_cmp_eq_u32 {S_W}, 0
        s_cbranch_scc0 {l}
        s_mov_b64 exec, 1
        """)
        self.arrive_core()
        a(f"""
        s_mov_b64 exec, -1
        {l}:
        """)
    def arrive_group(self):
        a = self.a; l = a.label('ARG')
        a(f"""
        s_waitcnt vmcnt(0) lgkmcnt(0)
        s_barrier
        s_cmp_eq_u32 {S_W}, 0
        s_cbranch_scc0 {l}
        s_mov_b64 exec, 1
        buffer_atomic_add v{V_ONE}, v{V_GCNT}, {SRD_WS}, 0 offen sc1
        s_mov_b64 exec, -1
        {l}:
        """)
    def wait_dual(self):
        a = self.a
        l = a.label('WT'); lp = a.label('POLL'); ld = a.label('PD')
        a(f"""
        s_cmp_eq_u32 {S_W}, 0
        s_cbranch_scc0 {l}
        s_add_u32 {S_T0}, {S_LAYER}, 1
        s_lshl_b32 {S_T0}, {S_T0}, 3
        v_mov_b32 v{V_TGT}, {S_TGT}
        v_mov_b32 v{V_PT}, {S_T0}
        v_cmp_eq_u32 vcc, 16, v{V_LANE}
        v_cndmask_b32 v{V_TGT}, v{V_TGT}, v{V_PT}, vcc
        s_mov_b64 exec, 0x1ffff
        s_mov_b32 {S_SPIN}, 0
        {('s_sleep ' + str(SLEEPG)) if SLEEPG else ''}
        {lp}:
        buffer_load_dword v{V_PT}, v{V_POLL2}, {SRD_WS}, 0 offen sc1
        s_add_u32 {S_SPIN}, {S_SPIN}, 1
        s_waitcnt vmcnt(0)
        v_cmp_gt_u32 vcc, v{V_TGT}, v{V_PT}
        s_cbranch_vccz {ld}
        {('s_sleep ' + str(SLEEP)) if SLEEP else ''}
        s_cmp_lt_u32 {S_SPIN}, 0x200000
        s_cbranch_scc1 {lp}
        {ld}:
        s_mov_b64 exec, -1
        {l}:
        s_barrier
        """)
    def wait(self, l0skip=False, sleep0=None, adr=None, adb=None, adr0=None):
        a = self.a
        l = a.label('WT'); lp = a.label('POLL'); ld = a.label('PD'); ls = a.label('NS')
        SLEEP0 = sleep0 if sleep0 is not None else globals()['SLEEP0']
        if BMODE == 'flat':
            pre = ((f's_cmp_eq_u32 {S_LAYER}, 0' + chr(10) + f's_cbranch_scc1 {lp}' + chr(10)) if l0skip else '') + (f's_sleep {SLEEP0}' if SLEEP0 else '')
        elif BMODE == 'flag16':
            pre = ''
        else:
            la = a.label('AD'); lb = a.label('AD')
            ADR = adr if adr is not None else globals()['ADR']; ADB = adb if adb is not None else globals()['ADB']
            adr0 = adr0 if adr0 is not None else ADR
            pre = f'''s_cmp_eq_u32 {S_LAYER}, 0
            s_cselect_b32 {S_T1}, {adr0}, {ADR}
            s_waitcnt vmcnt(0)
            v_readfirstlane_b32 {S_T0}, v{V_RANK}
            s_and_b32 {S_T0}, {S_T0}, 15
            s_sub_u32 {S_T0}, 15, {S_T0}
            s_mul_i32 {S_T0}, {S_T0}, {S_T1}
            s_add_u32 {S_T0}, {S_T0}, {ADB}
            {la}:
            s_sleep 1
            s_sub_u32 {S_T0}, {S_T0}, 1
            s_cmp_gt_i32 {S_T0}, 0
            s_cbranch_scc1 {la}'''
        a(f"""
        s_cmp_eq_u32 {S_W}, 0
        s_cbranch_scc0 {l}
        s_mov_b64 exec, 0xffff
        s_mov_b32 {S_SPIN}, 0
        {pre}
        {lp}:
        buffer_load_dword v{V_PT}, v{V_POLL}, {SRD_WS}, 0 offen {('offset:0' if BMODE != 'flag16' else '')} sc1
        s_add_u32 {S_SPIN}, {S_SPIN}, 1
        s_waitcnt vmcnt(0)
        v_cmp_gt_u32 vcc, {S_TGT}, v{V_PT}
        s_cbranch_vccz {ld}
        {('s_sleep ' + str(SLEEP)) if SLEEP else ''}
        s_cmp_lt_u32 {S_SPIN}, 0x200000
        s_cbranch_scc1 {lp}
        {ld}:
        s_mov_b64 exec, -1
        {l}:
        s_barrier
        """)

    def reduce_h(self, r, t):
        return lines(f"""
        v_mov_b32 v{t}, v{r}
        v_permlane16_swap_b32 v{r}, v{t}
        v_add_f32 v{r}, v{r}, v{t}
        v_mov_b32 v{t}, v{r}
        v_permlane32_swap_b32 v{r}, v{t}
        v_add_f32 v{r}, v{r}, v{t}
        """)
    def reduce16(self, r):
        return lines(f"""
        v_add_f32_dpp v{r}, v{r}, v{r} quad_perm:[1,0,3,2] row_mask:0xf bank_mask:0xf
        v_add_f32_dpp v{r}, v{r}, v{r} quad_perm:[2,3,0,1] row_mask:0xf bank_mask:0xf
        v_add_f32_dpp v{r}, v{r}, v{r} row_half_mirror row_mask:0xf bank_mask:0xf
        v_add_f32_dpp v{r}, v{r}, v{r} row_mirror row_mask:0xf bank_mask:0xf
        """)
    def ln_final1(self, sm, sq, r_out, mr_out, t):
        return lines(f"""
        v_mul_f32 v{t}, {fx(1/512)}, v{sm}
        v_mul_f32 v{t+1}, {fx(1/512)}, v{sq}
        v_fma_f32 v{t+1}, -v{t}, v{t}, v{t+1}
        v_cvt_pk_bf16_f32 v{t+2}, v{t}, v{t+1}
        v_lshlrev_b32 v{t}, 16, v{t+2}
        v_and_b32 v{t+1}, 0xffff0000, v{t+2}
        v_add_f32 v{t+1}, {fx(1e-5)}, v{t+1}
        v_cvt_pk_bf16_f32 v{t+1}, v{t+1}, v{t+1}
        v_and_b32 v{t+1}, 0xffff0000, v{t+1}
        v_sqrt_f32 v{t+1}, v{t+1}
        v_cvt_pk_bf16_f32 v{t+1}, v{t+1}, v{t+1}
        v_and_b32 v{t+1}, 0xffff0000, v{t+1}
        v_rcp_f32 v{r_out}, v{t+1}
        v_mul_f32 v{mr_out}, v{t}, v{r_out}
        """)

    def prologue(self):
        a = self.a
        a(f"""
        s_cmp_ge_u32 {S_ID}, 256
        s_cbranch_scc1 L_EXIT
        s_getpc_b64 s[66:67]
        s_load_dwordx16 s[16:31], s[0:1], 0
        s_load_dwordx8 s[32:39], s[0:1], 64
        s_load_dwordx2 s[40:41], s[0:1], 96
        {EARLYPF}
        v_and_b32 v{V_LANE}, 63, v0
        v_lshrrev_b32 v1, 6, v0
        v_and_b32 v{V_L16}, 15, v0
        v_bfe_u32 v{V_H}, v0, 4, 2
        v_readfirstlane_b32 {S_W}, v1
        s_and_b32 {S_T0}, {S_ID}, 7
        s_lshl_b32 {S_T0}, {S_T0}, 2
        s_lshr_b32 {S_T1}, {S_ID}, 6
        s_add_u32 {S_RT}, {S_T0}, {S_T1}
        s_lshr_b32 {S_CG}, {S_ID}, 3
        s_and_b32 {S_CG}, {S_CG}, 7
        s_mov_b32 {S_LAYER}, 0
        s_mov_b32 {S_TGT}, 0
        s_mov_b32 {S_ONES}, 0x3f803f80
        v_mov_b32 v{V_ONE}, 1
        s_and_b32 {S_T0}, {S_ID}, 15
        s_lshl_b32 {S_T0}, {S_T0}, 10
        v_mov_b32 v{V_CNT}, {S_T0}
        v_lshlrev_b32 v{V_POLL}, 10, v{V_LANE}
        v_add_u32 v{V_POLL}, {FLG if BMODE == 'flag16' else CNT}, v{V_POLL}
        s_waitcnt lgkmcnt(0)
        s_mov_b32 s60, s16
        s_and_b32 s61, s17, 0xffff
        s_mov_b32 s62, {2048*512*2}
        s_mov_b32 s63, 0x20000
        """)
    def prologue2(self):
        a = self.a
        a(f"""
        s_mov_b32 s44, s40
        s_and_b32 s45, s41, 0xffff
        s_mov_b32 s46, {WS_SIZE}
        s_mov_b32 s47, 0x20000
        s_mov_b32 s48, s32
        s_and_b32 s49, s33, 0xffff
        s_mov_b32 s50, {512*1536*2}
        s_mov_b32 s51, 0x20000
        s_mov_b32 s52, s34
        s_and_b32 s53, s35, 0xffff
        s_mov_b32 s54, {512*512*2}
        s_mov_b32 s55, 0x20000
        s_mov_b32 s56, s36
        s_and_b32 s57, s37, 0xffff
        s_mov_b32 s58, {2048*512*2}
        s_mov_b32 s59, 0x20000
        s_lshl_b32 {S_T0}, {S_RT}, 10
        s_add_u32 {S_T0}, {S_T0}, {GCNT}
        v_mov_b32 v{V_GCNT}, {S_T0}
        v_cmp_eq_u32 vcc, 16, v{V_LANE}
        v_cndmask_b32 v{V_POLL2}, v{V_POLL}, v{V_GCNT}, vcc
        """)

    def dma_weight(self, srd, rowpitch, colbyte, lds_base, swz, t, defer=False):
        a = self.a
        a(f"""
        v_lshrrev_b32 v{t}, 3, v{V_LANE}
        v_mul_u32_u24 v{t}, {rowpitch}, v{t}
        v_bfe_u32 v{t+1}, v{V_LANE}, 1, 2
        v_bfe_u32 v{t+2}, v{V_LANE}, 4, 1
        """)
        if swz == 'x':
            a(f"s_and_b32 {S_T0}, {S_W}, 1\ns_lshl_b32 {S_T0}, {S_T0}, 1\nv_or_b32 v{t+2}, {S_T0}, v{t+2}")
        else:
            a(f"v_lshlrev_b32 v{t+2}, 1, v{t+2}")
        a(f"""
        v_xor_b32 v{t+1}, v{t+1}, v{t+2}
        v_lshl_add_u32 v{t}, v{t+1}, 5, v{t}
        v_and_b32 v{t+1}, 1, v{V_LANE}
        v_lshl_add_u32 v{t}, v{t+1}, 4, v{t}
        s_lshl_b32 {S_T0}, {S_CG}, 7
        s_add_u32 {S_T0}, {S_T0}, {colbyte}
        v_add_u32 v{t}, {S_T0}, v{t}
        s_mul_i32 {S_DS}, {S_W}, {8*rowpitch}
        s_lshl_b32 {S_DM}, {S_W}, 10
        s_add_u32 {S_DM}, {S_DM}, {lds_base}
        """)
        groups = [lines(f"""
            s_mov_b32 m0, {S_DM}
            s_add_u32 {S_DM}, {S_DM}, 4096
            buffer_load_dwordx4 v{t}, {srd}, {S_DS} offen lds
            s_add_u32 {S_DS}, {S_DS}, {32*rowpitch}
            """) for i in range(16)]
        if defer: return groups
        for g in groups: self.emit(g)

    def wread_lists(self, lds_base, abase, part, t, o):
        rd = lines(f"""
        v_lshrrev_b32 v{t}, 2, v{V_L16}
        v_lshl_add_u32 v{t+1}, v{V_H}, 3, v{t}
        v_lshlrev_b32 v{t+1}, 7, v{t+1}
        v_and_b32 v{t+2}, 3, v{V_L16}
        v_lshl_add_u32 v{t+1}, v{t+2}, 3, v{t+1}
        v_add_u32 v{t+1}, {lds_base}, v{t+1}
        v_lshrrev_b32 v{t}, 1, v{t}
        v_and_b32 v{t+2}, 1, v{V_H}
        v_lshl_or_b32 v{t}, v{t+2}, 1, v{t}
        v_xor_b32 v{t}, {S_W}, v{t}
        v_lshl_add_u32 v{t+3}, v{t}, 5, v{t+1}
        """)
        for i in range(4): rd.append(f"v_mov_b32 v{o+i}, {S_ONES}")
        for ks in range(16):
            rd.append(f"ds_read_b64_tr_b16 a[{abase+4*ks}:{abase+4*ks+1}], v{t+3} offset:{ks*4096}")
            rd.append(f"ds_read_b64_tr_b16 a[{abase+4*ks+2}:{abase+4*ks+3}], v{t+3} offset:{ks*4096+512}")
        mf = []
        for ks in range(16):
            c = '0' if ks == 0 else v4(o+4)
            w = f"a[{abase+4*ks}:{abase+4*ks+3}]"
            if part == 0: mf.append(f"v_mfma_f32_16x16x32_bf16 {v4(o+4)}, {w}, {v4(o)}, {c}")
            else: mf.append(f"v_mfma_f32_16x16x32_bf16 {v4(o+4)}, {v4(o)}, {w}, {c}")
        if part == 0: mf += [f"v_mov_b32 v{V_WSQ+i}, v{o+4+i}" for i in range(4)]
        elif part == 1: mf.append(f"v_mov_b32 v{V_WSK}, v{o+4}")
        else: mf.append(f"v_mov_b32 v{V_WSV}, v{o+4}")
        return rd, mf

    def p0(self):
        a = self.a
        a(f"""
        v_lshrrev_b32 v1, 3, v0
        s_lshl_b32 {S_T0}, {S_RT}, 16
        s_lshl_b32 {S_T1}, {S_CG}, 7
        s_add_u32 {S_T0}, {S_T0}, {S_T1}
        v_lshlrev_b32 v2, 10, v1
        v_and_b32 v3, 7, v0
        v_lshl_add_u32 v2, v3, 4, v2
        v_add_u32 v2, {S_T0}, v2
        buffer_load_dwordx4 v[10:13], v2, {SRD_X0}, 0 offen
        v_add_u32 v4, 0x8000, v2
        buffer_load_dwordx4 v[14:17], v4, {SRD_X0}, 0 offen
        s_and_b32 {S_T0}, {S_ID}, 63
        s_lshl_b32 {S_T0}, {S_T0}, 2
        s_add_u32 {S_T0}, {S_T0}, {S_W}
        s_lshl_b32 {S_T0}, {S_T0}, 3
        s_lshr_b32 {S_T1}, {S_ID}, 6
        s_lshl_b32 {S_T1}, {S_T1}, 1
        s_add_u32 {S_T0}, {S_T0}, {S_T1}
        s_lshl_b32 {S_T0}, {S_T0}, 10
        v_lshlrev_b32 v5, 4, v{V_LANE}
        v_add_u32 v5, {S_T0}, v5
        buffer_load_dwordx4 v[18:21], v5, {SRD_X0}, 0 offen
        buffer_load_dwordx4 v[22:25], v5, {SRD_X0}, 0 offen offset:1024
        s_lshl_b32 {S_T0}, {S_ID}, 9
        v_lshlrev_b32 v6, 1, v0
        v_add_u32 v6, {S_T0}, v6
        global_load_ushort v26, v6, s[18:19]
        global_load_ushort v27, v6, s[20:21]
        global_load_ushort v28, v6, s[22:23]
        global_load_ushort v29, v6, s[24:25]
        v_lshrrev_b32 v7, 7, v0
        s_lshl_b32 {S_T0}, {S_ID}, 1
        v_add_lshl_u32 v7, v7, {S_T0}, 1
        global_load_ushort v30, v7, s[26:27]
        s_lshl_b32 {S_T0}, {S_ID}, 2
        v_mov_b32 v7, {S_T0}
        global_load_dword v{V_DSK0}, v7, s[28:29]
        """)
        self.prologue2()
        a(f"""
        v_and_b32 v8, 15, v{V_LANE}
        v_lshlrev_b32 v8, 20, v8
        buffer_load_dword v197, v8, {SRD_WS}, 0 offen
        """)
        lw = a.label('WT'); lw2 = a.label('WT')
        a(f"""
        s_and_b32 {S_T2}, {S_ID}, 7
        s_cmp_lt_u32 {S_ID}, 192
        s_cbranch_scc0 {lw}
        s_lshr_b32 {S_T3}, {S_ID}, 3
        s_mul_i32 {S_T0}, {S_T2}, {64*3072}
        s_lshl_b32 {S_T1}, {S_T3}, 7
        s_add_u32 {S_T0}, {S_T0}, {S_T1}
        v_mul_u32_u24 v8, 3072, v1
        v_lshl_add_u32 v8, v3, 4, v8
        v_add_u32 v8, {S_T0}, v8
        buffer_load_dwordx4 v[200:203], v8, {SRD_WQ}, 0 offen
        v_add_u32 v8, {32*3072}, v8
        buffer_load_dwordx4 v[204:207], v8, {SRD_WQ}, 0 offen
        s_branch {lw2}
        {lw}:
        s_sub_u32 {S_T3}, {S_ID}, 192
        s_lshr_b32 {S_T3}, {S_T3}, 3
        s_lshl_b32 {S_T0}, {S_T2}, 16
        s_lshl_b32 {S_T1}, {S_T3}, 7
        s_add_u32 {S_T0}, {S_T0}, {S_T1}
        v_lshlrev_b32 v8, 10, v1
        v_lshl_add_u32 v8, v3, 4, v8
        v_add_u32 v8, {S_T0}, v8
        buffer_load_dwordx4 v[200:203], v8, {SRD_WO}, 0 offen
        v_add_u32 v8, 0x8000, v8
        buffer_load_dwordx4 v[204:207], v8, {SRD_WO}, 0 offen
        {lw2}:
        """)
        l = a.label('CI')
        a(f"""
        s_cmp_lt_u32 {S_ID}, 16
        s_cbranch_scc0 {l}
        s_cmp_eq_u32 {S_W}, 0
        s_cbranch_scc0 {l}
        s_mov_b64 exec, 1
        v_mov_b32 v8, 0
        buffer_store_dword v8, v{V_CNT}, {SRD_WS}, 0 offen sc1
        v_add_u32 v9, {FLG - CNT}, v{V_CNT}
        buffer_store_dword v8, v9, {SRD_WS}, 0 offen sc1
        s_mov_b64 exec, -1
        {l}:
        """)
        IDX = 180
        a(f"v_lshlrev_b32 v31, 3, v0\nv_sub_u32 v31, 2047, v31\ns_mov_b32 {S_T5}, {L_KD}")
        chains = []
        for i in range(0, 10, 2):
            t = 32 + 4*(i//2)
            c = lines(f"""
            v_subrev_u32 v{t}, {i}, v31
            v_subrev_u32 v{t+1}, {i+1}, v31
            v_max_i32 v{t}, 0, v{t}
            v_max_i32 v{t+1}, 0, v{t+1}
            v_cvt_f32_i32 v{t}, v{t}
            v_cvt_f32_i32 v{t+1}, v{t+1}
            v_cvt_pk_bf16_f32 v{t+2}, v{t}, v{t+1}
            v_lshlrev_b32 v{t}, 16, v{t+2}
            v_and_b32 v{t+1}, 0xffff0000, v{t+2}
            v_cvt_u32_f32 v{t}, v{t}
            v_cvt_u32_f32 v{t+1}, v{t+1}
            v_lshrrev_b32 v{t+2}, 2, v{t}
            v_lshrrev_b32 v{t+3}, 2, v{t+1}
            v_add_u32 v{t+2}, 384, v{t+2}
            v_add_u32 v{t+3}, 384, v{t+3}
            v_min_u32 v{t}, v{t}, v{t+2}
            v_min_u32 v{t+1}, v{t+1}, v{t+3}
            v_lshrrev_b32 v{t+2}, 5, v{t}
            v_lshrrev_b32 v{t+3}, 5, v{t+1}
            v_add_u32 v{t}, v{t}, v{t+2}
            v_add_u32 v{t+1}, v{t+1}, v{t+3}
            v_lshl_add_u32 v{IDX+i}, v{t}, 2, {S_T5}
            """)
            if i + 1 < 9: c.append(f"v_lshl_add_u32 v{IDX+i+1}, v{t+1}, 2, {S_T5}")
            chains.append(c)
        self.emit(zipmerge(*chains))
        a(f"""
        v_mul_u32_u24 v8, 144, v1
        v_lshl_add_u32 v8, v3, 4, v8
        v_add_u32 v9, {L_TW}, v8
        v_add_u32 v8, {L_TA}, v8
        s_waitcnt vmcnt(11)
        ds_write_b128 v8, v[10:13]
        ds_write_b128 v8, v[14:17] offset:{32*144}
        s_waitcnt vmcnt(9)
        """)
        for r in range(32, 36): a(f"v_mov_b32 v{r}, 0")
        for j in range(4):
            for row in range(2):
                b = 18 + 4*row; sm = 32 + 2*row
                a(f"v_dot2_f32_bf16 v{sm}, v{b+j}, {S_ONES}, v{sm}\nv_dot2_f32_bf16 v{sm+1}, v{b+j}, v{b+j}, v{sm+1}")
        self.emit(zipmerge(*[self.reduce16(r) for r in range(32, 36)]))
        self.emit(zipmerge(*[self.reduce_h(r, 36 + (r-32)) for r in range(32, 36)]))
        a(f"""
        s_lshl_b32 {S_T0}, {S_W}, 4
        s_add_u32 {S_T0}, {S_T0}, {L_STG}
        v_mov_b32 v36, {S_T0}
        ds_write_b128 v36, v[32:35]
        s_waitcnt vmcnt(0)
        ds_write_b128 v9, v[200:203]
        ds_write_b128 v9, v[204:207] offset:{32*144}
        s_cmp_lt_u32 {S_ID}, 16
        s_cbranch_scc0 L_CI2
        s_cmp_eq_u32 {S_W}, 0
        s_cbranch_scc0 L_CI2
        s_mov_b64 exec, 1
        v_mov_b32 v37, 0
        global_atomic_add v37, v{V_ONE}, s[38:39] sc1
        s_mov_b64 exec, -1
        L_CI2:
        v_lshrrev_b32 v9, 2, v{V_L16}
        v_lshl_add_u32 v9, v{V_H}, 3, v9
        v_mul_u32_u24 v9, 144, v9
        v_and_b32 v2, 3, v{V_L16}
        v_lshl_add_u32 v9, v2, 3, v9
        s_lshl_b32 {S_T0}, {S_W}, 5
        s_add_u32 {S_T0}, {S_T0}, {L_TA}
        v_add_u32 v9, {S_T0}, v9
        s_lshl_b32 {S_T0}, {S_W}, 4
        v_add_u32 v2, {S_T0}, v{V_L16}
        v_mul_u32_u24 v2, 144, v2
        v_lshl_add_u32 v2, v{V_H}, 4, v2
        v_add_u32 v2, {L_TB}, v2
        s_waitcnt lgkmcnt(0)
        s_barrier
        ds_read_b64_tr_b16 v[10:11], v9
        ds_read_b64_tr_b16 v[12:13], v9 offset:{4*144}
        ds_read_b64_tr_b16 v[14:15], v9 offset:{32*144}
        ds_read_b64_tr_b16 v[16:17], v9 offset:{36*144}
        """)
        lz = a.label('WF'); lz2 = a.label('WF')
        a(f"""
        s_cmp_lt_u32 {S_ID}, 192
        s_cbranch_scc0 {lz}
        v_add_u32 v8, {L_TW - L_TA}, v9
        ds_read_b64_tr_b16 v[200:201], v8
        ds_read_b64_tr_b16 v[202:203], v8 offset:{4*144}
        ds_read_b64_tr_b16 v[204:205], v8 offset:{32*144}
        ds_read_b64_tr_b16 v[206:207], v8 offset:{36*144}
        s_lshr_b32 {S_T0}, {S_T3}, 3
        s_lshl_b32 {S_T0}, {S_T0}, 19
        s_and_b32 {S_T1}, {S_T3}, 7
        s_lshl_b32 {S_T1}, {S_T1}, 2
        s_add_u32 {S_T1}, {S_T1}, {S_W}
        s_lshl_b32 {S_T1}, {S_T1}, 14
        s_add_u32 {S_T0}, {S_T0}, {S_T1}
        s_lshl_b32 {S_T1}, {S_T2}, 11
        s_add_u32 {S_T0}, {S_T0}, {S_T1}
        s_add_u32 {S_T0}, {S_T0}, {WQF}
        s_branch {lz2}
        {lz}:
        v_lshrrev_b32 v8, 2, v{V_L16}
        v_lshrrev_b32 v7, 1, v{V_H}
        v_lshl_add_u32 v8, v7, 2, v8
        s_lshl_b32 {S_T0}, {S_W}, 4
        v_add_u32 v8, {S_T0}, v8
        v_mul_u32_u24 v8, 144, v8
        v_and_b32 v7, 1, v{V_H}
        v_lshl_add_u32 v8, v7, 5, v8
        v_and_b32 v7, 3, v{V_L16}
        v_lshl_add_u32 v8, v7, 3, v8
        v_add_u32 v8, {L_TW}, v8
        ds_read_b64_tr_b16 v[200:201], v8
        ds_read_b64_tr_b16 v[202:203], v8 offset:{8*144}
        ds_read_b64_tr_b16 v[204:205], v8 offset:64
        ds_read_b64_tr_b16 v[206:207], v8 offset:{8*144+64}
        s_lshl_b32 {S_T0}, {S_T3}, 16
        s_lshl_b32 {S_T1}, {S_T2}, 2
        s_add_u32 {S_T1}, {S_T1}, {S_W}
        s_lshl_b32 {S_T1}, {S_T1}, 11
        s_add_u32 {S_T0}, {S_T0}, {S_T1}
        s_add_u32 {S_T0}, {S_T0}, {WOFG}
        {lz2}:
        v_lshlrev_b32 v7, 4, v{V_LANE}
        v_add_u32 v7, {S_T0}, v7
        v_mul_u32_u24 v9, 144, v1
        v_lshl_add_u32 v9, v3, 4, v9
        v_add_u32 v9, {L_TB}, v9
        s_lshl_b32 {S_T0}, {S_CG}, 18
        s_lshl_b32 {S_T1}, {S_RT}, 7
        s_add_u32 {S_T0}, {S_T0}, {S_T1}
        s_add_u32 {S_T0}, {S_T0}, {XT[0]}
        v_lshlrev_b32 v4, 12, v1
        v_lshl_add_u32 v4, v3, 4, v4
        v_add_u32 v4, {S_T0}, v4
        v_add_u32 v5, 0x20000, v4
        s_waitcnt lgkmcnt(0)
        ds_write_b128 v2, v[10:13]
        ds_write_b128 v2, v[14:17] offset:64
        buffer_store_dwordx4 v[200:203], v7, {SRD_WS}, 0 offen sc1
        buffer_store_dwordx4 v[204:207], v7, {SRD_WS}, 0 offen offset:1024 sc1
        v_mov_b32 v6, 0
        s_waitcnt lgkmcnt(0)
        s_barrier
        ds_read_b128 v[10:13], v9
        ds_read_b128 v[14:17], v9 offset:{32*144}
        s_waitcnt lgkmcnt(0)
        buffer_store_dwordx4 v[10:13], v4, {SRD_WS}, 0 offen sc1
        buffer_store_dwordx4 v[14:17], v5, {SRD_WS}, 0 offen sc1
        global_load_dword v{V_PT}, v6, s[38:39] sc1
        """)
        l1 = a.label('Z1'); l2 = a.label('Z2')
        a(f"""
        s_cmp_eq_u32 {S_W}, 1
        s_cbranch_scc0 {l1}
        s_mov_b32 exec_lo, -1
        s_mov_b32 exec_hi, 0xf
        v_mov_b32 v10, 0
        v_mov_b32 v11, 0
        v_mov_b32 v12, 0
        v_mov_b32 v13, 0
        s_mul_i32 {S_T0}, {S_ID}, 576
        s_add_u32 {S_T0}, {S_T0}, {ZR}
        v_lshlrev_b32 v4, 4, v{V_LANE}
        v_add_u32 v4, {S_T0}, v4
        buffer_store_dwordx4 v[10:13], v4, {SRD_WS}, 0 offen sc1
        s_mov_b64 exec, -1
        {l1}:
        s_cmp_eq_u32 {S_W}, 2
        s_cbranch_scc0 {l2}
        s_mov_b64 exec, 0xf
        v_lshlrev_b32 v4, 4, v{V_LANE}
        v_add_u32 v5, {L_STG}, v4
        ds_read_b128 v[10:13], v5
        s_lshl_b32 {S_T0}, {S_ID}, 6
        s_add_u32 {S_T0}, {S_T0}, {ST1}
        v_add_u32 v4, {S_T0}, v4
        s_waitcnt lgkmcnt(0)
        buffer_store_dwordx4 v[10:13], v4, {SRD_WS}, 0 offen sc1
        s_mov_b64 exec, -1
        {l2}:
        """)
        self.stamp()
        self.kgen_consts()
        a("s_waitcnt lgkmcnt(0)\ns_barrier")
        self.sub(0)
        self.sub(1)
        self.kgen_main(IDX)
        self.sub(6)
        self.subflush(3, 7)
        self.stamp()

    def arrive_first(self):
        a = self.a
        la = a.label('ARR1'); lp = a.label('INITP'); ld = a.label('INITD')
        a(f"""
        s_waitcnt vmcnt(0)
        s_barrier
        s_add_u32 {S_TGT}, {S_TGT}, 16
        s_cmp_eq_u32 {S_W}, 0
        s_cbranch_scc0 {la}
        s_mov_b64 exec, 1
        s_mov_b32 {S_SPIN}, 0
        v_mov_b32 v6, 0
        {lp}:
        v_cmp_le_u32 vcc, 16, v{V_PT}
        s_cbranch_vccnz {ld}
        global_load_dword v{V_PT}, v6, s[38:39] sc1
        s_add_u32 {S_SPIN}, {S_SPIN}, 1
        s_waitcnt vmcnt(0)
        s_cmp_lt_u32 {S_SPIN}, 0x200000
        s_cbranch_scc1 {lp}
        {ld}:
        """)
        self.arrive_core(finish=False)
        a(f"""
        s_mov_b64 exec, -1
        {la}:
        """)

    def cexp(self, p, dr, di, t):
        return lines(f"""
        v_mul_f32 v{t}, {fx(p)}, v40
        v_mul_f32 v{t+1}, {fx(p)}, v41
        v_exp_f32 v{t}, v{t}
        v_fract_f32 v{t+1}, v{t+1}
        v_cos_f32 v{t+2}, v{t+1}
        v_sin_f32 v{t+1}, v{t+1}
        v_mul_f32 v{dr}, v{t}, v{t+2}
        v_mul_f32 v{di}, v{t}, v{t+1}
        """)

    def kgen_consts(self):
        a = self.a
        a(f"""
        v_and_b32 v{V_DSK1}, 0xffff0000, v{V_DSK0}
        v_lshlrev_b32 v{V_DSK0}, 16, v{V_DSK0}
        v_lshlrev_b32 v26, 16, v26
        v_lshlrev_b32 v30, 16, v30
        v_lshlrev_b32 v27, 16, v27
        v_lshlrev_b32 v28, 16, v28
        v_mul_f32 v30, {fx(LOG2E)}, v30
        v_mul_f32 v26, {fx(LOG2E)}, v26
        v_lshlrev_b32 v29, 16, v29
        v_exp_f32 v30, v30
        v_exp_f32 v26, v26
        v_cvt_pk_bf16_f32 v31, v30, v26
        v_lshlrev_b32 v30, 16, v31
        v_and_b32 v26, 0xffff0000, v31
        v_mul_f32 v40, v26, v30
        v_mul_f32 v41, v27, v30
        v_mul_f32 v42, v28, v30
        v_mul_f32 v43, v29, v30
        v_mul_f32 v40, {fx(-LOG2E)}, v40
        v_mul_f32 v41, {fx(1/(2*math.pi))}, v41
        v_add_f32 v42, v42, v42
        v_add_f32 v43, v43, v43
        v_rndne_f32 v31, v41
        v_sub_f32 v41, v41, v31
        """)
        ch = []
        for i, p in enumerate((256.0, 512.0, 1536.0)):
            t = 52 + 6*i; d = 44 + 2*i
            c = self.cexp(p, t+3, t+4, t)
            c += lines(f"""
            v_mul_f32 v{d}, v42, v{t+3}
            v_mul_f32 v{d+1}, v42, v{t+4}
            v_fma_f32 v{d}, -v43, v{t+4}, v{d}
            v_fma_f32 v{d+1}, v43, v{t+3}, v{d+1}
            """)
            ch.append(c)
        self.emit(zipmerge(*ch))
        a(f"""
        v_lshrrev_b32 v1, 7, v0
        v_mul_u32_u24 v1, 5120, v1
        v_and_b32 v2, 127, v0
        v_lshl_add_u32 v1, v2, 2, v1
        v_add_u32 v1, {L_CT}, v1
        """)
        for q in range(10): a(f"ds_write_b32 v1, v{40+q} offset:{q*512}")

    def kgen_main(self, IDX):
        a = self.a
        a(f"""
        s_lshr_b32 {S_T0}, {S_W}, 1
        s_mul_i32 {S_T0}, {S_T0}, 5120
        s_and_b32 {S_T1}, {S_W}, 1
        s_lshl_b32 {S_T1}, {S_T1}, 8
        s_add_u32 {S_T0}, {S_T0}, {S_T1}
        s_add_u32 {S_T0}, {S_T0}, {L_CT}
        v_lshlrev_b32 v1, 4, v{V_H}
        v_add_u32 v1, {S_T0}, v1
        v_cvt_f32_u32 v2, v{V_L16}
        v_mov_b32 v3, v2
        """)
        ACC = 160
        def kstep(B, off, first):
            Q = lambda q: B + 4*q
            FR, FI, T0, T1 = B+40, B+44, B+48, B+52
            A0, A1, F0F, F2F = B+56, B+60, B+64, B+68
            rd = [f"ds_read_b128 {v4(Q(q))}, v1 offset:{q*512 + off}" for q in range(10)]
            L = []
            for h in (0, 2):
                L.append(f"v_pk_mul_f32 {pk(T0+h)}, {pk(Q(0)+h)}, v[2:3]")
                L.append(f"v_pk_mul_f32 {pk(T1+h)}, {pk(Q(1)+h)}, v[2:3]")
            for i in range(4):
                L.append(f"v_exp_f32 v{T0+i}, v{T0+i}")
            for i in range(4):
                L.append(f"v_cos_f32 v{FR+i}, v{T1+i}")
                L.append(f"v_sin_f32 v{FI+i}, v{T1+i}")
            for h in (0, 2):
                L.append(f"v_pk_mul_f32 {pk(FR+h)}, {pk(FR+h)}, {pk(T0+h)}")
                L.append(f"v_pk_mul_f32 {pk(FI+h)}, {pk(FI+h)}, {pk(T0+h)}")
            def packF(dst):
                L.extend([f"v_cvt_pk_bf16_f32 v{dst}, v{FR}, v{FR+1}", f"v_cvt_pk_bf16_f32 v{dst+1}, v{FR+2}, v{FR+3}",
                          f"v_cvt_pk_bf16_f32 v{dst+2}, v{FI}, v{FI+1}", f"v_cvt_pk_bf16_f32 v{dst+3}, v{FI+2}, v{FI+3}"])
            def sq():
                for h in (0, 2):
                    L.append(f"v_pk_mul_f32 {pk(T0+h)}, {pk(FI+h)}, {pk(FI+h)}")
                    L.append(f"v_pk_mul_f32 {pk(T1+h)}, {pk(FR+h)}, {pk(FI+h)}")
                for h in (0, 2):
                    L.append(f"v_pk_fma_f32 {pk(FR+h)}, {pk(FR+h)}, {pk(FR+h)}, {pk(T0+h)} neg_lo:[0,0,1] neg_hi:[0,0,1]")
                    L.append(f"v_pk_add_f32 {pk(FI+h)}, {pk(T1+h)}, {pk(T1+h)}")
            def gmul(q, dst):
                cr, ci = Q(q), Q(q+1)
                for h in (0, 2):
                    L.append(f"v_pk_mul_f32 {pk(T0+h)}, {pk(ci+h)}, {pk(FI+h)}")
                    L.append(f"v_pk_mul_f32 {pk(T1+h)}, {pk(ci+h)}, {pk(FR+h)}")
                for h in (0, 2):
                    L.append(f"v_pk_fma_f32 {pk(T0+h)}, {pk(cr+h)}, {pk(FR+h)}, {pk(T0+h)} neg_lo:[0,0,1] neg_hi:[0,0,1]")
                    L.append(f"v_pk_fma_f32 {pk(T1+h)}, {pk(cr+h)}, {pk(FI+h)}, {pk(T1+h)} neg_lo:[1,0,1] neg_hi:[1,0,1]")
                L.extend([f"v_cvt_pk_bf16_f32 v{dst}, v{T0}, v{T0+1}", f"v_cvt_pk_bf16_f32 v{dst+1}, v{T0+2}, v{T0+3}",
                          f"v_cvt_pk_bf16_f32 v{dst+2}, v{T1}, v{T1+1}", f"v_cvt_pk_bf16_f32 v{dst+3}, v{T1+2}, v{T1+3}"])
            def mm(T, A, F):
                c = '0' if first else v4(ACC+4*T)
                L.append(f"v_mfma_f32_16x16x32_bf16 {v4(ACC+4*T)}, {v4(A)}, {v4(F)}, {c}")
            packF(F0F); sq(); sq(); packF(F2F); sq(); sq()
            gmul(2, A0); mm(0, A0, F0F); gmul(4, A1); mm(1, A1, F0F)
            sq(); sq()
            gmul(6, A0); mm(2, A0, F2F); gmul(8, A1); mm(3, A1, F2F)
            return rd, L
        BA, BB = 8, 84
        def sprinkle(L, groups):
            step = max(1, len(L) // (len(groups) + 1)); out = []
            for i, x in enumerate(L):
                out.append(x)
                if groups and (i + 1) % step == 0: out += groups.pop(0)
            for g in groups: out += g
            return out
        for i in range(16): a(f"v_mov_b32 v{ACC+i}, 0")
        lk = a.label('KG'); lk2 = a.label('KG')
        a(f"s_mov_b32 {S_T4}, 0\n{lk}:")
        rdA, LA = kstep(BA, 0, False)
        rdB, LB = kstep(BB, 64, False)
        self.emit(rdA[:2] + rdB[:2] + rdA[2:] + rdB[2:])
        a("s_waitcnt lgkmcnt(15)")
        n_pre = 4+4+8+4 + 4+16+4+16
        self.emit(zipmerge(LA[:n_pre], LB[:n_pre]))
        a("s_waitcnt lgkmcnt(0)")
        self.emit(zipmerge(LA[n_pre:], LB[n_pre:]))
        a(f"v_add_u32 v1, 128, v1\ns_cmp_eq_u32 {S_T4}, 0\ns_cbranch_scc0 {lk2}")
        self.arrive_first()
        self.stamp()
        a(f"s_mov_b32 {S_T4}, 1\ns_branch {lk}\n{lk2}:\ns_nop 7")
        lf = a.label('AF')
        a(f"s_cmp_eq_u32 {S_W}, 0\ns_cbranch_scc0 {lf}\ns_mov_b64 exec, 1")
        self.arrive_finish()
        a(f"s_mov_b64 exec, -1\n{lf}:")
        self.sub(2)
        a(f"""
        s_lshr_b32 {S_T0}, {S_W}, 1
        s_mul_i32 {S_T0}, {S_T0}, 4224
        s_and_b32 {S_T1}, {S_W}, 1
        s_mul_i32 {S_T1}, {S_T1}, 8448
        s_add_u32 {S_T0}, {S_T0}, {S_T1}
        s_add_u32 {S_T0}, {S_T0}, {L_KD}
        v_mul_u32_u24 v1, 264, v{V_H}
        v_lshl_add_u32 v1, v{V_L16}, 2, v1
        v_add_u32 v1, {S_T0}, v1
        """)
        for T in range(4):
            for r in range(4):
                a(f"ds_write_b32 v1, v{ACC+4*T+r} offset:{1056*T+64*r+4*(r>>1)}")
        a("s_waitcnt vmcnt(0) lgkmcnt(0)\ns_barrier")
        self.sub(3)
        VAL = 8
        for part in range(2):
            for ch in range(2):
                for i in range(9):
                    a(f"ds_read_b32 v{VAL+18*part+9*ch+i}, v{IDX+i} offset:{8448*part + 4224*ch}")
        a(f"""
        v_cmp_ne_u32 vcc, 255, v0
        v_lshlrev_b32 v1, 4, v0
        v_add_u32 v1, {L_KC + 8}, v1
        s_waitcnt lgkmcnt(0)
        """)
        for i in range(18): a(f"v_add_f32 v{VAL+i}, v{VAL+i}, v{VAL+18+i}")
        a(f"v_cndmask_b32 v{VAL+8}, 0, v{VAL+8}, vcc\nv_cndmask_b32 v{VAL+17}, 0, v{VAL+17}, vcc")
        self.sub(4)
        for ch in range(2):
            for m0 in range(2):
                o = 80 + 4*(2*ch+m0)
                s0 = VAL + 9*ch + (1 - m0)
                for p in range(4): a(f"v_cvt_pk_bf16_f32 v{o+p}, v{s0+2*p}, v{s0+2*p+1}")
                a(f"ds_write_b64 v1, {pk(o)} offset:{ch*8448+m0*4224}")
                a(f"ds_write_b64 v1, {pk(o+2)} offset:{ch*8448+m0*4224+8}")
        a(f"""
        v_cmp_gt_u32 vcc, 14, v{V_L16}
        v_mul_u32_u24 v1, 4224, v{V_H}
        v_lshl_add_u32 v1, v{V_L16}, 2, v1
        v_add_u32 v1, {L_KC + 4104}, v1
        v_mov_b32 v2, 0
        s_cmp_eq_u32 {S_W}, 0
        s_cselect_b64 {S_EXS}, vcc, 0
        s_mov_b64 exec, {S_EXS}
        ds_write_b32 v1, v2
        s_mov_b64 exec, -1
        s_waitcnt lgkmcnt(0)
        """)
        self.sub(5)
        a("s_barrier")

    def wfrag_loads(self):
        setup = lines(f"""
        s_lshl_b32 {S_T0}, {S_CG}, 2
        s_add_u32 {S_T0}, {S_T0}, {S_W}
        s_lshl_b32 {S_T0}, {S_T0}, 14
        s_add_u32 s79, {S_T0}, {WQF}
        s_add_u32 {S_DS}, s79, {1 << 19}
        v_lshlrev_b32 v18, 4, v{V_LANE}
        """)
        groups = []
        for p in (1, 2):
            for ks in range(16):
                g = [f"buffer_load_dwordx4 a[{64*p+4*ks}:{64*p+4*ks+3}], v18, {SRD_WS}, {S_DS} offen sc1"]
                g.append(f"s_add_u32 {S_DS}, {S_DS}, {1024 if ks < 15 else (1 << 19) - 15*1024}")
                groups.append(g)
        for ks in list(range(QSPLIT, 16)):
            groups.append([f"s_add_u32 {S_T5}, s79, {ks*1024}", f"buffer_load_dwordx4 a[{4*ks}:{4*ks+3}], v18, {SRD_WS}, {S_T5} offen sc1"])
        for ks in range(QSPLIT):
            groups.append([f"s_add_u32 {S_T5}, s79, {ks*1024}", f"buffer_load_dwordx4 a[{4*ks}:{4*ks+3}], v111, {SRD_WS}, {S_T5} offen sc1"])
        return setup, groups

    def wsum(self, o=16, parts=(1, 2)):
        a = self.a
        for i in range(4): a(f"v_mov_b32 v{o+i}, {S_ONES}")
        for ks in range(16):
            for p in parts:
                d = v4(o+4+4*p); c = '0' if ks == 0 else d
                w = f"a[{64*p+4*ks}:{64*p+4*ks+3}]"
                if p == 0: a(f"v_mfma_f32_16x16x32_bf16 {d}, {w}, {v4(o)}, {c}")
                else: a(f"v_mfma_f32_16x16x32_bf16 {d}, {v4(o)}, {w}, {c}")
        if 0 in parts:
            for i in range(4): a(f"v_mov_b32 v{V_WSQ+i}, v{o+4+i}")
        if 1 in parts: a(f"v_mov_b32 v{V_WSK}, v{o+8}")
        if 2 in parts: a(f"v_mov_b32 v{V_WSV}, v{o+12}")

    CV = dict(XA=10, ST=20, AX=3, AS=4, AU0=5, AU1=6, AK=8, AU=9, ACC=80, X32=200, U32=216)
    def conv_pre(self):
        a = self.a
        a(f"""
        s_lshl_b32 {S_T0}, {S_ID}, 13
        s_add_u32 {S_T0}, {S_T0}, {S_XIN}
        v_lshlrev_b32 v3, 4, v0
        v_add_u32 v3, {S_T0}, v3
        v_lshlrev_b32 v4, 4, v0
        v_add_u32 v4, {S_ST}, v4
        v_lshlrev_b32 v5, 4, v0
        v_add_u32 v5, {L_U + 512}, v5
        v_add_u32 v6, 9280, v5
        v_bfe_u32 v1, v0, 5, 2
        v_mul_u32_u24 v1, 4640, v1
        v_and_b32 v2, 31, v0
        v_lshl_add_u32 v1, v2, 4, v1
        v_add_u32 v1, {L_U}, v1
        v_mov_b32 v36, 0
        v_mov_b32 v37, 0
        v_mov_b32 v38, 0
        v_mov_b32 v39, 0
        v_and_b32 v2, 1, v0
        v_mul_u32_u24 v2, 9280, v2
        v_add_u32 v2, {L_U + 512}, v2
        ds_write_b32 v2, v36
        v_cmp_gt_u32 vcc, 128, v0
        s_and_saveexec_b64 {S_EXS}, vcc
        ds_write_b128 v1, v[36:39]
        s_mov_b64 exec, -1
        s_lshr_b32 {S_T0}, {S_W}, 1
        s_and_b32 {S_T1}, {S_W}, 1
        s_mul_i32 {S_T2}, {S_T0}, 8448
        s_lshl_b32 {S_T3}, {S_T1}, 8
        s_sub_u32 {S_T2}, {S_T2}, {S_T3}
        s_add_u32 {S_T2}, {S_T2}, {L_KC + 4096 - 192 - 3584}
        v_and_b32 v1, 1, v{V_L16}
        v_lshrrev_b32 v7, 1, v{V_L16}
        v_mul_u32_u24 v8, 4224, v1
        v_lshl_add_u32 v8, v{V_H}, 4, v8
        v_lshlrev_b32 v9, 3, v7
        v_sub_u32 v8, v8, v9
        v_add_u32 v8, {S_T2}, v8
        s_mul_i32 {S_T2}, {S_T0}, 9280
        s_sub_u32 {S_T2}, {S_T2}, {S_T3}
        s_add_u32 {S_T2}, {S_T2}, {L_U + 512 - 192}
        v_mul_u32_u24 v9, 4640, v1
        v_lshl_add_u32 v9, v7, 6, v9
        v_lshl_add_u32 v9, v{V_H}, 4, v9
        v_add_u32 v9, {S_T2}, v9
        s_lshl_b32 {S_T1}, {S_T1}, 1
        s_add_u32 {S_T0}, {S_T0}, {S_T1}
        s_mul_i32 {S_T0}, {S_T0}, 9216
        s_add_u32 {S_T0}, {S_T0}, {L_Y}
        v_mul_u32_u24 v2, 144, v7
        v_lshl_add_u32 v2, v{V_H}, 5, v2
        v_lshl_add_u32 v2, v1, 3, v2
        v_add_u32 v2, {S_T0}, v2
        v_lshrrev_b32 v7, 2, v0
        v_lshlrev_b32 v7, 4, v7
        v_lshl_add_u32 v7, v0, 5, v7
        v_add_u32 v7, {L_Y}, v7
        s_waitcnt lgkmcnt(0)
        """)
        for i in (0, 1, 3):
            for q in range(8):
                for hh in range(2):
                    b = {0: 112, 1: 192, 3: 224}[i] + 4*q + 2*hh
                    reg = f"{'v' if i == 0 else 'a'}[{b}:{b+1}]"
                    a(f"ds_read_b64 {reg}, v8 offset:{(3-i)*64 + (7-q)*512 + 8*hh}")

    def conv(self):
        a = self.a
        self.sub(0)
        XA, XB, ST = 10, 14, 20
        for j in range(4):
            a(f"s_mov_b32 {S_T0}, {4096*j}\nbuffer_load_dwordx4 {v4(ST+4*j)}, v4, {SRD_WS}, {S_T0} offen sc1")
        a(f"""
        buffer_load_dwordx4 {v4(XA)}, v3, {SRD_WS}, 0 offen sc1
        v_add_u32 v1, 4096, v3
        buffer_load_dwordx4 {v4(XB)}, v1, {SRD_WS}, 0 offen sc1
        s_mov_b32 s66, {fx(1/512)}
        s_mov_b32 s67, {fx(1e-5)}
        v_mov_b32 v36, s66
        v_mov_b32 v37, s66
        v_mov_b32 v38, s67
        v_mov_b32 v39, s67
        """)
        setup, self.wg = self.wfrag_loads()
        l1 = a.label('CW'); l2 = a.label('CW')
        a(f"s_cmp_eq_u32 {S_LAYER}, 0\ns_cselect_b64 vcc, -1, 0\ns_cbranch_scc0 {l1}")
        self.emit(setup)
        for g in self.wg[:8]: self.emit(g)
        a(f"s_waitcnt vmcnt(10)\ns_branch {l2}\n{l1}:\ns_waitcnt vmcnt(2)\n{l2}:")
        self.sub(1)
        S = lambda i: ST + 2*i
        P  = 40
        MB = 48; VB = 56; R = 64; MR = 72
        for i in range(8): a(f"v_pk_mul_f32 {pk(S(i))}, {pk(S(i))}, v[36:37]")
        for i in range(8): a(f"v_fma_f32 v{S(i)+1}, -v{S(i)}, v{S(i)}, v{S(i)+1}")
        for i in range(8): a(f"v_cvt_pk_bf16_f32 v{P+i}, v{S(i)}, v{S(i)+1}")
        for i in range(8): a(f"v_and_b32 v{VB+i}, 0xffff0000, v{P+i}")
        for i in range(4): a(f"v_pk_add_f32 {pk(VB+2*i)}, {pk(VB+2*i)}, v[38:39]")
        for i in range(8): a(f"v_lshlrev_b32 v{MB+i}, 16, v{P+i}")
        for i in range(4): a(f"v_cvt_pk_bf16_f32 v{P+i}, v{VB+2*i}, v{VB+2*i+1}")
        for i in range(4):
            a(f"v_lshlrev_b32 v{VB+2*i}, 16, v{P+i}\nv_and_b32 v{VB+2*i+1}, 0xffff0000, v{P+i}")
        X32, U32 = 200, 216
        fill = []
        for c, X in enumerate((XA, XB)):
            for p in range(4):
                fill.append(f"v_lshlrev_b32 v{X32+8*c+2*p}, 16, v{X+p}")
                fill.append(f"v_and_b32 v{X32+8*c+2*p+1}, 0xffff0000, v{X+p}")
        for i in range(8): a(f"v_sqrt_f32 v{VB+i}, v{VB+i}")
        for i in range(4): a(f"v_cvt_pk_bf16_f32 v{P+i}, v{VB+2*i}, v{VB+2*i+1}")
        for i in range(4):
            a(f"v_lshlrev_b32 v{VB+2*i}, 16, v{P+i}\nv_and_b32 v{VB+2*i+1}, 0xffff0000, v{P+i}")
        l1 = a.label('CW'); l2 = a.label('CW')
        a(f"s_cbranch_vccz {l1}\ns_waitcnt vmcnt(8)\ns_branch {l2}\n{l1}:\ns_waitcnt vmcnt(0)\n{l2}:")
        self.emit(weave([f"v_rcp_f32 v{R+i}, v{VB+i}" for i in range(8)], fill, per=2))
        for i in range(4): a(f"v_pk_mul_f32 {pk(MR+2*i)}, {pk(MB+2*i)}, {pk(R+2*i)}")
        self.sub(2)
        for c in range(2):
            for p in range(4):
                x = X32+8*c+2*p; u = U32+8*c+2*p
                a(f"v_pk_fma_f32 {pk(u)}, {pk(x)}, {pk(R+2*p)}, {pk(MR+2*p)} neg_lo:[0,0,1] neg_hi:[0,0,1]")
        UP = 40
        for c in range(2):
            for p in range(4):
                u = U32+8*c+2*p
                a(f"v_cvt_pk_bf16_f32 v{UP+4*c+p}, v{u}, v{u+1}")
            ad = 5 + c
            a(f"ds_write_b128 v{ad}, {v4(UP+4*c)} offset:4640")
            a(f"ds_write2_b32 v{ad}, v{UP+4*c}, v{UP+4*c+1} offset0:1 offset1:2")
            a(f"ds_write2_b32 v{ad}, v{UP+4*c+2}, v{UP+4*c+3} offset0:3 offset1:4")
        AK, AU, ACC = 8, 9, 80
        a("s_waitcnt lgkmcnt(0)\ns_barrier")
        self.sub(3)
        ABASE = {0: ('v', 112), 1: ('a', 192), 2: ('v', 40), 3: ('a', 224)}
        def fragA(i, q):
            f, b = ABASE[i]; return f"{f}[{b+4*q}:{b+4*q+3}]"
        BB = [[144+4*q for q in range(8)], [176, 180, 184, 188, 192, 196, 72, 76]]
        def fragB(st, q): return v4(BB[st][q])
        def loadB(i, st): return [f"ds_read_b128 {fragB(st, q)}, v{AU} offset:{(3-i)*64 + 512*q}" for q in range(8)]
        def loadA2():
            L = []
            for q in range(8):
                for hh in range(2):
                    b = 40 + 4*q + 2*hh
                    L.append(f"ds_read_b64 v[{b}:{b+1}], v{AK} offset:{(3-2)*64 + (7-q)*512 + 8*hh}")
            return L
        self.emit(loadB(0, 0))
        def mainloop(groups):
            written = set(); cnt = 0
            for i in range(4):
                st = i & 1
                a("s_waitcnt lgkmcnt(0)")
                nxt = loadB(i+1, st ^ 1) if i < 3 else []
                if i == 0: nxt = nxt + loadA2()
                for sh in range(8):
                    for t in range(sh, 8):
                        c = v4(ACC+4*t) if t in written else '0'
                        written.add(t)
                        a(f"v_mfma_f32_16x16x32_bf16 {v4(ACC+4*t)}, {fragA(i, sh)}, {fragB(st, t-sh)}, {c}")
                        cnt += 1
                        if nxt: a(nxt.pop(0))
                        if groups and cnt % 20 == 10:
                            lg = a.label('WG')
                            a(f"s_cbranch_vccz {lg}")
                            for _ in range(4): self.emit(groups.pop(0))
                            a(f"{lg}:")
            assert not groups
        NC = 48 - QSPLIT
        nloop = min(24, (NC - 8) * 2 // 3 // 4 * 4)
        self.nloop = nloop
        mainloop(self.wg[8:8+nloop])
        lb = a.label('WB')
        a(f"s_cbranch_vccz {lb}")
        for g in self.wg[8+self.nloop:48-QSPLIT]: self.emit(g)
        a(f"{lb}:")
        self.sub(4)
        for t in range(8):
            a(f"ds_write_b64 v2, {pk(ACC+4*t)} offset:{1152*t}")
            a(f"ds_write_b64 v2, {pk(ACC+4*t+2)} offset:{1152*t+16}")
        a("s_waitcnt lgkmcnt(0)\ns_barrier")
        self.sub(5)
        Y0 = 112
        for ch in range(2):
            for sh in range(2):
                for hh in range(2):
                    b = Y0 + 16*sh + 8*ch + 4*hh
                    a(f"ds_read_b128 {v4(b)}, v7 offset:{sh*18432 + ch*9216 + 16*hh}")
        a(f"""
        v_subrev_u32 v3, {S_XIN}, v3
        v_add_u32 v3, {S_XOUT}, v3
        v_add_u32 v1, 4096, v3
        """)
        for ch in range(2):
            a(f"s_waitcnt lgkmcnt({4*(1-ch)})")
            D = V_DSK0 if ch == 0 else V_DSK1
            for p in range(4):
                y = Y0 + 8*ch + 2*p
                a(f"v_pk_add_f32 {pk(y)}, {pk(y)}, {pk(y+16)}")
            for p in range(4):
                y = Y0 + 8*ch + 2*p; u = U32 + 8*ch + 2*p
                a(f"v_pk_fma_f32 {pk(y)}, {pk(u)}, {pk(D)}, {pk(y)} op_sel_hi:[1,0,1]")
            for p in range(4):
                y = Y0 + 8*ch + 2*p; x = X32 + 8*ch + 2*p
                a(f"v_pk_add_f32 {pk(y)}, {pk(y)}, {pk(x)}")
            for p in range(4):
                y = Y0 + 8*ch + 2*p
                a(f"v_cvt_pk_bf16_f32 v{80+4*ch+p}, v{y}, v{y+1}")
            a(f"buffer_store_dwordx4 {v4(80+4*ch)}, v{3 if ch == 0 else 1}, {SRD_WS}, 0 offen sc1")
        self.sub(6)
        self.subflush(0, 7)

    def wstage_kv(self):
        a = self.a
        l = a.label('WS')
        a(f"s_cmp_eq_u32 {S_LAYER}, 0\ns_cbranch_scc0 {l}")
        self.wsum()
        a(f"{l}:")

    def qkv_pre(self):
        a = self.a
        t = 10
        a(f"""
        v_lshrrev_b32 v{t}, 3, v{V_LANE}
        v_lshlrev_b32 v{t}, 12, v{t}
        v_bfe_u32 v{t+1}, v{V_LANE}, 1, 2
        v_bfe_u32 v{t+2}, v{V_LANE}, 4, 1
        s_and_b32 {S_T0}, {S_W}, 1
        s_lshl_b32 {S_T0}, {S_T0}, 1
        v_or_b32 v{t+2}, {S_T0}, v{t+2}
        v_xor_b32 v{t+1}, v{t+1}, v{t+2}
        v_lshl_add_u32 v{t}, v{t+1}, 5, v{t}
        v_and_b32 v{t+1}, 1, v{V_LANE}
        v_lshl_add_u32 v{t}, v{t+1}, 4, v{t}
        s_lshl_b32 {S_T0}, {S_RT}, 7
        v_add_u32 v{t}, {S_T0}, v{t}
        s_lshl_b32 {S_DS}, {S_W}, 15
        s_add_u32 {S_DS}, {S_DS}, {S_XIN}
        s_lshl_b32 {S_DM}, {S_W}, 10
        s_add_u32 {S_DM}, {S_DM}, {L_XL}
        """)
        t = 12
        a(f"""
        v_lshrrev_b32 v{t}, 2, v{V_L16}
        v_lshl_add_u32 v{t+1}, v{V_H}, 3, v{t}
        v_lshlrev_b32 v{t+1}, 7, v{t+1}
        v_and_b32 v{t+2}, 3, v{V_L16}
        v_lshl_add_u32 v{t+1}, v{t+2}, 3, v{t+1}
        v_add_u32 v{t+1}, {L_XL}, v{t+1}
        v_lshrrev_b32 v{t}, 1, v{t}
        v_and_b32 v{t+2}, 1, v{V_H}
        v_lshl_or_b32 v{t}, v{t+2}, 1, v{t}
        v_xor_b32 v{t}, {S_W}, v{t}
        """)
        for j in range(4):
            a(f"v_xor_b32 v{t+2}, {j}, v{t}\nv_lshl_add_u32 v{4+j}, v{t+2}, 5, v{t+1}")
        for i in range(4): a(f"v_mov_b32 v{104+i}, {S_ONES}")
        a(f"""
        s_mov_b32 s66, {fx(1e-6)}
        s_mov_b32 s67, {fx(LOG2E)}
        v_mov_b32 v112, s66
        v_mov_b32 v113, s66
        v_mov_b32 v114, s67
        v_mov_b32 v115, s67
        """)

    def qkv(self):
        a = self.a
        self.sub(0)
        def dma():
            return lines(f"""
            s_mov_b32 m0, {S_DM}
            s_add_u32 {S_DM}, {S_DM}, 4096
            buffer_load_dwordx4 v10, {SRD_WS}, {S_DS} offen sc1 lds
            s_add_u32 {S_DS}, {S_DS}, {4*32768}
            """)
        NUPF = int(os.environ.get('NUPF', '12'))
        for i in range(NUPF): self.emit(dma())
        AD = 4
        AK_, AV_, AQ_ = 16, 32, 48
        DS, DG = 64, 68
        ONES = 104
        XF = [72, 88]
        def xload(ks, st):
            L = []
            for j in range(4):
                b = XF[st] + 4*j
                L.append(f"ds_read_b64_tr_b16 {pk(b)}, v{AD+j} offset:{ks*4096}")
                L.append(f"ds_read_b64_tr_b16 {pk(b+2)}, v{AD+j} offset:{ks*4096+512}")
            return L
        S_WDS, S_WDM = 's84', 's85'
        a(f"""
        s_lshl_b32 {S_WDS}, {S_CG}, 16
        s_lshl_b32 {S_T0}, {S_W}, 14
        s_add_u32 {S_WDS}, {S_WDS}, {S_T0}
        s_add_u32 {S_WDS}, {S_WDS}, {WOFG}
        s_add_u32 {S_WDM}, {S_T0}, {L_WO}
        v_lshlrev_b32 v111, 4, v{V_LANE}
        """)
        def wo_group():
            lg = a.label('WOG')
            a(f"s_cmp_eq_u32 {S_LAYER}, 0\ns_cbranch_scc0 {lg}")
            for _ in range(4):
                a(f"""
                s_mov_b32 m0, {S_WDM}
                s_add_u32 {S_WDM}, {S_WDM}, 1024
                buffer_load_dwordx4 v111, {SRD_WS}, {S_WDS} offen sc1 lds
                s_add_u32 {S_WDS}, {S_WDS}, 1024
                """)
            a(f"{lg}:")
        SF = [200, 208]
        S = {0: [0], 1: [1, 2], 2: [3, 4], 3: [5, 6], 4: [7, 8], 5: [9, 10], 6: [11, 12], 7: [13, 14], 8: [15]}
        def sload(ks, st):
            L = []
            for n, kss in enumerate(S.get(ks, [])):
                b = SF[st] + 4*n
                L.append(f"ds_read_b64_tr_b16 {pk(b)}, v{AD} offset:{kss*4096}")
                L.append(f"ds_read_b64_tr_b16 {pk(b+2)}, v{AD} offset:{kss*4096+512}")
            return L
        ndma = [NUPF]
        landed = [-1]
        def need(idx):
            if idx <= landed[0]: return []
            landed[0] = idx
            return [f"s_waitcnt vmcnt({ndma[0] - 1 - idx})", "s_barrier"]
        waits = {0: 2, 1: 4, 2: 8, 4: 12, 6: 15}
        self.emit(need(1))
        self.sub(1)
        self.emit(xload(0, 0) + sload(0, 0))
        self.P1 = {}
        fillers = {}
        def pass1(ks, extra):
            st = ks & 1
            a("s_waitcnt lgkmcnt(0)")
            if ks in waits: self.emit(need(waits[ks]))
            fill = (xload(ks+1, st ^ 1) + sload(ks+1, st ^ 1)) if ks + 1 < 16 else (xload(0, st ^ 1) if QSPLIT > 0 else [])
            M = []
            for j in range(4):
                x = v4(XF[st]+4*j)
                ck = '0' if ks == 0 else v4(AK_+4*j); cv = '0' if ks == 0 else v4(AV_+4*j)
                M.append(f"v_mfma_f32_16x16x32_bf16 {v4(AK_+4*j)}, {x}, a[{64+4*ks}:{64+4*ks+3}], {ck}")
                M.append(f"v_mfma_f32_16x16x32_bf16 {v4(AV_+4*j)}, {x}, a[{128+4*ks}:{128+4*ks+3}], {cv}")
                if ks >= QSPLIT:
                    M.append(f"v_mfma_f32_16x16x32_bf16 {v4(AQ_+4*j)}, a[{4*ks}:{4*ks+3}], {x}, {'0' if ks == QSPLIT else v4(AQ_+4*j)}")
            for n, kss in enumerate(S.get(ks, [])):
                x0 = v4(SF[st] + 4*n)
                M.append(f"v_mfma_f32_16x16x32_bf16 {v4(DS)}, {v4(ONES)}, {x0}, {'0' if kss == 0 else v4(DS)}")
                M.append(f"v_mfma_f32_16x16x32_bf16 {v4(DG)}, {x0}, {x0}, {'0' if kss == 0 else v4(DG)}")
            k = min(2, 16 - ndma[0])
            for _ in range(k): fill = fill + dma()
            ndma[0] += k
            out = []; fi = list(fill); ex = list(extra)
            for mi, m in enumerate(M):
                out.append(m)
                n = 2
                while n > 0 and fi: out.append(fi.pop(0)); n -= 1
                while n > 0 and ex: out.append(ex.pop(0)); n -= 1
            out += fi
            self.emit(out)
            return ex
        self._pass1 = pass1
        SQ = 109
        F1 = lines(f"""
        v_and_b32 v8, 3, v{V_L16}
        v_lshrrev_b32 v9, 2, v{V_L16}
        v_cmp_eq_u32 s[66:67], 1, v8
        v_cmp_eq_u32 s[68:69], 2, v8
        v_cmp_eq_u32 vcc, 3, v8
        v_cndmask_b32 v{SQ}, v{DG}, v{DG+1}, s[66:67]
        v_cndmask_b32 v{SQ}, v{SQ}, v{DG+2}, s[68:69]
        v_cndmask_b32 v{SQ}, v{SQ}, v{DG+3}, vcc
        v_cmp_eq_u32 vcc, v9, v{V_H}
        s_lshl_b32 {S_T0}, {S_W}, 6
        s_add_u32 {S_T0}, {S_T0}, {L_S2R}
        v_cndmask_b32 v{SQ}, 0, v{SQ}, vcc
        v_lshlrev_b32 v8, 2, v{V_L16}
        v_add_u32 v9, {S_T0}, v8
        """)
        F1 += self.reduce_h(SQ, 110)
        F1 += self.ln_final1(DS, SQ, 116, 117, 118)
        F1 += lines(f"""
        ds_write_b32 v9, v116
        ds_write_b32 v9, v117 offset:{L_S2M-L_S2R}
        v_lshlrev_b32 v8, 4, v{V_H}
        v_add_u32 v8, {S_T0}, v8
        """)
        R4, M4 = 128, 144
        RQ, MQ = 160, 208
        F2 = []
        for j in range(4):
            F2.append(f"v_xor_b32 v{120+j}, {64*j}, v8")
            F2.append(f"v_xor_b32 v{124+j}, {64*j}, v9")
        for j in range(4):
            F2.append(f"ds_read_b128 {v4(R4+4*j)}, v{120+j}")
            F2.append(f"ds_read_b128 {v4(M4+4*j)}, v{120+j} offset:{L_S2M-L_S2R}")
        for j in range(4):
            F2.append(f"ds_read_b32 v{RQ+2*j}, v{124+j}")
            F2.append(f"ds_read_b32 v{MQ+2*j}, v{124+j} offset:{L_S2M-L_S2R}")
        EPS, L2E = 112, 114
        def phi(x, T):
            return [f"v_pk_mul_f32 {pk(T)}, {pk(x)}, {pk(L2E)}",
                    f"v_exp_f32_e64 v{T}, v{T} clamp", f"v_exp_f32_e64 v{T+1}, v{T+1} clamp",
                    f"v_max_f32 v{x}, v{EPS}, v{x}", f"v_max_f32 v{x+1}, v{EPS}, v{x+1}",
                    f"v_pk_add_f32 {pk(x)}, {pk(x)}, {pk(T)}"]
        PKF, VF, PQF = 168, 176, 200
        DKV, DZ = 196, 216
        def kv_chain(j, h2, T):
            k = AK_+4*j+h2; vv = AV_+4*j+h2; r = R4+4*j+h2; m = M4+4*j+h2
            c = [f"v_pk_fma_f32 {pk(T)}, {pk(m)}, v[{V_WSK}:{V_WSK+1}], {pk(EPS)} op_sel_hi:[1,0,1] neg_lo:[0,0,1] neg_hi:[0,0,1]",
                 f"v_pk_mul_f32 {pk(T+4)}, {pk(m)}, v[{V_WSV}:{V_WSV+1}] op_sel_hi:[1,0]",
                 f"v_pk_fma_f32 {pk(k)}, {pk(k)}, {pk(r)}, {pk(T)} neg_lo:[0,0,1] neg_hi:[0,0,1]",
                 f"v_pk_fma_f32 {pk(vv)}, {pk(vv)}, {pk(r)}, {pk(T+4)} neg_lo:[0,0,1] neg_hi:[0,0,1]"]
            ph = phi(k, T+2)
            c += [ph[0], f"v_cvt_pk_bf16_f32 v{VF + 2*j + h2//2}, v{vv}, v{vv+1}"] + ph[1:]
            c.append(f"v_cvt_pk_bf16_f32 v{PKF + 2*j + h2//2}, v{k}, v{k+1}")
            return c
        def q_chain(j, h2, T):
            q = AQ_+4*j+h2
            c = [f"v_pk_fma_f32 {pk(T)}, {pk(MQ+2*j)}, {pk(V_WSQ+h2)}, {pk(EPS)} op_sel_hi:[0,1,1] neg_lo:[0,0,1] neg_hi:[0,0,1]",
                 f"v_pk_fma_f32 {pk(q)}, {pk(q)}, {pk(RQ+2*j)}, {pk(T)} op_sel_hi:[1,0,1] neg_lo:[0,0,1] neg_hi:[0,0,1]"]
            c += phi(q, T+2)
            c.append(f"v_cvt_pk_bf16_f32 v{PQF + 2*j + h2//2}, v{q}, v{q+1}")
            return c
        adr = lines(f"""
        s_lshl_b32 {S_T0}, {S_CG}, 2
        s_add_u32 {S_T0}, {S_T0}, {S_W}
        s_lshl_b32 {S_T1}, {S_T0}, 10
        s_add_u32 {S_T1}, {S_T1}, {S_KV}
        v_lshlrev_b32 v11, 2, v{V_LANE}
        v_add_u32 v14, {S_T1}, v11
        s_lshl_b32 {S_T1}, {S_T0}, 10
        s_add_u32 {S_T1}, {S_T1}, {S_Z}
        s_and_b32 {S_T2}, {S_RT}, 3
        s_lshl_b32 {S_T2}, {S_T2}, 8
        s_add_u32 {S_T1}, {S_T1}, {S_T2}
        v_add_u32 v15, {S_T1}, v11
        s_lshl_b32 {S_T1}, {S_RT}, 16
        s_add_u32 {S_T1}, {S_T1}, {S_PQ}
        s_lshl_b32 {S_T2}, {S_T0}, 10
        s_add_u32 {S_T1}, {S_T1}, {S_T2}
        s_and_b32 {S_T2}, {S_W}, 1
        s_lshl_b32 {S_T2}, {S_T2}, 4
        v_xor_b32 v11, {S_T2}, v{V_LANE}
        v_lshlrev_b32 v11, 4, v11
        v_add_u32 v11, {S_T1}, v11
        s_lshr_b32 {S_T2}, {S_W}, 1
        s_lshl_b32 {S_T2}, {S_T2}, 15
        v_add_u32 v12, {S_T2}, v11
        s_xor_b32 {S_T2}, {S_T2}, 0x8000
        v_add_u32 v13, {S_T2}, v11
        """)
        def passQ(ks_range):
            for ks in ks_range:
                st = ks & 1
                nx = xload(ks+1, st ^ 1) if ks + 1 < QSPLIT else []
                a("s_waitcnt lgkmcnt(0)")
                for j in range(4):
                    x = v4(XF[st]+4*j)
                    c = '0' if (QSPLIT == 16 and ks == 0) else v4(AQ_+4*j)
                    a(f"v_mfma_f32_16x16x32_bf16 {v4(AQ_+4*j)}, a[{4*ks}:{4*ks+3}], {x}, {c}")
                    k = 4 if j < 2 else 0
                    for _ in range(k):
                        if nx: a(nx.pop(0))
        wq = list(self.wg[48-QSPLIT:])
        def wq_group():
            if not wq: return
            lg = a.label('WQG')
            a(f"s_cmp_eq_u32 {S_LAYER}, 0\ns_cbranch_scc0 {lg}")
            for _ in range(4):
                if wq: self.emit(wq.pop(0))
            a(f"{lg}:")
        for ks in range(0, 9):
            pass1(ks, [])
            if ks == 3: self.sub(2)
            if ks in (6, 8): wq_group()
        self.sub(3)
        ex = list(F1)
        for ks in range(9, 12):
            ex = pass1(ks, ex)
            if ks == 10: wq_group()
        self.emit(ex)
        wq_group()
        a("s_waitcnt lgkmcnt(0)\ns_barrier")
        self.sub(4)
        ex = list(F2) + adr
        for ks in range(12, 16):
            ex = pass1(ks, ex)
            if ks == 12: wo_group()
        self.emit(ex)
        wo_group()
        a("s_waitcnt lgkmcnt(0)")
        self.sub(5)
        TT = [184, 190, 220, 226]
        for j0 in (0, 2):
            self.emit(zipmerge(kv_chain(j0, 0, TT[0]), kv_chain(j0, 2, TT[1]), kv_chain(j0+1, 0, TT[2]), kv_chain(j0+1, 2, TT[3])))
            u = j0 // 2
            c1 = '0' if u == 0 else v4(DKV); c2 = '0' if u == 0 else v4(DZ)
            a(f"v_mfma_f32_16x16x32_bf16 {v4(DKV)}, {v4(VF+4*u)}, {v4(PKF+4*u)}, {c1}")
            a(f"v_mfma_f32_16x16x32_bf16 {v4(DZ)}, {v4(ONES)}, {v4(PKF+4*u)}, {c2}")
        for i in range(4):
            a(f"buffer_atomic_add_f32 v{DKV+i}, v14, {SRD_WS}, 0 offen offset:{256*i}")
        a(f"""
        s_mov_b64 exec, 0xffff
        buffer_atomic_add_f32 v{DZ}, v15, {SRD_WS}, 0 offen
        s_mov_b64 exec, -1
        """)
        wo_group()
        a("s_waitcnt vmcnt(17)")
        passQ(range(0, QSPLIT // 2))
        wo_group()
        passQ(range(QSPLIT // 2, QSPLIT))
        lq = a.label('WSQ')
        a(f"s_cmp_eq_u32 {S_LAYER}, 0\ns_cbranch_scc0 {lq}")
        self.wsum(o=120, parts=(0,))
        a(f"{lq}:")
        TQ = [184, 188, 220, 224]
        for u in range(2):
            j0 = 2*u
            self.emit(zipmerge(q_chain(j0, 0, TQ[0]), q_chain(j0, 2, TQ[1]), q_chain(j0+1, 0, TQ[2]), q_chain(j0+1, 2, TQ[3])))
            b = PQF + 4*u
            a(f"v_permlane16_swap_b32 v{b}, v{b+2}\nv_permlane16_swap_b32 v{b+1}, v{b+3}")
            a(f"buffer_store_dwordx4 {v4(b)}, v{12+u}, {SRD_WS}, 0 offen sc1")
        self.sub(6)
        self.subflush(1, 7)

    def outp_pre(self):
        a = self.a
        a(f"""
        s_lshl_b32 {S_T0}, {S_W}, 13
        s_add_u32 {S_T0}, {S_T0}, {S_KV}
        v_lshlrev_b32 v4, 4, v{V_LANE}
        v_add_u32 v4, {S_T0}, v4
        v_add_u32 v5, 4096, v4
        s_lshl_b32 {S_T0}, {S_W}, 13
        s_add_u32 {S_T0}, {S_T0}, {S_Z}
        v_bfe_u32 v6, v{V_LANE}, 2, 3
        v_lshlrev_b32 v6, 10, v6
        v_lshrrev_b32 v12, 5, v{V_LANE}
        v_lshl_add_u32 v6, v12, 8, v6
        v_and_b32 v12, 3, v{V_LANE}
        v_lshl_add_u32 v6, v12, 4, v6
        v_add_u32 v6, {S_T0}, v6
        s_and_b32 {S_T0}, {S_W}, 1
        s_lshl_b32 {S_T0}, {S_T0}, 15
        s_lshr_b32 {S_T1}, {S_W}, 1
        s_lshl_b32 {S_T1}, {S_T1}, 14
        s_add_u32 {S_T0}, {S_T0}, {S_T1}
        s_lshl_b32 {S_T1}, {S_RT}, 16
        s_add_u32 {S_T0}, {S_T0}, {S_T1}
        s_add_u32 {S_DS}, {S_T0}, {S_PQ}
        v_lshlrev_b32 v7, 4, v{V_LANE}
        v_lshrrev_b32 v1, 3, v0
        v_and_b32 v3, 7, v0
        s_lshl_b32 {S_T0}, {S_CG}, 18
        s_lshl_b32 {S_T1}, {S_RT}, 7
        s_add_u32 {S_T0}, {S_T0}, {S_T1}
        v_lshlrev_b32 v8, 12, v1
        v_lshl_add_u32 v8, v3, 4, v8
        v_add_u32 v8, {S_T0}, v8
        v_add_u32 v9, {S_XIN}, v8
        v_add_u32 v2, 0x20000, v9
        v_lshrrev_b32 v10, 4, v{V_LANE}
        v_bfe_u32 v11, v{V_LANE}, 2, 2
        v_lshl_add_u32 v10, v11, 2, v10
        v_bfe_u32 v11, v{V_LANE}, 1, 1
        v_lshl_add_u32 v10, v11, 4, v10
        v_lshlrev_b32 v10, 4, v10
        v_and_b32 v11, 1, v{V_LANE}
        v_lshl_add_u32 v10, v11, 3, v10
        s_mul_i32 {S_T0}, {S_W}, {8*544}
        s_add_u32 {S_T0}, {S_T0}, {L_KVF}
        v_add_u32 v10, {S_T0}, v10
        v_bfe_u32 v11, v{V_LANE}, 2, 3
        v_mul_u32_u24 v11, 544, v11
        v_and_b32 v12, 3, v{V_LANE}
        v_lshl_add_u32 v11, v12, 3, v11
        v_add_u32 v11, {S_T0}, v11
        v_and_b32 v12, 31, v{V_LANE}
        v_lshrrev_b32 v13, 5, v{V_LANE}
        v_lshlrev_b32 v14, 4, v13
        v_add_u32 v15, v14, v12
        v_lshlrev_b32 v15, 4, v15
        v_lshlrev_b32 v14, 4, v13
        v_add_u32 v14, 512, v14
        v_cmp_gt_u32 vcc, 16, v12
        v_cndmask_b32 v15, v14, v15, vcc
        s_lshr_b32 {S_T0}, {S_W}, 1
        s_mul_i32 {S_T1}, {S_T0}, {16*544}
        s_add_u32 {S_T1}, {S_T1}, {L_KVF}
        v_add_u32 v15, {S_T1}, v15
        v_lshrrev_b32 v16, 2, v{V_L16}
        v_lshrrev_b32 v17, 1, v{V_H}
        v_lshl_add_u32 v17, v17, 2, v16
        v_lshlrev_b32 v17, 7, v17
        v_and_b32 v18, 3, v{V_L16}
        v_lshl_add_u32 v17, v18, 3, v17
        s_lshl_b32 {S_T1}, {S_T0}, 15
        s_add_u32 {S_T1}, {S_T1}, {L_WO}
        v_add_u32 v17, {S_T1}, v17
        v_and_b32 v18, 2, v16
        v_and_b32 v19, 1, v{V_H}
        v_xor_b32 v18, v18, v19
        v_lshl_add_u32 v13, v18, 5, v17
        v_xor_b32 v18, 2, v18
        v_lshl_add_u32 v14, v18, 5, v17
        s_mul_i32 {S_T1}, {S_T0}, {64*272}
        s_and_b32 {S_T0}, {S_W}, 1
        s_lshl_b32 {S_T0}, {S_T0}, 7
        s_add_u32 {S_T1}, {S_T1}, {S_T0}
        s_add_u32 {S_T1}, {S_T1}, {L_O32}
        v_mul_u32_u24 v16, 272, v12
        v_lshrrev_b32 v17, 5, v{V_LANE}
        v_lshl_add_u32 v16, v17, 4, v16
        v_add_u32 v16, {S_T1}, v16
        v_mul_u32_u24 v17, 272, v1
        v_lshl_add_u32 v17, v3, 5, v17
        v_add_u32 v17, {L_O32}, v17
        v_mul_u32_u24 v18, 144, v1
        v_lshl_add_u32 v18, v3, 4, v18
        v_add_u32 v18, {L_OT}, v18
        """)
        a(f"""
        s_lshr_b32 {S_T0}, {S_W}, 1
        s_lshl_b32 {S_T0}, {S_T0}, 15
        s_add_u32 {S_T0}, {S_T0}, {L_WO}
        v_lshlrev_b32 v13, 4, v{V_LANE}
        v_add_u32 v13, {S_T0}, v13
        """)
        for i in range(16):
            for c in range(2):
                a(f"ds_read_b128 {v4(WOF + 8*i + 4*c)}, v13 offset:{i*2048 + c*1024}")

    def outp(self):
        a = self.a
        self.sub(0)
        KVL = 24
        issued = []
        def ld(txt, tag): a(txt); issued.append(tag)
        for p in range(8):
            ad = 4 if p < 4 else 5; off = (p & 3)*1024
            ld(f"buffer_load_dwordx4 {v4(KVL+4*p)}, v{ad}, {SRD_WS}, 0 offen offset:{off} sc1", 'kv')
        ld(f"buffer_load_dwordx4 v[56:59], v6, {SRD_WS}, 0 offen sc1", 'kv')
        ld(f"buffer_load_dwordx4 v[60:63], v6, {SRD_WS}, 0 offen offset:512 sc1", 'kv')
        def pqload(i):
            ld(f"buffer_load_dwordx4 a[{192+4*i}:{192+4*i+3}], v7, {SRD_WS}, {S_DS} offen sc1", f'pq{i}')
            a(f"s_add_u32 {S_DS}, {S_DS}, 1024")
        NUP = 4
        for i in range(NUP): pqload(i)
        def vm(tag):
            idx = max(i for i, t in enumerate(issued) if t == tag)
            return len(issued) - 1 - idx
        self.sub(1)
        a(f"s_waitcnt vmcnt({vm('kv')})")
        self.sub(2)
        for p in range(8):
            b = KVL + 4*p
            a(f"v_cvt_pk_bf16_f32 v{b}, v{b}, v{b+1}\nv_cvt_pk_bf16_f32 v{b+1}, v{b+2}, v{b+3}")
            a(f"ds_write_b64 v10, {pk(b)} offset:{p*544}")
        a("v_pk_add_f32 v[56:57], v[56:57], v[60:61]\nv_pk_add_f32 v[58:59], v[58:59], v[62:63]")
        for i in range(4):
            a(f"v_mov_b32 v{60+i}, v{56+i}\nv_permlane32_swap_b32 v{56+i}, v{60+i}\nv_add_f32 v{56+i}, v{56+i}, v{60+i}")
        a("v_cvt_pk_bf16_f32 v56, v56, v57\nv_cvt_pk_bf16_f32 v57, v58, v59")
        a(f"ds_write_b64 v11, v[56:57] offset:512")
        AKV = 15
        ACC = [72, 88]
        D1 = [32, 48]; KF = [20, 24, 28]; OF = [64, 68]
        XR = WOF
        for i in range(NUP, 10): pqload(i)
        a("s_waitcnt lgkmcnt(0)\ns_barrier")
        self.sub(3)
        def acc(c): return f"v[{ACC[c]}:{ACC[c]+15}]"
        def rdK(i): return [f"ds_read_b128 {v4(KF[i % 3])}, v{AKV} offset:{i*544}"]
        def m1(i): return f"v_mfma_f32_32x32x16_bf16 v[{D1[i&1]}:{D1[i&1]+15}], {v4(KF[i % 3])}, a[{192+4*i}:{192+4*i+3}], 0"
        def valu(i):
            d = D1[i & 1]; o = OF[i & 1]
            L = [f"v_add_f32 v{d+8}, {fx(1e-6)}, v{d+8}", f"v_rcp_f32 v{d+8}, v{d+8}"]
            L += [f"v_mul_f32 v{d+p}, v{d+p}, v{d+8}" for p in range(8)]
            L += [f"v_cvt_pk_bf16_f32 v{o+p}, v{d+2*p}, v{d+2*p+1}" for p in range(4)]
            return L
        def mo(i, c):
            b = WOF + 8*i + 4*c
            return f"v_mfma_f32_32x32x16_bf16 {acc(c)}, {v4(OF[i&1])}, {v4(b)}, {'0' if i == 0 else acc(c)}"
        self.emit(rdK(0) + rdK(1) + rdK(2))
        a(f"s_waitcnt vmcnt({vm('pq0')}) lgkmcnt(2)")
        a(m1(0))
        a(f"s_waitcnt vmcnt({vm('pq1')}) lgkmcnt(1)")
        a(m1(1))
        self.emit(valu(0))
        nxt = 10
        for i in range(16):
            V = valu(i+1) if i + 1 < 16 else []
            K_ = rdK(i+3) if i + 3 < 16 else []
            if i + 2 < 16: a(f"s_waitcnt vmcnt({vm(f'pq{i+2}')}) lgkmcnt(0)")
            a(mo(i, 0))
            self.emit(V[:2] + K_ + V[2:4])
            if i + 2 < 16: a(m1(i+2))
            self.emit(V[4:10])
            a(mo(i, 1))
            self.emit(V[10:])
            if nxt < 16:
                pqload(nxt); nxt += 1
            if i == 6:
                ld(f"buffer_load_dwordx4 {v4(XR)}, v9, {SRD_WS}, 0 offen sc1", 'x')
                ld(f"buffer_load_dwordx4 {v4(XR+4)}, v2, {SRD_WS}, 0 offen sc1", 'x')
        self.sub(4)
        for c in range(2):
            for aa in range(4):
                a(f"ds_write_b128 v16, {v4(ACC[c]+4*aa)} offset:{c*32*272 + 32*aa}")
        a("s_waitcnt lgkmcnt(0)\ns_barrier")
        Y = 32
        for i in range(2):
            for part in range(2):
                for hh in range(2):
                    a(f"ds_read_b128 {v4(Y+16*i+8*part+4*hh)}, v17 offset:{i*32*272 + part*64*272 + 16*hh}")
        a("s_waitcnt vmcnt(0)")
        self.sub(5)
        lf = a.label('FIN'); le = a.label('OE'); lx = a.label('OX')
        a(f"v_add_u32 v8, {S_XOUT}, v8\nv_add_u32 v9, 0x20000, v8")
        for i in range(2):
            a(f"s_waitcnt lgkmcnt({4*(1-i)})")
            y = Y + 16*i; x = XR + 4*i; t = 132 + 8*i
            for p in range(4): a(f"v_pk_add_f32 {pk(y+2*p)}, {pk(y+2*p)}, {pk(y+8+2*p)}")
            for p in range(4): a(f"v_cvt_pk_bf16_f32 v{y+8+p}, v{y+2*p}, v{y+2*p+1}")
            for p in range(4):
                a(f"v_lshlrev_b32 v{y+2*p}, 16, v{y+8+p}\nv_and_b32 v{y+2*p+1}, 0xffff0000, v{y+8+p}")
                a(f"v_lshlrev_b32 v{t+2*p}, 16, v{x+p}\nv_and_b32 v{t+2*p+1}, 0xffff0000, v{x+p}")
            for p in range(4): a(f"v_pk_add_f32 {pk(y+2*p)}, {pk(y+2*p)}, {pk(t+2*p)}")
            for p in range(4): a(f"v_cvt_pk_bf16_f32 v{160+4*i+p}, v{y+2*p}, v{y+2*p+1}")
            a(f"ds_write_b128 v18, {v4(160+4*i)} offset:{i*32*144}")
        a(f"""
        s_cmp_eq_u32 {S_LAYER}, 0
        s_cbranch_scc0 {lf}
        buffer_store_dwordx4 v[160:163], v8, {SRD_WS}, 0 offen sc1
        buffer_store_dwordx4 v[164:167], v9, {SRD_WS}, 0 offen sc1
        {lf}:
        v_lshrrev_b32 v10, 2, v{V_L16}
        v_lshl_add_u32 v10, v{V_H}, 3, v10
        v_mul_u32_u24 v10, 144, v10
        v_and_b32 v11, 3, v{V_L16}
        v_lshl_add_u32 v10, v11, 3, v10
        s_lshl_b32 {S_T0}, {S_W}, 5
        s_add_u32 {S_T0}, {S_T0}, {L_OT}
        v_add_u32 v10, {S_T0}, v10
        s_waitcnt lgkmcnt(0)
        s_barrier
        ds_read_b64_tr_b16 v[104:105], v10
        ds_read_b64_tr_b16 v[106:107], v10 offset:{4*144}
        ds_read_b64_tr_b16 v[108:109], v10 offset:{32*144}
        ds_read_b64_tr_b16 v[110:111], v10 offset:{36*144}
        s_cmp_eq_u32 {S_LAYER}, 0
        s_cbranch_scc0 {le}
        s_lshl_b32 {S_T0}, {S_RT}, 7
        s_lshl_b32 {S_T1}, {S_W}, 5
        s_add_u32 {S_T0}, {S_T0}, {S_T1}
        s_add_u32 {S_T0}, {S_T0}, {ST3}
        v_bfe_u32 v11, v{V_L16}, 1, 2
        v_lshlrev_b32 v11, 12, v11
        v_lshrrev_b32 v12, 3, v{V_L16}
        v_lshl_add_u32 v11, v12, 4, v11
        v_and_b32 v12, 1, v{V_L16}
        v_lshl_add_u32 v11, v12, 3, v11
        v_lshl_add_u32 v11, v{V_H}, 2, v11
        v_add_u32 v11, {S_T0}, v11
        v_mov_b32 v112, 0
        v_mov_b32 v113, 0
        v_mov_b32 v114, 0
        v_mov_b32 v115, 0
        s_waitcnt lgkmcnt(0)
        """)
        for j in range(4):
            a(f"v_dot2_f32_bf16 v112, v{104+j}, {S_ONES}, v112")
            a(f"v_dot2_f32_bf16 v113, v{104+j}, v{104+j}, v113")
            a(f"v_dot2_f32_bf16 v114, v{108+j}, {S_ONES}, v114")
            a(f"v_dot2_f32_bf16 v115, v{108+j}, v{108+j}, v115")
        a("v_pk_add_f32 v[112:113], v[112:113], v[114:115]")
        self.emit(zipmerge(self.reduce_h(112, 116), self.reduce_h(113, 117)))
        a(f"""
        v_cmp_eq_u32 vcc, 0, v{V_H}
        v_cndmask_b32 v112, v113, v112, vcc
        s_mov_b64 exec, 0xffffffff
        buffer_atomic_add_f32 v112, v11, {SRD_WS}, 0 offen
        s_mov_b64 exec, -1
        s_branch {lx}
        {le}:
        s_lshl_b32 {S_T0}, {S_RT}, 16
        s_lshl_b32 {S_T1}, {S_W}, 14
        s_add_u32 {S_T0}, {S_T0}, {S_T1}
        s_lshl_b32 {S_T1}, {S_CG}, 7
        s_add_u32 {S_T0}, {S_T0}, {S_T1}
        v_lshlrev_b32 v11, 10, v{V_L16}
        v_lshl_add_u32 v11, v{V_H}, 4, v11
        v_add_u32 v11, {S_T0}, v11
        s_waitcnt lgkmcnt(0)
        buffer_store_dwordx4 v[104:107], v11, {SRD_OUT}, 0 offen {OUTF}
        buffer_store_dwordx4 v[108:111], v11, {SRD_OUT}, 0 offen offset:64 {OUTF}
        {lx}:
        """)
        self.sub(6)
        self.subflush(2, 7)

    def build(self):
        a = self.a
        self.prologue()
        if self.ts: a(f"v_mov_b32 v{V_TS}, 0\nv_mov_b32 v{V_TS2}, 0")
        self.stamp()
        self.p0()
        stop = self.stop
        if stop == 'p0':
            self.wait(); a("s_branch L_END")
        a("L_LAYER:")
        for reg, (x0, x1) in ((S_XIN, (XT[0], XT[2])), (S_XOUT, (XT[1], XT[3])), (S_ST, (ST1, ST3)), (S_PQ, PQ), (S_KV, KVM), (S_Z, ZZ)):
            a(f"s_mul_i32 {reg}, {S_LAYER}, {(x1 - x0) & 0xffffffff:#x}")
            a(f"s_add_u32 {reg}, {reg}, {x0:#x}")
        self.conv_pre()
        self.wait(l0skip=True, sleep0=16, adr=int(os.environ.get('AR_C','1')), adr0=0, adb=int(os.environ.get('AB_C','1'))); self.stamp()
        self.conv(); self.stamp()
        self.arrive(); self.stamp()
        if stop == 'conv1':
            self.wait(); a("s_branch L_END")
        a(f"s_mov_b32 {S_XIN}, {S_XOUT}")
        self.wstage_kv()
        self.qkv_pre()
        self.wait(l0skip=True, sleep0=12, adr=int(os.environ.get('AR_Q','1')), adr0=int(os.environ.get('AR_Q0','3')), adb=int(os.environ.get('AB_Q','1'))); self.stamp()
        self.qkv(); self.stamp()
        self.arrive(); self.stamp()
        if stop == 'qkv1':
            self.wait(); a("s_branch L_END")
            if os.environ.get('DBGW'):
                a(f"""
                s_lshl_b32 {S_T0}, {S_ID}, 11
                s_add_u32 {S_T0}, {S_T0}, 0x40000
                v_lshlrev_b32 v1, 3, v0
                v_add_u32 v1, {S_T0}, v1
                v_mov_b32 v2, v{V_WSK}
                v_mov_b32 v3, v{V_WSV}
                buffer_store_dwordx2 v[2:3], v1, {SRD_WS}, 0 offen
                """)
            self.wait(); a("s_branch L_END")
        a(f"s_mov_b32 {S_XOUT}, {XT[2]}")
        self.outp_pre()
        self.wait(sleep0=22, adr=int(os.environ.get('AR_O','2')), adr0=int(os.environ.get('AR_O0','3')), adb=int(os.environ.get('AB_O','2'))); self.stamp()
        self.outp(); self.stamp()
        a(f"s_cmp_eq_u32 {S_LAYER}, 1\ns_cbranch_scc1 L_END")
        self.arrive(); self.stamp()
        if stop == 'out1':
            self.wait(); a("s_branch L_END")
        a(f"s_mov_b32 {S_LAYER}, 1\ns_branch L_LAYER\nL_END:")
        self.tsdump()
        a("L_EXIT:\ns_endpgm")
        body = a.finalize()
        hdr = open(os.path.join(os.path.dirname(os.path.abspath(__file__)), 'header.txt')).read()
        hdr = hdr.replace('@@LAUNCH@@', f'; @launch grid=(256,1,1) block=(256,1,1) lds={LDS_SIZE}')
        txt = hdr + f""".amdgcn_target "amdgcn-amd-amdhsa--gfx950"
.text
.globl {NAME}_kernel
.p2align 8
.type {NAME}_kernel,@function
{NAME}_kernel:
""" + body + f""".section .rodata,"a"
.p2align 6
.amdhsa_kernel {NAME}_kernel
  .amdhsa_next_free_vgpr 512
  .amdhsa_next_free_sgpr 102
  .amdhsa_accum_offset 256
  .amdhsa_group_segment_fixed_size 0
  .amdhsa_kernarg_size 104
  .amdhsa_user_sgpr_count 2
  .amdhsa_user_sgpr_kernarg_segment_ptr 1
  .amdhsa_system_sgpr_workgroup_id_x 1
.end_amdhsa_kernel
"""
        return txt

if __name__ == '__main__':
    import argparse
    ap = argparse.ArgumentParser()
    ap.add_argument('--stop', default=None)
    ap.add_argument('--ts', action='store_true')
    ap.add_argument('-o', default='k.s')
    args = ap.parse_args()
    g = Gen(stop=args.stop, ts=args.ts)
    t = g.build()
    open(args.o, 'w').write(t)
    print('instructions', g.a.count(), 'nops inserted', g.a.nnop, 'bytes', len(t))
```

```python
import sys, os, math
sys.path.insert(0, os.path.dirname(os.path.abspath(__file__)))
from asmgen import Asm

NAME = 'interleave_layers__ssm_conv_s4d__linear_attn_block__prompt'

CNT  = 0x0
ZR   = 0x30000
KVM  = [ZR, ZR + 32768]
ZZ   = [ZR + 65536, ZR + 98304]
ST3  = ZR + 131072
ZRSZ = 147456
ST1  = 0x1C000
GCNT = 0x20000
TS   = 0x80000
XT   = [0x100000, 0x300000, 0x500000, 0x700000]
PQ   = [0x900000, 0xB00000]
WQF  = 0xD00000
WOFG = 0xE80000
WS_SIZE = 0xF00000

L_WO = 0
L_KC = 65536
L_XL = 82432
L_MISC = L_XL + 65536
LDS_SIZE = 163840
L_U  = L_XL
L_Y  = L_XL + 18560
L_TA = L_XL
L_TB = L_XL + 9216
L_TW = L_XL + 46080
L_CT = L_XL + 18432
L_KD = L_XL + 28672
L_KVF = L_XL
L_O32 = L_XL + 17408
L_OT  = L_XL + 52224
L_S2R = L_MISC
L_S2M = L_MISC + 256
L_STG = L_MISC + 512

STPERM = True
TLBSH = 20
OUTWARM = ('v_and_b32 v8, 3, v255' + chr(10) + '        v_lshlrev_b32 v8, 19, v8' + chr(10) + '        buffer_load_dword v196, v8, s[56:59], 0 offen') if os.environ.get('OUTW','1') == '1' else ''
EARLYPF = ('v_lshlrev_b32 v198, 7, v0\n        global_load_dword v198, v198, s[66:67]' if os.environ.get('EARLY', '1') == '1' else '')
QSPLIT = int(os.environ.get('QSPLIT', '4'))
BMODE = os.environ.get('BMODE', 'adapt')
ADR = int(os.environ.get('ADR', '1'))
ADB = int(os.environ.get('ADB', '2'))
FLG = 0x24000
OUTF = os.environ.get('OUTF', '')
CODE_CHUNKS = int(os.environ.get('CODE_CHUNKS', '5'))
SLEEP = int(os.environ.get('SLEEP', '1' if os.environ.get('BMODE','adapt') == 'flag16' else '3'))
SLEEP0 = int(os.environ.get('SLEEP0', '14'))
SLEEPG = int(os.environ.get('SLEEPG', '6'))
LOG2E = 1.4426950408889634
def f2u(x):
    import struct
    return struct.unpack('<I', struct.pack('<f', x))[0]
def fx(x): return '0x%08x' % f2u(x)
def pk(r): return f"v[{r}:{r+1}]"
def v4(r): return f"v[{r}:{r+3}]"

S_ID='s2'; S_W='s3'; S_RT='s4'; S_CG='s5'; S_LAYER='s6'; S_TGT='s7'
SRD_WS='s[44:47]'; SRD_WQ='s[48:51]'; SRD_WO='s[52:55]'; SRD_OUT='s[56:59]'; SRD_X0='s[60:63]'
S_ONES='s64'
S_EXS='s[70:71]'
S_XIN='s72'; S_XOUT='s73'; S_ST='s74'; S_PQ='s75'; S_KV='s76'; S_Z='s77'
S_SPIN='s78'
S_T0='s8'; S_T1='s9'; S_T2='s10'; S_T3='s11'; S_T4='s12'; S_T5='s13'
S_DM='s14'; S_DS='s15'

V_LANE=255; V_WSK=254; V_WSV=252; V_WSQ=248
V_DSK1=246; V_DSK0=244
V_CNT=239; V_POLL=238; V_ONE=237
V_L16=243; V_H=242
V_TS=241; V_TS2=240
V_GCNT=235; V_POLL2=234; V_TGT=233
V_RANK=232
V_PT=236

WOF = 104
def weave(main, fill, per=2, lead=0):
    out = []; fi = 0
    for k, m in enumerate(main):
        out.append(m)
        if k >= lead:
            for _ in range(per):
                if fi < len(fill): out.append(fill[fi]); fi += 1
    out += fill[fi:]
    return out
def zipmerge(*lists):
    out = []
    n = max(len(l) for l in lists)
    for i in range(n):
        for l in lists:
            if i < len(l): out.append(l[i])
    return out
import re as _re
def unpk(ins):
    m = _re.match(r'v_pk_(mul|add|fma)_f32 v\[(\d+):\d+\], (.*)', ins)
    if not m: return [ins]
    op, d, rest = m.group(1), int(m.group(2)), m.group(3)
    srcs = [int(x) for x in _re.findall(r'v\[(\d+):\d+\]', rest)]
    n = len(srcs)
    hi = [1]*n
    mm = _re.search(r'op_sel_hi:\[([\d,]+)\]', rest)
    if mm: hi = [int(x) for x in mm.group(1).split(',')]
    assert 'op_sel:[' not in rest
    neg = [0]*n
    mm = _re.search(r'neg_lo:\[([\d,]+)\]', rest)
    if mm: neg = [int(x) for x in mm.group(1).split(',')]
    out = []
    for h in range(2):
        ops = []
        for i in range(n):
            r = srcs[i] + (h if hi[i] else 0)
            ops.append(('-' if neg[i] else '') + f'v{r}')
        out.append(f"v_{op}_f32 v{d+h}, " + ', '.join(ops))
    return out
def unpk_all(L):
    o = []
    for x in L: o += unpk(x)
    return o
def lines(s): return [t.strip() for t in s.split('\n') if t.strip()]

class Gen:
    def __init__(self, stop=None, ts=False):
        self.a = Asm(); self.stop = stop; self.ts = ts; self.tsn = 0
    def emit(self, lst):
        for x in lst: self.a(x)

    def stamp(self):
        if not self.ts: return
        n = self.tsn; self.tsn += 1
        self.a(f"""
        s_memrealtime s[80:81]
        s_lshl_b32 s82, {S_LAYER}, 5
        s_add_u32 m0, s82, {n}
        s_waitcnt lgkmcnt(0)
        v_writelane_b32 v{V_TS}, s80, m0
        """)
    def sub(self, i):
        if self.ts: self.a(f"s_memtime s[{86+2*i}:{87+2*i}]")
    def subflush(self, phase, n):
        if not self.ts: return
        a = self.a
        a(f"s_waitcnt lgkmcnt(0)\ns_lshl_b32 s82, {S_LAYER}, 5\ns_add_u32 m0, s82, {phase*8}")
        for i in range(n):
            a(f"v_writelane_b32 v{V_TS2}, s{86+2*i}, m0\ns_add_u32 m0, m0, 1\ns_nop 3")
    def tsdump(self):
        if not self.ts: return
        a = self.a; l = a.label('TD')
        if os.environ.get('DBGTS'):
            sel = [1,2,3,4,5,7,8,10,11,12, 32+4,32+5,32+7,32+8,32+10]
            a(f"""
            s_cmp_eq_u32 {S_ID}, 0
            s_cbranch_scc0 {l}
            s_cmp_eq_u32 {S_W}, 0
            s_cbranch_scc0 {l}
            v_readlane_b32 s80, v{V_TS}, 0
            """)
            for i, k in enumerate(sel):
                lane = k
                a(f"v_readlane_b32 s81, v{V_TS}, {lane}\ns_nop 3\ns_sub_u32 s81, s81, s80\nv_mov_b32 v1, s81\nv_mov_b32 v2, {4*(i+1)}\ns_mov_b64 exec, 1\nglobal_store_dword v2, v1, s[38:39]\ns_mov_b64 exec, -1")
            a(f"{l}:")
            return
        a(f"""
        s_cmp_eq_u32 {S_W}, 0
        s_cbranch_scc0 {l}
        s_lshl_b32 s82, {S_ID}, 9
        s_add_u32 s82, s82, {TS}
        v_lshlrev_b32 v1, 2, v{V_LANE}
        v_add_u32 v1, s82, v1
        buffer_store_dword v{V_TS}, v1, {SRD_WS}, 0 offen
        buffer_store_dword v{V_TS2}, v1, {SRD_WS}, 0 offen offset:256
        {l}:
        """)

    def arrive_core(self, finish=True):
        a = self.a
        if BMODE == 'flat':
            a(f"buffer_atomic_add v{V_ONE}, v{V_CNT}, {SRD_WS}, 0 offen sc1")
            return
        a(f"""
        v_mov_b32 v{V_RANK}, 1
        buffer_atomic_add v{V_RANK}, v{V_CNT}, {SRD_WS}, 0 offen sc0 sc1
        """)
        if finish: self.arrive_finish()
    def arrive_finish(self):
        a = self.a
        if BMODE == 'flag16':
            l = a.label('NL')
            a(f"""
            s_sub_u32 {S_T0}, {S_TGT}, 1
            s_waitcnt vmcnt(0)
            v_cmp_eq_u32 vcc, {S_T0}, v{V_RANK}
            s_cbranch_vccz {l}
            v_mov_b32 v{V_RANK}, {S_TGT}
            v_add_u32 v{V_PT}, {FLG - CNT}, v{V_CNT}
            buffer_store_dword v{V_RANK}, v{V_PT}, {SRD_WS}, 0 offen sc1
            {l}:
            """)
    def arrive(self):
        a = self.a; l = a.label('ARR')
        a(f"""
        s_waitcnt vmcnt(0) lgkmcnt(0)
        s_barrier
        s_add_u32 {S_TGT}, {S_TGT}, 16
        s_cmp_eq_u32 {S_W}, 0
        s_cbranch_scc0 {l}
        s_mov_b64 exec, 1
        """)
        self.arrive_core()
        a(f"""
        s_mov_b64 exec, -1
        {l}:
        """)
    def arrive_group(self):
        a = self.a; l = a.label('ARG')
        a(f"""
        s_waitcnt vmcnt(0) lgkmcnt(0)
        s_barrier
        s_cmp_eq_u32 {S_W}, 0
        s_cbranch_scc0 {l}
        s_mov_b64 exec, 1
        buffer_atomic_add v{V_ONE}, v{V_GCNT}, {SRD_WS}, 0 offen sc1
        s_mov_b64 exec, -1
        {l}:
        """)
    def wait_dual(self):
        a = self.a
        l = a.label('WT'); lp = a.label('POLL'); ld = a.label('PD')
        a(f"""
        s_cmp_eq_u32 {S_W}, 0
        s_cbranch_scc0 {l}
        s_add_u32 {S_T0}, {S_LAYER}, 1
        s_lshl_b32 {S_T0}, {S_T0}, 3
        v_mov_b32 v{V_TGT}, {S_TGT}
        v_mov_b32 v{V_PT}, {S_T0}
        v_cmp_eq_u32 vcc, 16, v{V_LANE}
        v_cndmask_b32 v{V_TGT}, v{V_TGT}, v{V_PT}, vcc
        s_mov_b64 exec, 0x1ffff
        s_mov_b32 {S_SPIN}, 0
        {('s_sleep ' + str(SLEEPG)) if SLEEPG else ''}
        {lp}:
        buffer_load_dword v{V_PT}, v{V_POLL2}, {SRD_WS}, 0 offen sc1
        s_add_u32 {S_SPIN}, {S_SPIN}, 1
        s_waitcnt vmcnt(0)
        v_cmp_gt_u32 vcc, v{V_TGT}, v{V_PT}
        s_cbranch_vccz {ld}
        {('s_sleep ' + str(SLEEP)) if SLEEP else ''}
        s_cmp_lt_u32 {S_SPIN}, 0x200000
        s_cbranch_scc1 {lp}
        {ld}:
        s_mov_b64 exec, -1
        {l}:
        s_barrier
        """)
    def wait(self, l0skip=False, sleep0=None, adr=None, adb=None, adr0=None):
        a = self.a
        l = a.label('WT'); lp = a.label('POLL'); ld = a.label('PD'); ls = a.label('NS')
        SLEEP0 = sleep0 if sleep0 is not None else globals()['SLEEP0']
        if BMODE == 'flat':
            pre = ((f's_cmp_eq_u32 {S_LAYER}, 0' + chr(10) + f's_cbranch_scc1 {lp}' + chr(10)) if l0skip else '') + (f's_sleep {SLEEP0}' if SLEEP0 else '')
        elif BMODE == 'flag16':
            pre = ''
        else:
            la = a.label('AD'); lb = a.label('AD')
            ADR = adr if adr is not None else globals()['ADR']; ADB = adb if adb is not None else globals()['ADB']
            adr0 = adr0 if adr0 is not None else ADR
            pre = f'''s_cmp_eq_u32 {S_LAYER}, 0
            s_cselect_b32 {S_T1}, {adr0}, {ADR}
            s_waitcnt vmcnt(0)
            v_readfirstlane_b32 {S_T0}, v{V_RANK}
            s_and_b32 {S_T0}, {S_T0}, 15
            s_sub_u32 {S_T0}, 15, {S_T0}
            s_mul_i32 {S_T0}, {S_T0}, {S_T1}
            s_add_u32 {S_T0}, {S_T0}, {ADB}
            {la}:
            s_sleep 1
            s_sub_u32 {S_T0}, {S_T0}, 1
            s_cmp_gt_i32 {S_T0}, 0
            s_cbranch_scc1 {la}'''
        a(f"""
        s_cmp_eq_u32 {S_W}, 0
        s_cbranch_scc0 {l}
        s_mov_b64 exec, 0xffff
        s_mov_b32 {S_SPIN}, 0
        {pre}
        {lp}:
        buffer_load_dword v{V_PT}, v{V_POLL}, {SRD_WS}, 0 offen {('offset:0' if BMODE != 'flag16' else '')} sc1
        s_add_u32 {S_SPIN}, {S_SPIN}, 1
        s_waitcnt vmcnt(0)
        v_cmp_gt_u32 vcc, {S_TGT}, v{V_PT}
        s_cbranch_vccz {ld}
        {('s_sleep ' + str(SLEEP)) if SLEEP else ''}
        s_cmp_lt_u32 {S_SPIN}, 0x200000
        s_cbranch_scc1 {lp}
        {ld}:
        s_mov_b64 exec, -1
        {l}:
        s_barrier
        """)

    def reduce_h(self, r, t):
        return lines(f"""
        v_mov_b32 v{t}, v{r}
        v_permlane16_swap_b32 v{r}, v{t}
        v_add_f32 v{r}, v{r}, v{t}
        v_mov_b32 v{t}, v{r}
        v_permlane32_swap_b32 v{r}, v{t}
        v_add_f32 v{r}, v{r}, v{t}
        """)
    def reduce16(self, r):
        return lines(f"""
        v_add_f32_dpp v{r}, v{r}, v{r} quad_perm:[1,0,3,2] row_mask:0xf bank_mask:0xf
        v_add_f32_dpp v{r}, v{r}, v{r} quad_perm:[2,3,0,1] row_mask:0xf bank_mask:0xf
        v_add_f32_dpp v{r}, v{r}, v{r} row_half_mirror row_mask:0xf bank_mask:0xf
        v_add_f32_dpp v{r}, v{r}, v{r} row_mirror row_mask:0xf bank_mask:0xf
        """)
    def ln_final1(self, sm, sq, r_out, mr_out, t):
        return lines(f"""
        v_mul_f32 v{t}, {fx(1/512)}, v{sm}
        v_mul_f32 v{t+1}, {fx(1/512)}, v{sq}
        v_fma_f32 v{t+1}, -v{t}, v{t}, v{t+1}
        v_cvt_pk_bf16_f32 v{t+2}, v{t}, v{t+1}
        v_lshlrev_b32 v{t}, 16, v{t+2}
        v_and_b32 v{t+1}, 0xffff0000, v{t+2}
        v_add_f32 v{t+1}, {fx(1e-5)}, v{t+1}
        v_cvt_pk_bf16_f32 v{t+1}, v{t+1}, v{t+1}
        v_and_b32 v{t+1}, 0xffff0000, v{t+1}
        v_sqrt_f32 v{t+1}, v{t+1}
        v_cvt_pk_bf16_f32 v{t+1}, v{t+1}, v{t+1}
        v_and_b32 v{t+1}, 0xffff0000, v{t+1}
        v_rcp_f32 v{r_out}, v{t+1}
        v_mul_f32 v{mr_out}, v{t}, v{r_out}
        """)

    def prologue(self):
        a = self.a
        a(f"""
        s_cmp_ge_u32 {S_ID}, 256
        s_cbranch_scc1 L_EXIT
        s_getpc_b64 s[66:67]
        s_load_dwordx16 s[16:31], s[0:1], 0
        s_load_dwordx8 s[32:39], s[0:1], 64
        s_load_dwordx2 s[40:41], s[0:1], 96
        {EARLYPF}
        v_and_b32 v{V_LANE}, 63, v0
        v_lshrrev_b32 v1, 6, v0
        v_and_b32 v{V_L16}, 15, v0
        v_bfe_u32 v{V_H}, v0, 4, 2
        v_readfirstlane_b32 {S_W}, v1
        s_and_b32 {S_T0}, {S_ID}, 7
        s_lshl_b32 {S_T0}, {S_T0}, 2
        s_lshr_b32 {S_T1}, {S_ID}, 6
        s_add_u32 {S_RT}, {S_T0}, {S_T1}
        s_lshr_b32 {S_CG}, {S_ID}, 3
        s_and_b32 {S_CG}, {S_CG}, 7
        s_mov_b32 {S_LAYER}, 0
        s_mov_b32 {S_TGT}, 0
        s_mov_b32 {S_ONES}, 0x3f803f80
        v_mov_b32 v{V_ONE}, 1
        s_and_b32 {S_T0}, {S_ID}, 15
        s_lshl_b32 {S_T0}, {S_T0}, 10
        v_mov_b32 v{V_CNT}, {S_T0}
        v_lshlrev_b32 v{V_POLL}, 10, v{V_LANE}
        v_add_u32 v{V_POLL}, {FLG if BMODE == 'flag16' else CNT}, v{V_POLL}
        s_waitcnt lgkmcnt(0)
        s_mov_b32 s60, s16
        s_and_b32 s61, s17, 0xffff
        s_mov_b32 s62, {2048*512*2}
        s_mov_b32 s63, 0x20000
        """)
    def prologue2(self):
        a = self.a
        a(f"""
        s_mov_b32 s44, s40
        s_and_b32 s45, s41, 0xffff
        s_mov_b32 s46, {WS_SIZE}
        s_mov_b32 s47, 0x20000
        s_mov_b32 s48, s32
        s_and_b32 s49, s33, 0xffff
        s_mov_b32 s50, {512*1536*2}
        s_mov_b32 s51, 0x20000
        s_mov_b32 s52, s34
        s_and_b32 s53, s35, 0xffff
        s_mov_b32 s54, {512*512*2}
        s_mov_b32 s55, 0x20000
        s_mov_b32 s56, s36
        s_and_b32 s57, s37, 0xffff
        s_mov_b32 s58, {2048*512*2}
        s_mov_b32 s59, 0x20000
        s_lshl_b32 {S_T0}, {S_RT}, 10
        s_add_u32 {S_T0}, {S_T0}, {GCNT}
        v_mov_b32 v{V_GCNT}, {S_T0}
        v_cmp_eq_u32 vcc, 16, v{V_LANE}
        v_cndmask_b32 v{V_POLL2}, v{V_POLL}, v{V_GCNT}, vcc
        """)

    def dma_weight(self, srd, rowpitch, colbyte, lds_base, swz, t, defer=False):
        a = self.a
        a(f"""
        v_lshrrev_b32 v{t}, 3, v{V_LANE}
        v_mul_u32_u24 v{t}, {rowpitch}, v{t}
        v_bfe_u32 v{t+1}, v{V_LANE}, 1, 2
        v_bfe_u32 v{t+2}, v{V_LANE}, 4, 1
        """)
        if swz == 'x':
            a(f"s_and_b32 {S_T0}, {S_W}, 1\ns_lshl_b32 {S_T0}, {S_T0}, 1\nv_or_b32 v{t+2}, {S_T0}, v{t+2}")
        else:
            a(f"v_lshlrev_b32 v{t+2}, 1, v{t+2}")
        a(f"""
        v_xor_b32 v{t+1}, v{t+1}, v{t+2}
        v_lshl_add_u32 v{t}, v{t+1}, 5, v{t}
        v_and_b32 v{t+1}, 1, v{V_LANE}
        v_lshl_add_u32 v{t}, v{t+1}, 4, v{t}
        s_lshl_b32 {S_T0}, {S_CG}, 7
        s_add_u32 {S_T0}, {S_T0}, {colbyte}
        v_add_u32 v{t}, {S_T0}, v{t}
        s_mul_i32 {S_DS}, {S_W}, {8*rowpitch}
        s_lshl_b32 {S_DM}, {S_W}, 10
        s_add_u32 {S_DM}, {S_DM}, {lds_base}
        """)
        groups = [lines(f"""
            s_mov_b32 m0, {S_DM}
            s_add_u32 {S_DM}, {S_DM}, 4096
            buffer_load_dwordx4 v{t}, {srd}, {S_DS} offen lds
            s_add_u32 {S_DS}, {S_DS}, {32*rowpitch}
            """) for i in range(16)]
        if defer: return groups
        for g in groups: self.emit(g)

    def wread_lists(self, lds_base, abase, part, t, o):
        rd = lines(f"""
        v_lshrrev_b32 v{t}, 2, v{V_L16}
        v_lshl_add_u32 v{t+1}, v{V_H}, 3, v{t}
        v_lshlrev_b32 v{t+1}, 7, v{t+1}
        v_and_b32 v{t+2}, 3, v{V_L16}
        v_lshl_add_u32 v{t+1}, v{t+2}, 3, v{t+1}
        v_add_u32 v{t+1}, {lds_base}, v{t+1}
        v_lshrrev_b32 v{t}, 1, v{t}
        v_and_b32 v{t+2}, 1, v{V_H}
        v_lshl_or_b32 v{t}, v{t+2}, 1, v{t}
        v_xor_b32 v{t}, {S_W}, v{t}
        v_lshl_add_u32 v{t+3}, v{t}, 5, v{t+1}
        """)
        for i in range(4): rd.append(f"v_mov_b32 v{o+i}, {S_ONES}")
        for ks in range(16):
            rd.append(f"ds_read_b64_tr_b16 a[{abase+4*ks}:{abase+4*ks+1}], v{t+3} offset:{ks*4096}")
            rd.append(f"ds_read_b64_tr_b16 a[{abase+4*ks+2}:{abase+4*ks+3}], v{t+3} offset:{ks*4096+512}")
        mf = []
        for ks in range(16):
            c = '0' if ks == 0 else v4(o+4)
            w = f"a[{abase+4*ks}:{abase+4*ks+3}]"
            if part == 0: mf.append(f"v_mfma_f32_16x16x32_bf16 {v4(o+4)}, {w}, {v4(o)}, {c}")
            else: mf.append(f"v_mfma_f32_16x16x32_bf16 {v4(o+4)}, {v4(o)}, {w}, {c}")
        if part == 0: mf += [f"v_mov_b32 v{V_WSQ+i}, v{o+4+i}" for i in range(4)]
        elif part == 1: mf.append(f"v_mov_b32 v{V_WSK}, v{o+4}")
        else: mf.append(f"v_mov_b32 v{V_WSV}, v{o+4}")
        return rd, mf

    def p0(self):
        a = self.a
        a(f"""
        v_lshrrev_b32 v1, 3, v0
        s_lshl_b32 {S_T0}, {S_RT}, 16
        s_lshl_b32 {S_T1}, {S_CG}, 7
        s_add_u32 {S_T0}, {S_T0}, {S_T1}
        v_lshlrev_b32 v2, 10, v1
        v_and_b32 v3, 7, v0
        v_lshl_add_u32 v2, v3, 4, v2
        v_add_u32 v2, {S_T0}, v2
        buffer_load_dwordx4 v[10:13], v2, {SRD_X0}, 0 offen
        v_add_u32 v4, 0x8000, v2
        buffer_load_dwordx4 v[14:17], v4, {SRD_X0}, 0 offen
        s_and_b32 {S_T0}, {S_ID}, 63
        s_lshl_b32 {S_T0}, {S_T0}, 2
        s_add_u32 {S_T0}, {S_T0}, {S_W}
        s_lshl_b32 {S_T0}, {S_T0}, 3
        s_lshr_b32 {S_T1}, {S_ID}, 6
        s_lshl_b32 {S_T1}, {S_T1}, 1
        s_add_u32 {S_T0}, {S_T0}, {S_T1}
        s_lshl_b32 {S_T0}, {S_T0}, 10
        v_lshlrev_b32 v5, 4, v{V_LANE}
        v_add_u32 v5, {S_T0}, v5
        buffer_load_dwordx4 v[18:21], v5, {SRD_X0}, 0 offen
        buffer_load_dwordx4 v[22:25], v5, {SRD_X0}, 0 offen offset:1024
        s_lshl_b32 {S_T0}, {S_ID}, 9
        v_lshlrev_b32 v6, 1, v0
        v_add_u32 v6, {S_T0}, v6
        global_load_ushort v26, v6, s[18:19]
        global_load_ushort v27, v6, s[20:21]
        global_load_ushort v28, v6, s[22:23]
        global_load_ushort v29, v6, s[24:25]
        v_lshrrev_b32 v7, 7, v0
        s_lshl_b32 {S_T0}, {S_ID}, 1
        v_add_lshl_u32 v7, v7, {S_T0}, 1
        global_load_ushort v30, v7, s[26:27]
        s_lshl_b32 {S_T0}, {S_ID}, 2
        v_mov_b32 v7, {S_T0}
        global_load_dword v{V_DSK0}, v7, s[28:29]
        """)
        self.prologue2()
        a(f"""
        v_and_b32 v8, 15, v{V_LANE}
        v_lshlrev_b32 v8, {TLBSH}, v8
        buffer_load_dword v197, v8, {SRD_WS}, 0 offen
        {OUTWARM}
        """)
        lw = a.label('WT'); lw2 = a.label('WT')
        a(f"""
        s_and_b32 {S_T2}, {S_ID}, 7
        s_cmp_lt_u32 {S_ID}, 192
        s_cbranch_scc0 {lw}
        s_lshr_b32 {S_T3}, {S_ID}, 3
        s_mul_i32 {S_T0}, {S_T2}, {64*3072}
        s_lshl_b32 {S_T1}, {S_T3}, 7
        s_add_u32 {S_T0}, {S_T0}, {S_T1}
        v_mul_u32_u24 v8, 3072, v1
        v_lshl_add_u32 v8, v3, 4, v8
        v_add_u32 v8, {S_T0}, v8
        buffer_load_dwordx4 v[200:203], v8, {SRD_WQ}, 0 offen
        v_add_u32 v8, {32*3072}, v8
        buffer_load_dwordx4 v[204:207], v8, {SRD_WQ}, 0 offen
        s_branch {lw2}
        {lw}:
        s_sub_u32 {S_T3}, {S_ID}, 192
        s_lshr_b32 {S_T3}, {S_T3}, 3
        s_lshl_b32 {S_T0}, {S_T2}, 16
        s_lshl_b32 {S_T1}, {S_T3}, 7
        s_add_u32 {S_T0}, {S_T0}, {S_T1}
        v_lshlrev_b32 v8, 10, v1
        v_lshl_add_u32 v8, v3, 4, v8
        v_add_u32 v8, {S_T0}, v8
        buffer_load_dwordx4 v[200:203], v8, {SRD_WO}, 0 offen
        v_add_u32 v8, 0x8000, v8
        buffer_load_dwordx4 v[204:207], v8, {SRD_WO}, 0 offen
        {lw2}:
        """)
        l = a.label('CI')
        a(f"""
        s_cmp_lt_u32 {S_ID}, 16
        s_cbranch_scc0 {l}
        s_cmp_eq_u32 {S_W}, 0
        s_cbranch_scc0 {l}
        s_mov_b64 exec, 1
        v_mov_b32 v8, 0
        buffer_store_dword v8, v{V_CNT}, {SRD_WS}, 0 offen sc1
        v_add_u32 v9, {FLG - CNT}, v{V_CNT}
        buffer_store_dword v8, v9, {SRD_WS}, 0 offen sc1
        s_mov_b64 exec, -1
        {l}:
        """)
        IDX = 180
        a(f"v_lshlrev_b32 v31, 3, v0\nv_sub_u32 v31, 2047, v31\ns_mov_b32 {S_T5}, {L_KD}")
        chains = []
        for i in range(0, 10, 2):
            t = 32 + 4*(i//2)
            c = lines(f"""
            v_subrev_u32 v{t}, {i}, v31
            v_subrev_u32 v{t+1}, {i+1}, v31
            v_max_i32 v{t}, 0, v{t}
            v_max_i32 v{t+1}, 0, v{t+1}
            v_cvt_f32_i32 v{t}, v{t}
            v_cvt_f32_i32 v{t+1}, v{t+1}
            v_cvt_pk_bf16_f32 v{t+2}, v{t}, v{t+1}
            v_lshlrev_b32 v{t}, 16, v{t+2}
            v_and_b32 v{t+1}, 0xffff0000, v{t+2}
            v_cvt_u32_f32 v{t}, v{t}
            v_cvt_u32_f32 v{t+1}, v{t+1}
            v_lshrrev_b32 v{t+2}, 2, v{t}
            v_lshrrev_b32 v{t+3}, 2, v{t+1}
            v_add_u32 v{t+2}, 384, v{t+2}
            v_add_u32 v{t+3}, 384, v{t+3}
            v_min_u32 v{t}, v{t}, v{t+2}
            v_min_u32 v{t+1}, v{t+1}, v{t+3}
            v_lshrrev_b32 v{t+2}, 5, v{t}
            v_lshrrev_b32 v{t+3}, 5, v{t+1}
            v_add_u32 v{t}, v{t}, v{t+2}
            v_add_u32 v{t+1}, v{t+1}, v{t+3}
            v_lshl_add_u32 v{IDX+i}, v{t}, 2, {S_T5}
            """)
            if i + 1 < 9: c.append(f"v_lshl_add_u32 v{IDX+i+1}, v{t+1}, 2, {S_T5}")
            chains.append(c)
        self.emit(zipmerge(*chains))
        a(f"""
        v_mul_u32_u24 v8, 144, v1
        v_lshl_add_u32 v8, v3, 4, v8
        v_add_u32 v9, {L_TW}, v8
        v_add_u32 v8, {L_TA}, v8
        s_waitcnt vmcnt({12 if OUTWARM else 11})
        ds_write_b128 v8, v[10:13]
        ds_write_b128 v8, v[14:17] offset:{32*144}
        s_waitcnt vmcnt({10 if OUTWARM else 9})
        """)
        for r in range(32, 36): a(f"v_mov_b32 v{r}, 0")
        for j in range(4):
            for row in range(2):
                b = 18 + 4*row; sm = 32 + 2*row
                a(f"v_dot2_f32_bf16 v{sm}, v{b+j}, {S_ONES}, v{sm}\nv_dot2_f32_bf16 v{sm+1}, v{b+j}, v{b+j}, v{sm+1}")
        self.emit(zipmerge(*[self.reduce16(r) for r in range(32, 36)]))
        self.emit(zipmerge(*[self.reduce_h(r, 36 + (r-32)) for r in range(32, 36)]))
        a(f"""
        s_lshl_b32 {S_T0}, {S_W}, 4
        s_add_u32 {S_T0}, {S_T0}, {L_STG}
        v_mov_b32 v36, {S_T0}
        ds_write_b128 v36, v[32:35]
        s_waitcnt vmcnt(0)
        ds_write_b128 v9, v[200:203]
        ds_write_b128 v9, v[204:207] offset:{32*144}
        s_cmp_lt_u32 {S_ID}, 16
        s_cbranch_scc0 L_CI2
        s_cmp_eq_u32 {S_W}, 0
        s_cbranch_scc0 L_CI2
        s_mov_b64 exec, 1
        v_mov_b32 v37, 0
        global_atomic_add v37, v{V_ONE}, s[38:39] sc1
        s_mov_b64 exec, -1
        L_CI2:
        v_lshrrev_b32 v9, 2, v{V_L16}
        v_lshl_add_u32 v9, v{V_H}, 3, v9
        v_mul_u32_u24 v9, 144, v9
        v_and_b32 v2, 3, v{V_L16}
        v_lshl_add_u32 v9, v2, 3, v9
        s_lshl_b32 {S_T0}, {S_W}, 5
        s_add_u32 {S_T0}, {S_T0}, {L_TA}
        v_add_u32 v9, {S_T0}, v9
        s_lshl_b32 {S_T0}, {S_W}, 4
        v_add_u32 v2, {S_T0}, v{V_L16}
        v_mul_u32_u24 v2, 144, v2
        v_lshl_add_u32 v2, v{V_H}, 4, v2
        v_add_u32 v2, {L_TB}, v2
        s_waitcnt lgkmcnt(0)
        s_barrier
        ds_read_b64_tr_b16 v[10:11], v9
        ds_read_b64_tr_b16 v[12:13], v9 offset:{4*144}
        ds_read_b64_tr_b16 v[14:15], v9 offset:{32*144}
        ds_read_b64_tr_b16 v[16:17], v9 offset:{36*144}
        """)
        lz = a.label('WF'); lz2 = a.label('WF')
        a(f"""
        s_cmp_lt_u32 {S_ID}, 192
        s_cbranch_scc0 {lz}
        v_add_u32 v8, {L_TW - L_TA}, v9
        ds_read_b64_tr_b16 v[200:201], v8
        ds_read_b64_tr_b16 v[202:203], v8 offset:{4*144}
        ds_read_b64_tr_b16 v[204:205], v8 offset:{32*144}
        ds_read_b64_tr_b16 v[206:207], v8 offset:{36*144}
        s_lshr_b32 {S_T0}, {S_T3}, 3
        s_lshl_b32 {S_T0}, {S_T0}, 19
        s_and_b32 {S_T1}, {S_T3}, 7
        s_lshl_b32 {S_T1}, {S_T1}, 2
        s_add_u32 {S_T1}, {S_T1}, {S_W}
        s_lshl_b32 {S_T1}, {S_T1}, 14
        s_add_u32 {S_T0}, {S_T0}, {S_T1}
        s_lshl_b32 {S_T1}, {S_T2}, 11
        s_add_u32 {S_T0}, {S_T0}, {S_T1}
        s_add_u32 {S_T0}, {S_T0}, {WQF}
        s_branch {lz2}
        {lz}:
        v_lshrrev_b32 v8, 2, v{V_L16}
        v_lshrrev_b32 v7, 1, v{V_H}
        v_lshl_add_u32 v8, v7, 2, v8
        s_lshl_b32 {S_T0}, {S_W}, 4
        v_add_u32 v8, {S_T0}, v8
        v_mul_u32_u24 v8, 144, v8
        v_and_b32 v7, 1, v{V_H}
        v_lshl_add_u32 v8, v7, 5, v8
        v_and_b32 v7, 3, v{V_L16}
        v_lshl_add_u32 v8, v7, 3, v8
        v_add_u32 v8, {L_TW}, v8
        ds_read_b64_tr_b16 v[200:201], v8
        ds_read_b64_tr_b16 v[202:203], v8 offset:{8*144}
        ds_read_b64_tr_b16 v[204:205], v8 offset:64
        ds_read_b64_tr_b16 v[206:207], v8 offset:{8*144+64}
        s_lshl_b32 {S_T0}, {S_T3}, 16
        s_lshl_b32 {S_T1}, {S_T2}, 2
        s_add_u32 {S_T1}, {S_T1}, {S_W}
        s_lshl_b32 {S_T1}, {S_T1}, 11
        s_add_u32 {S_T0}, {S_T0}, {S_T1}
        s_add_u32 {S_T0}, {S_T0}, {WOFG}
        {lz2}:
        v_lshlrev_b32 v7, 4, v{V_LANE}
        v_add_u32 v7, {S_T0}, v7
        v_mul_u32_u24 v9, 144, v1
        v_lshl_add_u32 v9, v3, 4, v9
        v_add_u32 v9, {L_TB}, v9
        s_lshl_b32 {S_T0}, {S_CG}, 18
        s_lshl_b32 {S_T1}, {S_RT}, 7
        s_add_u32 {S_T0}, {S_T0}, {S_T1}
        s_add_u32 {S_T0}, {S_T0}, {XT[0]}
        v_lshlrev_b32 v4, 12, v1
        v_lshl_add_u32 v4, v3, 4, v4
        v_add_u32 v4, {S_T0}, v4
        v_add_u32 v5, 0x20000, v4
        s_waitcnt lgkmcnt(0)
        ds_write_b128 v2, v[10:13]
        ds_write_b128 v2, v[14:17] offset:64
        buffer_store_dwordx4 v[200:203], v7, {SRD_WS}, 0 offen sc1
        buffer_store_dwordx4 v[204:207], v7, {SRD_WS}, 0 offen offset:1024 sc1
        v_mov_b32 v6, 0
        s_waitcnt lgkmcnt(0)
        s_barrier
        ds_read_b128 v[10:13], v9
        ds_read_b128 v[14:17], v9 offset:{32*144}
        s_waitcnt lgkmcnt(0)
        buffer_store_dwordx4 v[10:13], v4, {SRD_WS}, 0 offen sc1
        buffer_store_dwordx4 v[14:17], v5, {SRD_WS}, 0 offen sc1
        global_load_dword v{V_PT}, v6, s[38:39] sc1
        """)
        l1 = a.label('Z1'); l2 = a.label('Z2')
        a(f"""
        s_cmp_eq_u32 {S_W}, 1
        s_cbranch_scc0 {l1}
        s_mov_b32 exec_lo, -1
        s_mov_b32 exec_hi, 0xf
        v_mov_b32 v10, 0
        v_mov_b32 v11, 0
        v_mov_b32 v12, 0
        v_mov_b32 v13, 0
        s_mul_i32 {S_T0}, {S_ID}, 576
        s_add_u32 {S_T0}, {S_T0}, {ZR}
        v_lshlrev_b32 v4, 4, v{V_LANE}
        v_add_u32 v4, {S_T0}, v4
        buffer_store_dwordx4 v[10:13], v4, {SRD_WS}, 0 offen sc1
        s_mov_b64 exec, -1
        {l1}:
        s_cmp_eq_u32 {S_W}, 2
        s_cbranch_scc0 {l2}
        s_mov_b64 exec, 0xf
        v_lshlrev_b32 v4, 4, v{V_LANE}
        v_add_u32 v5, {L_STG}, v4
        ds_read_b128 v[10:13], v5
        s_lshl_b32 {S_T0}, {S_ID}, 6
        s_add_u32 {S_T0}, {S_T0}, {ST1}
        v_add_u32 v4, {S_T0}, v4
        s_waitcnt lgkmcnt(0)
        buffer_store_dwordx4 v[10:13], v4, {SRD_WS}, 0 offen sc1
        s_mov_b64 exec, -1
        {l2}:
        """)
        self.stamp()
        self.kgen_consts()
        a("s_waitcnt lgkmcnt(0)\ns_barrier")
        self.sub(0)
        self.sub(1)
        self.kgen_main(IDX)
        self.sub(6)
        self.subflush(3, 7)
        self.stamp()

    def arrive_first(self):
        a = self.a
        la = a.label('ARR1'); lp = a.label('INITP'); ld = a.label('INITD')
        a(f"""
        s_waitcnt vmcnt(0)
        s_barrier
        s_add_u32 {S_TGT}, {S_TGT}, 16
        s_cmp_eq_u32 {S_W}, 0
        s_cbranch_scc0 {la}
        s_mov_b64 exec, 1
        s_mov_b32 {S_SPIN}, 0
        v_mov_b32 v6, 0
        {lp}:
        v_cmp_le_u32 vcc, 16, v{V_PT}
        s_cbranch_vccnz {ld}
        global_load_dword v{V_PT}, v6, s[38:39] sc1
        s_add_u32 {S_SPIN}, {S_SPIN}, 1
        s_waitcnt vmcnt(0)
        s_cmp_lt_u32 {S_SPIN}, 0x200000
        s_cbranch_scc1 {lp}
        {ld}:
        """)
        self.arrive_core(finish=False)
        a(f"""
        s_mov_b64 exec, -1
        {la}:
        """)

    def cexp(self, p, dr, di, t):
        return lines(f"""
        v_mul_f32 v{t}, {fx(p)}, v40
        v_mul_f32 v{t+1}, {fx(p)}, v41
        v_exp_f32 v{t}, v{t}
        v_fract_f32 v{t+1}, v{t+1}
        v_cos_f32 v{t+2}, v{t+1}
        v_sin_f32 v{t+1}, v{t+1}
        v_mul_f32 v{dr}, v{t}, v{t+2}
        v_mul_f32 v{di}, v{t}, v{t+1}
        """)

    def kgen_consts(self):
        a = self.a
        a(f"""
        v_and_b32 v{V_DSK1}, 0xffff0000, v{V_DSK0}
        v_lshlrev_b32 v{V_DSK0}, 16, v{V_DSK0}
        v_lshlrev_b32 v26, 16, v26
        v_lshlrev_b32 v30, 16, v30
        v_lshlrev_b32 v27, 16, v27
        v_lshlrev_b32 v28, 16, v28
        v_mul_f32 v30, {fx(LOG2E)}, v30
        v_mul_f32 v26, {fx(LOG2E)}, v26
        v_lshlrev_b32 v29, 16, v29
        v_exp_f32 v30, v30
        v_exp_f32 v26, v26
        v_cvt_pk_bf16_f32 v31, v30, v26
        v_lshlrev_b32 v30, 16, v31
        v_and_b32 v26, 0xffff0000, v31
        v_mul_f32 v40, v26, v30
        v_mul_f32 v41, v27, v30
        v_mul_f32 v42, v28, v30
        v_mul_f32 v43, v29, v30
        v_mul_f32 v40, {fx(-LOG2E)}, v40
        v_mul_f32 v41, {fx(1/(2*math.pi))}, v41
        v_add_f32 v42, v42, v42
        v_add_f32 v43, v43, v43
        v_rndne_f32 v31, v41
        v_sub_f32 v41, v41, v31
        """)
        ch = []
        for i, p in enumerate((256.0, 512.0, 1536.0)):
            t = 52 + 6*i; d = 44 + 2*i
            c = self.cexp(p, t+3, t+4, t)
            c += lines(f"""
            v_mul_f32 v{d}, v42, v{t+3}
            v_mul_f32 v{d+1}, v42, v{t+4}
            v_fma_f32 v{d}, -v43, v{t+4}, v{d}
            v_fma_f32 v{d+1}, v43, v{t+3}, v{d+1}
            """)
            ch.append(c)
        self.emit(zipmerge(*ch))
        a(f"""
        v_lshrrev_b32 v1, 7, v0
        v_mul_u32_u24 v1, 5120, v1
        v_and_b32 v2, 127, v0
        v_lshl_add_u32 v1, v2, 2, v1
        v_add_u32 v1, {L_CT}, v1
        """)
        for q in range(10): a(f"ds_write_b32 v1, v{40+q} offset:{q*512}")

    def kgen_main(self, IDX):
        a = self.a
        a(f"""
        s_lshr_b32 {S_T0}, {S_W}, 1
        s_mul_i32 {S_T0}, {S_T0}, 5120
        s_and_b32 {S_T1}, {S_W}, 1
        s_lshl_b32 {S_T1}, {S_T1}, 8
        s_add_u32 {S_T0}, {S_T0}, {S_T1}
        s_add_u32 {S_T0}, {S_T0}, {L_CT}
        v_lshlrev_b32 v1, 4, v{V_H}
        v_add_u32 v1, {S_T0}, v1
        v_cvt_f32_u32 v2, v{V_L16}
        v_mov_b32 v3, v2
        """)
        ACC = 160
        def kstep(B, off, first):
            Q = lambda q: B + 4*q
            FR, FI, T0, T1 = B+40, B+44, B+48, B+52
            A0, A1, F0F, F2F = B+56, B+60, B+64, B+68
            rd = [f"ds_read_b128 {v4(Q(q))}, v1 offset:{q*512 + off}" for q in range(10)]
            L = []
            for h in (0, 2):
                L.append(f"v_pk_mul_f32 {pk(T0+h)}, {pk(Q(0)+h)}, v[2:3]")
                L.append(f"v_pk_mul_f32 {pk(T1+h)}, {pk(Q(1)+h)}, v[2:3]")
            for i in range(4):
                L.append(f"v_exp_f32 v{T0+i}, v{T0+i}")
            for i in range(4):
                L.append(f"v_cos_f32 v{FR+i}, v{T1+i}")
                L.append(f"v_sin_f32 v{FI+i}, v{T1+i}")
            for h in (0, 2):
                L.append(f"v_pk_mul_f32 {pk(FR+h)}, {pk(FR+h)}, {pk(T0+h)}")
                L.append(f"v_pk_mul_f32 {pk(FI+h)}, {pk(FI+h)}, {pk(T0+h)}")
            def packF(dst):
                L.extend([f"v_cvt_pk_bf16_f32 v{dst}, v{FR}, v{FR+1}", f"v_cvt_pk_bf16_f32 v{dst+1}, v{FR+2}, v{FR+3}",
                          f"v_cvt_pk_bf16_f32 v{dst+2}, v{FI}, v{FI+1}", f"v_cvt_pk_bf16_f32 v{dst+3}, v{FI+2}, v{FI+3}"])
            def sq():
                for h in (0, 2):
                    L.append(f"v_pk_mul_f32 {pk(T0+h)}, {pk(FI+h)}, {pk(FI+h)}")
                    L.append(f"v_pk_mul_f32 {pk(T1+h)}, {pk(FR+h)}, {pk(FI+h)}")
                for h in (0, 2):
                    L.append(f"v_pk_fma_f32 {pk(FR+h)}, {pk(FR+h)}, {pk(FR+h)}, {pk(T0+h)} neg_lo:[0,0,1] neg_hi:[0,0,1]")
                    L.append(f"v_pk_add_f32 {pk(FI+h)}, {pk(T1+h)}, {pk(T1+h)}")
            def gmul(q, dst):
                cr, ci = Q(q), Q(q+1)
                for h in (0, 2):
                    L.append(f"v_pk_mul_f32 {pk(T0+h)}, {pk(ci+h)}, {pk(FI+h)}")
                    L.append(f"v_pk_mul_f32 {pk(T1+h)}, {pk(ci+h)}, {pk(FR+h)}")
                for h in (0, 2):
                    L.append(f"v_pk_fma_f32 {pk(T0+h)}, {pk(cr+h)}, {pk(FR+h)}, {pk(T0+h)} neg_lo:[0,0,1] neg_hi:[0,0,1]")
                    L.append(f"v_pk_fma_f32 {pk(T1+h)}, {pk(cr+h)}, {pk(FI+h)}, {pk(T1+h)} neg_lo:[1,0,1] neg_hi:[1,0,1]")
                L.extend([f"v_cvt_pk_bf16_f32 v{dst}, v{T0}, v{T0+1}", f"v_cvt_pk_bf16_f32 v{dst+1}, v{T0+2}, v{T0+3}",
                          f"v_cvt_pk_bf16_f32 v{dst+2}, v{T1}, v{T1+1}", f"v_cvt_pk_bf16_f32 v{dst+3}, v{T1+2}, v{T1+3}"])
            def mm(T, A, F):
                c = '0' if first else v4(ACC+4*T)
                L.append(f"v_mfma_f32_16x16x32_bf16 {v4(ACC+4*T)}, {v4(A)}, {v4(F)}, {c}")
            packF(F0F); sq(); sq(); packF(F2F); sq(); sq()
            gmul(2, A0); mm(0, A0, F0F); gmul(4, A1); mm(1, A1, F0F)
            sq(); sq()
            gmul(6, A0); mm(2, A0, F2F); gmul(8, A1); mm(3, A1, F2F)
            return rd, L
        BA, BB = 8, 84
        def sprinkle(L, groups):
            step = max(1, len(L) // (len(groups) + 1)); out = []
            for i, x in enumerate(L):
                out.append(x)
                if groups and (i + 1) % step == 0: out += groups.pop(0)
            for g in groups: out += g
            return out
        for i in range(16): a(f"v_mov_b32 v{ACC+i}, 0")
        lk = a.label('KG'); lk2 = a.label('KG')
        a(f"s_mov_b32 {S_T4}, 0\n{lk}:")
        rdA, LA = kstep(BA, 0, False)
        rdB, LB = kstep(BB, 64, False)
        self.emit(rdA[:2] + rdB[:2] + rdA[2:] + rdB[2:])
        a("s_waitcnt lgkmcnt(15)")
        n_pre = 4+4+8+4 + 4+16+4+16
        self.emit(zipmerge(LA[:n_pre], LB[:n_pre]))
        a("s_waitcnt lgkmcnt(0)")
        self.emit(zipmerge(LA[n_pre:], LB[n_pre:]))
        a(f"v_add_u32 v1, 128, v1\ns_cmp_eq_u32 {S_T4}, 0\ns_cbranch_scc0 {lk2}")
        self.arrive_first()
        self.stamp()
        a(f"s_mov_b32 {S_T4}, 1\ns_branch {lk}\n{lk2}:\ns_nop 7")
        lf = a.label('AF')
        a(f"s_cmp_eq_u32 {S_W}, 0\ns_cbranch_scc0 {lf}\ns_mov_b64 exec, 1")
        self.arrive_finish()
        a(f"s_mov_b64 exec, -1\n{lf}:")
        self.sub(2)
        a(f"""
        s_lshr_b32 {S_T0}, {S_W}, 1
        s_mul_i32 {S_T0}, {S_T0}, 4224
        s_and_b32 {S_T1}, {S_W}, 1
        s_mul_i32 {S_T1}, {S_T1}, 8448
        s_add_u32 {S_T0}, {S_T0}, {S_T1}
        s_add_u32 {S_T0}, {S_T0}, {L_KD}
        v_mul_u32_u24 v1, 264, v{V_H}
        v_lshl_add_u32 v1, v{V_L16}, 2, v1
        v_add_u32 v1, {S_T0}, v1
        """)
        for T in range(4):
            for r in range(4):
                a(f"ds_write_b32 v1, v{ACC+4*T+r} offset:{1056*T+64*r+4*(r>>1)}")
        a("s_waitcnt vmcnt(0) lgkmcnt(0)\ns_barrier")
        self.sub(3)
        VAL = 8
        for part in range(2):
            for ch in range(2):
                for i in range(9):
                    a(f"ds_read_b32 v{VAL+18*part+9*ch+i}, v{IDX+i} offset:{8448*part + 4224*ch}")
        a(f"""
        v_cmp_ne_u32 vcc, 255, v0
        v_lshlrev_b32 v1, 4, v0
        v_add_u32 v1, {L_KC + 8}, v1
        s_waitcnt lgkmcnt(0)
        """)
        for i in range(18): a(f"v_add_f32 v{VAL+i}, v{VAL+i}, v{VAL+18+i}")
        a(f"v_cndmask_b32 v{VAL+8}, 0, v{VAL+8}, vcc\nv_cndmask_b32 v{VAL+17}, 0, v{VAL+17}, vcc")
        self.sub(4)
        for ch in range(2):
            for m0 in range(2):
                o = 80 + 4*(2*ch+m0)
                s0 = VAL + 9*ch + (1 - m0)
                for p in range(4): a(f"v_cvt_pk_bf16_f32 v{o+p}, v{s0+2*p}, v{s0+2*p+1}")
                a(f"ds_write_b64 v1, {pk(o)} offset:{ch*8448+m0*4224}")
                a(f"ds_write_b64 v1, {pk(o+2)} offset:{ch*8448+m0*4224+8}")
        a(f"""
        v_cmp_gt_u32 vcc, 14, v{V_L16}
        v_mul_u32_u24 v1, 4224, v{V_H}
        v_lshl_add_u32 v1, v{V_L16}, 2, v1
        v_add_u32 v1, {L_KC + 4104}, v1
        v_mov_b32 v2, 0
        s_cmp_eq_u32 {S_W}, 0
        s_cselect_b64 {S_EXS}, vcc, 0
        s_mov_b64 exec, {S_EXS}
        ds_write_b32 v1, v2
        s_mov_b64 exec, -1
        s_waitcnt lgkmcnt(0)
        """)
        self.sub(5)
        a("s_barrier")

    def wfrag_loads(self):
        setup = lines(f"""
        s_lshl_b32 {S_T0}, {S_CG}, 2
        s_add_u32 {S_T0}, {S_T0}, {S_W}
        s_lshl_b32 {S_T0}, {S_T0}, 14
        s_add_u32 s79, {S_T0}, {WQF}
        s_add_u32 {S_DS}, s79, {1 << 19}
        v_lshlrev_b32 v18, 4, v{V_LANE}
        """)
        groups = []
        for p in (1, 2):
            for ks in range(16):
                g = [f"buffer_load_dwordx4 a[{64*p+4*ks}:{64*p+4*ks+3}], v18, {SRD_WS}, {S_DS} offen sc1"]
                g.append(f"s_add_u32 {S_DS}, {S_DS}, {1024 if ks < 15 else (1 << 19) - 15*1024}")
                groups.append(g)
        for ks in list(range(QSPLIT, 16)):
            groups.append([f"s_add_u32 {S_T5}, s79, {ks*1024}", f"buffer_load_dwordx4 a[{4*ks}:{4*ks+3}], v18, {SRD_WS}, {S_T5} offen sc1"])
        for ks in range(QSPLIT):
            groups.append([f"s_add_u32 {S_T5}, s79, {ks*1024}", f"buffer_load_dwordx4 a[{4*ks}:{4*ks+3}], v111, {SRD_WS}, {S_T5} offen sc1"])
        return setup, groups

    def wsum(self, o=16, parts=(1, 2)):
        a = self.a
        for i in range(4): a(f"v_mov_b32 v{o+i}, {S_ONES}")
        for ks in range(16):
            for p in parts:
                d = v4(o+4+4*p); c = '0' if ks == 0 else d
                w = f"a[{64*p+4*ks}:{64*p+4*ks+3}]"
                if p == 0: a(f"v_mfma_f32_16x16x32_bf16 {d}, {w}, {v4(o)}, {c}")
                else: a(f"v_mfma_f32_16x16x32_bf16 {d}, {v4(o)}, {w}, {c}")
        if 0 in parts:
            for i in range(4): a(f"v_mov_b32 v{V_WSQ+i}, v{o+4+i}")
        if 1 in parts: a(f"v_mov_b32 v{V_WSK}, v{o+8}")
        if 2 in parts: a(f"v_mov_b32 v{V_WSV}, v{o+12}")

    CV = dict(XA=10, ST=20, AX=3, AS=4, AU0=5, AU1=6, AK=8, AU=9, ACC=80, X32=200, U32=216)
    def conv_pre(self):
        a = self.a
        a(f"""
        s_lshl_b32 {S_T0}, {S_ID}, 13
        s_add_u32 {S_T0}, {S_T0}, {S_XIN}
        v_lshlrev_b32 v3, 4, v0
        v_add_u32 v3, {S_T0}, v3
        v_lshlrev_b32 v4, 4, v0
        v_add_u32 v4, {S_ST}, v4
        v_lshlrev_b32 v5, 4, v0
        v_add_u32 v5, {L_U + 512}, v5
        v_add_u32 v6, 9280, v5
        v_bfe_u32 v1, v0, 5, 2
        v_mul_u32_u24 v1, 4640, v1
        v_and_b32 v2, 31, v0
        v_lshl_add_u32 v1, v2, 4, v1
        v_add_u32 v1, {L_U}, v1
        v_mov_b32 v36, 0
        v_mov_b32 v37, 0
        v_mov_b32 v38, 0
        v_mov_b32 v39, 0
        v_and_b32 v2, 1, v0
        v_mul_u32_u24 v2, 9280, v2
        v_add_u32 v2, {L_U + 512}, v2
        ds_write_b32 v2, v36
        v_cmp_gt_u32 vcc, 128, v0
        s_and_saveexec_b64 {S_EXS}, vcc
        ds_write_b128 v1, v[36:39]
        s_mov_b64 exec, -1
        s_lshr_b32 {S_T0}, {S_W}, 1
        s_and_b32 {S_T1}, {S_W}, 1
        s_mul_i32 {S_T2}, {S_T0}, 8448
        s_lshl_b32 {S_T3}, {S_T1}, 8
        s_sub_u32 {S_T2}, {S_T2}, {S_T3}
        s_add_u32 {S_T2}, {S_T2}, {L_KC + 4096 - 192 - 3584}
        v_and_b32 v1, 1, v{V_L16}
        v_lshrrev_b32 v7, 1, v{V_L16}
        v_mul_u32_u24 v8, 4224, v1
        v_lshl_add_u32 v8, v{V_H}, 4, v8
        v_lshlrev_b32 v9, 3, v7
        v_sub_u32 v8, v8, v9
        v_add_u32 v8, {S_T2}, v8
        s_mul_i32 {S_T2}, {S_T0}, 9280
        s_sub_u32 {S_T2}, {S_T2}, {S_T3}
        s_add_u32 {S_T2}, {S_T2}, {L_U + 512 - 192}
        v_mul_u32_u24 v9, 4640, v1
        v_lshl_add_u32 v9, v7, 6, v9
        v_lshl_add_u32 v9, v{V_H}, 4, v9
        v_add_u32 v9, {S_T2}, v9
        s_lshl_b32 {S_T1}, {S_T1}, 1
        s_add_u32 {S_T0}, {S_T0}, {S_T1}
        s_mul_i32 {S_T0}, {S_T0}, 9216
        s_add_u32 {S_T0}, {S_T0}, {L_Y}
        v_mul_u32_u24 v2, 144, v7
        v_lshl_add_u32 v2, v{V_H}, 5, v2
        v_lshl_add_u32 v2, v1, 3, v2
        v_add_u32 v2, {S_T0}, v2
        v_lshrrev_b32 v7, 2, v0
        v_lshlrev_b32 v7, 4, v7
        v_lshl_add_u32 v7, v0, 5, v7
        v_add_u32 v7, {L_Y}, v7
        s_waitcnt lgkmcnt(0)
        """)
        for i in (0, 1, 3):
            for q in range(8):
                for hh in range(2):
                    b = {0: 112, 1: 192, 3: 224}[i] + 4*q + 2*hh
                    reg = f"{'v' if i == 0 else 'a'}[{b}:{b+1}]"
                    a(f"ds_read_b64 {reg}, v8 offset:{(3-i)*64 + (7-q)*512 + 8*hh}")

    def conv(self):
        a = self.a
        self.sub(0)
        XA, XB, ST = 10, 14, 20
        for j in range(4):
            a(f"s_mov_b32 {S_T0}, {4096*j}\nbuffer_load_dwordx4 {v4(ST+4*j)}, v4, {SRD_WS}, {S_T0} offen sc1")
        a(f"""
        buffer_load_dwordx4 {v4(XA)}, v3, {SRD_WS}, 0 offen sc1
        v_add_u32 v1, 4096, v3
        buffer_load_dwordx4 {v4(XB)}, v1, {SRD_WS}, 0 offen sc1
        s_mov_b32 s66, {fx(1/512)}
        s_mov_b32 s67, {fx(1e-5)}
        v_mov_b32 v36, s66
        v_mov_b32 v37, s66
        v_mov_b32 v38, s67
        v_mov_b32 v39, s67
        """)
        setup, self.wg = self.wfrag_loads()
        l1 = a.label('CW'); l2 = a.label('CW')
        a(f"s_cmp_eq_u32 {S_LAYER}, 0\ns_cselect_b64 vcc, -1, 0\ns_cbranch_scc0 {l1}")
        self.emit(setup)
        for g in self.wg[:8]: self.emit(g)
        a(f"s_waitcnt vmcnt(10)\ns_branch {l2}\n{l1}:\ns_waitcnt vmcnt(2)\n{l2}:")
        self.sub(1)
        S = lambda i: ST + 2*i
        P  = 40
        MB = 48; VB = 56; R = 64; MR = 72
        for i in range(8): a(f"v_pk_mul_f32 {pk(S(i))}, {pk(S(i))}, v[36:37]")
        for i in range(8): a(f"v_fma_f32 v{S(i)+1}, -v{S(i)}, v{S(i)}, v{S(i)+1}")
        for i in range(8): a(f"v_cvt_pk_bf16_f32 v{P+i}, v{S(i)}, v{S(i)+1}")
        for i in range(8): a(f"v_and_b32 v{VB+i}, 0xffff0000, v{P+i}")
        for i in range(4): a(f"v_pk_add_f32 {pk(VB+2*i)}, {pk(VB+2*i)}, v[38:39]")
        for i in range(8): a(f"v_lshlrev_b32 v{MB+i}, 16, v{P+i}")
        for i in range(4): a(f"v_cvt_pk_bf16_f32 v{P+i}, v{VB+2*i}, v{VB+2*i+1}")
        for i in range(4):
            a(f"v_lshlrev_b32 v{VB+2*i}, 16, v{P+i}\nv_and_b32 v{VB+2*i+1}, 0xffff0000, v{P+i}")
        X32, U32 = 200, 216
        fill = []
        for c, X in enumerate((XA, XB)):
            for p in range(4):
                fill.append(f"v_lshlrev_b32 v{X32+8*c+2*p}, 16, v{X+p}")
                fill.append(f"v_and_b32 v{X32+8*c+2*p+1}, 0xffff0000, v{X+p}")
        for i in range(8): a(f"v_sqrt_f32 v{VB+i}, v{VB+i}")
        for i in range(4): a(f"v_cvt_pk_bf16_f32 v{P+i}, v{VB+2*i}, v{VB+2*i+1}")
        for i in range(4):
            a(f"v_lshlrev_b32 v{VB+2*i}, 16, v{P+i}\nv_and_b32 v{VB+2*i+1}, 0xffff0000, v{P+i}")
        l1 = a.label('CW'); l2 = a.label('CW')
        a(f"s_cbranch_vccz {l1}\ns_waitcnt vmcnt(8)\ns_branch {l2}\n{l1}:\ns_waitcnt vmcnt(0)\n{l2}:")
        self.emit(weave([f"v_rcp_f32 v{R+i}, v{VB+i}" for i in range(8)], fill, per=2))
        for i in range(4): a(f"v_pk_mul_f32 {pk(MR+2*i)}, {pk(MB+2*i)}, {pk(R+2*i)}")
        self.sub(2)
        for c in range(2):
            for p in range(4):
                x = X32+8*c+2*p; u = U32+8*c+2*p
                a(f"v_pk_fma_f32 {pk(u)}, {pk(x)}, {pk(R+2*p)}, {pk(MR+2*p)} neg_lo:[0,0,1] neg_hi:[0,0,1]")
        UP = 40
        for c in range(2):
            for p in range(4):
                u = U32+8*c+2*p
                a(f"v_cvt_pk_bf16_f32 v{UP+4*c+p}, v{u}, v{u+1}")
            ad = 5 + c
            a(f"ds_write_b128 v{ad}, {v4(UP+4*c)} offset:4640")
            a(f"ds_write2_b32 v{ad}, v{UP+4*c}, v{UP+4*c+1} offset0:1 offset1:2")
            a(f"ds_write2_b32 v{ad}, v{UP+4*c+2}, v{UP+4*c+3} offset0:3 offset1:4")
        AK, AU, ACC = 8, 9, 80
        a("s_waitcnt lgkmcnt(0)\ns_barrier")
        self.sub(3)
        ABASE = {0: ('v', 112), 1: ('a', 192), 2: ('v', 40), 3: ('a', 224)}
        def fragA(i, q):
            f, b = ABASE[i]; return f"{f}[{b+4*q}:{b+4*q+3}]"
        BB = [[144+4*q for q in range(8)], [176, 180, 184, 188, 192, 196, 72, 76]]
        def fragB(st, q): return v4(BB[st][q])
        def loadB(i, st): return [f"ds_read_b128 {fragB(st, q)}, v{AU} offset:{(3-i)*64 + 512*q}" for q in range(8)]
        def loadA2():
            L = []
            for q in range(8):
                for hh in range(2):
                    b = 40 + 4*q + 2*hh
                    L.append(f"ds_read_b64 v[{b}:{b+1}], v{AK} offset:{(3-2)*64 + (7-q)*512 + 8*hh}")
            return L
        self.emit(loadB(0, 0))
        def mainloop(groups):
            written = set(); cnt = 0
            for i in range(4):
                st = i & 1
                a("s_waitcnt lgkmcnt(0)")
                nxt = loadB(i+1, st ^ 1) if i < 3 else []
                if i == 0: nxt = nxt + loadA2()
                for sh in range(8):
                    for t in range(sh, 8):
                        c = v4(ACC+4*t) if t in written else '0'
                        written.add(t)
                        a(f"v_mfma_f32_16x16x32_bf16 {v4(ACC+4*t)}, {fragA(i, sh)}, {fragB(st, t-sh)}, {c}")
                        cnt += 1
                        if nxt: a(nxt.pop(0))
                        if groups and cnt % 20 == 10:
                            lg = a.label('WG')
                            a(f"s_cbranch_vccz {lg}")
                            for _ in range(4): self.emit(groups.pop(0))
                            a(f"{lg}:")
            assert not groups
        NC = 48 - QSPLIT
        nloop = min(24, (NC - 8) * 2 // 3 // 4 * 4)
        self.nloop = nloop
        mainloop(self.wg[8:8+nloop])
        lb = a.label('WB')
        a(f"s_cbranch_vccz {lb}")
        for g in self.wg[8+self.nloop:48-QSPLIT]: self.emit(g)
        a(f"{lb}:")
        self.sub(4)
        for t in range(8):
            a(f"ds_write_b64 v2, {pk(ACC+4*t)} offset:{1152*t}")
            a(f"ds_write_b64 v2, {pk(ACC+4*t+2)} offset:{1152*t+16}")
        a("s_waitcnt lgkmcnt(0)\ns_barrier")
        self.sub(5)
        Y0 = 112
        for ch in range(2):
            for sh in range(2):
                for hh in range(2):
                    b = Y0 + 16*sh + 8*ch + 4*hh
                    a(f"ds_read_b128 {v4(b)}, v7 offset:{sh*18432 + ch*9216 + 16*hh}")
        a(f"""
        v_subrev_u32 v3, {S_XIN}, v3
        v_add_u32 v3, {S_XOUT}, v3
        v_add_u32 v1, 4096, v3
        """)
        for ch in range(2):
            a(f"s_waitcnt lgkmcnt({4*(1-ch)})")
            D = V_DSK0 if ch == 0 else V_DSK1
            for p in range(4):
                y = Y0 + 8*ch + 2*p
                a(f"v_pk_add_f32 {pk(y)}, {pk(y)}, {pk(y+16)}")
            for p in range(4):
                y = Y0 + 8*ch + 2*p; u = U32 + 8*ch + 2*p
                a(f"v_pk_fma_f32 {pk(y)}, {pk(u)}, {pk(D)}, {pk(y)} op_sel_hi:[1,0,1]")
            for p in range(4):
                y = Y0 + 8*ch + 2*p; x = X32 + 8*ch + 2*p
                a(f"v_pk_add_f32 {pk(y)}, {pk(y)}, {pk(x)}")
            for p in range(4):
                y = Y0 + 8*ch + 2*p
                a(f"v_cvt_pk_bf16_f32 v{80+4*ch+p}, v{y}, v{y+1}")
            a(f"buffer_store_dwordx4 {v4(80+4*ch)}, v{3 if ch == 0 else 1}, {SRD_WS}, 0 offen sc1")
        self.sub(6)
        self.subflush(0, 7)

    def wstage_kv(self):
        a = self.a
        l = a.label('WS')
        a(f"s_cmp_eq_u32 {S_LAYER}, 0\ns_cbranch_scc0 {l}")
        self.wsum()
        a(f"{l}:")

    def qkv_pre(self):
        a = self.a
        t = 10
        a(f"""
        v_lshrrev_b32 v{t}, 3, v{V_LANE}
        v_lshlrev_b32 v{t}, 12, v{t}
        v_bfe_u32 v{t+1}, v{V_LANE}, 1, 2
        v_bfe_u32 v{t+2}, v{V_LANE}, 4, 1
        s_and_b32 {S_T0}, {S_W}, 1
        s_lshl_b32 {S_T0}, {S_T0}, 1
        v_or_b32 v{t+2}, {S_T0}, v{t+2}
        v_xor_b32 v{t+1}, v{t+1}, v{t+2}
        v_lshl_add_u32 v{t}, v{t+1}, 5, v{t}
        v_and_b32 v{t+1}, 1, v{V_LANE}
        v_lshl_add_u32 v{t}, v{t+1}, 4, v{t}
        s_lshl_b32 {S_T0}, {S_RT}, 7
        v_add_u32 v{t}, {S_T0}, v{t}
        s_lshl_b32 {S_DS}, {S_W}, 15
        s_add_u32 {S_DS}, {S_DS}, {S_XIN}
        s_lshl_b32 {S_DM}, {S_W}, 10
        s_add_u32 {S_DM}, {S_DM}, {L_XL}
        """)
        t = 12
        a(f"""
        v_lshrrev_b32 v{t}, 2, v{V_L16}
        v_lshl_add_u32 v{t+1}, v{V_H}, 3, v{t}
        v_lshlrev_b32 v{t+1}, 7, v{t+1}
        v_and_b32 v{t+2}, 3, v{V_L16}
        v_lshl_add_u32 v{t+1}, v{t+2}, 3, v{t+1}
        v_add_u32 v{t+1}, {L_XL}, v{t+1}
        v_lshrrev_b32 v{t}, 1, v{t}
        v_and_b32 v{t+2}, 1, v{V_H}
        v_lshl_or_b32 v{t}, v{t+2}, 1, v{t}
        v_xor_b32 v{t}, {S_W}, v{t}
        """)
        for j in range(4):
            a(f"v_xor_b32 v{t+2}, {j}, v{t}\nv_lshl_add_u32 v{4+j}, v{t+2}, 5, v{t+1}")
        for i in range(4): a(f"v_mov_b32 v{104+i}, {S_ONES}")
        a(f"""
        s_mov_b32 s66, {fx(1e-6)}
        s_mov_b32 s67, {fx(LOG2E)}
        v_mov_b32 v112, s66
        v_mov_b32 v113, s66
        v_mov_b32 v114, s67
        v_mov_b32 v115, s67
        """)

    def qkv(self):
        a = self.a
        self.sub(0)
        def dma():
            return lines(f"""
            s_mov_b32 m0, {S_DM}
            s_add_u32 {S_DM}, {S_DM}, 4096
            buffer_load_dwordx4 v10, {SRD_WS}, {S_DS} offen sc1 lds
            s_add_u32 {S_DS}, {S_DS}, {4*32768}
            """)
        NUPF = int(os.environ.get('NUPF', '12'))
        for i in range(NUPF): self.emit(dma())
        AD = 4
        AK_, AV_, AQ_ = 16, 32, 48
        DS, DG = 64, 68
        ONES = 104
        XF = [72, 88]
        def xload(ks, st):
            L = []
            for j in range(4):
                b = XF[st] + 4*j
                L.append(f"ds_read_b64_tr_b16 {pk(b)}, v{AD+j} offset:{ks*4096}")
                L.append(f"ds_read_b64_tr_b16 {pk(b+2)}, v{AD+j} offset:{ks*4096+512}")
            return L
        S_WDS, S_WDM = 's84', 's85'
        a(f"""
        s_lshl_b32 {S_WDS}, {S_CG}, 16
        s_lshl_b32 {S_T0}, {S_W}, 14
        s_add_u32 {S_WDS}, {S_WDS}, {S_T0}
        s_add_u32 {S_WDS}, {S_WDS}, {WOFG}
        s_add_u32 {S_WDM}, {S_T0}, {L_WO}
        v_lshlrev_b32 v111, 4, v{V_LANE}
        """)
        def wo_group():
            lg = a.label('WOG')
            a(f"s_cmp_eq_u32 {S_LAYER}, 0\ns_cbranch_scc0 {lg}")
            for _ in range(4):
                a(f"""
                s_mov_b32 m0, {S_WDM}
                s_add_u32 {S_WDM}, {S_WDM}, 1024
                buffer_load_dwordx4 v111, {SRD_WS}, {S_WDS} offen sc1 lds
                s_add_u32 {S_WDS}, {S_WDS}, 1024
                """)
            a(f"{lg}:")
        SF = [200, 208]
        S = {0: [0], 1: [1, 2], 2: [3, 4], 3: [5, 6], 4: [7, 8], 5: [9, 10], 6: [11, 12], 7: [13, 14], 8: [15]}
        def sload(ks, st):
            L = []
            for n, kss in enumerate(S.get(ks, [])):
                b = SF[st] + 4*n
                L.append(f"ds_read_b64_tr_b16 {pk(b)}, v{AD} offset:{kss*4096}")
                L.append(f"ds_read_b64_tr_b16 {pk(b+2)}, v{AD} offset:{kss*4096+512}")
            return L
        ndma = [NUPF]
        landed = [-1]
        def need(idx):
            if idx <= landed[0]: return []
            landed[0] = idx
            return [f"s_waitcnt vmcnt({ndma[0] - 1 - idx})", "s_barrier"]
        waits = {0: 2, 1: 4, 2: 8, 4: 12, 6: 15}
        self.emit(need(1))
        self.sub(1)
        self.emit(xload(0, 0) + sload(0, 0))
        self.P1 = {}
        fillers = {}
        def pass1(ks, extra):
            st = ks & 1
            a("s_waitcnt lgkmcnt(0)")
            if ks in waits: self.emit(need(waits[ks]))
            fill = (xload(ks+1, st ^ 1) + sload(ks+1, st ^ 1)) if ks + 1 < 16 else (xload(0, st ^ 1) if QSPLIT > 0 else [])
            M = []
            for j in range(4):
                x = v4(XF[st]+4*j)
                ck = '0' if ks == 0 else v4(AK_+4*j); cv = '0' if ks == 0 else v4(AV_+4*j)
                M.append(f"v_mfma_f32_16x16x32_bf16 {v4(AK_+4*j)}, {x}, a[{64+4*ks}:{64+4*ks+3}], {ck}")
                M.append(f"v_mfma_f32_16x16x32_bf16 {v4(AV_+4*j)}, {x}, a[{128+4*ks}:{128+4*ks+3}], {cv}")
                if ks >= QSPLIT:
                    M.append(f"v_mfma_f32_16x16x32_bf16 {v4(AQ_+4*j)}, a[{4*ks}:{4*ks+3}], {x}, {'0' if ks == QSPLIT else v4(AQ_+4*j)}")
            for n, kss in enumerate(S.get(ks, [])):
                x0 = v4(SF[st] + 4*n)
                M.append(f"v_mfma_f32_16x16x32_bf16 {v4(DS)}, {v4(ONES)}, {x0}, {'0' if kss == 0 else v4(DS)}")
                M.append(f"v_mfma_f32_16x16x32_bf16 {v4(DG)}, {x0}, {x0}, {'0' if kss == 0 else v4(DG)}")
            k = min(2, 16 - ndma[0])
            for _ in range(k): fill = fill + dma()
            ndma[0] += k
            out = []; fi = list(fill); ex = list(extra)
            for mi, m in enumerate(M):
                out.append(m)
                n = 2
                while n > 0 and fi: out.append(fi.pop(0)); n -= 1
                while n > 0 and ex: out.append(ex.pop(0)); n -= 1
            out += fi
            self.emit(out)
            return ex
        self._pass1 = pass1
        SQ = 109
        F1 = lines(f"""
        v_and_b32 v8, 3, v{V_L16}
        v_lshrrev_b32 v9, 2, v{V_L16}
        v_cmp_eq_u32 s[66:67], 1, v8
        v_cmp_eq_u32 s[68:69], 2, v8
        v_cmp_eq_u32 vcc, 3, v8
        v_cndmask_b32 v{SQ}, v{DG}, v{DG+1}, s[66:67]
        v_cndmask_b32 v{SQ}, v{SQ}, v{DG+2}, s[68:69]
        v_cndmask_b32 v{SQ}, v{SQ}, v{DG+3}, vcc
        v_cmp_eq_u32 vcc, v9, v{V_H}
        s_lshl_b32 {S_T0}, {S_W}, 6
        s_add_u32 {S_T0}, {S_T0}, {L_S2R}
        v_cndmask_b32 v{SQ}, 0, v{SQ}, vcc
        v_lshlrev_b32 v8, 2, v{V_L16}
        v_add_u32 v9, {S_T0}, v8
        """)
        F1 += self.reduce_h(SQ, 110)
        F1 += self.ln_final1(DS, SQ, 116, 117, 118)
        F1 += lines(f"""
        ds_write_b32 v9, v116
        ds_write_b32 v9, v117 offset:{L_S2M-L_S2R}
        v_lshlrev_b32 v8, 4, v{V_H}
        v_add_u32 v8, {S_T0}, v8
        """)
        R4, M4 = 128, 144
        RQ, MQ = 160, 208
        F2 = []
        for j in range(4):
            F2.append(f"v_xor_b32 v{120+j}, {64*j}, v8")
            F2.append(f"v_xor_b32 v{124+j}, {64*j}, v9")
        for j in range(4):
            F2.append(f"ds_read_b128 {v4(R4+4*j)}, v{120+j}")
            F2.append(f"ds_read_b128 {v4(M4+4*j)}, v{120+j} offset:{L_S2M-L_S2R}")
        for j in range(4):
            F2.append(f"ds_read_b32 v{RQ+2*j}, v{124+j}")
            F2.append(f"ds_read_b32 v{MQ+2*j}, v{124+j} offset:{L_S2M-L_S2R}")
        EPS, L2E = 112, 114
        def phi(x, T):
            return [f"v_pk_mul_f32 {pk(T)}, {pk(x)}, {pk(L2E)}",
                    f"v_exp_f32_e64 v{T}, v{T} clamp", f"v_exp_f32_e64 v{T+1}, v{T+1} clamp",
                    f"v_max_f32 v{x}, v{EPS}, v{x}", f"v_max_f32 v{x+1}, v{EPS}, v{x+1}",
                    f"v_pk_add_f32 {pk(x)}, {pk(x)}, {pk(T)}"]
        PKF, VF, PQF = 168, 176, 200
        DKV, DZ = 196, 216
        def kv_chain(j, h2, T):
            k = AK_+4*j+h2; vv = AV_+4*j+h2; r = R4+4*j+h2; m = M4+4*j+h2
            c = [f"v_pk_fma_f32 {pk(T)}, {pk(m)}, v[{V_WSK}:{V_WSK+1}], {pk(EPS)} op_sel_hi:[1,0,1] neg_lo:[0,0,1] neg_hi:[0,0,1]",
                 f"v_pk_mul_f32 {pk(T+4)}, {pk(m)}, v[{V_WSV}:{V_WSV+1}] op_sel_hi:[1,0]",
                 f"v_pk_fma_f32 {pk(k)}, {pk(k)}, {pk(r)}, {pk(T)} neg_lo:[0,0,1] neg_hi:[0,0,1]",
                 f"v_pk_fma_f32 {pk(vv)}, {pk(vv)}, {pk(r)}, {pk(T+4)} neg_lo:[0,0,1] neg_hi:[0,0,1]"]
            ph = phi(k, T+2)
            c += [ph[0], f"v_cvt_pk_bf16_f32 v{VF + 2*j + h2//2}, v{vv}, v{vv+1}"] + ph[1:]
            c.append(f"v_cvt_pk_bf16_f32 v{PKF + 2*j + h2//2}, v{k}, v{k+1}")
            return c
        def q_chain(j, h2, T):
            q = AQ_+4*j+h2
            c = [f"v_pk_fma_f32 {pk(T)}, {pk(MQ+2*j)}, {pk(V_WSQ+h2)}, {pk(EPS)} op_sel_hi:[0,1,1] neg_lo:[0,0,1] neg_hi:[0,0,1]",
                 f"v_pk_fma_f32 {pk(q)}, {pk(q)}, {pk(RQ+2*j)}, {pk(T)} op_sel_hi:[1,0,1] neg_lo:[0,0,1] neg_hi:[0,0,1]"]
            c += phi(q, T+2)
            c.append(f"v_cvt_pk_bf16_f32 v{PQF + 2*j + h2//2}, v{q}, v{q+1}")
            return c
        adr = lines(f"""
        s_lshl_b32 {S_T0}, {S_CG}, 2
        s_add_u32 {S_T0}, {S_T0}, {S_W}
        s_lshl_b32 {S_T1}, {S_T0}, 10
        s_add_u32 {S_T1}, {S_T1}, {S_KV}
        v_lshlrev_b32 v11, 2, v{V_LANE}
        v_add_u32 v14, {S_T1}, v11
        s_lshl_b32 {S_T1}, {S_T0}, 10
        s_add_u32 {S_T1}, {S_T1}, {S_Z}
        s_and_b32 {S_T2}, {S_RT}, 3
        s_lshl_b32 {S_T2}, {S_T2}, 8
        s_add_u32 {S_T1}, {S_T1}, {S_T2}
        v_add_u32 v15, {S_T1}, v11
        s_lshl_b32 {S_T1}, {S_RT}, 16
        s_add_u32 {S_T1}, {S_T1}, {S_PQ}
        s_lshl_b32 {S_T2}, {S_T0}, 10
        s_add_u32 {S_T1}, {S_T1}, {S_T2}
        s_and_b32 {S_T2}, {S_W}, 1
        s_lshl_b32 {S_T2}, {S_T2}, 4
        v_xor_b32 v11, {S_T2}, v{V_LANE}
        v_lshlrev_b32 v11, 4, v11
        v_add_u32 v11, {S_T1}, v11
        s_lshr_b32 {S_T2}, {S_W}, 1
        s_lshl_b32 {S_T2}, {S_T2}, 15
        v_add_u32 v12, {S_T2}, v11
        s_xor_b32 {S_T2}, {S_T2}, 0x8000
        v_add_u32 v13, {S_T2}, v11
        """)
        def passQ(ks_range):
            for ks in ks_range:
                st = ks & 1
                nx = xload(ks+1, st ^ 1) if ks + 1 < QSPLIT else []
                a("s_waitcnt lgkmcnt(0)")
                for j in range(4):
                    x = v4(XF[st]+4*j)
                    c = '0' if (QSPLIT == 16 and ks == 0) else v4(AQ_+4*j)
                    a(f"v_mfma_f32_16x16x32_bf16 {v4(AQ_+4*j)}, a[{4*ks}:{4*ks+3}], {x}, {c}")
                    k = 4 if j < 2 else 0
                    for _ in range(k):
                        if nx: a(nx.pop(0))
        wq = list(self.wg[48-QSPLIT:])
        def wq_group():
            if not wq: return
            lg = a.label('WQG')
            a(f"s_cmp_eq_u32 {S_LAYER}, 0\ns_cbranch_scc0 {lg}")
            for _ in range(4):
                if wq: self.emit(wq.pop(0))
            a(f"{lg}:")
        for ks in range(0, 9):
            pass1(ks, [])
            if ks == 3: self.sub(2)
            if ks in (6, 8): wq_group()
        self.sub(3)
        ex = list(F1)
        for ks in range(9, 12):
            ex = pass1(ks, ex)
            if ks == 10: wq_group()
        self.emit(ex)
        wq_group()
        a("s_waitcnt lgkmcnt(0)\ns_barrier")
        self.sub(4)
        ex = list(F2) + adr
        for ks in range(12, 16):
            ex = pass1(ks, ex)
            if ks == 12: wo_group()
        self.emit(ex)
        wo_group()
        a("s_waitcnt lgkmcnt(0)")
        self.sub(5)
        TT = [184, 190, 220, 226]
        for j0 in (0, 2):
            self.emit(zipmerge(kv_chain(j0, 0, TT[0]), kv_chain(j0, 2, TT[1]), kv_chain(j0+1, 0, TT[2]), kv_chain(j0+1, 2, TT[3])))
            u = j0 // 2
            c1 = '0' if u == 0 else v4(DKV); c2 = '0' if u == 0 else v4(DZ)
            a(f"v_mfma_f32_16x16x32_bf16 {v4(DKV)}, {v4(VF+4*u)}, {v4(PKF+4*u)}, {c1}")
            a(f"v_mfma_f32_16x16x32_bf16 {v4(DZ)}, {v4(ONES)}, {v4(PKF+4*u)}, {c2}")
        for i in range(4):
            a(f"buffer_atomic_add_f32 v{DKV+i}, v14, {SRD_WS}, 0 offen offset:{256*i}")
        a(f"""
        s_mov_b64 exec, 0xffff
        buffer_atomic_add_f32 v{DZ}, v15, {SRD_WS}, 0 offen
        s_mov_b64 exec, -1
        """)
        wo_group()
        a("s_waitcnt vmcnt(17)")
        passQ(range(0, QSPLIT // 2))
        wo_group()
        passQ(range(QSPLIT // 2, QSPLIT))
        lq = a.label('WSQ')
        a(f"s_cmp_eq_u32 {S_LAYER}, 0\ns_cbranch_scc0 {lq}")
        self.wsum(o=120, parts=(0,))
        a(f"{lq}:")
        TQ = [184, 188, 220, 224]
        for u in range(2):
            j0 = 2*u
            self.emit(zipmerge(q_chain(j0, 0, TQ[0]), q_chain(j0, 2, TQ[1]), q_chain(j0+1, 0, TQ[2]), q_chain(j0+1, 2, TQ[3])))
            b = PQF + 4*u
            a(f"v_permlane16_swap_b32 v{b}, v{b+2}\nv_permlane16_swap_b32 v{b+1}, v{b+3}")
            a(f"buffer_store_dwordx4 {v4(b)}, v{12+u}, {SRD_WS}, 0 offen sc1")
        self.sub(6)
        self.subflush(1, 7)

    def outp_pre(self):
        a = self.a
        a(f"""
        s_lshl_b32 {S_T0}, {S_W}, 13
        s_add_u32 {S_T0}, {S_T0}, {S_KV}
        v_lshlrev_b32 v4, 4, v{V_LANE}
        v_add_u32 v4, {S_T0}, v4
        v_add_u32 v5, 4096, v4
        s_lshl_b32 {S_T0}, {S_W}, 13
        s_add_u32 {S_T0}, {S_T0}, {S_Z}
        v_bfe_u32 v6, v{V_LANE}, 2, 3
        v_lshlrev_b32 v6, 10, v6
        v_lshrrev_b32 v12, 5, v{V_LANE}
        v_lshl_add_u32 v6, v12, 8, v6
        v_and_b32 v12, 3, v{V_LANE}
        v_lshl_add_u32 v6, v12, 4, v6
        v_add_u32 v6, {S_T0}, v6
        s_and_b32 {S_T0}, {S_W}, 1
        s_lshl_b32 {S_T0}, {S_T0}, 15
        s_lshr_b32 {S_T1}, {S_W}, 1
        s_lshl_b32 {S_T1}, {S_T1}, 14
        s_add_u32 {S_T0}, {S_T0}, {S_T1}
        s_lshl_b32 {S_T1}, {S_RT}, 16
        s_add_u32 {S_T0}, {S_T0}, {S_T1}
        s_add_u32 {S_DS}, {S_T0}, {S_PQ}
        v_lshlrev_b32 v7, 4, v{V_LANE}
        v_lshrrev_b32 v1, 3, v0
        v_and_b32 v3, 7, v0
        s_lshl_b32 {S_T0}, {S_CG}, 18
        s_lshl_b32 {S_T1}, {S_RT}, 7
        s_add_u32 {S_T0}, {S_T0}, {S_T1}
        v_lshlrev_b32 v8, 12, v1
        v_lshl_add_u32 v8, v3, 4, v8
        v_add_u32 v8, {S_T0}, v8
        v_add_u32 v9, {S_XIN}, v8
        v_add_u32 v2, 0x20000, v9
        v_lshrrev_b32 v10, 4, v{V_LANE}
        v_bfe_u32 v11, v{V_LANE}, 2, 2
        v_lshl_add_u32 v10, v11, 2, v10
        v_bfe_u32 v11, v{V_LANE}, 1, 1
        v_lshl_add_u32 v10, v11, 4, v10
        v_lshlrev_b32 v10, 4, v10
        v_and_b32 v11, 1, v{V_LANE}
        v_lshl_add_u32 v10, v11, 3, v10
        s_mul_i32 {S_T0}, {S_W}, {8*544}
        s_add_u32 {S_T0}, {S_T0}, {L_KVF}
        v_add_u32 v10, {S_T0}, v10
        v_bfe_u32 v11, v{V_LANE}, 2, 3
        v_mul_u32_u24 v11, 544, v11
        v_and_b32 v12, 3, v{V_LANE}
        v_lshl_add_u32 v11, v12, 3, v11
        v_add_u32 v11, {S_T0}, v11
        v_and_b32 v12, 31, v{V_LANE}
        v_lshrrev_b32 v13, 5, v{V_LANE}
        v_lshlrev_b32 v14, 4, v13
        v_add_u32 v15, v14, v12
        v_lshlrev_b32 v15, 4, v15
        v_lshlrev_b32 v14, 4, v13
        v_add_u32 v14, 512, v14
        v_cmp_gt_u32 vcc, 16, v12
        v_cndmask_b32 v15, v14, v15, vcc
        s_lshr_b32 {S_T0}, {S_W}, 1
        s_mul_i32 {S_T1}, {S_T0}, {16*544}
        s_add_u32 {S_T1}, {S_T1}, {L_KVF}
        v_add_u32 v15, {S_T1}, v15
        v_lshrrev_b32 v16, 2, v{V_L16}
        v_lshrrev_b32 v17, 1, v{V_H}
        v_lshl_add_u32 v17, v17, 2, v16
        v_lshlrev_b32 v17, 7, v17
        v_and_b32 v18, 3, v{V_L16}
        v_lshl_add_u32 v17, v18, 3, v17
        s_lshl_b32 {S_T1}, {S_T0}, 15
        s_add_u32 {S_T1}, {S_T1}, {L_WO}
        v_add_u32 v17, {S_T1}, v17
        v_and_b32 v18, 2, v16
        v_and_b32 v19, 1, v{V_H}
        v_xor_b32 v18, v18, v19
        v_lshl_add_u32 v13, v18, 5, v17
        v_xor_b32 v18, 2, v18
        v_lshl_add_u32 v14, v18, 5, v17
        s_mul_i32 {S_T1}, {S_T0}, {64*272}
        s_and_b32 {S_T0}, {S_W}, 1
        s_lshl_b32 {S_T0}, {S_T0}, 7
        s_add_u32 {S_T1}, {S_T1}, {S_T0}
        s_add_u32 {S_T1}, {S_T1}, {L_O32}
        v_mul_u32_u24 v16, 272, v12
        v_lshrrev_b32 v17, 5, v{V_LANE}
        v_lshl_add_u32 v16, v17, 4, v16
        v_add_u32 v16, {S_T1}, v16
        v_mul_u32_u24 v17, 272, v1
        v_lshl_add_u32 v17, v3, 5, v17
        v_add_u32 v17, {L_O32}, v17
        v_mul_u32_u24 v18, 144, v1
        v_lshl_add_u32 v18, v3, 4, v18
        v_add_u32 v18, {L_OT}, v18
        """)
        a(f"""
        s_lshr_b32 {S_T0}, {S_W}, 1
        s_lshl_b32 {S_T0}, {S_T0}, 15
        s_add_u32 {S_T0}, {S_T0}, {L_WO}
        v_lshlrev_b32 v13, 4, v{V_LANE}
        v_add_u32 v13, {S_T0}, v13
        """)
        for i in range(16):
            for c in range(2):
                a(f"ds_read_b128 {v4(WOF + 8*i + 4*c)}, v13 offset:{i*2048 + c*1024}")

    def outp(self):
        a = self.a
        self.sub(0)
        KVL = 24
        issued = []
        def ld(txt, tag): a(txt); issued.append(tag)
        for p in range(8):
            ad = 4 if p < 4 else 5; off = (p & 3)*1024
            ld(f"buffer_load_dwordx4 {v4(KVL+4*p)}, v{ad}, {SRD_WS}, 0 offen offset:{off} sc1", 'kv')
        ld(f"buffer_load_dwordx4 v[56:59], v6, {SRD_WS}, 0 offen sc1", 'kv')
        ld(f"buffer_load_dwordx4 v[60:63], v6, {SRD_WS}, 0 offen offset:512 sc1", 'kv')
        def pqload(i):
            ld(f"buffer_load_dwordx4 a[{192+4*i}:{192+4*i+3}], v7, {SRD_WS}, {S_DS} offen sc1", f'pq{i}')
            a(f"s_add_u32 {S_DS}, {S_DS}, 1024")
        NUP = 4
        for i in range(NUP): pqload(i)
        def vm(tag):
            idx = max(i for i, t in enumerate(issued) if t == tag)
            return len(issued) - 1 - idx
        self.sub(1)
        a(f"s_waitcnt vmcnt({vm('kv')})")
        self.sub(2)
        for p in range(8):
            b = KVL + 4*p
            a(f"v_cvt_pk_bf16_f32 v{b}, v{b}, v{b+1}\nv_cvt_pk_bf16_f32 v{b+1}, v{b+2}, v{b+3}")
            a(f"ds_write_b64 v10, {pk(b)} offset:{p*544}")
        a("v_pk_add_f32 v[56:57], v[56:57], v[60:61]\nv_pk_add_f32 v[58:59], v[58:59], v[62:63]")
        for i in range(4):
            a(f"v_mov_b32 v{60+i}, v{56+i}\nv_permlane32_swap_b32 v{56+i}, v{60+i}\nv_add_f32 v{56+i}, v{56+i}, v{60+i}")
        a("v_cvt_pk_bf16_f32 v56, v56, v57\nv_cvt_pk_bf16_f32 v57, v58, v59")
        a(f"ds_write_b64 v11, v[56:57] offset:512")
        AKV = 15
        ACC = [72, 88]
        D1 = [32, 48]; KF = [20, 24, 28]; OF = [64, 68]
        XR = WOF
        for i in range(NUP, 10): pqload(i)
        a("s_waitcnt lgkmcnt(0)\ns_barrier")
        self.sub(3)
        def acc(c): return f"v[{ACC[c]}:{ACC[c]+15}]"
        def rdK(i): return [f"ds_read_b128 {v4(KF[i % 3])}, v{AKV} offset:{i*544}"]
        def m1(i): return f"v_mfma_f32_32x32x16_bf16 v[{D1[i&1]}:{D1[i&1]+15}], {v4(KF[i % 3])}, a[{192+4*i}:{192+4*i+3}], 0"
        def valu(i):
            d = D1[i & 1]; o = OF[i & 1]
            L = [f"v_add_f32 v{d+8}, {fx(1e-6)}, v{d+8}", f"v_rcp_f32 v{d+8}, v{d+8}"]
            L += [f"v_mul_f32 v{d+p}, v{d+p}, v{d+8}" for p in range(8)]
            L += [f"v_cvt_pk_bf16_f32 v{o+p}, v{d+2*p}, v{d+2*p+1}" for p in range(4)]
            return L
        def mo(i, c):
            b = WOF + 8*i + 4*c
            return f"v_mfma_f32_32x32x16_bf16 {acc(c)}, {v4(OF[i&1])}, {v4(b)}, {'0' if i == 0 else acc(c)}"
        self.emit(rdK(0) + rdK(1) + rdK(2))
        a(f"s_waitcnt vmcnt({vm('pq0')}) lgkmcnt(2)")
        a(m1(0))
        a(f"s_waitcnt vmcnt({vm('pq1')}) lgkmcnt(1)")
        a(m1(1))
        self.emit(valu(0))
        nxt = 10
        for i in range(16):
            V = valu(i+1) if i + 1 < 16 else []
            K_ = rdK(i+3) if i + 3 < 16 else []
            if i + 2 < 16: a(f"s_waitcnt vmcnt({vm(f'pq{i+2}')}) lgkmcnt(0)")
            a(mo(i, 0))
            self.emit(V[:2] + K_ + V[2:4])
            if i + 2 < 16: a(m1(i+2))
            self.emit(V[4:10])
            a(mo(i, 1))
            self.emit(V[10:])
            if nxt < 16:
                pqload(nxt); nxt += 1
            if i == 6:
                ld(f"buffer_load_dwordx4 {v4(XR)}, v9, {SRD_WS}, 0 offen sc1", 'x')
                ld(f"buffer_load_dwordx4 {v4(XR+4)}, v2, {SRD_WS}, 0 offen sc1", 'x')
        self.sub(4)
        for c in range(2):
            for aa in range(4):
                a(f"ds_write_b128 v16, {v4(ACC[c]+4*aa)} offset:{c*32*272 + 32*aa}")
        a("s_waitcnt lgkmcnt(0)\ns_barrier")
        Y = 32
        for i in range(2):
            for part in range(2):
                for hh in range(2):
                    a(f"ds_read_b128 {v4(Y+16*i+8*part+4*hh)}, v17 offset:{i*32*272 + part*64*272 + 16*hh}")
        a("s_waitcnt vmcnt(0)")
        self.sub(5)
        lf = a.label('FIN'); le = a.label('OE'); lx = a.label('OX')
        a(f"v_add_u32 v8, {S_XOUT}, v8\nv_add_u32 v9, 0x20000, v8")
        for i in range(2):
            a(f"s_waitcnt lgkmcnt({4*(1-i)})")
            y = Y + 16*i; x = XR + 4*i; t = 132 + 8*i
            for p in range(4): a(f"v_pk_add_f32 {pk(y+2*p)}, {pk(y+2*p)}, {pk(y+8+2*p)}")
            for p in range(4): a(f"v_cvt_pk_bf16_f32 v{y+8+p}, v{y+2*p}, v{y+2*p+1}")
            for p in range(4):
                a(f"v_lshlrev_b32 v{y+2*p}, 16, v{y+8+p}\nv_and_b32 v{y+2*p+1}, 0xffff0000, v{y+8+p}")
                a(f"v_lshlrev_b32 v{t+2*p}, 16, v{x+p}\nv_and_b32 v{t+2*p+1}, 0xffff0000, v{x+p}")
            for p in range(4): a(f"v_pk_add_f32 {pk(y+2*p)}, {pk(y+2*p)}, {pk(t+2*p)}")
            for p in range(4): a(f"v_cvt_pk_bf16_f32 v{160+4*i+p}, v{y+2*p}, v{y+2*p+1}")
            a(f"ds_write_b128 v18, {v4(160+4*i)} offset:{i*32*144}")
        a(f"""
        s_cmp_eq_u32 {S_LAYER}, 0
        s_cbranch_scc0 {lf}
        buffer_store_dwordx4 v[160:163], v8, {SRD_WS}, 0 offen sc1
        buffer_store_dwordx4 v[164:167], v9, {SRD_WS}, 0 offen sc1
        {lf}:
        v_lshrrev_b32 v10, 2, v{V_L16}
        v_lshl_add_u32 v10, v{V_H}, 3, v10
        v_mul_u32_u24 v10, 144, v10
        v_and_b32 v11, 3, v{V_L16}
        v_lshl_add_u32 v10, v11, 3, v10
        s_lshl_b32 {S_T0}, {S_W}, 5
        s_add_u32 {S_T0}, {S_T0}, {L_OT}
        v_add_u32 v10, {S_T0}, v10
        s_waitcnt lgkmcnt(0)
        s_barrier
        ds_read_b64_tr_b16 v[104:105], v10
        ds_read_b64_tr_b16 v[106:107], v10 offset:{4*144}
        ds_read_b64_tr_b16 v[108:109], v10 offset:{32*144}
        ds_read_b64_tr_b16 v[110:111], v10 offset:{36*144}
        s_cmp_eq_u32 {S_LAYER}, 0
        s_cbranch_scc0 {le}
        s_lshl_b32 {S_T0}, {S_RT}, 7
        s_lshl_b32 {S_T1}, {S_W}, 5
        s_add_u32 {S_T0}, {S_T0}, {S_T1}
        s_add_u32 {S_T0}, {S_T0}, {ST3}
        v_bfe_u32 v11, v{V_L16}, 1, 2
        v_lshlrev_b32 v11, 12, v11
        v_lshrrev_b32 v12, 3, v{V_L16}
        v_lshl_add_u32 v11, v12, 4, v11
        v_and_b32 v12, 1, v{V_L16}
        v_lshl_add_u32 v11, v12, 3, v11
        v_lshl_add_u32 v11, v{V_H}, 2, v11
        v_add_u32 v11, {S_T0}, v11
        v_mov_b32 v112, 0
        v_mov_b32 v113, 0
        v_mov_b32 v114, 0
        v_mov_b32 v115, 0
        s_waitcnt lgkmcnt(0)
        """)
        for j in range(4):
            a(f"v_dot2_f32_bf16 v112, v{104+j}, {S_ONES}, v112")
            a(f"v_dot2_f32_bf16 v113, v{104+j}, v{104+j}, v113")
            a(f"v_dot2_f32_bf16 v114, v{108+j}, {S_ONES}, v114")
            a(f"v_dot2_f32_bf16 v115, v{108+j}, v{108+j}, v115")
        a("v_pk_add_f32 v[112:113], v[112:113], v[114:115]")
        self.emit(zipmerge(self.reduce_h(112, 116), self.reduce_h(113, 117)))
        a(f"""
        v_cmp_eq_u32 vcc, 0, v{V_H}
        v_cndmask_b32 v112, v113, v112, vcc
        s_mov_b64 exec, 0xffffffff
        buffer_atomic_add_f32 v112, v11, {SRD_WS}, 0 offen
        s_mov_b64 exec, -1
        s_branch {lx}
        {le}:
        s_lshl_b32 {S_T0}, {S_RT}, 16
        s_lshl_b32 {S_T1}, {S_W}, 14
        s_add_u32 {S_T0}, {S_T0}, {S_T1}
        s_lshl_b32 {S_T1}, {S_CG}, 7
        s_add_u32 {S_T0}, {S_T0}, {S_T1}
        v_lshlrev_b32 v11, 10, v{V_L16}
        v_lshl_add_u32 v11, v{V_H}, 4, v11
        v_add_u32 v11, {S_T0}, v11
        s_waitcnt lgkmcnt(0)
        buffer_store_dwordx4 v[104:107], v11, {SRD_OUT}, 0 offen {OUTF}
        buffer_store_dwordx4 v[108:111], v11, {SRD_OUT}, 0 offen offset:64 {OUTF}
        {lx}:
        """)
        self.sub(6)
        self.subflush(2, 7)

    def build(self):
        a = self.a
        self.prologue()
        if self.ts: a(f"v_mov_b32 v{V_TS}, 0\nv_mov_b32 v{V_TS2}, 0")
        self.stamp()
        self.p0()
        stop = self.stop
        if stop == 'p0':
            self.wait(); a("s_branch L_END")
        a("L_LAYER:")
        for reg, (x0, x1) in ((S_XIN, (XT[0], XT[2])), (S_XOUT, (XT[1], XT[3])), (S_ST, (ST1, ST3)), (S_PQ, PQ), (S_KV, KVM), (S_Z, ZZ)):
            a(f"s_mul_i32 {reg}, {S_LAYER}, {(x1 - x0) & 0xffffffff:#x}")
            a(f"s_add_u32 {reg}, {reg}, {x0:#x}")
        self.conv_pre()
        self.wait(l0skip=True, sleep0=16, adr=int(os.environ.get('AR_C','1')), adr0=0, adb=int(os.environ.get('AB_C','1'))); self.stamp()
        self.conv(); self.stamp()
        self.arrive(); self.stamp()
        if stop == 'conv1':
            self.wait(); a("s_branch L_END")
        a(f"s_mov_b32 {S_XIN}, {S_XOUT}")
        self.wstage_kv()
        self.qkv_pre()
        self.wait(l0skip=True, sleep0=12, adr=int(os.environ.get('AR_Q','1')), adr0=int(os.environ.get('AR_Q0','3')), adb=int(os.environ.get('AB_Q','1'))); self.stamp()
        self.qkv(); self.stamp()
        self.arrive(); self.stamp()
        if stop == 'qkv1':
            self.wait(); a("s_branch L_END")
            if os.environ.get('DBGW'):
                a(f"""
                s_lshl_b32 {S_T0}, {S_ID}, 11
                s_add_u32 {S_T0}, {S_T0}, 0x40000
                v_lshlrev_b32 v1, 3, v0
                v_add_u32 v1, {S_T0}, v1
                v_mov_b32 v2, v{V_WSK}
                v_mov_b32 v3, v{V_WSV}
                buffer_store_dwordx2 v[2:3], v1, {SRD_WS}, 0 offen
                """)
            self.wait(); a("s_branch L_END")
        a(f"s_mov_b32 {S_XOUT}, {XT[2]}")
        self.outp_pre()
        self.wait(sleep0=22, adr=int(os.environ.get('AR_O','2')), adr0=int(os.environ.get('AR_O0','3')), adb=int(os.environ.get('AB_O','2'))); self.stamp()
        self.outp(); self.stamp()
        a(f"s_cmp_eq_u32 {S_LAYER}, 1\ns_cbranch_scc1 L_END")
        self.arrive(); self.stamp()
        if stop == 'out1':
            self.wait(); a("s_branch L_END")
        a(f"s_mov_b32 {S_LAYER}, 1\ns_branch L_LAYER\nL_END:")
        self.tsdump()
        a("L_EXIT:\ns_endpgm")
        body = a.finalize()
        hdr = open(os.path.join(os.path.dirname(os.path.abspath(__file__)), 'header.txt')).read()
        hdr = hdr.replace('@@LAUNCH@@', f'; @launch grid=(256,1,1) block=(256,1,1) lds={LDS_SIZE}')
        txt = hdr + f""".amdgcn_target "amdgcn-amd-amdhsa--gfx950"
.text
.globl {NAME}_kernel
.p2align 8
.type {NAME}_kernel,@function
{NAME}_kernel:
""" + body + f""".section .rodata,"a"
.p2align 6
.amdhsa_kernel {NAME}_kernel
  .amdhsa_next_free_vgpr 512
  .amdhsa_next_free_sgpr 102
  .amdhsa_accum_offset 256
  .amdhsa_group_segment_fixed_size 0
  .amdhsa_kernarg_size 104
  .amdhsa_user_sgpr_count 2
  .amdhsa_user_sgpr_kernarg_segment_ptr 1
  .amdhsa_system_sgpr_workgroup_id_x 1
.end_amdhsa_kernel
"""
        return txt

if __name__ == '__main__':
    import argparse
    ap = argparse.ArgumentParser()
    ap.add_argument('--stop', default=None)
    ap.add_argument('--ts', action='store_true')
    ap.add_argument('-o', default='k.s')
    args = ap.parse_args()
    g = Gen(stop=args.stop, ts=args.ts)
    t = g.build()
    open(args.o, 'w').write(t)
    print('instructions', g.a.count(), 'nops inserted', g.a.nnop, 'bytes', len(t))
```

```python
import sys, os, math
sys.path.insert(0, os.path.dirname(os.path.abspath(__file__)))
from asmgen import Asm

NAME = 'interleave_layers__ssm_conv_s4d__linear_attn_block__prompt'

CNT  = 0x0
ZR   = 0x30000
KVM  = [ZR, ZR + 32768]
ZZ   = [ZR + 65536, ZR + 98304]
ST3  = ZR + 131072
ZRSZ = 147456
ST1  = 0x1C000
GCNT = 0x20000
TS   = 0x80000
XT   = [0x100000, 0x300000, 0x500000, 0x700000]
PQ   = [0x900000, 0xB00000]
WQF  = 0xD00000
WOFG = 0xE80000
WS_SIZE = 0xF00000

L_WO = 0
L_KC = 65536
L_XL = 82432
L_MISC = L_XL + 65536
LDS_SIZE = 163840
L_U  = L_XL
L_Y  = L_XL + 18560
L_TA = L_XL
L_TB = L_XL + 9216
L_TW = L_XL + 46080
L_CT = L_XL + 18432
L_KD = L_XL + 28672
L_KVF = L_XL
L_O32 = L_XL + 17408
L_OT  = L_XL + 52224
L_S2R = L_MISC
L_S2M = L_MISC + 256
L_STG = L_MISC + 512

STPERM = True
TLBW = int(os.environ.get('TLBW', '1'))
TLBWARM = ('v_and_b32 v8, 15, v255' + chr(10) + '        v_lshlrev_b32 v8, 20, v8' + chr(10) + '        buffer_load_dword v197, v8, s[44:47], 0 offen') if TLBW == 1 else ''
TLBSH = 20
OUTWARM = ('v_and_b32 v8, 3, v255' + chr(10) + '        v_lshlrev_b32 v8, 19, v8' + chr(10) + '        buffer_load_dword v196, v8, s[56:59], 0 offen') if os.environ.get('OUTW','0') == '1' else ''
EARLYPF = ('v_lshlrev_b32 v198, 7, v0\n        global_load_dword v198, v198, s[66:67]' if os.environ.get('EARLY', '1') == '1' else '')
QSPLIT = int(os.environ.get('QSPLIT', '4'))
BMODE = os.environ.get('BMODE', 'adapt')
ADR = int(os.environ.get('ADR', '1'))
ADB = int(os.environ.get('ADB', '2'))
FLG = 0x24000
OUTF = os.environ.get('OUTF', '')
CODE_CHUNKS = int(os.environ.get('CODE_CHUNKS', '5'))
SLEEP = int(os.environ.get('SLEEP', '1' if os.environ.get('BMODE','adapt') == 'flag16' else '3'))
SLEEP0 = int(os.environ.get('SLEEP0', '14'))
SLEEPG = int(os.environ.get('SLEEPG', '6'))
LOG2E = 1.4426950408889634
def f2u(x):
    import struct
    return struct.unpack('<I', struct.pack('<f', x))[0]
def fx(x): return '0x%08x' % f2u(x)
def pk(r): return f"v[{r}:{r+1}]"
def v4(r): return f"v[{r}:{r+3}]"

S_ID='s2'; S_W='s3'; S_RT='s4'; S_CG='s5'; S_LAYER='s6'; S_TGT='s7'
SRD_WS='s[44:47]'; SRD_WQ='s[48:51]'; SRD_WO='s[52:55]'; SRD_OUT='s[56:59]'; SRD_X0='s[60:63]'
S_ONES='s64'
S_EXS='s[70:71]'
S_XIN='s72'; S_XOUT='s73'; S_ST='s74'; S_PQ='s75'; S_KV='s76'; S_Z='s77'
S_SPIN='s78'
S_T0='s8'; S_T1='s9'; S_T2='s10'; S_T3='s11'; S_T4='s12'; S_T5='s13'
S_DM='s14'; S_DS='s15'

V_LANE=255; V_WSK=254; V_WSV=252; V_WSQ=248
V_DSK1=246; V_DSK0=244
V_CNT=239; V_POLL=238; V_ONE=237
V_L16=243; V_H=242
V_TS=241; V_TS2=240
V_GCNT=235; V_POLL2=234; V_TGT=233
V_RANK=232
V_PT=236

WOF = 104
def weave(main, fill, per=2, lead=0):
    out = []; fi = 0
    for k, m in enumerate(main):
        out.append(m)
        if k >= lead:
            for _ in range(per):
                if fi < len(fill): out.append(fill[fi]); fi += 1
    out += fill[fi:]
    return out
def zipmerge(*lists):
    out = []
    n = max(len(l) for l in lists)
    for i in range(n):
        for l in lists:
            if i < len(l): out.append(l[i])
    return out
import re as _re
def unpk(ins):
    m = _re.match(r'v_pk_(mul|add|fma)_f32 v\[(\d+):\d+\], (.*)', ins)
    if not m: return [ins]
    op, d, rest = m.group(1), int(m.group(2)), m.group(3)
    srcs = [int(x) for x in _re.findall(r'v\[(\d+):\d+\]', rest)]
    n = len(srcs)
    hi = [1]*n
    mm = _re.search(r'op_sel_hi:\[([\d,]+)\]', rest)
    if mm: hi = [int(x) for x in mm.group(1).split(',')]
    assert 'op_sel:[' not in rest
    neg = [0]*n
    mm = _re.search(r'neg_lo:\[([\d,]+)\]', rest)
    if mm: neg = [int(x) for x in mm.group(1).split(',')]
    out = []
    for h in range(2):
        ops = []
        for i in range(n):
            r = srcs[i] + (h if hi[i] else 0)
            ops.append(('-' if neg[i] else '') + f'v{r}')
        out.append(f"v_{op}_f32 v{d+h}, " + ', '.join(ops))
    return out
def unpk_all(L):
    o = []
    for x in L: o += unpk(x)
    return o
def lines(s): return [t.strip() for t in s.split('\n') if t.strip()]

class Gen:
    def __init__(self, stop=None, ts=False):
        self.a = Asm(); self.stop = stop; self.ts = ts; self.tsn = 0
    def emit(self, lst):
        for x in lst: self.a(x)

    def stamp(self):
        if not self.ts: return
        n = self.tsn; self.tsn += 1
        self.a(f"""
        s_memrealtime s[80:81]
        s_lshl_b32 s82, {S_LAYER}, 5
        s_add_u32 m0, s82, {n}
        s_waitcnt lgkmcnt(0)
        v_writelane_b32 v{V_TS}, s80, m0
        """)
    def sub(self, i):
        if self.ts: self.a(f"s_memtime s[{86+2*i}:{87+2*i}]")
    def subflush(self, phase, n):
        if not self.ts: return
        a = self.a
        a(f"s_waitcnt lgkmcnt(0)\ns_lshl_b32 s82, {S_LAYER}, 5\ns_add_u32 m0, s82, {phase*8}")
        for i in range(n):
            a(f"v_writelane_b32 v{V_TS2}, s{86+2*i}, m0\ns_add_u32 m0, m0, 1\ns_nop 3")
    def tsdump(self):
        if not self.ts: return
        a = self.a; l = a.label('TD')
        if os.environ.get('DBGTS'):
            sel = [1,2,3,4,5,7,8,10,11,12, 32+4,32+5,32+7,32+8,32+10]
            a(f"""
            s_cmp_eq_u32 {S_ID}, 0
            s_cbranch_scc0 {l}
            s_cmp_eq_u32 {S_W}, 0
            s_cbranch_scc0 {l}
            v_readlane_b32 s80, v{V_TS}, 0
            """)
            for i, k in enumerate(sel):
                lane = k
                a(f"v_readlane_b32 s81, v{V_TS}, {lane}\ns_nop 3\ns_sub_u32 s81, s81, s80\nv_mov_b32 v1, s81\nv_mov_b32 v2, {4*(i+1)}\ns_mov_b64 exec, 1\nglobal_store_dword v2, v1, s[38:39]\ns_mov_b64 exec, -1")
            a(f"{l}:")
            return
        a(f"""
        s_cmp_eq_u32 {S_W}, 0
        s_cbranch_scc0 {l}
        s_lshl_b32 s82, {S_ID}, 9
        s_add_u32 s82, s82, {TS}
        v_lshlrev_b32 v1, 2, v{V_LANE}
        v_add_u32 v1, s82, v1
        buffer_store_dword v{V_TS}, v1, {SRD_WS}, 0 offen
        buffer_store_dword v{V_TS2}, v1, {SRD_WS}, 0 offen offset:256
        {l}:
        """)

    def arrive_core(self, finish=True):
        a = self.a
        if BMODE == 'flat':
            a(f"buffer_atomic_add v{V_ONE}, v{V_CNT}, {SRD_WS}, 0 offen sc1")
            return
        a(f"""
        v_mov_b32 v{V_RANK}, 1
        buffer_atomic_add v{V_RANK}, v{V_CNT}, {SRD_WS}, 0 offen sc0 sc1
        """)
        if finish: self.arrive_finish()
    def arrive_finish(self):
        a = self.a
        if BMODE == 'flag16':
            l = a.label('NL')
            a(f"""
            s_sub_u32 {S_T0}, {S_TGT}, 1
            s_waitcnt vmcnt(0)
            v_cmp_eq_u32 vcc, {S_T0}, v{V_RANK}
            s_cbranch_vccz {l}
            v_mov_b32 v{V_RANK}, {S_TGT}
            v_add_u32 v{V_PT}, {FLG - CNT}, v{V_CNT}
            buffer_store_dword v{V_RANK}, v{V_PT}, {SRD_WS}, 0 offen sc1
            {l}:
            """)
    def arrive(self):
        a = self.a; l = a.label('ARR')
        a(f"""
        s_waitcnt vmcnt(0) lgkmcnt(0)
        s_barrier
        s_add_u32 {S_TGT}, {S_TGT}, 16
        s_cmp_eq_u32 {S_W}, 0
        s_cbranch_scc0 {l}
        s_mov_b64 exec, 1
        """)
        self.arrive_core()
        a(f"""
        s_mov_b64 exec, -1
        {l}:
        """)
    def arrive_group(self):
        a = self.a; l = a.label('ARG')
        a(f"""
        s_waitcnt vmcnt(0) lgkmcnt(0)
        s_barrier
        s_cmp_eq_u32 {S_W}, 0
        s_cbranch_scc0 {l}
        s_mov_b64 exec, 1
        buffer_atomic_add v{V_ONE}, v{V_GCNT}, {SRD_WS}, 0 offen sc1
        s_mov_b64 exec, -1
        {l}:
        """)
    def wait_dual(self):
        a = self.a
        l = a.label('WT'); lp = a.label('POLL'); ld = a.label('PD')
        a(f"""
        s_cmp_eq_u32 {S_W}, 0
        s_cbranch_scc0 {l}
        s_add_u32 {S_T0}, {S_LAYER}, 1
        s_lshl_b32 {S_T0}, {S_T0}, 3
        v_mov_b32 v{V_TGT}, {S_TGT}
        v_mov_b32 v{V_PT}, {S_T0}
        v_cmp_eq_u32 vcc, 16, v{V_LANE}
        v_cndmask_b32 v{V_TGT}, v{V_TGT}, v{V_PT}, vcc
        s_mov_b64 exec, 0x1ffff
        s_mov_b32 {S_SPIN}, 0
        {('s_sleep ' + str(SLEEPG)) if SLEEPG else ''}
        {lp}:
        buffer_load_dword v{V_PT}, v{V_POLL2}, {SRD_WS}, 0 offen sc1
        s_add_u32 {S_SPIN}, {S_SPIN}, 1
        s_waitcnt vmcnt(0)
        v_cmp_gt_u32 vcc, v{V_TGT}, v{V_PT}
        s_cbranch_vccz {ld}
        {('s_sleep ' + str(SLEEP)) if SLEEP else ''}
        s_cmp_lt_u32 {S_SPIN}, 0x200000
        s_cbranch_scc1 {lp}
        {ld}:
        s_mov_b64 exec, -1
        {l}:
        s_barrier
        """)
    def wait(self, l0skip=False, sleep0=None, adr=None, adb=None, adr0=None):
        a = self.a
        l = a.label('WT'); lp = a.label('POLL'); ld = a.label('PD'); ls = a.label('NS')
        SLEEP0 = sleep0 if sleep0 is not None else globals()['SLEEP0']
        if BMODE == 'flat':
            pre = ((f's_cmp_eq_u32 {S_LAYER}, 0' + chr(10) + f's_cbranch_scc1 {lp}' + chr(10)) if l0skip else '') + (f's_sleep {SLEEP0}' if SLEEP0 else '')
        elif BMODE == 'flag16':
            pre = ''
        else:
            la = a.label('AD'); lb = a.label('AD')
            ADR = adr if adr is not None else globals()['ADR']; ADB = adb if adb is not None else globals()['ADB']
            adr0 = adr0 if adr0 is not None else ADR
            pre = f'''s_cmp_eq_u32 {S_LAYER}, 0
            s_cselect_b32 {S_T1}, {adr0}, {ADR}
            s_waitcnt vmcnt(0)
            v_readfirstlane_b32 {S_T0}, v{V_RANK}
            s_and_b32 {S_T0}, {S_T0}, 15
            s_sub_u32 {S_T0}, 15, {S_T0}
            s_mul_i32 {S_T0}, {S_T0}, {S_T1}
            s_add_u32 {S_T0}, {S_T0}, {ADB}
            {la}:
            s_sleep 1
            s_sub_u32 {S_T0}, {S_T0}, 1
            s_cmp_gt_i32 {S_T0}, 0
            s_cbranch_scc1 {la}'''
        a(f"""
        s_cmp_eq_u32 {S_W}, 0
        s_cbranch_scc0 {l}
        s_mov_b64 exec, 0xffff
        s_mov_b32 {S_SPIN}, 0
        {pre}
        {lp}:
        buffer_load_dword v{V_PT}, v{V_POLL}, {SRD_WS}, 0 offen {('offset:0' if BMODE != 'flag16' else '')} sc1
        s_add_u32 {S_SPIN}, {S_SPIN}, 1
        s_waitcnt vmcnt(0)
        v_cmp_gt_u32 vcc, {S_TGT}, v{V_PT}
        s_cbranch_vccz {ld}
        {('s_sleep ' + str(SLEEP)) if SLEEP else ''}
        s_cmp_lt_u32 {S_SPIN}, 0x200000
        s_cbranch_scc1 {lp}
        {ld}:
        s_mov_b64 exec, -1
        {l}:
        s_barrier
        """)

    def reduce_h(self, r, t):
        return lines(f"""
        v_mov_b32 v{t}, v{r}
        v_permlane16_swap_b32 v{r}, v{t}
        v_add_f32 v{r}, v{r}, v{t}
        v_mov_b32 v{t}, v{r}
        v_permlane32_swap_b32 v{r}, v{t}
        v_add_f32 v{r}, v{r}, v{t}
        """)
    def reduce16(self, r):
        return lines(f"""
        v_add_f32_dpp v{r}, v{r}, v{r} quad_perm:[1,0,3,2] row_mask:0xf bank_mask:0xf
        v_add_f32_dpp v{r}, v{r}, v{r} quad_perm:[2,3,0,1] row_mask:0xf bank_mask:0xf
        v_add_f32_dpp v{r}, v{r}, v{r} row_half_mirror row_mask:0xf bank_mask:0xf
        v_add_f32_dpp v{r}, v{r}, v{r} row_mirror row_mask:0xf bank_mask:0xf
        """)
    def ln_final1(self, sm, sq, r_out, mr_out, t):
        return lines(f"""
        v_mul_f32 v{t}, {fx(1/512)}, v{sm}
        v_mul_f32 v{t+1}, {fx(1/512)}, v{sq}
        v_fma_f32 v{t+1}, -v{t}, v{t}, v{t+1}
        v_cvt_pk_bf16_f32 v{t+2}, v{t}, v{t+1}
        v_lshlrev_b32 v{t}, 16, v{t+2}
        v_and_b32 v{t+1}, 0xffff0000, v{t+2}
        v_add_f32 v{t+1}, {fx(1e-5)}, v{t+1}
        v_cvt_pk_bf16_f32 v{t+1}, v{t+1}, v{t+1}
        v_and_b32 v{t+1}, 0xffff0000, v{t+1}
        v_sqrt_f32 v{t+1}, v{t+1}
        v_cvt_pk_bf16_f32 v{t+1}, v{t+1}, v{t+1}
        v_and_b32 v{t+1}, 0xffff0000, v{t+1}
        v_rcp_f32 v{r_out}, v{t+1}
        v_mul_f32 v{mr_out}, v{t}, v{r_out}
        """)

    def prologue(self):
        a = self.a
        a(f"""
        s_cmp_ge_u32 {S_ID}, 256
        s_cbranch_scc1 L_EXIT
        s_getpc_b64 s[66:67]
        s_load_dwordx16 s[16:31], s[0:1], 0
        s_load_dwordx8 s[32:39], s[0:1], 64
        s_load_dwordx2 s[40:41], s[0:1], 96
        {EARLYPF}
        v_and_b32 v{V_LANE}, 63, v0
        v_lshrrev_b32 v1, 6, v0
        v_and_b32 v{V_L16}, 15, v0
        v_bfe_u32 v{V_H}, v0, 4, 2
        v_readfirstlane_b32 {S_W}, v1
        s_and_b32 {S_T0}, {S_ID}, 7
        s_lshl_b32 {S_T0}, {S_T0}, 2
        s_lshr_b32 {S_T1}, {S_ID}, 6
        s_add_u32 {S_RT}, {S_T0}, {S_T1}
        s_lshr_b32 {S_CG}, {S_ID}, 3
        s_and_b32 {S_CG}, {S_CG}, 7
        s_mov_b32 {S_LAYER}, 0
        s_mov_b32 {S_TGT}, 0
        s_mov_b32 {S_ONES}, 0x3f803f80
        v_mov_b32 v{V_ONE}, 1
        s_and_b32 {S_T0}, {S_ID}, 15
        s_lshl_b32 {S_T0}, {S_T0}, 10
        v_mov_b32 v{V_CNT}, {S_T0}
        v_lshlrev_b32 v{V_POLL}, 10, v{V_LANE}
        v_add_u32 v{V_POLL}, {FLG if BMODE == 'flag16' else CNT}, v{V_POLL}
        s_waitcnt lgkmcnt(0)
        s_mov_b32 s60, s16
        s_and_b32 s61, s17, 0xffff
        s_mov_b32 s62, {2048*512*2}
        s_mov_b32 s63, 0x20000
        """)
    def prologue2(self):
        a = self.a
        a(f"""
        s_mov_b32 s44, s40
        s_and_b32 s45, s41, 0xffff
        s_mov_b32 s46, {WS_SIZE}
        s_mov_b32 s47, 0x20000
        s_mov_b32 s48, s32
        s_and_b32 s49, s33, 0xffff
        s_mov_b32 s50, {512*1536*2}
        s_mov_b32 s51, 0x20000
        s_mov_b32 s52, s34
        s_and_b32 s53, s35, 0xffff
        s_mov_b32 s54, {512*512*2}
        s_mov_b32 s55, 0x20000
        s_mov_b32 s56, s36
        s_and_b32 s57, s37, 0xffff
        s_mov_b32 s58, {2048*512*2}
        s_mov_b32 s59, 0x20000
        s_lshl_b32 {S_T0}, {S_RT}, 10
        s_add_u32 {S_T0}, {S_T0}, {GCNT}
        v_mov_b32 v{V_GCNT}, {S_T0}
        v_cmp_eq_u32 vcc, 16, v{V_LANE}
        v_cndmask_b32 v{V_POLL2}, v{V_POLL}, v{V_GCNT}, vcc
        """)

    def dma_weight(self, srd, rowpitch, colbyte, lds_base, swz, t, defer=False):
        a = self.a
        a(f"""
        v_lshrrev_b32 v{t}, 3, v{V_LANE}
        v_mul_u32_u24 v{t}, {rowpitch}, v{t}
        v_bfe_u32 v{t+1}, v{V_LANE}, 1, 2
        v_bfe_u32 v{t+2}, v{V_LANE}, 4, 1
        """)
        if swz == 'x':
            a(f"s_and_b32 {S_T0}, {S_W}, 1\ns_lshl_b32 {S_T0}, {S_T0}, 1\nv_or_b32 v{t+2}, {S_T0}, v{t+2}")
        else:
            a(f"v_lshlrev_b32 v{t+2}, 1, v{t+2}")
        a(f"""
        v_xor_b32 v{t+1}, v{t+1}, v{t+2}
        v_lshl_add_u32 v{t}, v{t+1}, 5, v{t}
        v_and_b32 v{t+1}, 1, v{V_LANE}
        v_lshl_add_u32 v{t}, v{t+1}, 4, v{t}
        s_lshl_b32 {S_T0}, {S_CG}, 7
        s_add_u32 {S_T0}, {S_T0}, {colbyte}
        v_add_u32 v{t}, {S_T0}, v{t}
        s_mul_i32 {S_DS}, {S_W}, {8*rowpitch}
        s_lshl_b32 {S_DM}, {S_W}, 10
        s_add_u32 {S_DM}, {S_DM}, {lds_base}
        """)
        groups = [lines(f"""
            s_mov_b32 m0, {S_DM}
            s_add_u32 {S_DM}, {S_DM}, 4096
            buffer_load_dwordx4 v{t}, {srd}, {S_DS} offen lds
            s_add_u32 {S_DS}, {S_DS}, {32*rowpitch}
            """) for i in range(16)]
        if defer: return groups
        for g in groups: self.emit(g)

    def wread_lists(self, lds_base, abase, part, t, o):
        rd = lines(f"""
        v_lshrrev_b32 v{t}, 2, v{V_L16}
        v_lshl_add_u32 v{t+1}, v{V_H}, 3, v{t}
        v_lshlrev_b32 v{t+1}, 7, v{t+1}
        v_and_b32 v{t+2}, 3, v{V_L16}
        v_lshl_add_u32 v{t+1}, v{t+2}, 3, v{t+1}
        v_add_u32 v{t+1}, {lds_base}, v{t+1}
        v_lshrrev_b32 v{t}, 1, v{t}
        v_and_b32 v{t+2}, 1, v{V_H}
        v_lshl_or_b32 v{t}, v{t+2}, 1, v{t}
        v_xor_b32 v{t}, {S_W}, v{t}
        v_lshl_add_u32 v{t+3}, v{t}, 5, v{t+1}
        """)
        for i in range(4): rd.append(f"v_mov_b32 v{o+i}, {S_ONES}")
        for ks in range(16):
            rd.append(f"ds_read_b64_tr_b16 a[{abase+4*ks}:{abase+4*ks+1}], v{t+3} offset:{ks*4096}")
            rd.append(f"ds_read_b64_tr_b16 a[{abase+4*ks+2}:{abase+4*ks+3}], v{t+3} offset:{ks*4096+512}")
        mf = []
        for ks in range(16):
            c = '0' if ks == 0 else v4(o+4)
            w = f"a[{abase+4*ks}:{abase+4*ks+3}]"
            if part == 0: mf.append(f"v_mfma_f32_16x16x32_bf16 {v4(o+4)}, {w}, {v4(o)}, {c}")
            else: mf.append(f"v_mfma_f32_16x16x32_bf16 {v4(o+4)}, {v4(o)}, {w}, {c}")
        if part == 0: mf += [f"v_mov_b32 v{V_WSQ+i}, v{o+4+i}" for i in range(4)]
        elif part == 1: mf.append(f"v_mov_b32 v{V_WSK}, v{o+4}")
        else: mf.append(f"v_mov_b32 v{V_WSV}, v{o+4}")
        return rd, mf

    def p0(self):
        a = self.a
        a(f"""
        v_lshrrev_b32 v1, 3, v0
        s_lshl_b32 {S_T0}, {S_RT}, 16
        s_lshl_b32 {S_T1}, {S_CG}, 7
        s_add_u32 {S_T0}, {S_T0}, {S_T1}
        v_lshlrev_b32 v2, 10, v1
        v_and_b32 v3, 7, v0
        v_lshl_add_u32 v2, v3, 4, v2
        v_add_u32 v2, {S_T0}, v2
        buffer_load_dwordx4 v[10:13], v2, {SRD_X0}, 0 offen
        v_add_u32 v4, 0x8000, v2
        buffer_load_dwordx4 v[14:17], v4, {SRD_X0}, 0 offen
        s_and_b32 {S_T0}, {S_ID}, 63
        s_lshl_b32 {S_T0}, {S_T0}, 2
        s_add_u32 {S_T0}, {S_T0}, {S_W}
        s_lshl_b32 {S_T0}, {S_T0}, 3
        s_lshr_b32 {S_T1}, {S_ID}, 6
        s_lshl_b32 {S_T1}, {S_T1}, 1
        s_add_u32 {S_T0}, {S_T0}, {S_T1}
        s_lshl_b32 {S_T0}, {S_T0}, 10
        v_lshlrev_b32 v5, 4, v{V_LANE}
        v_add_u32 v5, {S_T0}, v5
        buffer_load_dwordx4 v[18:21], v5, {SRD_X0}, 0 offen
        buffer_load_dwordx4 v[22:25], v5, {SRD_X0}, 0 offen offset:1024
        s_lshl_b32 {S_T0}, {S_ID}, 9
        v_lshlrev_b32 v6, 1, v0
        v_add_u32 v6, {S_T0}, v6
        global_load_ushort v26, v6, s[18:19]
        global_load_ushort v27, v6, s[20:21]
        global_load_ushort v28, v6, s[22:23]
        global_load_ushort v29, v6, s[24:25]
        v_lshrrev_b32 v7, 7, v0
        s_lshl_b32 {S_T0}, {S_ID}, 1
        v_add_lshl_u32 v7, v7, {S_T0}, 1
        global_load_ushort v30, v7, s[26:27]
        s_lshl_b32 {S_T0}, {S_ID}, 2
        v_mov_b32 v7, {S_T0}
        global_load_dword v{V_DSK0}, v7, s[28:29]
        """)
        self.prologue2()
        a(f"""
        {TLBWARM}
        {OUTWARM}
        """)
        lw = a.label('WT'); lw2 = a.label('WT')
        a(f"""
        s_and_b32 {S_T2}, {S_ID}, 7
        s_cmp_lt_u32 {S_ID}, 192
        s_cbranch_scc0 {lw}
        s_lshr_b32 {S_T3}, {S_ID}, 3
        s_mul_i32 {S_T0}, {S_T2}, {64*3072}
        s_lshl_b32 {S_T1}, {S_T3}, 7
        s_add_u32 {S_T0}, {S_T0}, {S_T1}
        v_mul_u32_u24 v8, 3072, v1
        v_lshl_add_u32 v8, v3, 4, v8
        v_add_u32 v8, {S_T0}, v8
        buffer_load_dwordx4 v[200:203], v8, {SRD_WQ}, 0 offen
        v_add_u32 v8, {32*3072}, v8
        buffer_load_dwordx4 v[204:207], v8, {SRD_WQ}, 0 offen
        s_branch {lw2}
        {lw}:
        s_sub_u32 {S_T3}, {S_ID}, 192
        s_lshr_b32 {S_T3}, {S_T3}, 3
        s_lshl_b32 {S_T0}, {S_T2}, 16
        s_lshl_b32 {S_T1}, {S_T3}, 7
        s_add_u32 {S_T0}, {S_T0}, {S_T1}
        v_lshlrev_b32 v8, 10, v1
        v_lshl_add_u32 v8, v3, 4, v8
        v_add_u32 v8, {S_T0}, v8
        buffer_load_dwordx4 v[200:203], v8, {SRD_WO}, 0 offen
        v_add_u32 v8, 0x8000, v8
        buffer_load_dwordx4 v[204:207], v8, {SRD_WO}, 0 offen
        {lw2}:
        """)
        l = a.label('CI')
        a(f"""
        s_cmp_lt_u32 {S_ID}, 16
        s_cbranch_scc0 {l}
        s_cmp_eq_u32 {S_W}, 0
        s_cbranch_scc0 {l}
        s_mov_b64 exec, 1
        v_mov_b32 v8, 0
        buffer_store_dword v8, v{V_CNT}, {SRD_WS}, 0 offen sc1
        v_add_u32 v9, {FLG - CNT}, v{V_CNT}
        buffer_store_dword v8, v9, {SRD_WS}, 0 offen sc1
        s_mov_b64 exec, -1
        {l}:
        """)
        IDX = 180
        a(f"v_lshlrev_b32 v31, 3, v0\nv_sub_u32 v31, 2047, v31\ns_mov_b32 {S_T5}, {L_KD}")
        chains = []
        for i in range(0, 10, 2):
            t = 32 + 4*(i//2)
            c = lines(f"""
            v_subrev_u32 v{t}, {i}, v31
            v_subrev_u32 v{t+1}, {i+1}, v31
            v_max_i32 v{t}, 0, v{t}
            v_max_i32 v{t+1}, 0, v{t+1}
            v_cvt_f32_i32 v{t}, v{t}
            v_cvt_f32_i32 v{t+1}, v{t+1}
            v_cvt_pk_bf16_f32 v{t+2}, v{t}, v{t+1}
            v_lshlrev_b32 v{t}, 16, v{t+2}
            v_and_b32 v{t+1}, 0xffff0000, v{t+2}
            v_cvt_u32_f32 v{t}, v{t}
            v_cvt_u32_f32 v{t+1}, v{t+1}
            v_lshrrev_b32 v{t+2}, 2, v{t}
            v_lshrrev_b32 v{t+3}, 2, v{t+1}
            v_add_u32 v{t+2}, 384, v{t+2}
            v_add_u32 v{t+3}, 384, v{t+3}
            v_min_u32 v{t}, v{t}, v{t+2}
            v_min_u32 v{t+1}, v{t+1}, v{t+3}
            v_lshrrev_b32 v{t+2}, 5, v{t}
            v_lshrrev_b32 v{t+3}, 5, v{t+1}
            v_add_u32 v{t}, v{t}, v{t+2}
            v_add_u32 v{t+1}, v{t+1}, v{t+3}
            v_lshl_add_u32 v{IDX+i}, v{t}, 2, {S_T5}
            """)
            if i + 1 < 9: c.append(f"v_lshl_add_u32 v{IDX+i+1}, v{t+1}, 2, {S_T5}")
            chains.append(c)
        self.emit(zipmerge(*chains))
        a(f"""
        v_mul_u32_u24 v8, 144, v1
        v_lshl_add_u32 v8, v3, 4, v8
        v_add_u32 v9, {L_TW}, v8
        v_add_u32 v8, {L_TA}, v8
        s_waitcnt vmcnt({10 + (1 if OUTWARM else 0) + (1 if TLBWARM else 0)})
        ds_write_b128 v8, v[10:13]
        ds_write_b128 v8, v[14:17] offset:{32*144}
        s_waitcnt vmcnt({8 + (1 if OUTWARM else 0) + (1 if TLBWARM else 0)})
        """)
        for r in range(32, 36): a(f"v_mov_b32 v{r}, 0")
        for j in range(4):
            for row in range(2):
                b = 18 + 4*row; sm = 32 + 2*row
                a(f"v_dot2_f32_bf16 v{sm}, v{b+j}, {S_ONES}, v{sm}\nv_dot2_f32_bf16 v{sm+1}, v{b+j}, v{b+j}, v{sm+1}")
        self.emit(zipmerge(*[self.reduce16(r) for r in range(32, 36)]))
        self.emit(zipmerge(*[self.reduce_h(r, 36 + (r-32)) for r in range(32, 36)]))
        a(f"""
        s_lshl_b32 {S_T0}, {S_W}, 4
        s_add_u32 {S_T0}, {S_T0}, {L_STG}
        v_mov_b32 v36, {S_T0}
        ds_write_b128 v36, v[32:35]
        s_waitcnt vmcnt(0)
        ds_write_b128 v9, v[200:203]
        ds_write_b128 v9, v[204:207] offset:{32*144}
        s_cmp_lt_u32 {S_ID}, 16
        s_cbranch_scc0 L_CI2
        s_cmp_eq_u32 {S_W}, 0
        s_cbranch_scc0 L_CI2
        s_mov_b64 exec, 1
        v_mov_b32 v37, 0
        global_atomic_add v37, v{V_ONE}, s[38:39] sc1
        s_mov_b64 exec, -1
        L_CI2:
        v_lshrrev_b32 v9, 2, v{V_L16}
        v_lshl_add_u32 v9, v{V_H}, 3, v9
        v_mul_u32_u24 v9, 144, v9
        v_and_b32 v2, 3, v{V_L16}
        v_lshl_add_u32 v9, v2, 3, v9
        s_lshl_b32 {S_T0}, {S_W}, 5
        s_add_u32 {S_T0}, {S_T0}, {L_TA}
        v_add_u32 v9, {S_T0}, v9
        s_lshl_b32 {S_T0}, {S_W}, 4
        v_add_u32 v2, {S_T0}, v{V_L16}
        v_mul_u32_u24 v2, 144, v2
        v_lshl_add_u32 v2, v{V_H}, 4, v2
        v_add_u32 v2, {L_TB}, v2
        s_waitcnt lgkmcnt(0)
        s_barrier
        ds_read_b64_tr_b16 v[10:11], v9
        ds_read_b64_tr_b16 v[12:13], v9 offset:{4*144}
        ds_read_b64_tr_b16 v[14:15], v9 offset:{32*144}
        ds_read_b64_tr_b16 v[16:17], v9 offset:{36*144}
        """)
        lz = a.label('WF'); lz2 = a.label('WF')
        a(f"""
        s_cmp_lt_u32 {S_ID}, 192
        s_cbranch_scc0 {lz}
        v_add_u32 v8, {L_TW - L_TA}, v9
        ds_read_b64_tr_b16 v[200:201], v8
        ds_read_b64_tr_b16 v[202:203], v8 offset:{4*144}
        ds_read_b64_tr_b16 v[204:205], v8 offset:{32*144}
        ds_read_b64_tr_b16 v[206:207], v8 offset:{36*144}
        s_lshr_b32 {S_T0}, {S_T3}, 3
        s_lshl_b32 {S_T0}, {S_T0}, 19
        s_and_b32 {S_T1}, {S_T3}, 7
        s_lshl_b32 {S_T1}, {S_T1}, 2
        s_add_u32 {S_T1}, {S_T1}, {S_W}
        s_lshl_b32 {S_T1}, {S_T1}, 14
        s_add_u32 {S_T0}, {S_T0}, {S_T1}
        s_lshl_b32 {S_T1}, {S_T2}, 11
        s_add_u32 {S_T0}, {S_T0}, {S_T1}
        s_add_u32 {S_T0}, {S_T0}, {WQF}
        s_branch {lz2}
        {lz}:
        v_lshrrev_b32 v8, 2, v{V_L16}
        v_lshrrev_b32 v7, 1, v{V_H}
        v_lshl_add_u32 v8, v7, 2, v8
        s_lshl_b32 {S_T0}, {S_W}, 4
        v_add_u32 v8, {S_T0}, v8
        v_mul_u32_u24 v8, 144, v8
        v_and_b32 v7, 1, v{V_H}
        v_lshl_add_u32 v8, v7, 5, v8
        v_and_b32 v7, 3, v{V_L16}
        v_lshl_add_u32 v8, v7, 3, v8
        v_add_u32 v8, {L_TW}, v8
        ds_read_b64_tr_b16 v[200:201], v8
        ds_read_b64_tr_b16 v[202:203], v8 offset:{8*144}
        ds_read_b64_tr_b16 v[204:205], v8 offset:64
        ds_read_b64_tr_b16 v[206:207], v8 offset:{8*144+64}
        s_lshl_b32 {S_T0}, {S_T3}, 16
        s_lshl_b32 {S_T1}, {S_T2}, 2
        s_add_u32 {S_T1}, {S_T1}, {S_W}
        s_lshl_b32 {S_T1}, {S_T1}, 11
        s_add_u32 {S_T0}, {S_T0}, {S_T1}
        s_add_u32 {S_T0}, {S_T0}, {WOFG}
        {lz2}:
        v_lshlrev_b32 v7, 4, v{V_LANE}
        v_add_u32 v7, {S_T0}, v7
        v_mul_u32_u24 v9, 144, v1
        v_lshl_add_u32 v9, v3, 4, v9
        v_add_u32 v9, {L_TB}, v9
        s_lshl_b32 {S_T0}, {S_CG}, 18
        s_lshl_b32 {S_T1}, {S_RT}, 7
        s_add_u32 {S_T0}, {S_T0}, {S_T1}
        s_add_u32 {S_T0}, {S_T0}, {XT[0]}
        v_lshlrev_b32 v4, 12, v1
        v_lshl_add_u32 v4, v3, 4, v4
        v_add_u32 v4, {S_T0}, v4
        v_add_u32 v5, 0x20000, v4
        s_waitcnt lgkmcnt(0)
        ds_write_b128 v2, v[10:13]
        ds_write_b128 v2, v[14:17] offset:64
        buffer_store_dwordx4 v[200:203], v7, {SRD_WS}, 0 offen sc1
        buffer_store_dwordx4 v[204:207], v7, {SRD_WS}, 0 offen offset:1024 sc1
        v_mov_b32 v6, 0
        s_waitcnt lgkmcnt(0)
        s_barrier
        ds_read_b128 v[10:13], v9
        ds_read_b128 v[14:17], v9 offset:{32*144}
        s_waitcnt lgkmcnt(0)
        buffer_store_dwordx4 v[10:13], v4, {SRD_WS}, 0 offen sc1
        buffer_store_dwordx4 v[14:17], v5, {SRD_WS}, 0 offen sc1
        global_load_dword v{V_PT}, v6, s[38:39] sc1
        """)
        l1 = a.label('Z1'); l2 = a.label('Z2')
        a(f"""
        s_cmp_eq_u32 {S_W}, 1
        s_cbranch_scc0 {l1}
        s_mov_b32 exec_lo, -1
        s_mov_b32 exec_hi, 0xf
        v_mov_b32 v10, 0
        v_mov_b32 v11, 0
        v_mov_b32 v12, 0
        v_mov_b32 v13, 0
        s_mul_i32 {S_T0}, {S_ID}, 576
        s_add_u32 {S_T0}, {S_T0}, {ZR}
        v_lshlrev_b32 v4, 4, v{V_LANE}
        v_add_u32 v4, {S_T0}, v4
        buffer_store_dwordx4 v[10:13], v4, {SRD_WS}, 0 offen sc1
        s_mov_b64 exec, -1
        {l1}:
        s_cmp_eq_u32 {S_W}, 2
        s_cbranch_scc0 {l2}
        s_mov_b64 exec, 0xf
        v_lshlrev_b32 v4, 4, v{V_LANE}
        v_add_u32 v5, {L_STG}, v4
        ds_read_b128 v[10:13], v5
        s_lshl_b32 {S_T0}, {S_ID}, 6
        s_add_u32 {S_T0}, {S_T0}, {ST1}
        v_add_u32 v4, {S_T0}, v4
        s_waitcnt lgkmcnt(0)
        buffer_store_dwordx4 v[10:13], v4, {SRD_WS}, 0 offen sc1
        s_mov_b64 exec, -1
        {l2}:
        """)
        self.stamp()
        self.kgen_consts()
        a("s_waitcnt lgkmcnt(0)\ns_barrier")
        self.sub(0)
        self.sub(1)
        self.kgen_main(IDX)
        self.sub(6)
        self.subflush(3, 7)
        self.stamp()

    def arrive_first(self):
        a = self.a
        la = a.label('ARR1'); lp = a.label('INITP'); ld = a.label('INITD')
        a(f"""
        s_waitcnt vmcnt(0)
        s_barrier
        s_add_u32 {S_TGT}, {S_TGT}, 16
        s_cmp_eq_u32 {S_W}, 0
        s_cbranch_scc0 {la}
        s_mov_b64 exec, 1
        s_mov_b32 {S_SPIN}, 0
        v_mov_b32 v6, 0
        {lp}:
        v_cmp_le_u32 vcc, 16, v{V_PT}
        s_cbranch_vccnz {ld}
        global_load_dword v{V_PT}, v6, s[38:39] sc1
        s_add_u32 {S_SPIN}, {S_SPIN}, 1
        s_waitcnt vmcnt(0)
        s_cmp_lt_u32 {S_SPIN}, 0x200000
        s_cbranch_scc1 {lp}
        {ld}:
        """)
        self.arrive_core(finish=False)
        a(f"""
        s_mov_b64 exec, -1
        {la}:
        """)

    def cexp(self, p, dr, di, t):
        return lines(f"""
        v_mul_f32 v{t}, {fx(p)}, v40
        v_mul_f32 v{t+1}, {fx(p)}, v41
        v_exp_f32 v{t}, v{t}
        v_fract_f32 v{t+1}, v{t+1}
        v_cos_f32 v{t+2}, v{t+1}
        v_sin_f32 v{t+1}, v{t+1}
        v_mul_f32 v{dr}, v{t}, v{t+2}
        v_mul_f32 v{di}, v{t}, v{t+1}
        """)

    def kgen_consts(self):
        a = self.a
        a(f"""
        v_and_b32 v{V_DSK1}, 0xffff0000, v{V_DSK0}
        v_lshlrev_b32 v{V_DSK0}, 16, v{V_DSK0}
        v_lshlrev_b32 v26, 16, v26
        v_lshlrev_b32 v30, 16, v30
        v_lshlrev_b32 v27, 16, v27
        v_lshlrev_b32 v28, 16, v28
        v_mul_f32 v30, {fx(LOG2E)}, v30
        v_mul_f32 v26, {fx(LOG2E)}, v26
        v_lshlrev_b32 v29, 16, v29
        v_exp_f32 v30, v30
        v_exp_f32 v26, v26
        v_cvt_pk_bf16_f32 v31, v30, v26
        v_lshlrev_b32 v30, 16, v31
        v_and_b32 v26, 0xffff0000, v31
        v_mul_f32 v40, v26, v30
        v_mul_f32 v41, v27, v30
        v_mul_f32 v42, v28, v30
        v_mul_f32 v43, v29, v30
        v_mul_f32 v40, {fx(-LOG2E)}, v40
        v_mul_f32 v41, {fx(1/(2*math.pi))}, v41
        v_add_f32 v42, v42, v42
        v_add_f32 v43, v43, v43
        v_rndne_f32 v31, v41
        v_sub_f32 v41, v41, v31
        """)
        ch = []
        for i, p in enumerate((256.0, 512.0, 1536.0)):
            t = 52 + 6*i; d = 44 + 2*i
            c = self.cexp(p, t+3, t+4, t)
            c += lines(f"""
            v_mul_f32 v{d}, v42, v{t+3}
            v_mul_f32 v{d+1}, v42, v{t+4}
            v_fma_f32 v{d}, -v43, v{t+4}, v{d}
            v_fma_f32 v{d+1}, v43, v{t+3}, v{d+1}
            """)
            ch.append(c)
        self.emit(zipmerge(*ch))
        a(f"""
        v_lshrrev_b32 v1, 7, v0
        v_mul_u32_u24 v1, 5120, v1
        v_and_b32 v2, 127, v0
        v_lshl_add_u32 v1, v2, 2, v1
        v_add_u32 v1, {L_CT}, v1
        """)
        for q in range(10): a(f"ds_write_b32 v1, v{40+q} offset:{q*512}")

    def kgen_main(self, IDX):
        a = self.a
        a(f"""
        s_lshr_b32 {S_T0}, {S_W}, 1
        s_mul_i32 {S_T0}, {S_T0}, 5120
        s_and_b32 {S_T1}, {S_W}, 1
        s_lshl_b32 {S_T1}, {S_T1}, 8
        s_add_u32 {S_T0}, {S_T0}, {S_T1}
        s_add_u32 {S_T0}, {S_T0}, {L_CT}
        v_lshlrev_b32 v1, 4, v{V_H}
        v_add_u32 v1, {S_T0}, v1
        v_cvt_f32_u32 v2, v{V_L16}
        v_mov_b32 v3, v2
        """)
        ACC = 160
        def kstep(B, off, first):
            Q = lambda q: B + 4*q
            FR, FI, T0, T1 = B+40, B+44, B+48, B+52
            A0, A1, F0F, F2F = B+56, B+60, B+64, B+68
            rd = [f"ds_read_b128 {v4(Q(q))}, v1 offset:{q*512 + off}" for q in range(10)]
            L = []
            for h in (0, 2):
                L.append(f"v_pk_mul_f32 {pk(T0+h)}, {pk(Q(0)+h)}, v[2:3]")
                L.append(f"v_pk_mul_f32 {pk(T1+h)}, {pk(Q(1)+h)}, v[2:3]")
            for i in range(4):
                L.append(f"v_exp_f32 v{T0+i}, v{T0+i}")
            for i in range(4):
                L.append(f"v_cos_f32 v{FR+i}, v{T1+i}")
                L.append(f"v_sin_f32 v{FI+i}, v{T1+i}")
            for h in (0, 2):
                L.append(f"v_pk_mul_f32 {pk(FR+h)}, {pk(FR+h)}, {pk(T0+h)}")
                L.append(f"v_pk_mul_f32 {pk(FI+h)}, {pk(FI+h)}, {pk(T0+h)}")
            def packF(dst):
                L.extend([f"v_cvt_pk_bf16_f32 v{dst}, v{FR}, v{FR+1}", f"v_cvt_pk_bf16_f32 v{dst+1}, v{FR+2}, v{FR+3}",
                          f"v_cvt_pk_bf16_f32 v{dst+2}, v{FI}, v{FI+1}", f"v_cvt_pk_bf16_f32 v{dst+3}, v{FI+2}, v{FI+3}"])
            def sq():
                for h in (0, 2):
                    L.append(f"v_pk_mul_f32 {pk(T0+h)}, {pk(FI+h)}, {pk(FI+h)}")
                    L.append(f"v_pk_mul_f32 {pk(T1+h)}, {pk(FR+h)}, {pk(FI+h)}")
                for h in (0, 2):
                    L.append(f"v_pk_fma_f32 {pk(FR+h)}, {pk(FR+h)}, {pk(FR+h)}, {pk(T0+h)} neg_lo:[0,0,1] neg_hi:[0,0,1]")
                    L.append(f"v_pk_add_f32 {pk(FI+h)}, {pk(T1+h)}, {pk(T1+h)}")
            def gmul(q, dst):
                cr, ci = Q(q), Q(q+1)
                for h in (0, 2):
                    L.append(f"v_pk_mul_f32 {pk(T0+h)}, {pk(ci+h)}, {pk(FI+h)}")
                    L.append(f"v_pk_mul_f32 {pk(T1+h)}, {pk(ci+h)}, {pk(FR+h)}")
                for h in (0, 2):
                    L.append(f"v_pk_fma_f32 {pk(T0+h)}, {pk(cr+h)}, {pk(FR+h)}, {pk(T0+h)} neg_lo:[0,0,1] neg_hi:[0,0,1]")
                    L.append(f"v_pk_fma_f32 {pk(T1+h)}, {pk(cr+h)}, {pk(FI+h)}, {pk(T1+h)} neg_lo:[1,0,1] neg_hi:[1,0,1]")
                L.extend([f"v_cvt_pk_bf16_f32 v{dst}, v{T0}, v{T0+1}", f"v_cvt_pk_bf16_f32 v{dst+1}, v{T0+2}, v{T0+3}",
                          f"v_cvt_pk_bf16_f32 v{dst+2}, v{T1}, v{T1+1}", f"v_cvt_pk_bf16_f32 v{dst+3}, v{T1+2}, v{T1+3}"])
            def mm(T, A, F):
                c = '0' if first else v4(ACC+4*T)
                L.append(f"v_mfma_f32_16x16x32_bf16 {v4(ACC+4*T)}, {v4(A)}, {v4(F)}, {c}")
            packF(F0F); sq(); sq(); packF(F2F); sq(); sq()
            gmul(2, A0); mm(0, A0, F0F); gmul(4, A1); mm(1, A1, F0F)
            sq(); sq()
            gmul(6, A0); mm(2, A0, F2F); gmul(8, A1); mm(3, A1, F2F)
            return rd, L
        BA, BB = 8, 84
        def sprinkle(L, groups):
            step = max(1, len(L) // (len(groups) + 1)); out = []
            for i, x in enumerate(L):
                out.append(x)
                if groups and (i + 1) % step == 0: out += groups.pop(0)
            for g in groups: out += g
            return out
        for i in range(16): a(f"v_mov_b32 v{ACC+i}, 0")
        lk = a.label('KG'); lk2 = a.label('KG')
        a(f"s_mov_b32 {S_T4}, 0\n{lk}:")
        rdA, LA = kstep(BA, 0, False)
        rdB, LB = kstep(BB, 64, False)
        self.emit(rdA[:2] + rdB[:2] + rdA[2:] + rdB[2:])
        a("s_waitcnt lgkmcnt(15)")
        n_pre = 4+4+8+4 + 4+16+4+16
        self.emit(zipmerge(LA[:n_pre], LB[:n_pre]))
        a("s_waitcnt lgkmcnt(0)")
        self.emit(zipmerge(LA[n_pre:], LB[n_pre:]))
        a(f"v_add_u32 v1, 128, v1\ns_cmp_eq_u32 {S_T4}, 0\ns_cbranch_scc0 {lk2}")
        self.arrive_first()
        self.stamp()
        a(f"s_mov_b32 {S_T4}, 1\ns_branch {lk}\n{lk2}:\ns_nop 7")
        lf = a.label('AF')
        a(f"s_cmp_eq_u32 {S_W}, 0\ns_cbranch_scc0 {lf}\ns_mov_b64 exec, 1")
        self.arrive_finish()
        a(f"s_mov_b64 exec, -1\n{lf}:")
        self.sub(2)
        a(f"""
        s_lshr_b32 {S_T0}, {S_W}, 1
        s_mul_i32 {S_T0}, {S_T0}, 4224
        s_and_b32 {S_T1}, {S_W}, 1
        s_mul_i32 {S_T1}, {S_T1}, 8448
        s_add_u32 {S_T0}, {S_T0}, {S_T1}
        s_add_u32 {S_T0}, {S_T0}, {L_KD}
        v_mul_u32_u24 v1, 264, v{V_H}
        v_lshl_add_u32 v1, v{V_L16}, 2, v1
        v_add_u32 v1, {S_T0}, v1
        """)
        for T in range(4):
            for r in range(4):
                a(f"ds_write_b32 v1, v{ACC+4*T+r} offset:{1056*T+64*r+4*(r>>1)}")
        a("s_waitcnt vmcnt(0) lgkmcnt(0)\ns_barrier")
        self.sub(3)
        VAL = 8
        for part in range(2):
            for ch in range(2):
                for i in range(9):
                    a(f"ds_read_b32 v{VAL+18*part+9*ch+i}, v{IDX+i} offset:{8448*part + 4224*ch}")
        a(f"""
        v_cmp_ne_u32 vcc, 255, v0
        v_lshlrev_b32 v1, 4, v0
        v_add_u32 v1, {L_KC + 8}, v1
        s_waitcnt lgkmcnt(0)
        """)
        for i in range(18): a(f"v_add_f32 v{VAL+i}, v{VAL+i}, v{VAL+18+i}")
        a(f"v_cndmask_b32 v{VAL+8}, 0, v{VAL+8}, vcc\nv_cndmask_b32 v{VAL+17}, 0, v{VAL+17}, vcc")
        self.sub(4)
        for ch in range(2):
            for m0 in range(2):
                o = 80 + 4*(2*ch+m0)
                s0 = VAL + 9*ch + (1 - m0)
                for p in range(4): a(f"v_cvt_pk_bf16_f32 v{o+p}, v{s0+2*p}, v{s0+2*p+1}")
                a(f"ds_write_b64 v1, {pk(o)} offset:{ch*8448+m0*4224}")
                a(f"ds_write_b64 v1, {pk(o+2)} offset:{ch*8448+m0*4224+8}")
        a(f"""
        v_cmp_gt_u32 vcc, 14, v{V_L16}
        v_mul_u32_u24 v1, 4224, v{V_H}
        v_lshl_add_u32 v1, v{V_L16}, 2, v1
        v_add_u32 v1, {L_KC + 4104}, v1
        v_mov_b32 v2, 0
        s_cmp_eq_u32 {S_W}, 0
        s_cselect_b64 {S_EXS}, vcc, 0
        s_mov_b64 exec, {S_EXS}
        ds_write_b32 v1, v2
        s_mov_b64 exec, -1
        s_waitcnt lgkmcnt(0)
        """)
        self.sub(5)
        a("s_barrier")

    def wfrag_loads(self):
        setup = lines(f"""
        s_lshl_b32 {S_T0}, {S_CG}, 2
        s_add_u32 {S_T0}, {S_T0}, {S_W}
        s_lshl_b32 {S_T0}, {S_T0}, 14
        s_add_u32 s79, {S_T0}, {WQF}
        s_add_u32 {S_DS}, s79, {1 << 19}
        v_lshlrev_b32 v18, 4, v{V_LANE}
        """)
        groups = []
        for p in (1, 2):
            for ks in range(16):
                g = [f"buffer_load_dwordx4 a[{64*p+4*ks}:{64*p+4*ks+3}], v18, {SRD_WS}, {S_DS} offen sc1"]
                g.append(f"s_add_u32 {S_DS}, {S_DS}, {1024 if ks < 15 else (1 << 19) - 15*1024}")
                groups.append(g)
        for ks in list(range(QSPLIT, 16)):
            groups.append([f"s_add_u32 {S_T5}, s79, {ks*1024}", f"buffer_load_dwordx4 a[{4*ks}:{4*ks+3}], v18, {SRD_WS}, {S_T5} offen sc1"])
        for ks in range(QSPLIT):
            groups.append([f"s_add_u32 {S_T5}, s79, {ks*1024}", f"buffer_load_dwordx4 a[{4*ks}:{4*ks+3}], v111, {SRD_WS}, {S_T5} offen sc1"])
        return setup, groups

    def wsum(self, o=16, parts=(1, 2)):
        a = self.a
        for i in range(4): a(f"v_mov_b32 v{o+i}, {S_ONES}")
        for ks in range(16):
            for p in parts:
                d = v4(o+4+4*p); c = '0' if ks == 0 else d
                w = f"a[{64*p+4*ks}:{64*p+4*ks+3}]"
                if p == 0: a(f"v_mfma_f32_16x16x32_bf16 {d}, {w}, {v4(o)}, {c}")
                else: a(f"v_mfma_f32_16x16x32_bf16 {d}, {v4(o)}, {w}, {c}")
        if 0 in parts:
            for i in range(4): a(f"v_mov_b32 v{V_WSQ+i}, v{o+4+i}")
        if 1 in parts: a(f"v_mov_b32 v{V_WSK}, v{o+8}")
        if 2 in parts: a(f"v_mov_b32 v{V_WSV}, v{o+12}")

    CV = dict(XA=10, ST=20, AX=3, AS=4, AU0=5, AU1=6, AK=8, AU=9, ACC=80, X32=200, U32=216)
    def conv_pre(self):
        a = self.a
        a(f"""
        s_lshl_b32 {S_T0}, {S_ID}, 13
        s_add_u32 {S_T0}, {S_T0}, {S_XIN}
        v_lshlrev_b32 v3, 4, v0
        v_add_u32 v3, {S_T0}, v3
        v_lshlrev_b32 v4, 4, v0
        v_add_u32 v4, {S_ST}, v4
        v_lshlrev_b32 v5, 4, v0
        v_add_u32 v5, {L_U + 512}, v5
        v_add_u32 v6, 9280, v5
        v_bfe_u32 v1, v0, 5, 2
        v_mul_u32_u24 v1, 4640, v1
        v_and_b32 v2, 31, v0
        v_lshl_add_u32 v1, v2, 4, v1
        v_add_u32 v1, {L_U}, v1
        v_mov_b32 v36, 0
        v_mov_b32 v37, 0
        v_mov_b32 v38, 0
        v_mov_b32 v39, 0
        v_and_b32 v2, 1, v0
        v_mul_u32_u24 v2, 9280, v2
        v_add_u32 v2, {L_U + 512}, v2
        ds_write_b32 v2, v36
        v_cmp_gt_u32 vcc, 128, v0
        s_and_saveexec_b64 {S_EXS}, vcc
        ds_write_b128 v1, v[36:39]
        s_mov_b64 exec, -1
        s_lshr_b32 {S_T0}, {S_W}, 1
        s_and_b32 {S_T1}, {S_W}, 1
        s_mul_i32 {S_T2}, {S_T0}, 8448
        s_lshl_b32 {S_T3}, {S_T1}, 8
        s_sub_u32 {S_T2}, {S_T2}, {S_T3}
        s_add_u32 {S_T2}, {S_T2}, {L_KC + 4096 - 192 - 3584}
        v_and_b32 v1, 1, v{V_L16}
        v_lshrrev_b32 v7, 1, v{V_L16}
        v_mul_u32_u24 v8, 4224, v1
        v_lshl_add_u32 v8, v{V_H}, 4, v8
        v_lshlrev_b32 v9, 3, v7
        v_sub_u32 v8, v8, v9
        v_add_u32 v8, {S_T2}, v8
        s_mul_i32 {S_T2}, {S_T0}, 9280
        s_sub_u32 {S_T2}, {S_T2}, {S_T3}
        s_add_u32 {S_T2}, {S_T2}, {L_U + 512 - 192}
        v_mul_u32_u24 v9, 4640, v1
        v_lshl_add_u32 v9, v7, 6, v9
        v_lshl_add_u32 v9, v{V_H}, 4, v9
        v_add_u32 v9, {S_T2}, v9
        s_lshl_b32 {S_T1}, {S_T1}, 1
        s_add_u32 {S_T0}, {S_T0}, {S_T1}
        s_mul_i32 {S_T0}, {S_T0}, 9216
        s_add_u32 {S_T0}, {S_T0}, {L_Y}
        v_mul_u32_u24 v2, 144, v7
        v_lshl_add_u32 v2, v{V_H}, 5, v2
        v_lshl_add_u32 v2, v1, 3, v2
        v_add_u32 v2, {S_T0}, v2
        v_lshrrev_b32 v7, 2, v0
        v_lshlrev_b32 v7, 4, v7
        v_lshl_add_u32 v7, v0, 5, v7
        v_add_u32 v7, {L_Y}, v7
        s_waitcnt lgkmcnt(0)
        """)
        for i in (0, 1, 3):
            for q in range(8):
                for hh in range(2):
                    b = {0: 112, 1: 192, 3: 224}[i] + 4*q + 2*hh
                    reg = f"{'v' if i == 0 else 'a'}[{b}:{b+1}]"
                    a(f"ds_read_b64 {reg}, v8 offset:{(3-i)*64 + (7-q)*512 + 8*hh}")

    def conv(self):
        a = self.a
        self.sub(0)
        XA, XB, ST = 10, 14, 20
        for j in range(4):
            a(f"s_mov_b32 {S_T0}, {4096*j}\nbuffer_load_dwordx4 {v4(ST+4*j)}, v4, {SRD_WS}, {S_T0} offen sc1")
        a(f"""
        buffer_load_dwordx4 {v4(XA)}, v3, {SRD_WS}, 0 offen sc1
        v_add_u32 v1, 4096, v3
        buffer_load_dwordx4 {v4(XB)}, v1, {SRD_WS}, 0 offen sc1
        s_mov_b32 s66, {fx(1/512)}
        s_mov_b32 s67, {fx(1e-5)}
        v_mov_b32 v36, s66
        v_mov_b32 v37, s66
        v_mov_b32 v38, s67
        v_mov_b32 v39, s67
        """)
        setup, self.wg = self.wfrag_loads()
        l1 = a.label('CW'); l2 = a.label('CW')
        a(f"s_cmp_eq_u32 {S_LAYER}, 0\ns_cselect_b64 vcc, -1, 0\ns_cbranch_scc0 {l1}")
        self.emit(setup)
        for g in self.wg[:8]: self.emit(g)
        a(f"s_waitcnt vmcnt(10)\ns_branch {l2}\n{l1}:\ns_waitcnt vmcnt(2)\n{l2}:")
        self.sub(1)
        S = lambda i: ST + 2*i
        P  = 40
        MB = 48; VB = 56; R = 64; MR = 72
        for i in range(8): a(f"v_pk_mul_f32 {pk(S(i))}, {pk(S(i))}, v[36:37]")
        for i in range(8): a(f"v_fma_f32 v{S(i)+1}, -v{S(i)}, v{S(i)}, v{S(i)+1}")
        for i in range(8): a(f"v_cvt_pk_bf16_f32 v{P+i}, v{S(i)}, v{S(i)+1}")
        for i in range(8): a(f"v_and_b32 v{VB+i}, 0xffff0000, v{P+i}")
        for i in range(4): a(f"v_pk_add_f32 {pk(VB+2*i)}, {pk(VB+2*i)}, v[38:39]")
        for i in range(8): a(f"v_lshlrev_b32 v{MB+i}, 16, v{P+i}")
        for i in range(4): a(f"v_cvt_pk_bf16_f32 v{P+i}, v{VB+2*i}, v{VB+2*i+1}")
        for i in range(4):
            a(f"v_lshlrev_b32 v{VB+2*i}, 16, v{P+i}\nv_and_b32 v{VB+2*i+1}, 0xffff0000, v{P+i}")
        X32, U32 = 200, 216
        fill = []
        for c, X in enumerate((XA, XB)):
            for p in range(4):
                fill.append(f"v_lshlrev_b32 v{X32+8*c+2*p}, 16, v{X+p}")
                fill.append(f"v_and_b32 v{X32+8*c+2*p+1}, 0xffff0000, v{X+p}")
        for i in range(8): a(f"v_sqrt_f32 v{VB+i}, v{VB+i}")
        for i in range(4): a(f"v_cvt_pk_bf16_f32 v{P+i}, v{VB+2*i}, v{VB+2*i+1}")
        for i in range(4):
            a(f"v_lshlrev_b32 v{VB+2*i}, 16, v{P+i}\nv_and_b32 v{VB+2*i+1}, 0xffff0000, v{P+i}")
        l1 = a.label('CW'); l2 = a.label('CW')
        a(f"s_cbranch_vccz {l1}\ns_waitcnt vmcnt(8)\ns_branch {l2}\n{l1}:\ns_waitcnt vmcnt(0)\n{l2}:")
        self.emit(weave([f"v_rcp_f32 v{R+i}, v{VB+i}" for i in range(8)], fill, per=2))
        for i in range(4): a(f"v_pk_mul_f32 {pk(MR+2*i)}, {pk(MB+2*i)}, {pk(R+2*i)}")
        self.sub(2)
        for c in range(2):
            for p in range(4):
                x = X32+8*c+2*p; u = U32+8*c+2*p
                a(f"v_pk_fma_f32 {pk(u)}, {pk(x)}, {pk(R+2*p)}, {pk(MR+2*p)} neg_lo:[0,0,1] neg_hi:[0,0,1]")
        UP = 40
        for c in range(2):
            for p in range(4):
                u = U32+8*c+2*p
                a(f"v_cvt_pk_bf16_f32 v{UP+4*c+p}, v{u}, v{u+1}")
            ad = 5 + c
            a(f"ds_write_b128 v{ad}, {v4(UP+4*c)} offset:4640")
            a(f"ds_write2_b32 v{ad}, v{UP+4*c}, v{UP+4*c+1} offset0:1 offset1:2")
            a(f"ds_write2_b32 v{ad}, v{UP+4*c+2}, v{UP+4*c+3} offset0:3 offset1:4")
        AK, AU, ACC = 8, 9, 80
        a("s_waitcnt lgkmcnt(0)\ns_barrier")
        self.sub(3)
        ABASE = {0: ('v', 112), 1: ('a', 192), 2: ('v', 40), 3: ('a', 224)}
        def fragA(i, q):
            f, b = ABASE[i]; return f"{f}[{b+4*q}:{b+4*q+3}]"
        BB = [[144+4*q for q in range(8)], [176, 180, 184, 188, 192, 196, 72, 76]]
        def fragB(st, q): return v4(BB[st][q])
        def loadB(i, st): return [f"ds_read_b128 {fragB(st, q)}, v{AU} offset:{(3-i)*64 + 512*q}" for q in range(8)]
        def loadA2():
            L = []
            for q in range(8):
                for hh in range(2):
                    b = 40 + 4*q + 2*hh
                    L.append(f"ds_read_b64 v[{b}:{b+1}], v{AK} offset:{(3-2)*64 + (7-q)*512 + 8*hh}")
            return L
        self.emit(loadB(0, 0))
        def mainloop(groups):
            written = set(); cnt = 0
            for i in range(4):
                st = i & 1
                a("s_waitcnt lgkmcnt(0)")
                nxt = loadB(i+1, st ^ 1) if i < 3 else []
                if i == 0: nxt = nxt + loadA2()
                for sh in range(8):
                    for t in range(sh, 8):
                        c = v4(ACC+4*t) if t in written else '0'
                        written.add(t)
                        a(f"v_mfma_f32_16x16x32_bf16 {v4(ACC+4*t)}, {fragA(i, sh)}, {fragB(st, t-sh)}, {c}")
                        cnt += 1
                        if nxt: a(nxt.pop(0))
                        if groups and cnt % 20 == 10:
                            lg = a.label('WG')
                            a(f"s_cbranch_vccz {lg}")
                            for _ in range(4): self.emit(groups.pop(0))
                            a(f"{lg}:")
            assert not groups
        NC = 48 - QSPLIT
        nloop = min(24, (NC - 8) * 2 // 3 // 4 * 4)
        self.nloop = nloop
        mainloop(self.wg[8:8+nloop])
        lb = a.label('WB')
        a(f"s_cbranch_vccz {lb}")
        for g in self.wg[8+self.nloop:48-QSPLIT]: self.emit(g)
        a(f"{lb}:")
        self.sub(4)
        for t in range(8):
            a(f"ds_write_b64 v2, {pk(ACC+4*t)} offset:{1152*t}")
            a(f"ds_write_b64 v2, {pk(ACC+4*t+2)} offset:{1152*t+16}")
        a("s_waitcnt lgkmcnt(0)\ns_barrier")
        self.sub(5)
        Y0 = 112
        for ch in range(2):
            for sh in range(2):
                for hh in range(2):
                    b = Y0 + 16*sh + 8*ch + 4*hh
                    a(f"ds_read_b128 {v4(b)}, v7 offset:{sh*18432 + ch*9216 + 16*hh}")
        a(f"""
        v_subrev_u32 v3, {S_XIN}, v3
        v_add_u32 v3, {S_XOUT}, v3
        v_add_u32 v1, 4096, v3
        """)
        for ch in range(2):
            a(f"s_waitcnt lgkmcnt({4*(1-ch)})")
            D = V_DSK0 if ch == 0 else V_DSK1
            for p in range(4):
                y = Y0 + 8*ch + 2*p
                a(f"v_pk_add_f32 {pk(y)}, {pk(y)}, {pk(y+16)}")
            for p in range(4):
                y = Y0 + 8*ch + 2*p; u = U32 + 8*ch + 2*p
                a(f"v_pk_fma_f32 {pk(y)}, {pk(u)}, {pk(D)}, {pk(y)} op_sel_hi:[1,0,1]")
            for p in range(4):
                y = Y0 + 8*ch + 2*p; x = X32 + 8*ch + 2*p
                a(f"v_pk_add_f32 {pk(y)}, {pk(y)}, {pk(x)}")
            for p in range(4):
                y = Y0 + 8*ch + 2*p
                a(f"v_cvt_pk_bf16_f32 v{80+4*ch+p}, v{y}, v{y+1}")
            a(f"buffer_store_dwordx4 {v4(80+4*ch)}, v{3 if ch == 0 else 1}, {SRD_WS}, 0 offen sc1")
        self.sub(6)
        self.subflush(0, 7)

    def wstage_kv(self):
        a = self.a
        l = a.label('WS')
        a(f"s_cmp_eq_u32 {S_LAYER}, 0\ns_cbranch_scc0 {l}")
        self.wsum()
        a(f"{l}:")

    def qkv_pre(self):
        a = self.a
        t = 10
        a(f"""
        v_lshrrev_b32 v{t}, 3, v{V_LANE}
        v_lshlrev_b32 v{t}, 12, v{t}
        v_bfe_u32 v{t+1}, v{V_LANE}, 1, 2
        v_bfe_u32 v{t+2}, v{V_LANE}, 4, 1
        s_and_b32 {S_T0}, {S_W}, 1
        s_lshl_b32 {S_T0}, {S_T0}, 1
        v_or_b32 v{t+2}, {S_T0}, v{t+2}
        v_xor_b32 v{t+1}, v{t+1}, v{t+2}
        v_lshl_add_u32 v{t}, v{t+1}, 5, v{t}
        v_and_b32 v{t+1}, 1, v{V_LANE}
        v_lshl_add_u32 v{t}, v{t+1}, 4, v{t}
        s_lshl_b32 {S_T0}, {S_RT}, 7
        v_add_u32 v{t}, {S_T0}, v{t}
        s_lshl_b32 {S_DS}, {S_W}, 15
        s_add_u32 {S_DS}, {S_DS}, {S_XIN}
        s_lshl_b32 {S_DM}, {S_W}, 10
        s_add_u32 {S_DM}, {S_DM}, {L_XL}
        """)
        t = 12
        a(f"""
        v_lshrrev_b32 v{t}, 2, v{V_L16}
        v_lshl_add_u32 v{t+1}, v{V_H}, 3, v{t}
        v_lshlrev_b32 v{t+1}, 7, v{t+1}
        v_and_b32 v{t+2}, 3, v{V_L16}
        v_lshl_add_u32 v{t+1}, v{t+2}, 3, v{t+1}
        v_add_u32 v{t+1}, {L_XL}, v{t+1}
        v_lshrrev_b32 v{t}, 1, v{t}
        v_and_b32 v{t+2}, 1, v{V_H}
        v_lshl_or_b32 v{t}, v{t+2}, 1, v{t}
        v_xor_b32 v{t}, {S_W}, v{t}
        """)
        for j in range(4):
            a(f"v_xor_b32 v{t+2}, {j}, v{t}\nv_lshl_add_u32 v{4+j}, v{t+2}, 5, v{t+1}")
        for i in range(4): a(f"v_mov_b32 v{104+i}, {S_ONES}")
        a(f"""
        s_mov_b32 s66, {fx(1e-6)}
        s_mov_b32 s67, {fx(LOG2E)}
        v_mov_b32 v112, s66
        v_mov_b32 v113, s66
        v_mov_b32 v114, s67
        v_mov_b32 v115, s67
        """)

    def qkv(self):
        a = self.a
        self.sub(0)
        def dma():
            return lines(f"""
            s_mov_b32 m0, {S_DM}
            s_add_u32 {S_DM}, {S_DM}, 4096
            buffer_load_dwordx4 v10, {SRD_WS}, {S_DS} offen sc1 lds
            s_add_u32 {S_DS}, {S_DS}, {4*32768}
            """)
        NUPF = int(os.environ.get('NUPF', '12'))
        for i in range(NUPF): self.emit(dma())
        AD = 4
        AK_, AV_, AQ_ = 16, 32, 48
        DS, DG = 64, 68
        ONES = 104
        XF = [72, 88]
        def xload(ks, st):
            L = []
            for j in range(4):
                b = XF[st] + 4*j
                L.append(f"ds_read_b64_tr_b16 {pk(b)}, v{AD+j} offset:{ks*4096}")
                L.append(f"ds_read_b64_tr_b16 {pk(b+2)}, v{AD+j} offset:{ks*4096+512}")
            return L
        S_WDS, S_WDM = 's84', 's85'
        a(f"""
        s_lshl_b32 {S_WDS}, {S_CG}, 16
        s_lshl_b32 {S_T0}, {S_W}, 14
        s_add_u32 {S_WDS}, {S_WDS}, {S_T0}
        s_add_u32 {S_WDS}, {S_WDS}, {WOFG}
        s_add_u32 {S_WDM}, {S_T0}, {L_WO}
        v_lshlrev_b32 v111, 4, v{V_LANE}
        """)
        def wo_group():
            lg = a.label('WOG')
            a(f"s_cmp_eq_u32 {S_LAYER}, 0\ns_cbranch_scc0 {lg}")
            for _ in range(4):
                a(f"""
                s_mov_b32 m0, {S_WDM}
                s_add_u32 {S_WDM}, {S_WDM}, 1024
                buffer_load_dwordx4 v111, {SRD_WS}, {S_WDS} offen sc1 lds
                s_add_u32 {S_WDS}, {S_WDS}, 1024
                """)
            a(f"{lg}:")
        SF = [200, 208]
        S = {0: [0], 1: [1, 2], 2: [3, 4], 3: [5, 6], 4: [7, 8], 5: [9, 10], 6: [11, 12], 7: [13, 14], 8: [15]}
        def sload(ks, st):
            L = []
            for n, kss in enumerate(S.get(ks, [])):
                b = SF[st] + 4*n
                L.append(f"ds_read_b64_tr_b16 {pk(b)}, v{AD} offset:{kss*4096}")
                L.append(f"ds_read_b64_tr_b16 {pk(b+2)}, v{AD} offset:{kss*4096+512}")
            return L
        ndma = [NUPF]
        landed = [-1]
        def need(idx):
            if idx <= landed[0]: return []
            landed[0] = idx
            return [f"s_waitcnt vmcnt({ndma[0] - 1 - idx})", "s_barrier"]
        waits = {0: 2, 1: 4, 2: 8, 4: 12, 6: 15}
        self.emit(need(1))
        self.sub(1)
        self.emit(xload(0, 0) + sload(0, 0))
        self.P1 = {}
        fillers = {}
        def pass1(ks, extra):
            st = ks & 1
            a("s_waitcnt lgkmcnt(0)")
            if ks in waits: self.emit(need(waits[ks]))
            fill = (xload(ks+1, st ^ 1) + sload(ks+1, st ^ 1)) if ks + 1 < 16 else (xload(0, st ^ 1) if QSPLIT > 0 else [])
            M = []
            for j in range(4):
                x = v4(XF[st]+4*j)
                ck = '0' if ks == 0 else v4(AK_+4*j); cv = '0' if ks == 0 else v4(AV_+4*j)
                M.append(f"v_mfma_f32_16x16x32_bf16 {v4(AK_+4*j)}, {x}, a[{64+4*ks}:{64+4*ks+3}], {ck}")
                M.append(f"v_mfma_f32_16x16x32_bf16 {v4(AV_+4*j)}, {x}, a[{128+4*ks}:{128+4*ks+3}], {cv}")
                if ks >= QSPLIT:
                    M.append(f"v_mfma_f32_16x16x32_bf16 {v4(AQ_+4*j)}, a[{4*ks}:{4*ks+3}], {x}, {'0' if ks == QSPLIT else v4(AQ_+4*j)}")
            for n, kss in enumerate(S.get(ks, [])):
                x0 = v4(SF[st] + 4*n)
                M.append(f"v_mfma_f32_16x16x32_bf16 {v4(DS)}, {v4(ONES)}, {x0}, {'0' if kss == 0 else v4(DS)}")
                M.append(f"v_mfma_f32_16x16x32_bf16 {v4(DG)}, {x0}, {x0}, {'0' if kss == 0 else v4(DG)}")
            k = min(2, 16 - ndma[0])
            for _ in range(k): fill = fill + dma()
            ndma[0] += k
            out = []; fi = list(fill); ex = list(extra)
            for mi, m in enumerate(M):
                out.append(m)
                n = 2
                while n > 0 and fi: out.append(fi.pop(0)); n -= 1
                while n > 0 and ex: out.append(ex.pop(0)); n -= 1
            out += fi
            self.emit(out)
            return ex
        self._pass1 = pass1
        SQ = 109
        F1 = lines(f"""
        v_and_b32 v8, 3, v{V_L16}
        v_lshrrev_b32 v9, 2, v{V_L16}
        v_cmp_eq_u32 s[66:67], 1, v8
        v_cmp_eq_u32 s[68:69], 2, v8
        v_cmp_eq_u32 vcc, 3, v8
        v_cndmask_b32 v{SQ}, v{DG}, v{DG+1}, s[66:67]
        v_cndmask_b32 v{SQ}, v{SQ}, v{DG+2}, s[68:69]
        v_cndmask_b32 v{SQ}, v{SQ}, v{DG+3}, vcc
        v_cmp_eq_u32 vcc, v9, v{V_H}
        s_lshl_b32 {S_T0}, {S_W}, 6
        s_add_u32 {S_T0}, {S_T0}, {L_S2R}
        v_cndmask_b32 v{SQ}, 0, v{SQ}, vcc
        v_lshlrev_b32 v8, 2, v{V_L16}
        v_add_u32 v9, {S_T0}, v8
        """)
        F1 += self.reduce_h(SQ, 110)
        F1 += self.ln_final1(DS, SQ, 116, 117, 118)
        F1 += lines(f"""
        ds_write_b32 v9, v116
        ds_write_b32 v9, v117 offset:{L_S2M-L_S2R}
        v_lshlrev_b32 v8, 4, v{V_H}
        v_add_u32 v8, {S_T0}, v8
        """)
        R4, M4 = 128, 144
        RQ, MQ = 160, 208
        F2 = []
        for j in range(4):
            F2.append(f"v_xor_b32 v{120+j}, {64*j}, v8")
            F2.append(f"v_xor_b32 v{124+j}, {64*j}, v9")
        for j in range(4):
            F2.append(f"ds_read_b128 {v4(R4+4*j)}, v{120+j}")
            F2.append(f"ds_read_b128 {v4(M4+4*j)}, v{120+j} offset:{L_S2M-L_S2R}")
        for j in range(4):
            F2.append(f"ds_read_b32 v{RQ+2*j}, v{124+j}")
            F2.append(f"ds_read_b32 v{MQ+2*j}, v{124+j} offset:{L_S2M-L_S2R}")
        EPS, L2E = 112, 114
        def phi(x, T):
            return [f"v_pk_mul_f32 {pk(T)}, {pk(x)}, {pk(L2E)}",
                    f"v_exp_f32_e64 v{T}, v{T} clamp", f"v_exp_f32_e64 v{T+1}, v{T+1} clamp",
                    f"v_max_f32 v{x}, v{EPS}, v{x}", f"v_max_f32 v{x+1}, v{EPS}, v{x+1}",
                    f"v_pk_add_f32 {pk(x)}, {pk(x)}, {pk(T)}"]
        PKF, VF, PQF = 168, 176, 200
        DKV, DZ = 196, 216
        def kv_chain(j, h2, T):
            k = AK_+4*j+h2; vv = AV_+4*j+h2; r = R4+4*j+h2; m = M4+4*j+h2
            c = [f"v_pk_fma_f32 {pk(T)}, {pk(m)}, v[{V_WSK}:{V_WSK+1}], {pk(EPS)} op_sel_hi:[1,0,1] neg_lo:[0,0,1] neg_hi:[0,0,1]",
                 f"v_pk_mul_f32 {pk(T+4)}, {pk(m)}, v[{V_WSV}:{V_WSV+1}] op_sel_hi:[1,0]",
                 f"v_pk_fma_f32 {pk(k)}, {pk(k)}, {pk(r)}, {pk(T)} neg_lo:[0,0,1] neg_hi:[0,0,1]",
                 f"v_pk_fma_f32 {pk(vv)}, {pk(vv)}, {pk(r)}, {pk(T+4)} neg_lo:[0,0,1] neg_hi:[0,0,1]"]
            ph = phi(k, T+2)
            c += [ph[0], f"v_cvt_pk_bf16_f32 v{VF + 2*j + h2//2}, v{vv}, v{vv+1}"] + ph[1:]
            c.append(f"v_cvt_pk_bf16_f32 v{PKF + 2*j + h2//2}, v{k}, v{k+1}")
            return c
        def q_chain(j, h2, T):
            q = AQ_+4*j+h2
            c = [f"v_pk_fma_f32 {pk(T)}, {pk(MQ+2*j)}, {pk(V_WSQ+h2)}, {pk(EPS)} op_sel_hi:[0,1,1] neg_lo:[0,0,1] neg_hi:[0,0,1]",
                 f"v_pk_fma_f32 {pk(q)}, {pk(q)}, {pk(RQ+2*j)}, {pk(T)} op_sel_hi:[1,0,1] neg_lo:[0,0,1] neg_hi:[0,0,1]"]
            c += phi(q, T+2)
            c.append(f"v_cvt_pk_bf16_f32 v{PQF + 2*j + h2//2}, v{q}, v{q+1}")
            return c
        adr = lines(f"""
        s_lshl_b32 {S_T0}, {S_CG}, 2
        s_add_u32 {S_T0}, {S_T0}, {S_W}
        s_lshl_b32 {S_T1}, {S_T0}, 10
        s_add_u32 {S_T1}, {S_T1}, {S_KV}
        v_lshlrev_b32 v11, 2, v{V_LANE}
        v_add_u32 v14, {S_T1}, v11
        s_lshl_b32 {S_T1}, {S_T0}, 10
        s_add_u32 {S_T1}, {S_T1}, {S_Z}
        s_and_b32 {S_T2}, {S_RT}, 3
        s_lshl_b32 {S_T2}, {S_T2}, 8
        s_add_u32 {S_T1}, {S_T1}, {S_T2}
        v_add_u32 v15, {S_T1}, v11
        s_lshl_b32 {S_T1}, {S_RT}, 16
        s_add_u32 {S_T1}, {S_T1}, {S_PQ}
        s_lshl_b32 {S_T2}, {S_T0}, 10
        s_add_u32 {S_T1}, {S_T1}, {S_T2}
        s_and_b32 {S_T2}, {S_W}, 1
        s_lshl_b32 {S_T2}, {S_T2}, 4
        v_xor_b32 v11, {S_T2}, v{V_LANE}
        v_lshlrev_b32 v11, 4, v11
        v_add_u32 v11, {S_T1}, v11
        s_lshr_b32 {S_T2}, {S_W}, 1
        s_lshl_b32 {S_T2}, {S_T2}, 15
        v_add_u32 v12, {S_T2}, v11
        s_xor_b32 {S_T2}, {S_T2}, 0x8000
        v_add_u32 v13, {S_T2}, v11
        """)
        def passQ(ks_range):
            for ks in ks_range:
                st = ks & 1
                nx = xload(ks+1, st ^ 1) if ks + 1 < QSPLIT else []
                a("s_waitcnt lgkmcnt(0)")
                for j in range(4):
                    x = v4(XF[st]+4*j)
                    c = '0' if (QSPLIT == 16 and ks == 0) else v4(AQ_+4*j)
                    a(f"v_mfma_f32_16x16x32_bf16 {v4(AQ_+4*j)}, a[{4*ks}:{4*ks+3}], {x}, {c}")
                    k = 4 if j < 2 else 0
                    for _ in range(k):
                        if nx: a(nx.pop(0))
        wq = list(self.wg[48-QSPLIT:])
        def wq_group():
            if not wq: return
            lg = a.label('WQG')
            a(f"s_cmp_eq_u32 {S_LAYER}, 0\ns_cbranch_scc0 {lg}")
            for _ in range(4):
                if wq: self.emit(wq.pop(0))
            a(f"{lg}:")
        for ks in range(0, 9):
            pass1(ks, [])
            if ks == 3: self.sub(2)
            if ks in (6, 8): wq_group()
        self.sub(3)
        ex = list(F1)
        for ks in range(9, 12):
            ex = pass1(ks, ex)
            if ks == 10: wq_group()
        self.emit(ex)
        wq_group()
        a("s_waitcnt lgkmcnt(0)\ns_barrier")
        self.sub(4)
        ex = list(F2) + adr
        for ks in range(12, 16):
            ex = pass1(ks, ex)
            if ks == 12: wo_group()
        self.emit(ex)
        wo_group()
        a("s_waitcnt lgkmcnt(0)")
        self.sub(5)
        TT = [184, 190, 220, 226]
        for j0 in (0, 2):
            self.emit(zipmerge(kv_chain(j0, 0, TT[0]), kv_chain(j0, 2, TT[1]), kv_chain(j0+1, 0, TT[2]), kv_chain(j0+1, 2, TT[3])))
            u = j0 // 2
            c1 = '0' if u == 0 else v4(DKV); c2 = '0' if u == 0 else v4(DZ)
            a(f"v_mfma_f32_16x16x32_bf16 {v4(DKV)}, {v4(VF+4*u)}, {v4(PKF+4*u)}, {c1}")
            a(f"v_mfma_f32_16x16x32_bf16 {v4(DZ)}, {v4(ONES)}, {v4(PKF+4*u)}, {c2}")
        for i in range(4):
            a(f"buffer_atomic_add_f32 v{DKV+i}, v14, {SRD_WS}, 0 offen offset:{256*i}")
        a(f"""
        s_mov_b64 exec, 0xffff
        buffer_atomic_add_f32 v{DZ}, v15, {SRD_WS}, 0 offen
        s_mov_b64 exec, -1
        """)
        wo_group()
        a("s_waitcnt vmcnt(17)")
        passQ(range(0, QSPLIT // 2))
        wo_group()
        passQ(range(QSPLIT // 2, QSPLIT))
        lq = a.label('WSQ')
        a(f"s_cmp_eq_u32 {S_LAYER}, 0\ns_cbranch_scc0 {lq}")
        self.wsum(o=120, parts=(0,))
        a(f"{lq}:")
        TQ = [184, 188, 220, 224]
        for u in range(2):
            j0 = 2*u
            self.emit(zipmerge(q_chain(j0, 0, TQ[0]), q_chain(j0, 2, TQ[1]), q_chain(j0+1, 0, TQ[2]), q_chain(j0+1, 2, TQ[3])))
            b = PQF + 4*u
            a(f"v_permlane16_swap_b32 v{b}, v{b+2}\nv_permlane16_swap_b32 v{b+1}, v{b+3}")
            a(f"buffer_store_dwordx4 {v4(b)}, v{12+u}, {SRD_WS}, 0 offen sc1")
        self.sub(6)
        self.subflush(1, 7)

    def outp_pre(self):
        a = self.a
        a(f"""
        s_lshl_b32 {S_T0}, {S_W}, 13
        s_add_u32 {S_T0}, {S_T0}, {S_KV}
        v_lshlrev_b32 v4, 4, v{V_LANE}
        v_add_u32 v4, {S_T0}, v4
        v_add_u32 v5, 4096, v4
        s_lshl_b32 {S_T0}, {S_W}, 13
        s_add_u32 {S_T0}, {S_T0}, {S_Z}
        v_bfe_u32 v6, v{V_LANE}, 2, 3
        v_lshlrev_b32 v6, 10, v6
        v_lshrrev_b32 v12, 5, v{V_LANE}
        v_lshl_add_u32 v6, v12, 8, v6
        v_and_b32 v12, 3, v{V_LANE}
        v_lshl_add_u32 v6, v12, 4, v6
        v_add_u32 v6, {S_T0}, v6
        s_and_b32 {S_T0}, {S_W}, 1
        s_lshl_b32 {S_T0}, {S_T0}, 15
        s_lshr_b32 {S_T1}, {S_W}, 1
        s_lshl_b32 {S_T1}, {S_T1}, 14
        s_add_u32 {S_T0}, {S_T0}, {S_T1}
        s_lshl_b32 {S_T1}, {S_RT}, 16
        s_add_u32 {S_T0}, {S_T0}, {S_T1}
        s_add_u32 {S_DS}, {S_T0}, {S_PQ}
        v_lshlrev_b32 v7, 4, v{V_LANE}
        v_lshrrev_b32 v1, 3, v0
        v_and_b32 v3, 7, v0
        s_lshl_b32 {S_T0}, {S_CG}, 18
        s_lshl_b32 {S_T1}, {S_RT}, 7
        s_add_u32 {S_T0}, {S_T0}, {S_T1}
        v_lshlrev_b32 v8, 12, v1
        v_lshl_add_u32 v8, v3, 4, v8
        v_add_u32 v8, {S_T0}, v8
        v_add_u32 v9, {S_XIN}, v8
        v_add_u32 v2, 0x20000, v9
        v_lshrrev_b32 v10, 4, v{V_LANE}
        v_bfe_u32 v11, v{V_LANE}, 2, 2
        v_lshl_add_u32 v10, v11, 2, v10
        v_bfe_u32 v11, v{V_LANE}, 1, 1
        v_lshl_add_u32 v10, v11, 4, v10
        v_lshlrev_b32 v10, 4, v10
        v_and_b32 v11, 1, v{V_LANE}
        v_lshl_add_u32 v10, v11, 3, v10
        s_mul_i32 {S_T0}, {S_W}, {8*544}
        s_add_u32 {S_T0}, {S_T0}, {L_KVF}
        v_add_u32 v10, {S_T0}, v10
        v_bfe_u32 v11, v{V_LANE}, 2, 3
        v_mul_u32_u24 v11, 544, v11
        v_and_b32 v12, 3, v{V_LANE}
        v_lshl_add_u32 v11, v12, 3, v11
        v_add_u32 v11, {S_T0}, v11
        v_and_b32 v12, 31, v{V_LANE}
        v_lshrrev_b32 v13, 5, v{V_LANE}
        v_lshlrev_b32 v14, 4, v13
        v_add_u32 v15, v14, v12
        v_lshlrev_b32 v15, 4, v15
        v_lshlrev_b32 v14, 4, v13
        v_add_u32 v14, 512, v14
        v_cmp_gt_u32 vcc, 16, v12
        v_cndmask_b32 v15, v14, v15, vcc
        s_lshr_b32 {S_T0}, {S_W}, 1
        s_mul_i32 {S_T1}, {S_T0}, {16*544}
        s_add_u32 {S_T1}, {S_T1}, {L_KVF}
        v_add_u32 v15, {S_T1}, v15
        v_lshrrev_b32 v16, 2, v{V_L16}
        v_lshrrev_b32 v17, 1, v{V_H}
        v_lshl_add_u32 v17, v17, 2, v16
        v_lshlrev_b32 v17, 7, v17
        v_and_b32 v18, 3, v{V_L16}
        v_lshl_add_u32 v17, v18, 3, v17
        s_lshl_b32 {S_T1}, {S_T0}, 15
        s_add_u32 {S_T1}, {S_T1}, {L_WO}
        v_add_u32 v17, {S_T1}, v17
        v_and_b32 v18, 2, v16
        v_and_b32 v19, 1, v{V_H}
        v_xor_b32 v18, v18, v19
        v_lshl_add_u32 v13, v18, 5, v17
        v_xor_b32 v18, 2, v18
        v_lshl_add_u32 v14, v18, 5, v17
        s_mul_i32 {S_T1}, {S_T0}, {64*272}
        s_and_b32 {S_T0}, {S_W}, 1
        s_lshl_b32 {S_T0}, {S_T0}, 7
        s_add_u32 {S_T1}, {S_T1}, {S_T0}
        s_add_u32 {S_T1}, {S_T1}, {L_O32}
        v_mul_u32_u24 v16, 272, v12
        v_lshrrev_b32 v17, 5, v{V_LANE}
        v_lshl_add_u32 v16, v17, 4, v16
        v_add_u32 v16, {S_T1}, v16
        v_mul_u32_u24 v17, 272, v1
        v_lshl_add_u32 v17, v3, 5, v17
        v_add_u32 v17, {L_O32}, v17
        v_mul_u32_u24 v18, 144, v1
        v_lshl_add_u32 v18, v3, 4, v18
        v_add_u32 v18, {L_OT}, v18
        """)
        a(f"""
        s_lshr_b32 {S_T0}, {S_W}, 1
        s_lshl_b32 {S_T0}, {S_T0}, 15
        s_add_u32 {S_T0}, {S_T0}, {L_WO}
        v_lshlrev_b32 v13, 4, v{V_LANE}
        v_add_u32 v13, {S_T0}, v13
        """)
        for i in range(16):
            for c in range(2):
                a(f"ds_read_b128 {v4(WOF + 8*i + 4*c)}, v13 offset:{i*2048 + c*1024}")

    def outp(self):
        a = self.a
        self.sub(0)
        KVL = 24
        issued = []
        def ld(txt, tag): a(txt); issued.append(tag)
        for p in range(8):
            ad = 4 if p < 4 else 5; off = (p & 3)*1024
            ld(f"buffer_load_dwordx4 {v4(KVL+4*p)}, v{ad}, {SRD_WS}, 0 offen offset:{off} sc1", 'kv')
        ld(f"buffer_load_dwordx4 v[56:59], v6, {SRD_WS}, 0 offen sc1", 'kv')
        ld(f"buffer_load_dwordx4 v[60:63], v6, {SRD_WS}, 0 offen offset:512 sc1", 'kv')
        def pqload(i):
            ld(f"buffer_load_dwordx4 a[{192+4*i}:{192+4*i+3}], v7, {SRD_WS}, {S_DS} offen sc1", f'pq{i}')
            a(f"s_add_u32 {S_DS}, {S_DS}, 1024")
        NUP = 4
        for i in range(NUP): pqload(i)
        def vm(tag):
            idx = max(i for i, t in enumerate(issued) if t == tag)
            return len(issued) - 1 - idx
        self.sub(1)
        a(f"s_waitcnt vmcnt({vm('kv')})")
        self.sub(2)
        for p in range(8):
            b = KVL + 4*p
            a(f"v_cvt_pk_bf16_f32 v{b}, v{b}, v{b+1}\nv_cvt_pk_bf16_f32 v{b+1}, v{b+2}, v{b+3}")
            a(f"ds_write_b64 v10, {pk(b)} offset:{p*544}")
        a("v_pk_add_f32 v[56:57], v[56:57], v[60:61]\nv_pk_add_f32 v[58:59], v[58:59], v[62:63]")
        for i in range(4):
            a(f"v_mov_b32 v{60+i}, v{56+i}\nv_permlane32_swap_b32 v{56+i}, v{60+i}\nv_add_f32 v{56+i}, v{56+i}, v{60+i}")
        a("v_cvt_pk_bf16_f32 v56, v56, v57\nv_cvt_pk_bf16_f32 v57, v58, v59")
        a(f"ds_write_b64 v11, v[56:57] offset:512")
        AKV = 15
        ACC = [72, 88]
        D1 = [32, 48]; KF = [20, 24, 28]; OF = [64, 68]
        XR = WOF
        for i in range(NUP, 10): pqload(i)
        a("s_waitcnt lgkmcnt(0)\ns_barrier")
        self.sub(3)
        def acc(c): return f"v[{ACC[c]}:{ACC[c]+15}]"
        def rdK(i): return [f"ds_read_b128 {v4(KF[i % 3])}, v{AKV} offset:{i*544}"]
        def m1(i): return f"v_mfma_f32_32x32x16_bf16 v[{D1[i&1]}:{D1[i&1]+15}], {v4(KF[i % 3])}, a[{192+4*i}:{192+4*i+3}], 0"
        def valu(i):
            d = D1[i & 1]; o = OF[i & 1]
            L = [f"v_add_f32 v{d+8}, {fx(1e-6)}, v{d+8}", f"v_rcp_f32 v{d+8}, v{d+8}"]
            L += [f"v_mul_f32 v{d+p}, v{d+p}, v{d+8}" for p in range(8)]
            L += [f"v_cvt_pk_bf16_f32 v{o+p}, v{d+2*p}, v{d+2*p+1}" for p in range(4)]
            return L
        def mo(i, c):
            b = WOF + 8*i + 4*c
            return f"v_mfma_f32_32x32x16_bf16 {acc(c)}, {v4(OF[i&1])}, {v4(b)}, {'0' if i == 0 else acc(c)}"
        self.emit(rdK(0) + rdK(1) + rdK(2))
        a(f"s_waitcnt vmcnt({vm('pq0')}) lgkmcnt(2)")
        a(m1(0))
        a(f"s_waitcnt vmcnt({vm('pq1')}) lgkmcnt(1)")
        a(m1(1))
        self.emit(valu(0))
        nxt = 10
        for i in range(16):
            V = valu(i+1) if i + 1 < 16 else []
            K_ = rdK(i+3) if i + 3 < 16 else []
            if i + 2 < 16: a(f"s_waitcnt vmcnt({vm(f'pq{i+2}')}) lgkmcnt(0)")
            a(mo(i, 0))
            self.emit(V[:2] + K_ + V[2:4])
            if i + 2 < 16: a(m1(i+2))
            self.emit(V[4:10])
            a(mo(i, 1))
            self.emit(V[10:])
            if nxt < 16:
                pqload(nxt); nxt += 1
            if i == 6:
                ld(f"buffer_load_dwordx4 {v4(XR)}, v9, {SRD_WS}, 0 offen sc1", 'x')
                ld(f"buffer_load_dwordx4 {v4(XR+4)}, v2, {SRD_WS}, 0 offen sc1", 'x')
        self.sub(4)
        for c in range(2):
            for aa in range(4):
                a(f"ds_write_b128 v16, {v4(ACC[c]+4*aa)} offset:{c*32*272 + 32*aa}")
        a("s_waitcnt lgkmcnt(0)\ns_barrier")
        Y = 32
        for i in range(2):
            for part in range(2):
                for hh in range(2):
                    a(f"ds_read_b128 {v4(Y+16*i+8*part+4*hh)}, v17 offset:{i*32*272 + part*64*272 + 16*hh}")
        a("s_waitcnt vmcnt(0)")
        self.sub(5)
        lf = a.label('FIN'); le = a.label('OE'); lx = a.label('OX')
        a(f"v_add_u32 v8, {S_XOUT}, v8\nv_add_u32 v9, 0x20000, v8")
        for i in range(2):
            a(f"s_waitcnt lgkmcnt({4*(1-i)})")
            y = Y + 16*i; x = XR + 4*i; t = 132 + 8*i
            for p in range(4): a(f"v_pk_add_f32 {pk(y+2*p)}, {pk(y+2*p)}, {pk(y+8+2*p)}")
            for p in range(4): a(f"v_cvt_pk_bf16_f32 v{y+8+p}, v{y+2*p}, v{y+2*p+1}")
            for p in range(4):
                a(f"v_lshlrev_b32 v{y+2*p}, 16, v{y+8+p}\nv_and_b32 v{y+2*p+1}, 0xffff0000, v{y+8+p}")
                a(f"v_lshlrev_b32 v{t+2*p}, 16, v{x+p}\nv_and_b32 v{t+2*p+1}, 0xffff0000, v{x+p}")
            for p in range(4): a(f"v_pk_add_f32 {pk(y+2*p)}, {pk(y+2*p)}, {pk(t+2*p)}")
            for p in range(4): a(f"v_cvt_pk_bf16_f32 v{160+4*i+p}, v{y+2*p}, v{y+2*p+1}")
            a(f"ds_write_b128 v18, {v4(160+4*i)} offset:{i*32*144}")
        a(f"""
        s_cmp_eq_u32 {S_LAYER}, 0
        s_cbranch_scc0 {lf}
        buffer_store_dwordx4 v[160:163], v8, {SRD_WS}, 0 offen sc1
        buffer_store_dwordx4 v[164:167], v9, {SRD_WS}, 0 offen sc1
        {lf}:
        v_lshrrev_b32 v10, 2, v{V_L16}
        v_lshl_add_u32 v10, v{V_H}, 3, v10
        v_mul_u32_u24 v10, 144, v10
        v_and_b32 v11, 3, v{V_L16}
        v_lshl_add_u32 v10, v11, 3, v10
        s_lshl_b32 {S_T0}, {S_W}, 5
        s_add_u32 {S_T0}, {S_T0}, {L_OT}
        v_add_u32 v10, {S_T0}, v10
        s_waitcnt lgkmcnt(0)
        s_barrier
        ds_read_b64_tr_b16 v[104:105], v10
        ds_read_b64_tr_b16 v[106:107], v10 offset:{4*144}
        ds_read_b64_tr_b16 v[108:109], v10 offset:{32*144}
        ds_read_b64_tr_b16 v[110:111], v10 offset:{36*144}
        s_cmp_eq_u32 {S_LAYER}, 0
        s_cbranch_scc0 {le}
        s_lshl_b32 {S_T0}, {S_RT}, 7
        s_lshl_b32 {S_T1}, {S_W}, 5
        s_add_u32 {S_T0}, {S_T0}, {S_T1}
        s_add_u32 {S_T0}, {S_T0}, {ST3}
        v_bfe_u32 v11, v{V_L16}, 1, 2
        v_lshlrev_b32 v11, 12, v11
        v_lshrrev_b32 v12, 3, v{V_L16}
        v_lshl_add_u32 v11, v12, 4, v11
        v_and_b32 v12, 1, v{V_L16}
        v_lshl_add_u32 v11, v12, 3, v11
        v_lshl_add_u32 v11, v{V_H}, 2, v11
        v_add_u32 v11, {S_T0}, v11
        v_mov_b32 v112, 0
        v_mov_b32 v113, 0
        v_mov_b32 v114, 0
        v_mov_b32 v115, 0
        s_waitcnt lgkmcnt(0)
        """)
        for j in range(4):
            a(f"v_dot2_f32_bf16 v112, v{104+j}, {S_ONES}, v112")
            a(f"v_dot2_f32_bf16 v113, v{104+j}, v{104+j}, v113")
            a(f"v_dot2_f32_bf16 v114, v{108+j}, {S_ONES}, v114")
            a(f"v_dot2_f32_bf16 v115, v{108+j}, v{108+j}, v115")
        a("v_pk_add_f32 v[112:113], v[112:113], v[114:115]")
        self.emit(zipmerge(self.reduce_h(112, 116), self.reduce_h(113, 117)))
        a(f"""
        v_cmp_eq_u32 vcc, 0, v{V_H}
        v_cndmask_b32 v112, v113, v112, vcc
        s_mov_b64 exec, 0xffffffff
        buffer_atomic_add_f32 v112, v11, {SRD_WS}, 0 offen
        s_mov_b64 exec, -1
        s_branch {lx}
        {le}:
        s_lshl_b32 {S_T0}, {S_RT}, 16
        s_lshl_b32 {S_T1}, {S_W}, 14
        s_add_u32 {S_T0}, {S_T0}, {S_T1}
        s_lshl_b32 {S_T1}, {S_CG}, 7
        s_add_u32 {S_T0}, {S_T0}, {S_T1}
        v_lshlrev_b32 v11, 10, v{V_L16}
        v_lshl_add_u32 v11, v{V_H}, 4, v11
        v_add_u32 v11, {S_T0}, v11
        s_waitcnt lgkmcnt(0)
        buffer_store_dwordx4 v[104:107], v11, {SRD_OUT}, 0 offen {OUTF}
        buffer_store_dwordx4 v[108:111], v11, {SRD_OUT}, 0 offen offset:64 {OUTF}
        {lx}:
        """)
        self.sub(6)
        self.subflush(2, 7)

    def build(self):
        a = self.a
        self.prologue()
        if self.ts: a(f"v_mov_b32 v{V_TS}, 0\nv_mov_b32 v{V_TS2}, 0")
        self.stamp()
        self.p0()
        stop = self.stop
        if stop == 'p0':
            self.wait(); a("s_branch L_END")
        a("L_LAYER:")
        for reg, (x0, x1) in ((S_XIN, (XT[0], XT[2])), (S_XOUT, (XT[1], XT[3])), (S_ST, (ST1, ST3)), (S_PQ, PQ), (S_KV, KVM), (S_Z, ZZ)):
            a(f"s_mul_i32 {reg}, {S_LAYER}, {(x1 - x0) & 0xffffffff:#x}")
            a(f"s_add_u32 {reg}, {reg}, {x0:#x}")
        self.conv_pre()
        self.wait(l0skip=True, sleep0=16, adr=int(os.environ.get('AR_C','1')), adr0=0, adb=int(os.environ.get('AB_C','1'))); self.stamp()
        self.conv(); self.stamp()
        self.arrive(); self.stamp()
        if stop == 'conv1':
            self.wait(); a("s_branch L_END")
        a(f"s_mov_b32 {S_XIN}, {S_XOUT}")
        self.wstage_kv()
        self.qkv_pre()
        self.wait(l0skip=True, sleep0=12, adr=int(os.environ.get('AR_Q','1')), adr0=int(os.environ.get('AR_Q0','3')), adb=int(os.environ.get('AB_Q','1'))); self.stamp()
        self.qkv(); self.stamp()
        self.arrive(); self.stamp()
        if stop == 'qkv1':
            self.wait(); a("s_branch L_END")
            if os.environ.get('DBGW'):
                a(f"""
                s_lshl_b32 {S_T0}, {S_ID}, 11
                s_add_u32 {S_T0}, {S_T0}, 0x40000
                v_lshlrev_b32 v1, 3, v0
                v_add_u32 v1, {S_T0}, v1
                v_mov_b32 v2, v{V_WSK}
                v_mov_b32 v3, v{V_WSV}
                buffer_store_dwordx2 v[2:3], v1, {SRD_WS}, 0 offen
                """)
            self.wait(); a("s_branch L_END")
        a(f"s_mov_b32 {S_XOUT}, {XT[2]}")
        self.outp_pre()
        self.wait(sleep0=22, adr=int(os.environ.get('AR_O','2')), adr0=int(os.environ.get('AR_O0','3')), adb=int(os.environ.get('AB_O','2'))); self.stamp()
        self.outp(); self.stamp()
        a(f"s_cmp_eq_u32 {S_LAYER}, 1\ns_cbranch_scc1 L_END")
        self.arrive(); self.stamp()
        if stop == 'out1':
            self.wait(); a("s_branch L_END")
        a(f"s_mov_b32 {S_LAYER}, 1\ns_branch L_LAYER\nL_END:")
        self.tsdump()
        a("L_EXIT:\ns_endpgm")
        body = a.finalize()
        hdr = open(os.path.join(os.path.dirname(os.path.abspath(__file__)), 'header.txt')).read()
        hdr = hdr.replace('@@LAUNCH@@', f'; @launch grid=(256,1,1) block=(256,1,1) lds={LDS_SIZE}')
        txt = hdr + f""".amdgcn_target "amdgcn-amd-amdhsa--gfx950"
.text
.globl {NAME}_kernel
.p2align 8
.type {NAME}_kernel,@function
{NAME}_kernel:
""" + body + f""".section .rodata,"a"
.p2align 6
.amdhsa_kernel {NAME}_kernel
  .amdhsa_next_free_vgpr 512
  .amdhsa_next_free_sgpr 102
  .amdhsa_accum_offset 256
  .amdhsa_group_segment_fixed_size 0
  .amdhsa_kernarg_size 104
  .amdhsa_user_sgpr_count 2
  .amdhsa_user_sgpr_kernarg_segment_ptr 1
  .amdhsa_system_sgpr_workgroup_id_x 1
.end_amdhsa_kernel
"""
        return txt

if __name__ == '__main__':
    import argparse
    ap = argparse.ArgumentParser()
    ap.add_argument('--stop', default=None)
    ap.add_argument('--ts', action='store_true')
    ap.add_argument('-o', default='k.s')
    args = ap.parse_args()
    g = Gen(stop=args.stop, ts=args.ts)
    t = g.build()
    open(args.o, 'w').write(t)
    print('instructions', g.a.count(), 'nops inserted', g.a.nnop, 'bytes', len(t))
```

```python
import sys, os, math
sys.path.insert(0, os.path.dirname(os.path.abspath(__file__)))
from asmgen import Asm

NAME = 'interleave_layers__ssm_conv_s4d__linear_attn_block__prompt'

CNT  = 0x0
ZR   = 0x30000
KVM  = [ZR, ZR + 32768]
ZZ   = [ZR + 65536, ZR + 98304]
ST3  = ZR + 131072
ZRSZ = 147456
ST1  = 0x1C000
GCNT = 0x20000
TS   = 0x80000
XT   = [0x100000, 0x300000, 0x500000, 0x700000]
PQ   = [0x900000, 0xB00000]
WQF  = 0xD00000
WOFG = 0xE80000
WS_SIZE = 0xF00000

L_WO = 0
L_KC = 65536
L_XL = 82432
L_MISC = L_XL + 65536
LDS_SIZE = 163840
L_U  = L_XL
L_Y  = L_XL + 18560
L_TA = L_XL
L_TB = L_XL + 9216
L_TW = L_XL + 46080
L_CT = L_XL + 18432
L_KD = L_XL + 28672
L_KVF = L_XL
L_O32 = L_XL + 17408
L_OT  = L_XL + 52224
L_S2R = L_MISC
L_S2M = L_MISC + 256
L_STG = L_MISC + 512

STPERM = True
INF = os.environ.get('INF', '')
TLBW = int(os.environ.get('TLBW', '0'))
TLBWARM = ('v_and_b32 v8, 15, v255' + chr(10) + '        v_lshlrev_b32 v8, 20, v8' + chr(10) + '        buffer_load_dword v197, v8, s[44:47], 0 offen') if TLBW == 1 else ''
TLBSH = 20
OUTWARM = ('v_and_b32 v8, 3, v255' + chr(10) + '        v_lshlrev_b32 v8, 19, v8' + chr(10) + '        buffer_load_dword v196, v8, s[56:59], 0 offen') if os.environ.get('OUTW','0') == '1' else ''
EARLYPF = ('v_lshlrev_b32 v198, 7, v0\n        global_load_dword v198, v198, s[66:67]' if os.environ.get('EARLY', '1') == '1' else '')
QSPLIT = int(os.environ.get('QSPLIT', '4'))
BMODE = os.environ.get('BMODE', 'adapt')
ADR = int(os.environ.get('ADR', '1'))
ADB = int(os.environ.get('ADB', '2'))
FLG = 0x24000
OUTF = os.environ.get('OUTF', '')
CODE_CHUNKS = int(os.environ.get('CODE_CHUNKS', '5'))
SLEEP = int(os.environ.get('SLEEP', '1' if os.environ.get('BMODE','adapt') == 'flag16' else '3'))
SLEEP0 = int(os.environ.get('SLEEP0', '14'))
SLEEPG = int(os.environ.get('SLEEPG', '6'))
LOG2E = 1.4426950408889634
def f2u(x):
    import struct
    return struct.unpack('<I', struct.pack('<f', x))[0]
def fx(x): return '0x%08x' % f2u(x)
def pk(r): return f"v[{r}:{r+1}]"
def v4(r): return f"v[{r}:{r+3}]"

S_ID='s2'; S_W='s3'; S_RT='s4'; S_CG='s5'; S_LAYER='s6'; S_TGT='s7'
SRD_WS='s[44:47]'; SRD_WQ='s[48:51]'; SRD_WO='s[52:55]'; SRD_OUT='s[56:59]'; SRD_X0='s[60:63]'
S_ONES='s64'
S_EXS='s[70:71]'
S_XIN='s72'; S_XOUT='s73'; S_ST='s74'; S_PQ='s75'; S_KV='s76'; S_Z='s77'
S_SPIN='s78'
S_T0='s8'; S_T1='s9'; S_T2='s10'; S_T3='s11'; S_T4='s12'; S_T5='s13'
S_DM='s14'; S_DS='s15'

V_LANE=255; V_WSK=254; V_WSV=252; V_WSQ=248
V_DSK1=246; V_DSK0=244
V_CNT=239; V_POLL=238; V_ONE=237
V_L16=243; V_H=242
V_TS=241; V_TS2=240
V_GCNT=235; V_POLL2=234; V_TGT=233
V_RANK=232
V_PT=236

WOF = 104
def weave(main, fill, per=2, lead=0):
    out = []; fi = 0
    for k, m in enumerate(main):
        out.append(m)
        if k >= lead:
            for _ in range(per):
                if fi < len(fill): out.append(fill[fi]); fi += 1
    out += fill[fi:]
    return out
def zipmerge(*lists):
    out = []
    n = max(len(l) for l in lists)
    for i in range(n):
        for l in lists:
            if i < len(l): out.append(l[i])
    return out
import re as _re
def unpk(ins):
    m = _re.match(r'v_pk_(mul|add|fma)_f32 v\[(\d+):\d+\], (.*)', ins)
    if not m: return [ins]
    op, d, rest = m.group(1), int(m.group(2)), m.group(3)
    srcs = [int(x) for x in _re.findall(r'v\[(\d+):\d+\]', rest)]
    n = len(srcs)
    hi = [1]*n
    mm = _re.search(r'op_sel_hi:\[([\d,]+)\]', rest)
    if mm: hi = [int(x) for x in mm.group(1).split(',')]
    assert 'op_sel:[' not in rest
    neg = [0]*n
    mm = _re.search(r'neg_lo:\[([\d,]+)\]', rest)
    if mm: neg = [int(x) for x in mm.group(1).split(',')]
    out = []
    for h in range(2):
        ops = []
        for i in range(n):
            r = srcs[i] + (h if hi[i] else 0)
            ops.append(('-' if neg[i] else '') + f'v{r}')
        out.append(f"v_{op}_f32 v{d+h}, " + ', '.join(ops))
    return out
def unpk_all(L):
    o = []
    for x in L: o += unpk(x)
    return o
def lines(s): return [t.strip() for t in s.split('\n') if t.strip()]

class Gen:
    def __init__(self, stop=None, ts=False):
        self.a = Asm(); self.stop = stop; self.ts = ts; self.tsn = 0
    def emit(self, lst):
        for x in lst: self.a(x)

    def stamp(self):
        if not self.ts: return
        n = self.tsn; self.tsn += 1
        self.a(f"""
        s_memrealtime s[80:81]
        s_lshl_b32 s82, {S_LAYER}, 5
        s_add_u32 m0, s82, {n}
        s_waitcnt lgkmcnt(0)
        v_writelane_b32 v{V_TS}, s80, m0
        """)
    def sub(self, i):
        if self.ts: self.a(f"s_memtime s[{86+2*i}:{87+2*i}]")
    def subflush(self, phase, n):
        if not self.ts: return
        a = self.a
        a(f"s_waitcnt lgkmcnt(0)\ns_lshl_b32 s82, {S_LAYER}, 5\ns_add_u32 m0, s82, {phase*8}")
        for i in range(n):
            a(f"v_writelane_b32 v{V_TS2}, s{86+2*i}, m0\ns_add_u32 m0, m0, 1\ns_nop 3")
    def tsdump(self):
        if not self.ts: return
        a = self.a; l = a.label('TD')
        if os.environ.get('DBGTS'):
            sel = [1,2,3,4,5,7,8,10,11,12, 32+4,32+5,32+7,32+8,32+10]
            a(f"""
            s_cmp_eq_u32 {S_ID}, 0
            s_cbranch_scc0 {l}
            s_cmp_eq_u32 {S_W}, 0
            s_cbranch_scc0 {l}
            v_readlane_b32 s80, v{V_TS}, 0
            """)
            for i, k in enumerate(sel):
                lane = k
                a(f"v_readlane_b32 s81, v{V_TS}, {lane}\ns_nop 3\ns_sub_u32 s81, s81, s80\nv_mov_b32 v1, s81\nv_mov_b32 v2, {4*(i+1)}\ns_mov_b64 exec, 1\nglobal_store_dword v2, v1, s[38:39]\ns_mov_b64 exec, -1")
            a(f"{l}:")
            return
        a(f"""
        s_cmp_eq_u32 {S_W}, 0
        s_cbranch_scc0 {l}
        s_lshl_b32 s82, {S_ID}, 9
        s_add_u32 s82, s82, {TS}
        v_lshlrev_b32 v1, 2, v{V_LANE}
        v_add_u32 v1, s82, v1
        buffer_store_dword v{V_TS}, v1, {SRD_WS}, 0 offen
        buffer_store_dword v{V_TS2}, v1, {SRD_WS}, 0 offen offset:256
        {l}:
        """)

    def arrive_core(self, finish=True):
        a = self.a
        if BMODE == 'flat':
            a(f"buffer_atomic_add v{V_ONE}, v{V_CNT}, {SRD_WS}, 0 offen sc1")
            return
        a(f"""
        v_mov_b32 v{V_RANK}, 1
        buffer_atomic_add v{V_RANK}, v{V_CNT}, {SRD_WS}, 0 offen sc0 sc1
        """)
        if finish: self.arrive_finish()
    def arrive_finish(self):
        a = self.a
        if BMODE == 'flag16':
            l = a.label('NL')
            a(f"""
            s_sub_u32 {S_T0}, {S_TGT}, 1
            s_waitcnt vmcnt(0)
            v_cmp_eq_u32 vcc, {S_T0}, v{V_RANK}
            s_cbranch_vccz {l}
            v_mov_b32 v{V_RANK}, {S_TGT}
            v_add_u32 v{V_PT}, {FLG - CNT}, v{V_CNT}
            buffer_store_dword v{V_RANK}, v{V_PT}, {SRD_WS}, 0 offen sc1
            {l}:
            """)
    def arrive(self):
        a = self.a; l = a.label('ARR')
        a(f"""
        s_waitcnt vmcnt(0) lgkmcnt(0)
        s_barrier
        s_add_u32 {S_TGT}, {S_TGT}, 16
        s_cmp_eq_u32 {S_W}, 0
        s_cbranch_scc0 {l}
        s_mov_b64 exec, 1
        """)
        self.arrive_core()
        a(f"""
        s_mov_b64 exec, -1
        {l}:
        """)
    def arrive_group(self):
        a = self.a; l = a.label('ARG')
        a(f"""
        s_waitcnt vmcnt(0) lgkmcnt(0)
        s_barrier
        s_cmp_eq_u32 {S_W}, 0
        s_cbranch_scc0 {l}
        s_mov_b64 exec, 1
        buffer_atomic_add v{V_ONE}, v{V_GCNT}, {SRD_WS}, 0 offen sc1
        s_mov_b64 exec, -1
        {l}:
        """)
    def wait_dual(self):
        a = self.a
        l = a.label('WT'); lp = a.label('POLL'); ld = a.label('PD')
        a(f"""
        s_cmp_eq_u32 {S_W}, 0
        s_cbranch_scc0 {l}
        s_add_u32 {S_T0}, {S_LAYER}, 1
        s_lshl_b32 {S_T0}, {S_T0}, 3
        v_mov_b32 v{V_TGT}, {S_TGT}
        v_mov_b32 v{V_PT}, {S_T0}
        v_cmp_eq_u32 vcc, 16, v{V_LANE}
        v_cndmask_b32 v{V_TGT}, v{V_TGT}, v{V_PT}, vcc
        s_mov_b64 exec, 0x1ffff
        s_mov_b32 {S_SPIN}, 0
        {('s_sleep ' + str(SLEEPG)) if SLEEPG else ''}
        {lp}:
        buffer_load_dword v{V_PT}, v{V_POLL2}, {SRD_WS}, 0 offen sc1
        s_add_u32 {S_SPIN}, {S_SPIN}, 1
        s_waitcnt vmcnt(0)
        v_cmp_gt_u32 vcc, v{V_TGT}, v{V_PT}
        s_cbranch_vccz {ld}
        {('s_sleep ' + str(SLEEP)) if SLEEP else ''}
        s_cmp_lt_u32 {S_SPIN}, 0x200000
        s_cbranch_scc1 {lp}
        {ld}:
        s_mov_b64 exec, -1
        {l}:
        s_barrier
        """)
    def wait(self, l0skip=False, sleep0=None, adr=None, adb=None, adr0=None):
        a = self.a
        l = a.label('WT'); lp = a.label('POLL'); ld = a.label('PD'); ls = a.label('NS')
        SLEEP0 = sleep0 if sleep0 is not None else globals()['SLEEP0']
        if BMODE == 'flat':
            pre = ((f's_cmp_eq_u32 {S_LAYER}, 0' + chr(10) + f's_cbranch_scc1 {lp}' + chr(10)) if l0skip else '') + (f's_sleep {SLEEP0}' if SLEEP0 else '')
        elif BMODE == 'flag16':
            pre = ''
        else:
            la = a.label('AD'); lb = a.label('AD')
            ADR = adr if adr is not None else globals()['ADR']; ADB = adb if adb is not None else globals()['ADB']
            adr0 = adr0 if adr0 is not None else ADR
            pre = f'''s_cmp_eq_u32 {S_LAYER}, 0
            s_cselect_b32 {S_T1}, {adr0}, {ADR}
            s_waitcnt vmcnt(0)
            v_readfirstlane_b32 {S_T0}, v{V_RANK}
            s_and_b32 {S_T0}, {S_T0}, 15
            s_sub_u32 {S_T0}, 15, {S_T0}
            s_mul_i32 {S_T0}, {S_T0}, {S_T1}
            s_add_u32 {S_T0}, {S_T0}, {ADB}
            {la}:
            s_sleep 1
            s_sub_u32 {S_T0}, {S_T0}, 1
            s_cmp_gt_i32 {S_T0}, 0
            s_cbranch_scc1 {la}'''
        a(f"""
        s_cmp_eq_u32 {S_W}, 0
        s_cbranch_scc0 {l}
        s_mov_b64 exec, 0xffff
        s_mov_b32 {S_SPIN}, 0
        {pre}
        {lp}:
        buffer_load_dword v{V_PT}, v{V_POLL}, {SRD_WS}, 0 offen {('offset:0' if BMODE != 'flag16' else '')} sc1
        s_add_u32 {S_SPIN}, {S_SPIN}, 1
        s_waitcnt vmcnt(0)
        v_cmp_gt_u32 vcc, {S_TGT}, v{V_PT}
        s_cbranch_vccz {ld}
        {('s_sleep ' + str(SLEEP)) if SLEEP else ''}
        s_cmp_lt_u32 {S_SPIN}, 0x200000
        s_cbranch_scc1 {lp}
        {ld}:
        s_mov_b64 exec, -1
        {l}:
        s_barrier
        """)

    def reduce_h(self, r, t):
        return lines(f"""
        v_mov_b32 v{t}, v{r}
        v_permlane16_swap_b32 v{r}, v{t}
        v_add_f32 v{r}, v{r}, v{t}
        v_mov_b32 v{t}, v{r}
        v_permlane32_swap_b32 v{r}, v{t}
        v_add_f32 v{r}, v{r}, v{t}
        """)
    def reduce16(self, r):
        return lines(f"""
        v_add_f32_dpp v{r}, v{r}, v{r} quad_perm:[1,0,3,2] row_mask:0xf bank_mask:0xf
        v_add_f32_dpp v{r}, v{r}, v{r} quad_perm:[2,3,0,1] row_mask:0xf bank_mask:0xf
        v_add_f32_dpp v{r}, v{r}, v{r} row_half_mirror row_mask:0xf bank_mask:0xf
        v_add_f32_dpp v{r}, v{r}, v{r} row_mirror row_mask:0xf bank_mask:0xf
        """)
    def ln_final1(self, sm, sq, r_out, mr_out, t):
        return lines(f"""
        v_mul_f32 v{t}, {fx(1/512)}, v{sm}
        v_mul_f32 v{t+1}, {fx(1/512)}, v{sq}
        v_fma_f32 v{t+1}, -v{t}, v{t}, v{t+1}
        v_cvt_pk_bf16_f32 v{t+2}, v{t}, v{t+1}
        v_lshlrev_b32 v{t}, 16, v{t+2}
        v_and_b32 v{t+1}, 0xffff0000, v{t+2}
        v_add_f32 v{t+1}, {fx(1e-5)}, v{t+1}
        v_cvt_pk_bf16_f32 v{t+1}, v{t+1}, v{t+1}
        v_and_b32 v{t+1}, 0xffff0000, v{t+1}
        v_sqrt_f32 v{t+1}, v{t+1}
        v_cvt_pk_bf16_f32 v{t+1}, v{t+1}, v{t+1}
        v_and_b32 v{t+1}, 0xffff0000, v{t+1}
        v_rcp_f32 v{r_out}, v{t+1}
        v_mul_f32 v{mr_out}, v{t}, v{r_out}
        """)

    def prologue(self):
        a = self.a
        a(f"""
        s_cmp_ge_u32 {S_ID}, 256
        s_cbranch_scc1 L_EXIT
        s_getpc_b64 s[66:67]
        s_load_dwordx16 s[16:31], s[0:1], 0
        s_load_dwordx8 s[32:39], s[0:1], 64
        s_load_dwordx2 s[40:41], s[0:1], 96
        {EARLYPF}
        v_and_b32 v{V_LANE}, 63, v0
        v_lshrrev_b32 v1, 6, v0
        v_and_b32 v{V_L16}, 15, v0
        v_bfe_u32 v{V_H}, v0, 4, 2
        v_readfirstlane_b32 {S_W}, v1
        s_and_b32 {S_T0}, {S_ID}, 7
        s_lshl_b32 {S_T0}, {S_T0}, 2
        s_lshr_b32 {S_T1}, {S_ID}, 6
        s_add_u32 {S_RT}, {S_T0}, {S_T1}
        s_lshr_b32 {S_CG}, {S_ID}, 3
        s_and_b32 {S_CG}, {S_CG}, 7
        s_mov_b32 {S_LAYER}, 0
        s_mov_b32 {S_TGT}, 0
        s_mov_b32 {S_ONES}, 0x3f803f80
        v_mov_b32 v{V_ONE}, 1
        s_and_b32 {S_T0}, {S_ID}, 15
        s_lshl_b32 {S_T0}, {S_T0}, 10
        v_mov_b32 v{V_CNT}, {S_T0}
        v_lshlrev_b32 v{V_POLL}, 10, v{V_LANE}
        v_add_u32 v{V_POLL}, {FLG if BMODE == 'flag16' else CNT}, v{V_POLL}
        s_waitcnt lgkmcnt(0)
        s_mov_b32 s60, s16
        s_and_b32 s61, s17, 0xffff
        s_mov_b32 s62, {2048*512*2}
        s_mov_b32 s63, 0x20000
        """)
    def prologue2(self):
        a = self.a
        a(f"""
        s_mov_b32 s44, s40
        s_and_b32 s45, s41, 0xffff
        s_mov_b32 s46, {WS_SIZE}
        s_mov_b32 s47, 0x20000
        s_mov_b32 s48, s32
        s_and_b32 s49, s33, 0xffff
        s_mov_b32 s50, {512*1536*2}
        s_mov_b32 s51, 0x20000
        s_mov_b32 s52, s34
        s_and_b32 s53, s35, 0xffff
        s_mov_b32 s54, {512*512*2}
        s_mov_b32 s55, 0x20000
        s_mov_b32 s56, s36
        s_and_b32 s57, s37, 0xffff
        s_mov_b32 s58, {2048*512*2}
        s_mov_b32 s59, 0x20000
        s_lshl_b32 {S_T0}, {S_RT}, 10
        s_add_u32 {S_T0}, {S_T0}, {GCNT}
        v_mov_b32 v{V_GCNT}, {S_T0}
        v_cmp_eq_u32 vcc, 16, v{V_LANE}
        v_cndmask_b32 v{V_POLL2}, v{V_POLL}, v{V_GCNT}, vcc
        """)

    def dma_weight(self, srd, rowpitch, colbyte, lds_base, swz, t, defer=False):
        a = self.a
        a(f"""
        v_lshrrev_b32 v{t}, 3, v{V_LANE}
        v_mul_u32_u24 v{t}, {rowpitch}, v{t}
        v_bfe_u32 v{t+1}, v{V_LANE}, 1, 2
        v_bfe_u32 v{t+2}, v{V_LANE}, 4, 1
        """)
        if swz == 'x':
            a(f"s_and_b32 {S_T0}, {S_W}, 1\ns_lshl_b32 {S_T0}, {S_T0}, 1\nv_or_b32 v{t+2}, {S_T0}, v{t+2}")
        else:
            a(f"v_lshlrev_b32 v{t+2}, 1, v{t+2}")
        a(f"""
        v_xor_b32 v{t+1}, v{t+1}, v{t+2}
        v_lshl_add_u32 v{t}, v{t+1}, 5, v{t}
        v_and_b32 v{t+1}, 1, v{V_LANE}
        v_lshl_add_u32 v{t}, v{t+1}, 4, v{t}
        s_lshl_b32 {S_T0}, {S_CG}, 7
        s_add_u32 {S_T0}, {S_T0}, {colbyte}
        v_add_u32 v{t}, {S_T0}, v{t}
        s_mul_i32 {S_DS}, {S_W}, {8*rowpitch}
        s_lshl_b32 {S_DM}, {S_W}, 10
        s_add_u32 {S_DM}, {S_DM}, {lds_base}
        """)
        groups = [lines(f"""
            s_mov_b32 m0, {S_DM}
            s_add_u32 {S_DM}, {S_DM}, 4096
            buffer_load_dwordx4 v{t}, {srd}, {S_DS} offen lds
            s_add_u32 {S_DS}, {S_DS}, {32*rowpitch}
            """) for i in range(16)]
        if defer: return groups
        for g in groups: self.emit(g)

    def wread_lists(self, lds_base, abase, part, t, o):
        rd = lines(f"""
        v_lshrrev_b32 v{t}, 2, v{V_L16}
        v_lshl_add_u32 v{t+1}, v{V_H}, 3, v{t}
        v_lshlrev_b32 v{t+1}, 7, v{t+1}
        v_and_b32 v{t+2}, 3, v{V_L16}
        v_lshl_add_u32 v{t+1}, v{t+2}, 3, v{t+1}
        v_add_u32 v{t+1}, {lds_base}, v{t+1}
        v_lshrrev_b32 v{t}, 1, v{t}
        v_and_b32 v{t+2}, 1, v{V_H}
        v_lshl_or_b32 v{t}, v{t+2}, 1, v{t}
        v_xor_b32 v{t}, {S_W}, v{t}
        v_lshl_add_u32 v{t+3}, v{t}, 5, v{t+1}
        """)
        for i in range(4): rd.append(f"v_mov_b32 v{o+i}, {S_ONES}")
        for ks in range(16):
            rd.append(f"ds_read_b64_tr_b16 a[{abase+4*ks}:{abase+4*ks+1}], v{t+3} offset:{ks*4096}")
            rd.append(f"ds_read_b64_tr_b16 a[{abase+4*ks+2}:{abase+4*ks+3}], v{t+3} offset:{ks*4096+512}")
        mf = []
        for ks in range(16):
            c = '0' if ks == 0 else v4(o+4)
            w = f"a[{abase+4*ks}:{abase+4*ks+3}]"
            if part == 0: mf.append(f"v_mfma_f32_16x16x32_bf16 {v4(o+4)}, {w}, {v4(o)}, {c}")
            else: mf.append(f"v_mfma_f32_16x16x32_bf16 {v4(o+4)}, {v4(o)}, {w}, {c}")
        if part == 0: mf += [f"v_mov_b32 v{V_WSQ+i}, v{o+4+i}" for i in range(4)]
        elif part == 1: mf.append(f"v_mov_b32 v{V_WSK}, v{o+4}")
        else: mf.append(f"v_mov_b32 v{V_WSV}, v{o+4}")
        return rd, mf

    def p0(self):
        a = self.a
        a(f"""
        v_lshrrev_b32 v1, 3, v0
        s_lshl_b32 {S_T0}, {S_RT}, 16
        s_lshl_b32 {S_T1}, {S_CG}, 7
        s_add_u32 {S_T0}, {S_T0}, {S_T1}
        v_lshlrev_b32 v2, 10, v1
        v_and_b32 v3, 7, v0
        v_lshl_add_u32 v2, v3, 4, v2
        v_add_u32 v2, {S_T0}, v2
        buffer_load_dwordx4 v[10:13], v2, {SRD_X0}, 0 offen {INF}
        v_add_u32 v4, 0x8000, v2
        buffer_load_dwordx4 v[14:17], v4, {SRD_X0}, 0 offen {INF}
        s_and_b32 {S_T0}, {S_ID}, 63
        s_lshl_b32 {S_T0}, {S_T0}, 2
        s_add_u32 {S_T0}, {S_T0}, {S_W}
        s_lshl_b32 {S_T0}, {S_T0}, 3
        s_lshr_b32 {S_T1}, {S_ID}, 6
        s_lshl_b32 {S_T1}, {S_T1}, 1
        s_add_u32 {S_T0}, {S_T0}, {S_T1}
        s_lshl_b32 {S_T0}, {S_T0}, 10
        v_lshlrev_b32 v5, 4, v{V_LANE}
        v_add_u32 v5, {S_T0}, v5
        buffer_load_dwordx4 v[18:21], v5, {SRD_X0}, 0 offen {INF}
        buffer_load_dwordx4 v[22:25], v5, {SRD_X0}, 0 offen offset:1024 {INF}
        s_lshl_b32 {S_T0}, {S_ID}, 9
        v_lshlrev_b32 v6, 1, v0
        v_add_u32 v6, {S_T0}, v6
        global_load_ushort v26, v6, s[18:19] {INF}
        global_load_ushort v27, v6, s[20:21] {INF}
        global_load_ushort v28, v6, s[22:23] {INF}
        global_load_ushort v29, v6, s[24:25] {INF}
        v_lshrrev_b32 v7, 7, v0
        s_lshl_b32 {S_T0}, {S_ID}, 1
        v_add_lshl_u32 v7, v7, {S_T0}, 1
        global_load_ushort v30, v7, s[26:27] {INF}
        s_lshl_b32 {S_T0}, {S_ID}, 2
        v_mov_b32 v7, {S_T0}
        global_load_dword v{V_DSK0}, v7, s[28:29] {INF}
        """)
        self.prologue2()
        a(f"""
        {TLBWARM}
        {OUTWARM}
        """)
        lw = a.label('WT'); lw2 = a.label('WT')
        a(f"""
        s_and_b32 {S_T2}, {S_ID}, 7
        s_cmp_lt_u32 {S_ID}, 192
        s_cbranch_scc0 {lw}
        s_lshr_b32 {S_T3}, {S_ID}, 3
        s_mul_i32 {S_T0}, {S_T2}, {64*3072}
        s_lshl_b32 {S_T1}, {S_T3}, 7
        s_add_u32 {S_T0}, {S_T0}, {S_T1}
        v_mul_u32_u24 v8, 3072, v1
        v_lshl_add_u32 v8, v3, 4, v8
        v_add_u32 v8, {S_T0}, v8
        buffer_load_dwordx4 v[200:203], v8, {SRD_WQ}, 0 offen {INF}
        v_add_u32 v8, {32*3072}, v8
        buffer_load_dwordx4 v[204:207], v8, {SRD_WQ}, 0 offen {INF}
        s_branch {lw2}
        {lw}:
        s_sub_u32 {S_T3}, {S_ID}, 192
        s_lshr_b32 {S_T3}, {S_T3}, 3
        s_lshl_b32 {S_T0}, {S_T2}, 16
        s_lshl_b32 {S_T1}, {S_T3}, 7
        s_add_u32 {S_T0}, {S_T0}, {S_T1}
        v_lshlrev_b32 v8, 10, v1
        v_lshl_add_u32 v8, v3, 4, v8
        v_add_u32 v8, {S_T0}, v8
        buffer_load_dwordx4 v[200:203], v8, {SRD_WO}, 0 offen {INF}
        v_add_u32 v8, 0x8000, v8
        buffer_load_dwordx4 v[204:207], v8, {SRD_WO}, 0 offen {INF}
        {lw2}:
        """)
        l = a.label('CI')
        a(f"""
        s_cmp_lt_u32 {S_ID}, 16
        s_cbranch_scc0 {l}
        s_cmp_eq_u32 {S_W}, 0
        s_cbranch_scc0 {l}
        s_mov_b64 exec, 1
        v_mov_b32 v8, 0
        buffer_store_dword v8, v{V_CNT}, {SRD_WS}, 0 offen sc1
        v_add_u32 v9, {FLG - CNT}, v{V_CNT}
        buffer_store_dword v8, v9, {SRD_WS}, 0 offen sc1
        s_mov_b64 exec, -1
        {l}:
        """)
        IDX = 180
        a(f"v_lshlrev_b32 v31, 3, v0\nv_sub_u32 v31, 2047, v31\ns_mov_b32 {S_T5}, {L_KD}")
        chains = []
        for i in range(0, 10, 2):
            t = 32 + 4*(i//2)
            c = lines(f"""
            v_subrev_u32 v{t}, {i}, v31
            v_subrev_u32 v{t+1}, {i+1}, v31
            v_max_i32 v{t}, 0, v{t}
            v_max_i32 v{t+1}, 0, v{t+1}
            v_cvt_f32_i32 v{t}, v{t}
            v_cvt_f32_i32 v{t+1}, v{t+1}
            v_cvt_pk_bf16_f32 v{t+2}, v{t}, v{t+1}
            v_lshlrev_b32 v{t}, 16, v{t+2}
            v_and_b32 v{t+1}, 0xffff0000, v{t+2}
            v_cvt_u32_f32 v{t}, v{t}
            v_cvt_u32_f32 v{t+1}, v{t+1}
            v_lshrrev_b32 v{t+2}, 2, v{t}
            v_lshrrev_b32 v{t+3}, 2, v{t+1}
            v_add_u32 v{t+2}, 384, v{t+2}
            v_add_u32 v{t+3}, 384, v{t+3}
            v_min_u32 v{t}, v{t}, v{t+2}
            v_min_u32 v{t+1}, v{t+1}, v{t+3}
            v_lshrrev_b32 v{t+2}, 5, v{t}
            v_lshrrev_b32 v{t+3}, 5, v{t+1}
            v_add_u32 v{t}, v{t}, v{t+2}
            v_add_u32 v{t+1}, v{t+1}, v{t+3}
            v_lshl_add_u32 v{IDX+i}, v{t}, 2, {S_T5}
            """)
            if i + 1 < 9: c.append(f"v_lshl_add_u32 v{IDX+i+1}, v{t+1}, 2, {S_T5}")
            chains.append(c)
        self.emit(zipmerge(*chains))
        a(f"""
        v_mul_u32_u24 v8, 144, v1
        v_lshl_add_u32 v8, v3, 4, v8
        v_add_u32 v9, {L_TW}, v8
        v_add_u32 v8, {L_TA}, v8
        s_waitcnt vmcnt({10 + (1 if OUTWARM else 0) + (1 if TLBWARM else 0)})
        ds_write_b128 v8, v[10:13]
        ds_write_b128 v8, v[14:17] offset:{32*144}
        s_waitcnt vmcnt({8 + (1 if OUTWARM else 0) + (1 if TLBWARM else 0)})
        """)
        for r in range(32, 36): a(f"v_mov_b32 v{r}, 0")
        for j in range(4):
            for row in range(2):
                b = 18 + 4*row; sm = 32 + 2*row
                a(f"v_dot2_f32_bf16 v{sm}, v{b+j}, {S_ONES}, v{sm}\nv_dot2_f32_bf16 v{sm+1}, v{b+j}, v{b+j}, v{sm+1}")
        self.emit(zipmerge(*[self.reduce16(r) for r in range(32, 36)]))
        self.emit(zipmerge(*[self.reduce_h(r, 36 + (r-32)) for r in range(32, 36)]))
        a(f"""
        s_lshl_b32 {S_T0}, {S_W}, 4
        s_add_u32 {S_T0}, {S_T0}, {L_STG}
        v_mov_b32 v36, {S_T0}
        ds_write_b128 v36, v[32:35]
        s_waitcnt vmcnt(0)
        ds_write_b128 v9, v[200:203]
        ds_write_b128 v9, v[204:207] offset:{32*144}
        s_cmp_lt_u32 {S_ID}, 16
        s_cbranch_scc0 L_CI2
        s_cmp_eq_u32 {S_W}, 0
        s_cbranch_scc0 L_CI2
        s_mov_b64 exec, 1
        v_mov_b32 v37, 0
        global_atomic_add v37, v{V_ONE}, s[38:39] sc1
        s_mov_b64 exec, -1
        L_CI2:
        v_lshrrev_b32 v9, 2, v{V_L16}
        v_lshl_add_u32 v9, v{V_H}, 3, v9
        v_mul_u32_u24 v9, 144, v9
        v_and_b32 v2, 3, v{V_L16}
        v_lshl_add_u32 v9, v2, 3, v9
        s_lshl_b32 {S_T0}, {S_W}, 5
        s_add_u32 {S_T0}, {S_T0}, {L_TA}
        v_add_u32 v9, {S_T0}, v9
        s_lshl_b32 {S_T0}, {S_W}, 4
        v_add_u32 v2, {S_T0}, v{V_L16}
        v_mul_u32_u24 v2, 144, v2
        v_lshl_add_u32 v2, v{V_H}, 4, v2
        v_add_u32 v2, {L_TB}, v2
        s_waitcnt lgkmcnt(0)
        s_barrier
        ds_read_b64_tr_b16 v[10:11], v9
        ds_read_b64_tr_b16 v[12:13], v9 offset:{4*144}
        ds_read_b64_tr_b16 v[14:15], v9 offset:{32*144}
        ds_read_b64_tr_b16 v[16:17], v9 offset:{36*144}
        """)
        lz = a.label('WF'); lz2 = a.label('WF')
        a(f"""
        s_cmp_lt_u32 {S_ID}, 192
        s_cbranch_scc0 {lz}
        v_add_u32 v8, {L_TW - L_TA}, v9
        ds_read_b64_tr_b16 v[200:201], v8
        ds_read_b64_tr_b16 v[202:203], v8 offset:{4*144}
        ds_read_b64_tr_b16 v[204:205], v8 offset:{32*144}
        ds_read_b64_tr_b16 v[206:207], v8 offset:{36*144}
        s_lshr_b32 {S_T0}, {S_T3}, 3
        s_lshl_b32 {S_T0}, {S_T0}, 19
        s_and_b32 {S_T1}, {S_T3}, 7
        s_lshl_b32 {S_T1}, {S_T1}, 2
        s_add_u32 {S_T1}, {S_T1}, {S_W}
        s_lshl_b32 {S_T1}, {S_T1}, 14
        s_add_u32 {S_T0}, {S_T0}, {S_T1}
        s_lshl_b32 {S_T1}, {S_T2}, 11
        s_add_u32 {S_T0}, {S_T0}, {S_T1}
        s_add_u32 {S_T0}, {S_T0}, {WQF}
        s_branch {lz2}
        {lz}:
        v_lshrrev_b32 v8, 2, v{V_L16}
        v_lshrrev_b32 v7, 1, v{V_H}
        v_lshl_add_u32 v8, v7, 2, v8
        s_lshl_b32 {S_T0}, {S_W}, 4
        v_add_u32 v8, {S_T0}, v8
        v_mul_u32_u24 v8, 144, v8
        v_and_b32 v7, 1, v{V_H}
        v_lshl_add_u32 v8, v7, 5, v8
        v_and_b32 v7, 3, v{V_L16}
        v_lshl_add_u32 v8, v7, 3, v8
        v_add_u32 v8, {L_TW}, v8
        ds_read_b64_tr_b16 v[200:201], v8
        ds_read_b64_tr_b16 v[202:203], v8 offset:{8*144}
        ds_read_b64_tr_b16 v[204:205], v8 offset:64
        ds_read_b64_tr_b16 v[206:207], v8 offset:{8*144+64}
        s_lshl_b32 {S_T0}, {S_T3}, 16
        s_lshl_b32 {S_T1}, {S_T2}, 2
        s_add_u32 {S_T1}, {S_T1}, {S_W}
        s_lshl_b32 {S_T1}, {S_T1}, 11
        s_add_u32 {S_T0}, {S_T0}, {S_T1}
        s_add_u32 {S_T0}, {S_T0}, {WOFG}
        {lz2}:
        v_lshlrev_b32 v7, 4, v{V_LANE}
        v_add_u32 v7, {S_T0}, v7
        v_mul_u32_u24 v9, 144, v1
        v_lshl_add_u32 v9, v3, 4, v9
        v_add_u32 v9, {L_TB}, v9
        s_lshl_b32 {S_T0}, {S_CG}, 18
        s_lshl_b32 {S_T1}, {S_RT}, 7
        s_add_u32 {S_T0}, {S_T0}, {S_T1}
        s_add_u32 {S_T0}, {S_T0}, {XT[0]}
        v_lshlrev_b32 v4, 12, v1
        v_lshl_add_u32 v4, v3, 4, v4
        v_add_u32 v4, {S_T0}, v4
        v_add_u32 v5, 0x20000, v4
        s_waitcnt lgkmcnt(0)
        ds_write_b128 v2, v[10:13]
        ds_write_b128 v2, v[14:17] offset:64
        buffer_store_dwordx4 v[200:203], v7, {SRD_WS}, 0 offen sc1
        buffer_store_dwordx4 v[204:207], v7, {SRD_WS}, 0 offen offset:1024 sc1
        v_mov_b32 v6, 0
        s_waitcnt lgkmcnt(0)
        s_barrier
        ds_read_b128 v[10:13], v9
        ds_read_b128 v[14:17], v9 offset:{32*144}
        s_waitcnt lgkmcnt(0)
        buffer_store_dwordx4 v[10:13], v4, {SRD_WS}, 0 offen sc1
        buffer_store_dwordx4 v[14:17], v5, {SRD_WS}, 0 offen sc1
        global_load_dword v{V_PT}, v6, s[38:39] sc1
        """)
        l1 = a.label('Z1'); l2 = a.label('Z2')
        a(f"""
        s_cmp_eq_u32 {S_W}, 1
        s_cbranch_scc0 {l1}
        s_mov_b32 exec_lo, -1
        s_mov_b32 exec_hi, 0xf
        v_mov_b32 v10, 0
        v_mov_b32 v11, 0
        v_mov_b32 v12, 0
        v_mov_b32 v13, 0
        s_mul_i32 {S_T0}, {S_ID}, 576
        s_add_u32 {S_T0}, {S_T0}, {ZR}
        v_lshlrev_b32 v4, 4, v{V_LANE}
        v_add_u32 v4, {S_T0}, v4
        buffer_store_dwordx4 v[10:13], v4, {SRD_WS}, 0 offen sc1
        s_mov_b64 exec, -1
        {l1}:
        s_cmp_eq_u32 {S_W}, 2
        s_cbranch_scc0 {l2}
        s_mov_b64 exec, 0xf
        v_lshlrev_b32 v4, 4, v{V_LANE}
        v_add_u32 v5, {L_STG}, v4
        ds_read_b128 v[10:13], v5
        s_lshl_b32 {S_T0}, {S_ID}, 6
        s_add_u32 {S_T0}, {S_T0}, {ST1}
        v_add_u32 v4, {S_T0}, v4
        s_waitcnt lgkmcnt(0)
        buffer_store_dwordx4 v[10:13], v4, {SRD_WS}, 0 offen sc1
        s_mov_b64 exec, -1
        {l2}:
        """)
        self.stamp()
        self.kgen_consts()
        a("s_waitcnt lgkmcnt(0)\ns_barrier")
        self.sub(0)
        self.sub(1)
        self.kgen_main(IDX)
        self.sub(6)
        self.subflush(3, 7)
        self.stamp()

    def arrive_first(self):
        a = self.a
        la = a.label('ARR1'); lp = a.label('INITP'); ld = a.label('INITD')
        a(f"""
        s_waitcnt vmcnt(0)
        s_barrier
        s_add_u32 {S_TGT}, {S_TGT}, 16
        s_cmp_eq_u32 {S_W}, 0
        s_cbranch_scc0 {la}
        s_mov_b64 exec, 1
        s_mov_b32 {S_SPIN}, 0
        v_mov_b32 v6, 0
        {lp}:
        v_cmp_le_u32 vcc, 16, v{V_PT}
        s_cbranch_vccnz {ld}
        global_load_dword v{V_PT}, v6, s[38:39] sc1
        s_add_u32 {S_SPIN}, {S_SPIN}, 1
        s_waitcnt vmcnt(0)
        s_cmp_lt_u32 {S_SPIN}, 0x200000
        s_cbranch_scc1 {lp}
        {ld}:
        """)
        self.arrive_core(finish=False)
        a(f"""
        s_mov_b64 exec, -1
        {la}:
        """)

    def cexp(self, p, dr, di, t):
        return lines(f"""
        v_mul_f32 v{t}, {fx(p)}, v40
        v_mul_f32 v{t+1}, {fx(p)}, v41
        v_exp_f32 v{t}, v{t}
        v_fract_f32 v{t+1}, v{t+1}
        v_cos_f32 v{t+2}, v{t+1}
        v_sin_f32 v{t+1}, v{t+1}
        v_mul_f32 v{dr}, v{t}, v{t+2}
        v_mul_f32 v{di}, v{t}, v{t+1}
        """)

    def kgen_consts(self):
        a = self.a
        a(f"""
        v_and_b32 v{V_DSK1}, 0xffff0000, v{V_DSK0}
        v_lshlrev_b32 v{V_DSK0}, 16, v{V_DSK0}
        v_lshlrev_b32 v26, 16, v26
        v_lshlrev_b32 v30, 16, v30
        v_lshlrev_b32 v27, 16, v27
        v_lshlrev_b32 v28, 16, v28
        v_mul_f32 v30, {fx(LOG2E)}, v30
        v_mul_f32 v26, {fx(LOG2E)}, v26
        v_lshlrev_b32 v29, 16, v29
        v_exp_f32 v30, v30
        v_exp_f32 v26, v26
        v_cvt_pk_bf16_f32 v31, v30, v26
        v_lshlrev_b32 v30, 16, v31
        v_and_b32 v26, 0xffff0000, v31
        v_mul_f32 v40, v26, v30
        v_mul_f32 v41, v27, v30
        v_mul_f32 v42, v28, v30
        v_mul_f32 v43, v29, v30
        v_mul_f32 v40, {fx(-LOG2E)}, v40
        v_mul_f32 v41, {fx(1/(2*math.pi))}, v41
        v_add_f32 v42, v42, v42
        v_add_f32 v43, v43, v43
        v_rndne_f32 v31, v41
        v_sub_f32 v41, v41, v31
        """)
        ch = []
        for i, p in enumerate((256.0, 512.0, 1536.0)):
            t = 52 + 6*i; d = 44 + 2*i
            c = self.cexp(p, t+3, t+4, t)
            c += lines(f"""
            v_mul_f32 v{d}, v42, v{t+3}
            v_mul_f32 v{d+1}, v42, v{t+4}
            v_fma_f32 v{d}, -v43, v{t+4}, v{d}
            v_fma_f32 v{d+1}, v43, v{t+3}, v{d+1}
            """)
            ch.append(c)
        self.emit(zipmerge(*ch))
        a(f"""
        v_lshrrev_b32 v1, 7, v0
        v_mul_u32_u24 v1, 5120, v1
        v_and_b32 v2, 127, v0
        v_lshl_add_u32 v1, v2, 2, v1
        v_add_u32 v1, {L_CT}, v1
        """)
        for q in range(10): a(f"ds_write_b32 v1, v{40+q} offset:{q*512}")

    def kgen_main(self, IDX):
        a = self.a
        a(f"""
        s_lshr_b32 {S_T0}, {S_W}, 1
        s_mul_i32 {S_T0}, {S_T0}, 5120
        s_and_b32 {S_T1}, {S_W}, 1
        s_lshl_b32 {S_T1}, {S_T1}, 8
        s_add_u32 {S_T0}, {S_T0}, {S_T1}
        s_add_u32 {S_T0}, {S_T0}, {L_CT}
        v_lshlrev_b32 v1, 4, v{V_H}
        v_add_u32 v1, {S_T0}, v1
        v_cvt_f32_u32 v2, v{V_L16}
        v_mov_b32 v3, v2
        """)
        ACC = 160
        def kstep(B, off, first):
            Q = lambda q: B + 4*q
            FR, FI, T0, T1 = B+40, B+44, B+48, B+52
            A0, A1, F0F, F2F = B+56, B+60, B+64, B+68
            rd = [f"ds_read_b128 {v4(Q(q))}, v1 offset:{q*512 + off}" for q in range(10)]
            L = []
            for h in (0, 2):
                L.append(f"v_pk_mul_f32 {pk(T0+h)}, {pk(Q(0)+h)}, v[2:3]")
                L.append(f"v_pk_mul_f32 {pk(T1+h)}, {pk(Q(1)+h)}, v[2:3]")
            for i in range(4):
                L.append(f"v_exp_f32 v{T0+i}, v{T0+i}")
            for i in range(4):
                L.append(f"v_cos_f32 v{FR+i}, v{T1+i}")
                L.append(f"v_sin_f32 v{FI+i}, v{T1+i}")
            for h in (0, 2):
                L.append(f"v_pk_mul_f32 {pk(FR+h)}, {pk(FR+h)}, {pk(T0+h)}")
                L.append(f"v_pk_mul_f32 {pk(FI+h)}, {pk(FI+h)}, {pk(T0+h)}")
            def packF(dst):
                L.extend([f"v_cvt_pk_bf16_f32 v{dst}, v{FR}, v{FR+1}", f"v_cvt_pk_bf16_f32 v{dst+1}, v{FR+2}, v{FR+3}",
                          f"v_cvt_pk_bf16_f32 v{dst+2}, v{FI}, v{FI+1}", f"v_cvt_pk_bf16_f32 v{dst+3}, v{FI+2}, v{FI+3}"])
            def sq():
                for h in (0, 2):
                    L.append(f"v_pk_mul_f32 {pk(T0+h)}, {pk(FI+h)}, {pk(FI+h)}")
                    L.append(f"v_pk_mul_f32 {pk(T1+h)}, {pk(FR+h)}, {pk(FI+h)}")
                for h in (0, 2):
                    L.append(f"v_pk_fma_f32 {pk(FR+h)}, {pk(FR+h)}, {pk(FR+h)}, {pk(T0+h)} neg_lo:[0,0,1] neg_hi:[0,0,1]")
                    L.append(f"v_pk_add_f32 {pk(FI+h)}, {pk(T1+h)}, {pk(T1+h)}")
            def gmul(q, dst):
                cr, ci = Q(q), Q(q+1)
                for h in (0, 2):
                    L.append(f"v_pk_mul_f32 {pk(T0+h)}, {pk(ci+h)}, {pk(FI+h)}")
                    L.append(f"v_pk_mul_f32 {pk(T1+h)}, {pk(ci+h)}, {pk(FR+h)}")
                for h in (0, 2):
                    L.append(f"v_pk_fma_f32 {pk(T0+h)}, {pk(cr+h)}, {pk(FR+h)}, {pk(T0+h)} neg_lo:[0,0,1] neg_hi:[0,0,1]")
                    L.append(f"v_pk_fma_f32 {pk(T1+h)}, {pk(cr+h)}, {pk(FI+h)}, {pk(T1+h)} neg_lo:[1,0,1] neg_hi:[1,0,1]")
                L.extend([f"v_cvt_pk_bf16_f32 v{dst}, v{T0}, v{T0+1}", f"v_cvt_pk_bf16_f32 v{dst+1}, v{T0+2}, v{T0+3}",
                          f"v_cvt_pk_bf16_f32 v{dst+2}, v{T1}, v{T1+1}", f"v_cvt_pk_bf16_f32 v{dst+3}, v{T1+2}, v{T1+3}"])
            def mm(T, A, F):
                c = '0' if first else v4(ACC+4*T)
                L.append(f"v_mfma_f32_16x16x32_bf16 {v4(ACC+4*T)}, {v4(A)}, {v4(F)}, {c}")
            packF(F0F); sq(); sq(); packF(F2F); sq(); sq()
            gmul(2, A0); mm(0, A0, F0F); gmul(4, A1); mm(1, A1, F0F)
            sq(); sq()
            gmul(6, A0); mm(2, A0, F2F); gmul(8, A1); mm(3, A1, F2F)
            return rd, L
        BA, BB = 8, 84
        def sprinkle(L, groups):
            step = max(1, len(L) // (len(groups) + 1)); out = []
            for i, x in enumerate(L):
                out.append(x)
                if groups and (i + 1) % step == 0: out += groups.pop(0)
            for g in groups: out += g
            return out
        for i in range(16): a(f"v_mov_b32 v{ACC+i}, 0")
        lk = a.label('KG'); lk2 = a.label('KG')
        a(f"s_mov_b32 {S_T4}, 0\n{lk}:")
        rdA, LA = kstep(BA, 0, False)
        rdB, LB = kstep(BB, 64, False)
        self.emit(rdA[:2] + rdB[:2] + rdA[2:] + rdB[2:])
        a("s_waitcnt lgkmcnt(15)")
        n_pre = 4+4+8+4 + 4+16+4+16
        self.emit(zipmerge(LA[:n_pre], LB[:n_pre]))
        a("s_waitcnt lgkmcnt(0)")
        self.emit(zipmerge(LA[n_pre:], LB[n_pre:]))
        a(f"v_add_u32 v1, 128, v1\ns_cmp_eq_u32 {S_T4}, 0\ns_cbranch_scc0 {lk2}")
        self.arrive_first()
        self.stamp()
        a(f"s_mov_b32 {S_T4}, 1\ns_branch {lk}\n{lk2}:\ns_nop 7")
        lf = a.label('AF')
        a(f"s_cmp_eq_u32 {S_W}, 0\ns_cbranch_scc0 {lf}\ns_mov_b64 exec, 1")
        self.arrive_finish()
        a(f"s_mov_b64 exec, -1\n{lf}:")
        self.sub(2)
        a(f"""
        s_lshr_b32 {S_T0}, {S_W}, 1
        s_mul_i32 {S_T0}, {S_T0}, 4224
        s_and_b32 {S_T1}, {S_W}, 1
        s_mul_i32 {S_T1}, {S_T1}, 8448
        s_add_u32 {S_T0}, {S_T0}, {S_T1}
        s_add_u32 {S_T0}, {S_T0}, {L_KD}
        v_mul_u32_u24 v1, 264, v{V_H}
        v_lshl_add_u32 v1, v{V_L16}, 2, v1
        v_add_u32 v1, {S_T0}, v1
        """)
        for T in range(4):
            for r in range(4):
                a(f"ds_write_b32 v1, v{ACC+4*T+r} offset:{1056*T+64*r+4*(r>>1)}")
        a("s_waitcnt vmcnt(0) lgkmcnt(0)\ns_barrier")
        self.sub(3)
        VAL = 8
        for part in range(2):
            for ch in range(2):
                for i in range(9):
                    a(f"ds_read_b32 v{VAL+18*part+9*ch+i}, v{IDX+i} offset:{8448*part + 4224*ch}")
        a(f"""
        v_cmp_ne_u32 vcc, 255, v0
        v_lshlrev_b32 v1, 4, v0
        v_add_u32 v1, {L_KC + 8}, v1
        s_waitcnt lgkmcnt(0)
        """)
        for i in range(18): a(f"v_add_f32 v{VAL+i}, v{VAL+i}, v{VAL+18+i}")
        a(f"v_cndmask_b32 v{VAL+8}, 0, v{VAL+8}, vcc\nv_cndmask_b32 v{VAL+17}, 0, v{VAL+17}, vcc")
        self.sub(4)
        for ch in range(2):
            for m0 in range(2):
                o = 80 + 4*(2*ch+m0)
                s0 = VAL + 9*ch + (1 - m0)
                for p in range(4): a(f"v_cvt_pk_bf16_f32 v{o+p}, v{s0+2*p}, v{s0+2*p+1}")
                a(f"ds_write_b64 v1, {pk(o)} offset:{ch*8448+m0*4224}")
                a(f"ds_write_b64 v1, {pk(o+2)} offset:{ch*8448+m0*4224+8}")
        a(f"""
        v_cmp_gt_u32 vcc, 14, v{V_L16}
        v_mul_u32_u24 v1, 4224, v{V_H}
        v_lshl_add_u32 v1, v{V_L16}, 2, v1
        v_add_u32 v1, {L_KC + 4104}, v1
        v_mov_b32 v2, 0
        s_cmp_eq_u32 {S_W}, 0
        s_cselect_b64 {S_EXS}, vcc, 0
        s_mov_b64 exec, {S_EXS}
        ds_write_b32 v1, v2
        s_mov_b64 exec, -1
        s_waitcnt lgkmcnt(0)
        """)
        self.sub(5)
        a("s_barrier")

    def wfrag_loads(self):
        setup = lines(f"""
        s_lshl_b32 {S_T0}, {S_CG}, 2
        s_add_u32 {S_T0}, {S_T0}, {S_W}
        s_lshl_b32 {S_T0}, {S_T0}, 14
        s_add_u32 s79, {S_T0}, {WQF}
        s_add_u32 {S_DS}, s79, {1 << 19}
        v_lshlrev_b32 v18, 4, v{V_LANE}
        """)
        groups = []
        for p in (1, 2):
            for ks in range(16):
                g = [f"buffer_load_dwordx4 a[{64*p+4*ks}:{64*p+4*ks+3}], v18, {SRD_WS}, {S_DS} offen sc1"]
                g.append(f"s_add_u32 {S_DS}, {S_DS}, {1024 if ks < 15 else (1 << 19) - 15*1024}")
                groups.append(g)
        for ks in list(range(QSPLIT, 16)):
            groups.append([f"s_add_u32 {S_T5}, s79, {ks*1024}", f"buffer_load_dwordx4 a[{4*ks}:{4*ks+3}], v18, {SRD_WS}, {S_T5} offen sc1"])
        for ks in range(QSPLIT):
            groups.append([f"s_add_u32 {S_T5}, s79, {ks*1024}", f"buffer_load_dwordx4 a[{4*ks}:{4*ks+3}], v111, {SRD_WS}, {S_T5} offen sc1"])
        return setup, groups

    def wsum(self, o=16, parts=(1, 2)):
        a = self.a
        for i in range(4): a(f"v_mov_b32 v{o+i}, {S_ONES}")
        for ks in range(16):
            for p in parts:
                d = v4(o+4+4*p); c = '0' if ks == 0 else d
                w = f"a[{64*p+4*ks}:{64*p+4*ks+3}]"
                if p == 0: a(f"v_mfma_f32_16x16x32_bf16 {d}, {w}, {v4(o)}, {c}")
                else: a(f"v_mfma_f32_16x16x32_bf16 {d}, {v4(o)}, {w}, {c}")
        if 0 in parts:
            for i in range(4): a(f"v_mov_b32 v{V_WSQ+i}, v{o+4+i}")
        if 1 in parts: a(f"v_mov_b32 v{V_WSK}, v{o+8}")
        if 2 in parts: a(f"v_mov_b32 v{V_WSV}, v{o+12}")

    CV = dict(XA=10, ST=20, AX=3, AS=4, AU0=5, AU1=6, AK=8, AU=9, ACC=80, X32=200, U32=216)
    def conv_pre(self):
        a = self.a
        a(f"""
        s_lshl_b32 {S_T0}, {S_ID}, 13
        s_add_u32 {S_T0}, {S_T0}, {S_XIN}
        v_lshlrev_b32 v3, 4, v0
        v_add_u32 v3, {S_T0}, v3
        v_lshlrev_b32 v4, 4, v0
        v_add_u32 v4, {S_ST}, v4
        v_lshlrev_b32 v5, 4, v0
        v_add_u32 v5, {L_U + 512}, v5
        v_add_u32 v6, 9280, v5
        v_bfe_u32 v1, v0, 5, 2
        v_mul_u32_u24 v1, 4640, v1
        v_and_b32 v2, 31, v0
        v_lshl_add_u32 v1, v2, 4, v1
        v_add_u32 v1, {L_U}, v1
        v_mov_b32 v36, 0
        v_mov_b32 v37, 0
        v_mov_b32 v38, 0
        v_mov_b32 v39, 0
        v_and_b32 v2, 1, v0
        v_mul_u32_u24 v2, 9280, v2
        v_add_u32 v2, {L_U + 512}, v2
        ds_write_b32 v2, v36
        v_cmp_gt_u32 vcc, 128, v0
        s_and_saveexec_b64 {S_EXS}, vcc
        ds_write_b128 v1, v[36:39]
        s_mov_b64 exec, -1
        s_lshr_b32 {S_T0}, {S_W}, 1
        s_and_b32 {S_T1}, {S_W}, 1
        s_mul_i32 {S_T2}, {S_T0}, 8448
        s_lshl_b32 {S_T3}, {S_T1}, 8
        s_sub_u32 {S_T2}, {S_T2}, {S_T3}
        s_add_u32 {S_T2}, {S_T2}, {L_KC + 4096 - 192 - 3584}
        v_and_b32 v1, 1, v{V_L16}
        v_lshrrev_b32 v7, 1, v{V_L16}
        v_mul_u32_u24 v8, 4224, v1
        v_lshl_add_u32 v8, v{V_H}, 4, v8
        v_lshlrev_b32 v9, 3, v7
        v_sub_u32 v8, v8, v9
        v_add_u32 v8, {S_T2}, v8
        s_mul_i32 {S_T2}, {S_T0}, 9280
        s_sub_u32 {S_T2}, {S_T2}, {S_T3}
        s_add_u32 {S_T2}, {S_T2}, {L_U + 512 - 192}
        v_mul_u32_u24 v9, 4640, v1
        v_lshl_add_u32 v9, v7, 6, v9
        v_lshl_add_u32 v9, v{V_H}, 4, v9
        v_add_u32 v9, {S_T2}, v9
        s_lshl_b32 {S_T1}, {S_T1}, 1
        s_add_u32 {S_T0}, {S_T0}, {S_T1}
        s_mul_i32 {S_T0}, {S_T0}, 9216
        s_add_u32 {S_T0}, {S_T0}, {L_Y}
        v_mul_u32_u24 v2, 144, v7
        v_lshl_add_u32 v2, v{V_H}, 5, v2
        v_lshl_add_u32 v2, v1, 3, v2
        v_add_u32 v2, {S_T0}, v2
        v_lshrrev_b32 v7, 2, v0
        v_lshlrev_b32 v7, 4, v7
        v_lshl_add_u32 v7, v0, 5, v7
        v_add_u32 v7, {L_Y}, v7
        s_waitcnt lgkmcnt(0)
        """)
        for i in (0, 1, 3):
            for q in range(8):
                for hh in range(2):
                    b = {0: 112, 1: 192, 3: 224}[i] + 4*q + 2*hh
                    reg = f"{'v' if i == 0 else 'a'}[{b}:{b+1}]"
                    a(f"ds_read_b64 {reg}, v8 offset:{(3-i)*64 + (7-q)*512 + 8*hh}")

    def conv(self):
        a = self.a
        self.sub(0)
        XA, XB, ST = 10, 14, 20
        for j in range(4):
            a(f"s_mov_b32 {S_T0}, {4096*j}\nbuffer_load_dwordx4 {v4(ST+4*j)}, v4, {SRD_WS}, {S_T0} offen sc1")
        a(f"""
        buffer_load_dwordx4 {v4(XA)}, v3, {SRD_WS}, 0 offen sc1
        v_add_u32 v1, 4096, v3
        buffer_load_dwordx4 {v4(XB)}, v1, {SRD_WS}, 0 offen sc1
        s_mov_b32 s66, {fx(1/512)}
        s_mov_b32 s67, {fx(1e-5)}
        v_mov_b32 v36, s66
        v_mov_b32 v37, s66
        v_mov_b32 v38, s67
        v_mov_b32 v39, s67
        """)
        setup, self.wg = self.wfrag_loads()
        l1 = a.label('CW'); l2 = a.label('CW')
        a(f"s_cmp_eq_u32 {S_LAYER}, 0\ns_cselect_b64 vcc, -1, 0\ns_cbranch_scc0 {l1}")
        self.emit(setup)
        for g in self.wg[:8]: self.emit(g)
        a(f"s_waitcnt vmcnt(10)\ns_branch {l2}\n{l1}:\ns_waitcnt vmcnt(2)\n{l2}:")
        self.sub(1)
        S = lambda i: ST + 2*i
        P  = 40
        MB = 48; VB = 56; R = 64; MR = 72
        for i in range(8): a(f"v_pk_mul_f32 {pk(S(i))}, {pk(S(i))}, v[36:37]")
        for i in range(8): a(f"v_fma_f32 v{S(i)+1}, -v{S(i)}, v{S(i)}, v{S(i)+1}")
        for i in range(8): a(f"v_cvt_pk_bf16_f32 v{P+i}, v{S(i)}, v{S(i)+1}")
        for i in range(8): a(f"v_and_b32 v{VB+i}, 0xffff0000, v{P+i}")
        for i in range(4): a(f"v_pk_add_f32 {pk(VB+2*i)}, {pk(VB+2*i)}, v[38:39]")
        for i in range(8): a(f"v_lshlrev_b32 v{MB+i}, 16, v{P+i}")
        for i in range(4): a(f"v_cvt_pk_bf16_f32 v{P+i}, v{VB+2*i}, v{VB+2*i+1}")
        for i in range(4):
            a(f"v_lshlrev_b32 v{VB+2*i}, 16, v{P+i}\nv_and_b32 v{VB+2*i+1}, 0xffff0000, v{P+i}")
        X32, U32 = 200, 216
        fill = []
        for c, X in enumerate((XA, XB)):
            for p in range(4):
                fill.append(f"v_lshlrev_b32 v{X32+8*c+2*p}, 16, v{X+p}")
                fill.append(f"v_and_b32 v{X32+8*c+2*p+1}, 0xffff0000, v{X+p}")
        for i in range(8): a(f"v_sqrt_f32 v{VB+i}, v{VB+i}")
        for i in range(4): a(f"v_cvt_pk_bf16_f32 v{P+i}, v{VB+2*i}, v{VB+2*i+1}")
        for i in range(4):
            a(f"v_lshlrev_b32 v{VB+2*i}, 16, v{P+i}\nv_and_b32 v{VB+2*i+1}, 0xffff0000, v{P+i}")
        l1 = a.label('CW'); l2 = a.label('CW')
        a(f"s_cbranch_vccz {l1}\ns_waitcnt vmcnt(8)\ns_branch {l2}\n{l1}:\ns_waitcnt vmcnt(0)\n{l2}:")
        self.emit(weave([f"v_rcp_f32 v{R+i}, v{VB+i}" for i in range(8)], fill, per=2))
        for i in range(4): a(f"v_pk_mul_f32 {pk(MR+2*i)}, {pk(MB+2*i)}, {pk(R+2*i)}")
        self.sub(2)
        for c in range(2):
            for p in range(4):
                x = X32+8*c+2*p; u = U32+8*c+2*p
                a(f"v_pk_fma_f32 {pk(u)}, {pk(x)}, {pk(R+2*p)}, {pk(MR+2*p)} neg_lo:[0,0,1] neg_hi:[0,0,1]")
        UP = 40
        for c in range(2):
            for p in range(4):
                u = U32+8*c+2*p
                a(f"v_cvt_pk_bf16_f32 v{UP+4*c+p}, v{u}, v{u+1}")
            ad = 5 + c
            a(f"ds_write_b128 v{ad}, {v4(UP+4*c)} offset:4640")
            a(f"ds_write2_b32 v{ad}, v{UP+4*c}, v{UP+4*c+1} offset0:1 offset1:2")
            a(f"ds_write2_b32 v{ad}, v{UP+4*c+2}, v{UP+4*c+3} offset0:3 offset1:4")
        AK, AU, ACC = 8, 9, 80
        a("s_waitcnt lgkmcnt(0)\ns_barrier")
        self.sub(3)
        ABASE = {0: ('v', 112), 1: ('a', 192), 2: ('v', 40), 3: ('a', 224)}
        def fragA(i, q):
            f, b = ABASE[i]; return f"{f}[{b+4*q}:{b+4*q+3}]"
        BB = [[144+4*q for q in range(8)], [176, 180, 184, 188, 192, 196, 72, 76]]
        def fragB(st, q): return v4(BB[st][q])
        def loadB(i, st): return [f"ds_read_b128 {fragB(st, q)}, v{AU} offset:{(3-i)*64 + 512*q}" for q in range(8)]
        def loadA2():
            L = []
            for q in range(8):
                for hh in range(2):
                    b = 40 + 4*q + 2*hh
                    L.append(f"ds_read_b64 v[{b}:{b+1}], v{AK} offset:{(3-2)*64 + (7-q)*512 + 8*hh}")
            return L
        self.emit(loadB(0, 0))
        def mainloop(groups):
            written = set(); cnt = 0
            for i in range(4):
                st = i & 1
                a("s_waitcnt lgkmcnt(0)")
                nxt = loadB(i+1, st ^ 1) if i < 3 else []
                if i == 0: nxt = nxt + loadA2()
                for sh in range(8):
                    for t in range(sh, 8):
                        c = v4(ACC+4*t) if t in written else '0'
                        written.add(t)
                        a(f"v_mfma_f32_16x16x32_bf16 {v4(ACC+4*t)}, {fragA(i, sh)}, {fragB(st, t-sh)}, {c}")
                        cnt += 1
                        if nxt: a(nxt.pop(0))
                        if groups and cnt % 20 == 10:
                            lg = a.label('WG')
                            a(f"s_cbranch_vccz {lg}")
                            for _ in range(4): self.emit(groups.pop(0))
                            a(f"{lg}:")
            assert not groups
        NC = 48 - QSPLIT
        nloop = min(24, (NC - 8) * 2 // 3 // 4 * 4)
        self.nloop = nloop
        mainloop(self.wg[8:8+nloop])
        lb = a.label('WB')
        a(f"s_cbranch_vccz {lb}")
        for g in self.wg[8+self.nloop:48-QSPLIT]: self.emit(g)
        a(f"{lb}:")
        self.sub(4)
        for t in range(8):
            a(f"ds_write_b64 v2, {pk(ACC+4*t)} offset:{1152*t}")
            a(f"ds_write_b64 v2, {pk(ACC+4*t+2)} offset:{1152*t+16}")
        a("s_waitcnt lgkmcnt(0)\ns_barrier")
        self.sub(5)
        Y0 = 112
        for ch in range(2):
            for sh in range(2):
                for hh in range(2):
                    b = Y0 + 16*sh + 8*ch + 4*hh
                    a(f"ds_read_b128 {v4(b)}, v7 offset:{sh*18432 + ch*9216 + 16*hh}")
        a(f"""
        v_subrev_u32 v3, {S_XIN}, v3
        v_add_u32 v3, {S_XOUT}, v3
        v_add_u32 v1, 4096, v3
        """)
        for ch in range(2):
            a(f"s_waitcnt lgkmcnt({4*(1-ch)})")
            D = V_DSK0 if ch == 0 else V_DSK1
            for p in range(4):
                y = Y0 + 8*ch + 2*p
                a(f"v_pk_add_f32 {pk(y)}, {pk(y)}, {pk(y+16)}")
            for p in range(4):
                y = Y0 + 8*ch + 2*p; u = U32 + 8*ch + 2*p
                a(f"v_pk_fma_f32 {pk(y)}, {pk(u)}, {pk(D)}, {pk(y)} op_sel_hi:[1,0,1]")
            for p in range(4):
                y = Y0 + 8*ch + 2*p; x = X32 + 8*ch + 2*p
                a(f"v_pk_add_f32 {pk(y)}, {pk(y)}, {pk(x)}")
            for p in range(4):
                y = Y0 + 8*ch + 2*p
                a(f"v_cvt_pk_bf16_f32 v{80+4*ch+p}, v{y}, v{y+1}")
            a(f"buffer_store_dwordx4 {v4(80+4*ch)}, v{3 if ch == 0 else 1}, {SRD_WS}, 0 offen sc1")
        self.sub(6)
        self.subflush(0, 7)

    def wstage_kv(self):
        a = self.a
        l = a.label('WS')
        a(f"s_cmp_eq_u32 {S_LAYER}, 0\ns_cbranch_scc0 {l}")
        self.wsum()
        a(f"{l}:")

    def qkv_pre(self):
        a = self.a
        t = 10
        a(f"""
        v_lshrrev_b32 v{t}, 3, v{V_LANE}
        v_lshlrev_b32 v{t}, 12, v{t}
        v_bfe_u32 v{t+1}, v{V_LANE}, 1, 2
        v_bfe_u32 v{t+2}, v{V_LANE}, 4, 1
        s_and_b32 {S_T0}, {S_W}, 1
        s_lshl_b32 {S_T0}, {S_T0}, 1
        v_or_b32 v{t+2}, {S_T0}, v{t+2}
        v_xor_b32 v{t+1}, v{t+1}, v{t+2}
        v_lshl_add_u32 v{t}, v{t+1}, 5, v{t}
        v_and_b32 v{t+1}, 1, v{V_LANE}
        v_lshl_add_u32 v{t}, v{t+1}, 4, v{t}
        s_lshl_b32 {S_T0}, {S_RT}, 7
        v_add_u32 v{t}, {S_T0}, v{t}
        s_lshl_b32 {S_DS}, {S_W}, 15
        s_add_u32 {S_DS}, {S_DS}, {S_XIN}
        s_lshl_b32 {S_DM}, {S_W}, 10
        s_add_u32 {S_DM}, {S_DM}, {L_XL}
        """)
        t = 12
        a(f"""
        v_lshrrev_b32 v{t}, 2, v{V_L16}
        v_lshl_add_u32 v{t+1}, v{V_H}, 3, v{t}
        v_lshlrev_b32 v{t+1}, 7, v{t+1}
        v_and_b32 v{t+2}, 3, v{V_L16}
        v_lshl_add_u32 v{t+1}, v{t+2}, 3, v{t+1}
        v_add_u32 v{t+1}, {L_XL}, v{t+1}
        v_lshrrev_b32 v{t}, 1, v{t}
        v_and_b32 v{t+2}, 1, v{V_H}
        v_lshl_or_b32 v{t}, v{t+2}, 1, v{t}
        v_xor_b32 v{t}, {S_W}, v{t}
        """)
        for j in range(4):
            a(f"v_xor_b32 v{t+2}, {j}, v{t}\nv_lshl_add_u32 v{4+j}, v{t+2}, 5, v{t+1}")
        for i in range(4): a(f"v_mov_b32 v{104+i}, {S_ONES}")
        a(f"""
        s_mov_b32 s66, {fx(1e-6)}
        s_mov_b32 s67, {fx(LOG2E)}
        v_mov_b32 v112, s66
        v_mov_b32 v113, s66
        v_mov_b32 v114, s67
        v_mov_b32 v115, s67
        """)

    def qkv(self):
        a = self.a
        self.sub(0)
        def dma():
            return lines(f"""
            s_mov_b32 m0, {S_DM}
            s_add_u32 {S_DM}, {S_DM}, 4096
            buffer_load_dwordx4 v10, {SRD_WS}, {S_DS} offen sc1 lds
            s_add_u32 {S_DS}, {S_DS}, {4*32768}
            """)
        NUPF = int(os.environ.get('NUPF', '12'))
        for i in range(NUPF): self.emit(dma())
        AD = 4
        AK_, AV_, AQ_ = 16, 32, 48
        DS, DG = 64, 68
        ONES = 104
        XF = [72, 88]
        def xload(ks, st):
            L = []
            for j in range(4):
                b = XF[st] + 4*j
                L.append(f"ds_read_b64_tr_b16 {pk(b)}, v{AD+j} offset:{ks*4096}")
                L.append(f"ds_read_b64_tr_b16 {pk(b+2)}, v{AD+j} offset:{ks*4096+512}")
            return L
        S_WDS, S_WDM = 's84', 's85'
        a(f"""
        s_lshl_b32 {S_WDS}, {S_CG}, 16
        s_lshl_b32 {S_T0}, {S_W}, 14
        s_add_u32 {S_WDS}, {S_WDS}, {S_T0}
        s_add_u32 {S_WDS}, {S_WDS}, {WOFG}
        s_add_u32 {S_WDM}, {S_T0}, {L_WO}
        v_lshlrev_b32 v111, 4, v{V_LANE}
        """)
        def wo_group():
            lg = a.label('WOG')
            a(f"s_cmp_eq_u32 {S_LAYER}, 0\ns_cbranch_scc0 {lg}")
            for _ in range(4):
                a(f"""
                s_mov_b32 m0, {S_WDM}
                s_add_u32 {S_WDM}, {S_WDM}, 1024
                buffer_load_dwordx4 v111, {SRD_WS}, {S_WDS} offen sc1 lds
                s_add_u32 {S_WDS}, {S_WDS}, 1024
                """)
            a(f"{lg}:")
        SF = [200, 208]
        S = {0: [0], 1: [1, 2], 2: [3, 4], 3: [5, 6], 4: [7, 8], 5: [9, 10], 6: [11, 12], 7: [13, 14], 8: [15]}
        def sload(ks, st):
            L = []
            for n, kss in enumerate(S.get(ks, [])):
                b = SF[st] + 4*n
                L.append(f"ds_read_b64_tr_b16 {pk(b)}, v{AD} offset:{kss*4096}")
                L.append(f"ds_read_b64_tr_b16 {pk(b+2)}, v{AD} offset:{kss*4096+512}")
            return L
        ndma = [NUPF]
        landed = [-1]
        def need(idx):
            if idx <= landed[0]: return []
            landed[0] = idx
            return [f"s_waitcnt vmcnt({ndma[0] - 1 - idx})", "s_barrier"]
        waits = {0: 2, 1: 4, 2: 8, 4: 12, 6: 15}
        self.emit(need(1))
        self.sub(1)
        self.emit(xload(0, 0) + sload(0, 0))
        self.P1 = {}
        fillers = {}
        def pass1(ks, extra):
            st = ks & 1
            a("s_waitcnt lgkmcnt(0)")
            if ks in waits: self.emit(need(waits[ks]))
            fill = (xload(ks+1, st ^ 1) + sload(ks+1, st ^ 1)) if ks + 1 < 16 else (xload(0, st ^ 1) if QSPLIT > 0 else [])
            M = []
            for j in range(4):
                x = v4(XF[st]+4*j)
                ck = '0' if ks == 0 else v4(AK_+4*j); cv = '0' if ks == 0 else v4(AV_+4*j)
                M.append(f"v_mfma_f32_16x16x32_bf16 {v4(AK_+4*j)}, {x}, a[{64+4*ks}:{64+4*ks+3}], {ck}")
                M.append(f"v_mfma_f32_16x16x32_bf16 {v4(AV_+4*j)}, {x}, a[{128+4*ks}:{128+4*ks+3}], {cv}")
                if ks >= QSPLIT:
                    M.append(f"v_mfma_f32_16x16x32_bf16 {v4(AQ_+4*j)}, a[{4*ks}:{4*ks+3}], {x}, {'0' if ks == QSPLIT else v4(AQ_+4*j)}")
            for n, kss in enumerate(S.get(ks, [])):
                x0 = v4(SF[st] + 4*n)
                M.append(f"v_mfma_f32_16x16x32_bf16 {v4(DS)}, {v4(ONES)}, {x0}, {'0' if kss == 0 else v4(DS)}")
                M.append(f"v_mfma_f32_16x16x32_bf16 {v4(DG)}, {x0}, {x0}, {'0' if kss == 0 else v4(DG)}")
            k = min(2, 16 - ndma[0])
            for _ in range(k): fill = fill + dma()
            ndma[0] += k
            out = []; fi = list(fill); ex = list(extra)
            for mi, m in enumerate(M):
                out.append(m)
                n = 2
                while n > 0 and fi: out.append(fi.pop(0)); n -= 1
                while n > 0 and ex: out.append(ex.pop(0)); n -= 1
            out += fi
            self.emit(out)
            return ex
        self._pass1 = pass1
        SQ = 109
        F1 = lines(f"""
        v_and_b32 v8, 3, v{V_L16}
        v_lshrrev_b32 v9, 2, v{V_L16}
        v_cmp_eq_u32 s[66:67], 1, v8
        v_cmp_eq_u32 s[68:69], 2, v8
        v_cmp_eq_u32 vcc, 3, v8
        v_cndmask_b32 v{SQ}, v{DG}, v{DG+1}, s[66:67]
        v_cndmask_b32 v{SQ}, v{SQ}, v{DG+2}, s[68:69]
        v_cndmask_b32 v{SQ}, v{SQ}, v{DG+3}, vcc
        v_cmp_eq_u32 vcc, v9, v{V_H}
        s_lshl_b32 {S_T0}, {S_W}, 6
        s_add_u32 {S_T0}, {S_T0}, {L_S2R}
        v_cndmask_b32 v{SQ}, 0, v{SQ}, vcc
        v_lshlrev_b32 v8, 2, v{V_L16}
        v_add_u32 v9, {S_T0}, v8
        """)
        F1 += self.reduce_h(SQ, 110)
        F1 += self.ln_final1(DS, SQ, 116, 117, 118)
        F1 += lines(f"""
        ds_write_b32 v9, v116
        ds_write_b32 v9, v117 offset:{L_S2M-L_S2R}
        v_lshlrev_b32 v8, 4, v{V_H}
        v_add_u32 v8, {S_T0}, v8
        """)
        R4, M4 = 128, 144
        RQ, MQ = 160, 208
        F2 = []
        for j in range(4):
            F2.append(f"v_xor_b32 v{120+j}, {64*j}, v8")
            F2.append(f"v_xor_b32 v{124+j}, {64*j}, v9")
        for j in range(4):
            F2.append(f"ds_read_b128 {v4(R4+4*j)}, v{120+j}")
            F2.append(f"ds_read_b128 {v4(M4+4*j)}, v{120+j} offset:{L_S2M-L_S2R}")
        for j in range(4):
            F2.append(f"ds_read_b32 v{RQ+2*j}, v{124+j}")
            F2.append(f"ds_read_b32 v{MQ+2*j}, v{124+j} offset:{L_S2M-L_S2R}")
        EPS, L2E = 112, 114
        def phi(x, T):
            return [f"v_pk_mul_f32 {pk(T)}, {pk(x)}, {pk(L2E)}",
                    f"v_exp_f32_e64 v{T}, v{T} clamp", f"v_exp_f32_e64 v{T+1}, v{T+1} clamp",
                    f"v_max_f32 v{x}, v{EPS}, v{x}", f"v_max_f32 v{x+1}, v{EPS}, v{x+1}",
                    f"v_pk_add_f32 {pk(x)}, {pk(x)}, {pk(T)}"]
        PKF, VF, PQF = 168, 176, 200
        DKV, DZ = 196, 216
        def kv_chain(j, h2, T):
            k = AK_+4*j+h2; vv = AV_+4*j+h2; r = R4+4*j+h2; m = M4+4*j+h2
            c = [f"v_pk_fma_f32 {pk(T)}, {pk(m)}, v[{V_WSK}:{V_WSK+1}], {pk(EPS)} op_sel_hi:[1,0,1] neg_lo:[0,0,1] neg_hi:[0,0,1]",
                 f"v_pk_mul_f32 {pk(T+4)}, {pk(m)}, v[{V_WSV}:{V_WSV+1}] op_sel_hi:[1,0]",
                 f"v_pk_fma_f32 {pk(k)}, {pk(k)}, {pk(r)}, {pk(T)} neg_lo:[0,0,1] neg_hi:[0,0,1]",
                 f"v_pk_fma_f32 {pk(vv)}, {pk(vv)}, {pk(r)}, {pk(T+4)} neg_lo:[0,0,1] neg_hi:[0,0,1]"]
            ph = phi(k, T+2)
            c += [ph[0], f"v_cvt_pk_bf16_f32 v{VF + 2*j + h2//2}, v{vv}, v{vv+1}"] + ph[1:]
            c.append(f"v_cvt_pk_bf16_f32 v{PKF + 2*j + h2//2}, v{k}, v{k+1}")
            return c
        def q_chain(j, h2, T):
            q = AQ_+4*j+h2
            c = [f"v_pk_fma_f32 {pk(T)}, {pk(MQ+2*j)}, {pk(V_WSQ+h2)}, {pk(EPS)} op_sel_hi:[0,1,1] neg_lo:[0,0,1] neg_hi:[0,0,1]",
                 f"v_pk_fma_f32 {pk(q)}, {pk(q)}, {pk(RQ+2*j)}, {pk(T)} op_sel_hi:[1,0,1] neg_lo:[0,0,1] neg_hi:[0,0,1]"]
            c += phi(q, T+2)
            c.append(f"v_cvt_pk_bf16_f32 v{PQF + 2*j + h2//2}, v{q}, v{q+1}")
            return c
        adr = lines(f"""
        s_lshl_b32 {S_T0}, {S_CG}, 2
        s_add_u32 {S_T0}, {S_T0}, {S_W}
        s_lshl_b32 {S_T1}, {S_T0}, 10
        s_add_u32 {S_T1}, {S_T1}, {S_KV}
        v_lshlrev_b32 v11, 2, v{V_LANE}
        v_add_u32 v14, {S_T1}, v11
        s_lshl_b32 {S_T1}, {S_T0}, 10
        s_add_u32 {S_T1}, {S_T1}, {S_Z}
        s_and_b32 {S_T2}, {S_RT}, 3
        s_lshl_b32 {S_T2}, {S_T2}, 8
        s_add_u32 {S_T1}, {S_T1}, {S_T2}
        v_add_u32 v15, {S_T1}, v11
        s_lshl_b32 {S_T1}, {S_RT}, 16
        s_add_u32 {S_T1}, {S_T1}, {S_PQ}
        s_lshl_b32 {S_T2}, {S_T0}, 10
        s_add_u32 {S_T1}, {S_T1}, {S_T2}
        s_and_b32 {S_T2}, {S_W}, 1
        s_lshl_b32 {S_T2}, {S_T2}, 4
        v_xor_b32 v11, {S_T2}, v{V_LANE}
        v_lshlrev_b32 v11, 4, v11
        v_add_u32 v11, {S_T1}, v11
        s_lshr_b32 {S_T2}, {S_W}, 1
        s_lshl_b32 {S_T2}, {S_T2}, 15
        v_add_u32 v12, {S_T2}, v11
        s_xor_b32 {S_T2}, {S_T2}, 0x8000
        v_add_u32 v13, {S_T2}, v11
        """)
        def passQ(ks_range):
            for ks in ks_range:
                st = ks & 1
                nx = xload(ks+1, st ^ 1) if ks + 1 < QSPLIT else []
                a("s_waitcnt lgkmcnt(0)")
                for j in range(4):
                    x = v4(XF[st]+4*j)
                    c = '0' if (QSPLIT == 16 and ks == 0) else v4(AQ_+4*j)
                    a(f"v_mfma_f32_16x16x32_bf16 {v4(AQ_+4*j)}, a[{4*ks}:{4*ks+3}], {x}, {c}")
                    k = 4 if j < 2 else 0
                    for _ in range(k):
                        if nx: a(nx.pop(0))
        wq = list(self.wg[48-QSPLIT:])
        def wq_group():
            if not wq: return
            lg = a.label('WQG')
            a(f"s_cmp_eq_u32 {S_LAYER}, 0\ns_cbranch_scc0 {lg}")
            for _ in range(4):
                if wq: self.emit(wq.pop(0))
            a(f"{lg}:")
        for ks in range(0, 9):
            pass1(ks, [])
            if ks == 3: self.sub(2)
            if ks in (6, 8): wq_group()
        self.sub(3)
        ex = list(F1)
        for ks in range(9, 12):
            ex = pass1(ks, ex)
            if ks == 10: wq_group()
        self.emit(ex)
        wq_group()
        a("s_waitcnt lgkmcnt(0)\ns_barrier")
        self.sub(4)
        ex = list(F2) + adr
        for ks in range(12, 16):
            ex = pass1(ks, ex)
            if ks == 12: wo_group()
        self.emit(ex)
        wo_group()
        a("s_waitcnt lgkmcnt(0)")
        self.sub(5)
        TT = [184, 190, 220, 226]
        for j0 in (0, 2):
            self.emit(zipmerge(kv_chain(j0, 0, TT[0]), kv_chain(j0, 2, TT[1]), kv_chain(j0+1, 0, TT[2]), kv_chain(j0+1, 2, TT[3])))
            u = j0 // 2
            c1 = '0' if u == 0 else v4(DKV); c2 = '0' if u == 0 else v4(DZ)
            a(f"v_mfma_f32_16x16x32_bf16 {v4(DKV)}, {v4(VF+4*u)}, {v4(PKF+4*u)}, {c1}")
            a(f"v_mfma_f32_16x16x32_bf16 {v4(DZ)}, {v4(ONES)}, {v4(PKF+4*u)}, {c2}")
        for i in range(4):
            a(f"buffer_atomic_add_f32 v{DKV+i}, v14, {SRD_WS}, 0 offen offset:{256*i}")
        a(f"""
        s_mov_b64 exec, 0xffff
        buffer_atomic_add_f32 v{DZ}, v15, {SRD_WS}, 0 offen
        s_mov_b64 exec, -1
        """)
        wo_group()
        a("s_waitcnt vmcnt(17)")
        passQ(range(0, QSPLIT // 2))
        wo_group()
        passQ(range(QSPLIT // 2, QSPLIT))
        lq = a.label('WSQ')
        a(f"s_cmp_eq_u32 {S_LAYER}, 0\ns_cbranch_scc0 {lq}")
        self.wsum(o=120, parts=(0,))
        a(f"{lq}:")
        TQ = [184, 188, 220, 224]
        for u in range(2):
            j0 = 2*u
            self.emit(zipmerge(q_chain(j0, 0, TQ[0]), q_chain(j0, 2, TQ[1]), q_chain(j0+1, 0, TQ[2]), q_chain(j0+1, 2, TQ[3])))
            b = PQF + 4*u
            a(f"v_permlane16_swap_b32 v{b}, v{b+2}\nv_permlane16_swap_b32 v{b+1}, v{b+3}")
            a(f"buffer_store_dwordx4 {v4(b)}, v{12+u}, {SRD_WS}, 0 offen sc1")
        self.sub(6)
        self.subflush(1, 7)

    def outp_pre(self):
        a = self.a
        a(f"""
        s_lshl_b32 {S_T0}, {S_W}, 13
        s_add_u32 {S_T0}, {S_T0}, {S_KV}
        v_lshlrev_b32 v4, 4, v{V_LANE}
        v_add_u32 v4, {S_T0}, v4
        v_add_u32 v5, 4096, v4
        s_lshl_b32 {S_T0}, {S_W}, 13
        s_add_u32 {S_T0}, {S_T0}, {S_Z}
        v_bfe_u32 v6, v{V_LANE}, 2, 3
        v_lshlrev_b32 v6, 10, v6
        v_lshrrev_b32 v12, 5, v{V_LANE}
        v_lshl_add_u32 v6, v12, 8, v6
        v_and_b32 v12, 3, v{V_LANE}
        v_lshl_add_u32 v6, v12, 4, v6
        v_add_u32 v6, {S_T0}, v6
        s_and_b32 {S_T0}, {S_W}, 1
        s_lshl_b32 {S_T0}, {S_T0}, 15
        s_lshr_b32 {S_T1}, {S_W}, 1
        s_lshl_b32 {S_T1}, {S_T1}, 14
        s_add_u32 {S_T0}, {S_T0}, {S_T1}
        s_lshl_b32 {S_T1}, {S_RT}, 16
        s_add_u32 {S_T0}, {S_T0}, {S_T1}
        s_add_u32 {S_DS}, {S_T0}, {S_PQ}
        v_lshlrev_b32 v7, 4, v{V_LANE}
        v_lshrrev_b32 v1, 3, v0
        v_and_b32 v3, 7, v0
        s_lshl_b32 {S_T0}, {S_CG}, 18
        s_lshl_b32 {S_T1}, {S_RT}, 7
        s_add_u32 {S_T0}, {S_T0}, {S_T1}
        v_lshlrev_b32 v8, 12, v1
        v_lshl_add_u32 v8, v3, 4, v8
        v_add_u32 v8, {S_T0}, v8
        v_add_u32 v9, {S_XIN}, v8
        v_add_u32 v2, 0x20000, v9
        v_lshrrev_b32 v10, 4, v{V_LANE}
        v_bfe_u32 v11, v{V_LANE}, 2, 2
        v_lshl_add_u32 v10, v11, 2, v10
        v_bfe_u32 v11, v{V_LANE}, 1, 1
        v_lshl_add_u32 v10, v11, 4, v10
        v_lshlrev_b32 v10, 4, v10
        v_and_b32 v11, 1, v{V_LANE}
        v_lshl_add_u32 v10, v11, 3, v10
        s_mul_i32 {S_T0}, {S_W}, {8*544}
        s_add_u32 {S_T0}, {S_T0}, {L_KVF}
        v_add_u32 v10, {S_T0}, v10
        v_bfe_u32 v11, v{V_LANE}, 2, 3
        v_mul_u32_u24 v11, 544, v11
        v_and_b32 v12, 3, v{V_LANE}
        v_lshl_add_u32 v11, v12, 3, v11
        v_add_u32 v11, {S_T0}, v11
        v_and_b32 v12, 31, v{V_LANE}
        v_lshrrev_b32 v13, 5, v{V_LANE}
        v_lshlrev_b32 v14, 4, v13
        v_add_u32 v15, v14, v12
        v_lshlrev_b32 v15, 4, v15
        v_lshlrev_b32 v14, 4, v13
        v_add_u32 v14, 512, v14
        v_cmp_gt_u32 vcc, 16, v12
        v_cndmask_b32 v15, v14, v15, vcc
        s_lshr_b32 {S_T0}, {S_W}, 1
        s_mul_i32 {S_T1}, {S_T0}, {16*544}
        s_add_u32 {S_T1}, {S_T1}, {L_KVF}
        v_add_u32 v15, {S_T1}, v15
        v_lshrrev_b32 v16, 2, v{V_L16}
        v_lshrrev_b32 v17, 1, v{V_H}
        v_lshl_add_u32 v17, v17, 2, v16
        v_lshlrev_b32 v17, 7, v17
        v_and_b32 v18, 3, v{V_L16}
        v_lshl_add_u32 v17, v18, 3, v17
        s_lshl_b32 {S_T1}, {S_T0}, 15
        s_add_u32 {S_T1}, {S_T1}, {L_WO}
        v_add_u32 v17, {S_T1}, v17
        v_and_b32 v18, 2, v16
        v_and_b32 v19, 1, v{V_H}
        v_xor_b32 v18, v18, v19
        v_lshl_add_u32 v13, v18, 5, v17
        v_xor_b32 v18, 2, v18
        v_lshl_add_u32 v14, v18, 5, v17
        s_mul_i32 {S_T1}, {S_T0}, {64*272}
        s_and_b32 {S_T0}, {S_W}, 1
        s_lshl_b32 {S_T0}, {S_T0}, 7
        s_add_u32 {S_T1}, {S_T1}, {S_T0}
        s_add_u32 {S_T1}, {S_T1}, {L_O32}
        v_mul_u32_u24 v16, 272, v12
        v_lshrrev_b32 v17, 5, v{V_LANE}
        v_lshl_add_u32 v16, v17, 4, v16
        v_add_u32 v16, {S_T1}, v16
        v_mul_u32_u24 v17, 272, v1
        v_lshl_add_u32 v17, v3, 5, v17
        v_add_u32 v17, {L_O32}, v17
        v_mul_u32_u24 v18, 144, v1
        v_lshl_add_u32 v18, v3, 4, v18
        v_add_u32 v18, {L_OT}, v18
        """)
        a(f"""
        s_lshr_b32 {S_T0}, {S_W}, 1
        s_lshl_b32 {S_T0}, {S_T0}, 15
        s_add_u32 {S_T0}, {S_T0}, {L_WO}
        v_lshlrev_b32 v13, 4, v{V_LANE}
        v_add_u32 v13, {S_T0}, v13
        """)
        for i in range(16):
            for c in range(2):
                a(f"ds_read_b128 {v4(WOF + 8*i + 4*c)}, v13 offset:{i*2048 + c*1024}")

    def outp(self):
        a = self.a
        self.sub(0)
        KVL = 24
        issued = []
        def ld(txt, tag): a(txt); issued.append(tag)
        for p in range(8):
            ad = 4 if p < 4 else 5; off = (p & 3)*1024
            ld(f"buffer_load_dwordx4 {v4(KVL+4*p)}, v{ad}, {SRD_WS}, 0 offen offset:{off} sc1", 'kv')
        ld(f"buffer_load_dwordx4 v[56:59], v6, {SRD_WS}, 0 offen sc1", 'kv')
        ld(f"buffer_load_dwordx4 v[60:63], v6, {SRD_WS}, 0 offen offset:512 sc1", 'kv')
        def pqload(i):
            ld(f"buffer_load_dwordx4 a[{192+4*i}:{192+4*i+3}], v7, {SRD_WS}, {S_DS} offen sc1", f'pq{i}')
            a(f"s_add_u32 {S_DS}, {S_DS}, 1024")
        NUP = 4
        for i in range(NUP): pqload(i)
        def vm(tag):
            idx = max(i for i, t in enumerate(issued) if t == tag)
            return len(issued) - 1 - idx
        self.sub(1)
        a(f"s_waitcnt vmcnt({vm('kv')})")
        self.sub(2)
        for p in range(8):
            b = KVL + 4*p
            a(f"v_cvt_pk_bf16_f32 v{b}, v{b}, v{b+1}\nv_cvt_pk_bf16_f32 v{b+1}, v{b+2}, v{b+3}")
            a(f"ds_write_b64 v10, {pk(b)} offset:{p*544}")
        a("v_pk_add_f32 v[56:57], v[56:57], v[60:61]\nv_pk_add_f32 v[58:59], v[58:59], v[62:63]")
        for i in range(4):
            a(f"v_mov_b32 v{60+i}, v{56+i}\nv_permlane32_swap_b32 v{56+i}, v{60+i}\nv_add_f32 v{56+i}, v{56+i}, v{60+i}")
        a("v_cvt_pk_bf16_f32 v56, v56, v57\nv_cvt_pk_bf16_f32 v57, v58, v59")
        a(f"ds_write_b64 v11, v[56:57] offset:512")
        AKV = 15
        ACC = [72, 88]
        D1 = [32, 48]; KF = [20, 24, 28]; OF = [64, 68]
        XR = WOF
        for i in range(NUP, 10): pqload(i)
        a("s_waitcnt lgkmcnt(0)\ns_barrier")
        self.sub(3)
        def acc(c): return f"v[{ACC[c]}:{ACC[c]+15}]"
        def rdK(i): return [f"ds_read_b128 {v4(KF[i % 3])}, v{AKV} offset:{i*544}"]
        def m1(i): return f"v_mfma_f32_32x32x16_bf16 v[{D1[i&1]}:{D1[i&1]+15}], {v4(KF[i % 3])}, a[{192+4*i}:{192+4*i+3}], 0"
        def valu(i):
            d = D1[i & 1]; o = OF[i & 1]
            L = [f"v_add_f32 v{d+8}, {fx(1e-6)}, v{d+8}", f"v_rcp_f32 v{d+8}, v{d+8}"]
            L += [f"v_mul_f32 v{d+p}, v{d+p}, v{d+8}" for p in range(8)]
            L += [f"v_cvt_pk_bf16_f32 v{o+p}, v{d+2*p}, v{d+2*p+1}" for p in range(4)]
            return L
        def mo(i, c):
            b = WOF + 8*i + 4*c
            return f"v_mfma_f32_32x32x16_bf16 {acc(c)}, {v4(OF[i&1])}, {v4(b)}, {'0' if i == 0 else acc(c)}"
        self.emit(rdK(0) + rdK(1) + rdK(2))
        a(f"s_waitcnt vmcnt({vm('pq0')}) lgkmcnt(2)")
        a(m1(0))
        a(f"s_waitcnt vmcnt({vm('pq1')}) lgkmcnt(1)")
        a(m1(1))
        self.emit(valu(0))
        nxt = 10
        for i in range(16):
            V = valu(i+1) if i + 1 < 16 else []
            K_ = rdK(i+3) if i + 3 < 16 else []
            if i + 2 < 16: a(f"s_waitcnt vmcnt({vm(f'pq{i+2}')}) lgkmcnt(0)")
            a(mo(i, 0))
            self.emit(V[:2] + K_ + V[2:4])
            if i + 2 < 16: a(m1(i+2))
            self.emit(V[4:10])
            a(mo(i, 1))
            self.emit(V[10:])
            if nxt < 16:
                pqload(nxt); nxt += 1
            if i == 6:
                ld(f"buffer_load_dwordx4 {v4(XR)}, v9, {SRD_WS}, 0 offen sc1", 'x')
                ld(f"buffer_load_dwordx4 {v4(XR+4)}, v2, {SRD_WS}, 0 offen sc1", 'x')
        self.sub(4)
        for c in range(2):
            for aa in range(4):
                a(f"ds_write_b128 v16, {v4(ACC[c]+4*aa)} offset:{c*32*272 + 32*aa}")
        a("s_waitcnt lgkmcnt(0)\ns_barrier")
        Y = 32
        for i in range(2):
            for part in range(2):
                for hh in range(2):
                    a(f"ds_read_b128 {v4(Y+16*i+8*part+4*hh)}, v17 offset:{i*32*272 + part*64*272 + 16*hh}")
        a("s_waitcnt vmcnt(0)")
        self.sub(5)
        lf = a.label('FIN'); le = a.label('OE'); lx = a.label('OX')
        a(f"v_add_u32 v8, {S_XOUT}, v8\nv_add_u32 v9, 0x20000, v8")
        for i in range(2):
            a(f"s_waitcnt lgkmcnt({4*(1-i)})")
            y = Y + 16*i; x = XR + 4*i; t = 132 + 8*i
            for p in range(4): a(f"v_pk_add_f32 {pk(y+2*p)}, {pk(y+2*p)}, {pk(y+8+2*p)}")
            for p in range(4): a(f"v_cvt_pk_bf16_f32 v{y+8+p}, v{y+2*p}, v{y+2*p+1}")
            for p in range(4):
                a(f"v_lshlrev_b32 v{y+2*p}, 16, v{y+8+p}\nv_and_b32 v{y+2*p+1}, 0xffff0000, v{y+8+p}")
                a(f"v_lshlrev_b32 v{t+2*p}, 16, v{x+p}\nv_and_b32 v{t+2*p+1}, 0xffff0000, v{x+p}")
            for p in range(4): a(f"v_pk_add_f32 {pk(y+2*p)}, {pk(y+2*p)}, {pk(t+2*p)}")
            for p in range(4): a(f"v_cvt_pk_bf16_f32 v{160+4*i+p}, v{y+2*p}, v{y+2*p+1}")
            a(f"ds_write_b128 v18, {v4(160+4*i)} offset:{i*32*144}")
        a(f"""
        s_cmp_eq_u32 {S_LAYER}, 0
        s_cbranch_scc0 {lf}
        buffer_store_dwordx4 v[160:163], v8, {SRD_WS}, 0 offen sc1
        buffer_store_dwordx4 v[164:167], v9, {SRD_WS}, 0 offen sc1
        {lf}:
        v_lshrrev_b32 v10, 2, v{V_L16}
        v_lshl_add_u32 v10, v{V_H}, 3, v10
        v_mul_u32_u24 v10, 144, v10
        v_and_b32 v11, 3, v{V_L16}
        v_lshl_add_u32 v10, v11, 3, v10
        s_lshl_b32 {S_T0}, {S_W}, 5
        s_add_u32 {S_T0}, {S_T0}, {L_OT}
        v_add_u32 v10, {S_T0}, v10
        s_waitcnt lgkmcnt(0)
        s_barrier
        ds_read_b64_tr_b16 v[104:105], v10
        ds_read_b64_tr_b16 v[106:107], v10 offset:{4*144}
        ds_read_b64_tr_b16 v[108:109], v10 offset:{32*144}
        ds_read_b64_tr_b16 v[110:111], v10 offset:{36*144}
        s_cmp_eq_u32 {S_LAYER}, 0
        s_cbranch_scc0 {le}
        s_lshl_b32 {S_T0}, {S_RT}, 7
        s_lshl_b32 {S_T1}, {S_W}, 5
        s_add_u32 {S_T0}, {S_T0}, {S_T1}
        s_add_u32 {S_T0}, {S_T0}, {ST3}
        v_bfe_u32 v11, v{V_L16}, 1, 2
        v_lshlrev_b32 v11, 12, v11
        v_lshrrev_b32 v12, 3, v{V_L16}
        v_lshl_add_u32 v11, v12, 4, v11
        v_and_b32 v12, 1, v{V_L16}
        v_lshl_add_u32 v11, v12, 3, v11
        v_lshl_add_u32 v11, v{V_H}, 2, v11
        v_add_u32 v11, {S_T0}, v11
        v_mov_b32 v112, 0
        v_mov_b32 v113, 0
        v_mov_b32 v114, 0
        v_mov_b32 v115, 0
        s_waitcnt lgkmcnt(0)
        """)
        for j in range(4):
            a(f"v_dot2_f32_bf16 v112, v{104+j}, {S_ONES}, v112")
            a(f"v_dot2_f32_bf16 v113, v{104+j}, v{104+j}, v113")
            a(f"v_dot2_f32_bf16 v114, v{108+j}, {S_ONES}, v114")
            a(f"v_dot2_f32_bf16 v115, v{108+j}, v{108+j}, v115")
        a("v_pk_add_f32 v[112:113], v[112:113], v[114:115]")
        self.emit(zipmerge(self.reduce_h(112, 116), self.reduce_h(113, 117)))
        a(f"""
        v_cmp_eq_u32 vcc, 0, v{V_H}
        v_cndmask_b32 v112, v113, v112, vcc
        s_mov_b64 exec, 0xffffffff
        buffer_atomic_add_f32 v112, v11, {SRD_WS}, 0 offen
        s_mov_b64 exec, -1
        s_branch {lx}
        {le}:
        s_lshl_b32 {S_T0}, {S_RT}, 16
        s_lshl_b32 {S_T1}, {S_W}, 14
        s_add_u32 {S_T0}, {S_T0}, {S_T1}
        s_lshl_b32 {S_T1}, {S_CG}, 7
        s_add_u32 {S_T0}, {S_T0}, {S_T1}
        v_lshlrev_b32 v11, 10, v{V_L16}
        v_lshl_add_u32 v11, v{V_H}, 4, v11
        v_add_u32 v11, {S_T0}, v11
        s_waitcnt lgkmcnt(0)
        buffer_store_dwordx4 v[104:107], v11, {SRD_OUT}, 0 offen {OUTF}
        buffer_store_dwordx4 v[108:111], v11, {SRD_OUT}, 0 offen offset:64 {OUTF}
        {lx}:
        """)
        self.sub(6)
        self.subflush(2, 7)

    def build(self):
        a = self.a
        self.prologue()
        if self.ts: a(f"v_mov_b32 v{V_TS}, 0\nv_mov_b32 v{V_TS2}, 0")
        self.stamp()
        self.p0()
        stop = self.stop
        if stop == 'p0':
            self.wait(); a("s_branch L_END")
        a("L_LAYER:")
        for reg, (x0, x1) in ((S_XIN, (XT[0], XT[2])), (S_XOUT, (XT[1], XT[3])), (S_ST, (ST1, ST3)), (S_PQ, PQ), (S_KV, KVM), (S_Z, ZZ)):
            a(f"s_mul_i32 {reg}, {S_LAYER}, {(x1 - x0) & 0xffffffff:#x}")
            a(f"s_add_u32 {reg}, {reg}, {x0:#x}")
        self.conv_pre()
        self.wait(l0skip=True, sleep0=16, adr=int(os.environ.get('AR_C','1')), adr0=0, adb=int(os.environ.get('AB_C','1'))); self.stamp()
        self.conv(); self.stamp()
        self.arrive(); self.stamp()
        if stop == 'conv1':
            self.wait(); a("s_branch L_END")
        a(f"s_mov_b32 {S_XIN}, {S_XOUT}")
        self.wstage_kv()
        self.qkv_pre()
        self.wait(l0skip=True, sleep0=12, adr=int(os.environ.get('AR_Q','1')), adr0=int(os.environ.get('AR_Q0','3')), adb=int(os.environ.get('AB_Q','1'))); self.stamp()
        self.qkv(); self.stamp()
        self.arrive(); self.stamp()
        if stop == 'qkv1':
            self.wait(); a("s_branch L_END")
            if os.environ.get('DBGW'):
                a(f"""
                s_lshl_b32 {S_T0}, {S_ID}, 11
                s_add_u32 {S_T0}, {S_T0}, 0x40000
                v_lshlrev_b32 v1, 3, v0
                v_add_u32 v1, {S_T0}, v1
                v_mov_b32 v2, v{V_WSK}
                v_mov_b32 v3, v{V_WSV}
                buffer_store_dwordx2 v[2:3], v1, {SRD_WS}, 0 offen
                """)
            self.wait(); a("s_branch L_END")
        a(f"s_mov_b32 {S_XOUT}, {XT[2]}")
        self.outp_pre()
        self.wait(sleep0=22, adr=int(os.environ.get('AR_O','2')), adr0=int(os.environ.get('AR_O0','3')), adb=int(os.environ.get('AB_O','2'))); self.stamp()
        self.outp(); self.stamp()
        a(f"s_cmp_eq_u32 {S_LAYER}, 1\ns_cbranch_scc1 L_END")
        self.arrive(); self.stamp()
        if stop == 'out1':
            self.wait(); a("s_branch L_END")
        a(f"s_mov_b32 {S_LAYER}, 1\ns_branch L_LAYER\nL_END:")
        self.tsdump()
        a("L_EXIT:\ns_endpgm")
        body = a.finalize()
        hdr = open(os.path.join(os.path.dirname(os.path.abspath(__file__)), 'header.txt')).read()
        hdr = hdr.replace('@@LAUNCH@@', f'; @launch grid=(256,1,1) block=(256,1,1) lds={LDS_SIZE}')
        txt = hdr + f""".amdgcn_target "amdgcn-amd-amdhsa--gfx950"
.text
.globl {NAME}_kernel
.p2align 8
.type {NAME}_kernel,@function
{NAME}_kernel:
""" + body + f""".section .rodata,"a"
.p2align 6
.amdhsa_kernel {NAME}_kernel
  .amdhsa_next_free_vgpr 512
  .amdhsa_next_free_sgpr 102
  .amdhsa_accum_offset 256
  .amdhsa_group_segment_fixed_size 0
  .amdhsa_kernarg_size 104
  .amdhsa_user_sgpr_count 2
  .amdhsa_user_sgpr_kernarg_segment_ptr 1
  .amdhsa_system_sgpr_workgroup_id_x 1
.end_amdhsa_kernel
"""
        return txt

if __name__ == '__main__':
    import argparse
    ap = argparse.ArgumentParser()
    ap.add_argument('--stop', default=None)
    ap.add_argument('--ts', action='store_true')
    ap.add_argument('-o', default='k.s')
    args = ap.parse_args()
    g = Gen(stop=args.stop, ts=args.ts)
    t = g.build()
    open(args.o, 'w').write(t)
    print('instructions', g.a.count(), 'nops inserted', g.a.nnop, 'bytes', len(t))
```

```python
import sys, os, math
sys.path.insert(0, os.path.dirname(os.path.abspath(__file__)))
from asmgen import Asm

NAME = 'interleave_layers__ssm_conv_s4d__linear_attn_block__prompt'

CNT  = 0x0
ZR   = 0x30000
KVM  = [ZR, ZR + 32768]
ZZ   = [ZR + 65536, ZR + 98304]
ST3  = ZR + 131072
ZRSZ = 147456
ST1  = 0x1C000
GCNT = 0x20000
TS   = 0x80000
XT   = [0x100000, 0x300000, 0x500000, 0x700000]
PQ   = [0x900000, 0xB00000]
WQF  = 0xD00000
WOFG = 0xE80000
WS_SIZE = 0xF00000

L_WO = 0
L_KC = 65536
L_XL = 82432
L_MISC = L_XL + 65536
LDS_SIZE = 163840
L_U  = L_XL
L_Y  = L_XL + 18560
L_TA = L_XL
L_TB = L_XL + 9216
L_TW = L_XL + 46080
L_CT = L_XL + 18432
L_KD = L_XL + 28672
L_KVF = L_XL
L_O32 = L_XL + 17408
L_OT  = L_XL + 52224
L_S2R = L_MISC
L_S2M = L_MISC + 256
L_STG = L_MISC + 512

STPERM = True
INF = os.environ.get('INF', '')
TLBW = int(os.environ.get('TLBW', '0'))
TLBWARM = ('v_and_b32 v8, 15, v255' + chr(10) + '        v_lshlrev_b32 v8, 20, v8' + chr(10) + '        buffer_load_dword v197, v8, s[44:47], 0 offen') if TLBW == 1 else ''
TLBSH = 20
OUTWARM = ('v_and_b32 v8, 3, v255' + chr(10) + '        v_lshlrev_b32 v8, 19, v8' + chr(10) + '        buffer_load_dword v196, v8, s[56:59], 0 offen') if os.environ.get('OUTW','0') == '1' else ''
EARLYPF = ('v_lshlrev_b32 v198, 7, v0\n        global_load_dword v198, v198, s[66:67]' if os.environ.get('EARLY', '1') == '1' else '')
QSPLIT = int(os.environ.get('QSPLIT', '4'))
BMODE = os.environ.get('BMODE', 'adapt')
ADR = int(os.environ.get('ADR', '1'))
ADB = int(os.environ.get('ADB', '2'))
FLG = 0x24000
OUTF = os.environ.get('OUTF', '')
CODE_CHUNKS = int(os.environ.get('CODE_CHUNKS', '5'))
SLEEP = int(os.environ.get('SLEEP', '1' if os.environ.get('BMODE','adapt') == 'flag16' else '3'))
SLEEP0 = int(os.environ.get('SLEEP0', '14'))
SLEEPG = int(os.environ.get('SLEEPG', '6'))
LOG2E = 1.4426950408889634
def f2u(x):
    import struct
    return struct.unpack('<I', struct.pack('<f', x))[0]
def fx(x): return '0x%08x' % f2u(x)
def pk(r): return f"v[{r}:{r+1}]"
def v4(r): return f"v[{r}:{r+3}]"

S_ID='s2'; S_W='s3'; S_RT='s4'; S_CG='s5'; S_LAYER='s6'; S_TGT='s7'
SRD_WS='s[44:47]'; SRD_WQ='s[48:51]'; SRD_WO='s[52:55]'; SRD_OUT='s[56:59]'; SRD_X0='s[60:63]'
S_ONES='s64'
S_EXS='s[70:71]'
S_XIN='s72'; S_XOUT='s73'; S_ST='s74'; S_PQ='s75'; S_KV='s76'; S_Z='s77'
S_SPIN='s78'
S_T0='s8'; S_T1='s9'; S_T2='s10'; S_T3='s11'; S_T4='s12'; S_T5='s13'
S_DM='s14'; S_DS='s15'

V_LANE=255; V_WSK=254; V_WSV=252; V_WSQ=248
V_DSK1=246; V_DSK0=244
V_CNT=239; V_POLL=238; V_ONE=237
V_L16=243; V_H=242
V_TS=241; V_TS2=240
V_GCNT=235; V_POLL2=234; V_TGT=233
V_RANK=232
V_PT=236

WOF = 104
def weave(main, fill, per=2, lead=0):
    out = []; fi = 0
    for k, m in enumerate(main):
        out.append(m)
        if k >= lead:
            for _ in range(per):
                if fi < len(fill): out.append(fill[fi]); fi += 1
    out += fill[fi:]
    return out
def zipmerge(*lists):
    out = []
    n = max(len(l) for l in lists)
    for i in range(n):
        for l in lists:
            if i < len(l): out.append(l[i])
    return out
import re as _re
def unpk(ins):
    m = _re.match(r'v_pk_(mul|add|fma)_f32 v\[(\d+):\d+\], (.*)', ins)
    if not m: return [ins]
    op, d, rest = m.group(1), int(m.group(2)), m.group(3)
    srcs = [int(x) for x in _re.findall(r'v\[(\d+):\d+\]', rest)]
    n = len(srcs)
    hi = [1]*n
    mm = _re.search(r'op_sel_hi:\[([\d,]+)\]', rest)
    if mm: hi = [int(x) for x in mm.group(1).split(',')]
    assert 'op_sel:[' not in rest
    neg = [0]*n
    mm = _re.search(r'neg_lo:\[([\d,]+)\]', rest)
    if mm: neg = [int(x) for x in mm.group(1).split(',')]
    out = []
    for h in range(2):
        ops = []
        for i in range(n):
            r = srcs[i] + (h if hi[i] else 0)
            ops.append(('-' if neg[i] else '') + f'v{r}')
        out.append(f"v_{op}_f32 v{d+h}, " + ', '.join(ops))
    return out
def unpk_all(L):
    o = []
    for x in L: o += unpk(x)
    return o
def lines(s): return [t.strip() for t in s.split('\n') if t.strip()]

class Gen:
    def __init__(self, stop=None, ts=False):
        self.a = Asm(); self.stop = stop; self.ts = ts; self.tsn = 0
    def emit(self, lst):
        for x in lst: self.a(x)

    def stamp(self):
        if not self.ts: return
        n = self.tsn; self.tsn += 1
        self.a(f"""
        s_memrealtime s[80:81]
        s_lshl_b32 s82, {S_LAYER}, 5
        s_add_u32 m0, s82, {n}
        s_waitcnt lgkmcnt(0)
        v_writelane_b32 v{V_TS}, s80, m0
        """)
    def sub(self, i):
        if self.ts: self.a(f"s_memtime s[{86+2*i}:{87+2*i}]")
    def subflush(self, phase, n):
        if not self.ts: return
        a = self.a
        a(f"s_waitcnt lgkmcnt(0)\ns_lshl_b32 s82, {S_LAYER}, 5\ns_add_u32 m0, s82, {phase*8}")
        for i in range(n):
            a(f"v_writelane_b32 v{V_TS2}, s{86+2*i}, m0\ns_add_u32 m0, m0, 1\ns_nop 3")
    def tsdump(self):
        if not self.ts: return
        a = self.a; l = a.label('TD')
        if os.environ.get('DBGTS'):
            sel = [1,2,3,4,5,7,8,10,11,12, 32+4,32+5,32+7,32+8,32+10]
            a(f"""
            s_cmp_eq_u32 {S_ID}, 0
            s_cbranch_scc0 {l}
            s_cmp_eq_u32 {S_W}, 0
            s_cbranch_scc0 {l}
            v_readlane_b32 s80, v{V_TS}, 0
            """)
            for i, k in enumerate(sel):
                lane = k
                a(f"v_readlane_b32 s81, v{V_TS}, {lane}\ns_nop 3\ns_sub_u32 s81, s81, s80\nv_mov_b32 v1, s81\nv_mov_b32 v2, {4*(i+1)}\ns_mov_b64 exec, 1\nglobal_store_dword v2, v1, s[38:39]\ns_mov_b64 exec, -1")
            a(f"{l}:")
            return
        a(f"""
        s_cmp_eq_u32 {S_W}, 0
        s_cbranch_scc0 {l}
        s_lshl_b32 s82, {S_ID}, 9
        s_add_u32 s82, s82, {TS}
        v_lshlrev_b32 v1, 2, v{V_LANE}
        v_add_u32 v1, s82, v1
        buffer_store_dword v{V_TS}, v1, {SRD_WS}, 0 offen
        buffer_store_dword v{V_TS2}, v1, {SRD_WS}, 0 offen offset:256
        {l}:
        """)

    def arrive_core(self, finish=True):
        a = self.a
        if BMODE == 'flat':
            a(f"buffer_atomic_add v{V_ONE}, v{V_CNT}, {SRD_WS}, 0 offen sc1")
            return
        a(f"""
        v_mov_b32 v{V_RANK}, 1
        buffer_atomic_add v{V_RANK}, v{V_CNT}, {SRD_WS}, 0 offen sc0 sc1
        """)
        if finish: self.arrive_finish()
    def arrive_finish(self):
        a = self.a
        if BMODE == 'flag16':
            l = a.label('NL')
            a(f"""
            s_sub_u32 {S_T0}, {S_TGT}, 1
            s_waitcnt vmcnt(0)
            v_cmp_eq_u32 vcc, {S_T0}, v{V_RANK}
            s_cbranch_vccz {l}
            v_mov_b32 v{V_RANK}, {S_TGT}
            v_add_u32 v{V_PT}, {FLG - CNT}, v{V_CNT}
            buffer_store_dword v{V_RANK}, v{V_PT}, {SRD_WS}, 0 offen sc1
            {l}:
            """)
    def arrive(self):
        a = self.a; l = a.label('ARR')
        a(f"""
        s_waitcnt vmcnt(0) lgkmcnt(0)
        s_barrier
        s_add_u32 {S_TGT}, {S_TGT}, 16
        s_cmp_eq_u32 {S_W}, 0
        s_cbranch_scc0 {l}
        s_mov_b64 exec, 1
        """)
        self.arrive_core()
        a(f"""
        s_mov_b64 exec, -1
        {l}:
        """)
    def arrive_group(self):
        a = self.a; l = a.label('ARG')
        a(f"""
        s_waitcnt vmcnt(0) lgkmcnt(0)
        s_barrier
        s_cmp_eq_u32 {S_W}, 0
        s_cbranch_scc0 {l}
        s_mov_b64 exec, 1
        buffer_atomic_add v{V_ONE}, v{V_GCNT}, {SRD_WS}, 0 offen sc1
        s_mov_b64 exec, -1
        {l}:
        """)
    def wait_dual(self):
        a = self.a
        l = a.label('WT'); lp = a.label('POLL'); ld = a.label('PD')
        a(f"""
        s_cmp_eq_u32 {S_W}, 0
        s_cbranch_scc0 {l}
        s_add_u32 {S_T0}, {S_LAYER}, 1
        s_lshl_b32 {S_T0}, {S_T0}, 3
        v_mov_b32 v{V_TGT}, {S_TGT}
        v_mov_b32 v{V_PT}, {S_T0}
        v_cmp_eq_u32 vcc, 16, v{V_LANE}
        v_cndmask_b32 v{V_TGT}, v{V_TGT}, v{V_PT}, vcc
        s_mov_b64 exec, 0x1ffff
        s_mov_b32 {S_SPIN}, 0
        {('s_sleep ' + str(SLEEPG)) if SLEEPG else ''}
        {lp}:
        buffer_load_dword v{V_PT}, v{V_POLL2}, {SRD_WS}, 0 offen sc1
        s_add_u32 {S_SPIN}, {S_SPIN}, 1
        s_waitcnt vmcnt(0)
        v_cmp_gt_u32 vcc, v{V_TGT}, v{V_PT}
        s_cbranch_vccz {ld}
        {('s_sleep ' + str(SLEEP)) if SLEEP else ''}
        s_cmp_lt_u32 {S_SPIN}, 0x200000
        s_cbranch_scc1 {lp}
        {ld}:
        s_mov_b64 exec, -1
        {l}:
        s_barrier
        """)
    def wait(self, l0skip=False, sleep0=None, adr=None, adb=None, adr0=None):
        a = self.a
        l = a.label('WT'); lp = a.label('POLL'); ld = a.label('PD'); ls = a.label('NS')
        SLEEP0 = sleep0 if sleep0 is not None else globals()['SLEEP0']
        if BMODE == 'flat':
            pre = ((f's_cmp_eq_u32 {S_LAYER}, 0' + chr(10) + f's_cbranch_scc1 {lp}' + chr(10)) if l0skip else '') + (f's_sleep {SLEEP0}' if SLEEP0 else '')
        elif BMODE == 'flag16':
            pre = ''
        else:
            la = a.label('AD'); lb = a.label('AD')
            ADR = adr if adr is not None else globals()['ADR']; ADB = adb if adb is not None else globals()['ADB']
            adr0 = adr0 if adr0 is not None else ADR
            pre = f'''s_cmp_eq_u32 {S_LAYER}, 0
            s_cselect_b32 {S_T1}, {adr0}, {ADR}
            s_waitcnt vmcnt(0)
            v_readfirstlane_b32 {S_T0}, v{V_RANK}
            s_and_b32 {S_T0}, {S_T0}, 15
            s_sub_u32 {S_T0}, 15, {S_T0}
            s_mul_i32 {S_T0}, {S_T0}, {S_T1}
            s_add_u32 {S_T0}, {S_T0}, {ADB}
            {la}:
            s_sleep 1
            s_sub_u32 {S_T0}, {S_T0}, 1
            s_cmp_gt_i32 {S_T0}, 0
            s_cbranch_scc1 {la}'''
        a(f"""
        s_cmp_eq_u32 {S_W}, 0
        s_cbranch_scc0 {l}
        s_mov_b64 exec, 0xffff
        s_mov_b32 {S_SPIN}, 0
        {pre}
        {lp}:
        buffer_load_dword v{V_PT}, v{V_POLL}, {SRD_WS}, 0 offen {('offset:0' if BMODE != 'flag16' else '')} sc1
        s_add_u32 {S_SPIN}, {S_SPIN}, 1
        s_waitcnt vmcnt(0)
        v_cmp_gt_u32 vcc, {S_TGT}, v{V_PT}
        s_cbranch_vccz {ld}
        {('s_sleep ' + str(SLEEP)) if SLEEP else ''}
        s_cmp_lt_u32 {S_SPIN}, 0x200000
        s_cbranch_scc1 {lp}
        {ld}:
        s_mov_b64 exec, -1
        {l}:
        s_barrier
        """)

    def reduce_h(self, r, t):
        return lines(f"""
        v_mov_b32 v{t}, v{r}
        v_permlane16_swap_b32 v{r}, v{t}
        v_add_f32 v{r}, v{r}, v{t}
        v_mov_b32 v{t}, v{r}
        v_permlane32_swap_b32 v{r}, v{t}
        v_add_f32 v{r}, v{r}, v{t}
        """)
    def reduce16(self, r):
        return lines(f"""
        v_add_f32_dpp v{r}, v{r}, v{r} quad_perm:[1,0,3,2] row_mask:0xf bank_mask:0xf
        v_add_f32_dpp v{r}, v{r}, v{r} quad_perm:[2,3,0,1] row_mask:0xf bank_mask:0xf
        v_add_f32_dpp v{r}, v{r}, v{r} row_half_mirror row_mask:0xf bank_mask:0xf
        v_add_f32_dpp v{r}, v{r}, v{r} row_mirror row_mask:0xf bank_mask:0xf
        """)
    def ln_final1(self, sm, sq, r_out, mr_out, t):
        return lines(f"""
        v_mul_f32 v{t}, {fx(1/512)}, v{sm}
        v_mul_f32 v{t+1}, {fx(1/512)}, v{sq}
        v_fma_f32 v{t+1}, -v{t}, v{t}, v{t+1}
        v_cvt_pk_bf16_f32 v{t+2}, v{t}, v{t+1}
        v_lshlrev_b32 v{t}, 16, v{t+2}
        v_and_b32 v{t+1}, 0xffff0000, v{t+2}
        v_add_f32 v{t+1}, {fx(1e-5)}, v{t+1}
        v_cvt_pk_bf16_f32 v{t+1}, v{t+1}, v{t+1}
        v_and_b32 v{t+1}, 0xffff0000, v{t+1}
        v_sqrt_f32 v{t+1}, v{t+1}
        v_cvt_pk_bf16_f32 v{t+1}, v{t+1}, v{t+1}
        v_and_b32 v{t+1}, 0xffff0000, v{t+1}
        v_rcp_f32 v{r_out}, v{t+1}
        v_mul_f32 v{mr_out}, v{t}, v{r_out}
        """)

    def prologue(self):
        a = self.a
        a(f"""
        s_cmp_ge_u32 {S_ID}, 256
        s_cbranch_scc1 L_EXIT
        s_getpc_b64 s[66:67]
        s_load_dwordx16 s[16:31], s[0:1], 0
        s_load_dwordx8 s[32:39], s[0:1], 64
        s_load_dwordx2 s[40:41], s[0:1], 96
        {EARLYPF}
        v_and_b32 v{V_LANE}, 63, v0
        v_lshrrev_b32 v1, 6, v0
        v_and_b32 v{V_L16}, 15, v0
        v_bfe_u32 v{V_H}, v0, 4, 2
        v_readfirstlane_b32 {S_W}, v1
        s_and_b32 {S_T0}, {S_ID}, 7
        s_lshl_b32 {S_T0}, {S_T0}, 2
        s_lshr_b32 {S_T1}, {S_ID}, 6
        s_add_u32 {S_RT}, {S_T0}, {S_T1}
        s_lshr_b32 {S_CG}, {S_ID}, 3
        s_and_b32 {S_CG}, {S_CG}, 7
        s_mov_b32 {S_LAYER}, 0
        s_mov_b32 {S_TGT}, 0
        s_mov_b32 {S_ONES}, 0x3f803f80
        v_mov_b32 v{V_ONE}, 1
        s_and_b32 {S_T0}, {S_ID}, 15
        s_lshl_b32 {S_T0}, {S_T0}, 10
        v_mov_b32 v{V_CNT}, {S_T0}
        v_lshlrev_b32 v{V_POLL}, 10, v{V_LANE}
        v_add_u32 v{V_POLL}, {FLG if BMODE == 'flag16' else CNT}, v{V_POLL}
        s_waitcnt lgkmcnt(0)
        s_mov_b32 s60, s16
        s_and_b32 s61, s17, 0xffff
        s_mov_b32 s62, {2048*512*2}
        s_mov_b32 s63, 0x20000
        """)
    def prologue2(self):
        a = self.a
        a(f"""
        s_mov_b32 s44, s40
        s_and_b32 s45, s41, 0xffff
        s_mov_b32 s46, {WS_SIZE}
        s_mov_b32 s47, 0x20000
        s_mov_b32 s48, s32
        s_and_b32 s49, s33, 0xffff
        s_mov_b32 s50, {512*1536*2}
        s_mov_b32 s51, 0x20000
        s_mov_b32 s52, s34
        s_and_b32 s53, s35, 0xffff
        s_mov_b32 s54, {512*512*2}
        s_mov_b32 s55, 0x20000
        s_mov_b32 s56, s36
        s_and_b32 s57, s37, 0xffff
        s_mov_b32 s58, {2048*512*2}
        s_mov_b32 s59, 0x20000
        s_lshl_b32 {S_T0}, {S_RT}, 10
        s_add_u32 {S_T0}, {S_T0}, {GCNT}
        v_mov_b32 v{V_GCNT}, {S_T0}
        v_cmp_eq_u32 vcc, 16, v{V_LANE}
        v_cndmask_b32 v{V_POLL2}, v{V_POLL}, v{V_GCNT}, vcc
        """)

    def dma_weight(self, srd, rowpitch, colbyte, lds_base, swz, t, defer=False):
        a = self.a
        a(f"""
        v_lshrrev_b32 v{t}, 3, v{V_LANE}
        v_mul_u32_u24 v{t}, {rowpitch}, v{t}
        v_bfe_u32 v{t+1}, v{V_LANE}, 1, 2
        v_bfe_u32 v{t+2}, v{V_LANE}, 4, 1
        """)
        if swz == 'x':
            a(f"s_and_b32 {S_T0}, {S_W}, 1\ns_lshl_b32 {S_T0}, {S_T0}, 1\nv_or_b32 v{t+2}, {S_T0}, v{t+2}")
        else:
            a(f"v_lshlrev_b32 v{t+2}, 1, v{t+2}")
        a(f"""
        v_xor_b32 v{t+1}, v{t+1}, v{t+2}
        v_lshl_add_u32 v{t}, v{t+1}, 5, v{t}
        v_and_b32 v{t+1}, 1, v{V_LANE}
        v_lshl_add_u32 v{t}, v{t+1}, 4, v{t}
        s_lshl_b32 {S_T0}, {S_CG}, 7
        s_add_u32 {S_T0}, {S_T0}, {colbyte}
        v_add_u32 v{t}, {S_T0}, v{t}
        s_mul_i32 {S_DS}, {S_W}, {8*rowpitch}
        s_lshl_b32 {S_DM}, {S_W}, 10
        s_add_u32 {S_DM}, {S_DM}, {lds_base}
        """)
        groups = [lines(f"""
            s_mov_b32 m0, {S_DM}
            s_add_u32 {S_DM}, {S_DM}, 4096
            buffer_load_dwordx4 v{t}, {srd}, {S_DS} offen lds
            s_add_u32 {S_DS}, {S_DS}, {32*rowpitch}
            """) for i in range(16)]
        if defer: return groups
        for g in groups: self.emit(g)

    def wread_lists(self, lds_base, abase, part, t, o):
        rd = lines(f"""
        v_lshrrev_b32 v{t}, 2, v{V_L16}
        v_lshl_add_u32 v{t+1}, v{V_H}, 3, v{t}
        v_lshlrev_b32 v{t+1}, 7, v{t+1}
        v_and_b32 v{t+2}, 3, v{V_L16}
        v_lshl_add_u32 v{t+1}, v{t+2}, 3, v{t+1}
        v_add_u32 v{t+1}, {lds_base}, v{t+1}
        v_lshrrev_b32 v{t}, 1, v{t}
        v_and_b32 v{t+2}, 1, v{V_H}
        v_lshl_or_b32 v{t}, v{t+2}, 1, v{t}
        v_xor_b32 v{t}, {S_W}, v{t}
        v_lshl_add_u32 v{t+3}, v{t}, 5, v{t+1}
        """)
        for i in range(4): rd.append(f"v_mov_b32 v{o+i}, {S_ONES}")
        for ks in range(16):
            rd.append(f"ds_read_b64_tr_b16 a[{abase+4*ks}:{abase+4*ks+1}], v{t+3} offset:{ks*4096}")
            rd.append(f"ds_read_b64_tr_b16 a[{abase+4*ks+2}:{abase+4*ks+3}], v{t+3} offset:{ks*4096+512}")
        mf = []
        for ks in range(16):
            c = '0' if ks == 0 else v4(o+4)
            w = f"a[{abase+4*ks}:{abase+4*ks+3}]"
            if part == 0: mf.append(f"v_mfma_f32_16x16x32_bf16 {v4(o+4)}, {w}, {v4(o)}, {c}")
            else: mf.append(f"v_mfma_f32_16x16x32_bf16 {v4(o+4)}, {v4(o)}, {w}, {c}")
        if part == 0: mf += [f"v_mov_b32 v{V_WSQ+i}, v{o+4+i}" for i in range(4)]
        elif part == 1: mf.append(f"v_mov_b32 v{V_WSK}, v{o+4}")
        else: mf.append(f"v_mov_b32 v{V_WSV}, v{o+4}")
        return rd, mf

    def p0(self):
        a = self.a
        a(f"""
        v_lshrrev_b32 v1, 3, v0
        s_lshl_b32 {S_T0}, {S_RT}, 16
        s_lshl_b32 {S_T1}, {S_CG}, 7
        s_add_u32 {S_T0}, {S_T0}, {S_T1}
        v_lshlrev_b32 v2, 10, v1
        v_and_b32 v3, 7, v0
        v_lshl_add_u32 v2, v3, 4, v2
        v_add_u32 v2, {S_T0}, v2
        buffer_load_dwordx4 v[10:13], v2, {SRD_X0}, 0 offen {INF}
        v_add_u32 v4, 0x8000, v2
        buffer_load_dwordx4 v[14:17], v4, {SRD_X0}, 0 offen {INF}
        s_and_b32 {S_T0}, {S_ID}, 63
        s_lshl_b32 {S_T0}, {S_T0}, 2
        s_add_u32 {S_T0}, {S_T0}, {S_W}
        s_lshl_b32 {S_T0}, {S_T0}, 3
        s_lshr_b32 {S_T1}, {S_ID}, 6
        s_lshl_b32 {S_T1}, {S_T1}, 1
        s_add_u32 {S_T0}, {S_T0}, {S_T1}
        s_lshl_b32 {S_T0}, {S_T0}, 10
        v_lshlrev_b32 v5, 4, v{V_LANE}
        v_add_u32 v5, {S_T0}, v5
        buffer_load_dwordx4 v[18:21], v5, {SRD_X0}, 0 offen {INF}
        buffer_load_dwordx4 v[22:25], v5, {SRD_X0}, 0 offen offset:1024 {INF}
        s_lshl_b32 {S_T0}, {S_ID}, 9
        v_lshlrev_b32 v6, 1, v0
        v_add_u32 v6, {S_T0}, v6
        global_load_ushort v26, v6, s[18:19] {INF}
        global_load_ushort v27, v6, s[20:21] {INF}
        global_load_ushort v28, v6, s[22:23] {INF}
        global_load_ushort v29, v6, s[24:25] {INF}
        v_lshrrev_b32 v7, 7, v0
        s_lshl_b32 {S_T0}, {S_ID}, 1
        v_add_lshl_u32 v7, v7, {S_T0}, 1
        global_load_ushort v30, v7, s[26:27] {INF}
        s_lshl_b32 {S_T0}, {S_ID}, 2
        v_mov_b32 v7, {S_T0}
        global_load_dword v{V_DSK0}, v7, s[28:29] {INF}
        """)
        self.prologue2()
        a(f"""
        {TLBWARM}
        {OUTWARM}
        """)
        lw = a.label('WT'); lw2 = a.label('WT')
        a(f"""
        s_and_b32 {S_T2}, {S_ID}, 7
        s_cmp_lt_u32 {S_ID}, 192
        s_cbranch_scc0 {lw}
        s_lshr_b32 {S_T3}, {S_ID}, 3
        s_mul_i32 {S_T0}, {S_T2}, {64*3072}
        s_lshl_b32 {S_T1}, {S_T3}, 7
        s_add_u32 {S_T0}, {S_T0}, {S_T1}
        v_mul_u32_u24 v8, 3072, v1
        v_lshl_add_u32 v8, v3, 4, v8
        v_add_u32 v8, {S_T0}, v8
        buffer_load_dwordx4 v[200:203], v8, {SRD_WQ}, 0 offen {INF}
        v_add_u32 v8, {32*3072}, v8
        buffer_load_dwordx4 v[204:207], v8, {SRD_WQ}, 0 offen {INF}
        s_branch {lw2}
        {lw}:
        s_sub_u32 {S_T3}, {S_ID}, 192
        s_lshr_b32 {S_T3}, {S_T3}, 3
        s_lshl_b32 {S_T0}, {S_T2}, 16
        s_lshl_b32 {S_T1}, {S_T3}, 7
        s_add_u32 {S_T0}, {S_T0}, {S_T1}
        v_lshlrev_b32 v8, 10, v1
        v_lshl_add_u32 v8, v3, 4, v8
        v_add_u32 v8, {S_T0}, v8
        buffer_load_dwordx4 v[200:203], v8, {SRD_WO}, 0 offen {INF}
        v_add_u32 v8, 0x8000, v8
        buffer_load_dwordx4 v[204:207], v8, {SRD_WO}, 0 offen {INF}
        {lw2}:
        """)
        l = a.label('CI')
        a(f"""
        s_cmp_lt_u32 {S_ID}, 16
        s_cbranch_scc0 {l}
        s_cmp_eq_u32 {S_W}, 0
        s_cbranch_scc0 {l}
        s_mov_b64 exec, 1
        v_mov_b32 v8, 0
        buffer_store_dword v8, v{V_CNT}, {SRD_WS}, 0 offen sc1
        v_add_u32 v9, {FLG - CNT}, v{V_CNT}
        buffer_store_dword v8, v9, {SRD_WS}, 0 offen sc1
        s_mov_b64 exec, -1
        {l}:
        """)
        IDX = 180
        a(f"v_lshlrev_b32 v31, 3, v0\nv_sub_u32 v31, 2047, v31\ns_mov_b32 {S_T5}, {L_KD}")
        chains = []
        for i in range(0, 10, 2):
            t = 32 + 4*(i//2)
            c = lines(f"""
            v_subrev_u32 v{t}, {i}, v31
            v_subrev_u32 v{t+1}, {i+1}, v31
            v_max_i32 v{t}, 0, v{t}
            v_max_i32 v{t+1}, 0, v{t+1}
            v_cvt_f32_i32 v{t}, v{t}
            v_cvt_f32_i32 v{t+1}, v{t+1}
            v_cvt_pk_bf16_f32 v{t+2}, v{t}, v{t+1}
            v_lshlrev_b32 v{t}, 16, v{t+2}
            v_and_b32 v{t+1}, 0xffff0000, v{t+2}
            v_cvt_u32_f32 v{t}, v{t}
            v_cvt_u32_f32 v{t+1}, v{t+1}
            v_lshrrev_b32 v{t+2}, 2, v{t}
            v_lshrrev_b32 v{t+3}, 2, v{t+1}
            v_add_u32 v{t+2}, 384, v{t+2}
            v_add_u32 v{t+3}, 384, v{t+3}
            v_min_u32 v{t}, v{t}, v{t+2}
            v_min_u32 v{t+1}, v{t+1}, v{t+3}
            v_lshrrev_b32 v{t+2}, 5, v{t}
            v_lshrrev_b32 v{t+3}, 5, v{t+1}
            v_add_u32 v{t}, v{t}, v{t+2}
            v_add_u32 v{t+1}, v{t+1}, v{t+3}
            v_lshl_add_u32 v{IDX+i}, v{t}, 2, {S_T5}
            """)
            if i + 1 < 9: c.append(f"v_lshl_add_u32 v{IDX+i+1}, v{t+1}, 2, {S_T5}")
            chains.append(c)
        self.emit(zipmerge(*chains))
        a(f"""
        v_mul_u32_u24 v8, 144, v1
        v_lshl_add_u32 v8, v3, 4, v8
        v_add_u32 v9, {L_TW}, v8
        v_add_u32 v8, {L_TA}, v8
        s_waitcnt vmcnt({10 + (1 if OUTWARM else 0) + (1 if TLBWARM else 0)})
        ds_write_b128 v8, v[10:13]
        ds_write_b128 v8, v[14:17] offset:{32*144}
        s_waitcnt vmcnt({8 + (1 if OUTWARM else 0) + (1 if TLBWARM else 0)})
        """)
        for r in range(32, 36): a(f"v_mov_b32 v{r}, 0")
        for j in range(4):
            for row in range(2):
                b = 18 + 4*row; sm = 32 + 2*row
                a(f"v_dot2_f32_bf16 v{sm}, v{b+j}, {S_ONES}, v{sm}\nv_dot2_f32_bf16 v{sm+1}, v{b+j}, v{b+j}, v{sm+1}")
        self.emit(zipmerge(*[self.reduce16(r) for r in range(32, 36)]))
        self.emit(zipmerge(*[self.reduce_h(r, 36 + (r-32)) for r in range(32, 36)]))
        a(f"""
        s_lshl_b32 {S_T0}, {S_W}, 4
        s_add_u32 {S_T0}, {S_T0}, {L_STG}
        v_mov_b32 v36, {S_T0}
        ds_write_b128 v36, v[32:35]
        s_waitcnt vmcnt(0)
        ds_write_b128 v9, v[200:203]
        ds_write_b128 v9, v[204:207] offset:{32*144}
        s_cmp_lt_u32 {S_ID}, 16
        s_cbranch_scc0 L_CI2
        s_cmp_eq_u32 {S_W}, 0
        s_cbranch_scc0 L_CI2
        s_mov_b64 exec, 1
        v_mov_b32 v37, 0
        global_atomic_add v37, v{V_ONE}, s[38:39] sc1
        s_mov_b64 exec, -1
        L_CI2:
        v_lshrrev_b32 v9, 2, v{V_L16}
        v_lshl_add_u32 v9, v{V_H}, 3, v9
        v_mul_u32_u24 v9, 144, v9
        v_and_b32 v2, 3, v{V_L16}
        v_lshl_add_u32 v9, v2, 3, v9
        s_lshl_b32 {S_T0}, {S_W}, 5
        s_add_u32 {S_T0}, {S_T0}, {L_TA}
        v_add_u32 v9, {S_T0}, v9
        s_lshl_b32 {S_T0}, {S_W}, 4
        v_add_u32 v2, {S_T0}, v{V_L16}
        v_mul_u32_u24 v2, 144, v2
        v_lshl_add_u32 v2, v{V_H}, 4, v2
        v_add_u32 v2, {L_TB}, v2
        s_waitcnt lgkmcnt(0)
        s_barrier
        ds_read_b64_tr_b16 v[10:11], v9
        ds_read_b64_tr_b16 v[12:13], v9 offset:{4*144}
        ds_read_b64_tr_b16 v[14:15], v9 offset:{32*144}
        ds_read_b64_tr_b16 v[16:17], v9 offset:{36*144}
        """)
        lz = a.label('WF'); lz2 = a.label('WF')
        a(f"""
        s_cmp_lt_u32 {S_ID}, 192
        s_cbranch_scc0 {lz}
        v_add_u32 v8, {L_TW - L_TA}, v9
        ds_read_b64_tr_b16 v[200:201], v8
        ds_read_b64_tr_b16 v[202:203], v8 offset:{4*144}
        ds_read_b64_tr_b16 v[204:205], v8 offset:{32*144}
        ds_read_b64_tr_b16 v[206:207], v8 offset:{36*144}
        s_lshr_b32 {S_T0}, {S_T3}, 3
        s_lshl_b32 {S_T0}, {S_T0}, 19
        s_and_b32 {S_T1}, {S_T3}, 7
        s_lshl_b32 {S_T1}, {S_T1}, 2
        s_add_u32 {S_T1}, {S_T1}, {S_W}
        s_lshl_b32 {S_T1}, {S_T1}, 14
        s_add_u32 {S_T0}, {S_T0}, {S_T1}
        s_lshl_b32 {S_T1}, {S_T2}, 11
        s_add_u32 {S_T0}, {S_T0}, {S_T1}
        s_add_u32 {S_T0}, {S_T0}, {WQF}
        s_branch {lz2}
        {lz}:
        v_lshrrev_b32 v8, 2, v{V_L16}
        v_lshrrev_b32 v7, 1, v{V_H}
        v_lshl_add_u32 v8, v7, 2, v8
        s_lshl_b32 {S_T0}, {S_W}, 4
        v_add_u32 v8, {S_T0}, v8
        v_mul_u32_u24 v8, 144, v8
        v_and_b32 v7, 1, v{V_H}
        v_lshl_add_u32 v8, v7, 5, v8
        v_and_b32 v7, 3, v{V_L16}
        v_lshl_add_u32 v8, v7, 3, v8
        v_add_u32 v8, {L_TW}, v8
        ds_read_b64_tr_b16 v[200:201], v8
        ds_read_b64_tr_b16 v[202:203], v8 offset:{8*144}
        ds_read_b64_tr_b16 v[204:205], v8 offset:64
        ds_read_b64_tr_b16 v[206:207], v8 offset:{8*144+64}
        s_lshl_b32 {S_T0}, {S_T3}, 16
        s_lshl_b32 {S_T1}, {S_T2}, 2
        s_add_u32 {S_T1}, {S_T1}, {S_W}
        s_lshl_b32 {S_T1}, {S_T1}, 11
        s_add_u32 {S_T0}, {S_T0}, {S_T1}
        s_add_u32 {S_T0}, {S_T0}, {WOFG}
        {lz2}:
        v_lshlrev_b32 v7, 4, v{V_LANE}
        v_add_u32 v7, {S_T0}, v7
        v_mul_u32_u24 v9, 144, v1
        v_lshl_add_u32 v9, v3, 4, v9
        v_add_u32 v9, {L_TB}, v9
        s_lshl_b32 {S_T0}, {S_CG}, 18
        s_lshl_b32 {S_T1}, {S_RT}, 7
        s_add_u32 {S_T0}, {S_T0}, {S_T1}
        s_add_u32 {S_T0}, {S_T0}, {XT[0]}
        v_lshlrev_b32 v4, 12, v1
        v_lshl_add_u32 v4, v3, 4, v4
        v_add_u32 v4, {S_T0}, v4
        v_add_u32 v5, 0x20000, v4
        s_waitcnt lgkmcnt(0)
        ds_write_b128 v2, v[10:13]
        ds_write_b128 v2, v[14:17] offset:64
        buffer_store_dwordx4 v[200:203], v7, {SRD_WS}, 0 offen sc1
        buffer_store_dwordx4 v[204:207], v7, {SRD_WS}, 0 offen offset:1024 sc1
        v_mov_b32 v6, 0
        s_waitcnt lgkmcnt(0)
        s_barrier
        ds_read_b128 v[10:13], v9
        ds_read_b128 v[14:17], v9 offset:{32*144}
        s_waitcnt lgkmcnt(0)
        buffer_store_dwordx4 v[10:13], v4, {SRD_WS}, 0 offen sc1
        buffer_store_dwordx4 v[14:17], v5, {SRD_WS}, 0 offen sc1
        global_load_dword v{V_PT}, v6, s[38:39] sc1
        """)
        l1 = a.label('Z1'); l2 = a.label('Z2')
        a(f"""
        s_cmp_eq_u32 {S_W}, 1
        s_cbranch_scc0 {l1}
        s_mov_b32 exec_lo, -1
        s_mov_b32 exec_hi, 0xf
        v_mov_b32 v10, 0
        v_mov_b32 v11, 0
        v_mov_b32 v12, 0
        v_mov_b32 v13, 0
        s_mul_i32 {S_T0}, {S_ID}, 576
        s_add_u32 {S_T0}, {S_T0}, {ZR}
        v_lshlrev_b32 v4, 4, v{V_LANE}
        v_add_u32 v4, {S_T0}, v4
        buffer_store_dwordx4 v[10:13], v4, {SRD_WS}, 0 offen sc1
        s_mov_b64 exec, -1
        {l1}:
        s_cmp_eq_u32 {S_W}, 2
        s_cbranch_scc0 {l2}
        s_mov_b64 exec, 0xf
        v_lshlrev_b32 v4, 4, v{V_LANE}
        v_add_u32 v5, {L_STG}, v4
        ds_read_b128 v[10:13], v5
        s_lshl_b32 {S_T0}, {S_ID}, 6
        s_add_u32 {S_T0}, {S_T0}, {ST1}
        v_add_u32 v4, {S_T0}, v4
        s_waitcnt lgkmcnt(0)
        buffer_store_dwordx4 v[10:13], v4, {SRD_WS}, 0 offen sc1
        s_mov_b64 exec, -1
        {l2}:
        """)
        self.stamp()
        self.kgen_consts()
        a("s_waitcnt lgkmcnt(0)\ns_barrier")
        self.sub(0)
        self.sub(1)
        self.kgen_main(IDX)
        self.sub(6)
        self.subflush(3, 7)
        self.stamp()

    def arrive_first(self):
        a = self.a
        la = a.label('ARR1'); lp = a.label('INITP'); ld = a.label('INITD')
        a(f"""
        s_waitcnt vmcnt(0)
        s_barrier
        s_add_u32 {S_TGT}, {S_TGT}, 16
        s_cmp_eq_u32 {S_W}, 0
        s_cbranch_scc0 {la}
        s_mov_b64 exec, 1
        s_mov_b32 {S_SPIN}, 0
        v_mov_b32 v6, 0
        {lp}:
        v_cmp_le_u32 vcc, 16, v{V_PT}
        s_cbranch_vccnz {ld}
        global_load_dword v{V_PT}, v6, s[38:39] sc1
        s_add_u32 {S_SPIN}, {S_SPIN}, 1
        s_waitcnt vmcnt(0)
        s_cmp_lt_u32 {S_SPIN}, 0x200000
        s_cbranch_scc1 {lp}
        {ld}:
        """)
        self.arrive_core(finish=False)
        a(f"""
        s_mov_b64 exec, -1
        {la}:
        """)

    def cexp(self, p, dr, di, t):
        return lines(f"""
        v_mul_f32 v{t}, {fx(p)}, v40
        v_mul_f32 v{t+1}, {fx(p)}, v41
        v_exp_f32 v{t}, v{t}
        v_fract_f32 v{t+1}, v{t+1}
        v_cos_f32 v{t+2}, v{t+1}
        v_sin_f32 v{t+1}, v{t+1}
        v_mul_f32 v{dr}, v{t}, v{t+2}
        v_mul_f32 v{di}, v{t}, v{t+1}
        """)

    def kgen_consts(self):
        a = self.a
        a(f"""
        v_and_b32 v{V_DSK1}, 0xffff0000, v{V_DSK0}
        v_lshlrev_b32 v{V_DSK0}, 16, v{V_DSK0}
        v_lshlrev_b32 v26, 16, v26
        v_lshlrev_b32 v30, 16, v30
        v_lshlrev_b32 v27, 16, v27
        v_lshlrev_b32 v28, 16, v28
        v_mul_f32 v30, {fx(LOG2E)}, v30
        v_mul_f32 v26, {fx(LOG2E)}, v26
        v_lshlrev_b32 v29, 16, v29
        v_exp_f32 v30, v30
        v_exp_f32 v26, v26
        v_cvt_pk_bf16_f32 v31, v30, v26
        v_lshlrev_b32 v30, 16, v31
        v_and_b32 v26, 0xffff0000, v31
        v_mul_f32 v40, v26, v30
        v_mul_f32 v41, v27, v30
        v_mul_f32 v42, v28, v30
        v_mul_f32 v43, v29, v30
        v_mul_f32 v40, {fx(-LOG2E)}, v40
        v_mul_f32 v41, {fx(1/(2*math.pi))}, v41
        v_add_f32 v42, v42, v42
        v_add_f32 v43, v43, v43
        v_rndne_f32 v31, v41
        v_sub_f32 v41, v41, v31
        """)
        ch = []
        for i, p in enumerate((256.0, 512.0, 1536.0)):
            t = 52 + 6*i; d = 44 + 2*i
            c = self.cexp(p, t+3, t+4, t)
            c += lines(f"""
            v_mul_f32 v{d}, v42, v{t+3}
            v_mul_f32 v{d+1}, v42, v{t+4}
            v_fma_f32 v{d}, -v43, v{t+4}, v{d}
            v_fma_f32 v{d+1}, v43, v{t+3}, v{d+1}
            """)
            ch.append(c)
        self.emit(zipmerge(*ch))
        a(f"""
        v_lshrrev_b32 v1, 7, v0
        v_mul_u32_u24 v1, 5120, v1
        v_and_b32 v2, 127, v0
        v_lshl_add_u32 v1, v2, 2, v1
        v_add_u32 v1, {L_CT}, v1
        """)
        for q in range(10): a(f"ds_write_b32 v1, v{40+q} offset:{q*512}")

    def kgen_main(self, IDX):
        a = self.a
        a(f"""
        s_lshr_b32 {S_T0}, {S_W}, 1
        s_mul_i32 {S_T0}, {S_T0}, 5120
        s_and_b32 {S_T1}, {S_W}, 1
        s_lshl_b32 {S_T1}, {S_T1}, 8
        s_add_u32 {S_T0}, {S_T0}, {S_T1}
        s_add_u32 {S_T0}, {S_T0}, {L_CT}
        v_lshlrev_b32 v1, 4, v{V_H}
        v_add_u32 v1, {S_T0}, v1
        v_cvt_f32_u32 v2, v{V_L16}
        v_mov_b32 v3, v2
        """)
        ACC = 160
        def kstep(B, off, first):
            Q = lambda q: B + 4*q
            FR, FI, T0, T1 = B+40, B+44, B+48, B+52
            A0, A1, F0F, F2F = B+56, B+60, B+64, B+68
            rd = [f"ds_read_b128 {v4(Q(q))}, v1 offset:{q*512 + off}" for q in range(10)]
            L = []
            for h in (0, 2):
                L.append(f"v_pk_mul_f32 {pk(T0+h)}, {pk(Q(0)+h)}, v[2:3]")
                L.append(f"v_pk_mul_f32 {pk(T1+h)}, {pk(Q(1)+h)}, v[2:3]")
            for i in range(4):
                L.append(f"v_exp_f32 v{T0+i}, v{T0+i}")
            for i in range(4):
                L.append(f"v_cos_f32 v{FR+i}, v{T1+i}")
                L.append(f"v_sin_f32 v{FI+i}, v{T1+i}")
            for h in (0, 2):
                L.append(f"v_pk_mul_f32 {pk(FR+h)}, {pk(FR+h)}, {pk(T0+h)}")
                L.append(f"v_pk_mul_f32 {pk(FI+h)}, {pk(FI+h)}, {pk(T0+h)}")
            def packF(dst):
                L.extend([f"v_cvt_pk_bf16_f32 v{dst}, v{FR}, v{FR+1}", f"v_cvt_pk_bf16_f32 v{dst+1}, v{FR+2}, v{FR+3}",
                          f"v_cvt_pk_bf16_f32 v{dst+2}, v{FI}, v{FI+1}", f"v_cvt_pk_bf16_f32 v{dst+3}, v{FI+2}, v{FI+3}"])
            def sq():
                for h in (0, 2):
                    L.append(f"v_pk_mul_f32 {pk(T0+h)}, {pk(FI+h)}, {pk(FI+h)}")
                    L.append(f"v_pk_mul_f32 {pk(T1+h)}, {pk(FR+h)}, {pk(FI+h)}")
                for h in (0, 2):
                    L.append(f"v_pk_fma_f32 {pk(FR+h)}, {pk(FR+h)}, {pk(FR+h)}, {pk(T0+h)} neg_lo:[0,0,1] neg_hi:[0,0,1]")
                    L.append(f"v_pk_add_f32 {pk(FI+h)}, {pk(T1+h)}, {pk(T1+h)}")
            def gmul(q, dst):
                cr, ci = Q(q), Q(q+1)
                for h in (0, 2):
                    L.append(f"v_pk_mul_f32 {pk(T0+h)}, {pk(ci+h)}, {pk(FI+h)}")
                    L.append(f"v_pk_mul_f32 {pk(T1+h)}, {pk(ci+h)}, {pk(FR+h)}")
                for h in (0, 2):
                    L.append(f"v_pk_fma_f32 {pk(T0+h)}, {pk(cr+h)}, {pk(FR+h)}, {pk(T0+h)} neg_lo:[0,0,1] neg_hi:[0,0,1]")
                    L.append(f"v_pk_fma_f32 {pk(T1+h)}, {pk(cr+h)}, {pk(FI+h)}, {pk(T1+h)} neg_lo:[1,0,1] neg_hi:[1,0,1]")
                L.extend([f"v_cvt_pk_bf16_f32 v{dst}, v{T0}, v{T0+1}", f"v_cvt_pk_bf16_f32 v{dst+1}, v{T0+2}, v{T0+3}",
                          f"v_cvt_pk_bf16_f32 v{dst+2}, v{T1}, v{T1+1}", f"v_cvt_pk_bf16_f32 v{dst+3}, v{T1+2}, v{T1+3}"])
            def mm(T, A, F):
                c = '0' if first else v4(ACC+4*T)
                L.append(f"v_mfma_f32_16x16x32_bf16 {v4(ACC+4*T)}, {v4(A)}, {v4(F)}, {c}")
            packF(F0F); sq(); sq(); packF(F2F); sq(); sq()
            gmul(2, A0); mm(0, A0, F0F); gmul(4, A1); mm(1, A1, F0F)
            sq(); sq()
            gmul(6, A0); mm(2, A0, F2F); gmul(8, A1); mm(3, A1, F2F)
            return rd, L
        BA, BB = 8, 84
        def sprinkle(L, groups):
            step = max(1, len(L) // (len(groups) + 1)); out = []
            for i, x in enumerate(L):
                out.append(x)
                if groups and (i + 1) % step == 0: out += groups.pop(0)
            for g in groups: out += g
            return out
        for i in range(16): a(f"v_mov_b32 v{ACC+i}, 0")
        lk = a.label('KG'); lk2 = a.label('KG')
        a(f"s_mov_b32 {S_T4}, 0\n{lk}:")
        rdA, LA = kstep(BA, 0, False)
        rdB, LB = kstep(BB, 64, False)
        self.emit(rdA[:2] + rdB[:2] + rdA[2:] + rdB[2:])
        a("s_waitcnt lgkmcnt(15)")
        n_pre = 4+4+8+4 + 4+16+4+16
        self.emit(zipmerge(LA[:n_pre], LB[:n_pre]))
        a("s_waitcnt lgkmcnt(0)")
        self.emit(zipmerge(LA[n_pre:], LB[n_pre:]))
        a(f"v_add_u32 v1, 128, v1\ns_cmp_eq_u32 {S_T4}, 0\ns_cbranch_scc0 {lk2}")
        self.arrive_first()
        self.stamp()
        a(f"s_mov_b32 {S_T4}, 1\ns_branch {lk}\n{lk2}:\ns_nop 7")
        lf = a.label('AF')
        a(f"s_cmp_eq_u32 {S_W}, 0\ns_cbranch_scc0 {lf}\ns_mov_b64 exec, 1")
        self.arrive_finish()
        a(f"s_mov_b64 exec, -1\n{lf}:")
        self.sub(2)
        a(f"""
        s_lshr_b32 {S_T0}, {S_W}, 1
        s_mul_i32 {S_T0}, {S_T0}, 4224
        s_and_b32 {S_T1}, {S_W}, 1
        s_mul_i32 {S_T1}, {S_T1}, 8448
        s_add_u32 {S_T0}, {S_T0}, {S_T1}
        s_add_u32 {S_T0}, {S_T0}, {L_KD}
        v_mul_u32_u24 v1, 264, v{V_H}
        v_lshl_add_u32 v1, v{V_L16}, 2, v1
        v_add_u32 v1, {S_T0}, v1
        """)
        for T in range(4):
            for r in range(4):
                a(f"ds_write_b32 v1, v{ACC+4*T+r} offset:{1056*T+64*r+4*(r>>1)}")
        a("s_waitcnt vmcnt(0) lgkmcnt(0)\ns_barrier")
        self.sub(3)
        VAL = 8
        for part in range(2):
            for ch in range(2):
                for i in range(9):
                    a(f"ds_read_b32 v{VAL+18*part+9*ch+i}, v{IDX+i} offset:{8448*part + 4224*ch}")
        a(f"""
        v_cmp_ne_u32 vcc, 255, v0
        v_lshlrev_b32 v1, 4, v0
        v_add_u32 v1, {L_KC + 8}, v1
        s_waitcnt lgkmcnt(0)
        """)
        for i in range(18): a(f"v_add_f32 v{VAL+i}, v{VAL+i}, v{VAL+18+i}")
        a(f"v_cndmask_b32 v{VAL+8}, 0, v{VAL+8}, vcc\nv_cndmask_b32 v{VAL+17}, 0, v{VAL+17}, vcc")
        self.sub(4)
        for ch in range(2):
            for m0 in range(2):
                o = 80 + 4*(2*ch+m0)
                s0 = VAL + 9*ch + (1 - m0)
                for p in range(4): a(f"v_cvt_pk_bf16_f32 v{o+p}, v{s0+2*p}, v{s0+2*p+1}")
                a(f"ds_write_b64 v1, {pk(o)} offset:{ch*8448+m0*4224}")
                a(f"ds_write_b64 v1, {pk(o+2)} offset:{ch*8448+m0*4224+8}")
        a(f"""
        v_cmp_gt_u32 vcc, 14, v{V_L16}
        v_mul_u32_u24 v1, 4224, v{V_H}
        v_lshl_add_u32 v1, v{V_L16}, 2, v1
        v_add_u32 v1, {L_KC + 4104}, v1
        v_mov_b32 v2, 0
        s_cmp_eq_u32 {S_W}, 0
        s_cselect_b64 {S_EXS}, vcc, 0
        s_mov_b64 exec, {S_EXS}
        ds_write_b32 v1, v2
        s_mov_b64 exec, -1
        s_waitcnt lgkmcnt(0)
        """)
        self.sub(5)
        a("s_barrier")

    def wfrag_loads(self):
        setup = lines(f"""
        s_lshl_b32 {S_T0}, {S_CG}, 2
        s_add_u32 {S_T0}, {S_T0}, {S_W}
        s_lshl_b32 {S_T0}, {S_T0}, 14
        s_add_u32 s79, {S_T0}, {WQF}
        s_add_u32 {S_DS}, s79, {1 << 19}
        v_lshlrev_b32 v18, 4, v{V_LANE}
        """)
        groups = []
        for p in (1, 2):
            for ks in range(16):
                g = [f"buffer_load_dwordx4 a[{64*p+4*ks}:{64*p+4*ks+3}], v18, {SRD_WS}, {S_DS} offen sc1"]
                g.append(f"s_add_u32 {S_DS}, {S_DS}, {1024 if ks < 15 else (1 << 19) - 15*1024}")
                groups.append(g)
        for ks in list(range(QSPLIT, 16)):
            groups.append([f"s_add_u32 {S_T5}, s79, {ks*1024}", f"buffer_load_dwordx4 a[{4*ks}:{4*ks+3}], v18, {SRD_WS}, {S_T5} offen sc1"])
        for ks in range(QSPLIT):
            groups.append([f"s_add_u32 {S_T5}, s79, {ks*1024}", f"buffer_load_dwordx4 a[{4*ks}:{4*ks+3}], v111, {SRD_WS}, {S_T5} offen sc1"])
        return setup, groups

    def wsum(self, o=16, parts=(1, 2)):
        a = self.a
        for i in range(4): a(f"v_mov_b32 v{o+i}, {S_ONES}")
        for ks in range(16):
            for p in parts:
                d = v4(o+4+4*p); c = '0' if ks == 0 else d
                w = f"a[{64*p+4*ks}:{64*p+4*ks+3}]"
                if p == 0: a(f"v_mfma_f32_16x16x32_bf16 {d}, {w}, {v4(o)}, {c}")
                else: a(f"v_mfma_f32_16x16x32_bf16 {d}, {v4(o)}, {w}, {c}")
        if 0 in parts:
            for i in range(4): a(f"v_mov_b32 v{V_WSQ+i}, v{o+4+i}")
        if 1 in parts: a(f"v_mov_b32 v{V_WSK}, v{o+8}")
        if 2 in parts: a(f"v_mov_b32 v{V_WSV}, v{o+12}")

    CV = dict(XA=10, ST=20, AX=3, AS=4, AU0=5, AU1=6, AK=8, AU=9, ACC=80, X32=200, U32=216)
    def conv_pre(self):
        a = self.a
        a(f"""
        s_lshl_b32 {S_T0}, {S_ID}, 13
        s_add_u32 {S_T0}, {S_T0}, {S_XIN}
        v_lshlrev_b32 v3, 4, v0
        v_add_u32 v3, {S_T0}, v3
        v_lshlrev_b32 v4, 4, v0
        v_add_u32 v4, {S_ST}, v4
        v_lshlrev_b32 v5, 4, v0
        v_add_u32 v5, {L_U + 512}, v5
        v_add_u32 v6, 9280, v5
        v_bfe_u32 v1, v0, 5, 2
        v_mul_u32_u24 v1, 4640, v1
        v_and_b32 v2, 31, v0
        v_lshl_add_u32 v1, v2, 4, v1
        v_add_u32 v1, {L_U}, v1
        v_mov_b32 v36, 0
        v_mov_b32 v37, 0
        v_mov_b32 v38, 0
        v_mov_b32 v39, 0
        v_and_b32 v2, 1, v0
        v_mul_u32_u24 v2, 9280, v2
        v_add_u32 v2, {L_U + 512}, v2
        ds_write_b32 v2, v36
        v_cmp_gt_u32 vcc, 128, v0
        s_and_saveexec_b64 {S_EXS}, vcc
        ds_write_b128 v1, v[36:39]
        s_mov_b64 exec, -1
        s_lshr_b32 {S_T0}, {S_W}, 1
        s_and_b32 {S_T1}, {S_W}, 1
        s_mul_i32 {S_T2}, {S_T0}, 8448
        s_lshl_b32 {S_T3}, {S_T1}, 8
        s_sub_u32 {S_T2}, {S_T2}, {S_T3}
        s_add_u32 {S_T2}, {S_T2}, {L_KC + 4096 - 192 - 3584}
        v_and_b32 v1, 1, v{V_L16}
        v_lshrrev_b32 v7, 1, v{V_L16}
        v_mul_u32_u24 v8, 4224, v1
        v_lshl_add_u32 v8, v{V_H}, 4, v8
        v_lshlrev_b32 v9, 3, v7
        v_sub_u32 v8, v8, v9
        v_add_u32 v8, {S_T2}, v8
        s_mul_i32 {S_T2}, {S_T0}, 9280
        s_sub_u32 {S_T2}, {S_T2}, {S_T3}
        s_add_u32 {S_T2}, {S_T2}, {L_U + 512 - 192}
        v_mul_u32_u24 v9, 4640, v1
        v_lshl_add_u32 v9, v7, 6, v9
        v_lshl_add_u32 v9, v{V_H}, 4, v9
        v_add_u32 v9, {S_T2}, v9
        s_lshl_b32 {S_T1}, {S_T1}, 1
        s_add_u32 {S_T0}, {S_T0}, {S_T1}
        s_mul_i32 {S_T0}, {S_T0}, 9216
        s_add_u32 {S_T0}, {S_T0}, {L_Y}
        v_mul_u32_u24 v2, 144, v7
        v_lshl_add_u32 v2, v{V_H}, 5, v2
        v_lshl_add_u32 v2, v1, 3, v2
        v_add_u32 v2, {S_T0}, v2
        v_lshrrev_b32 v7, 2, v0
        v_lshlrev_b32 v7, 4, v7
        v_lshl_add_u32 v7, v0, 5, v7
        v_add_u32 v7, {L_Y}, v7
        s_waitcnt lgkmcnt(0)
        """)
        for i in (0, 1, 3):
            for q in range(8):
                for hh in range(2):
                    b = {0: 112, 1: 192, 3: 224}[i] + 4*q + 2*hh
                    reg = f"{'v' if i == 0 else 'a'}[{b}:{b+1}]"
                    a(f"ds_read_b64 {reg}, v8 offset:{(3-i)*64 + (7-q)*512 + 8*hh}")

    def conv(self):
        a = self.a
        self.sub(0)
        XA, XB, ST = 10, 14, 20
        for j in range(4):
            a(f"s_mov_b32 {S_T0}, {4096*j}\nbuffer_load_dwordx4 {v4(ST+4*j)}, v4, {SRD_WS}, {S_T0} offen sc1")
        a(f"""
        buffer_load_dwordx4 {v4(XA)}, v3, {SRD_WS}, 0 offen sc1
        v_add_u32 v1, 4096, v3
        buffer_load_dwordx4 {v4(XB)}, v1, {SRD_WS}, 0 offen sc1
        s_mov_b32 s66, {fx(1/512)}
        s_mov_b32 s67, {fx(1e-5)}
        v_mov_b32 v36, s66
        v_mov_b32 v37, s66
        v_mov_b32 v38, s67
        v_mov_b32 v39, s67
        """)
        setup, self.wg = self.wfrag_loads()
        l1 = a.label('CW'); l2 = a.label('CW')
        a(f"s_cmp_eq_u32 {S_LAYER}, 0\ns_cselect_b64 vcc, -1, 0\ns_cbranch_scc0 {l1}")
        self.emit(setup)
        for g in self.wg[:8]: self.emit(g)
        a(f"s_waitcnt vmcnt(10)\ns_branch {l2}\n{l1}:\ns_waitcnt vmcnt(2)\n{l2}:")
        self.sub(1)
        S = lambda i: ST + 2*i
        P  = 40
        MB = 48; VB = 56; R = 64; MR = 72
        for i in range(8): a(f"v_pk_mul_f32 {pk(S(i))}, {pk(S(i))}, v[36:37]")
        for i in range(8): a(f"v_fma_f32 v{S(i)+1}, -v{S(i)}, v{S(i)}, v{S(i)+1}")
        for i in range(8): a(f"v_cvt_pk_bf16_f32 v{P+i}, v{S(i)}, v{S(i)+1}")
        for i in range(8): a(f"v_and_b32 v{VB+i}, 0xffff0000, v{P+i}")
        for i in range(4): a(f"v_pk_add_f32 {pk(VB+2*i)}, {pk(VB+2*i)}, v[38:39]")
        for i in range(8): a(f"v_lshlrev_b32 v{MB+i}, 16, v{P+i}")
        for i in range(4): a(f"v_cvt_pk_bf16_f32 v{P+i}, v{VB+2*i}, v{VB+2*i+1}")
        for i in range(4):
            a(f"v_lshlrev_b32 v{VB+2*i}, 16, v{P+i}\nv_and_b32 v{VB+2*i+1}, 0xffff0000, v{P+i}")
        X32, U32 = 200, 216
        fill = []
        for c, X in enumerate((XA, XB)):
            for p in range(4):
                fill.append(f"v_lshlrev_b32 v{X32+8*c+2*p}, 16, v{X+p}")
                fill.append(f"v_and_b32 v{X32+8*c+2*p+1}, 0xffff0000, v{X+p}")
        for i in range(8): a(f"v_sqrt_f32 v{VB+i}, v{VB+i}")
        for i in range(4): a(f"v_cvt_pk_bf16_f32 v{P+i}, v{VB+2*i}, v{VB+2*i+1}")
        for i in range(4):
            a(f"v_lshlrev_b32 v{VB+2*i}, 16, v{P+i}\nv_and_b32 v{VB+2*i+1}, 0xffff0000, v{P+i}")
        l1 = a.label('CW'); l2 = a.label('CW')
        a(f"s_cbranch_vccz {l1}\ns_waitcnt vmcnt(8)\ns_branch {l2}\n{l1}:\ns_waitcnt vmcnt(0)\n{l2}:")
        self.emit(weave([f"v_rcp_f32 v{R+i}, v{VB+i}" for i in range(8)], fill, per=2))
        for i in range(4): a(f"v_pk_mul_f32 {pk(MR+2*i)}, {pk(MB+2*i)}, {pk(R+2*i)}")
        self.sub(2)
        for c in range(2):
            for p in range(4):
                x = X32+8*c+2*p; u = U32+8*c+2*p
                a(f"v_pk_fma_f32 {pk(u)}, {pk(x)}, {pk(R+2*p)}, {pk(MR+2*p)} neg_lo:[0,0,1] neg_hi:[0,0,1]")
        UP = 40
        for c in range(2):
            for p in range(4):
                u = U32+8*c+2*p
                a(f"v_cvt_pk_bf16_f32 v{UP+4*c+p}, v{u}, v{u+1}")
            ad = 5 + c
            a(f"ds_write_b128 v{ad}, {v4(UP+4*c)} offset:4640")
            a(f"ds_write2_b32 v{ad}, v{UP+4*c}, v{UP+4*c+1} offset0:1 offset1:2")
            a(f"ds_write2_b32 v{ad}, v{UP+4*c+2}, v{UP+4*c+3} offset0:3 offset1:4")
        AK, AU, ACC = 8, 9, 80
        a("s_waitcnt lgkmcnt(0)\ns_barrier")
        self.sub(3)
        ABASE = {0: ('v', 112), 1: ('a', 192), 2: ('v', 40), 3: ('a', 224)}
        def fragA(i, q):
            f, b = ABASE[i]; return f"{f}[{b+4*q}:{b+4*q+3}]"
        BB = [[144+4*q for q in range(8)], [176, 180, 184, 188, 192, 196, 72, 76]]
        def fragB(st, q): return v4(BB[st][q])
        def loadB(i, st): return [f"ds_read_b128 {fragB(st, q)}, v{AU} offset:{(3-i)*64 + 512*q}" for q in range(8)]
        def loadA2():
            L = []
            for q in range(8):
                for hh in range(2):
                    b = 40 + 4*q + 2*hh
                    L.append(f"ds_read_b64 v[{b}:{b+1}], v{AK} offset:{(3-2)*64 + (7-q)*512 + 8*hh}")
            return L
        self.emit(loadB(0, 0))
        def mainloop(groups):
            written = set(); cnt = 0
            for i in range(4):
                st = i & 1
                a("s_waitcnt lgkmcnt(0)")
                nxt = loadB(i+1, st ^ 1) if i < 3 else []
                if i == 0: nxt = nxt + loadA2()
                for sh in range(8):
                    for t in range(sh, 8):
                        c = v4(ACC+4*t) if t in written else '0'
                        written.add(t)
                        a(f"v_mfma_f32_16x16x32_bf16 {v4(ACC+4*t)}, {fragA(i, sh)}, {fragB(st, t-sh)}, {c}")
                        cnt += 1
                        if nxt: a(nxt.pop(0))
                        if groups and cnt % 20 == 10:
                            lg = a.label('WG')
                            a(f"s_cbranch_vccz {lg}")
                            for _ in range(4): self.emit(groups.pop(0))
                            a(f"{lg}:")
            assert not groups
        NC = 48 - QSPLIT
        nloop = min(24, (NC - 8) * 2 // 3 // 4 * 4)
        self.nloop = nloop
        mainloop(self.wg[8:8+nloop])
        lb = a.label('WB')
        a(f"s_cbranch_vccz {lb}")
        for g in self.wg[8+self.nloop:48-QSPLIT]: self.emit(g)
        a(f"{lb}:")
        self.sub(4)
        for t in range(8):
            a(f"ds_write_b64 v2, {pk(ACC+4*t)} offset:{1152*t}")
            a(f"ds_write_b64 v2, {pk(ACC+4*t+2)} offset:{1152*t+16}")
        a("s_waitcnt lgkmcnt(0)\ns_barrier")
        self.sub(5)
        Y0 = 112
        for ch in range(2):
            for sh in range(2):
                for hh in range(2):
                    b = Y0 + 16*sh + 8*ch + 4*hh
                    a(f"ds_read_b128 {v4(b)}, v7 offset:{sh*18432 + ch*9216 + 16*hh}")
        a(f"""
        v_subrev_u32 v3, {S_XIN}, v3
        v_add_u32 v3, {S_XOUT}, v3
        v_add_u32 v1, 4096, v3
        """)
        for ch in range(2):
            a(f"s_waitcnt lgkmcnt({4*(1-ch)})")
            D = V_DSK0 if ch == 0 else V_DSK1
            for p in range(4):
                y = Y0 + 8*ch + 2*p
                a(f"v_pk_add_f32 {pk(y)}, {pk(y)}, {pk(y+16)}")
            for p in range(4):
                y = Y0 + 8*ch + 2*p; u = U32 + 8*ch + 2*p
                a(f"v_pk_fma_f32 {pk(y)}, {pk(u)}, {pk(D)}, {pk(y)} op_sel_hi:[1,0,1]")
            for p in range(4):
                y = Y0 + 8*ch + 2*p; x = X32 + 8*ch + 2*p
                a(f"v_pk_add_f32 {pk(y)}, {pk(y)}, {pk(x)}")
            for p in range(4):
                y = Y0 + 8*ch + 2*p
                a(f"v_cvt_pk_bf16_f32 v{80+4*ch+p}, v{y}, v{y+1}")
            a(f"buffer_store_dwordx4 {v4(80+4*ch)}, v{3 if ch == 0 else 1}, {SRD_WS}, 0 offen sc1")
        self.sub(6)
        self.subflush(0, 7)

    def wstage_kv(self):
        a = self.a
        l = a.label('WS')
        a(f"s_cmp_eq_u32 {S_LAYER}, 0\ns_cbranch_scc0 {l}")
        self.wsum()
        a(f"{l}:")

    def qkv_pre(self):
        a = self.a
        t = 10
        a(f"""
        v_lshrrev_b32 v{t}, 3, v{V_LANE}
        v_lshlrev_b32 v{t}, 12, v{t}
        v_bfe_u32 v{t+1}, v{V_LANE}, 1, 2
        v_bfe_u32 v{t+2}, v{V_LANE}, 4, 1
        s_and_b32 {S_T0}, {S_W}, 1
        s_lshl_b32 {S_T0}, {S_T0}, 1
        v_or_b32 v{t+2}, {S_T0}, v{t+2}
        v_xor_b32 v{t+1}, v{t+1}, v{t+2}
        v_lshl_add_u32 v{t}, v{t+1}, 5, v{t}
        v_and_b32 v{t+1}, 1, v{V_LANE}
        v_lshl_add_u32 v{t}, v{t+1}, 4, v{t}
        s_lshl_b32 {S_T0}, {S_RT}, 7
        v_add_u32 v{t}, {S_T0}, v{t}
        s_lshl_b32 {S_DS}, {S_W}, 15
        s_add_u32 {S_DS}, {S_DS}, {S_XIN}
        s_lshl_b32 {S_DM}, {S_W}, 10
        s_add_u32 {S_DM}, {S_DM}, {L_XL}
        """)
        t = 12
        a(f"""
        v_lshrrev_b32 v{t}, 2, v{V_L16}
        v_lshl_add_u32 v{t+1}, v{V_H}, 3, v{t}
        v_lshlrev_b32 v{t+1}, 7, v{t+1}
        v_and_b32 v{t+2}, 3, v{V_L16}
        v_lshl_add_u32 v{t+1}, v{t+2}, 3, v{t+1}
        v_add_u32 v{t+1}, {L_XL}, v{t+1}
        v_lshrrev_b32 v{t}, 1, v{t}
        v_and_b32 v{t+2}, 1, v{V_H}
        v_lshl_or_b32 v{t}, v{t+2}, 1, v{t}
        v_xor_b32 v{t}, {S_W}, v{t}
        """)
        for j in range(4):
            a(f"v_xor_b32 v{t+2}, {j}, v{t}\nv_lshl_add_u32 v{4+j}, v{t+2}, 5, v{t+1}")
        for i in range(4): a(f"v_mov_b32 v{104+i}, {S_ONES}")
        a(f"""
        s_mov_b32 s66, {fx(1e-6)}
        s_mov_b32 s67, {fx(LOG2E)}
        v_mov_b32 v112, s66
        v_mov_b32 v113, s66
        v_mov_b32 v114, s67
        v_mov_b32 v115, s67
        """)

    def qkv(self):
        a = self.a
        self.sub(0)
        def dma():
            return lines(f"""
            s_mov_b32 m0, {S_DM}
            s_add_u32 {S_DM}, {S_DM}, 4096
            buffer_load_dwordx4 v10, {SRD_WS}, {S_DS} offen sc1 lds
            s_add_u32 {S_DS}, {S_DS}, {4*32768}
            """)
        NUPF = int(os.environ.get('NUPF', '12'))
        for i in range(NUPF): self.emit(dma())
        AD = 4
        AK_, AV_, AQ_ = 16, 32, 48
        DS, DG = 64, 68
        ONES = 104
        XF = [72, 88]
        def xload(ks, st):
            L = []
            for j in range(4):
                b = XF[st] + 4*j
                L.append(f"ds_read_b64_tr_b16 {pk(b)}, v{AD+j} offset:{ks*4096}")
                L.append(f"ds_read_b64_tr_b16 {pk(b+2)}, v{AD+j} offset:{ks*4096+512}")
            return L
        S_WDS, S_WDM = 's84', 's85'
        a(f"""
        s_lshl_b32 {S_WDS}, {S_CG}, 16
        s_lshl_b32 {S_T0}, {S_W}, 14
        s_add_u32 {S_WDS}, {S_WDS}, {S_T0}
        s_add_u32 {S_WDS}, {S_WDS}, {WOFG}
        s_add_u32 {S_WDM}, {S_T0}, {L_WO}
        v_lshlrev_b32 v111, 4, v{V_LANE}
        """)
        def wo_group():
            lg = a.label('WOG')
            a(f"s_cmp_eq_u32 {S_LAYER}, 0\ns_cbranch_scc0 {lg}")
            for _ in range(4):
                a(f"""
                s_mov_b32 m0, {S_WDM}
                s_add_u32 {S_WDM}, {S_WDM}, 1024
                buffer_load_dwordx4 v111, {SRD_WS}, {S_WDS} offen sc1 lds
                s_add_u32 {S_WDS}, {S_WDS}, 1024
                """)
            a(f"{lg}:")
        SF = [200, 208]
        S = {0: [0], 1: [1, 2], 2: [3, 4], 3: [5, 6], 4: [7, 8], 5: [9, 10], 6: [11, 12], 7: [13, 14], 8: [15]}
        def sload(ks, st):
            L = []
            for n, kss in enumerate(S.get(ks, [])):
                b = SF[st] + 4*n
                L.append(f"ds_read_b64_tr_b16 {pk(b)}, v{AD} offset:{kss*4096}")
                L.append(f"ds_read_b64_tr_b16 {pk(b+2)}, v{AD} offset:{kss*4096+512}")
            return L
        ndma = [NUPF]
        landed = [-1]
        def need(idx):
            if idx <= landed[0]: return []
            landed[0] = idx
            return [f"s_waitcnt vmcnt({ndma[0] - 1 - idx})", "s_barrier"]
        waits = {0: 2, 1: 4, 2: 8, 4: 12, 6: 15}
        self.emit(need(1))
        self.sub(1)
        self.emit(xload(0, 0) + sload(0, 0))
        self.P1 = {}
        fillers = {}
        def pass1(ks, extra):
            st = ks & 1
            a("s_waitcnt lgkmcnt(0)")
            if ks in waits: self.emit(need(waits[ks]))
            fill = (xload(ks+1, st ^ 1) + sload(ks+1, st ^ 1)) if ks + 1 < 16 else (xload(0, st ^ 1) if QSPLIT > 0 else [])
            M = []
            for j in range(4):
                x = v4(XF[st]+4*j)
                ck = '0' if ks == 0 else v4(AK_+4*j); cv = '0' if ks == 0 else v4(AV_+4*j)
                M.append(f"v_mfma_f32_16x16x32_bf16 {v4(AK_+4*j)}, {x}, a[{64+4*ks}:{64+4*ks+3}], {ck}")
                M.append(f"v_mfma_f32_16x16x32_bf16 {v4(AV_+4*j)}, {x}, a[{128+4*ks}:{128+4*ks+3}], {cv}")
                if ks >= QSPLIT:
                    M.append(f"v_mfma_f32_16x16x32_bf16 {v4(AQ_+4*j)}, a[{4*ks}:{4*ks+3}], {x}, {'0' if ks == QSPLIT else v4(AQ_+4*j)}")
            for n, kss in enumerate(S.get(ks, [])):
                x0 = v4(SF[st] + 4*n)
                M.append(f"v_mfma_f32_16x16x32_bf16 {v4(DS)}, {v4(ONES)}, {x0}, {'0' if kss == 0 else v4(DS)}")
                M.append(f"v_mfma_f32_16x16x32_bf16 {v4(DG)}, {x0}, {x0}, {'0' if kss == 0 else v4(DG)}")
            k = min(2, 16 - ndma[0])
            for _ in range(k): fill = fill + dma()
            ndma[0] += k
            out = []; fi = list(fill); ex = list(extra)
            for mi, m in enumerate(M):
                out.append(m)
                n = 2
                while n > 0 and fi: out.append(fi.pop(0)); n -= 1
                while n > 0 and ex: out.append(ex.pop(0)); n -= 1
            out += fi
            self.emit(out)
            return ex
        self._pass1 = pass1
        SQ = 109
        F1 = lines(f"""
        v_and_b32 v8, 3, v{V_L16}
        v_lshrrev_b32 v9, 2, v{V_L16}
        v_cmp_eq_u32 s[66:67], 1, v8
        v_cmp_eq_u32 s[68:69], 2, v8
        v_cmp_eq_u32 vcc, 3, v8
        v_cndmask_b32 v{SQ}, v{DG}, v{DG+1}, s[66:67]
        v_cndmask_b32 v{SQ}, v{SQ}, v{DG+2}, s[68:69]
        v_cndmask_b32 v{SQ}, v{SQ}, v{DG+3}, vcc
        v_cmp_eq_u32 vcc, v9, v{V_H}
        s_lshl_b32 {S_T0}, {S_W}, 6
        s_add_u32 {S_T0}, {S_T0}, {L_S2R}
        v_cndmask_b32 v{SQ}, 0, v{SQ}, vcc
        v_lshlrev_b32 v8, 2, v{V_L16}
        v_add_u32 v9, {S_T0}, v8
        """)
        F1 += self.reduce_h(SQ, 110)
        F1 += self.ln_final1(DS, SQ, 116, 117, 118)
        F1 += lines(f"""
        ds_write_b32 v9, v116
        ds_write_b32 v9, v117 offset:{L_S2M-L_S2R}
        v_lshlrev_b32 v8, 4, v{V_H}
        v_add_u32 v8, {S_T0}, v8
        """)
        R4, M4 = 128, 144
        RQ, MQ = 160, 208
        F2 = []
        for j in range(4):
            F2.append(f"v_xor_b32 v{120+j}, {64*j}, v8")
            F2.append(f"v_xor_b32 v{124+j}, {64*j}, v9")
        for j in range(4):
            F2.append(f"ds_read_b128 {v4(R4+4*j)}, v{120+j}")
            F2.append(f"ds_read_b128 {v4(M4+4*j)}, v{120+j} offset:{L_S2M-L_S2R}")
        for j in range(4):
            F2.append(f"ds_read_b32 v{RQ+2*j}, v{124+j}")
            F2.append(f"ds_read_b32 v{MQ+2*j}, v{124+j} offset:{L_S2M-L_S2R}")
        EPS, L2E = 112, 114
        def phi(x, T):
            return [f"v_pk_mul_f32 {pk(T)}, {pk(x)}, {pk(L2E)}",
                    f"v_exp_f32_e64 v{T}, v{T} clamp", f"v_exp_f32_e64 v{T+1}, v{T+1} clamp",
                    f"v_max_f32 v{x}, v{EPS}, v{x}", f"v_max_f32 v{x+1}, v{EPS}, v{x+1}",
                    f"v_pk_add_f32 {pk(x)}, {pk(x)}, {pk(T)}"]
        PKF, VF, PQF = 168, 176, 200
        DKV, DZ = 196, 216
        def kv_chain(j, h2, T):
            k = AK_+4*j+h2; vv = AV_+4*j+h2; r = R4+4*j+h2; m = M4+4*j+h2
            c = [f"v_pk_fma_f32 {pk(T)}, {pk(m)}, v[{V_WSK}:{V_WSK+1}], {pk(EPS)} op_sel_hi:[1,0,1] neg_lo:[0,0,1] neg_hi:[0,0,1]",
                 f"v_pk_mul_f32 {pk(T+4)}, {pk(m)}, v[{V_WSV}:{V_WSV+1}] op_sel_hi:[1,0]",
                 f"v_pk_fma_f32 {pk(k)}, {pk(k)}, {pk(r)}, {pk(T)} neg_lo:[0,0,1] neg_hi:[0,0,1]",
                 f"v_pk_fma_f32 {pk(vv)}, {pk(vv)}, {pk(r)}, {pk(T+4)} neg_lo:[0,0,1] neg_hi:[0,0,1]"]
            ph = phi(k, T+2)
            c += [ph[0], f"v_cvt_pk_bf16_f32 v{VF + 2*j + h2//2}, v{vv}, v{vv+1}"] + ph[1:]
            c.append(f"v_cvt_pk_bf16_f32 v{PKF + 2*j + h2//2}, v{k}, v{k+1}")
            return c
        def q_chain(j, h2, T):
            q = AQ_+4*j+h2
            c = [f"v_pk_fma_f32 {pk(T)}, {pk(MQ+2*j)}, {pk(V_WSQ+h2)}, {pk(EPS)} op_sel_hi:[0,1,1] neg_lo:[0,0,1] neg_hi:[0,0,1]",
                 f"v_pk_fma_f32 {pk(q)}, {pk(q)}, {pk(RQ+2*j)}, {pk(T)} op_sel_hi:[1,0,1] neg_lo:[0,0,1] neg_hi:[0,0,1]"]
            c += phi(q, T+2)
            c.append(f"v_cvt_pk_bf16_f32 v{PQF + 2*j + h2//2}, v{q}, v{q+1}")
            return c
        adr = lines(f"""
        s_lshl_b32 {S_T0}, {S_CG}, 2
        s_add_u32 {S_T0}, {S_T0}, {S_W}
        s_lshl_b32 {S_T1}, {S_T0}, 10
        s_add_u32 {S_T1}, {S_T1}, {S_KV}
        v_lshlrev_b32 v11, 2, v{V_LANE}
        v_add_u32 v14, {S_T1}, v11
        s_lshl_b32 {S_T1}, {S_T0}, 10
        s_add_u32 {S_T1}, {S_T1}, {S_Z}
        s_and_b32 {S_T2}, {S_RT}, 3
        s_lshl_b32 {S_T2}, {S_T2}, 8
        s_add_u32 {S_T1}, {S_T1}, {S_T2}
        v_add_u32 v15, {S_T1}, v11
        s_lshl_b32 {S_T1}, {S_RT}, 16
        s_add_u32 {S_T1}, {S_T1}, {S_PQ}
        s_lshl_b32 {S_T2}, {S_T0}, 10
        s_add_u32 {S_T1}, {S_T1}, {S_T2}
        s_and_b32 {S_T2}, {S_W}, 1
        s_lshl_b32 {S_T2}, {S_T2}, 4
        v_xor_b32 v11, {S_T2}, v{V_LANE}
        v_lshlrev_b32 v11, 4, v11
        v_add_u32 v11, {S_T1}, v11
        s_lshr_b32 {S_T2}, {S_W}, 1
        s_lshl_b32 {S_T2}, {S_T2}, 15
        v_add_u32 v12, {S_T2}, v11
        s_xor_b32 {S_T2}, {S_T2}, 0x8000
        v_add_u32 v13, {S_T2}, v11
        """)
        def passQ(ks_range):
            for ks in ks_range:
                st = ks & 1
                nx = xload(ks+1, st ^ 1) if ks + 1 < QSPLIT else []
                a("s_waitcnt lgkmcnt(0)")
                for j in range(4):
                    x = v4(XF[st]+4*j)
                    c = '0' if (QSPLIT == 16 and ks == 0) else v4(AQ_+4*j)
                    a(f"v_mfma_f32_16x16x32_bf16 {v4(AQ_+4*j)}, a[{4*ks}:{4*ks+3}], {x}, {c}")
                    k = 4 if j < 2 else 0
                    for _ in range(k):
                        if nx: a(nx.pop(0))
        wq = list(self.wg[48-QSPLIT:])
        def wq_group():
            if not wq: return
            lg = a.label('WQG')
            a(f"s_cmp_eq_u32 {S_LAYER}, 0\ns_cbranch_scc0 {lg}")
            for _ in range(4):
                if wq: self.emit(wq.pop(0))
            a(f"{lg}:")
        for ks in range(0, 9):
            pass1(ks, [])
            if ks == 3: self.sub(2)
            if ks in (6, 8): wq_group()
        self.sub(3)
        ex = list(F1)
        for ks in range(9, 12):
            ex = pass1(ks, ex)
            if ks == 10: wq_group()
        self.emit(ex)
        wq_group()
        a("s_waitcnt lgkmcnt(0)\ns_barrier")
        self.sub(4)
        ex = list(F2) + adr
        for ks in range(12, 16):
            ex = pass1(ks, ex)
            if ks == 12: wo_group()
        self.emit(ex)
        wo_group()
        a("s_waitcnt lgkmcnt(0)")
        self.sub(5)
        TT = [184, 190, 220, 226]
        for j0 in (0, 2):
            self.emit(zipmerge(kv_chain(j0, 0, TT[0]), kv_chain(j0, 2, TT[1]), kv_chain(j0+1, 0, TT[2]), kv_chain(j0+1, 2, TT[3])))
            u = j0 // 2
            c1 = '0' if u == 0 else v4(DKV); c2 = '0' if u == 0 else v4(DZ)
            a(f"v_mfma_f32_16x16x32_bf16 {v4(DKV)}, {v4(VF+4*u)}, {v4(PKF+4*u)}, {c1}")
            a(f"v_mfma_f32_16x16x32_bf16 {v4(DZ)}, {v4(ONES)}, {v4(PKF+4*u)}, {c2}")
        for i in range(4):
            a(f"buffer_atomic_add_f32 v{DKV+i}, v14, {SRD_WS}, 0 offen offset:{256*i}")
        a(f"""
        s_mov_b64 exec, 0xffff
        buffer_atomic_add_f32 v{DZ}, v15, {SRD_WS}, 0 offen
        s_mov_b64 exec, -1
        """)
        wo_group()
        a("s_waitcnt vmcnt(17)")
        passQ(range(0, QSPLIT // 2))
        wo_group()
        passQ(range(QSPLIT // 2, QSPLIT))
        lq = a.label('WSQ')
        a(f"s_cmp_eq_u32 {S_LAYER}, 0\ns_cbranch_scc0 {lq}")
        self.wsum(o=120, parts=(0,))
        a(f"{lq}:")
        TQ = [184, 188, 220, 224]
        for u in range(2):
            j0 = 2*u
            self.emit(zipmerge(q_chain(j0, 0, TQ[0]), q_chain(j0, 2, TQ[1]), q_chain(j0+1, 0, TQ[2]), q_chain(j0+1, 2, TQ[3])))
            b = PQF + 4*u
            a(f"v_permlane16_swap_b32 v{b}, v{b+2}\nv_permlane16_swap_b32 v{b+1}, v{b+3}")
            a(f"buffer_store_dwordx4 {v4(b)}, v{12+u}, {SRD_WS}, 0 offen sc1")
        self.sub(6)
        self.subflush(1, 7)

    def outp_pre(self):
        a = self.a
        a(f"""
        s_lshl_b32 {S_T0}, {S_W}, 13
        s_add_u32 {S_T0}, {S_T0}, {S_KV}
        v_lshlrev_b32 v4, 4, v{V_LANE}
        v_add_u32 v4, {S_T0}, v4
        v_add_u32 v5, 4096, v4
        s_lshl_b32 {S_T0}, {S_W}, 13
        s_add_u32 {S_T0}, {S_T0}, {S_Z}
        v_bfe_u32 v6, v{V_LANE}, 2, 3
        v_lshlrev_b32 v6, 10, v6
        v_lshrrev_b32 v12, 5, v{V_LANE}
        v_lshl_add_u32 v6, v12, 8, v6
        v_and_b32 v12, 3, v{V_LANE}
        v_lshl_add_u32 v6, v12, 4, v6
        v_add_u32 v6, {S_T0}, v6
        s_and_b32 {S_T0}, {S_W}, 1
        s_lshl_b32 {S_T0}, {S_T0}, 15
        s_lshr_b32 {S_T1}, {S_W}, 1
        s_lshl_b32 {S_T1}, {S_T1}, 14
        s_add_u32 {S_T0}, {S_T0}, {S_T1}
        s_lshl_b32 {S_T1}, {S_RT}, 16
        s_add_u32 {S_T0}, {S_T0}, {S_T1}
        s_add_u32 {S_DS}, {S_T0}, {S_PQ}
        v_lshlrev_b32 v7, 4, v{V_LANE}
        v_lshrrev_b32 v1, 3, v0
        v_and_b32 v3, 7, v0
        s_lshl_b32 {S_T0}, {S_CG}, 18
        s_lshl_b32 {S_T1}, {S_RT}, 7
        s_add_u32 {S_T0}, {S_T0}, {S_T1}
        v_lshlrev_b32 v8, 12, v1
        v_lshl_add_u32 v8, v3, 4, v8
        v_add_u32 v8, {S_T0}, v8
        v_add_u32 v9, {S_XIN}, v8
        v_add_u32 v2, 0x20000, v9
        v_lshrrev_b32 v10, 4, v{V_LANE}
        v_bfe_u32 v11, v{V_LANE}, 2, 2
        v_lshl_add_u32 v10, v11, 2, v10
        v_bfe_u32 v11, v{V_LANE}, 1, 1
        v_lshl_add_u32 v10, v11, 4, v10
        v_lshlrev_b32 v10, 4, v10
        v_and_b32 v11, 1, v{V_LANE}
        v_lshl_add_u32 v10, v11, 3, v10
        s_mul_i32 {S_T0}, {S_W}, {8*544}
        s_add_u32 {S_T0}, {S_T0}, {L_KVF}
        v_add_u32 v10, {S_T0}, v10
        v_bfe_u32 v11, v{V_LANE}, 2, 3
        v_mul_u32_u24 v11, 544, v11
        v_and_b32 v12, 3, v{V_LANE}
        v_lshl_add_u32 v11, v12, 3, v11
        v_add_u32 v11, {S_T0}, v11
        v_and_b32 v12, 31, v{V_LANE}
        v_lshrrev_b32 v13, 5, v{V_LANE}
        v_lshlrev_b32 v14, 4, v13
        v_add_u32 v15, v14, v12
        v_lshlrev_b32 v15, 4, v15
        v_lshlrev_b32 v14, 4, v13
        v_add_u32 v14, 512, v14
        v_cmp_gt_u32 vcc, 16, v12
        v_cndmask_b32 v15, v14, v15, vcc
        s_lshr_b32 {S_T0}, {S_W}, 1
        s_mul_i32 {S_T1}, {S_T0}, {16*544}
        s_add_u32 {S_T1}, {S_T1}, {L_KVF}
        v_add_u32 v15, {S_T1}, v15
        v_lshrrev_b32 v16, 2, v{V_L16}
        v_lshrrev_b32 v17, 1, v{V_H}
        v_lshl_add_u32 v17, v17, 2, v16
        v_lshlrev_b32 v17, 7, v17
        v_and_b32 v18, 3, v{V_L16}
        v_lshl_add_u32 v17, v18, 3, v17
        s_lshl_b32 {S_T1}, {S_T0}, 15
        s_add_u32 {S_T1}, {S_T1}, {L_WO}
        v_add_u32 v17, {S_T1}, v17
        v_and_b32 v18, 2, v16
        v_and_b32 v19, 1, v{V_H}
        v_xor_b32 v18, v18, v19
        v_lshl_add_u32 v13, v18, 5, v17
        v_xor_b32 v18, 2, v18
        v_lshl_add_u32 v14, v18, 5, v17
        s_mul_i32 {S_T1}, {S_T0}, {64*272}
        s_and_b32 {S_T0}, {S_W}, 1
        s_lshl_b32 {S_T0}, {S_T0}, 7
        s_add_u32 {S_T1}, {S_T1}, {S_T0}
        s_add_u32 {S_T1}, {S_T1}, {L_O32}
        v_mul_u32_u24 v16, 272, v12
        v_lshrrev_b32 v17, 5, v{V_LANE}
        v_lshl_add_u32 v16, v17, 4, v16
        v_add_u32 v16, {S_T1}, v16
        v_mul_u32_u24 v17, 272, v1
        v_lshl_add_u32 v17, v3, 5, v17
        v_add_u32 v17, {L_O32}, v17
        v_mul_u32_u24 v18, 144, v1
        v_lshl_add_u32 v18, v3, 4, v18
        v_add_u32 v18, {L_OT}, v18
        """)
        a(f"""
        s_lshr_b32 {S_T0}, {S_W}, 1
        s_lshl_b32 {S_T0}, {S_T0}, 15
        s_add_u32 {S_T0}, {S_T0}, {L_WO}
        v_lshlrev_b32 v13, 4, v{V_LANE}
        v_add_u32 v13, {S_T0}, v13
        """)
        for i in range(16):
            for c in range(2):
                a(f"ds_read_b128 {v4(WOF + 8*i + 4*c)}, v13 offset:{i*2048 + c*1024}")

    def outp(self):
        a = self.a
        self.sub(0)
        KVL = 24
        issued = []
        def ld(txt, tag): a(txt); issued.append(tag)
        for p in range(8):
            ad = 4 if p < 4 else 5; off = (p & 3)*1024
            ld(f"buffer_load_dwordx4 {v4(KVL+4*p)}, v{ad}, {SRD_WS}, 0 offen offset:{off} sc1", 'kv')
        ld(f"buffer_load_dwordx4 v[56:59], v6, {SRD_WS}, 0 offen sc1", 'kv')
        ld(f"buffer_load_dwordx4 v[60:63], v6, {SRD_WS}, 0 offen offset:512 sc1", 'kv')
        def pqload(i):
            ld(f"buffer_load_dwordx4 a[{192+4*i}:{192+4*i+3}], v7, {SRD_WS}, {S_DS} offen sc1", f'pq{i}')
            a(f"s_add_u32 {S_DS}, {S_DS}, 1024")
        NUP = 4
        for i in range(NUP): pqload(i)
        def vm(tag):
            idx = max(i for i, t in enumerate(issued) if t == tag)
            return len(issued) - 1 - idx
        self.sub(1)
        a(f"s_waitcnt vmcnt({vm('kv')})")
        self.sub(2)
        for p in range(8):
            b = KVL + 4*p
            a(f"v_cvt_pk_bf16_f32 v{b}, v{b}, v{b+1}\nv_cvt_pk_bf16_f32 v{b+1}, v{b+2}, v{b+3}")
            a(f"ds_write_b64 v10, {pk(b)} offset:{p*544}")
        a("v_pk_add_f32 v[56:57], v[56:57], v[60:61]\nv_pk_add_f32 v[58:59], v[58:59], v[62:63]")
        for i in range(4):
            a(f"v_mov_b32 v{60+i}, v{56+i}\nv_permlane32_swap_b32 v{56+i}, v{60+i}\nv_add_f32 v{56+i}, v{56+i}, v{60+i}")
        a("v_cvt_pk_bf16_f32 v56, v56, v57\nv_cvt_pk_bf16_f32 v57, v58, v59")
        a(f"ds_write_b64 v11, v[56:57] offset:512")
        AKV = 15
        ACC = [72, 88]
        D1 = [32, 48]; KF = [20, 24, 28]; OF = [64, 68]
        XR = WOF
        for i in range(NUP, 10): pqload(i)
        a("s_waitcnt lgkmcnt(0)\ns_barrier")
        self.sub(3)
        def acc(c): return f"v[{ACC[c]}:{ACC[c]+15}]"
        def rdK(i): return [f"ds_read_b128 {v4(KF[i % 3])}, v{AKV} offset:{i*544}"]
        def m1(i): return f"v_mfma_f32_32x32x16_bf16 v[{D1[i&1]}:{D1[i&1]+15}], {v4(KF[i % 3])}, a[{192+4*i}:{192+4*i+3}], 0"
        def valu(i):
            d = D1[i & 1]; o = OF[i & 1]
            L = [f"v_add_f32 v{d+8}, {fx(1e-6)}, v{d+8}", f"v_rcp_f32 v{d+8}, v{d+8}"]
            L += [f"v_mul_f32 v{d+p}, v{d+p}, v{d+8}" for p in range(8)]
            L += [f"v_cvt_pk_bf16_f32 v{o+p}, v{d+2*p}, v{d+2*p+1}" for p in range(4)]
            return L
        def mo(i, c):
            b = WOF + 8*i + 4*c
            return f"v_mfma_f32_32x32x16_bf16 {acc(c)}, {v4(OF[i&1])}, {v4(b)}, {'0' if i == 0 else acc(c)}"
        self.emit(rdK(0) + rdK(1) + rdK(2))
        a(f"s_waitcnt vmcnt({vm('pq0')}) lgkmcnt(2)")
        a(m1(0))
        a(f"s_waitcnt vmcnt({vm('pq1')}) lgkmcnt(1)")
        a(m1(1))
        self.emit(valu(0))
        nxt = 10
        for i in range(16):
            V = valu(i+1) if i + 1 < 16 else []
            K_ = rdK(i+3) if i + 3 < 16 else []
            if i + 2 < 16: a(f"s_waitcnt vmcnt({vm(f'pq{i+2}')}) lgkmcnt(0)")
            a(mo(i, 0))
            self.emit(V[:2] + K_ + V[2:4])
            if i + 2 < 16: a(m1(i+2))
            self.emit(V[4:10])
            a(mo(i, 1))
            self.emit(V[10:])
            if nxt < 16:
                pqload(nxt); nxt += 1
            if i == 6:
                ld(f"buffer_load_dwordx4 {v4(XR)}, v9, {SRD_WS}, 0 offen sc1", 'x')
                ld(f"buffer_load_dwordx4 {v4(XR+4)}, v2, {SRD_WS}, 0 offen sc1", 'x')
        self.sub(4)
        for c in range(2):
            for aa in range(4):
                a(f"ds_write_b128 v16, {v4(ACC[c]+4*aa)} offset:{c*32*272 + 32*aa}")
        a("s_waitcnt lgkmcnt(0)\ns_barrier")
        Y = 32
        for i in range(2):
            for part in range(2):
                for hh in range(2):
                    a(f"ds_read_b128 {v4(Y+16*i+8*part+4*hh)}, v17 offset:{i*32*272 + part*64*272 + 16*hh}")
        a("s_waitcnt vmcnt(0)")
        self.sub(5)
        lf = a.label('FIN'); le = a.label('OE'); lx = a.label('OX')
        a(f"v_add_u32 v8, {S_XOUT}, v8\nv_add_u32 v9, 0x20000, v8")
        for i in range(2):
            a(f"s_waitcnt lgkmcnt({4*(1-i)})")
            y = Y + 16*i; x = XR + 4*i; t = 132 + 8*i
            for p in range(4): a(f"v_pk_add_f32 {pk(y+2*p)}, {pk(y+2*p)}, {pk(y+8+2*p)}")
            for p in range(4): a(f"v_cvt_pk_bf16_f32 v{y+8+p}, v{y+2*p}, v{y+2*p+1}")
            for p in range(4):
                a(f"v_lshlrev_b32 v{y+2*p}, 16, v{y+8+p}\nv_and_b32 v{y+2*p+1}, 0xffff0000, v{y+8+p}")
                a(f"v_lshlrev_b32 v{t+2*p}, 16, v{x+p}\nv_and_b32 v{t+2*p+1}, 0xffff0000, v{x+p}")
            for p in range(4): a(f"v_pk_add_f32 {pk(y+2*p)}, {pk(y+2*p)}, {pk(t+2*p)}")
            for p in range(4): a(f"v_cvt_pk_bf16_f32 v{160+4*i+p}, v{y+2*p}, v{y+2*p+1}")
            a(f"ds_write_b128 v18, {v4(160+4*i)} offset:{i*32*144}")
        a(f"""
        s_cmp_eq_u32 {S_LAYER}, 0
        s_cbranch_scc0 {lf}
        buffer_store_dwordx4 v[160:163], v8, {SRD_WS}, 0 offen sc1
        buffer_store_dwordx4 v[164:167], v9, {SRD_WS}, 0 offen sc1
        {lf}:
        v_lshrrev_b32 v10, 2, v{V_L16}
        v_lshl_add_u32 v10, v{V_H}, 3, v10
        v_mul_u32_u24 v10, 144, v10
        v_and_b32 v11, 3, v{V_L16}
        v_lshl_add_u32 v10, v11, 3, v10
        s_lshl_b32 {S_T0}, {S_W}, 5
        s_add_u32 {S_T0}, {S_T0}, {L_OT}
        v_add_u32 v10, {S_T0}, v10
        s_waitcnt lgkmcnt(0)
        s_barrier
        ds_read_b64_tr_b16 v[104:105], v10
        ds_read_b64_tr_b16 v[106:107], v10 offset:{4*144}
        ds_read_b64_tr_b16 v[108:109], v10 offset:{32*144}
        ds_read_b64_tr_b16 v[110:111], v10 offset:{36*144}
        s_cmp_eq_u32 {S_LAYER}, 0
        s_cbranch_scc0 {le}
        s_lshl_b32 {S_T0}, {S_RT}, 7
        s_lshl_b32 {S_T1}, {S_W}, 5
        s_add_u32 {S_T0}, {S_T0}, {S_T1}
        s_add_u32 {S_T0}, {S_T0}, {ST3}
        v_bfe_u32 v11, v{V_L16}, 1, 2
        v_lshlrev_b32 v11, 12, v11
        v_lshrrev_b32 v12, 3, v{V_L16}
        v_lshl_add_u32 v11, v12, 4, v11
        v_and_b32 v12, 1, v{V_L16}
        v_lshl_add_u32 v11, v12, 3, v11
        v_lshl_add_u32 v11, v{V_H}, 2, v11
        v_add_u32 v11, {S_T0}, v11
        v_mov_b32 v112, 0
        v_mov_b32 v113, 0
        v_mov_b32 v114, 0
        v_mov_b32 v115, 0
        s_waitcnt lgkmcnt(0)
        """)
        for j in range(4):
            a(f"v_dot2_f32_bf16 v112, v{104+j}, {S_ONES}, v112")
            a(f"v_dot2_f32_bf16 v113, v{104+j}, v{104+j}, v113")
            a(f"v_dot2_f32_bf16 v114, v{108+j}, {S_ONES}, v114")
            a(f"v_dot2_f32_bf16 v115, v{108+j}, v{108+j}, v115")
        a("v_pk_add_f32 v[112:113], v[112:113], v[114:115]")
        self.emit(zipmerge(self.reduce_h(112, 116), self.reduce_h(113, 117)))
        a(f"""
        v_cmp_eq_u32 vcc, 0, v{V_H}
        v_cndmask_b32 v112, v113, v112, vcc
        s_mov_b64 exec, 0xffffffff
        buffer_atomic_add_f32 v112, v11, {SRD_WS}, 0 offen
        s_mov_b64 exec, -1
        s_branch {lx}
        {le}:
        s_lshl_b32 {S_T0}, {S_RT}, 16
        s_lshl_b32 {S_T1}, {S_W}, 14
        s_add_u32 {S_T0}, {S_T0}, {S_T1}
        s_lshl_b32 {S_T1}, {S_CG}, 7
        s_add_u32 {S_T0}, {S_T0}, {S_T1}
        v_lshlrev_b32 v11, 10, v{V_L16}
        v_lshl_add_u32 v11, v{V_H}, 4, v11
        v_add_u32 v11, {S_T0}, v11
        s_waitcnt lgkmcnt(0)
        buffer_store_dwordx4 v[104:107], v11, {SRD_OUT}, 0 offen {OUTF}
        buffer_store_dwordx4 v[108:111], v11, {SRD_OUT}, 0 offen offset:64 {OUTF}
        {lx}:
        """)
        self.sub(6)
        self.subflush(2, 7)

    def build(self):
        a = self.a
        self.prologue()
        if self.ts: a(f"v_mov_b32 v{V_TS}, 0\nv_mov_b32 v{V_TS2}, 0")
        self.stamp()
        self.p0()
        stop = self.stop
        if stop == 'p0':
            self.wait(); a("s_branch L_END")
        a("L_LAYER:")
        for reg, (x0, x1) in ((S_XIN, (XT[0], XT[2])), (S_XOUT, (XT[1], XT[3])), (S_ST, (ST1, ST3)), (S_PQ, PQ), (S_KV, KVM), (S_Z, ZZ)):
            a(f"s_mul_i32 {reg}, {S_LAYER}, {(x1 - x0) & 0xffffffff:#x}")
            a(f"s_add_u32 {reg}, {reg}, {x0:#x}")
        self.conv_pre()
        self.wait(l0skip=True, sleep0=16, adr=int(os.environ.get('AR_C','1')), adr0=0, adb=int(os.environ.get('AB_C','1'))); self.stamp()
        self.conv(); self.stamp()
        self.arrive(); self.stamp()
        if stop == 'conv1':
            self.wait(); a("s_branch L_END")
        a(f"s_mov_b32 {S_XIN}, {S_XOUT}")
        self.wstage_kv()
        self.qkv_pre()
        if os.environ.get('OUTT') == '1':
            lo = a.label('OT')
            a(f"""
            s_cmp_eq_u32 {S_LAYER}, 1
            s_cbranch_scc0 {lo}
            s_cmp_eq_u32 {S_W}, 3
            s_cbranch_scc0 {lo}
            v_and_b32 v190, 3, v{V_LANE}
            v_lshlrev_b32 v190, 19, v190
            buffer_load_dword v191, v190, {SRD_OUT}, 0 offen
            {lo}:
            """)
        self.wait(l0skip=True, sleep0=12, adr=int(os.environ.get('AR_Q','1')), adr0=int(os.environ.get('AR_Q0','3')), adb=int(os.environ.get('AB_Q','1'))); self.stamp()
        self.qkv(); self.stamp()
        self.arrive(); self.stamp()
        if stop == 'qkv1':
            self.wait(); a("s_branch L_END")
            if os.environ.get('DBGW'):
                a(f"""
                s_lshl_b32 {S_T0}, {S_ID}, 11
                s_add_u32 {S_T0}, {S_T0}, 0x40000
                v_lshlrev_b32 v1, 3, v0
                v_add_u32 v1, {S_T0}, v1
                v_mov_b32 v2, v{V_WSK}
                v_mov_b32 v3, v{V_WSV}
                buffer_store_dwordx2 v[2:3], v1, {SRD_WS}, 0 offen
                """)
            self.wait(); a("s_branch L_END")
        a(f"s_mov_b32 {S_XOUT}, {XT[2]}")
        self.outp_pre()
        self.wait(sleep0=22, adr=int(os.environ.get('AR_O','2')), adr0=int(os.environ.get('AR_O0','3')), adb=int(os.environ.get('AB_O','2'))); self.stamp()
        self.outp(); self.stamp()
        a(f"s_cmp_eq_u32 {S_LAYER}, 1\ns_cbranch_scc1 L_END")
        self.arrive(); self.stamp()
        if stop == 'out1':
            self.wait(); a("s_branch L_END")
        a(f"s_mov_b32 {S_LAYER}, 1\ns_branch L_LAYER\nL_END:")
        self.tsdump()
        a("L_EXIT:\ns_endpgm")
        body = a.finalize()
        hdr = open(os.path.join(os.path.dirname(os.path.abspath(__file__)), 'header.txt')).read()
        hdr = hdr.replace('@@LAUNCH@@', f'; @launch grid=(256,1,1) block=(256,1,1) lds={LDS_SIZE}')
        txt = hdr + f""".amdgcn_target "amdgcn-amd-amdhsa--gfx950"
.text
.globl {NAME}_kernel
.p2align 8
.type {NAME}_kernel,@function
{NAME}_kernel:
""" + body + f""".section .rodata,"a"
.p2align 6
.amdhsa_kernel {NAME}_kernel
  .amdhsa_next_free_vgpr 512
  .amdhsa_next_free_sgpr 102
  .amdhsa_accum_offset 256
  .amdhsa_group_segment_fixed_size 0
  .amdhsa_kernarg_size 104
  .amdhsa_user_sgpr_count 2
  .amdhsa_user_sgpr_kernarg_segment_ptr 1
  .amdhsa_system_sgpr_workgroup_id_x 1
.end_amdhsa_kernel
"""
        return txt

if __name__ == '__main__':
    import argparse
    ap = argparse.ArgumentParser()
    ap.add_argument('--stop', default=None)
    ap.add_argument('--ts', action='store_true')
    ap.add_argument('-o', default='k.s')
    args = ap.parse_args()
    g = Gen(stop=args.stop, ts=args.ts)
    t = g.build()
    open(args.o, 'w').write(t)
    print('instructions', g.a.count(), 'nops inserted', g.a.nnop, 'bytes', len(t))
```

```python
import sys, os, math
sys.path.insert(0, os.path.dirname(os.path.abspath(__file__)))
from asmgen import Asm

NAME = 'interleave_layers__ssm_conv_s4d__linear_attn_block__prompt'

CNT  = 0x0
ZR   = 0x30000
KVM  = [ZR, ZR + 32768]
ZZ   = [ZR + 65536, ZR + 98304]
ST3  = ZR + 131072
ZRSZ = 147456
ST1  = 0x1C000
GCNT = 0x20000
TS   = 0x80000
XT   = [0x100000, 0x300000, 0x500000, 0x700000]
PQ   = [0x900000, 0xB00000]
WQF  = 0xD00000
WOFG = 0xE80000
WS_SIZE = 0xF00000

L_WO = 0
L_KC = 65536
L_XL = 82432
L_MISC = L_XL + 65536
LDS_SIZE = 163840
L_U  = L_XL
L_Y  = L_XL + 18560
L_TA = L_XL
L_TB = L_XL + 9216
L_TW = L_XL + 46080
L_CT = L_XL + 18432
L_KD = L_XL + 28672
L_KVF = L_XL
L_O32 = L_XL + 17408
L_OT  = L_XL + 52224
L_S2R = L_MISC
L_S2M = L_MISC + 256
L_P2 = L_MISC + 1024
L_RW = L_MISC + 2048
L_STG = L_MISC + 512

STPERM = 2
FILLPOL = int(os.environ.get('FILLPOL', '0'))
INF = os.environ.get('INF', '')
TLBW = int(os.environ.get('TLBW', '0'))
TLBWARM = ('v_and_b32 v8, 15, v255' + chr(10) + '        v_lshlrev_b32 v8, 20, v8' + chr(10) + '        buffer_load_dword v197, v8, s[44:47], 0 offen') if TLBW == 1 else ''
TLBSH = 20
OUTWARM = ('v_and_b32 v8, 3, v255' + chr(10) + '        v_lshlrev_b32 v8, 19, v8' + chr(10) + '        buffer_load_dword v196, v8, s[56:59], 0 offen') if os.environ.get('OUTW','0') == '1' else ''
EARLYPF = ('v_lshlrev_b32 v198, 7, v0\n        global_load_dword v198, v198, s[66:67]' if os.environ.get('EARLY', '1') == '1' else '')
QSPLIT = int(os.environ.get('QSPLIT', '0'))
BMODE = os.environ.get('BMODE', 'adapt')
ADR = int(os.environ.get('ADR', '1'))
ADB = int(os.environ.get('ADB', '2'))
FLG = 0x24000
OUTF = os.environ.get('OUTF', '')
CODE_CHUNKS = int(os.environ.get('CODE_CHUNKS', '5'))
SLEEP = int(os.environ.get('SLEEP', '1' if os.environ.get('BMODE','adapt') == 'flag16' else '3'))
SLEEP0 = int(os.environ.get('SLEEP0', '14'))
SLEEPG = int(os.environ.get('SLEEPG', '6'))
LOG2E = 1.4426950408889634
def f2u(x):
    import struct
    return struct.unpack('<I', struct.pack('<f', x))[0]
def fx(x): return '0x%08x' % f2u(x)
def pk(r): return f"v[{r}:{r+1}]"
def v4(r): return f"v[{r}:{r+3}]"

S_ID='s2'; S_W='s3'; S_RT='s4'; S_CG='s5'; S_LAYER='s6'; S_TGT='s7'
SRD_WS='s[44:47]'; SRD_WQ='s[48:51]'; SRD_WO='s[52:55]'; SRD_OUT='s[56:59]'; SRD_X0='s[60:63]'
S_ONES='s64'
S_EXS='s[70:71]'
S_XIN='s72'; S_XOUT='s73'; S_ST='s74'; S_PQ='s75'; S_KV='s76'; S_Z='s77'
S_SPIN='s78'
S_TGA='s65'
S_T0='s8'; S_T1='s9'; S_T2='s10'; S_T3='s11'; S_T4='s12'; S_T5='s13'
S_DM='s14'; S_DS='s15'

V_LANE=255; V_WSK=254; V_WSV=252; V_WSQ=248
V_DSK1=246; V_DSK0=244
V_CNT=239; V_POLL=238; V_ONE=237
V_L16=243; V_H=242
V_TS=241; V_TS2=240
V_RANK=232
V_CNTA=233; V_POLLA=234; V_PA=235
V_PT=236

WOF = 104
def weave(main, fill, per=2, lead=0):
    out = []; fi = 0
    for k, m in enumerate(main):
        out.append(m)
        if k >= lead:
            for _ in range(per):
                if fi < len(fill): out.append(fill[fi]); fi += 1
    out += fill[fi:]
    return out
def zipmerge(*lists):
    out = []
    n = max(len(l) for l in lists)
    for i in range(n):
        for l in lists:
            if i < len(l): out.append(l[i])
    return out
import re as _re
def unpk(ins):
    m = _re.match(r'v_pk_(mul|add|fma)_f32 v\[(\d+):\d+\], (.*)', ins)
    if not m: return [ins]
    op, d, rest = m.group(1), int(m.group(2)), m.group(3)
    srcs = [int(x) for x in _re.findall(r'v\[(\d+):\d+\]', rest)]
    n = len(srcs)
    hi = [1]*n
    mm = _re.search(r'op_sel_hi:\[([\d,]+)\]', rest)
    if mm: hi = [int(x) for x in mm.group(1).split(',')]
    assert 'op_sel:[' not in rest
    neg = [0]*n
    mm = _re.search(r'neg_lo:\[([\d,]+)\]', rest)
    if mm: neg = [int(x) for x in mm.group(1).split(',')]
    out = []
    for h in range(2):
        ops = []
        for i in range(n):
            r = srcs[i] + (h if hi[i] else 0)
            ops.append(('-' if neg[i] else '') + f'v{r}')
        out.append(f"v_{op}_f32 v{d+h}, " + ', '.join(ops))
    return out
def unpk_all(L):
    o = []
    for x in L: o += unpk(x)
    return o
def lines(s): return [t.strip() for t in s.split('\n') if t.strip()]

class Gen:
    def __init__(self, stop=None, ts=False):
        self.a = Asm(); self.stop = stop; self.ts = ts; self.tsn = 0
    def emit(self, lst):
        for x in lst: self.a(x)

    def stamp(self):
        if not self.ts: return
        n = self.tsn; self.tsn += 1
        self.a(f"""
        s_memrealtime s[80:81]
        s_lshl_b32 s82, {S_LAYER}, 5
        s_add_u32 m0, s82, {n}
        s_waitcnt lgkmcnt(0)
        v_writelane_b32 v{V_TS}, s80, m0
        """)
    def sub(self, i):
        if self.ts: self.a(f"s_memtime s[{86+2*i}:{87+2*i}]")
    def subflush(self, phase, n):
        if not self.ts: return
        a = self.a
        a(f"s_waitcnt lgkmcnt(0)\ns_lshl_b32 s82, {S_LAYER}, 5\ns_add_u32 m0, s82, {phase*8}")
        for i in range(n):
            a(f"v_writelane_b32 v{V_TS2}, s{86+2*i}, m0\ns_add_u32 m0, m0, 1\ns_nop 3")
    def tsdump(self):
        if not self.ts: return
        a = self.a; l = a.label('TD')
        if os.environ.get('DBGTS'):
            sel = [1,2,3,4,5,7,8,10,11,12, 32+4,32+5,32+7,32+8,32+10]
            a(f"""
            s_cmp_eq_u32 {S_ID}, 0
            s_cbranch_scc0 {l}
            s_cmp_eq_u32 {S_W}, 0
            s_cbranch_scc0 {l}
            v_readlane_b32 s80, v{V_TS}, 0
            """)
            for i, k in enumerate(sel):
                lane = k
                a(f"v_readlane_b32 s81, v{V_TS}, {lane}\ns_nop 3\ns_sub_u32 s81, s81, s80\nv_mov_b32 v1, s81\nv_mov_b32 v2, {4*(i+1)}\ns_mov_b64 exec, 1\nglobal_store_dword v2, v1, s[38:39]\ns_mov_b64 exec, -1")
            a(f"{l}:")
            return
        a(f"""
        s_cmp_eq_u32 {S_W}, 0
        s_cbranch_scc0 {l}
        s_lshl_b32 s82, {S_ID}, 9
        s_add_u32 s82, s82, {TS}
        v_lshlrev_b32 v1, 2, v{V_LANE}
        v_add_u32 v1, s82, v1
        buffer_store_dword v{V_TS}, v1, {SRD_WS}, 0 offen
        buffer_store_dword v{V_TS2}, v1, {SRD_WS}, 0 offen offset:256
        {l}:
        """)

    def arrive_core(self, finish=True):
        a = self.a
        if BMODE == 'flat':
            a(f"buffer_atomic_add v{V_ONE}, v{V_CNT}, {SRD_WS}, 0 offen sc1")
            return
        a(f"""
        v_mov_b32 v{V_RANK}, 1
        buffer_atomic_add v{V_RANK}, v{V_CNT}, {SRD_WS}, 0 offen sc0 sc1
        """)
        if finish: self.arrive_finish()
    def arrive_finish(self):
        a = self.a
        if BMODE == 'flag16':
            l = a.label('NL')
            a(f"""
            s_sub_u32 {S_T0}, {S_TGT}, 1
            s_waitcnt vmcnt(0)
            v_cmp_eq_u32 vcc, {S_T0}, v{V_RANK}
            s_cbranch_vccz {l}
            v_mov_b32 v{V_RANK}, {S_TGT}
            v_add_u32 v{V_PT}, {FLG - CNT}, v{V_CNT}
            buffer_store_dword v{V_RANK}, v{V_PT}, {SRD_WS}, 0 offen sc1
            {l}:
            """)
    def arrive(self):
        a = self.a; l = a.label('ARR')
        a(f"""
        s_waitcnt vmcnt(0) lgkmcnt(0)
        s_barrier
        s_add_u32 {S_TGT}, {S_TGT}, 16
        s_cmp_eq_u32 {S_W}, 0
        s_cbranch_scc0 {l}
        s_mov_b64 exec, 1
        """)
        self.arrive_core()
        a(f"""
        s_mov_b64 exec, -1
        {l}:
        """)
    def wait(self, l0skip=False, sleep0=None, adr=None, adb=None, adr0=None):
        a = self.a
        l = a.label('WT'); lp = a.label('POLL'); ld = a.label('PD'); ls = a.label('NS')
        SLEEP0 = sleep0 if sleep0 is not None else globals()['SLEEP0']
        if BMODE == 'flat':
            pre = ((f's_cmp_eq_u32 {S_LAYER}, 0' + chr(10) + f's_cbranch_scc1 {lp}' + chr(10)) if l0skip else '') + (f's_sleep {SLEEP0}' if SLEEP0 else '')
        elif BMODE == 'flag16':
            pre = ''
        else:
            la = a.label('AD'); lb = a.label('AD')
            ADR = adr if adr is not None else globals()['ADR']; ADB = adb if adb is not None else globals()['ADB']
            adr0 = adr0 if adr0 is not None else ADR
            pre = f'''s_cmp_eq_u32 {S_LAYER}, 0
            s_cselect_b32 {S_T1}, {adr0}, {ADR}
            s_waitcnt vmcnt(0)
            v_readfirstlane_b32 {S_T0}, v{V_RANK}
            s_and_b32 {S_T0}, {S_T0}, 15
            s_sub_u32 {S_T0}, 15, {S_T0}
            s_mul_i32 {S_T0}, {S_T0}, {S_T1}
            s_add_u32 {S_T0}, {S_T0}, {ADB}
            {la}:
            s_sleep 1
            s_sub_u32 {S_T0}, {S_T0}, 1
            s_cmp_gt_i32 {S_T0}, 0
            s_cbranch_scc1 {la}'''
        a(f"""
        s_cmp_eq_u32 {S_W}, 0
        s_cbranch_scc0 {l}
        s_mov_b64 exec, 0xffff
        s_mov_b32 {S_SPIN}, 0
        {pre}
        {lp}:
        buffer_load_dword v{V_PT}, v{V_POLL}, {SRD_WS}, 0 offen {('offset:0' if BMODE != 'flag16' else '')} sc1
        s_add_u32 {S_SPIN}, {S_SPIN}, 1
        s_waitcnt vmcnt(0)
        v_cmp_gt_u32 vcc, {S_TGT}, v{V_PT}
        s_cbranch_vccz {ld}
        {('s_sleep ' + str(SLEEP)) if SLEEP else ''}
        s_cmp_lt_u32 {S_SPIN}, 0x200000
        s_cbranch_scc1 {lp}
        {ld}:
        s_mov_b64 exec, -1
        {l}:
        s_barrier
        """)

    def reduce_h(self, r, t):
        return lines(f"""
        v_mov_b32 v{t}, v{r}
        v_permlane16_swap_b32 v{r}, v{t}
        v_add_f32 v{r}, v{r}, v{t}
        v_mov_b32 v{t}, v{r}
        v_permlane32_swap_b32 v{r}, v{t}
        v_add_f32 v{r}, v{r}, v{t}
        """)
    def reduce16(self, r):
        return lines(f"""
        v_add_f32_dpp v{r}, v{r}, v{r} quad_perm:[1,0,3,2] row_mask:0xf bank_mask:0xf
        v_add_f32_dpp v{r}, v{r}, v{r} quad_perm:[2,3,0,1] row_mask:0xf bank_mask:0xf
        v_add_f32_dpp v{r}, v{r}, v{r} row_half_mirror row_mask:0xf bank_mask:0xf
        v_add_f32_dpp v{r}, v{r}, v{r} row_mirror row_mask:0xf bank_mask:0xf
        """)
    def ln_final1(self, sm, sq, r_out, mr_out, t):
        return lines(f"""
        v_mul_f32 v{t}, {fx(1/512)}, v{sm}
        v_mul_f32 v{t+1}, {fx(1/512)}, v{sq}
        v_fma_f32 v{t+1}, -v{t}, v{t}, v{t+1}
        v_cvt_pk_bf16_f32 v{t+2}, v{t}, v{t+1}
        v_lshlrev_b32 v{t}, 16, v{t+2}
        v_and_b32 v{t+1}, 0xffff0000, v{t+2}
        v_add_f32 v{t+1}, {fx(1e-5)}, v{t+1}
        v_cvt_pk_bf16_f32 v{t+1}, v{t+1}, v{t+1}
        v_and_b32 v{t+1}, 0xffff0000, v{t+1}
        v_sqrt_f32 v{t+1}, v{t+1}
        v_cvt_pk_bf16_f32 v{t+1}, v{t+1}, v{t+1}
        v_and_b32 v{t+1}, 0xffff0000, v{t+1}
        v_rcp_f32 v{r_out}, v{t+1}
        v_mul_f32 v{mr_out}, v{t}, v{r_out}
        """)

    def prologue(self):
        a = self.a
        a(f"""
        s_cmp_ge_u32 {S_ID}, 256
        s_cbranch_scc1 L_EXIT
        s_getpc_b64 s[66:67]
        s_load_dwordx16 s[16:31], s[0:1], 0
        s_load_dwordx8 s[32:39], s[0:1], 64
        s_load_dwordx2 s[40:41], s[0:1], 96
        {EARLYPF}
        v_and_b32 v{V_LANE}, 63, v0
        v_lshrrev_b32 v1, 6, v0
        v_and_b32 v{V_L16}, 15, v0
        v_bfe_u32 v{V_H}, v0, 4, 2
        v_readfirstlane_b32 {S_W}, v1
        s_and_b32 {S_T0}, {S_ID}, 7
        s_lshl_b32 {S_T0}, {S_T0}, 2
        s_lshr_b32 {S_T1}, {S_ID}, 6
        s_add_u32 {S_RT}, {S_T0}, {S_T1}
        s_lshr_b32 {S_CG}, {S_ID}, 3
        s_and_b32 {S_CG}, {S_CG}, 7
        s_mov_b32 {S_LAYER}, 0
        s_mov_b32 {S_TGT}, 0
        s_mov_b32 {S_ONES}, 0x3f803f80
        v_mov_b32 v{V_ONE}, 1
        s_and_b32 {S_T0}, {S_ID}, 15
        s_lshl_b32 {S_T0}, {S_T0}, 10
        v_mov_b32 v{V_CNT}, {S_T0}
        v_lshlrev_b32 v{V_POLL}, 10, v{V_LANE}
        v_add_u32 v{V_POLL}, {FLG if BMODE == 'flag16' else CNT}, v{V_POLL}
        s_waitcnt lgkmcnt(0)
        s_mov_b32 s60, s16
        s_and_b32 s61, s17, 0xffff
        s_mov_b32 s62, {2048*512*2}
        s_mov_b32 s63, 0x20000
        """)
    def prologue2(self):
        a = self.a
        a(f"""
        s_mov_b32 s44, s40
        s_and_b32 s45, s41, 0xffff
        s_mov_b32 s46, {WS_SIZE}
        s_mov_b32 s47, 0x20000
        s_mov_b32 s48, s32
        s_and_b32 s49, s33, 0xffff
        s_mov_b32 s50, {512*1536*2}
        s_mov_b32 s51, 0x20000
        s_mov_b32 s52, s34
        s_and_b32 s53, s35, 0xffff
        s_mov_b32 s54, {512*512*2}
        s_mov_b32 s55, 0x20000
        s_mov_b32 s56, s36
        s_and_b32 s57, s37, 0xffff
        s_mov_b32 s58, {2048*512*2}
        s_mov_b32 s59, 0x20000
        v_add_u32 v{V_CNTA}, {FLG - CNT}, v{V_CNT}
        v_lshlrev_b32 v{V_POLLA}, 10, v{V_LANE}
        v_add_u32 v{V_POLLA}, {FLG}, v{V_POLLA}
        """)

    def dma_weight(self, srd, rowpitch, colbyte, lds_base, swz, t, defer=False):
        a = self.a
        a(f"""
        v_lshrrev_b32 v{t}, 3, v{V_LANE}
        v_mul_u32_u24 v{t}, {rowpitch}, v{t}
        v_bfe_u32 v{t+1}, v{V_LANE}, 1, 2
        v_bfe_u32 v{t+2}, v{V_LANE}, 4, 1
        """)
        if swz == 'x':
            a(f"s_and_b32 {S_T0}, {S_W}, 1\ns_lshl_b32 {S_T0}, {S_T0}, 1\nv_or_b32 v{t+2}, {S_T0}, v{t+2}")
        else:
            a(f"v_lshlrev_b32 v{t+2}, 1, v{t+2}")
        a(f"""
        v_xor_b32 v{t+1}, v{t+1}, v{t+2}
        v_lshl_add_u32 v{t}, v{t+1}, 5, v{t}
        v_and_b32 v{t+1}, 1, v{V_LANE}
        v_lshl_add_u32 v{t}, v{t+1}, 4, v{t}
        s_lshl_b32 {S_T0}, {S_CG}, 7
        s_add_u32 {S_T0}, {S_T0}, {colbyte}
        v_add_u32 v{t}, {S_T0}, v{t}
        s_mul_i32 {S_DS}, {S_W}, {8*rowpitch}
        s_lshl_b32 {S_DM}, {S_W}, 10
        s_add_u32 {S_DM}, {S_DM}, {lds_base}
        """)
        groups = [lines(f"""
            s_mov_b32 m0, {S_DM}
            s_add_u32 {S_DM}, {S_DM}, 4096
            buffer_load_dwordx4 v{t}, {srd}, {S_DS} offen lds
            s_add_u32 {S_DS}, {S_DS}, {32*rowpitch}
            """) for i in range(16)]
        if defer: return groups
        for g in groups: self.emit(g)

    def wread_lists(self, lds_base, abase, part, t, o):
        rd = lines(f"""
        v_lshrrev_b32 v{t}, 2, v{V_L16}
        v_lshl_add_u32 v{t+1}, v{V_H}, 3, v{t}
        v_lshlrev_b32 v{t+1}, 7, v{t+1}
        v_and_b32 v{t+2}, 3, v{V_L16}
        v_lshl_add_u32 v{t+1}, v{t+2}, 3, v{t+1}
        v_add_u32 v{t+1}, {lds_base}, v{t+1}
        v_lshrrev_b32 v{t}, 1, v{t}
        v_and_b32 v{t+2}, 1, v{V_H}
        v_lshl_or_b32 v{t}, v{t+2}, 1, v{t}
        v_xor_b32 v{t}, {S_W}, v{t}
        v_lshl_add_u32 v{t+3}, v{t}, 5, v{t+1}
        """)
        for i in range(4): rd.append(f"v_mov_b32 v{o+i}, {S_ONES}")
        for ks in range(16):
            rd.append(f"ds_read_b64_tr_b16 a[{abase+4*ks}:{abase+4*ks+1}], v{t+3} offset:{ks*4096}")
            rd.append(f"ds_read_b64_tr_b16 a[{abase+4*ks+2}:{abase+4*ks+3}], v{t+3} offset:{ks*4096+512}")
        mf = []
        for ks in range(16):
            c = '0' if ks == 0 else v4(o+4)
            w = f"a[{abase+4*ks}:{abase+4*ks+3}]"
            if part == 0: mf.append(f"v_mfma_f32_16x16x32_bf16 {v4(o+4)}, {w}, {v4(o)}, {c}")
            else: mf.append(f"v_mfma_f32_16x16x32_bf16 {v4(o+4)}, {v4(o)}, {w}, {c}")
        if part == 0: mf += [f"v_mov_b32 v{V_WSQ+i}, v{o+4+i}" for i in range(4)]
        elif part == 1: mf.append(f"v_mov_b32 v{V_WSK}, v{o+4}")
        else: mf.append(f"v_mov_b32 v{V_WSV}, v{o+4}")
        return rd, mf

    def p0(self):
        a = self.a
        a(f"""
        v_lshrrev_b32 v1, 3, v0
        s_lshl_b32 {S_T0}, {S_RT}, 16
        s_lshl_b32 {S_T1}, {S_CG}, 7
        s_add_u32 {S_T0}, {S_T0}, {S_T1}
        v_lshlrev_b32 v2, 10, v1
        v_and_b32 v3, 7, v0
        v_lshl_add_u32 v2, v3, 4, v2
        v_add_u32 v2, {S_T0}, v2
        buffer_load_dwordx4 v[10:13], v2, {SRD_X0}, 0 offen {INF}
        v_add_u32 v4, 0x8000, v2
        buffer_load_dwordx4 v[14:17], v4, {SRD_X0}, 0 offen {INF}
        s_and_b32 {S_T0}, {S_ID}, 63
        s_lshl_b32 {S_T0}, {S_T0}, 2
        s_add_u32 {S_T0}, {S_T0}, {S_W}
        s_lshl_b32 {S_T0}, {S_T0}, 2
        s_lshr_b32 {S_T1}, {S_ID}, 6
        s_and_b32 {S_T2}, {S_T1}, 1
        s_lshl_b32 {S_T2}, {S_T2}, 1
        s_add_u32 {S_T0}, {S_T0}, {S_T2}
        s_lshr_b32 {S_T1}, {S_T1}, 1
        s_lshl_b32 {S_T1}, {S_T1}, 10
        s_add_u32 {S_T0}, {S_T0}, {S_T1}
        s_lshl_b32 {S_T0}, {S_T0}, 10
        v_lshlrev_b32 v5, 4, v{V_LANE}
        v_add_u32 v5, {S_T0}, v5
        buffer_load_dwordx4 v[18:21], v5, {SRD_X0}, 0 offen {INF}
        buffer_load_dwordx4 v[22:25], v5, {SRD_X0}, 0 offen offset:1024 {INF}
        s_lshl_b32 {S_T0}, {S_ID}, 9
        v_lshlrev_b32 v6, 1, v0
        v_add_u32 v6, {S_T0}, v6
        global_load_ushort v26, v6, s[18:19] {INF}
        global_load_ushort v27, v6, s[20:21] {INF}
        global_load_ushort v28, v6, s[22:23] {INF}
        global_load_ushort v29, v6, s[24:25] {INF}
        v_lshrrev_b32 v7, 7, v0
        s_lshl_b32 {S_T0}, {S_ID}, 1
        v_add_lshl_u32 v7, v7, {S_T0}, 1
        global_load_ushort v30, v7, s[26:27] {INF}
        s_lshl_b32 {S_T0}, {S_ID}, 2
        v_mov_b32 v7, {S_T0}
        global_load_dword v{V_DSK0}, v7, s[28:29] {INF}
        """)
        self.prologue2()
        a(f"""
        {TLBWARM}
        {OUTWARM}
        """)
        lw = a.label('WT'); lw2 = a.label('WT')
        a(f"""
        s_and_b32 {S_T2}, {S_ID}, 7
        s_cmp_lt_u32 {S_ID}, 192
        s_cbranch_scc0 {lw}
        s_lshr_b32 {S_T3}, {S_ID}, 3
        s_mul_i32 {S_T0}, {S_T2}, {64*3072}
        s_lshl_b32 {S_T1}, {S_T3}, 7
        s_add_u32 {S_T0}, {S_T0}, {S_T1}
        v_mul_u32_u24 v8, 3072, v1
        v_lshl_add_u32 v8, v3, 4, v8
        v_add_u32 v8, {S_T0}, v8
        buffer_load_dwordx4 v[200:203], v8, {SRD_WQ}, 0 offen {INF}
        v_add_u32 v8, {32*3072}, v8
        buffer_load_dwordx4 v[204:207], v8, {SRD_WQ}, 0 offen {INF}
        s_branch {lw2}
        {lw}:
        s_sub_u32 {S_T3}, {S_ID}, 192
        s_lshr_b32 {S_T3}, {S_T3}, 3
        s_lshl_b32 {S_T0}, {S_T2}, 16
        s_lshl_b32 {S_T1}, {S_T3}, 7
        s_add_u32 {S_T0}, {S_T0}, {S_T1}
        v_lshlrev_b32 v8, 10, v1
        v_lshl_add_u32 v8, v3, 4, v8
        v_add_u32 v8, {S_T0}, v8
        buffer_load_dwordx4 v[200:203], v8, {SRD_WO}, 0 offen {INF}
        v_add_u32 v8, 0x8000, v8
        buffer_load_dwordx4 v[204:207], v8, {SRD_WO}, 0 offen {INF}
        {lw2}:
        """)
        l = a.label('CI')
        a(f"""
        s_cmp_lt_u32 {S_ID}, 16
        s_cbranch_scc0 {l}
        s_cmp_eq_u32 {S_W}, 0
        s_cbranch_scc0 {l}
        s_mov_b64 exec, 1
        v_mov_b32 v8, 0
        buffer_store_dword v8, v{V_CNT}, {SRD_WS}, 0 offen sc1
        v_add_u32 v9, {FLG - CNT}, v{V_CNT}
        buffer_store_dword v8, v9, {SRD_WS}, 0 offen sc1
        s_mov_b64 exec, -1
        {l}:
        """)
        IDX = 180
        a(f"v_lshlrev_b32 v31, 3, v0\nv_sub_u32 v31, 2047, v31\ns_mov_b32 {S_T5}, {L_KD}")
        chains = []
        for i in range(0, 10, 2):
            t = 32 + 4*(i//2)
            c = lines(f"""
            v_subrev_u32 v{t}, {i}, v31
            v_subrev_u32 v{t+1}, {i+1}, v31
            v_max_i32 v{t}, 0, v{t}
            v_max_i32 v{t+1}, 0, v{t+1}
            v_cvt_f32_i32 v{t}, v{t}
            v_cvt_f32_i32 v{t+1}, v{t+1}
            v_cvt_pk_bf16_f32 v{t+2}, v{t}, v{t+1}
            v_lshlrev_b32 v{t}, 16, v{t+2}
            v_and_b32 v{t+1}, 0xffff0000, v{t+2}
            v_cvt_u32_f32 v{t}, v{t}
            v_cvt_u32_f32 v{t+1}, v{t+1}
            v_lshrrev_b32 v{t+2}, 2, v{t}
            v_lshrrev_b32 v{t+3}, 2, v{t+1}
            v_add_u32 v{t+2}, 384, v{t+2}
            v_add_u32 v{t+3}, 384, v{t+3}
            v_min_u32 v{t}, v{t}, v{t+2}
            v_min_u32 v{t+1}, v{t+1}, v{t+3}
            v_lshrrev_b32 v{t+2}, 5, v{t}
            v_lshrrev_b32 v{t+3}, 5, v{t+1}
            v_add_u32 v{t}, v{t}, v{t+2}
            v_add_u32 v{t+1}, v{t+1}, v{t+3}
            v_lshl_add_u32 v{IDX+i}, v{t}, 2, {S_T5}
            """)
            if i + 1 < 9: c.append(f"v_lshl_add_u32 v{IDX+i+1}, v{t+1}, 2, {S_T5}")
            chains.append(c)
        self.emit(zipmerge(*chains))
        a(f"""
        v_mul_u32_u24 v8, 144, v1
        v_lshl_add_u32 v8, v3, 4, v8
        v_add_u32 v9, {L_TW}, v8
        v_add_u32 v8, {L_TA}, v8
        s_waitcnt vmcnt({10 + (1 if OUTWARM else 0) + (1 if TLBWARM else 0)})
        ds_write_b128 v8, v[10:13]
        ds_write_b128 v8, v[14:17] offset:{32*144}
        s_waitcnt vmcnt({8 + (1 if OUTWARM else 0) + (1 if TLBWARM else 0)})
        """)
        for r in range(32, 36): a(f"v_mov_b32 v{r}, 0")
        for j in range(4):
            for row in range(2):
                b = 18 + 4*row; sm = 32 + 2*row
                a(f"v_dot2_f32_bf16 v{sm}, v{b+j}, {S_ONES}, v{sm}\nv_dot2_f32_bf16 v{sm+1}, v{b+j}, v{b+j}, v{sm+1}")
        self.emit(zipmerge(*[self.reduce16(r) for r in range(32, 36)]))
        self.emit(zipmerge(*[self.reduce_h(r, 36 + (r-32)) for r in range(32, 36)]))
        a(f"""
        s_lshl_b32 {S_T0}, {S_W}, 4
        s_add_u32 {S_T0}, {S_T0}, {L_STG}
        v_mov_b32 v36, {S_T0}
        ds_write_b128 v36, v[32:35]
        s_waitcnt vmcnt(0)
        ds_write_b128 v9, v[200:203]
        ds_write_b128 v9, v[204:207] offset:{32*144}
        s_cmp_lt_u32 {S_ID}, 16
        s_cbranch_scc0 L_CI2
        s_cmp_eq_u32 {S_W}, 0
        s_cbranch_scc0 L_CI2
        s_mov_b64 exec, 1
        v_mov_b32 v37, 0
        global_atomic_add v37, v{V_ONE}, s[38:39] sc1
        s_mov_b64 exec, -1
        L_CI2:
        v_lshrrev_b32 v9, 2, v{V_L16}
        v_lshl_add_u32 v9, v{V_H}, 3, v9
        v_mul_u32_u24 v9, 144, v9
        v_and_b32 v2, 3, v{V_L16}
        v_lshl_add_u32 v9, v2, 3, v9
        s_lshl_b32 {S_T0}, {S_W}, 5
        s_add_u32 {S_T0}, {S_T0}, {L_TA}
        v_add_u32 v9, {S_T0}, v9
        s_lshl_b32 {S_T0}, {S_W}, 4
        v_add_u32 v2, {S_T0}, v{V_L16}
        v_mul_u32_u24 v2, 144, v2
        v_lshl_add_u32 v2, v{V_H}, 4, v2
        v_add_u32 v2, {L_TB}, v2
        s_waitcnt lgkmcnt(0)
        s_barrier
        ds_read_b64_tr_b16 v[10:11], v9
        ds_read_b64_tr_b16 v[12:13], v9 offset:{4*144}
        ds_read_b64_tr_b16 v[14:15], v9 offset:{32*144}
        ds_read_b64_tr_b16 v[16:17], v9 offset:{36*144}
        """)
        lz = a.label('WF'); lz2 = a.label('WF')
        a(f"""
        s_cmp_lt_u32 {S_ID}, 192
        s_cbranch_scc0 {lz}
        v_add_u32 v8, {L_TW - L_TA}, v9
        ds_read_b64_tr_b16 v[200:201], v8
        ds_read_b64_tr_b16 v[202:203], v8 offset:{4*144}
        ds_read_b64_tr_b16 v[204:205], v8 offset:{32*144}
        ds_read_b64_tr_b16 v[206:207], v8 offset:{36*144}
        s_lshr_b32 {S_T0}, {S_T3}, 3
        s_lshl_b32 {S_T0}, {S_T0}, 19
        s_and_b32 {S_T1}, {S_T3}, 7
        s_lshl_b32 {S_T1}, {S_T1}, 2
        s_add_u32 {S_T1}, {S_T1}, {S_W}
        s_lshl_b32 {S_T1}, {S_T1}, 14
        s_add_u32 {S_T0}, {S_T0}, {S_T1}
        s_lshl_b32 {S_T1}, {S_T2}, 11
        s_add_u32 {S_T0}, {S_T0}, {S_T1}
        s_add_u32 {S_T0}, {S_T0}, {WQF}
        s_branch {lz2}
        {lz}:
        v_lshrrev_b32 v8, 2, v{V_L16}
        v_lshrrev_b32 v7, 1, v{V_H}
        v_lshl_add_u32 v8, v7, 2, v8
        s_lshl_b32 {S_T0}, {S_W}, 4
        v_add_u32 v8, {S_T0}, v8
        v_mul_u32_u24 v8, 144, v8
        v_and_b32 v7, 1, v{V_H}
        v_lshl_add_u32 v8, v7, 5, v8
        v_and_b32 v7, 3, v{V_L16}
        v_lshl_add_u32 v8, v7, 3, v8
        v_add_u32 v8, {L_TW}, v8
        ds_read_b64_tr_b16 v[200:201], v8
        ds_read_b64_tr_b16 v[202:203], v8 offset:{8*144}
        ds_read_b64_tr_b16 v[204:205], v8 offset:64
        ds_read_b64_tr_b16 v[206:207], v8 offset:{8*144+64}
        s_lshl_b32 {S_T0}, {S_T3}, 16
        s_lshl_b32 {S_T1}, {S_T2}, 2
        s_add_u32 {S_T1}, {S_T1}, {S_W}
        s_lshl_b32 {S_T1}, {S_T1}, 11
        s_add_u32 {S_T0}, {S_T0}, {S_T1}
        s_add_u32 {S_T0}, {S_T0}, {WOFG}
        {lz2}:
        v_lshlrev_b32 v7, 4, v{V_LANE}
        v_add_u32 v7, {S_T0}, v7
        v_mul_u32_u24 v9, 144, v1
        v_lshl_add_u32 v9, v3, 4, v9
        v_add_u32 v9, {L_TB}, v9
        s_lshl_b32 {S_T0}, {S_CG}, 18
        s_lshl_b32 {S_T1}, {S_RT}, 7
        s_add_u32 {S_T0}, {S_T0}, {S_T1}
        s_add_u32 {S_T0}, {S_T0}, {XT[0]}
        v_lshlrev_b32 v4, 12, v1
        v_lshl_add_u32 v4, v3, 4, v4
        v_add_u32 v4, {S_T0}, v4
        v_add_u32 v5, 0x20000, v4
        s_waitcnt lgkmcnt(0)
        ds_write_b128 v2, v[10:13]
        ds_write_b128 v2, v[14:17] offset:64
        buffer_store_dwordx4 v[200:203], v7, {SRD_WS}, 0 offen sc1
        buffer_store_dwordx4 v[204:207], v7, {SRD_WS}, 0 offen offset:1024 sc1
        v_mov_b32 v6, 0
        s_waitcnt lgkmcnt(0)
        s_barrier
        ds_read_b128 v[10:13], v9
        ds_read_b128 v[14:17], v9 offset:{32*144}
        s_waitcnt lgkmcnt(0)
        buffer_store_dwordx4 v[10:13], v4, {SRD_WS}, 0 offen sc1
        buffer_store_dwordx4 v[14:17], v5, {SRD_WS}, 0 offen sc1
        global_load_dword v{V_PT}, v6, s[38:39] sc1
        """)
        l1 = a.label('Z1'); l2 = a.label('Z2')
        a(f"""
        s_cmp_eq_u32 {S_W}, 1
        s_cbranch_scc0 {l1}
        s_mov_b32 exec_lo, -1
        s_mov_b32 exec_hi, 0xf
        v_mov_b32 v10, 0
        v_mov_b32 v11, 0
        v_mov_b32 v12, 0
        v_mov_b32 v13, 0
        s_mul_i32 {S_T0}, {S_ID}, 576
        s_add_u32 {S_T0}, {S_T0}, {ZR}
        v_lshlrev_b32 v4, 4, v{V_LANE}
        v_add_u32 v4, {S_T0}, v4
        buffer_store_dwordx4 v[10:13], v4, {SRD_WS}, 0 offen sc1
        s_mov_b64 exec, -1
        {l1}:
        s_cmp_eq_u32 {S_W}, 2
        s_cbranch_scc0 {l2}
        s_mov_b64 exec, 0xf
        v_lshlrev_b32 v4, 4, v{V_LANE}
        v_add_u32 v5, {L_STG}, v4
        ds_read_b128 v[10:13], v5
        s_lshl_b32 {S_T0}, {S_ID}, 6
        s_add_u32 {S_T0}, {S_T0}, {ST1}
        v_add_u32 v4, {S_T0}, v4
        s_waitcnt lgkmcnt(0)
        buffer_store_dwordx4 v[10:13], v4, {SRD_WS}, 0 offen sc1
        s_mov_b64 exec, -1
        {l2}:
        """)
        self.stamp()
        self.kgen_consts()
        a("s_waitcnt lgkmcnt(0)\ns_barrier")
        self.sub(0)
        self.sub(1)
        self.kgen_main(IDX)
        self.sub(6)
        self.subflush(3, 7)
        self.stamp()

    def arrive_first(self):
        a = self.a
        la = a.label('ARR1'); lp = a.label('INITP'); ld = a.label('INITD')
        a(f"""
        s_waitcnt vmcnt(0)
        s_barrier
        s_add_u32 {S_TGT}, {S_TGT}, 16
        s_cmp_eq_u32 {S_W}, 0
        s_cbranch_scc0 {la}
        s_mov_b64 exec, 1
        s_mov_b32 {S_SPIN}, 0
        v_mov_b32 v6, 0
        {lp}:
        v_cmp_le_u32 vcc, 16, v{V_PT}
        s_cbranch_vccnz {ld}
        global_load_dword v{V_PT}, v6, s[38:39] sc1
        s_add_u32 {S_SPIN}, {S_SPIN}, 1
        s_waitcnt vmcnt(0)
        s_cmp_lt_u32 {S_SPIN}, 0x200000
        s_cbranch_scc1 {lp}
        {ld}:
        """)
        self.arrive_core(finish=False)
        a(f"""
        s_mov_b64 exec, -1
        {la}:
        """)

    def cexp(self, p, dr, di, t):
        return lines(f"""
        v_mul_f32 v{t}, {fx(p)}, v40
        v_mul_f32 v{t+1}, {fx(p)}, v41
        v_exp_f32 v{t}, v{t}
        v_fract_f32 v{t+1}, v{t+1}
        v_cos_f32 v{t+2}, v{t+1}
        v_sin_f32 v{t+1}, v{t+1}
        v_mul_f32 v{dr}, v{t}, v{t+2}
        v_mul_f32 v{di}, v{t}, v{t+1}
        """)

    def kgen_consts(self):
        a = self.a
        a(f"""
        v_and_b32 v{V_DSK1}, 0xffff0000, v{V_DSK0}
        v_lshlrev_b32 v{V_DSK0}, 16, v{V_DSK0}
        v_lshlrev_b32 v26, 16, v26
        v_lshlrev_b32 v30, 16, v30
        v_lshlrev_b32 v27, 16, v27
        v_lshlrev_b32 v28, 16, v28
        v_mul_f32 v30, {fx(LOG2E)}, v30
        v_mul_f32 v26, {fx(LOG2E)}, v26
        v_lshlrev_b32 v29, 16, v29
        v_exp_f32 v30, v30
        v_exp_f32 v26, v26
        v_cvt_pk_bf16_f32 v31, v30, v26
        v_lshlrev_b32 v30, 16, v31
        v_and_b32 v26, 0xffff0000, v31
        v_mul_f32 v40, v26, v30
        v_mul_f32 v41, v27, v30
        v_mul_f32 v42, v28, v30
        v_mul_f32 v43, v29, v30
        v_mul_f32 v40, {fx(-LOG2E)}, v40
        v_mul_f32 v41, {fx(1/(2*math.pi))}, v41
        v_add_f32 v42, v42, v42
        v_add_f32 v43, v43, v43
        v_rndne_f32 v31, v41
        v_sub_f32 v41, v41, v31
        """)
        ch = []
        for i, p in enumerate((256.0, 512.0, 1536.0)):
            t = 52 + 6*i; d = 44 + 2*i
            c = self.cexp(p, t+3, t+4, t)
            c += lines(f"""
            v_mul_f32 v{d}, v42, v{t+3}
            v_mul_f32 v{d+1}, v42, v{t+4}
            v_fma_f32 v{d}, -v43, v{t+4}, v{d}
            v_fma_f32 v{d+1}, v43, v{t+3}, v{d+1}
            """)
            ch.append(c)
        self.emit(zipmerge(*ch))
        a(f"""
        v_lshrrev_b32 v1, 7, v0
        v_mul_u32_u24 v1, 5120, v1
        v_and_b32 v2, 127, v0
        v_lshl_add_u32 v1, v2, 2, v1
        v_add_u32 v1, {L_CT}, v1
        """)
        for q in range(10): a(f"ds_write_b32 v1, v{40+q} offset:{q*512}")

    def kgen_main(self, IDX):
        a = self.a
        a(f"""
        s_lshr_b32 {S_T0}, {S_W}, 1
        s_mul_i32 {S_T0}, {S_T0}, 5120
        s_and_b32 {S_T1}, {S_W}, 1
        s_lshl_b32 {S_T1}, {S_T1}, 8
        s_add_u32 {S_T0}, {S_T0}, {S_T1}
        s_add_u32 {S_T0}, {S_T0}, {L_CT}
        v_lshlrev_b32 v1, 4, v{V_H}
        v_add_u32 v1, {S_T0}, v1
        v_cvt_f32_u32 v2, v{V_L16}
        v_mov_b32 v3, v2
        """)
        ACC = 160
        def kstep(B, off, first):
            Q = lambda q: B + 4*q
            FR, FI, T0, T1 = B+40, B+44, B+48, B+52
            A0, A1, F0F, F2F = B+56, B+60, B+64, B+68
            rd = [f"ds_read_b128 {v4(Q(q))}, v1 offset:{q*512 + off}" for q in range(10)]
            L = []
            for h in (0, 2):
                L.append(f"v_pk_mul_f32 {pk(T0+h)}, {pk(Q(0)+h)}, v[2:3]")
                L.append(f"v_pk_mul_f32 {pk(T1+h)}, {pk(Q(1)+h)}, v[2:3]")
            for i in range(4):
                L.append(f"v_exp_f32 v{T0+i}, v{T0+i}")
            for i in range(4):
                L.append(f"v_cos_f32 v{FR+i}, v{T1+i}")
                L.append(f"v_sin_f32 v{FI+i}, v{T1+i}")
            for h in (0, 2):
                L.append(f"v_pk_mul_f32 {pk(FR+h)}, {pk(FR+h)}, {pk(T0+h)}")
                L.append(f"v_pk_mul_f32 {pk(FI+h)}, {pk(FI+h)}, {pk(T0+h)}")
            def packF(dst):
                L.extend([f"v_cvt_pk_bf16_f32 v{dst}, v{FR}, v{FR+1}", f"v_cvt_pk_bf16_f32 v{dst+1}, v{FR+2}, v{FR+3}",
                          f"v_cvt_pk_bf16_f32 v{dst+2}, v{FI}, v{FI+1}", f"v_cvt_pk_bf16_f32 v{dst+3}, v{FI+2}, v{FI+3}"])
            def sq():
                for h in (0, 2):
                    L.append(f"v_pk_mul_f32 {pk(T0+h)}, {pk(FI+h)}, {pk(FI+h)}")
                    L.append(f"v_pk_mul_f32 {pk(T1+h)}, {pk(FR+h)}, {pk(FI+h)}")
                for h in (0, 2):
                    L.append(f"v_pk_fma_f32 {pk(FR+h)}, {pk(FR+h)}, {pk(FR+h)}, {pk(T0+h)} neg_lo:[0,0,1] neg_hi:[0,0,1]")
                    L.append(f"v_pk_add_f32 {pk(FI+h)}, {pk(T1+h)}, {pk(T1+h)}")
            def gmul(q, dst):
                cr, ci = Q(q), Q(q+1)
                for h in (0, 2):
                    L.append(f"v_pk_mul_f32 {pk(T0+h)}, {pk(ci+h)}, {pk(FI+h)}")
                    L.append(f"v_pk_mul_f32 {pk(T1+h)}, {pk(ci+h)}, {pk(FR+h)}")
                for h in (0, 2):
                    L.append(f"v_pk_fma_f32 {pk(T0+h)}, {pk(cr+h)}, {pk(FR+h)}, {pk(T0+h)} neg_lo:[0,0,1] neg_hi:[0,0,1]")
                    L.append(f"v_pk_fma_f32 {pk(T1+h)}, {pk(cr+h)}, {pk(FI+h)}, {pk(T1+h)} neg_lo:[1,0,1] neg_hi:[1,0,1]")
                L.extend([f"v_cvt_pk_bf16_f32 v{dst}, v{T0}, v{T0+1}", f"v_cvt_pk_bf16_f32 v{dst+1}, v{T0+2}, v{T0+3}",
                          f"v_cvt_pk_bf16_f32 v{dst+2}, v{T1}, v{T1+1}", f"v_cvt_pk_bf16_f32 v{dst+3}, v{T1+2}, v{T1+3}"])
            def mm(T, A, F):
                c = '0' if first else v4(ACC+4*T)
                L.append(f"v_mfma_f32_16x16x32_bf16 {v4(ACC+4*T)}, {v4(A)}, {v4(F)}, {c}")
            packF(F0F); sq(); sq(); packF(F2F); sq(); sq()
            gmul(2, A0); mm(0, A0, F0F); gmul(4, A1); mm(1, A1, F0F)
            sq(); sq()
            gmul(6, A0); mm(2, A0, F2F); gmul(8, A1); mm(3, A1, F2F)
            return rd, L
        BA, BB = 8, 84
        def sprinkle(L, groups):
            step = max(1, len(L) // (len(groups) + 1)); out = []
            for i, x in enumerate(L):
                out.append(x)
                if groups and (i + 1) % step == 0: out += groups.pop(0)
            for g in groups: out += g
            return out
        for i in range(16): a(f"v_mov_b32 v{ACC+i}, 0")
        lk = a.label('KG'); lk2 = a.label('KG')
        a(f"s_mov_b32 {S_T4}, 0\n{lk}:")
        rdA, LA = kstep(BA, 0, False)
        rdB, LB = kstep(BB, 64, False)
        self.emit(rdA[:2] + rdB[:2] + rdA[2:] + rdB[2:])
        a("s_waitcnt lgkmcnt(15)")
        n_pre = 4+4+8+4 + 4+16+4+16
        self.emit(zipmerge(LA[:n_pre], LB[:n_pre]))
        a("s_waitcnt lgkmcnt(0)")
        self.emit(zipmerge(LA[n_pre:], LB[n_pre:]))
        a(f"v_add_u32 v1, 128, v1\ns_cmp_eq_u32 {S_T4}, 0\ns_cbranch_scc0 {lk2}")
        self.arrive_first()
        self.stamp()
        a(f"s_mov_b32 {S_T4}, 1\ns_branch {lk}\n{lk2}:\ns_nop 7")
        lf = a.label('AF')
        a(f"s_cmp_eq_u32 {S_W}, 0\ns_cbranch_scc0 {lf}\ns_mov_b64 exec, 1")
        self.arrive_finish()
        a(f"s_mov_b64 exec, -1\n{lf}:")
        self.sub(2)
        a(f"""
        s_lshr_b32 {S_T0}, {S_W}, 1
        s_mul_i32 {S_T0}, {S_T0}, 4224
        s_and_b32 {S_T1}, {S_W}, 1
        s_mul_i32 {S_T1}, {S_T1}, 8448
        s_add_u32 {S_T0}, {S_T0}, {S_T1}
        s_add_u32 {S_T0}, {S_T0}, {L_KD}
        v_mul_u32_u24 v1, 264, v{V_H}
        v_lshl_add_u32 v1, v{V_L16}, 2, v1
        v_add_u32 v1, {S_T0}, v1
        """)
        for T in range(4):
            for r in range(4):
                a(f"ds_write_b32 v1, v{ACC+4*T+r} offset:{1056*T+64*r+4*(r>>1)}")
        a("s_waitcnt vmcnt(0) lgkmcnt(0)\ns_barrier")
        self.sub(3)
        VAL = 8
        for part in range(2):
            for ch in range(2):
                for i in range(9):
                    a(f"ds_read_b32 v{VAL+18*part+9*ch+i}, v{IDX+i} offset:{8448*part + 4224*ch}")
        a(f"""
        v_cmp_ne_u32 vcc, 255, v0
        v_lshlrev_b32 v1, 4, v0
        v_add_u32 v1, {L_KC + 8}, v1
        s_waitcnt lgkmcnt(0)
        """)
        for i in range(18): a(f"v_add_f32 v{VAL+i}, v{VAL+i}, v{VAL+18+i}")
        a(f"v_cndmask_b32 v{VAL+8}, 0, v{VAL+8}, vcc\nv_cndmask_b32 v{VAL+17}, 0, v{VAL+17}, vcc")
        self.sub(4)
        for ch in range(2):
            for m0 in range(2):
                o = 80 + 4*(2*ch+m0)
                s0 = VAL + 9*ch + (1 - m0)
                for p in range(4): a(f"v_cvt_pk_bf16_f32 v{o+p}, v{s0+2*p}, v{s0+2*p+1}")
                a(f"ds_write_b64 v1, {pk(o)} offset:{ch*8448+m0*4224}")
                a(f"ds_write_b64 v1, {pk(o+2)} offset:{ch*8448+m0*4224+8}")
        a(f"""
        v_cmp_gt_u32 vcc, 14, v{V_L16}
        v_mul_u32_u24 v1, 4224, v{V_H}
        v_lshl_add_u32 v1, v{V_L16}, 2, v1
        v_add_u32 v1, {L_KC + 4104}, v1
        v_mov_b32 v2, 0
        s_cmp_eq_u32 {S_W}, 0
        s_cselect_b64 {S_EXS}, vcc, 0
        s_mov_b64 exec, {S_EXS}
        ds_write_b32 v1, v2
        s_mov_b64 exec, -1
        s_waitcnt lgkmcnt(0)
        """)
        self.sub(5)
        a("s_barrier")

    def wfrag_loads(self):
        setup = lines(f"""
        s_lshl_b32 {S_T0}, {S_CG}, 2
        s_add_u32 {S_T0}, {S_T0}, {S_W}
        s_lshl_b32 {S_T0}, {S_T0}, 14
        s_add_u32 s79, {S_T0}, {WQF}
        s_add_u32 {S_DS}, s79, {1 << 19}
        v_lshlrev_b32 v18, 4, v{V_LANE}
        """)
        groups = []
        for p in (1, 2):
            for ks in range(16):
                g = [f"buffer_load_dwordx4 a[{64*p+4*ks}:{64*p+4*ks+3}], v18, {SRD_WS}, {S_DS} offen sc1"]
                g.append(f"s_add_u32 {S_DS}, {S_DS}, {1024 if ks < 15 else (1 << 19) - 15*1024}")
                groups.append(g)
        for ks in list(range(QSPLIT, 16)):
            groups.append([f"s_add_u32 {S_T5}, s79, {ks*1024}", f"buffer_load_dwordx4 a[{4*ks}:{4*ks+3}], v18, {SRD_WS}, {S_T5} offen sc1"])
        for ks in range(QSPLIT):
            groups.append([f"s_add_u32 {S_T5}, s79, {ks*1024}", f"buffer_load_dwordx4 a[{4*ks}:{4*ks+3}], v111, {SRD_WS}, {S_T5} offen sc1"])
        return setup, groups

    def wsum(self, o=16, parts=(1, 2)):
        a = self.a
        for i in range(4): a(f"v_mov_b32 v{o+i}, {S_ONES}")
        for ks in range(16):
            for p in parts:
                d = v4(o+4+4*p); c = '0' if ks == 0 else d
                w = f"a[{64*p+4*ks}:{64*p+4*ks+3}]"
                if p == 0: a(f"v_mfma_f32_16x16x32_bf16 {d}, {w}, {v4(o)}, {c}")
                else: a(f"v_mfma_f32_16x16x32_bf16 {d}, {v4(o)}, {w}, {c}")
        if 0 in parts:
            for i in range(4): a(f"v_mov_b32 v{V_WSQ+i}, v{o+4+i}")
        if 1 in parts: a(f"v_mov_b32 v{V_WSK}, v{o+8}")
        if 2 in parts: a(f"v_mov_b32 v{V_WSV}, v{o+12}")

    CV = dict(XA=10, ST=20, AX=3, AS=4, AU0=5, AU1=6, AK=8, AU=9, ACC=80, X32=200, U32=216)
    def conv_pre(self):
        a = self.a
        a(f"""
        s_lshl_b32 {S_T0}, {S_ID}, 13
        s_add_u32 {S_T0}, {S_T0}, {S_XIN}
        v_lshlrev_b32 v3, 3, v0
        v_add_u32 v3, {S_T0}, v3
        v_lshlrev_b32 v4, 4, v0
        v_add_u32 v4, {S_ST}, v4
        v_lshlrev_b32 v5, 3, v0
        v_add_u32 v5, {L_U + 512}, v5
        v_add_u32 v6, 9280, v5
        v_bfe_u32 v1, v0, 5, 2
        v_mul_u32_u24 v1, 4640, v1
        v_and_b32 v2, 31, v0
        v_lshl_add_u32 v1, v2, 4, v1
        v_add_u32 v1, {L_U}, v1
        v_mov_b32 v36, 0
        v_mov_b32 v37, 0
        v_mov_b32 v38, 0
        v_mov_b32 v39, 0
        v_and_b32 v2, 1, v0
        v_mul_u32_u24 v2, 9280, v2
        v_add_u32 v2, {L_U + 512}, v2
        ds_write_b32 v2, v36
        v_cmp_gt_u32 vcc, 128, v0
        s_and_saveexec_b64 {S_EXS}, vcc
        ds_write_b128 v1, v[36:39]
        s_mov_b64 exec, -1
        s_lshr_b32 {S_T0}, {S_W}, 1
        s_and_b32 {S_T1}, {S_W}, 1
        s_mul_i32 {S_T2}, {S_T0}, 8448
        s_lshl_b32 {S_T3}, {S_T1}, 8
        s_sub_u32 {S_T2}, {S_T2}, {S_T3}
        s_add_u32 {S_T2}, {S_T2}, {L_KC + 4096 - 192 - 3584}
        v_and_b32 v1, 1, v{V_L16}
        v_lshrrev_b32 v7, 1, v{V_L16}
        v_mul_u32_u24 v8, 4224, v1
        v_lshl_add_u32 v8, v{V_H}, 4, v8
        v_lshlrev_b32 v9, 3, v7
        v_sub_u32 v8, v8, v9
        v_add_u32 v8, {S_T2}, v8
        s_mul_i32 {S_T2}, {S_T0}, 9280
        s_sub_u32 {S_T2}, {S_T2}, {S_T3}
        s_add_u32 {S_T2}, {S_T2}, {L_U + 512 - 192}
        v_mul_u32_u24 v9, 4640, v1
        v_lshl_add_u32 v9, v7, 6, v9
        v_lshl_add_u32 v9, v{V_H}, 4, v9
        v_add_u32 v9, {S_T2}, v9
        s_lshl_b32 {S_T1}, {S_T1}, 1
        s_add_u32 {S_T0}, {S_T0}, {S_T1}
        s_mul_i32 {S_T0}, {S_T0}, 9216
        s_add_u32 {S_T0}, {S_T0}, {L_Y}
        v_mul_u32_u24 v2, 144, v7
        v_lshl_add_u32 v2, v{V_H}, 5, v2
        v_lshl_add_u32 v2, v1, 3, v2
        v_add_u32 v2, {S_T0}, v2
        v_lshrrev_b32 v7, 3, v0
        v_add_u32 v7, v7, v0
        v_lshlrev_b32 v7, 4, v7
        v_add_u32 v7, {L_Y}, v7
        s_waitcnt lgkmcnt(0)
        """)
        for i in (0, 1, 3):
            for q in range(8):
                for hh in range(2):
                    b = {0: 112, 1: 192, 3: 224}[i] + 4*q + 2*hh
                    reg = f"{'v' if i == 0 else 'a'}[{b}:{b+1}]"
                    a(f"ds_read_b64 {reg}, v8 offset:{(3-i)*64 + (7-q)*512 + 8*hh}")

    def poll_issue(self, base, lanes_reg, dst):
        self.a(f"buffer_load_dword v{dst}, v{lanes_reg}, {SRD_WS}, 0 offen offset:0 sc1")
    def poll_check(self, addr_reg, dst, tgt, nyounger):
        a = self.a
        lp = a.label('PC'); ld = a.label('PCD')
        a(f"""
        s_waitcnt vmcnt({nyounger})
        s_mov_b32 {S_SPIN}, 0
        {lp}:
        v_cmp_gt_u32 vcc, {tgt}, v{dst}
        s_and_b32 vcc_lo, vcc_lo, 0xffff
        s_mov_b32 vcc_hi, 0
        s_cbranch_vccz {ld}
        s_sleep 2
        s_mov_b64 exec, 0xffff
        buffer_load_dword v{dst}, v{addr_reg}, {SRD_WS}, 0 offen sc1
        s_mov_b64 exec, -1
        s_add_u32 {S_SPIN}, {S_SPIN}, 1
        s_waitcnt vmcnt(0)
        s_cmp_lt_u32 {S_SPIN}, 0x200000
        s_cbranch_scc1 {lp}
        {ld}:
        """)
    def arrive_flat(self, cnt_reg, nyounger):
        a = self.a; l = a.label('AF')
        a(f"""
        s_waitcnt vmcnt({nyounger})
        s_barrier
        s_cmp_eq_u32 {S_W}, 0
        s_cbranch_scc0 {l}
        s_mov_b64 exec, 1
        buffer_atomic_add v{V_ONE}, v{cnt_reg}, {SRD_WS}, 0 offen sc1
        s_mov_b64 exec, -1
        {l}:
        """)

    def conv(self):
        a = self.a
        self.sub(0)
        XA, XB, ST = 10, 14, 20
        for j in range(4):
            a(f"s_mov_b32 {S_T0}, {4096*j}\nbuffer_load_dwordx4 {v4(ST+4*j)}, v4, {SRD_WS}, {S_T0} offen sc1")
        a(f"""
        buffer_load_dwordx2 v[10:11], v3, {SRD_WS}, 0 offen sc1
        buffer_load_dwordx2 v[12:13], v3, {SRD_WS}, 0 offen offset:2048 sc1
        v_add_u32 v1, 4096, v3
        buffer_load_dwordx2 v[14:15], v1, {SRD_WS}, 0 offen sc1
        buffer_load_dwordx2 v[16:17], v1, {SRD_WS}, 0 offen offset:2048 sc1
        s_mov_b32 s66, {fx(1/512)}
        s_mov_b32 s67, {fx(1e-5)}
        v_mov_b32 v36, s66
        v_mov_b32 v37, s66
        v_mov_b32 v38, s67
        v_mov_b32 v39, s67
        """)
        setup, self.wg = self.wfrag_loads()
        l1 = a.label('CW'); l2 = a.label('CW')
        a(f"s_cmp_eq_u32 {S_LAYER}, 0\ns_cselect_b64 vcc, -1, 0\ns_cbranch_scc0 {l1}")
        self.emit(setup)
        for g in self.wg[:8]: self.emit(g)
        a(f"s_waitcnt vmcnt(12)\ns_branch {l2}\n{l1}:\ns_waitcnt vmcnt(4)\n{l2}:")
        self.sub(1)
        S = lambda i: ST + 2*i
        P  = 40
        MB = 48; VB = 56; R = 64; MR = 72
        for i in range(8): a(f"v_pk_mul_f32 {pk(S(i))}, {pk(S(i))}, v[36:37]")
        for i in range(8): a(f"v_fma_f32 v{S(i)+1}, -v{S(i)}, v{S(i)}, v{S(i)+1}")
        for i in range(8): a(f"v_cvt_pk_bf16_f32 v{P+i}, v{S(i)}, v{S(i)+1}")
        for i in range(8): a(f"v_and_b32 v{VB+i}, 0xffff0000, v{P+i}")
        for i in range(4): a(f"v_pk_add_f32 {pk(VB+2*i)}, {pk(VB+2*i)}, v[38:39]")
        for i in range(8): a(f"v_lshlrev_b32 v{MB+i}, 16, v{P+i}")
        for i in range(4): a(f"v_cvt_pk_bf16_f32 v{P+i}, v{VB+2*i}, v{VB+2*i+1}")
        for i in range(4):
            a(f"v_lshlrev_b32 v{VB+2*i}, 16, v{P+i}\nv_and_b32 v{VB+2*i+1}, 0xffff0000, v{P+i}")
        X32, U32 = 200, 216
        XT_ = 20
        fill = []
        for c, X in enumerate((XA, XB)):
            for p in range(4):
                fill.append(f"v_lshlrev_b32 v{XT_+8*c+2*p}, 16, v{X+p}")
                fill.append(f"v_and_b32 v{XT_+8*c+2*p+1}, 0xffff0000, v{X+p}")
        for i in range(8): a(f"v_sqrt_f32 v{VB+i}, v{VB+i}")
        for i in range(4): a(f"v_cvt_pk_bf16_f32 v{P+i}, v{VB+2*i}, v{VB+2*i+1}")
        for i in range(4):
            a(f"v_lshlrev_b32 v{VB+2*i}, 16, v{P+i}\nv_and_b32 v{VB+2*i+1}, 0xffff0000, v{P+i}")
        l1 = a.label('CW'); l2 = a.label('CW')
        a(f"s_cbranch_vccz {l1}\ns_waitcnt vmcnt(8)\ns_branch {l2}\n{l1}:\ns_waitcnt vmcnt(0)\n{l2}:")
        self.emit(weave([f"v_rcp_f32 v{R+i}, v{VB+i}" for i in range(8)], fill, per=2))
        for i in range(4): a(f"v_pk_mul_f32 {pk(MR+2*i)}, {pk(MB+2*i)}, {pk(R+2*i)}")
        self.sub(2)
        for c in range(2):
            for p in range(4):
                x = XT_+8*c+2*p; u = U32+8*c+2*p
                a(f"v_pk_fma_f32 {pk(u)}, {pk(x)}, {pk(R+2*p)}, {pk(MR+2*p)} neg_lo:[0,0,1] neg_hi:[0,0,1]")
        UP = 40
        for c in range(2):
            for p in range(4):
                u = U32+8*c+2*p
                a(f"v_cvt_pk_bf16_f32 v{UP+4*c+p}, v{u}, v{u+1}")
            ad = 5 + c
            a(f"ds_write_b64 v{ad}, {pk(UP+4*c)} offset:4640")
            a(f"ds_write_b64 v{ad}, {pk(UP+4*c+2)} offset:{4640+2048}")
            a(f"ds_write2_b32 v{ad}, v{UP+4*c}, v{UP+4*c+1} offset0:1 offset1:2")
            a(f"ds_write_b32 v{ad}, v{UP+4*c+2} offset:{2048+4}")
            a(f"ds_write_b32 v{ad}, v{UP+4*c+3} offset:{2048+8}")
        AK, AU, ACC = 8, 9, 80
        a("s_waitcnt lgkmcnt(0)\ns_barrier")
        self.sub(3)
        ABASE = {0: ('v', 112), 1: ('a', 192), 2: ('v', 40), 3: ('a', 224)}
        def fragA(i, q):
            f, b = ABASE[i]; return f"{f}[{b+4*q}:{b+4*q+3}]"
        BB = [[144+4*q for q in range(8)], [176, 180, 184, 188, 192, 196, 72, 76]]
        def fragB(st, q): return v4(BB[st][q])
        def loadB(i, st, nq): return [f"ds_read_b128 {fragB(st, q)}, v{AU} offset:{(3-i)*64 + 512*q}" for q in range(nq)]
        def loadA2():
            L = []
            for q in range(8):
                for hh in range(2):
                    b = 40 + 4*q + 2*hh
                    L.append(f"ds_read_b64 v[{b}:{b+1}], v{AK} offset:{(3-2)*64 + (7-q)*512 + 8*hh}")
            return L
        def ywrite(ts):
            for t in ts:
                a(f"ds_write_b64 v2, {pk(ACC+4*t)} offset:{1152*t}")
                a(f"ds_write_b64 v2, {pk(ACC+4*t+2)} offset:{1152*t+16}")
        Y0 = 20
        def final(h, outreg):
            for ch in range(2):
                for sh in range(2):
                    a(f"ds_read_b128 {v4(Y0 + 8*ch + 4*sh)}, v7 offset:{sh*18432 + ch*9216 + h*4608}")
            for ch in range(2):
                a(f"s_waitcnt lgkmcnt({2*(1-ch)})")
                D = V_DSK0 if ch == 0 else V_DSK1
                y = Y0 + 8*ch
                for p in range(2): a(f"v_pk_add_f32 {pk(y+2*p)}, {pk(y+2*p)}, {pk(y+4+2*p)}")
                for p in range(2): a(f"v_pk_fma_f32 {pk(y+2*p)}, {pk(U32 + 8*ch + 4*h + 2*p)}, {pk(D)}, {pk(y+2*p)} op_sel_hi:[1,0,1]")
                for p in range(2):
                    xr = 10 + 4*ch + 2*h + p
                    a(f"v_lshlrev_b32 v{y+4+2*p}, 16, v{xr}\nv_and_b32 v{y+5+2*p}, 0xffff0000, v{xr}")
                for p in range(2): a(f"v_pk_add_f32 {pk(y+2*p)}, {pk(y+2*p)}, {pk(y+4+2*p)}")
                for p in range(2): a(f"v_cvt_pk_bf16_f32 v{outreg+2*ch+p}, v{y+2*p}, v{y+2*p+1}")
                a(f"buffer_store_dwordx2 {pk(outreg+2*ch)}, v{3 if ch == 0 else 1}, {SRD_WS}, 0 offen offset:{2048*h} sc1")
        groups = list(self.wg[8:48-QSPLIT])
        def wgroup(n):
            if not groups: return
            lg = a.label('WG')
            a(f"s_cbranch_vccz {lg}")
            for _ in range(n):
                if groups: self.emit(groups.pop(0))
            a(f"{lg}:")
        self.emit(loadB(0, 0, 4) + loadA2())
        a(f"""
        v_subrev_u32 v3, {S_XIN}, v3
        v_add_u32 v3, {S_XOUT}, v3
        v_add_u32 v1, 4096, v3
        """)
        written = set()
        for i in range(4):
            st = i & 1
            a("s_waitcnt lgkmcnt(0)")
            nxt = loadB(i+1, st ^ 1, 4) if i < 3 else loadB(0, st ^ 1, 8)
            for sh in range(4):
                for t in range(sh, 4):
                    c = v4(ACC+4*t) if t in written else '0'
                    written.add(t)
                    a(f"v_mfma_f32_16x16x32_bf16 {v4(ACC+4*t)}, {fragA(i, sh)}, {fragB(st, t-sh)}, {c}")
                    if nxt: a(nxt.pop(0))
            if i == 1: wgroup(4)
        ywrite(range(4))
        a("s_waitcnt lgkmcnt(0)\ns_barrier")
        final(0, 36)
        self.sub(4)
        nst = 0
        for i in range(4):
            st = i & 1
            a("s_waitcnt lgkmcnt(0)")
            nxt = loadB(i+1, st ^ 1, 8) if i < 3 else []
            cnt = 0
            for sh in range(8):
                for t in range(max(sh, 4), 8):
                    c = v4(ACC+4*t) if t in written else '0'
                    written.add(t)
                    a(f"v_mfma_f32_16x16x32_bf16 {v4(ACC+4*t)}, {fragA(i, sh)}, {fragB(st, t-sh)}, {c}")
                    cnt += 1
                    if nxt: a(nxt.pop(0))
                    if cnt in (8, 20): wgroup(4)
            if i == 1:
                l1 = a.label('CA'); l2 = a.label('CA')
                a(f"s_cbranch_vccz {l1}\ns_waitcnt vmcnt(16)\ns_branch {l2}\n{l1}:\ns_waitcnt vmcnt(0)\n{l2}:")
                self.arrive_flat(V_CNTA, 63)
        wgroup(64)
        assert not groups
        self.sub(5)
        ywrite(range(4, 8))
        a(f"s_mov_b64 exec, 0xffff\nbuffer_load_dword v{V_PA}, v{V_POLLA}, {SRD_WS}, 0 offen sc1\ns_mov_b64 exec, -1")
        a("s_waitcnt lgkmcnt(0)\ns_barrier")
        final(1, 36)
        self.sub(6)
        self.subflush(0, 7)

    def wstage_kv(self):
        a = self.a
        l = a.label('WS')
        a(f"s_cmp_eq_u32 {S_LAYER}, 0\ns_cbranch_scc0 {l}")
        self.wsum()
        a(f"{l}:")

    def qkv_pre(self):
        a = self.a
        a(f"""
        v_lshrrev_b32 v210, 2, v{V_LANE}
        v_lshlrev_b32 v210, 12, v210
        v_bfe_u32 v197, v{V_LANE}, 1, 1
        v_lshrrev_b32 v198, 5, v{V_LANE}
        v_xor_b32 v197, v197, v198
        v_lshl_add_u32 v210, v197, 5, v210
        v_and_b32 v197, 1, v{V_LANE}
        v_lshl_add_u32 v210, v197, 4, v210
        s_lshl_b32 {S_T0}, {S_RT}, 6
        v_add_u32 v210, {S_T0}, v210
        v_lshrrev_b32 v197, 2, v{V_L16}
        v_lshl_add_u32 v198, v{V_H}, 3, v197
        v_lshlrev_b32 v198, 6, v198
        v_and_b32 v199, 3, v{V_L16}
        v_lshl_add_u32 v198, v199, 3, v198
        v_add_u32 v198, {L_XL}, v198
        v_and_b32 v197, 1, v{V_H}
        s_and_b32 {S_T0}, {S_W}, 1
        v_xor_b32 v197, {S_T0}, v197
        v_lshl_add_u32 v200, v197, 5, v198
        v_xor_b32 v197, 1, v197
        v_lshl_add_u32 v201, v197, 5, v198
        s_lshr_b32 {S_T0}, {S_W}, 1
        s_lshl_b32 {S_T0}, {S_T0}, 11
        v_add_u32 v202, {S_T0}, v200
        s_lshl_b32 {S_T0}, {S_CG}, 2
        s_add_u32 {S_T0}, {S_T0}, {S_W}
        s_lshl_b32 {S_T1}, {S_T0}, 10
        v_lshlrev_b32 v197, 2, v{V_LANE}
        v_add_u32 v212, {S_T1}, v197
        s_and_b32 {S_T2}, {S_RT}, 3
        s_lshl_b32 {S_T2}, {S_T2}, 8
        s_add_u32 {S_T2}, {S_T2}, {S_T1}
        v_add_u32 v213, {S_T2}, v197
        s_lshl_b32 {S_T2}, {S_RT}, 15
        s_add_u32 {S_T1}, {S_T1}, {S_T2}
        s_and_b32 {S_T2}, {S_W}, 1
        s_lshl_b32 {S_T2}, {S_T2}, 4
        v_xor_b32 v197, {S_T2}, v{V_LANE}
        v_lshlrev_b32 v197, 4, v197
        v_add_u32 v211, {S_T1}, v197
        v_lshlrev_b32 v214, 4, v{V_LANE}
        s_lshr_b32 {S_T0}, {S_W}, 1
        s_lshl_b32 {S_T0}, {S_T0}, 8
        s_and_b32 {S_T1}, {S_W}, 1
        s_lshl_b32 {S_T1}, {S_T1}, 7
        s_add_u32 {S_T0}, {S_T0}, {S_T1}
        s_add_u32 {S_T0}, {S_T0}, {L_P2}
        v_lshlrev_b32 v203, 3, v{V_L16}
        v_add_u32 v203, {S_T0}, v203
        v_and_b32 v197, 31, v{V_LANE}
        v_lshlrev_b32 v205, 2, v197
        v_lshlrev_b32 v204, 3, v197
        v_add_u32 v204, {L_P2}, v204
        s_lshl_b32 {S_T0}, {S_W}, 8
        s_add_u32 {S_T0}, {S_T0}, {L_RW}
        v_add_u32 v205, {S_T0}, v205
        s_and_b32 {S_T1}, {S_W}, 1
        s_lshl_b32 {S_T1}, {S_T1}, 6
        s_add_u32 {S_T0}, {S_T0}, {S_T1}
        v_lshlrev_b32 v206, 4, v{V_H}
        v_add_u32 v206, {S_T0}, v206
        v_lshlrev_b32 v207, 2, v{V_L16}
        v_add_u32 v207, {S_T0}, v207
        v_xor_b32 v208, 64, v206
        v_xor_b32 v209, 64, v207
        """)

    def qkv(self):
        a = self.a
        self.sub(0)
        def dma(h):
            return lines(f"""
            s_mov_b32 m0, {S_DM}
            s_add_u32 {S_DM}, {S_DM}, 4096
            buffer_load_dwordx4 v210, {SRD_WS}, {S_DS} offen sc1 lds
            s_add_u32 {S_DS}, {S_DS}, {64*4096}
            """)
        AK_, AV_, AQ_ = 24, 32, 40
        DS, DG = 64, 68
        ONES = 104
        XF = [72, 80]; SF = [88, 92]
        EPS, L2E = 112, 114
        R4, M4 = 128, 136
        RQ, MQ = 144, 148
        PKF, VF, PQF = 168, 176, 152
        S_PQB = 's43'
        DKV, DZ = 196, 216
        def wo_group():
            lg = a.label('WOG')
            a(f"s_cmp_eq_u32 {S_LAYER}, 0\ns_cbranch_scc0 {lg}")
            for _ in range(4):
                a(f"""
                s_mov_b32 m0, s85
                s_add_u32 s85, s85, 1024
                buffer_load_dwordx4 v214, {SRD_WS}, s84 offen sc1 lds
                s_add_u32 s84, s84, 1024
                """)
            a(f"{lg}:")
        wq = list(self.wg[48-QSPLIT:])
        def wq_group():
            if not wq: return
            lg = a.label('WQG')
            a(f"s_cmp_eq_u32 {S_LAYER}, 0\ns_cbranch_scc0 {lg}")
            for _ in range(4):
                if wq: self.emit(wq.pop(0))
            a(f"{lg}:")
        def xload(h, ks, st):
            L = []
            for j in range(2):
                b = XF[st] + 4*j
                L.append(f"ds_read_b64_tr_b16 {pk(b)}, v{200+j} offset:{h*32768 + ks*2048}")
                L.append(f"ds_read_b64_tr_b16 {pk(b+2)}, v{200+j} offset:{h*32768 + ks*2048 + 256}")
            return L
        def sload(h, m, st):
            b = SF[st]
            return [f"ds_read_b64_tr_b16 {pk(b)}, v202 offset:{h*32768 + m*4096}", f"ds_read_b64_tr_b16 {pk(b+2)}, v202 offset:{h*32768 + m*4096 + 256}"]
        SQ = 109
        def F1():
            L = lines(f"""
            v_and_b32 v120, 3, v{V_L16}
            v_lshrrev_b32 v121, 2, v{V_L16}
            v_cmp_eq_u32 s[66:67], 1, v120
            v_cmp_eq_u32 s[68:69], 2, v120
            v_cmp_eq_u32 vcc, 3, v120
            v_cndmask_b32 v{SQ}, v{DG}, v{DG+1}, s[66:67]
            v_cndmask_b32 v{SQ}, v{SQ}, v{DG+2}, s[68:69]
            v_cndmask_b32 v{SQ}, v{SQ}, v{DG+3}, vcc
            v_cmp_eq_u32 vcc, v121, v{V_H}
            v_mov_b32 v108, v{DS}
            v_cndmask_b32 v{SQ}, 0, v{SQ}, vcc
            """)
            L += self.reduce_h(SQ, 110)
            L.append("ds_write_b64 v203, v[108:109]")
            return L
        def F2a(): return ["ds_read_b64 v[120:121], v204", "ds_read_b64 v[122:123], v204 offset:256"]
        def F2b():
            L = ["v_add_f32 v120, v120, v122", "v_add_f32 v121, v121, v123"]
            L += self.ln_final1(120, 121, 116, 117, 124)
            L += ["ds_write_b32 v205, v116", "ds_write_b32 v205, v117 offset:128"]
            return L
        def F2c():
            L = []
            for j in range(2):
                L.append(f"ds_read_b128 {v4(R4+4*j)}, v{206+2*j}")
                L.append(f"ds_read_b128 {v4(M4+4*j)}, v{206+2*j} offset:128")
                L.append(f"ds_read_b32 v{RQ+2*j}, v{207+2*j}")
                L.append(f"ds_read_b32 v{MQ+2*j}, v{207+2*j} offset:128")
            return L
        def phi(x, T):
            return [f"v_pk_mul_f32 {pk(T)}, {pk(x)}, {pk(L2E)}",
                    f"v_exp_f32_e64 v{T}, v{T} clamp", f"v_exp_f32_e64 v{T+1}, v{T+1} clamp",
                    f"v_max_f32 v{x}, v{EPS}, v{x}", f"v_max_f32 v{x+1}, v{EPS}, v{x+1}",
                    f"v_pk_add_f32 {pk(x)}, {pk(x)}, {pk(T)}"]
        def kv_chain(h, j, h2, T):
            k = AK_+4*j+h2; vv = AV_+4*j+h2; r = R4+4*j+h2; m = M4+4*j+h2
            c = [f"v_pk_fma_f32 {pk(T)}, {pk(m)}, v[{V_WSK}:{V_WSK+1}], {pk(EPS)} op_sel_hi:[1,0,1] neg_lo:[0,0,1] neg_hi:[0,0,1]",
                 f"v_pk_mul_f32 {pk(T+4)}, {pk(m)}, v[{V_WSV}:{V_WSV+1}] op_sel_hi:[1,0]",
                 f"v_pk_fma_f32 {pk(k)}, {pk(k)}, {pk(r)}, {pk(T)} neg_lo:[0,0,1] neg_hi:[0,0,1]",
                 f"v_pk_fma_f32 {pk(vv)}, {pk(vv)}, {pk(r)}, {pk(T+4)} neg_lo:[0,0,1] neg_hi:[0,0,1]"]
            ph = phi(k, T+2)
            c += [ph[0], f"v_cvt_pk_bf16_f32 v{VF + 4*h + 2*j + h2//2}, v{vv}, v{vv+1}"] + ph[1:]
            c.append(f"v_cvt_pk_bf16_f32 v{PKF + 4*h + 2*j + h2//2}, v{k}, v{k+1}")
            return c
        def q_chain(h, j, h2, T):
            q = AQ_+4*j+h2
            c = [f"v_pk_fma_f32 {pk(T)}, {pk(MQ+2*j)}, {pk(V_WSQ+h2)}, {pk(EPS)} op_sel_hi:[0,1,1] neg_lo:[0,0,1] neg_hi:[0,0,1]",
                 f"v_pk_fma_f32 {pk(q)}, {pk(q)}, {pk(RQ+2*j)}, {pk(T)} op_sel_hi:[1,0,1] neg_lo:[0,0,1] neg_hi:[0,0,1]"]
            c += phi(q, T+2)
            c.append(f"v_cvt_pk_bf16_f32 v{PQF + 4*h + 2*j + h2//2}, v{q}, v{q+1}")
            return c
        TT = [184, 190, 220, 226]; TQ = [184, 188, 220, 224]
        def ep_kv(h):
            self.emit(zipmerge(kv_chain(h, 0, 0, TT[0]), kv_chain(h, 0, 2, TT[1]), kv_chain(h, 1, 0, TT[2]), kv_chain(h, 1, 2, TT[3])))
            c1 = '0' if h == 0 else v4(DKV); c2 = '0' if h == 0 else v4(DZ)
            a(f"v_mfma_f32_16x16x32_bf16 {v4(DKV)}, {v4(VF+4*h)}, {v4(PKF+4*h)}, {c1}")
            a(f"v_mfma_f32_16x16x32_bf16 {v4(DZ)}, {v4(ONES)}, {v4(PKF+4*h)}, {c2}")
        def ep_q(h):
            self.emit(zipmerge(q_chain(h, 0, 0, TQ[0]), q_chain(h, 0, 2, TQ[1]), q_chain(h, 1, 0, TQ[2]), q_chain(h, 1, 2, TQ[3])))
            b = PQF + 4*h
            a(f"v_permlane16_swap_b32 v{b}, v{b+2}\nv_permlane16_swap_b32 v{b+1}, v{b+3}")
            a(f"buffer_store_dwordx4 {v4(b)}, v211, {SRD_WS}, {S_PQ if h == 0 else S_PQB} offen sc1")
        def gpass(h, waits, hooks):
            XS = [72, 80, 96]
            SS = [88, 92, 52]
            def xl(ks):
                L = []
                for j in range(2):
                    b = XS[ks % 3] + 4*j
                    L.append(f"ds_read_b64_tr_b16 {pk(b)}, v{200+j} offset:{h*32768 + ks*2048}")
                    L.append(f"ds_read_b64_tr_b16 {pk(b+2)}, v{200+j} offset:{h*32768 + ks*2048 + 256}")
                return L
            def sl(m):
                b = SS[m % 3]
                return [f"ds_read_b64_tr_b16 {pk(b)}, v202 offset:{h*32768 + m*4096}", f"ds_read_b64_tr_b16 {pk(b+2)}, v202 offset:{h*32768 + m*4096 + 256}"]
            def pre(ks): return (xl(ks) if ks < 16 else []) + (sl(ks) if ks < 8 else [])
            self.emit(pre(0) + pre(1))
            ex = []
            extra_lds = False
            for ks in range(16):
                nnext = len(pre(ks+1)) if ks + 1 < 16 else 0
                a(f"s_waitcnt lgkmcnt({0 if extra_lds else nnext})")
                if ks in waits: self.emit(waits[ks])
                fill = pre(ks+2) if ks + 2 < 16 else []
                M = []
                for j in range(2):
                    x = v4(XS[ks % 3]+4*j)
                    c = lambda base: '0' if ks == 0 else v4(base+4*j)
                    M.append(f"v_mfma_f32_16x16x32_bf16 {v4(AK_+4*j)}, {x}, a[{64+4*ks}:{64+4*ks+3}], {c(AK_)}")
                    M.append(f"v_mfma_f32_16x16x32_bf16 {v4(AV_+4*j)}, {x}, a[{128+4*ks}:{128+4*ks+3}], {c(AV_)}")
                    M.append(f"v_mfma_f32_16x16x32_bf16 {v4(AQ_+4*j)}, a[{4*ks}:{4*ks+3}], {x}, {c(AQ_)}")
                if ks < 8:
                    x0 = v4(SS[ks % 3])
                    M.append(f"v_mfma_f32_16x16x32_bf16 {v4(DS)}, {v4(ONES)}, {x0}, {'0' if ks == 0 else v4(DS)}")
                    M.append(f"v_mfma_f32_16x16x32_bf16 {v4(DG)}, {x0}, {x0}, {'0' if ks == 0 else v4(DG)}")
                if ks == 8: ex = F1()
                if ks == 11: ex = F2a()
                if ks == 12: ex = F2b()
                if ks == 15: ex = F2c()
                fi = list(fill)
                used = []
                for m in M:
                    a(m)
                    n = 2
                    if FILLPOL == 1:
                        if fi: a(fi.pop(0)); n = 0
                    else:
                        while n > 0 and fi: a(fi.pop(0)); n -= 1
                    while n > 0 and ex:
                        x_ = ex.pop(0); a(x_); used.append(x_); n -= 1
                self.emit(fi)
                if ks in (10, 11, 14, 15):
                    self.emit(ex); used += ex; ex = []
                if ks == 10:
                    a("s_waitcnt lgkmcnt(0)\ns_barrier")
                extra_lds = any(u.startswith('ds_') for u in used) or ks == 10
                if ks in hooks: hooks[ks]()
            self.emit(ex)
            a("s_waitcnt lgkmcnt(0)")
        a(f"""
        s_lshl_b32 {S_DS}, {S_W}, 16
        s_add_u32 {S_DS}, {S_DS}, {S_XIN}
        s_lshl_b32 {S_DM}, {S_W}, 10
        s_add_u32 {S_DM}, {S_DM}, {L_XL}
        s_add_u32 {S_PQB}, {S_PQ}, {32*32*1024}
        s_barrier
        """)
        self.poll_check(V_POLLA, V_PA, S_TGA, 2)
        for i in range(8): self.emit(dma(0))
        a(f"s_add_u32 {S_TGT}, {S_TGT}, 16")
        self.arrive_flat(V_CNT, 8)
        for i in range(4): a(f"v_mov_b32 v{104+i}, {S_ONES}")
        a(f"""
        s_mov_b32 s66, {fx(1e-6)}
        s_mov_b32 s67, {fx(LOG2E)}
        v_mov_b32 v112, s66
        v_mov_b32 v113, s66
        v_mov_b32 v114, s67
        v_mov_b32 v115, s67
        s_lshl_b32 s84, {S_CG}, 16
        s_lshl_b32 {S_T0}, {S_W}, 14
        s_add_u32 s84, s84, {S_T0}
        s_add_u32 s84, s84, {WOFG}
        s_add_u32 s85, {S_T0}, {L_WO}
        s_mov_b32 s42, 0
        """)
        lq = a.label('WSQ')
        a(f"s_cmp_eq_u32 {S_LAYER}, 0\ns_cbranch_scc0 {lq}")
        self.wsum(o=120, parts=(0, 1, 2))
        a(f"{lq}:")
        self.sub(1)
        def wA(idx): return [f"s_waitcnt vmcnt({7 - idx})", "s_barrier"]
        self.emit(wA(2))
        waitsA = {1: wA(4), 3: wA(7)}
        def issue_b():
            a(f"s_sub_u32 {S_DS}, {S_DS}, {8*64*4096 - 2048}")
            for i in range(8): self.emit(dma(1))
            a("s_mov_b32 s42, 1")
        def poll_b(): a(f"s_mov_b64 exec, 0xffff\nbuffer_load_dword v{V_PA}, v{V_POLL}, {SRD_WS}, 0 offen sc1\ns_mov_b64 exec, -1")
        def try_b(repoll):
            def f():
                ln = a.label('TB'); le = a.label('TB')
                a(f"""
                s_cmp_eq_u32 s42, 0
                s_cbranch_scc0 {le}
                s_waitcnt vmcnt(0)
                v_cmp_gt_u32 vcc, {S_TGT}, v{V_PA}
                s_and_b32 vcc_lo, vcc_lo, 0xffff
                s_mov_b32 vcc_hi, 0
                s_cbranch_vccnz {ln}
                """)
                issue_b()
                a(f"s_branch {le}\n{ln}:")
                if repoll: poll_b()
                a(f"{le}:")
            return f
        PB = int(os.environ.get('PB', '10'))
        gpass(0, waitsA, {PB: poll_b})
        self.poll_check(V_POLL, V_PA, S_TGT, 0)
        a(f"s_sub_u32 {S_DS}, {S_DS}, {8*64*4096 - 2048}")
        self.sub(2)
        bd = [dma(1) for _ in range(8)]
        E = zipmerge(kv_chain(0, 0, 0, TT[0]), kv_chain(0, 0, 2, TT[1]), kv_chain(0, 1, 0, TT[2]), kv_chain(0, 1, 2, TT[3]))
        E += [f"v_mfma_f32_16x16x32_bf16 {v4(DKV)}, {v4(VF)}, {v4(PKF)}, 0", f"v_mfma_f32_16x16x32_bf16 {v4(DZ)}, {v4(ONES)}, {v4(PKF)}, 0"]
        out = []
        for i, x in enumerate(E):
            if i % 5 == 0 and bd: out += bd.pop(0)
            out.append(x)
        for g in bd: out += g
        self.emit(out)
        ep_q(0)
        self.sub(3)
        def wB(idx): return [f"s_waitcnt vmcnt({8 - idx})", "s_barrier"]
        self.emit(wB(2))
        self.sub(4)
        waitsB = {1: wB(4), 3: wB(7)}
        gpass(1, waitsB, {7: wo_group, 9: wo_group, 11: wo_group, 13: wo_group})
        self.sub(5)
        ep_kv(1)
        for i in range(4):
            a(f"buffer_atomic_add_f32 v{DKV+i}, v212, {SRD_WS}, {S_KV} offen offset:{256*i}")
        a(f"""
        s_mov_b64 exec, 0xffff
        buffer_atomic_add_f32 v{DZ}, v213, {SRD_WS}, {S_Z} offen
        s_mov_b64 exec, -1
        """)
        ep_q(1)
        self.sub(6)
        self.subflush(1, 7)

    def outp_pre(self):
        a = self.a
        a(f"""
        s_lshl_b32 {S_T0}, {S_W}, 13
        s_add_u32 {S_T0}, {S_T0}, {S_KV}
        v_lshlrev_b32 v4, 4, v{V_LANE}
        v_add_u32 v4, {S_T0}, v4
        v_add_u32 v5, 4096, v4
        s_lshl_b32 {S_T0}, {S_W}, 13
        s_add_u32 {S_T0}, {S_T0}, {S_Z}
        v_bfe_u32 v6, v{V_LANE}, 2, 3
        v_lshlrev_b32 v6, 10, v6
        v_lshrrev_b32 v12, 5, v{V_LANE}
        v_lshl_add_u32 v6, v12, 8, v6
        v_and_b32 v12, 3, v{V_LANE}
        v_lshl_add_u32 v6, v12, 4, v6
        v_add_u32 v6, {S_T0}, v6
        s_and_b32 {S_T0}, {S_W}, 1
        s_lshl_b32 {S_T0}, {S_T0}, 15
        s_lshr_b32 {S_T1}, {S_W}, 1
        s_lshl_b32 {S_T1}, {S_T1}, 14
        s_add_u32 {S_T0}, {S_T0}, {S_T1}
        s_lshl_b32 {S_T1}, {S_RT}, 16
        s_add_u32 {S_T0}, {S_T0}, {S_T1}
        s_add_u32 {S_DS}, {S_T0}, {S_PQ}
        v_lshlrev_b32 v7, 4, v{V_LANE}
        v_lshrrev_b32 v1, 3, v0
        v_and_b32 v3, 7, v0
        s_lshl_b32 {S_T0}, {S_CG}, 18
        s_lshl_b32 {S_T1}, {S_RT}, 7
        s_add_u32 {S_T0}, {S_T0}, {S_T1}
        v_lshlrev_b32 v8, 12, v1
        v_lshl_add_u32 v8, v3, 4, v8
        v_add_u32 v8, {S_T0}, v8
        v_add_u32 v9, {S_XIN}, v8
        v_add_u32 v2, 0x20000, v9
        v_lshrrev_b32 v10, 4, v{V_LANE}
        v_bfe_u32 v11, v{V_LANE}, 2, 2
        v_lshl_add_u32 v10, v11, 2, v10
        v_bfe_u32 v11, v{V_LANE}, 1, 1
        v_lshl_add_u32 v10, v11, 4, v10
        v_lshlrev_b32 v10, 4, v10
        v_and_b32 v11, 1, v{V_LANE}
        v_lshl_add_u32 v10, v11, 3, v10
        s_mul_i32 {S_T0}, {S_W}, {8*544}
        s_add_u32 {S_T0}, {S_T0}, {L_KVF}
        v_add_u32 v10, {S_T0}, v10
        v_bfe_u32 v11, v{V_LANE}, 2, 3
        v_mul_u32_u24 v11, 544, v11
        v_and_b32 v12, 3, v{V_LANE}
        v_lshl_add_u32 v11, v12, 3, v11
        v_add_u32 v11, {S_T0}, v11
        v_and_b32 v12, 31, v{V_LANE}
        v_lshrrev_b32 v13, 5, v{V_LANE}
        v_lshlrev_b32 v14, 4, v13
        v_add_u32 v15, v14, v12
        v_lshlrev_b32 v15, 4, v15
        v_lshlrev_b32 v14, 4, v13
        v_add_u32 v14, 512, v14
        v_cmp_gt_u32 vcc, 16, v12
        v_cndmask_b32 v15, v14, v15, vcc
        s_lshr_b32 {S_T0}, {S_W}, 1
        s_mul_i32 {S_T1}, {S_T0}, {16*544}
        s_add_u32 {S_T1}, {S_T1}, {L_KVF}
        v_add_u32 v15, {S_T1}, v15
        v_lshrrev_b32 v16, 2, v{V_L16}
        v_lshrrev_b32 v17, 1, v{V_H}
        v_lshl_add_u32 v17, v17, 2, v16
        v_lshlrev_b32 v17, 7, v17
        v_and_b32 v18, 3, v{V_L16}
        v_lshl_add_u32 v17, v18, 3, v17
        s_lshl_b32 {S_T1}, {S_T0}, 15
        s_add_u32 {S_T1}, {S_T1}, {L_WO}
        v_add_u32 v17, {S_T1}, v17
        v_and_b32 v18, 2, v16
        v_and_b32 v19, 1, v{V_H}
        v_xor_b32 v18, v18, v19
        v_lshl_add_u32 v13, v18, 5, v17
        v_xor_b32 v18, 2, v18
        v_lshl_add_u32 v14, v18, 5, v17
        s_mul_i32 {S_T1}, {S_T0}, {64*272}
        s_and_b32 {S_T0}, {S_W}, 1
        s_lshl_b32 {S_T0}, {S_T0}, 7
        s_add_u32 {S_T1}, {S_T1}, {S_T0}
        s_add_u32 {S_T1}, {S_T1}, {L_O32}
        v_mul_u32_u24 v16, 272, v12
        v_lshrrev_b32 v17, 5, v{V_LANE}
        v_lshl_add_u32 v16, v17, 4, v16
        v_add_u32 v16, {S_T1}, v16
        v_mul_u32_u24 v17, 272, v1
        v_lshl_add_u32 v17, v3, 5, v17
        v_add_u32 v17, {L_O32}, v17
        v_mul_u32_u24 v18, 144, v1
        v_lshl_add_u32 v18, v3, 4, v18
        v_add_u32 v18, {L_OT}, v18
        """)
        a(f"""
        s_lshr_b32 {S_T0}, {S_W}, 1
        s_lshl_b32 {S_T0}, {S_T0}, 15
        s_add_u32 {S_T0}, {S_T0}, {L_WO}
        v_lshlrev_b32 v13, 4, v{V_LANE}
        v_add_u32 v13, {S_T0}, v13
        """)
        for i in range(16):
            for c in range(2):
                a(f"ds_read_b128 {v4(WOF + 8*i + 4*c)}, v13 offset:{i*2048 + c*1024}")

    def outp(self):
        a = self.a
        self.sub(0)
        KVL = 24
        issued = []
        def ld(txt, tag): a(txt); issued.append(tag)
        for p in range(8):
            ad = 4 if p < 4 else 5; off = (p & 3)*1024
            ld(f"buffer_load_dwordx4 {v4(KVL+4*p)}, v{ad}, {SRD_WS}, 0 offen offset:{off} sc1", 'kv')
        ld(f"buffer_load_dwordx4 v[56:59], v6, {SRD_WS}, 0 offen sc1", 'kv')
        ld(f"buffer_load_dwordx4 v[60:63], v6, {SRD_WS}, 0 offen offset:512 sc1", 'kv')
        def pqload(i):
            ld(f"buffer_load_dwordx4 a[{192+4*i}:{192+4*i+3}], v7, {SRD_WS}, {S_DS} offen sc1", f'pq{i}')
            a(f"s_add_u32 {S_DS}, {S_DS}, 1024")
        NUP = 4
        for i in range(NUP): pqload(i)
        def vm(tag):
            idx = max(i for i, t in enumerate(issued) if t == tag)
            return len(issued) - 1 - idx
        self.sub(1)
        a(f"s_waitcnt vmcnt({vm('kv')})")
        self.sub(2)
        for p in range(8):
            b = KVL + 4*p
            a(f"v_cvt_pk_bf16_f32 v{b}, v{b}, v{b+1}\nv_cvt_pk_bf16_f32 v{b+1}, v{b+2}, v{b+3}")
            a(f"ds_write_b64 v10, {pk(b)} offset:{p*544}")
        a("v_pk_add_f32 v[56:57], v[56:57], v[60:61]\nv_pk_add_f32 v[58:59], v[58:59], v[62:63]")
        for i in range(4):
            a(f"v_mov_b32 v{60+i}, v{56+i}\nv_permlane32_swap_b32 v{56+i}, v{60+i}\nv_add_f32 v{56+i}, v{56+i}, v{60+i}")
        a("v_cvt_pk_bf16_f32 v56, v56, v57\nv_cvt_pk_bf16_f32 v57, v58, v59")
        a(f"ds_write_b64 v11, v[56:57] offset:512")
        AKV = 15
        ACC = [72, 88]
        D1 = [32, 48]; KF = [20, 24, 28]; OF = [64, 68]
        XR = WOF
        for i in range(NUP, 10): pqload(i)
        a("s_waitcnt lgkmcnt(0)\ns_barrier")
        self.sub(3)
        def acc(c): return f"v[{ACC[c]}:{ACC[c]+15}]"
        def rdK(i): return [f"ds_read_b128 {v4(KF[i % 3])}, v{AKV} offset:{i*544}"]
        def m1(i): return f"v_mfma_f32_32x32x16_bf16 v[{D1[i&1]}:{D1[i&1]+15}], {v4(KF[i % 3])}, a[{192+4*i}:{192+4*i+3}], 0"
        def valu(i):
            d = D1[i & 1]; o = OF[i & 1]
            L = [f"v_add_f32 v{d+8}, {fx(1e-6)}, v{d+8}", f"v_rcp_f32 v{d+8}, v{d+8}"]
            L += [f"v_mul_f32 v{d+p}, v{d+p}, v{d+8}" for p in range(8)]
            L += [f"v_cvt_pk_bf16_f32 v{o+p}, v{d+2*p}, v{d+2*p+1}" for p in range(4)]
            return L
        def mo(i, c):
            b = WOF + 8*i + 4*c
            return f"v_mfma_f32_32x32x16_bf16 {acc(c)}, {v4(OF[i&1])}, {v4(b)}, {'0' if i == 0 else acc(c)}"
        self.emit(rdK(0) + rdK(1) + rdK(2))
        a(f"s_waitcnt vmcnt({vm('pq0')}) lgkmcnt(2)")
        a(m1(0))
        a(f"s_waitcnt vmcnt({vm('pq1')}) lgkmcnt(1)")
        a(m1(1))
        self.emit(valu(0))
        nxt = 10
        for i in range(16):
            V = valu(i+1) if i + 1 < 16 else []
            K_ = rdK(i+3) if i + 3 < 16 else []
            if i + 2 < 16: a(f"s_waitcnt vmcnt({vm(f'pq{i+2}')}) lgkmcnt(0)")
            a(mo(i, 0))
            self.emit(V[:2] + K_ + V[2:4])
            if i + 2 < 16: a(m1(i+2))
            self.emit(V[4:10])
            a(mo(i, 1))
            self.emit(V[10:])
            if nxt < 16:
                pqload(nxt); nxt += 1
            if i == 6:
                ld(f"buffer_load_dwordx4 {v4(XR)}, v9, {SRD_WS}, 0 offen sc1", 'x')
                ld(f"buffer_load_dwordx4 {v4(XR+4)}, v2, {SRD_WS}, 0 offen sc1", 'x')
        self.sub(4)
        for c in range(2):
            for aa in range(4):
                a(f"ds_write_b128 v16, {v4(ACC[c]+4*aa)} offset:{c*32*272 + 32*aa}")
        a("s_waitcnt lgkmcnt(0)\ns_barrier")
        Y = 32
        for i in range(2):
            for part in range(2):
                for hh in range(2):
                    a(f"ds_read_b128 {v4(Y+16*i+8*part+4*hh)}, v17 offset:{i*32*272 + part*64*272 + 16*hh}")
        a("s_waitcnt vmcnt(0)")
        self.sub(5)
        lf = a.label('FIN'); le = a.label('OE'); lx = a.label('OX')
        a(f"v_add_u32 v8, {S_XOUT}, v8\nv_add_u32 v9, 0x20000, v8")
        for i in range(2):
            a(f"s_waitcnt lgkmcnt({4*(1-i)})")
            y = Y + 16*i; x = XR + 4*i; t = 132 + 8*i
            for p in range(4): a(f"v_pk_add_f32 {pk(y+2*p)}, {pk(y+2*p)}, {pk(y+8+2*p)}")
            for p in range(4): a(f"v_cvt_pk_bf16_f32 v{y+8+p}, v{y+2*p}, v{y+2*p+1}")
            for p in range(4):
                a(f"v_lshlrev_b32 v{y+2*p}, 16, v{y+8+p}\nv_and_b32 v{y+2*p+1}, 0xffff0000, v{y+8+p}")
                a(f"v_lshlrev_b32 v{t+2*p}, 16, v{x+p}\nv_and_b32 v{t+2*p+1}, 0xffff0000, v{x+p}")
            for p in range(4): a(f"v_pk_add_f32 {pk(y+2*p)}, {pk(y+2*p)}, {pk(t+2*p)}")
            for p in range(4): a(f"v_cvt_pk_bf16_f32 v{160+4*i+p}, v{y+2*p}, v{y+2*p+1}")
            a(f"ds_write_b128 v18, {v4(160+4*i)} offset:{i*32*144}")
        a(f"""
        s_cmp_eq_u32 {S_LAYER}, 0
        s_cbranch_scc0 {lf}
        buffer_store_dwordx4 v[160:163], v8, {SRD_WS}, 0 offen sc1
        buffer_store_dwordx4 v[164:167], v9, {SRD_WS}, 0 offen sc1
        {lf}:
        v_lshrrev_b32 v10, 2, v{V_L16}
        v_lshl_add_u32 v10, v{V_H}, 3, v10
        v_mul_u32_u24 v10, 144, v10
        v_and_b32 v11, 3, v{V_L16}
        v_lshl_add_u32 v10, v11, 3, v10
        s_lshl_b32 {S_T0}, {S_W}, 5
        s_add_u32 {S_T0}, {S_T0}, {L_OT}
        v_add_u32 v10, {S_T0}, v10
        s_waitcnt lgkmcnt(0)
        s_barrier
        ds_read_b64_tr_b16 v[104:105], v10
        ds_read_b64_tr_b16 v[106:107], v10 offset:{4*144}
        ds_read_b64_tr_b16 v[108:109], v10 offset:{32*144}
        ds_read_b64_tr_b16 v[110:111], v10 offset:{36*144}
        s_cmp_eq_u32 {S_LAYER}, 0
        s_cbranch_scc0 {le}
        s_and_b32 {S_T0}, {S_RT}, 15
        s_lshl_b32 {S_T0}, {S_T0}, 8
        s_lshl_b32 {S_T1}, {S_W}, 6
        s_add_u32 {S_T0}, {S_T0}, {S_T1}
        s_lshr_b32 {S_T1}, {S_RT}, 4
        s_lshl_b32 {S_T1}, {S_T1}, 13
        s_add_u32 {S_T0}, {S_T0}, {S_T1}
        s_add_u32 {S_T0}, {S_T0}, {ST3}
        v_bfe_u32 v11, v{V_L16}, 1, 1
        v_lshlrev_b32 v11, 12, v11
        v_lshrrev_b32 v12, 2, v{V_L16}
        v_lshl_add_u32 v11, v12, 4, v11
        v_and_b32 v12, 1, v{V_L16}
        v_lshl_add_u32 v11, v12, 3, v11
        v_lshl_add_u32 v11, v{V_H}, 2, v11
        v_add_u32 v11, {S_T0}, v11
        v_mov_b32 v112, 0
        v_mov_b32 v113, 0
        v_mov_b32 v114, 0
        v_mov_b32 v115, 0
        s_waitcnt lgkmcnt(0)
        """)
        for j in range(4):
            a(f"v_dot2_f32_bf16 v112, v{104+j}, {S_ONES}, v112")
            a(f"v_dot2_f32_bf16 v113, v{104+j}, v{104+j}, v113")
            a(f"v_dot2_f32_bf16 v114, v{108+j}, {S_ONES}, v114")
            a(f"v_dot2_f32_bf16 v115, v{108+j}, v{108+j}, v115")
        a("v_pk_add_f32 v[112:113], v[112:113], v[114:115]")
        self.emit(zipmerge(self.reduce_h(112, 116), self.reduce_h(113, 117)))
        a(f"""
        v_cmp_eq_u32 vcc, 0, v{V_H}
        v_cndmask_b32 v112, v113, v112, vcc
        s_mov_b64 exec, 0xffffffff
        buffer_atomic_add_f32 v112, v11, {SRD_WS}, 0 offen
        s_mov_b64 exec, -1
        s_branch {lx}
        {le}:
        s_lshl_b32 {S_T0}, {S_RT}, 16
        s_lshl_b32 {S_T1}, {S_W}, 14
        s_add_u32 {S_T0}, {S_T0}, {S_T1}
        s_lshl_b32 {S_T1}, {S_CG}, 7
        s_add_u32 {S_T0}, {S_T0}, {S_T1}
        v_lshlrev_b32 v11, 10, v{V_L16}
        v_lshl_add_u32 v11, v{V_H}, 4, v11
        v_add_u32 v11, {S_T0}, v11
        s_waitcnt lgkmcnt(0)
        buffer_store_dwordx4 v[104:107], v11, {SRD_OUT}, 0 offen {OUTF}
        buffer_store_dwordx4 v[108:111], v11, {SRD_OUT}, 0 offen offset:64 {OUTF}
        {lx}:
        """)
        self.sub(6)
        self.subflush(2, 7)

    def build(self):
        a = self.a
        self.prologue()
        if self.ts: a(f"v_mov_b32 v{V_TS}, 0\nv_mov_b32 v{V_TS2}, 0")
        self.stamp()
        self.p0()
        stop = self.stop
        if stop == 'p0':
            self.wait(); a("s_branch L_END")
        a("L_LAYER:")
        for reg, (x0, x1) in ((S_XIN, (XT[0], XT[2])), (S_XOUT, (XT[1], XT[3])), (S_ST, (ST1, ST3)), (S_PQ, PQ), (S_KV, KVM), (S_Z, ZZ)):
            a(f"s_mul_i32 {reg}, {S_LAYER}, {(x1 - x0) & 0xffffffff:#x}")
            a(f"s_add_u32 {reg}, {reg}, {x0:#x}")
        a(f"s_add_u32 {S_TGA}, {S_LAYER}, 1\ns_lshl_b32 {S_TGA}, {S_TGA}, 4")
        self.qkv_pre()
        self.conv_pre()
        self.wait(l0skip=True, sleep0=16, adr=int(os.environ.get('AR_C','1')), adr0=int(os.environ.get('AR_C0','1')), adb=int(os.environ.get('AB_C','1'))); self.stamp()
        self.conv(); self.stamp()
        self.stamp()
        a(f"s_mov_b32 {S_XIN}, {S_XOUT}")
        self.stamp()
        self.qkv(); self.stamp()
        self.arrive(); self.stamp()
        if stop == 'qkv1':
            self.wait(); a("s_branch L_END")
            if os.environ.get('DBGW'):
                a(f"""
                s_lshl_b32 {S_T0}, {S_ID}, 11
                s_add_u32 {S_T0}, {S_T0}, 0x40000
                v_lshlrev_b32 v1, 3, v0
                v_add_u32 v1, {S_T0}, v1
                v_mov_b32 v2, v{V_WSK}
                v_mov_b32 v3, v{V_WSV}
                buffer_store_dwordx2 v[2:3], v1, {SRD_WS}, 0 offen
                """)
            self.wait(); a("s_branch L_END")
        a(f"s_mov_b32 {S_XOUT}, {XT[2]}")
        self.outp_pre()
        self.wait(sleep0=22, adr=int(os.environ.get('AR_O','2')), adr0=int(os.environ.get('AR_O0','3')), adb=int(os.environ.get('AB_O','2'))); self.stamp()
        self.outp(); self.stamp()
        a(f"s_cmp_eq_u32 {S_LAYER}, 1\ns_cbranch_scc1 L_END")
        self.arrive(); self.stamp()
        if stop == 'out1':
            self.wait(); a("s_branch L_END")
        a(f"s_mov_b32 {S_LAYER}, 1\ns_branch L_LAYER\nL_END:")
        self.tsdump()
        a("L_EXIT:\ns_endpgm")
        body = a.finalize()
        hdr = open(os.path.join(os.path.dirname(os.path.abspath(__file__)), 'header.txt')).read()
        hdr = hdr.replace('@@LAUNCH@@', f'; @launch grid=(256,1,1) block=(256,1,1) lds={LDS_SIZE}')
        txt = hdr + f""".amdgcn_target "amdgcn-amd-amdhsa--gfx950"
.text
.globl {NAME}_kernel
.p2align 8
.type {NAME}_kernel,@function
{NAME}_kernel:
""" + body + f""".section .rodata,"a"
.p2align 6
.amdhsa_kernel {NAME}_kernel
  .amdhsa_next_free_vgpr 512
  .amdhsa_next_free_sgpr 102
  .amdhsa_accum_offset 256
  .amdhsa_group_segment_fixed_size 0
  .amdhsa_kernarg_size 104
  .amdhsa_user_sgpr_count 2
  .amdhsa_user_sgpr_kernarg_segment_ptr 1
  .amdhsa_system_sgpr_workgroup_id_x 1
.end_amdhsa_kernel
"""
        return txt

if __name__ == '__main__':
    import argparse
    ap = argparse.ArgumentParser()
    ap.add_argument('--stop', default=None)
    ap.add_argument('--ts', action='store_true')
    ap.add_argument('-o', default='k.s')
    args = ap.parse_args()
    g = Gen(stop=args.stop, ts=args.ts)
    t = g.build()
    open(args.o, 'w').write(t)
    print('instructions', g.a.count(), 'nops inserted', g.a.nnop, 'bytes', len(t))
```
